```python
import torch

def _softmax(x, axis=-1):
    return torch.softmax(x, dim=axis)

def _gelu(x):
    return torch.nn.functional.gelu(x, approximate='tanh')

def _silu(x):
    return torch.nn.functional.silu(x)

def _sigmoid(x):
    return torch.sigmoid(x)

def _layernorm(x, axis=-1, eps=1e-05):
    m = x.mean(dim=axis, keepdim=True)
    v = x.var(dim=axis, keepdim=True, unbiased=False)
    return (x - m) / torch.sqrt(v + eps)

def _scatter_add(tgt, idx, src, axis=0):
    return tgt.clone().index_add_(axis, idx, src)

def _segment_sum(src, seg, n):
    out = torch.zeros((n,) + src.shape[1:], dtype=src.dtype)
    return out.index_add_(0, seg, src)

def _pad(x, pw):
    flat = tuple((v for pair in reversed(pw) for v in pair))
    return torch.nn.functional.pad(x, flat)
kernel_name = 'parallel_sum__sliding_local_dilated__mixer_gmlp__prompt'

def setup_inputs():

    _w = lambda a: (lambda t: t.to(torch.bfloat16) if t.is_floating_point() else t)(torch.as_tensor(a))

    def _A_setup():
        B, S, D = (1, 2048, 512)
        return {'x': _w((lambda *s: torch.randn(*s, dtype=torch.bfloat16) * 0.05)(B, S, D)), 'wqkv': _w((lambda *s: torch.randn(*s, dtype=torch.bfloat16) * 0.1)(D, 3 * D)), 'wo': _w((lambda *s: torch.randn(*s, dtype=torch.bfloat16) * 0.05)(D, D))}
    _A_in = _A_setup()

    def _B_setup():
        B, S, D, F = (1, 2048, 512, 1376)
        Fh = F // 2
        return {'x': _w((lambda *s: torch.randn(*s, dtype=torch.bfloat16) * 0.05)(B, S, D)), 'w_in': _w((lambda *s: torch.randn(*s, dtype=torch.bfloat16) * 0.4)(D, 2 * Fh)), 'w_sp': _w(0.01 * (lambda *s: torch.randn(*s, dtype=torch.bfloat16) * 0.4)(S, S)), 'b_sp': _w(1.0 + 0.01 * (lambda *s: torch.randn(*s, dtype=torch.bfloat16) * 0.05)(S)), 'w_out': _w((lambda *s: torch.randn(*s, dtype=torch.bfloat16) * 0.05)(Fh, D))}
    _B_in = _B_setup()
    return {'A_x': _A_in['x'], 'A_wqkv': _A_in['wqkv'], 'A_wo': _A_in['wo'], 'B_x': _B_in['x'], 'B_w_in': _B_in['w_in'], 'B_w_sp': _B_in['w_sp'], 'B_b_sp': _B_in['b_sp'], 'B_w_out': _B_in['w_out']}

def reference(A_x, A_wqkv, A_wo, B_x, B_w_in, B_w_sp, B_b_sp, B_w_out):

    def _A_ref(x, wqkv, wo):
        B, S, D = x.shape
        H = 32
        Dh = D // H
        W, dil = (8, 2)
        qkv = (lambda x, *d: x.permute(*d))((x @ wqkv).reshape(B, S, 3, H, Dh), 2, 0, 3, 1, 4)
        q, k, v = (qkv[0], qkv[1], qkv[2])
        scale = Dh ** (-0.5)
        pos = torch.arange(S)
        off = torch.arange(W) * dil
        idx = pos[:, None] - off[None, :]
        mask = idx >= 0
        idx_c = torch.where(mask, idx, 0).reshape(-1)
        kg = k[:, :, idx_c, :].reshape(B, H, S, W, Dh)
        vg = v[:, :, idx_c, :].reshape(B, H, S, W, Dh)
        logits = torch.einsum('bhsd,bhswd->bhsw', q, kg) * scale
        logits = torch.where(mask[None, None, :, :], logits, -1000000000.0)
        attn = _softmax(logits, axis=-1)
        o = torch.einsum('bhsw,bhswd->bhsd', attn, vg)
        return (lambda x, *d: x.permute(*d))(o, 0, 2, 1, 3).reshape(B, S, D) @ wo

    def _B_ref(x, w_in, w_sp, b_sp, w_out):
        B, S, D = x.shape
        F = w_in.shape[-1]
        Fh = F // 2
        z = _gelu(torch.einsum('bsd,df->bsf', x, w_in))
        z1 = z[..., :Fh].clone()
        z2 = _layernorm(z[..., Fh:], axis=-1)
        g = torch.einsum('ts,bsf->btf', w_sp, z2) + b_sp[None, :, None]
        return torch.einsum('bsf,fd->bsd', z1 * g, w_out)
    x = A_x
    xn = _layernorm(x, axis=-1)
    return x + _A_ref(xn, A_wqkv, A_wo) + _B_ref(xn, B_w_in, B_w_sp, B_b_sp, B_w_out)
```

```python
KNAME = "parallel_sum__sliding_local_dilated__mixer_gmlp__prompt_kernel"

class Asm:
    def __init__(self):
        self.L = []
        self.uid = 0
    def __call__(self, s=""):
        for line in s.split("\n"):
            line = line.strip()
            if not line:
                continue
            if line.endswith(":") or line.startswith("."):
                self.L.append(line)
            else:
                self.L.append("    " + line)
    def c(self, s):
        self.L.append("    ; " + s)
    def label(self, base="L"):
        self.uid += 1
        return f"{base}_{self.uid}"
    def text(self):
        return "\n".join(self.L) + "\n"

def kernel_header(name):
    return f""".globl {name}
.p2align 8
.type {name},@function
{name}:
"""

def kernel_desc(name, vgpr=256, sgpr=102, accum=256, wgy=False):
    return f""".section .rodata,"a"
.p2align 6
.amdhsa_kernel {name}
  .amdhsa_next_free_vgpr {vgpr}
  .amdhsa_next_free_sgpr {sgpr}
  .amdhsa_accum_offset {accum}
  .amdhsa_group_segment_fixed_size 0
  .amdhsa_kernarg_size 88
  .amdhsa_user_sgpr_count 2
  .amdhsa_user_sgpr_kernarg_segment_ptr 1
  .amdhsa_system_sgpr_workgroup_id_x 1
.end_amdhsa_kernel
"""

def file_text(launches, kernels):
    out = []
    for (n, g, b, lds) in launches:
        out.append(f"; @launch kernel={n} grid=({g},1,1) block=({b},1,1) lds={lds}")
    out.append('.amdgcn_target "amdgcn-amd-amdhsa--gfx950"')
    out.append(".text")
    for (n, body, vg, sg, ac) in kernels:
        out.append(kernel_header(n) + body)
    for (n, body, vg, sg, ac) in kernels:
        out.append(kernel_desc(n, vg, sg, ac))
    return "\n".join(out) + "\n"

KA = dict(x=0, wqkv=8, wo=16, bx=24, win=32, wsp=40, bsp=48, wout=56, out=64, dbg=72, ws=80)

def srd(a, d, base, nbytes):
    a(f"s_mov_b32 s{d}, s{base}")
    a(f"s_and_b32 s{d+1}, s{base+1}, 0xffff")
    a(f"s_mov_b32 s{d+2}, {nbytes:#x}")
    a(f"s_mov_b32 s{d+3}, 0x20000")
```

```python
S, D, F2, FH = 2048, 512, 1376, 688
NT = 43
GRP = [0, 5, 11, 17, 23, 29, 35, 41, 43]
WS_Z2N = 0x0000000
WS_Z1  = 0x0400000
WS_H   = 0x0800000
WS_O   = 0x1000000
WS_ST2 = 0x1400000
WS_FLG = 0x1500000
WS_DBG = 0x4000000
WS_ST1 = 0x1480000
```

```python
import sys, math, struct
from asmgen import Asm, KA, KNAME, file_text
from layout import *

OOB = 0x10000000
LOG2E = 1.4426950408889634
def f2u(x): return struct.unpack("<I", struct.pack("<f", x))[0]
C1 = 2.0 * math.sqrt(2.0 / math.pi) * LOG2E
C2 = C1 * 0.044715
NEG = f2u(-1e30)
OPT = {}
def opt(k, d): return OPT.get(k, d)

sW, sQ, sRB, sGRP = 3, 4, 6, 7
X_, WA_, WS_, WSP_, WO_, WOUT_, OUT_, BSP_, DBG_ = 8, 12, 16, 20, 24, 28, 32, 36, 40
sK0A, sTYP = 44, 45
sKS, sCG, sK0B, sT = 48, 50, 51, 52
sRC = 49
def S4(b): return f"s[{b}:{b+3}]"
def V(b, n=4): return f"v[{b}:{b+n-1}]" if n > 1 else f"v{b}"

L_TAB = 156*1024
TP = 640
L_CW  = L_TAB + 2560
L_MISC = L_TAB + 3328
L_XCH = 128*1024
L_Z2 = 128*1024
L_RB = 152*1024
LDS_BYTES = 160*1024

class G(Asm):
    UID = [0]
    def label(self, base="L"):
        G.UID[0] += 1
        return f"{base}_{G.UID[0]}"
    def __init__(self, diag=False):
        super().__init__()
        self.vm = []; self.diag = diag; self.nst = 0
    def vmem(self, s, tag=None):
        self(s); self.vm.append(tag)
    def has(self, tag): return any(t == tag for t in self.vm)
    def vmwait(self, tag):
        if not self.has(tag): return
        idx = max(i for i, t in enumerate(self.vm) if t == tag)
        n = len(self.vm) - 1 - idx
        assert n <= 63, n
        self(f"s_waitcnt vmcnt({n})")
        self.vm = self.vm[idx+1:]
    def vmall(self):
        self("s_waitcnt vmcnt(0)"); self.vm = []
    def stamp(self):
        if not self.diag: return
        self("s_memtime s[82:83]")
        self("s_waitcnt lgkmcnt(0)")
        self("s_sub_u32 s82, s82, s80")
        self(f"v_writelane_b32 v2, s82, {self.nst}")
        self.nst += 1
    def run(self, fs):
        for f in fs: f() if callable(f) else self(f)

def mfma(d, a, b, c=None):
    c = V(d) if c is None else c
    return f"v_mfma_f32_16x16x32_bf16 {V(d)}, {V(a)}, {V(b)}, {c}"
def mfma16(d, a, b, c=None):
    c = V(d) if c is None else c
    return f"v_mfma_f32_16x16x16_bf16 {V(d)}, {V(a,2)}, {V(b,2)}, {c}"

def gemm_stream(a, mf, frags, ring, LA, cover, pre_barrier, hooks=None, first_zero=True, stamps=(), nobar=0, pergap=1, slack=4, op=None, skip_first_barrier=False):
    hooks = hooks or {}
    first, last = {}, {}
    for i, (d, x, y) in enumerate(mf):
        for f in (x, y):
            first.setdefault(f, i); last[f] = i
    order = sorted([f for f in first if frags[f].get('reads')], key=lambda f: (frags[f]['step'], first[f]))
    rl = [(f, k) for f in order for k in range(len(frags[f]['reads']))]
    reg = {f: frags[f]['reg'] for f in first if frags[f].get('reg') is not None}
    owner = {r: None for r in ring}
    ptr = 0; cur = (0 if skip_first_barrier else -1); out = []; done = set(f for f in first if not frags[f].get('reads'))
    since = 10**9
    seen = set()
    def issue_one(i, force):
        nonlocal ptr, cur, since, out
        f, k = rl[ptr]
        st = frags[f]['step']
        if st > cur:
            if not force and since < cover: return False
            pre_barrier(st)
            if not (nobar and st > 0):
                if out:
                    a("s_waitcnt lgkmcnt(0)")
                    for g_, _ in out: done.add(g_)
                    out = []
                a("s_barrier")
            cur = st
            if st in stamps: a.stamp()
            if st in hooks: hooks[st]()
        if k == 0 and f not in reg:
            free = [r for r in ring if owner[r] is None or last[owner[r]] < i]
            if not free:
                assert not force, "ring too small"
                return False
            r = min(free, key=lambda r: -1 if owner[r] is None else last[owner[r]])
            reg[f] = r; owner[r] = f
        if len(out) >= 14 and not force: return False
        a(frags[f]['reads'][k](reg[f]))
        out.append((f, k)); ptr += 1; since = 0
        return True
    for i, (d, x, y) in enumerate(mf):
        need = [f for f in (x, y) if f not in done]
        while ptr < len(rl) and any(rl[j][0] in need for j in range(ptr, len(rl)) if first[rl[j][0]] <= i):
            issue_one(i, True)
        n = 0
        while ptr < len(rl) and first[rl[ptr][0]] <= i + LA:
            lim = 12 if i == 0 else (pergap + 1 if first[rl[ptr][0]] <= i + LA - slack else pergap)
            if n >= lim: break
            if not issue_one(i, False): break
            n += 1
        need = [f for f in (x, y) if f not in done]
        if need:
            idx = max(j for j, (f, k) in enumerate(out) if f in need)
            a(f"s_waitcnt lgkmcnt({len(out) - 1 - idx})")
            for f, k in out[:idx+1]:
                if k == len(frags[f]['reads']) - 1: done.add(f)
            out = out[idx+1:]
        c = None
        if first_zero and d not in seen:
            c = "0"; seen.add(d)
        a((op or mfma)(d, reg[x], reg[y], c))
        since += 1
    assert ptr == len(rl)

def srd(a, d, p, nbytes):
    a(f"s_mov_b32 s{d}, s{p}")
    a(f"s_and_b32 s{d+1}, s{p+1}, 0xffff")
    a(f"s_mov_b32 s{d+2}, {nbytes:#x}")
    a(f"s_mov_b32 s{d+3}, 0x20000")

def prologue(a, endlabel):
    if a.diag:
        a("s_memtime s[80:81]")
    a("s_memrealtime s[84:85]")
    a("s_cmp_ge_u32 s2, 256")
    a(f"s_cbranch_scc1 {endlabel}")
    a("s_load_dwordx16 s[64:79], s[0:1], 0")
    a("s_load_dwordx4 s[88:91], s[0:1], 64")
    a("s_load_dwordx2 s[92:93], s[0:1], 80")
    a("v_lshrrev_b32 v3, 6, v0")
    a("v_and_b32 v1, 63, v0")
    a("v_mov_b32 v2, 0")
    a(f"v_readfirstlane_b32 s{sW}, v3")
    a("s_and_b32 s53, s2, 7")
    a("s_lshr_b32 s54, s2, 3")
    a("s_lshr_b32 s55, s53, 1")
    a("s_and_b32 s56, s54, 3")
    a(f"s_lshr_b32 s{sCG}, s54, 2")
    a(f"s_lshl_b32 s{sRB}, s55, 2")
    a(f"s_add_u32 s{sRB}, s{sRB}, s56")
    a(f"s_and_b32 s{sKS}, s53, 1")
    a(f"s_lshl_b32 s{sRC}, s53, 2")
    a(f"s_add_u32 s{sRC}, s{sRC}, s56")
    a(f"s_lshl_b32 s{sGRP}, s{sKS}, 2")
    a(f"s_and_b32 s58, s{sCG}, 3")
    a(f"s_add_u32 s{sGRP}, s{sGRP}, s58")
    a(f"s_lshr_b32 s{sTYP}, s{sCG}, 2")
    a(f"s_lshl_b32 s{sK0A}, s56, 1")
    a(f"s_add_u32 s{sK0A}, s{sK0A}, s{sCG}")
    a(f"s_add_u32 s{sK0A}, s{sK0A}, s55")
    a(f"s_and_b32 s{sK0A}, s{sK0A}, {opt('rotA', 7)}")
    a(f"s_lshl_b32 s{sK0B}, s{sCG}, 1")
    a(f"s_add_u32 s{sK0B}, s{sK0B}, s{sRB}")
    a(f"s_and_b32 s{sK0B}, s{sK0B}, {opt('rotB', 15)}")
    a(f"s_and_b32 s{sQ}, s{sW}, 3")
    a("s_waitcnt lgkmcnt(0)")
    srd(a, X_, 64, S*D*2)
    srd(a, WS_, 92, 268435456)
    srd(a, DBG_, 90, 256)

def late_srds(a):
    srd(a, WSP_, 74, S*S*2)
    srd(a, WO_, 68, D*D*2)
    srd(a, WOUT_, 78, FH*D*2)
    srd(a, OUT_, 88, S*D*2)
    srd(a, BSP_, 76, S*2)

def rowtile_voffs(a, d0, d1, sh, t0=3, t1=30, t2=31):
    a(f"v_lshrrev_b32 v{t0}, 3, v1")
    a(f"v_lshlrev_b32 v{t0}, {sh+1}, v{t0}")
    a(f"v_lshrrev_b32 v{t1}, 4, v1")
    a(f"v_and_b32 v{t2}, 7, v1")
    a(f"v_xor_b32 v{t1}, v{t1}, v{t2}")
    a(f"v_lshl_add_u32 v{d0}, v{t1}, 4, v{t0}")
    a(f"v_xor_b32 v{t1}, 4, v{t1}")
    a(f"v_lshl_add_u32 v{d1}, v{t1}, 4, v{t0}")
    a(f"v_add_u32 v{d1}, {(16 << sh) - 1024}, v{d1}")

def rowfrag_addr(a, d0, d1, srow, t0=3, t1=30, t2=31):
    a(f"v_and_b32 v{t0}, 15, v1")
    a(f"v_lshrrev_b32 v{t1}, 4, v1")
    a(f"v_lshrrev_b32 v{t2}, 1, v{t0}")
    a(f"v_xor_b32 v{t1}, v{t1}, v{t2}")
    a(f"v_lshlrev_b32 v{t0}, 7, v{t0}")
    a(f"v_add_u32 v{t0}, {srow}, v{t0}")
    a(f"v_lshl_add_u32 v{d0}, v{t1}, 4, v{t0}")
    a(f"v_xor_b32 v{t1}, 4, v{t1}")
    a(f"v_lshl_add_u32 v{d1}, v{t1}, 4, v{t0}")

def zw_addr(a, de, do, t0=3, t1=30, t2=31):
    a(f"v_lshrrev_b32 v{t0}, 4, v1")
    a(f"v_bfe_u32 v{t1}, v1, 2, 2")
    a(f"v_lshl_add_u32 v{t1}, v{t0}, 3, v{t1}")
    a(f"v_mul_u32_u24 v{t1}, 192, v{t1}")
    a(f"v_and_b32 v{t2}, 3, v1")
    a(f"v_lshl_add_u32 v{t1}, v{t2}, 3, v{t1}")
    a(f"v_and_b32 v{t0}, 1, v{t0}")
    a(f"v_lshlrev_b32 v{t0}, 5, v{t0}")
    a(f"v_add_u32 v{de}, v{t1}, v{t0}")
    a(f"v_sub_u32 v{do}, v{t1}, v{t0}")

def qw_addr(a, d, t0=3, t1=30, t2=31):
    a(f"v_lshrrev_b32 v{t0}, 4, v1")
    a(f"v_mul_u32_u24 v{t1}, 3072, v{t0}")
    a(f"v_bfe_u32 v{t2}, v1, 2, 2")
    a(f"v_lshl_add_u32 v{t1}, v{t2}, 7, v{t1}")
    a(f"v_and_b32 v{d}, 3, v1")
    a(f"v_lshl_add_u32 v{t1}, v{d}, 3, v{t1}")
    a(f"v_lshrrev_b32 v{t2}, 1, v{t2}")
    a(f"v_and_b32 v{t0}, 1, v{t0}")
    a(f"v_lshl_or_b32 v{t2}, v{t0}, 1, v{t2}")
    a(f"v_lshl_add_u32 v{d}, v{t2}, 5, v{t1}")

ZSLOT = [56*1024, 84*1024, 112*1024, 0, 28*1024]
W1SL = [0, 12288, 28672, 40960, 57344, 69632, 86016, 98304]
QSLOT = [86016, 43008, 0]

def gelu_core(a, xs, ts, A3, A1, RI):
    for k, (x, t) in enumerate(zip(xs, ts)): a(f"v_pk_mul_f32 {V(t,2)}, {V(x,2)}, {V(x,2)}")
    for k, (x, t) in enumerate(zip(xs, ts)): a(f"v_pk_fma_f32 {V(t,2)}, {V(t,2)}, {A3[k][0]}, {A1[k][0]} {A3[k][1]}")
    for k, (x, t) in enumerate(zip(xs, ts)): a(f"v_pk_mul_f32 {V(t,2)}, {V(t,2)}, {V(x,2)}")
    for k, (x, t) in enumerate(zip(xs, ts)):
        a(f"v_exp_f32 v{t}, v{t}"); a(f"v_exp_f32 v{t+1}, v{t+1}")
    for k, (x, t) in enumerate(zip(xs, ts)): a(f"v_pk_fma_f32 {V(t,2)}, {V(t,2)}, {RI[k][0]}, {RI[k][0]} {RI[k][1]}")
    for k, (x, t) in enumerate(zip(xs, ts)):
        a(f"v_rcp_f32 v{t}, v{t}"); a(f"v_rcp_f32 v{t+1}, v{t+1}")
    for k, (x, t) in enumerate(zip(xs, ts)): a(f"v_pk_mul_f32 {V(x,2)}, {V(x,2)}, {V(t,2)}")

def zcount(a, dG, dN):
    a(f"s_mul_i32 s{dG}, s{sGRP}, 6")
    a(f"s_min_u32 s{dG}, s{dG}, 40")
    a(f"s_sub_u32 s{dN}, 40, s{dG}")
    a(f"s_min_u32 s{dN}, s{dN}, 6")
    a(f"s_cmp_eq_u32 s{sGRP}, 7")
    a(f"s_cselect_b32 s{dN}, 3, s{dN}")

def az_compute(a, fused):
    ACC, XR = 32, 128
    ONES, SUM, GRM, CWA = 28, 80, 88, 96
    ring = list(range(104, 128, 4))
    a(f"s_lshl_b32 s61, s{sQ}, 12")
    rowfrag_addr(a, 10, 11, "s61")
    zw_addr(a, 12, 13)
    a(f"s_bitcmp1_b32 s{sQ}, 0")
    a("s_cselect_b64 vcc, -1, 0")
    a("v_cndmask_b32 v18, v12, v13, vcc")
    a(f"s_lshl_b32 s61, s{sQ}, 5")
    a(f"s_and_b32 s62, s{sQ}, 1")
    a("s_lshl_b32 s62, s62, 5")
    a("s_add_u32 s62, s62, 128")
    a("v_add_u32 v19, s62, v18")
    a("v_add_u32 v18, s61, v18")
    for r in range(4): a(f"v_mov_b32 v{ONES+r}, 0x3f803f80")
    zcount(a, 55, 58)
    a(f"s_lshl_b32 s61, s{sQ}, 7")
    a(f"s_add_u32 s61, s61, {L_TAB}")
    a("v_and_b32 v3, 0x30, v1")
    a("v_add_u32 v4, s61, v3")
    a(f"v_add_u32 v7, {L_CW + 384}, v3")
    a("v_and_b32 v3, 15, v1")
    a("v_lshl_add_u32 v5, v3, 2, s61")
    a("v_lshlrev_b32 v3, 2, v3")
    a(f"v_add_u32 v6, {L_CW}, v3")
    a("v_lshlrev_b32 v8, 4, v1")
    a("v_lshlrev_b32 v9, 2, v1")
    a(f"s_lshl_b32 s61, s{sQ}, 6")
    a(f"s_and_b32 s62, s{sQ}, 1")
    a("s_lshl_b32 s62, s62, 6")
    a("s_add_u32 s62, s62, 256")
    a("v_add_u32 v22, s61, v6")
    a("v_add_u32 v23, s62, v6")
    a("v_add_u32 v24, s61, v7")
    a("v_add_u32 v25, s62, v7")
    a(f"s_lshl_b32 s57, s{sRB}, 2")
    a(f"s_add_u32 s57, s57, s{sQ}")
    a(f"s_lshl_b32 s53, s{sGRP}, 6")
    a("s_add_u32 s53, s53, s57")
    a("s_mul_i32 s53, s53, 6144")
    a(f"s_add_u32 s53, s53, {WS_Z2N}")
    a("s_mul_i32 s54, s57, 48")
    a("s_add_u32 s54, s54, s55")
    a("s_lshl_b32 s54, s54, 10")
    a(f"s_add_u32 s54, s54, {WS_Z1}")
    a("s_lshl_b32 s56, s57, 8")
    a(f"s_add_u32 s56, s56, {WS_ST2}")
    def xreg(s, kk, T): return XR + ((s*2 + kk)*2 + T)*4
    def wfrag(step, kk, j):
        return dict(step=step, reg=None, reads=[(lambda r, hh=hh: f"ds_read_b64_tr_b16 {V(r+2*hh,2)}, v{16+(j&1)} offset:{j*32 + kk*6144 + hh*768}") for hh in range(2)])
    def cfrag(step, kk, t):
        return dict(step=step, reg=None, reads=[(lambda r, hh=hh: f"ds_read_b64_tr_b16 {V(r+2*hh,2)}, v{20+t} offset:{kk*6144 + hh*768}") for hh in range(2)])
    fr = {}; mf = []
    for s in range(8):
        for kk in range(2):
            for T in range(2):
                fr[('x', s, kk, T)] = dict(step=s, reg=xreg(s, kk, T), reads=[lambda r, kk=kk, T=T: f"ds_read_b128 {V(r)}, v{14+kk} offset:{T*2048}"])
            for j in range(6):
                fr[('w', s, kk, j)] = wfrag(s, kk, j)
                for T in range(2): mf.append((ACC + (j*2+T)*4, ('x', s, kk, T), ('w', s, kk, j)))
                if j in (1, 3):
                    T = j >> 1
                    mf.append((SUM+4*T, 'ones', ('x', s, kk, T)))
                    mf.append((GRM+4*T, ('x', s, kk, T), ('x', s, kk, T)))
                if j in (2, 5):
                    t = j // 3
                    fr[('c', s, kk, t)] = cfrag(s, kk, t)
                    mf.append((CWA+4*t, 'ones', ('c', s, kk, t)))
    fr['ones'] = dict(step=0, reg=ONES, reads=None)
    def pre1(s):
        for r in range(2): a(f"v_add_u32 v{14+r}, {ZSLOT[s % 5]}, v{10+r}")
        for r in range(2): a(f"v_add_u32 v{16+r}, {ZSLOT[s % 5] + 16384}, v{12+r}")
        for r in range(2): a(f"v_add_u32 v{20+r}, {ZSLOT[s % 5] + 16384}, v{18+r}")
    a.stamp()
    gemm_stream(a, mf, fr, ring, opt('LA', 10), opt('cover', 3), pre1, stamps=(0, 1, 4))
    a.stamp()
    for T in range(2): diag_sel(a, 104+T, GRM+4*T)
    for T in range(2): row_finalize(a, SUM+4*T, 104+T, 0)
    a(f"ds_write_b32 v22, v{CWA}")
    a(f"ds_write_b32 v23, v{CWA+4}")
    for T in range(2): a(f"v_rsq_f32 v{106+T}, v{104+T}")
    for T in range(2): a(f"v_sqrt_f32 v{104+T}, v{104+T}")
    for T in range(2): a(f"v_mul_f32 v{108+T}, v{106+T}, v{106+T}")
    for T in range(2): a(f"v_mul_f32 v{108+T}, v{108+T}, v{106+T}")
    for T in range(2): a(f"v_mul_f32 v{108+T}, {f2u(-C2):#x}, v{108+T}")
    for T in range(2): a(f"v_mul_f32 v{106+T}, {f2u(-C1):#x}, v{106+T}")
    a(f"s_mov_b32 exec_lo, {DIAG_LO:#x}\ns_mov_b32 exec_hi, {DIAG_HI:#x}")
    for T in range(2):
        for k, r in enumerate((SUM+4*T, 108+T, 106+T, 104+T)): a(f"ds_write_b32 v5, v{r} offset:{64*T + TP*k}")
    a("s_mov_b64 exec, -1")
    for r in range(112, 128): a(f"v_mov_b32 v{r}, 0")
    a("s_waitcnt lgkmcnt(0)")
    for T in range(2):
        for k in range(4): a(f"ds_read_b128 {V(80+16*T+4*k)}, v4 offset:{64*T + TP*k}")
    a("s_barrier")
    CWR = [10, 11, 14, 15, 16, 17]
    for j in range(6): a(f"ds_read_b32 v{CWR[j]}, v6 offset:{64*j}")
    a("s_waitcnt lgkmcnt(0)")
    for j in range(6):
        skip = a.label("Lz2skip")
        a(f"s_cmp_gt_u32 s58, {j}")
        a(f"s_cselect_b32 s61, s53, {OOB}")
        a(f"s_cbranch_scc0 {skip}")
        xs = [ACC + (j*2+T)*4 + 2*p for T in range(2) for p in range(2)]
        tb = [80 + 16*T + 2*p for T in range(2) for p in range(2)]
        sel = f"op_sel:[0,{j&1},0] op_sel_hi:[1,{j&1},1]"
        for x, t in zip(xs, tb): a(f"v_pk_fma_f32 {V(x,2)}, {V(t,2)}, {V(CWR[j&~1],2)}, {V(x,2)} {sel} neg_lo:[1,0,0] neg_hi:[1,0,0]")
        gelu_core(a, xs, [20, 22, 26, 28], [(V(t+4,2), "") for t in tb], [(V(t+8,2), "") for t in tb], [(V(t+12,2), "") for t in tb])
        for k, x in enumerate(xs): a(f"v_pk_add_f32 {V(112+2*k,2)}, {V(112+2*k,2)}, {V(x,2)}")
        for k, x in enumerate(xs): a(f"v_pk_fma_f32 {V(120+2*k,2)}, {V(x,2)}, {V(x,2)}, {V(120+2*k,2)}")
        e, o = ACC + j*8, ACC + j*8 + 4
        for i in range(4): a(f"v_cvt_pk_bf16_f32 v{e+i}, v{e+i}, v{o+i}")
        a(f"{skip}:")
        if j == 4: a("s_add_u32 s61, s61, 4096")
        if j == 5: a("s_add_u32 s61, s61, 4096")
        a.vmem(f"buffer_store_dwordx4 {V(e)}, v8, {S4(WS_)}, s61 offen offset:{(j%4)*1024} sc1", "z2")
    def val(i, T, st): return 112 + 8*st + 4*T + i
    for st in range(2):
        for T in range(2):
            for i in range(2):
                A, B = val(i, T, st), val(i+2, T, st)
                a(f"v_add_f32_dpp v{A}, v{A}, v{A} row_ror:8 row_mask:0xf bank_mask:0x3")
                a(f"v_add_f32_dpp v{A}, v{B}, v{B} row_ror:8 row_mask:0xf bank_mask:0xc")
    a("s_mov_b32 s60, 0x22222222\ns_mov_b32 s61, 0x22222222")
    for st in range(2):
        for T in range(2):
            A, B = val(0, T, st), val(1, T, st)
            a(f"v_add_f32_dpp v{A}, v{A}, v{A} row_half_mirror row_mask:0xf bank_mask:0x5")
            a(f"v_add_f32_dpp v{A}, v{B}, v{B} row_half_mirror row_mask:0xf bank_mask:0xa")
    a("s_mov_b32 s62, 0x44444444\ns_mov_b32 s63, 0x44444444")
    for qp in ("[1,0,3,2]", "[2,3,0,1]"):
        for st in range(2):
            for T in range(2):
                A = val(0, T, st)
                a(f"v_add_f32_dpp v{A}, v{A}, v{A} quad_perm:{qp} row_mask:0xf bank_mask:0xf")
    a(f"v_cndmask_b32 v112, v{val(0,0,0)}, v{val(0,0,1)}, s[60:61]")
    a("s_mov_b32 s60, 0x88888888\ns_mov_b32 s61, 0x88888888")
    a(f"v_cndmask_b32 v112, v112, v{val(0,1,0)}, s[62:63]")
    a(f"v_cndmask_b32 v112, v112, v{val(0,1,1)}, s[60:61]")
    a.vmem(f"buffer_atomic_add_f32 v112, v9, {S4(WS_)}, s56 offen", "z2")
    a.stamp()
    fr = {}; mf = []
    for u in range(8):
        for kk in range(2):
            for T in range(2): fr[('x', u, kk, T)] = dict(step=u, reg=xreg(u, kk, T), reads=None)
            for j in range(6):
                fr[('w', u, kk, j)] = wfrag(u, kk, j)
                for T in range(2): mf.append((ACC + (j*2+T)*4, ('w', u, kk, j), ('x', u, kk, T)))
                if j in (2, 5):
                    t = j // 3
                    fr[('c', u, kk, t)] = cfrag(u, kk, t)
                    mf.append((120+4*t, ('c', u, kk, t), 'ones'))
    fr['ones'] = dict(step=0, reg=ONES, reads=None)
    for r in range(2): a(f"v_mov_b32 v{ONES+r}, 0x3f803f80")
    def pre2(u):
        for r in range(2): a(f"v_add_u32 v{16+r}, {W1SL[u]}, v{12+r}")
        for r in range(2): a(f"v_add_u32 v{20+r}, {W1SL[u]}, v{18+r}")
        if fused and u == opt('f1step', 5): a.vmall()
    ring2 = list(range(80, 112, 4))
    gemm_stream(a, mf, fr, ring2, opt('LA', 10), opt('cover', 3), pre2, nobar=opt('nobar', 0))
    a.stamp()
    for T in range(2):
        for k in range(4): a(f"ds_read_b32 v{104+4*k+2*T}, v5 offset:{64*T + TP*k}")
    a("s_mov_b32 exec_lo, 0x00010001\ns_mov_b32 exec_hi, 0x00010001")
    a(f"ds_write_b128 v24, {V(120)}")
    a(f"ds_write_b128 v25, {V(124)}")
    a("s_mov_b64 exec, -1")
    a("s_waitcnt lgkmcnt(0)")
    a("s_barrier")
    for j in range(6): a(f"ds_read_b128 {V(80+4*j)}, v7 offset:{64*j}")
    a("s_waitcnt lgkmcnt(0)")
    for j in range(6):
        skip = a.label("Lz1skip")
        a(f"s_cmp_gt_u32 s58, {j}")
        a(f"s_cselect_b32 s61, s54, {OOB}")
        a(f"s_cbranch_scc0 {skip}")
        xs = [ACC + (j*2+T)*4 + 2*p for T in range(2) for p in range(2)]
        for k, x in enumerate(xs): a(f"v_pk_fma_f32 {V(x,2)}, {V(80+4*j+2*(k%2),2)}, {V(104+2*(k//2),2)}, {V(x,2)} op_sel_hi:[1,0,1] neg_lo:[1,0,0] neg_hi:[1,0,0]")
        b = "op_sel_hi:[1,0,0]"
        gelu_core(a, xs, [20, 22, 26, 28], [(V(108+2*(k//2),2), b) for k in range(4)], [(V(112+2*(k//2),2), b) for k in range(4)], [(V(116+2*(k//2),2), b) for k in range(4)])
        e = ACC + j*8
        for k, x in enumerate(xs): a(f"v_cvt_pk_bf16_f32 v{e+k}, v{x}, v{x+1}")
        a("s_nop 1")
        for p in range(2): a(f"v_permlane32_swap_b32 v{e+p}, v{e+2+p}")
        a(f"{skip}:")
        if j >= 4: a("s_add_u32 s61, s61, 4096")
        a.vmem(f"buffer_store_dwordx4 {V(e)}, v8, {S4(WS_)}, s61 offen offset:{(j%4)*1024} sc1", "z1")
    a.stamp()

def red_g(a, regs, op="v_add_f32", tmp=60):
    n = len(regs)
    for sw in ("v_permlane32_swap_b32", "v_permlane16_swap_b32"):
        for k, r in enumerate(regs): a(f"v_mov_b32 v{tmp+k}, v{r}")
        if n < 3: a("s_nop 1")
        for k, r in enumerate(regs): a(f"{sw} v{r}, v{tmp+k}")
        for k, r in enumerate(regs): a(f"{op} v{r}, v{r}, v{tmp+k}")

def wsp_setup_h(a):
    rowtile_voffs(a, 8, 9, 12)
    a(f"s_lshl_b32 s59, s{sRB}, 2")
    a(f"s_add_u32 s59, s59, s{sQ}")
    a("s_lshl_b32 s59, s59, 17")
    a(f"s_lshl_b32 s61, s{sKS}, 11")
    a("s_add_u32 s59, s59, s61")

def wsp_group_h(a, v):
    a(f"s_add_u32 s61, s{sK0B}, {v}")
    a("s_and_b32 s61, s61, 15")
    a("s_lshl_b32 s61, s61, 7")
    a("s_add_u32 s61, s61, s59")
    a(f"s_add_u32 m0, s60, {(v % 8) * 16384}")
    a("s_add_u32 s62, s61, 4096")
    a.vmem(f"buffer_load_dwordx4 v8, {S4(WSP_)}, s61 offen lds", ("S", v))
    a.vmem(f"buffer_load_dwordx4 v9, {S4(WSP_)}, s61 offen offset:1024 lds", ("S", v))
    a(f"s_add_u32 m0, s60, {(v % 8) * 16384 + 2048}")
    a("s_nop 0")
    a.vmem(f"buffer_load_dwordx4 v8, {S4(WSP_)}, s62 offen lds", ("S", v))
    a.vmem(f"buffer_load_dwordx4 v9, {S4(WSP_)}, s62 offen offset:1024 lds", ("S", v))

def x_group_h(a, step, sl, tag):
    a(f"s_add_u32 s61, s{sK0A}, {step}")
    a("s_and_b32 s61, s61, 7")
    a("s_lshl_b32 s58, s61, 7")
    a("s_add_u32 s62, s58, s53")
    a(f"s_add_u32 m0, s60, {sl}")
    a("s_add_u32 s63, s62, 1024")
    a.vmem(f"buffer_load_dwordx4 v4, {S4(X_)}, s62 offen lds", tag)
    a.vmem(f"buffer_load_dwordx4 v5, {S4(X_)}, s62 offen offset:1024 lds", tag)
    a(f"s_add_u32 m0, s60, {sl + 2048}")
    a("s_nop 0")
    a.vmem(f"buffer_load_dwordx4 v4, {S4(X_)}, s63 offen lds", tag)
    a.vmem(f"buffer_load_dwordx4 v5, {S4(X_)}, s63 offen offset:1024 lds", tag)

def dots_x(a, fr, acc_s, acc_q, ones):
    for i in range(4):
        a(f"v_dot2_f32_bf16 v{acc_s}, v{fr+i}, v{ones}, v{acc_s}")
        a(f"v_dot2_f32_bf16 v{acc_q}, v{fr+i}, v{fr+i}, v{acc_q}")

def diag_sel(a, dst, gram):
    a("s_mov_b32 s62, 0x22222222\ns_mov_b32 s63, 0x22222222")
    a(f"v_cndmask_b32 v{dst}, v{gram}, v{gram+1}, s[62:63]")
    a("s_mov_b32 s62, 0x44444444\ns_mov_b32 s63, 0x44444444")
    a(f"v_cndmask_b32 v{dst}, v{dst}, v{gram+2}, s[62:63]")
    a("s_mov_b32 s62, 0x88888888\ns_mov_b32 s63, 0x88888888")
    a(f"v_cndmask_b32 v{dst}, v{dst}, v{gram+3}, s[62:63]")
DIAG_LO, DIAG_HI = 0x00f0000f, 0xf0000f00

def row_finalize(a, s_, q_, t):
    a(f"v_mul_f32 v{s_}, {f2u(1.0/512):#x}, v{s_}")
    a(f"v_mul_f32 v{q_}, {f2u(1.0/512):#x}, v{q_}")
    a(f"v_fma_f32 v{q_}, -v{s_}, v{s_}, v{q_}")
    a(f"v_max_f32 v{q_}, 0, v{q_}")
    a(f"v_add_f32 v{q_}, {f2u(1e-5):#x}, v{q_}")

def nonce_publish(a):
    a(f"s_or_b32 s61, s2, s{sQ}")
    a("s_cmp_eq_u32 s61, 0")
    a("s_cselect_b32 s61, 0, 256")
    a("s_or_b32 s62, s84, 1")
    a("v_mov_b32 v30, s62")
    a("v_mov_b32 v31, 0")
    a("s_mov_b64 exec, 1")
    a.vmem(f"buffer_store_dword v30, v31, {S4(DBG_)}, s61 offen sc1", "nonce")
    a("s_mov_b64 exec, -1")

def spin(a, issue, check_ok, limit=0x40000):
    lp = a.label("Lspin"); ok = a.label("Lok")
    check_ok()
    a(f"s_cbranch_scc1 {ok}")
    a("s_mov_b32 s63, 0")
    a(f"{lp}:")
    issue()
    a("s_waitcnt vmcnt(0)")
    a("s_add_u32 s63, s63, 1")
    a(f"s_cmp_gt_u32 s63, {limit}")
    a(f"s_cbranch_scc1 {ok}")
    check_ok()
    a(f"s_cbranch_scc0 {lp}")
    a(f"{ok}:")

def az_helper(a, fused):
    srd(a, WA_, 72, D*F2*2)
    rowtile_voffs(a, 4, 5, 10)
    for i in range(3):
        a(f"v_add_u32 v3, {64*i}, v1")
        a("v_mul_u32_u24 v30, 683, v3")
        a("v_lshrrev_b32 v30, 13, v30")
        a("v_mul_u32_u24 v31, 12, v30")
        a("v_sub_u32 v31, v3, v31")
        a("v_lshrrev_b32 v3, 2, v30")
        a("v_and_b32 v3, 2, v3")
        a("v_xor_b32 v31, v3, v31")
        a("v_mul_u32_u24 v30, 2752, v30")
        a(f"v_lshl_add_u32 v{20+i}, v31, 4, v30")
        if i: a(f"v_subrev_u32 v{20+i}, {1024*i}, v{20+i}")
    a(f"s_lshl_b32 s53, s{sRB}, 2")
    a(f"s_add_u32 s53, s53, s{sQ}")
    a("s_lshl_b32 s53, s53, 15")
    a(f"s_mul_i32 s55, s{sGRP}, 6")
    a("s_min_u32 s55, s55, 40")
    a(f"s_mul_i32 s54, s{sQ}, {16*2752}")
    a("s_lshl_b32 s61, s55, 5")
    a("s_add_u32 s54, s54, s61")
    a(f"s_mul_i32 s56, s{sQ}, 3072")
    a(f"s_lshl_b32 s60, s{sQ}, 12")
    a(f"s_or_b32 s61, s{sGRP}, s{sQ}")
    a(f"s_lshl_b32 s62, s{sRB}, 10")
    a(f"s_add_u32 s62, s62, {WS_ST2}")
    a("s_cmp_eq_u32 s61, 0")
    a(f"s_cselect_b32 s62, s62, {OOB}")
    a("s_cselect_b32 s57, 0, 256")
    for r in range(40, 44): a(f"v_mov_b32 v{r}, 0")
    a("v_lshlrev_b32 v31, 4, v1")
    a.vmem(f"buffer_store_dwordx4 {V(40)}, v31, {S4(WS_)}, s62 offen sc1", "zero")
    def wgroup(kreg_ready, step, dst, add, tag):
        if not kreg_ready:
            a(f"s_add_u32 s61, s{sK0A}, {step}")
            a("s_and_b32 s61, s61, 7")
        a(f"s_mul_i32 s63, s61, {64*2752}")
        a("s_add_u32 s63, s63, s54")
        a(f"s_add_u32 m0, s56, {dst}")
        if add: a(f"s_add_u32 s63, s63, {add}")
        else: a("s_nop 0")
        for i in range(3):
            a.vmem(f"buffer_load_dwordx4 v{20+i}, {S4(WA_)}, s63 offen offset:{1024*i} lds", tag)
    def ga(step):
        x_group_h(a, step, ZSLOT[step % 5], ("A", step))
        wgroup(True, step, ZSLOT[step % 5] + 16384, 1376, ("A", step))
    npro = opt('proZ', 5)
    ga(0)
    if fused: nonce_publish(a)
    for st in range(1, npro): ga(st)
    late_srds(a)
    if fused: wsp_setup_h(a)
    a.stamp()
    for s in range(8):
        a.vmwait(("A", s))
        if s == 0:
            a(f"s_lshl_b32 s61, s{sRB}, 2")
            a("s_add_u32 s61, s61, s57")
            a("v_mov_b32 v30, 1")
            a("v_mov_b32 v31, 4")
            a("s_mov_b64 exec, 1")
            a.vmem(f"buffer_store_dword v30, v31, {S4(DBG_)}, s61 offen sc1", "f0")
            a("s_mov_b64 exec, -1")
        a("s_barrier")
        if s in (0, 1, 4): a.stamp()
        if s == 0:
            for st in range(npro, 5): ga(st)
        elif s <= 3: ga(s + 4)
        else:
            if s == 5:
                a(f"s_lshl_b32 s61, s{sRB}, 2")
                a("v_mov_b32 v31, 4")
                a.vmem(f"buffer_load_dword v24, v31, {S4(DBG_)}, s61 offen sc1", "poll")
                a("v_mov_b32 v31, 0")
                a.vmem(f"buffer_load_dword v25, v31, {S4(DBG_)}, 0 offen sc1", "poll")
            for u in (2*(s-4), 2*(s-4)+1): wgroup(False, u, W1SL[u], 0, ("W1", u))
    a.vmwait("poll")
    def chk():
        a("v_readfirstlane_b32 s61, v24")
        if fused:
            a(f"v_readfirstlane_b32 s{sT}, v25")
            a(f"s_min_u32 s61, s61, s{sT}")
        a("s_cmp_lg_u32 s61, 0")
    def iss():
        a(f"s_lshl_b32 s62, s{sRB}, 2")
        a("v_mov_b32 v31, 4")
        a(f"buffer_load_dword v24, v31, {S4(DBG_)}, s62 offen sc1")
        a("v_mov_b32 v31, 0")
        a(f"buffer_load_dword v25, v31, {S4(DBG_)}, 0 offen sc1")
    spin(a, iss, chk)
    a.stamp()
    a("s_barrier")
    if fused: wsp_group_h(a, 7)
    for u in range(8):
        a.vmwait(("W1", u))
        a("s_barrier")
        if fused and u == opt('f1step', 5): flag_store(a, "F1")
        if fused and u >= 2: wsp_group_h(a, u - 2)
    a.stamp()
    a("s_barrier")
    if fused: wsp_group_h(a, 6)

def aq_compute(a, fused):
    AQ, AK, AV, HK, HV = 32, 64, 96, 128, 136
    ONES, SUM, GRM, XA = 28, 224, 232, 240
    CWQ = [128, 132, 136, 140, 240, 244]
    ring = list(range(144, 200, 4))
    MC, MPN, MPA, MB = 200, 204, 208, 216
    a(f"s_lshr_b32 s5, s{sQ}, 1")
    a(f"s_and_b32 s46, s{sQ}, 1")
    a("s_lshl_b32 s61, s5, 13")
    rowfrag_addr(a, 10, 11, "s61")
    rowfrag_addr(a, 12, 13, 16384)
    qw_addr(a, 14)
    a("v_add_u32 v14, 18432, v14")
    a("s_lshl_b32 s61, s46, 6")
    a("v_xor_b32 v14, s61, v14")
    a("v_xor_b32 v15, 32, v14")
    a("v_and_b32 v3, 15, v1")
    a("v_lshrrev_b32 v30, 4, v1")
    a("v_lshlrev_b32 v30, 2, v30")
    a("v_sub_u32 v31, v3, v30")
    a(f"v_mov_b32 v224, {NEG:#x}")
    a("v_mov_b32 v225, 0xffff")
    a("v_mov_b32 v226, 0xffff0000")
    for i in range(4):
        a(f"v_subrev_u32 v227, {i}, v31")
        a("v_cmp_gt_u32 vcc, 8, v227")
        a("v_cmp_gt_i32 s[62:63], -8, v227")
        a("s_nop 0")
        a(f"v_cndmask_b32_e64 v{MC+i}, v224, 0, vcc")
        a(f"v_cndmask_b32_e64 v{228+i}, 0, v{225 + (i&1)}, vcc")
        a(f"v_cndmask_b32_e64 v{MPN+i}, v224, 0, s[62:63]")
    a(f"v_or_b32 v{MB}, v228, v229")
    a(f"v_or_b32 v{MB+1}, v230, v231")
    a("s_lshl_b32 s61, s5, 8")
    a(f"s_add_u32 s61, s61, {L_TAB}")
    a("v_and_b32 v27, 0x30, v1")
    a("v_add_u32 v218, s61, v27")
    a("v_lshl_add_u32 v219, v3, 2, s61")
    a("s_lshl_b32 s61, s46, 7")
    a(f"s_add_u32 s61, s61, {L_CW}")
    a("v_add_u32 v220, s61, v27")
    a("v_lshl_add_u32 v221, v3, 2, s61")
    a("v_lshlrev_b32 v222, 4, v1")
    a("s_lshl_b32 s61, s46, 12")
    a(f"s_add_u32 s61, s61, {L_XCH}")
    a("v_add_u32 v223, s61, v222")
    a(f"s_lshl_b32 s53, s{sRB}, 1")
    a("s_add_u32 s53, s53, s5")
    a("s_lshl_b32 s53, s53, 4")
    a(f"s_add_u32 s53, s53, s{sGRP}")
    a("s_lshl_b32 s53, s53, 1")
    a("s_add_u32 s53, s53, s46")
    a("s_lshl_b32 s53, s53, 11")
    a(f"s_add_u32 s53, s53, {WS_O}")
    a("s_add_u32 s54, s53, 32768")
    a("v_lshrrev_b32 v27, 4, v1")
    a("v_lshlrev_b32 v27, 9, v27")
    a("v_lshl_add_u32 v4, v3, 4, v27")
    AT = 16
    def build(halo, hp):
        fr = {'ones': dict(step=0, reg=ONES, reads=None)}; mf = []
        for s in range(8):
            for kk in range(2):
                for tl in range(4):
                    fr[('x', s, kk, tl)] = dict(step=s, reg=None, reads=[lambda r, kk=kk, tl=tl: f"ds_read_b128 {V(r)}, v{AT+kk} offset:{tl*2048}"])
                fr[('h', s, kk)] = dict(step=s, reg=None, reads=[lambda r, kk=kk: f"ds_read_b128 {V(r)}, v{AT+2+kk}"])
                for m in range(3):
                    for e in range(2):
                        w = ('w', s, kk, m, e)
                        fr[w] = dict(step=s, reg=None, reads=[(lambda r, hh=hh, kk=kk, m=m, e=e: f"ds_read_b64_tr_b16 {V(r+2*hh,2)}, v{AT+4+e} offset:{kk*12288 + m*1024 + hh*512}") for hh in range(2)])
                        for tl in range(4):
                            d = (AQ, AK, AV)[m] + (e*4+tl)*4
                            mf.append((d, w, ('x', s, kk, tl)) if m < 2 else (d, ('x', s, kk, tl), w))
                        if halo and m == 1: mf.append((HK+4*e, w, ('h', s, kk)))
                        if halo and m == 2: mf.append((HV+4*e, ('h', s, kk), w))
                        if not halo: mf.append((CWQ[m*2+e], 'ones', w))
                        if m == 0:
                            x = ('x', s, kk, 2*hp+e)
                            mf.append((SUM+4*e, 'ones', x)); mf.append((GRM+4*e, x, x))
                        if halo and hp == 0 and m == 1:
                            mf.append((XA, 'ones', ('h', s, kk)) if e == 0 else (XA+4, ('h', s, kk), ('h', s, kk)))
        return mf, fr
    def stats_out(halo, hp):
        jobs = [(SUM, GRM, 128*hp), (SUM+4, GRM+4, 128*hp + 64)]
        if halo and hp == 0: jobs.append((XA, XA+4, 512))
        for k, (s_, g_, o) in enumerate(jobs): diag_sel(a, 144+k, g_)
        if not halo:
            for k in range(6): a(f"ds_write_b32 v221, v{CWQ[k]} offset:{256*(k>>1) + 64*(k&1)}")
        for k, (s_, g_, o) in enumerate(jobs): row_finalize(a, s_, 144+k, 0)
        for k, (s_, g_, o) in enumerate(jobs): a(f"v_rsq_f32 v{144+k}, v{144+k}")
        a(f"s_mov_b32 exec_lo, {DIAG_LO:#x}\ns_mov_b32 exec_hi, {DIAG_HI:#x}")
        for k, (s_, g_, o) in enumerate(jobs):
            a(f"ds_write_b32 v219, v{s_} offset:{o}")
            a(f"ds_write_b32 v219, v{144+k} offset:{o + TP}")
        a("s_mov_b64 exec, -1")
    def pre(s):
        for r in range(6): a(f"v_add_u32 v{AT+r}, {QSLOT[s % 3]}, v{10+r}")
    lr1 = a.label("Lrh1"); lj = a.label("Lqj")
    a("s_cmp_lg_u32 s5, 0")
    a(f"s_cbranch_scc1 {lr1}")
    a("v_lshlrev_b32 v3, 1, v3")
    a("v_sub_u32 v31, v30, v3")
    a(f"s_cmp_eq_u32 s{sRB}, 0")
    a("s_cselect_b32 s61, 1000, 0")
    a("v_subrev_u32 v31, s61, v31")
    for T in range(2):
        for i in range(4):
            if (i ^ T) & 1:
                a(f"v_mov_b32 v{MPA+4*T+i}, v224")
            else:
                a(f"v_cmp_le_i32 vcc, {T + 2 - i}, v31")
                a("s_nop 1")
                a(f"v_cndmask_b32_e64 v{MPA+4*T+i}, v224, 0, vcc")
    n0 = a.nst
    for halo in (True, False):
        if not halo:
            a(f"{lr1}:")
            for i in range(8): a(f"v_mov_b32 v{MPA+i}, v{MPN+(i&3)}")
        lh1 = a.label("Lhp1")
        for r in range(4): a(f"v_mov_b32 v{ONES+r}, 0x3f803f80")
        a("s_cmp_lg_u32 s46, 0")
        a(f"s_cbranch_scc1 {lh1}")
        for hp in range(2):
            if hp: a(f"{lh1}:")
            a.nst = n0
            a.stamp()
            mf, fr = build(halo, hp)
            gemm_stream(a, mf, fr, ring, opt('LA', 10), opt('cover', 3), pre, stamps=(0, 1, 4))
            a.stamp()
            stats_out(halo, hp)
            a(f"s_branch {lj}")
    a(f"{lj}:")
    a("s_waitcnt lgkmcnt(0)")
    a("s_barrier")
    for k in range(2): a(f"ds_read_b128 {V(152+4*k)}, v220 offset:{256 + 64*k}")
    for tl in range(4):
        a(f"ds_read_b32 v{162+tl}, v219 offset:{64*tl}")
        a(f"ds_read_b32 v{166+tl}, v219 offset:{64*tl + TP}")
    for e in range(2): a(f"ds_read_b32 v{160+e}, v221 offset:{512 + 64*e}")
    a("s_waitcnt lgkmcnt(2)")
    for tl in range(4):
        a(f"ds_read_b128 {V(172+4*tl)}, v218 offset:{64*tl}")
        a(f"ds_read_b128 {V(10+4*tl)}, v218 offset:{64*tl + TP}")
    for k in range(2): a(f"ds_read_b128 {V(144+4*k)}, v220 offset:{64*k}")
    def corr_t(x, cw, mreg, rreg):
        for p in range(2): a(f"v_pk_fma_f32 {V(x+2*p,2)}, {V(cw+2*p,2)}, {V(mreg&~1,2)}, {V(x+2*p,2)} op_sel:[0,{mreg&1},0] op_sel_hi:[1,{mreg&1},1] neg_lo:[1,0,0] neg_hi:[1,0,0]")
        for p in range(2): a(f"v_pk_mul_f32 {V(x+2*p,2)}, {V(x+2*p,2)}, {V(rreg&~1,2)} op_sel:[0,{rreg&1}] op_sel_hi:[1,{rreg&1}]")
    def corr_c(x, mv, rv, cw):
        for p in range(2): a(f"v_pk_fma_f32 {V(x+2*p,2)}, {V(mv+2*p,2)}, {V(cw&~1,2)}, {V(x+2*p,2)} op_sel:[0,{cw&1},0] op_sel_hi:[1,{cw&1},1] neg_lo:[1,0,0] neg_hi:[1,0,0]")
        for p in range(2): a(f"v_pk_mul_f32 {V(x+2*p,2)}, {V(x+2*p,2)}, {V(rv+2*p,2)}")
    def pack(dst, x):
        for p in range(2): a(f"v_cvt_pk_bf16_f32 v{dst+p}, v{x+2*p}, v{x+2*p+1}")
    KV = 224
    def kp(e, tl): return KV + 8*tl + 2*e
    def vp(e, tl): return KV + 8*tl + 4 + 2*e
    for tl in (2, 3, 0, 1):
        for e in range(2): corr_t(AK + (e*4+tl)*4, 152+4*e, 162+tl, 166+tl)
        for e in range(2): pack(kp(e, tl), AK + (e*4+tl)*4)
    a("s_waitcnt lgkmcnt(0)")
    for tl in (2, 3, 0, 1):
        for e in range(2): corr_c(AV + (e*4+tl)*4, 172+4*tl, 10+4*tl, 160+e)
        for e in range(2): pack(vp(e, tl), AV + (e*4+tl)*4)
        if tl == 3:
            lx = a.label("Lx")
            a("s_cmp_lg_u32 s5, 0")
            a(f"s_cbranch_scc1 {lx}")
            for k in range(4): a(f"ds_write_b128 v223, {V(KV+16+4*k)} offset:{1024*k}")
            a("ds_read_b32 v26, v219 offset:512")
            a(f"ds_read_b32 v27, v219 offset:{512 + TP}")
            a(f"ds_read_b128 {V(188)}, v218 offset:512")
            a(f"ds_read_b128 {V(192)}, v218 offset:{512 + TP}")
            a(f"{lx}:")
    PV = 64
    lh = a.label("Lnh")
    a("s_cmp_lg_u32 s5, 0")
    a(f"s_cbranch_scc1 {lh}")
    a("s_waitcnt lgkmcnt(0)")
    for e in range(2):
        corr_t(HK+4*e, 152+4*e, 26, 27)
        corr_c(HV+4*e, 188, 192, 160+e)
    for e in range(2):
        for T in range(2):
            pack(PV + 8*T + 2*e, HK+4*e)
            pack(PV + 8*T + 4 + 2*e, HV+4*e)
    a(f"{lh}:")
    QP = 96
    for e in range(2):
        for tl in range(4): corr_t(AQ + (e*4+tl)*4, 144+4*e, 162+tl, 166+tl)
    for k in range(8): pack(QP+2*k, AQ+4*k)
    a("s_waitcnt lgkmcnt(0)")
    a("s_barrier")
    lp = a.label("Lp")
    a("s_cmp_eq_u32 s5, 0")
    a(f"s_cbranch_scc1 {lp}")
    for k in range(4): a(f"ds_read_b128 {V(PV+4*k)}, v223 offset:{1024*k}")
    a(f"{lp}:")
    SC, SP = 112, 144
    U = range(8)
    def kprev(u): e, tl = u//4, u%4; return kp(e, tl-2) if tl >= 2 else PV + 8*tl + 2*e
    def vprev(u): e, tl = u//4, u%4; return vp(e, tl-2) if tl >= 2 else PV + 8*tl + 4 + 2*e
    for u in U: a(mfma16(SC+4*u, kp(u//4, u%4), QP+2*u, V(MC)))
    a(f"v_mov_b32 v10, {f2u(0.25*LOG2E):#x}")
    for u in (2, 3, 6, 7): a(mfma16(SP+4*u, kprev(u), QP+2*u, V(MPN)))
    a("s_waitcnt lgkmcnt(0)")
    for u in (0, 1, 4, 5): a(mfma16(SP+4*u, kprev(u), QP+2*u, V(MPA+4*(u&1))))
    MX, TM = 32, 40
    for u in (2, 3, 6, 7, 0, 1, 4, 5):
        for i in range(4): a(f"v_max_f32 v{SC+4*u+i}, v{SC+4*u+i}, v{SP+4*u+i}")
    for u in U: a(f"v_max3_f32 v{MX+u}, v{SC+4*u}, v{SC+4*u+1}, v{SC+4*u+2}")
    for u in U: a(f"v_max_f32 v{MX+u}, v{MX+u}, v{SC+4*u+3}")
    red_g(a, [MX+u for u in U], "v_max_f32", TM)
    for u in range(0, 8, 2): a(f"v_pk_mul_f32 {V(MX+u,2)}, {V(MX+u,2)}, {V(10,2)} op_sel_hi:[1,0]")
    for u in U:
        for p in range(2): a(f"v_pk_fma_f32 {V(SC+4*u+2*p,2)}, {V(SC+4*u+2*p,2)}, {V(10,2)}, {V(MX+(u&~1),2)} op_sel:[0,0,{u&1}] op_sel_hi:[1,0,{u&1}] neg_lo:[0,0,1] neg_hi:[0,0,1]")
    for u in U:
        for i in range(4): a(f"v_exp_f32 v{SC+4*u+i}, v{SC+4*u+i}")
    PC, PP = 144, 160
    for u in U: pack(PP+2*u, SC+4*u)
    for u in U:
        for p in range(2): a(f"v_and_b32 v{PC+2*u+p}, v{MB+p}, v{PP+2*u+p}")
    for u in U:
        for p in range(2): a(f"v_xor_b32 v{PP+2*u+p}, v{PC+2*u+p}, v{PP+2*u+p}")
    OA = 176
    for u in U: a(f"v_pk_add_f32 {V(SC+4*u,2)}, {V(SC+4*u,2)}, {V(SC+4*u+2,2)}")
    for u in U:
        a(mfma16(OA+4*u, vp(u//4, u%4), PC+2*u, "0"))
        a(f"v_add_f32 v{MX+u}, v{SC+4*u}, v{SC+4*u+1}")
    for u in U: a(mfma16(OA+4*u, vprev(u), PP+2*u))
    red_g(a, [MX+u for u in U], "v_add_f32", TM)
    for u in U: a(f"v_rcp_f32 v{MX+u}, v{MX+u}")
    for u in U:
        for p in range(2): a(f"v_pk_mul_f32 {V(OA+4*u+2*p,2)}, {V(OA+4*u+2*p,2)}, {V(MX+(u&~1),2)} op_sel:[0,{u&1}] op_sel_hi:[1,{u&1}]")
    for tl in range(4):
        for e in range(2): pack(112 + 4*tl + 2*e, OA + 4*(e*4+tl))
    for tl in range(4):
        for p in range(2): a(f"v_permlane32_swap_b32 v{112+4*tl+p}, v{112+4*tl+2+p}")
    for tl in range(4):
        a.vmem(f"buffer_store_dwordx4 {V(112+4*tl)}, v4, {S4(WS_)}, s{53+(tl>>1)} offen offset:{256*(tl&1)} sc1", "o")
    a.stamp()

def aq_helper(a, fused):
    srd(a, WA_, 66, D*1536*2)
    rowtile_voffs(a, 4, 5, 10)
    a("v_bfe_u32 v3, v1, 4, 1")
    a("v_lshlrev_b32 v3, 1, v3")
    a("v_and_b32 v30, 7, v1")
    a("v_xor_b32 v30, v30, v3")
    a("v_lshrrev_b32 v3, 3, v1")
    a("v_mul_u32_u24 v3, 3072, v3")
    a("v_lshl_add_u32 v6, v30, 4, v3")
    a("v_xor_b32 v30, 4, v30")
    a("v_lshl_add_u32 v7, v30, 4, v3")
    a(f"v_add_u32 v7, {8*3072}, v7")
    a("v_lshrrev_b32 v3, 4, v1")
    a(f"s_lshl_b32 s61, s{sQ}, 1")
    a("v_add_u32 v3, s61, v3")
    a("v_and_b32 v30, 7, v1")
    a("v_xor_b32 v30, v30, v3")
    a("v_and_b32 v30, 7, v30")
    a("v_lshrrev_b32 v3, 3, v1")
    a("v_lshlrev_b32 v3, 10, v3")
    a("v_lshl_add_u32 v20, v30, 4, v3")
    a(f"s_lshl_b32 s53, s{sRB}, 7")
    a("s_sub_u32 s55, s53, 16")
    a("s_max_i32 s55, s55, 0")
    a(f"s_lshl_b32 s61, s{sQ}, 2")
    a("s_add_u32 s55, s55, s61")
    a("s_lshl_b32 s55, s55, 10")
    a(f"s_lshl_b32 s61, s{sQ}, 5")
    a("s_add_u32 s53, s53, s61")
    a("s_lshl_b32 s53, s53, 10")
    a(f"s_mul_i32 s54, s{sQ}, {16*3072}")
    a(f"s_lshl_b32 s61, s{sGRP}, 7")
    a("s_add_u32 s54, s54, s61")
    a(f"s_mul_i32 s56, s{sQ}, 6144")
    a(f"s_lshl_b32 s57, s{sQ}, 9")
    a(f"s_lshl_b32 s60, s{sQ}, 12")
    def ga(step):
        sl = QSLOT[step % 3]; tag = ("A", step)
        x_group_h(a, step, sl, tag)
        a(f"s_mul_i32 s63, s61, {64*3072}")
        a("s_add_u32 s63, s63, s54")
        a(f"s_add_u32 m0, s56, {sl + 18432}")
        a("s_add_u32 s62, s58, s55")
        for m in range(3): a.vmem(f"buffer_load_dwordx4 v6, {S4(WA_)}, s63 offen offset:{1024*m} lds", tag)
        a(f"s_add_u32 m0, s56, {sl + 18432 + 3072}")
        a("s_nop 0")
        for m in range(3): a.vmem(f"buffer_load_dwordx4 v7, {S4(WA_)}, s63 offen offset:{1024*m} lds", tag)
        a(f"s_add_u32 m0, s57, {sl + 16384}")
        a("s_mov_b32 exec_hi, 0")
        a.vmem(f"buffer_load_dwordx4 v20, {S4(X_)}, s62 offen lds", tag)
        a("s_mov_b32 exec_hi, -1")
    ga(0)
    if fused: nonce_publish(a)
    ga(1); ga(2)
    late_srds(a)
    if fused: wsp_setup_h(a)
    a.stamp()
    for s in range(8):
        a.vmwait(("A", s))
        a("s_barrier")
        if s in (0, 1, 4): a.stamp()
        if 1 <= s <= 5: ga(s + 2)
        if fused and s == 5:
            a("v_mov_b32 v31, 0")
            a.vmem(f"buffer_load_dword v25, v31, {S4(DBG_)}, 0 offen sc1", "poll")
        if fused and s == 6:
            wsp_group_h(a, 0); wsp_group_h(a, 1)
        if fused and s == 7: wsp_group_h(a, 6)
    a.stamp()
    a("s_barrier")
    if fused:
        for v in (2, 3, 4, 5, 7): wsp_group_h(a, v)
    a("s_barrier")

F1_OFF, F2_OFF, F3_OFF = WS_FLG, WS_FLG + 128*128, WS_FLG + 384*128
def flag_store(a, which):
    if which == "F1":
        a(f"s_lshl_b32 s61, s{sRB}, 3")
        a(f"s_add_u32 s61, s61, s{sGRP}")
        off = F1_OFF
    else:
        a(f"s_lshl_b32 s61, s{sRB}, 1")
        a(f"s_add_u32 s61, s61, s{sTYP}")
        a("s_lshl_b32 s61, s61, 3")
        a(f"s_add_u32 s61, s61, s{sGRP}")
        off = F2_OFF
    a("s_lshl_b32 s61, s61, 7")
    a(f"s_add_u32 s61, s61, {off}")
    a(f"s_cmp_eq_u32 s{sQ}, 0")
    a(f"s_cselect_b32 s61, s61, {OOB}")
    a(f"v_mov_b32 v30, s{sT}")
    a("v_mov_b32 v31, 0")
    a("s_mov_b64 exec, 1")
    a.vmem(f"buffer_store_dword v30, v31, {S4(WS_)}, s61 offen sc1", "flag")
    a("s_mov_b64 exec, -1")

def mfma32(d, a, b, c=None):
    c = V(d, 16) if c is None else c
    return f"v_mfma_f32_32x32x16_bf16 {V(d,16)}, {V(a)}, {V(b)}, {c}"

def b_compute(a, fused):
    ACC = 32
    ring = list(range(80, 144, 4))
    Z1 = 144
    a("v_and_b32 v3, 31, v1")
    a("v_lshrrev_b32 v30, 5, v1")
    a("v_bfe_u32 v31, v1, 1, 3")
    a("v_xor_b32 v31, v30, v31")
    a("v_lshlrev_b32 v3, 7, v3")
    a("v_lshl_add_u32 v10, v31, 4, v3")
    a(f"s_lshl_b32 s61, s{sQ}, 12")
    a("v_add_u32 v10, s61, v10")
    for b4 in range(1, 4): a(f"v_xor_b32 v{10+b4}, {32*b4}, v10")
    for b4 in range(4): a(f"v_add_u32 v{14+b4}, 0x10000, v{10+b4}")
    a("v_lshlrev_b32 v19, 4, v1")
    a(f"v_add_u32 v18, {L_Z2}, v19")
    a("v_and_b32 v3, 15, v1")
    a("v_bfe_u32 v31, v1, 4, 1")
    a("v_lshlrev_b32 v20, 9, v31")
    a("v_lshl_add_u32 v20, v30, 8, v20")
    a("v_lshl_add_u32 v20, v3, 4, v20")
    a("v_lshl_add_u32 v21, v3, 1, v31")
    a("v_lshlrev_b32 v21, 1, v21")
    a(f"s_lshl_b32 s57, s{sRB}, 2")
    a(f"s_add_u32 s57, s57, s{sQ}")
    a("s_lshl_b32 s61, s57, 6")
    a(f"s_cmp_eq_u32 s{sKS}, 0")
    a("s_cselect_b32 s61, s61, 4096")
    if fused:
        a("v_mov_b32 v23, 0")
        a.vmem(f"buffer_load_dword v23, v23, {S4(DBG_)}, 0 offen sc1", "b")
    a.vmem(f"buffer_load_ushort v22, v21, {S4(BSP_)}, s61 offen", "b")
    a(f"s_mul_i32 s55, s{sCG}, 6")
    a("s_min_u32 s55, s55, 40")
    a("s_sub_u32 s58, 40, s55")
    a("s_min_u32 s58, s58, 6")
    a(f"s_cmp_eq_u32 s{sCG}, 7")
    a("s_cselect_b32 s58, 3, s58")
    a("s_mul_i32 s53, s57, 48")
    a("s_add_u32 s53, s53, s55")
    a("s_lshl_b32 s53, s53, 10")
    a(f"s_mul_i32 s61, s{sKS}, {64*48*1024}")
    a("s_add_u32 s54, s53, s61")
    a(f"s_add_u32 s53, s53, {WS_Z1}")
    a(f"s_add_u32 s54, s54, {WS_H}")
    a.vmwait("b")
    if fused: a(f"v_readfirstlane_b32 s{sT}, v23")
    a("v_lshlrev_b32 v22, 16, v22")
    for r in range(48): a(f"v_mov_b32 v{ACC+r}, v22")
    def z1_load():
        a("s_add_u32 s61, s53, 4096")
        for j in range(6):
            a.vmem(f"buffer_load_dwordx4 {V(Z1+4*j)}, v20, {S4(WS_)}, s{53 if j < 4 else 61} offen offset:{(j%4)*1024} sc1", "z1")
    fr = {}; mf = []
    for i in range(16):
        for b4 in range(4):
            fr[('w', i, b4)] = dict(step=i, reg=None, reads=[lambda r, i=i, b4=b4: f"ds_read_b128 {V(r)}, v{10 + b4 + 4*((i%8)//4)} offset:{(i%4)*16384}"])
            for c in range(3):
                fr[('z', i, b4, c)] = dict(step=i, reg=None, reads=[lambda r, i=i, b4=b4, c=c: f"ds_read_b128 {V(r)}, v18 offset:{(i&1)*12288 + (b4*3+c)*1024}"])
                mf.append((ACC+16*c, ('z', i, b4, c), ('w', i, b4)))
    a.stamp()
    if fused: a("s_barrier")
    a("s_barrier")
    gemm_stream(a, mf, fr, ring, opt('LAB', 5), opt('coverB', 2), lambda st: None, hooks={opt('z1step', 11): z1_load},
                first_zero=False, stamps=(0, 1, 8), pergap=opt('pgB', 2), slack=2, op=mfma32)
    a.stamp()
    a("s_barrier")
    a.vmwait("z1")
    for j in range(6):
        x = ACC + 8*j; z = Z1 + 4*j; t = 80 + 8*(j&1)
        for k in range(4):
            a(f"v_lshlrev_b32 v{t+2*k}, 16, v{z+k}")
            a(f"v_and_b32 v{t+2*k+1}, 0xffff0000, v{z+k}")
        for k in range(4): a(f"v_pk_mul_f32 {V(x+2*k,2)}, {V(x+2*k,2)}, {V(t+2*k,2)}")
        for k in range(4): a(f"v_cvt_pk_bf16_f32 v{x+k}, v{x+2*k}, v{x+2*k+1}")
        a(f"s_cmp_gt_u32 s58, {j}")
        a(f"s_cselect_b32 s61, s54, {OOB}")
        if j >= 4: a("s_add_u32 s61, s61, 4096")
        a.vmem(f"buffer_store_dwordx4 {V(x)}, v19, {S4(WS_)}, s61 offen offset:{(j%4)*1024} sc1", "h")
    a.stamp()

def cw_setup_h(a):
    a("v_bfe_u32 v3, v1, 4, 1")
    a("v_lshlrev_b32 v3, 2, v3")
    a("v_and_b32 v30, 7, v1")
    a("v_xor_b32 v30, v30, v3")
    a("v_lshrrev_b32 v3, 3, v1")
    a("v_lshlrev_b32 v3, 10, v3")
    a("v_lshl_add_u32 v26, v30, 4, v3")
    for k in range(1, 4): a(f"v_add_u32 v{26+k}, {k*(8192-1024)}, v26")
    a(f"s_lshl_b32 s47, s{sCG}, 7")
    a(f"s_lshl_b32 s61, s{sQ}, 15")
    a("s_add_u32 s47, s47, s61")

def cw_pieces(a, slot):
    R, row0 = (WO_, slot*128) if slot < 4 else (WOUT_, (slot-4)*128)
    out = []
    for k in range(4):
        def f(k=k):
            if k == 0:
                a(f"s_add_u32 s46, s47, {row0*1024}")
            a(f"s_add_u32 m0, s60, {slot*16384}")
            a("s_nop 0")
            a.vmem(f"buffer_load_dwordx4 v{26+k}, {S4(R)}, s46 offen offset:{1024*k} lds", ("CW", slot))
        out.append(f)
    return out

def b_helper(a, fused):
    DZ = opt('DZ', 6)
    ZR, TB, UT, OUT = 64, 140, 156, 164
    if not fused:
        late_srds(a)
        wsp_setup_h(a)
        a(f"s_lshl_b32 s60, s{sQ}, 12")
    cw_setup_h(a)
    a("v_lshlrev_b32 v10, 4, v1")
    a(f"s_lshl_b32 s53, s{sCG}, 1")
    a(f"s_add_u32 s53, s53, s{sKS}")
    a("s_lshl_b32 s53, s53, 5")
    a(f"s_and_b32 s54, s{sQ}, 1")
    a(f"s_lshr_b32 s55, s{sQ}, 1")
    a("s_add_u32 s53, s53, s54")
    a("s_mul_i32 s53, s53, 6144")
    a("s_mul_i32 s61, s55, 3072")
    a("s_add_u32 s53, s53, s61")
    a(f"s_add_u32 s53, s53, {WS_Z2N}")
    a("v_lshrrev_b32 v3, 5, v1")
    a("v_mul_u32_u24 v3, 3072, v3")
    a("v_bfe_u32 v30, v1, 4, 1")
    a("v_lshl_add_u32 v3, v30, 9, v3")
    a("v_and_b32 v30, 15, v1")
    a("v_lshl_add_u32 v3, v30, 4, v3")
    a("s_mul_i32 s61, s54, 6144")
    a(f"s_add_u32 s61, s61, {L_Z2}")
    a("v_add_u32 v3, s61, v3")
    a("s_cmp_eq_u32 s55, 0")
    for k, (o0, o1) in enumerate(((0, 1280), (256, 2048), (1024, 2304))):
        a(f"s_mov_b32 s61, {o0}")
        a(f"s_cselect_b32 s61, s61, {o1}")
        a(f"v_add_u32 v{11+k}, s61, v3")
    a("v_lshrrev_b32 v3, 4, v1")
    a("v_lshlrev_b32 v3, 5, v3")
    a("s_lshl_b32 s61, s54, 7")
    a(f"s_add_u32 s61, s61, {L_RB}")
    a("v_add_u32 v14, s61, v3")
    a("v_mov_b32 v16, 0xffff0000")
    a(f"s_lshl_b32 s56, s{sKS}, 2")
    a(f"s_add_u32 s56, s56, s{sQ}")
    a("s_lshl_b32 s56, s56, 11")
    a(f"s_add_u32 s56, s56, {WS_ST2}")
    a(f"s_lshl_b32 s61, s{sQ}, 10")
    a(f"s_add_u32 s61, s61, {L_RB}")
    a("v_lshl_add_u32 v17, v1, 3, s61")
    def z2_pieces(i):
        def f0():
            a(f"s_add_u32 s57, s{sK0B}, {i}")
            a("s_and_b32 s57, s57, 15")
            a("s_mul_i32 s57, s57, 12288")
            a("s_add_u32 s57, s57, s53")
            a.vmem(f"buffer_load_dwordx4 {V(ZR + 12*(i % DZ))}, v10, {S4(WS_)}, s57 offen sc1", ("Z", i))
        out = [f0]
        for k in (1, 2):
            out.append(lambda k=k: a.vmem(f"buffer_load_dwordx4 {V(ZR + 12*(i % DZ) + 4*k)}, v10, {S4(WS_)}, s57 offen offset:{1024*k} sc1", ("Z", i)))
        return out
    def wsp_pieces(v):
        def f0():
            a(f"s_add_u32 s58, s{sK0B}, {v}")
            a("s_and_b32 s58, s58, 15")
            a("s_lshl_b32 s58, s58, 7")
            a("s_add_u32 s58, s58, s59")
            a(f"s_add_u32 m0, s60, {(v % 8) * 16384}")
            a("s_add_u32 s46, s58, 4096")
            a.vmem(f"buffer_load_dwordx4 v8, {S4(WSP_)}, s58 offen lds", ("S", v))
        def f1():
            a.vmem(f"buffer_load_dwordx4 v9, {S4(WSP_)}, s58 offen offset:1024 lds", ("S", v))
        def f2():
            a(f"s_add_u32 m0, s60, {(v % 8) * 16384 + 2048}")
            a("s_nop 0")
            a.vmem(f"buffer_load_dwordx4 v8, {S4(WSP_)}, s46 offen lds", ("S", v))
        def f3():
            a.vmem(f"buffer_load_dwordx4 v9, {S4(WSP_)}, s46 offen offset:1024 lds", ("S", v))
        return [f0, f1, f2, f3]
    def tab_reads(i):
        a(f"s_add_u32 s61, s{sK0B}, {i}")
        a("s_and_b32 s61, s61, 15")
        a("s_lshl_b32 s61, s61, 8")
        a("v_add_u32 v15, s61, v14")
        for k in range(2): a(f"ds_read_b128 {V(TB+4*k)}, v15 offset:{16*k}")
        for k in range(2): a(f"ds_read_b128 {V(TB+8+4*k)}, v15 offset:{4096 + 16*k}")
    def norm(i):
        o = []
        for k in range(3):
            z = ZR + 12*(i % DZ) + 4*k; d = OUT + 12*(i & 1) + 4*k
            for w in range(4):
                o.append(f"v_lshlrev_b32 v{UT+2*w}, 16, v{z+w}")
                o.append(f"v_and_b32 v{UT+2*w+1}, v16, v{z+w}")
            for w in range(8): o.append(f"v_fma_f32 v{UT+w}, v{UT+w}, v{TB+w}, v{TB+8+w}")
            for w in range(4): o.append(f"v_cvt_pk_bf16_f32 v{d+w}, v{UT+2*w}, v{UT+2*w+1}")
        return o
    def writes(i):
        for k in range(3): a(f"ds_write_b128 v{11+k}, {V(OUT + 12*(i & 1) + 4*k)} offset:{(i & 1)*12288}")
    a.stamp()
    if fused:
        lsk = a.label("Lnp")
        a(f"s_cmp_lg_u32 s{sQ}, 0")
        a(f"s_cbranch_scc1 {lsk}")
        a(f"s_lshl_b32 s62, s{sKS}, 13")
        a(f"s_add_u32 s62, s62, {F1_OFF}")
        a("v_lshlrev_b32 v31, 7, v1")
        a(f"v_mov_b32 v30, 0")
        def iss(): a(f"buffer_load_dword v30, v31, {S4(WS_)}, s62 offen sc1")
        def chk():
            a(f"v_cmp_ne_u32 vcc, s{sT}, v30")
            a("s_cmp_eq_u64 vcc, 0")
        spin(a, iss, chk)
        a(f"{lsk}:")
        a.vmall()
        a("s_barrier")
        a.stamp()
    for k in range(2): a.vmem(f"buffer_load_dwordx4 {V(32+4*k)}, v10, {S4(WS_)}, s56 offen offset:{1024*k} sc1", "st")
    for i in range(2): a.run(z2_pieces(i))
    if not fused: a.run(wsp_pieces(0))
    for i in range(2, DZ):
        a.run(z2_pieces(i))
        if not fused: a.run(wsp_pieces(i - 1))
    if not fused:
        for v in range(DZ - 1, 8): a.run(wsp_pieces(v))
    a.vmwait("st")
    inv = f2u(1.0/688)
    for k in range(4): a(f"v_mul_f32 v{32+2*k}, {inv:#x}, v{32+2*k}")
    for k in range(4): a(f"v_mul_f32 v{33+2*k}, {inv:#x}, v{33+2*k}")
    for k in range(4): a(f"v_fma_f32 v{33+2*k}, -v{32+2*k}, v{32+2*k}, v{33+2*k}")
    for k in range(4): a(f"v_max_f32 v{33+2*k}, 0, v{33+2*k}")
    for k in range(4): a(f"v_add_f32 v{33+2*k}, {f2u(1e-5):#x}, v{33+2*k}")
    for k in range(4): a(f"v_rsq_f32 v{40+k}, v{33+2*k}")
    for k in range(4): a(f"v_mul_f32 v{44+k}, -v{32+2*k}, v{40+k}".replace("v_mul_f32", "v_mul_f32_e64"))
    for k in range(2):
        a(f"ds_write_b64 v17, {V(40+2*k,2)} offset:{512*k}")
        a(f"ds_write_b64 v17, {V(44+2*k,2)} offset:{4096 + 512*k}")
    a("s_waitcnt lgkmcnt(0)")
    a("s_barrier")
    tab_reads(0)
    a.vmwait(("Z", 0))
    a("s_waitcnt lgkmcnt(0)")
    a.run(norm(0))
    writes(0)
    tab_reads(1)
    a.run(z2_pieces(DZ))
    a.vmwait(("Z", 1))
    a("s_waitcnt lgkmcnt(0)")
    a.run(norm(1))
    tab_reads(2)
    bg = []
    for v in range(8, 16): bg += [(v - 7, p, v) for p in wsp_pieces(v)]
    if fused:
        for sl in range(7): bg += [(sl + 9, p, 99) for p in cw_pieces(a, sl)]
    pace = opt('pace', 3)
    for i in range(16):
        assert all(x[2] > i for x in bg)
        a.vmwait(("S", i))
        if i == 0: a("s_waitcnt lgkmcnt(4)")
        if fused and i == opt('z1step', 11): f2_check(a)
        a("s_barrier")
        if i in (0, 1, 8): a.stamp()
        vm = []
        if fused and i == opt('z1step', 11) - 3: vm.append(lambda: f2_issue(a))
        if i + 1 < 16: writes(i + 1)
        if i + 1 + DZ < 16: vm += z2_pieces(i + 1 + DZ)
        n = pace if i + 1 + DZ < 16 else pace + 3
        while n > 0 and bg and bg[0][0] <= i:
            vm.append(bg.pop(0)[1]); n -= 1
        va = []
        if i + 2 < 16:
            a.vmwait(("Z", i + 2))
            a(f"s_waitcnt lgkmcnt({3 if i + 1 < 16 else 0})")
            va = norm(i + 2)
        step = max(1, len(va) // max(1, len(vm))) if va else 1
        k = 0
        for n_, x in enumerate(va):
            if n_ % step == 0 and k < len(vm):
                vm[k](); k += 1
            a(x)
        a.run(vm[k:])
        if i + 3 < 16:
            tab_reads(i + 3)
            a("s_waitcnt lgkmcnt(4)")
        else:
            a("s_waitcnt lgkmcnt(0)")
    a.stamp()
    a("s_barrier")
    for e, p, _ in bg: p()
    if fused:
        for sl in (7, 8, 9): a.run(cw_pieces(a, sl))

def f2_issue(a):
    a(f"s_lshr_b32 s61, s{sRC}, 1")
    a("s_lshl_b32 s61, s61, 4")
    a(f"s_lshl_b32 s62, s{sRB}, 4")
    a(f"s_add_u32 s62, s62, s{sCG}")
    a("s_add_u32 s62, s62, 8")
    a("v_add_u32 v20, s61, v1")
    a("v_mov_b32 v21, s62")
    a("v_cmp_gt_u32 vcc, 8, v1")
    a("s_nop 1")
    a("v_cndmask_b32 v20, v21, v20, vcc")
    a("v_lshlrev_b32 v20, 7, v20")
    a(f"v_add_u32 v20, {F2_OFF}, v20")
    a.vmem(f"buffer_load_dword v21, v20, {S4(WS_)}, 0 offen sc1", "f2")
def f2_check(a):
    a.vmwait("f2")
    def iss(): a(f"buffer_load_dword v21, v20, {S4(WS_)}, 0 offen sc1")
    def chk():
        a(f"v_cmp_ne_u32 vcc, s{sT}, v21")
        a("s_cmp_eq_u64 vcc, 0")
    spin(a, iss, chk)

L_RED = 0
def c_waddr(a, d):
    a("v_lshrrev_b32 v3, 5, v1")
    a("v_bfe_u32 v30, v1, 2, 2")
    a("v_lshl_add_u32 v3, v3, 2, v30")
    a("v_lshlrev_b32 v3, 7, v3")
    a("v_and_b32 v30, 2, v30")
    a("v_bfe_u32 v31, v1, 4, 1")
    a("v_or_b32 v30, v30, v31")
    a("v_lshl_add_u32 v3, v30, 5, v3")
    a("v_and_b32 v30, 3, v1")
    a(f"v_lshl_add_u32 v{d}, v30, 3, v3")
    a(f"v_xor_b32 v{d+1}, 64, v{d}")

def c_stream(a, nblk, fragreg, tagf, areg, blk0, ring, ACC, first_zero):
    fr = {}; mf = []
    for b in range(nblk):
        fr[('h', b)] = dict(step=0, reg=fragreg(b), reads=None)
        for nn in range(2):
            off = (blk0 + b) * 2048
            fr[('w', b, nn)] = dict(step=0, reg=None, reads=[(lambda r, hh=hh, nn=nn, off=off: f"ds_read_b64_tr_b16 {V(r+2*hh,2)}, v{areg + 2*(off >> 16) + nn} offset:{(off & 0xffff) + hh*1024}") for hh in range(2)])
            mf.append((ACC+16*nn, ('w', b, nn), ('h', b)))
    cnt = [0]
    def op(d, x, y, c):
        b = cnt[0] // 2; cnt[0] += 1
        a.vmwait(tagf(b))
        return mfma32(d, x, y, c)
    gemm_stream(a, mf, fr, ring, opt('LAC', 4), 0, lambda st: None, first_zero=first_zero, pergap=2, slack=2, op=op, skip_first_barrier=True)

def c_final(a):
    a("s_barrier")
    for k in range(2):
        a(f"ds_read_b128 {V(16+8*k)}, v6 offset:{17408*k}")
        a(f"ds_read_b128 {V(20+8*k)}, v6 offset:{17408*k + 16}")
    a.vmwait("x")
    for w in range(4):
        a(f"v_lshlrev_b32 v{32+2*w}, 16, v{8+w}")
        a(f"v_and_b32 v{33+2*w}, 0xffff0000, v{8+w}")
    a("s_waitcnt lgkmcnt(2)")
    for w in range(4): a(f"v_pk_add_f32 {V(32+2*w,2)}, {V(32+2*w,2)}, {V(16+2*w,2)}")
    a("s_waitcnt lgkmcnt(0)")
    for w in range(4): a(f"v_pk_add_f32 {V(32+2*w,2)}, {V(32+2*w,2)}, {V(24+2*w,2)}")
    for w in range(4): a(f"v_cvt_pk_bf16_f32 v{32+w}, v{32+2*w}, v{33+2*w}")
    a.vmem(f"buffer_store_dwordx4 {V(32)}, v7, {S4(OUT_)}, s47 offen", "out")

def c_final_setup(a):
    a("v_lshrrev_b32 v3, 3, v0")
    a("v_and_b32 v30, 7, v0")
    a("v_mul_u32_u24 v6, 272, v3")
    a("v_lshl_add_u32 v6, v30, 5, v6")
    a("v_and_b32 v31, 15, v3")
    a("v_lshlrev_b32 v31, 1, v31")
    a("v_bfe_u32 v7, v3, 4, 1")
    a("v_add_u32 v31, v31, v7")
    a("v_and_b32 v7, 32, v3")
    a("v_add_u32 v31, v31, v7")
    a("v_lshlrev_b32 v31, 10, v31")
    a("v_lshl_add_u32 v7, v30, 4, v31")
    a(f"s_lshl_b32 s47, s{sRC}, 9")
    a(f"s_add_u32 s47, s47, s{sCG}")
    a("s_lshl_b32 s47, s47, 7")
    a.vmem(f"buffer_load_dwordx4 {V(8)}, v7, {S4(X_)}, s47 offen", "x")

def c_compute(a, fused):
    ACC, HF = 32, 80
    ring = list(range(64, 80, 4)) + [12, 16, 20, 24]
    a("s_barrier")
    if not fused: late_srds(a)
    a(f"s_and_b32 s53, s{sQ}, 1")
    a(f"s_lshr_b32 s54, s{sQ}, 1")
    c_waddr(a, 4)
    a("v_add_u32 v252, 0x10000, v4\nv_add_u32 v253, 0x10000, v5")
    a("v_add_u32 v254, 0x20000, v4\nv_add_u32 v255, 0x20000, v5")
    a(f"s_lshl_b32 s55, s{sRC}, 1")
    a("s_add_u32 s55, s55, s53")
    a("s_lshl_b32 s56, s54, 6")
    a("s_add_u32 s56, s56, s55")
    a("s_mul_i32 s56, s56, 49152")
    a(f"s_add_u32 s56, s56, {WS_H}")
    a("v_lshlrev_b32 v28, 4, v1")
    a(f"s_lshl_b32 s61, s{sQ}, 13")
    a("v_add_u32 v29, s61, v28")
    if fused:
        a.vmall()
        a("s_lshl_b32 s61, s57, 1")
        a(f"s_add_u32 s61, s61, s{sKS}")
        a("s_lshl_b32 s61, s61, 3")
        a(f"s_add_u32 s61, s61, s{sCG}")
        a("s_lshl_b32 s61, s61, 7")
        a(f"s_add_u32 s61, s61, {F3_OFF}")
        a(f"v_mov_b32 v30, s{sT}")
        a("v_mov_b32 v31, 0")
        a("s_mov_b64 exec, 1")
        a.vmem(f"buffer_store_dword v30, v31, {S4(WS_)}, s61 offen sc1", "flag")
        a("s_mov_b64 exec, -1")
        a.stamp()
    c_final_setup(a)
    a("v_and_b32 v3, 31, v1")
    a("v_mul_u32_u24 v3, 272, v3")
    a("v_lshrrev_b32 v30, 5, v1")
    a("v_lshl_add_u32 v3, v30, 4, v3")
    a("s_mul_i32 s61, s54, 17408")
    a(f"s_mul_i32 s62, s53, {32*272}")
    a("s_add_u32 s61, s61, s62")
    a("v_add_u32 v4, s61, v3")
    a("s_barrier")
    a("s_barrier")
    for k in range(8): a(f"ds_read_b128 {V(ACC+4*k)}, v29 offset:{1024*k}")
    if fused:
        a("s_lshl_b32 s62, s55, 1")
        a("s_add_u32 s62, s62, s54")
        a("s_lshl_b32 s62, s62, 10")
        a(f"s_add_u32 s62, s62, {F3_OFF}")
        a("v_and_b32 v31, 7, v1")
        a("v_lshlrev_b32 v31, 7, v31")
        a("v_mov_b32 v30, 0")
    a("s_waitcnt lgkmcnt(0)")
    a("s_barrier")
    if fused:
        def iss(): a(f"buffer_load_dword v30, v31, {S4(WS_)}, s62 offen sc1")
        def chk():
            a(f"v_cmp_ne_u32 vcc, s{sT}, v30")
            a("s_cmp_eq_u64 vcc, 0")
        spin(a, iss, chk)
        a.vm = []
    a.stamp()
    for b in range(43):
        if b and b % 4 == 0: a("s_add_u32 s56, s56, 4096")
        a.vmem(f"buffer_load_dwordx4 {V(HF+4*b)}, v28, {S4(WS_)}, s56 offen offset:{(b%4)*1024} sc1", ("H", b))
    c_stream(a, 43, lambda b: HF+4*b, lambda b: ("H", b), 250, 32, ring, ACC, False)
    a.stamp()
    a("s_nop 15")
    for nn in range(2):
        for jj in range(4): a(f"ds_write_b128 v4, {V(ACC+16*nn+4*jj)} offset:{128*nn + 32*jj}")
    a("s_waitcnt lgkmcnt(0)")
    c_final(a)

def c_helper(a, fused):
    ACC, OF = 32, 80
    ring = list(range(64, 80, 4)) + [144, 148, 152, 156]
    if not fused:
        late_srds(a)
        a(f"s_lshl_b32 s60, s{sQ}, 12")
        cw_setup_h(a)
    a(f"s_and_b32 s53, s{sQ}, 1")
    a(f"s_lshr_b32 s54, s{sQ}, 1")
    a(f"s_lshl_b32 s55, s{sRC}, 1")
    a("s_add_u32 s55, s55, s53")
    a("s_lshl_b32 s55, s55, 1")
    a("s_add_u32 s55, s55, s54")
    a("s_lshl_b32 s55, s55, 14")
    a(f"s_add_u32 s55, s55, {WS_O}")
    a("v_lshlrev_b32 v12, 4, v1")
    for b in range(16):
        if b and b % 4 == 0: a("s_add_u32 s55, s55, 4096")
        a.vmem(f"buffer_load_dwordx4 {V(OF+4*b)}, v12, {S4(WS_)}, s55 offen offset:{(b%4)*1024} sc1", ("O", b))
    if not fused:
        for sl in range(10): a.run(cw_pieces(a, sl))
    c_final_setup(a)
    c_waddr(a, 4)
    a("s_lshl_b32 s61, s54, 15")
    a("v_add_u32 v4, s61, v4\nv_add_u32 v5, s61, v5")
    a(f"s_lshl_b32 s61, s{sQ}, 13")
    a("v_add_u32 v13, s61, v12")
    a.vmwait(("CW", 3))
    a("s_barrier")
    a.stamp()
    c_stream(a, 16, lambda b: OF+4*b, lambda b: ("O", b), 4, 0, ring, ACC, True)
    a.stamp()
    a("s_barrier")
    a("s_nop 15")
    for k in range(8): a(f"ds_write_b128 v13, {V(ACC+4*k)} offset:{1024*k}")
    a.vmwait(("CW", 9))
    a("s_waitcnt lgkmcnt(0)")
    a("s_barrier")
    a("s_barrier")
    c_final(a)

def diag_out(a, base):
    if not a.diag: return
    a("v_writelane_b32 v2, s84, 62")
    a("s_memrealtime s[86:87]")
    a("s_waitcnt lgkmcnt(0)")
    a("v_writelane_b32 v2, s86, 63")
    a("s_lshl_b32 s61, s2, 3")
    a(f"s_add_u32 s61, s61, s{sW}")
    a("s_lshl_b32 s61, s61, 8")
    a(f"s_add_u32 s61, s61, {base}")
    a("v_lshlrev_b32 v3, 2, v1")
    a(f"buffer_store_dword v2, v3, {S4(WS_)}, s61 offen")

def simple_kernel(name, diag, idx, comp, helper):
    a = G(diag)
    prologue(a, f"L{name}_end")
    a(f"s_cmp_ge_u32 s{sW}, 4")
    a(f"s_cbranch_scc1 L{name}_h")
    for k, fn in enumerate((comp, helper)):
        if k: a(f"L{name}_h:")
        a.vm = []; a.nst = 0
        fn(a)
        a.vmall(); a.stamp()
        diag_out(a, WS_DBG + idx*0x80000)
        a("s_endpgm")
    a(f"L{name}_end:")
    a("s_endpgm")
    return a.text()

def by_type(fq, fz, lab):
    def f(a):
        a(f"s_cmp_lg_u32 s{sTYP}, 0")
        a(f"s_cbranch_scc1 {lab}_z")
        fq(a, False)
        a.vmall()
        a(f"s_branch {lab}_e")
        n = a.nst
        a(f"{lab}_z:")
        a.vm = []; a.nst = 0
        fz(a, False)
        a(f"{lab}_e:")
        a.nst = max(a.nst, n)
    return f

def multi(diag):
    ka = simple_kernel("A", diag, 0, by_type(aq_compute, az_compute, "LAc"), by_type(aq_helper, az_helper, "LAh"))
    def bc(a): late_srds(a); b_compute(a, False)
    kb = simple_kernel("B", diag, 1, bc, lambda a: b_helper(a, False))
    kc = simple_kernel("C", diag, 2, lambda a: c_compute(a, False), lambda a: c_helper(a, False))
    return [("a_kernel", ka), ("b_kernel", kb), ("c_kernel", kc)]

if __name__ == "__main__":
    diag = "diag" in sys.argv
    for x in sys.argv[2:]:
        if "=" in x:
            k, v = x.split("="); OPT[k] = int(v)
    ks = multi(diag)
    hdr = open("cdna_kernels/" + KNAME[:-7] + ".s.ref").read().split("; Override")[0]
    open(sys.argv[1], "w").write(hdr + file_text([(n, 256, 512, LDS_BYTES) for n, t in ks], [(n, t, 256, 102, 256) for n, t in ks]))
```

```python
import sys, math, struct
from asmgen import Asm, KA, KNAME, file_text
from layout import *

OOB = 0x10000000
LOG2E = 1.4426950408889634
def f2u(x): return struct.unpack("<I", struct.pack("<f", x))[0]
C1 = 2.0 * math.sqrt(2.0 / math.pi) * LOG2E
C2 = C1 * 0.044715
NEG = f2u(-1e30)
OPT = {}
F1_OFF, F2_OFF, F3_OFF = WS_FLG, WS_FLG + 512*128, WS_FLG + 768*128
def opt(k, d): return OPT.get(k, d)

sW, sQ, sRB, sGRP = 3, 4, 6, 7
X_, WA_, WS_, WSP_, WO_, WOUT_, OUT_, BSP_, DBG_ = 8, 12, 16, 20, 24, 28, 32, 36, 40
sK0A, sTYP = 44, 45
sKS, sCG, sK0B, sT = 48, 50, 51, 52
sRC = 49
def S4(b): return f"s[{b}:{b+3}]"
def V(b, n=4): return f"v[{b}:{b+n-1}]" if n > 1 else f"v{b}"

L_TAB = 156*1024
TP = 640
L_CW  = L_TAB + 2560
L_MISC = L_TAB + 3328
L_XCH = 148*1024
L_PARK = 112*1024
L_Z2 = 112*1024
NWS = 7
L_RC = L_TAB + 3584
LDS_BYTES = 160*1024

class G(Asm):
    UID = [0]
    def label(self, base="L"):
        G.UID[0] += 1
        return f"{base}_{G.UID[0]}"
    def __init__(self, diag=False):
        super().__init__()
        self.vm = []; self.diag = diag; self.nst = 0
    def vmem(self, s, tag=None):
        self(s); self.vm.append(tag)
    def has(self, tag): return any(t == tag for t in self.vm)
    def vmwait(self, tag):
        if not self.has(tag): return
        idx = max(i for i, t in enumerate(self.vm) if t == tag)
        n = len(self.vm) - 1 - idx
        assert n <= 63, n
        self(f"s_waitcnt vmcnt({n})")
        self.vm = self.vm[idx+1:]
    def vmall(self):
        self("s_waitcnt vmcnt(0)"); self.vm = []
    def stamp(self):
        if not self.diag: return
        self("s_memtime s[82:83]")
        self("s_waitcnt lgkmcnt(0)")
        self("s_sub_u32 s82, s82, s80")
        self(f"v_writelane_b32 v2, s82, {self.nst}")
        self.nst += 1
    def run(self, fs):
        for f in fs: f() if callable(f) else self(f)

def mfma(d, a, b, c=None):
    c = V(d) if c is None else c
    return f"v_mfma_f32_16x16x32_bf16 {V(d)}, {V(a)}, {V(b)}, {c}"
def mfma16(d, a, b, c=None):
    c = V(d) if c is None else c
    return f"v_mfma_f32_16x16x16_bf16 {V(d)}, {V(a,2)}, {V(b,2)}, {c}"

def gemm_stream(a, mf, frags, ring, LA, cover, pre_barrier, hooks=None, first_zero=True, stamps=(), nobar=0, pergap=1, slack=4, op=None, skip_first_barrier=False, extras=None):
    hooks = hooks or {}
    extra_max = opt('xmax', 1)
    first, last = {}, {}
    for i, (d, x, y) in enumerate(mf):
        for f in (x, y):
            first.setdefault(f, i); last[f] = i
    order = sorted([f for f in first if frags[f].get('reads')], key=lambda f: (frags[f]['step'], first[f]))
    rl = [(f, k) for f in order for k in range(len(frags[f]['reads']))]
    reg = {f: frags[f]['reg'] for f in first if frags[f].get('reg') is not None}
    owner = {r: None for r in ring}
    ptr = 0; cur = (0 if skip_first_barrier else -1); out = []; done = set(f for f in first if not frags[f].get('reads'))
    since = 10**9
    seen = set()
    def issue_one(i, force):
        nonlocal ptr, cur, since, out
        f, k = rl[ptr]
        st = frags[f]['step']
        if st > cur:
            if not force and since < cover: return False
            pre_barrier(st)
            if not (nobar and st > 0):
                if out:
                    a("s_waitcnt lgkmcnt(0)")
                    for g_, _ in out: done.add(g_)
                    out = []
                a("s_barrier")
            cur = st
            if st in stamps: a.stamp()
            if st in hooks: hooks[st]()
        if k == 0 and f not in reg:
            free = [r for r in ring if owner[r] is None or last[owner[r]] < i]
            if not free:
                assert not force, "ring too small"
                return False
            r = min(free, key=lambda r: -1 if owner[r] is None else last[owner[r]])
            reg[f] = r; owner[r] = f
        if len(out) >= 14 and not force: return False
        a(frags[f]['reads'][k](reg[f]))
        out.append((f, k)); ptr += 1; since = 0
        return True
    for i, (d, x, y) in enumerate(mf):
        need = [f for f in (x, y) if f not in done]
        while ptr < len(rl) and any(rl[j][0] in need for j in range(ptr, len(rl)) if first[rl[j][0]] <= i):
            issue_one(i, True)
        n = 0
        while ptr < len(rl) and first[rl[ptr][0]] <= i + LA:
            lim = 12 if i == 0 else (pergap + 1 if first[rl[ptr][0]] <= i + LA - slack else pergap)
            if n >= lim: break
            if not issue_one(i, False): break
            n += 1
        if extras and n <= extra_max and extras[0][0] <= cur and extras[0][2](done):
            extras.pop(0)[1]()
        need = [f for f in (x, y) if f not in done]
        if need:
            idx = max(j for j, (f, k) in enumerate(out) if f in need)
            a(f"s_waitcnt lgkmcnt({len(out) - 1 - idx})")
            for f, k in out[:idx+1]:
                if k == len(frags[f]['reads']) - 1: done.add(f)
            out = out[idx+1:]
        c = None
        if first_zero and d not in seen:
            c = "0"; seen.add(d)
        a((op or mfma)(d, reg[x], reg[y], c))
        since += 1
    assert ptr == len(rl)

def srd(a, d, p, nbytes):
    a(f"s_mov_b32 s{d}, s{p}")
    a(f"s_and_b32 s{d+1}, s{p+1}, 0xffff")
    a(f"s_mov_b32 s{d+2}, {nbytes:#x}")
    a(f"s_mov_b32 s{d+3}, 0x20000")

def prologue(a, endlabel):
    if a.diag:
        a("s_memtime s[80:81]")
    a("s_memrealtime s[84:85]")
    a("s_cmp_ge_u32 s2, 256")
    a(f"s_cbranch_scc1 {endlabel}")
    a("s_load_dwordx16 s[64:79], s[0:1], 0")
    a("s_load_dwordx4 s[88:91], s[0:1], 64")
    a("s_load_dwordx2 s[92:93], s[0:1], 80")
    a("v_lshrrev_b32 v3, 6, v0")
    a("v_and_b32 v1, 63, v0")
    a("v_mov_b32 v2, 0")
    a(f"v_readfirstlane_b32 s{sW}, v3")
    a("s_and_b32 s53, s2, 7")
    a("s_lshr_b32 s54, s2, 3")
    a("s_lshr_b32 s55, s53, 1")
    a("s_and_b32 s56, s54, 3")
    a(f"s_lshr_b32 s{sCG}, s54, 2")
    a(f"s_lshl_b32 s{sRB}, s55, 2")
    a(f"s_add_u32 s{sRB}, s{sRB}, s56")
    a(f"s_and_b32 s{sKS}, s53, 1")
    a(f"s_lshl_b32 s{sRC}, s53, 2")
    a(f"s_add_u32 s{sRC}, s{sRC}, s56")
    a(f"s_lshl_b32 s{sGRP}, s{sKS}, 2")
    a(f"s_and_b32 s58, s{sCG}, 3")
    a(f"s_add_u32 s{sGRP}, s{sGRP}, s58")
    a(f"s_lshr_b32 s{sTYP}, s{sCG}, 2")
    a(f"s_lshl_b32 s{sK0A}, s56, 1")
    a(f"s_add_u32 s{sK0A}, s{sK0A}, s{sCG}")
    a(f"s_add_u32 s{sK0A}, s{sK0A}, s55")
    a(f"s_and_b32 s{sK0A}, s{sK0A}, {opt('rotA', 7)}")
    a(f"s_lshl_b32 s{sK0B}, s{sCG}, 1")
    a(f"s_add_u32 s{sK0B}, s{sK0B}, s{sRB}")
    a(f"s_and_b32 s{sK0B}, s{sK0B}, {opt('rotB', 15)}")
    a(f"s_and_b32 s{sQ}, s{sW}, 3")
    a("s_waitcnt lgkmcnt(0)")
    srd(a, X_, 64, S*D*2)
    srd(a, WS_, 92, 268435456)
    srd(a, DBG_, 90, 256)

def late_srds(a):
    srd(a, WSP_, 74, S*S*2)
    srd(a, WO_, 68, D*D*2)
    srd(a, WOUT_, 78, FH*D*2)
    srd(a, OUT_, 88, S*D*2)
    srd(a, BSP_, 76, S*2)

def rowtile_voffs(a, d0, d1, sh, t0=3, t1=30, t2=31):
    a(f"v_lshrrev_b32 v{t0}, 3, v1")
    a(f"v_lshlrev_b32 v{t0}, {sh+1}, v{t0}")
    a(f"v_lshrrev_b32 v{t1}, 4, v1")
    a(f"v_and_b32 v{t2}, 7, v1")
    a(f"v_xor_b32 v{t1}, v{t1}, v{t2}")
    a(f"v_lshl_add_u32 v{d0}, v{t1}, 4, v{t0}")
    a(f"v_xor_b32 v{t1}, 4, v{t1}")
    a(f"v_lshl_add_u32 v{d1}, v{t1}, 4, v{t0}")
    a(f"v_add_u32 v{d1}, {(16 << sh) - 1024}, v{d1}")

def rowfrag_addr(a, d0, d1, srow, t0=3, t1=30, t2=31):
    a(f"v_and_b32 v{t0}, 15, v1")
    a(f"v_lshrrev_b32 v{t1}, 4, v1")
    a(f"v_lshrrev_b32 v{t2}, 1, v{t0}")
    a(f"v_xor_b32 v{t1}, v{t1}, v{t2}")
    a(f"v_lshlrev_b32 v{t0}, 7, v{t0}")
    a(f"v_add_u32 v{t0}, {srow}, v{t0}")
    a(f"v_lshl_add_u32 v{d0}, v{t1}, 4, v{t0}")
    a(f"v_xor_b32 v{t1}, 4, v{t1}")
    a(f"v_lshl_add_u32 v{d1}, v{t1}, 4, v{t0}")

def zw_addr(a, de, do, t0=3, t1=30, t2=31):
    a(f"v_lshrrev_b32 v{t0}, 4, v1")
    a(f"v_bfe_u32 v{t1}, v1, 2, 2")
    a(f"v_lshl_add_u32 v{t1}, v{t0}, 3, v{t1}")
    a(f"v_mul_u32_u24 v{t1}, 192, v{t1}")
    a(f"v_and_b32 v{t2}, 3, v1")
    a(f"v_lshl_add_u32 v{t1}, v{t2}, 3, v{t1}")
    a(f"v_and_b32 v{t0}, 1, v{t0}")
    a(f"v_lshlrev_b32 v{t0}, 5, v{t0}")
    a(f"v_add_u32 v{de}, v{t1}, v{t0}")
    a(f"v_sub_u32 v{do}, v{t1}, v{t0}")

def qw_addr(a, d, t0=3, t1=30, t2=31):
    a(f"v_lshrrev_b32 v{t0}, 4, v1")
    a(f"v_mul_u32_u24 v{t1}, 3072, v{t0}")
    a(f"v_bfe_u32 v{t2}, v1, 2, 2")
    a(f"v_lshl_add_u32 v{t1}, v{t2}, 7, v{t1}")
    a(f"v_and_b32 v{d}, 3, v1")
    a(f"v_lshl_add_u32 v{t1}, v{d}, 3, v{t1}")
    a(f"v_lshrrev_b32 v{t2}, 1, v{t2}")
    a(f"v_and_b32 v{t0}, 1, v{t0}")
    a(f"v_lshl_or_b32 v{t2}, v{t0}, 1, v{t2}")
    a(f"v_lshl_add_u32 v{d}, v{t2}, 5, v{t1}")

ZSLOT = [56*1024, 84*1024, 112*1024, 0, 28*1024]
W1SL = [0, 12288, 28672, 40960, 57344, 69632, 86016, 98304]
QSLOT = [86016, 43008, 0]

def gelu_core(a, xs, ts, A3, A1, RI):
    for k, (x, t) in enumerate(zip(xs, ts)): a(f"v_pk_mul_f32 {V(t,2)}, {V(x,2)}, {V(x,2)}")
    for k, (x, t) in enumerate(zip(xs, ts)): a(f"v_pk_fma_f32 {V(t,2)}, {V(t,2)}, {A3[k][0]}, {A1[k][0]} {A3[k][1]}")
    for k, (x, t) in enumerate(zip(xs, ts)): a(f"v_pk_mul_f32 {V(t,2)}, {V(t,2)}, {V(x,2)}")
    for k, (x, t) in enumerate(zip(xs, ts)):
        a(f"v_exp_f32 v{t}, v{t}"); a(f"v_exp_f32 v{t+1}, v{t+1}")
    for k, (x, t) in enumerate(zip(xs, ts)): a(f"v_pk_fma_f32 {V(t,2)}, {V(t,2)}, {RI[k][0]}, {RI[k][0]} {RI[k][1]}")
    for k, (x, t) in enumerate(zip(xs, ts)):
        a(f"v_rcp_f32 v{t}, v{t}"); a(f"v_rcp_f32 v{t+1}, v{t+1}")
    for k, (x, t) in enumerate(zip(xs, ts)): a(f"v_pk_mul_f32 {V(x,2)}, {V(x,2)}, {V(t,2)}")

def zcount(a, dG, dN):
    a(f"s_mul_i32 s{dG}, s{sGRP}, 6")
    a(f"s_min_u32 s{dG}, s{dG}, 40")
    a(f"s_sub_u32 s{dN}, 40, s{dG}")
    a(f"s_min_u32 s{dN}, s{dN}, 6")
    a(f"s_cmp_eq_u32 s{sGRP}, 7")
    a(f"s_cselect_b32 s{dN}, 3, s{dN}")

def az_compute(a, fused):
    ACC, XR = 32, 128
    ONES, SUM, GRM, CWA = 28, 80, 88, 96
    ring = list(range(104, 128, 4))
    a(f"s_lshl_b32 s61, s{sQ}, 12")
    rowfrag_addr(a, 10, 11, "s61")
    zw_addr(a, 12, 13)
    a(f"s_bitcmp1_b32 s{sQ}, 0")
    a("s_cselect_b64 vcc, -1, 0")
    a("v_cndmask_b32 v18, v12, v13, vcc")
    a(f"s_lshl_b32 s61, s{sQ}, 5")
    a(f"s_and_b32 s62, s{sQ}, 1")
    a("s_lshl_b32 s62, s62, 5")
    a("s_add_u32 s62, s62, 128")
    a("v_add_u32 v19, s62, v18")
    a("v_add_u32 v18, s61, v18")
    for r in range(4): a(f"v_mov_b32 v{ONES+r}, 0x3f803f80")
    zcount(a, 55, 58)
    a(f"s_lshl_b32 s61, s{sQ}, 7")
    a(f"s_add_u32 s61, s61, {L_TAB}")
    a("v_and_b32 v3, 0x30, v1")
    a("v_add_u32 v4, s61, v3")
    a(f"v_add_u32 v7, {L_CW + 384}, v3")
    a("v_and_b32 v3, 15, v1")
    a("v_lshl_add_u32 v5, v3, 2, s61")
    a("v_lshlrev_b32 v3, 2, v3")
    a(f"v_add_u32 v6, {L_CW}, v3")
    a("v_lshlrev_b32 v8, 4, v1")
    a("v_lshlrev_b32 v9, 3, v1")
    a(f"s_lshl_b32 s61, s{sQ}, 6")
    a(f"s_and_b32 s62, s{sQ}, 1")
    a("s_lshl_b32 s62, s62, 6")
    a("s_add_u32 s62, s62, 256")
    a("v_add_u32 v22, s61, v6")
    a("v_add_u32 v23, s62, v6")
    a("v_add_u32 v24, s61, v7")
    a("v_add_u32 v25, s62, v7")
    a(f"s_lshl_b32 s57, s{sRB}, 2")
    a(f"s_add_u32 s57, s57, s{sQ}")
    a(f"s_lshl_b32 s53, s{sGRP}, 6")
    a("s_add_u32 s53, s53, s57")
    a("s_mul_i32 s53, s53, 6144")
    a(f"s_add_u32 s53, s53, {WS_Z2N}")
    a("s_mul_i32 s54, s57, 48")
    a("s_add_u32 s54, s54, s55")
    a("s_lshl_b32 s54, s54, 10")
    a(f"s_add_u32 s54, s54, {WS_Z1}")
    a(f"s_lshl_b32 s56, s{sRB}, 3")
    a(f"s_add_u32 s56, s56, s{sGRP}")
    a("s_lshl_b32 s56, s56, 2")
    a(f"s_add_u32 s56, s56, s{sQ}")
    a("s_lshl_b32 s56, s56, 9")
    a(f"s_add_u32 s56, s56, {WS_ST2}")
    def xreg(s, kk, T): return XR + ((s*2 + kk)*2 + T)*4
    def wfrag(step, kk, j):
        return dict(step=step, reg=None, reads=[(lambda r, hh=hh: f"ds_read_b64_tr_b16 {V(r+2*hh,2)}, v{16+(j&1)} offset:{j*32 + kk*6144 + hh*768}") for hh in range(2)])
    def cfrag(step, kk, t):
        return dict(step=step, reg=None, reads=[(lambda r, hh=hh: f"ds_read_b64_tr_b16 {V(r+2*hh,2)}, v{20+t} offset:{kk*6144 + hh*768}") for hh in range(2)])
    fr = {}; mf = []
    for s in range(8):
        for kk in range(2):
            for T in range(2):
                fr[('x', s, kk, T)] = dict(step=s, reg=xreg(s, kk, T), reads=[lambda r, kk=kk, T=T: f"ds_read_b128 {V(r)}, v{14+kk} offset:{T*2048}"])
            for j in range(6):
                fr[('w', s, kk, j)] = wfrag(s, kk, j)
                for T in range(2): mf.append((ACC + (j*2+T)*4, ('x', s, kk, T), ('w', s, kk, j)))
                if j in (1, 3):
                    T = j >> 1
                    mf.append((SUM+4*T, 'ones', ('x', s, kk, T)))
                    mf.append((GRM+4*T, ('x', s, kk, T), ('x', s, kk, T)))
                if j in (2, 5):
                    t = j // 3
                    fr[('c', s, kk, t)] = cfrag(s, kk, t)
                    mf.append((CWA+4*t, 'ones', ('c', s, kk, t)))
    fr['ones'] = dict(step=0, reg=ONES, reads=None)
    def pre1(s):
        for r in range(2): a(f"v_add_u32 v{14+r}, {ZSLOT[s % 5]}, v{10+r}")
        for r in range(2): a(f"v_add_u32 v{16+r}, {ZSLOT[s % 5] + 16384}, v{12+r}")
        for r in range(2): a(f"v_add_u32 v{20+r}, {ZSLOT[s % 5] + 16384}, v{18+r}")
    l2_setup(a, 26)
    for r in range(2, 4): a(f"v_mov_b32 v{ONES+r}, 0x3f803f80")
    a.stamp()
    gemm_stream(a, mf, fr, ring, opt('LA', 10), opt('cover', 3), pre1, stamps=(0, 1, 4), hooks=l2_hooks(a, 26))
    a.stamp()
    for T in range(2): diag_sel(a, 104+T, GRM+4*T)
    for T in range(2): row_finalize(a, SUM+4*T, 104+T, 0)
    a(f"ds_write_b32 v22, v{CWA}")
    a(f"ds_write_b32 v23, v{CWA+4}")
    for T in range(2): a(f"v_rsq_f32 v{106+T}, v{104+T}")
    for T in range(2): a(f"v_sqrt_f32 v{104+T}, v{104+T}")
    for T in range(2): a(f"v_mul_f32 v{108+T}, v{106+T}, v{106+T}")
    for T in range(2): a(f"v_mul_f32 v{108+T}, v{108+T}, v{106+T}")
    for T in range(2): a(f"v_mul_f32 v{108+T}, {f2u(-C2):#x}, v{108+T}")
    for T in range(2): a(f"v_mul_f32 v{106+T}, {f2u(-C1):#x}, v{106+T}")
    a(f"s_mov_b32 exec_lo, {DIAG_LO:#x}\ns_mov_b32 exec_hi, {DIAG_HI:#x}")
    for T in range(2):
        for k, r in enumerate((SUM+4*T, 108+T, 106+T, 104+T)): a(f"ds_write_b32 v5, v{r} offset:{64*T + TP*k}")
    a("s_mov_b64 exec, -1")
    for r in range(112, 128): a(f"v_mov_b32 v{r}, 0")
    a("s_waitcnt lgkmcnt(0)")
    for T in range(2):
        for k in range(4): a(f"ds_read_b128 {V(80+16*T+4*k)}, v4 offset:{64*T + TP*k}")
    a("s_barrier")
    CWR = [10, 11, 14, 15, 16, 17]
    for j in range(6): a(f"ds_read_b32 v{CWR[j]}, v6 offset:{64*j}")
    a(f"v_mov_b32 v3, {L_MISC + 256}")
    a("ds_read_b32 v31, v3")
    a(f"s_mul_i32 s61, s{sQ}, 6144")
    a(f"s_add_u32 s61, s61, {L_PARK}")
    a("v_add_u32 v30, s61, v8")
    a("s_waitcnt lgkmcnt(0)")
    for j in range(6):
        skip = a.label("Lz2skip")
        a(f"s_cmp_gt_u32 s58, {j}")
        a(f"s_cbranch_scc0 {skip}")
        xs = [ACC + (j*2+T)*4 + 2*p for T in range(2) for p in range(2)]
        tb = [80 + 16*T + 2*p for T in range(2) for p in range(2)]
        sel = f"op_sel:[0,{j&1},0] op_sel_hi:[1,{j&1},1]"
        for x, t in zip(xs, tb): a(f"v_pk_fma_f32 {V(x,2)}, {V(t,2)}, {V(CWR[j&~1],2)}, {V(x,2)} {sel} neg_lo:[1,0,0] neg_hi:[1,0,0]")
        gelu_core(a, xs, [20, 22, 26, 28], [(V(t+4,2), "") for t in tb], [(V(t+8,2), "") for t in tb], [(V(t+12,2), "") for t in tb])
        for k, x in enumerate(xs): a(f"v_pk_add_f32 {V(112+2*k,2)}, {V(112+2*k,2)}, {V(x,2)}")
        for k, x in enumerate(xs): a(f"v_pk_fma_f32 {V(120+2*k,2)}, {V(x,2)}, {V(x,2)}, {V(120+2*k,2)}")
        e, o = ACC + j*8, ACC + j*8 + 4
        for i in range(4): a(f"v_cvt_pk_bf16_f32 v{e+i}, v{e+i}, v{o+i}")
        a(f"ds_write_b128 v30, {V(e)} offset:{j*1024}")
        a(f"{skip}:")
    def val(i, T, st): return 112 + 8*st + 4*T + i
    for st in range(2):
        for T in range(2):
            for i in range(2):
                A, B = val(i, T, st), val(i+2, T, st)
                a(f"v_add_f32_dpp v{A}, v{A}, v{A} row_ror:8 row_mask:0xf bank_mask:0x3")
                a(f"v_add_f32_dpp v{A}, v{B}, v{B} row_ror:8 row_mask:0xf bank_mask:0xc")
    a("s_mov_b32 s60, 0x22222222\ns_mov_b32 s61, 0x22222222")
    for st in range(2):
        for T in range(2):
            A, B = val(0, T, st), val(1, T, st)
            a(f"v_add_f32_dpp v{A}, v{A}, v{A} row_half_mirror row_mask:0xf bank_mask:0x5")
            a(f"v_add_f32_dpp v{A}, v{B}, v{B} row_half_mirror row_mask:0xf bank_mask:0xa")
    a("s_mov_b32 s62, 0x44444444\ns_mov_b32 s63, 0x44444444")
    for qp in ("[1,0,3,2]", "[2,3,0,1]"):
        for st in range(2):
            for T in range(2):
                A = val(0, T, st)
                a(f"v_add_f32_dpp v{A}, v{A}, v{A} quad_perm:{qp} row_mask:0xf bank_mask:0xf")
    a(f"v_cndmask_b32 v112, v{val(0,0,0)}, v{val(0,0,1)}, s[60:61]")
    a("s_mov_b32 s60, 0x88888888\ns_mov_b32 s61, 0x88888888")
    a(f"v_cndmask_b32 v112, v112, v{val(0,1,0)}, s[62:63]")
    a(f"v_cndmask_b32 v112, v112, v{val(0,1,1)}, s[60:61]")
    a("v_mov_b32 v113, v31")
    a.vmem(f"buffer_store_dwordx2 {V(112,2)}, v9, {S4(WS_)}, s56 offen sc1", "st")
    a.stamp()
    fr = {}; mf = []
    for u in range(8):
        for kk in range(2):
            for T in range(2): fr[('x', u, kk, T)] = dict(step=u, reg=xreg(u, kk, T), reads=None)
            for j in range(6):
                fr[('w', u, kk, j)] = wfrag(u, kk, j)
                for T in range(2): mf.append((ACC + (j*2+T)*4, ('w', u, kk, j), ('x', u, kk, T)))
                if j in (2, 5):
                    t = j // 3
                    fr[('c', u, kk, t)] = cfrag(u, kk, t)
                    mf.append((120+4*t, ('c', u, kk, t), 'ones'))
    fr['ones'] = dict(step=0, reg=ONES, reads=None)
    for r in range(4): a(f"v_mov_b32 v{ONES+r}, 0x3f803f80")
    a("s_waitcnt lgkmcnt(0)")
    def pre2(u):
        for r in range(2): a(f"v_add_u32 v{16+r}, {W1SL[u]}, v{12+r}")
        for r in range(2): a(f"v_add_u32 v{20+r}, {W1SL[u]}, v{18+r}")
    ring2 = list(range(80, 112, 4))
    gemm_stream(a, mf, fr, ring2, opt('LA', 10), opt('cover', 3), pre2, nobar=1)
    a.stamp()
    for T in range(2):
        for k in range(4): a(f"ds_read_b32 v{104+4*k+2*T}, v5 offset:{64*T + TP*k}")
    a("s_mov_b32 exec_lo, 0x00010001\ns_mov_b32 exec_hi, 0x00010001")
    a(f"ds_write_b128 v24, {V(120)}")
    a(f"ds_write_b128 v25, {V(124)}")
    a("s_mov_b64 exec, -1")
    a("s_waitcnt lgkmcnt(0)")
    a.vmall()
    a("s_barrier")
    for j in range(6): a(f"ds_read_b128 {V(80+4*j)}, v7 offset:{64*j}")
    a("s_waitcnt lgkmcnt(0)")
    for j in range(6):
        skip = a.label("Lz1skip")
        a(f"s_cmp_gt_u32 s58, {j}")
        a(f"s_cselect_b32 s61, s54, {OOB}")
        a(f"s_cbranch_scc0 {skip}")
        xs = [ACC + (j*2+T)*4 + 2*p for T in range(2) for p in range(2)]
        for k, x in enumerate(xs): a(f"v_pk_fma_f32 {V(x,2)}, {V(80+4*j+2*(k%2),2)}, {V(104+2*(k//2),2)}, {V(x,2)} op_sel_hi:[1,0,1] neg_lo:[1,0,0] neg_hi:[1,0,0]")
        b = "op_sel_hi:[1,0,0]"
        gelu_core(a, xs, [20, 22, 26, 28], [(V(108+2*(k//2),2), b) for k in range(4)], [(V(112+2*(k//2),2), b) for k in range(4)], [(V(116+2*(k//2),2), b) for k in range(4)])
        e = ACC + j*8
        for k, x in enumerate(xs): a(f"v_cvt_pk_bf16_f32 v{e+k}, v{x}, v{x+1}")
        a("s_nop 1")
        for p in range(2): a(f"v_permlane32_swap_b32 v{e+p}, v{e+2+p}")
        a(f"{skip}:")
        if j >= 4: a("s_add_u32 s61, s61, 4096")
        a.vmem(f"buffer_store_dwordx4 {V(e)}, v8, {S4(WS_)}, s61 offen offset:{(j%4)*1024} sc1", "z1")
    a.stamp()

def red_g(a, regs, op="v_add_f32", tmp=60):
    n = len(regs)
    for sw in ("v_permlane32_swap_b32", "v_permlane16_swap_b32"):
        for k, r in enumerate(regs): a(f"v_mov_b32 v{tmp+k}, v{r}")
        if n < 3: a("s_nop 1")
        for k, r in enumerate(regs): a(f"{sw} v{r}, v{tmp+k}")
        for k, r in enumerate(regs): a(f"{op} v{r}, v{r}, v{tmp+k}")

def wsp_setup_h(a):
    rowtile_voffs(a, 8, 9, 12)
    a(f"s_lshl_b32 s59, s{sRB}, 2")
    a(f"s_add_u32 s59, s59, s{sQ}")
    a("s_lshl_b32 s59, s59, 17")
    a(f"s_lshl_b32 s61, s{sKS}, 11")
    a("s_add_u32 s59, s59, s61")

def wsp_group_h(a, v):
    a(f"s_add_u32 s61, s{sK0B}, {v}")
    a("s_and_b32 s61, s61, 15")
    a("s_lshl_b32 s61, s61, 7")
    a("s_add_u32 s61, s61, s59")
    a(f"s_add_u32 m0, s60, {(v % NWS) * 16384}")
    a("s_add_u32 s62, s61, 4096")
    a.vmem(f"buffer_load_dwordx4 v8, {S4(WSP_)}, s61 offen lds", ("S", v))
    a.vmem(f"buffer_load_dwordx4 v9, {S4(WSP_)}, s61 offen offset:1024 lds", ("S", v))
    a(f"s_add_u32 m0, s60, {(v % NWS) * 16384 + 2048}")
    a("s_nop 0")
    a.vmem(f"buffer_load_dwordx4 v8, {S4(WSP_)}, s62 offen lds", ("S", v))
    a.vmem(f"buffer_load_dwordx4 v9, {S4(WSP_)}, s62 offen offset:1024 lds", ("S", v))

def l2_setup(a, d):
    a("v_lshrrev_b32 v31, 1, v1")
    a("v_lshlrev_b32 v31, 12, v31")
    a("v_and_b32 v30, 1, v1")
    a(f"v_lshl_add_u32 v{d}, v30, 7, v31")
    a(f"v_lshlrev_b32 v{d+1}, 7, v1")
    a(f"s_lshl_b32 s68, s{sRB}, 2")
    a(f"s_add_u32 s68, s68, s{sQ}")
    a("s_lshl_b32 s68, s68, 17")
    a(f"s_lshl_b32 s61, s{sKS}, 3")
    a(f"s_add_u32 s61, s61, s{sCG}")
    a("s_lshl_b32 s61, s61, 8")
    a("s_add_u32 s68, s68, s61")
    a("s_lshr_b32 s61, s2, 3")
    a("s_lshl_b32 s61, s61, 2")
    a(f"s_add_u32 s61, s61, s{sQ}")
    a("s_lshl_b32 s69, s61, 12")
    a(f"s_mul_i32 s70, s61, {43*128}")
    a(f"s_mov_b32 m0, {L_MISC}")
def l2_hooks(a, d):
    o = opt('l2step', 7)
    def h0(): a.vmem(f"buffer_load_dword v{d}, {S4(WSP_)}, s68 offen {'nt' if opt('l2nt', 0) else ''} lds", "pf")
    def h1():
        a("s_mov_b32 exec_hi, 0")
        a.vmem(f"buffer_load_dword v{d+1}, {S4(WO_)}, s69 offen lds", "pf")
        a("s_mov_b32 exec_hi, 0x7ff")
        a.vmem(f"buffer_load_dword v{d+1}, {S4(WOUT_)}, s70 offen lds", "pf")
        a("s_mov_b32 exec_hi, -1")
    return {o: h0, opt('l2step2', 5): h1} if opt('l2pf', 1) else {}

def x_group_h(a, step, sl, tag):
    a(f"s_add_u32 s61, s{sK0A}, {step}")
    a("s_and_b32 s61, s61, 7")
    a("s_lshl_b32 s58, s61, 7")
    a("s_add_u32 s62, s58, s53")
    a(f"s_add_u32 m0, s60, {sl}")
    a("s_add_u32 s63, s62, 1024")
    a.vmem(f"buffer_load_dwordx4 v4, {S4(X_)}, s62 offen lds", tag)
    a.vmem(f"buffer_load_dwordx4 v5, {S4(X_)}, s62 offen offset:1024 lds", tag)
    a(f"s_add_u32 m0, s60, {sl + 2048}")
    a("s_nop 0")
    a.vmem(f"buffer_load_dwordx4 v4, {S4(X_)}, s63 offen lds", tag)
    a.vmem(f"buffer_load_dwordx4 v5, {S4(X_)}, s63 offen offset:1024 lds", tag)

def dots_x(a, fr, acc_s, acc_q, ones):
    for i in range(4):
        a(f"v_dot2_f32_bf16 v{acc_s}, v{fr+i}, v{ones}, v{acc_s}")
        a(f"v_dot2_f32_bf16 v{acc_q}, v{fr+i}, v{fr+i}, v{acc_q}")

def diag_sel(a, dst, gram):
    a("s_mov_b32 s62, 0x22222222\ns_mov_b32 s63, 0x22222222")
    a(f"v_cndmask_b32 v{dst}, v{gram}, v{gram+1}, s[62:63]")
    a("s_mov_b32 s62, 0x44444444\ns_mov_b32 s63, 0x44444444")
    a(f"v_cndmask_b32 v{dst}, v{dst}, v{gram+2}, s[62:63]")
    a("s_mov_b32 s62, 0x88888888\ns_mov_b32 s63, 0x88888888")
    a(f"v_cndmask_b32 v{dst}, v{dst}, v{gram+3}, s[62:63]")
DIAG_LO, DIAG_HI = 0x00f0000f, 0xf0000f00

def row_finalize(a, s_, q_, t):
    a(f"v_mul_f32 v{s_}, {f2u(1.0/512):#x}, v{s_}")
    a(f"v_mul_f32 v{q_}, {f2u(1.0/512):#x}, v{q_}")
    a(f"v_fma_f32 v{q_}, -v{s_}, v{s_}, v{q_}")
    a(f"v_max_f32 v{q_}, 0, v{q_}")
    a(f"v_add_f32 v{q_}, {f2u(1e-5):#x}, v{q_}")

def nonce_publish(a):
    a(f"s_or_b32 s61, s2, s{sQ}")
    a("s_cmp_eq_u32 s61, 0")
    a("s_cselect_b32 s61, 0, 256")
    a("s_or_b32 s62, s84, 1")
    a("v_mov_b32 v30, s62")
    a("v_mov_b32 v31, 0")
    a("s_mov_b64 exec, 1")
    a.vmem(f"buffer_store_dword v30, v31, {S4(DBG_)}, s61 offen sc1", "nonce")
    a("s_mov_b64 exec, -1")

def nonce_check(a):
    a.vmwait("poll")
    def chk():
        a(f"v_readfirstlane_b32 s{sT}, v25")
        a(f"s_cmp_lg_u32 s{sT}, 0")
    def iss():
        a("v_mov_b32 v31, 0")
        a(f"buffer_load_dword v25, v31, {S4(DBG_)}, 0 offen sc1")
    spin(a, iss, chk)

def wave_flag(a):
    a(f"s_lshl_b32 s61, s{sGRP}, 4")
    a(f"s_add_u32 s61, s61, s{sRB}")
    a("s_lshl_b32 s61, s61, 2")
    a(f"s_add_u32 s61, s61, s{sQ}")
    a("s_lshl_b32 s61, s61, 7")
    a(f"s_add_u32 s61, s61, {F1_OFF}")
    a(f"v_mov_b32 v30, s{sT}")
    a("v_mov_b32 v31, 0")
    a("s_mov_b64 exec, 1")
    a.vmem(f"buffer_store_dword v30, v31, {S4(WS_)}, s61 offen sc1", "flag")
    a("s_mov_b64 exec, -1")

def spin(a, issue, check_ok, limit=0x40000):
    lp = a.label("Lspin"); ok = a.label("Lok")
    check_ok()
    a(f"s_cbranch_scc1 {ok}")
    a("s_mov_b32 s63, 0")
    a(f"{lp}:")
    issue()
    a("s_waitcnt vmcnt(0)")
    a("s_add_u32 s63, s63, 1")
    a(f"s_cmp_gt_u32 s63, {limit}")
    a(f"s_cbranch_scc1 {ok}")
    check_ok()
    a(f"s_cbranch_scc0 {lp}")
    a(f"{ok}:")

def az_helper(a, fused):
    srd(a, WA_, 72, D*F2*2)
    rowtile_voffs(a, 4, 5, 10)
    for i in range(3):
        a(f"v_add_u32 v3, {64*i}, v1")
        a("v_mul_u32_u24 v30, 683, v3")
        a("v_lshrrev_b32 v30, 13, v30")
        a("v_mul_u32_u24 v31, 12, v30")
        a("v_sub_u32 v31, v3, v31")
        a("v_lshrrev_b32 v3, 2, v30")
        a("v_and_b32 v3, 2, v3")
        a("v_xor_b32 v31, v3, v31")
        a("v_mul_u32_u24 v30, 2752, v30")
        a(f"v_lshl_add_u32 v{20+i}, v31, 4, v30")
        if i: a(f"v_subrev_u32 v{20+i}, {1024*i}, v{20+i}")
    a(f"s_lshl_b32 s53, s{sRB}, 2")
    a(f"s_add_u32 s53, s53, s{sQ}")
    a("s_lshl_b32 s53, s53, 15")
    a(f"s_mul_i32 s55, s{sGRP}, 6")
    a("s_min_u32 s55, s55, 40")
    a(f"s_mul_i32 s54, s{sQ}, {16*2752}")
    a("s_lshl_b32 s61, s55, 5")
    a("s_add_u32 s54, s54, s61")
    a(f"s_mul_i32 s56, s{sQ}, 3072")
    a(f"s_lshl_b32 s60, s{sQ}, 12")
    def wgroup(kreg_ready, step, dst, add, tag):
        if not kreg_ready:
            a(f"s_add_u32 s61, s{sK0A}, {step}")
            a("s_and_b32 s61, s61, 7")
        a(f"s_mul_i32 s63, s61, {64*2752}")
        a("s_add_u32 s63, s63, s54")
        a(f"s_add_u32 m0, s56, {dst}")
        if add: a(f"s_add_u32 s63, s63, {add}")
        else: a("s_nop 0")
        for i in range(3):
            a.vmem(f"buffer_load_dwordx4 v{20+i}, {S4(WA_)}, s63 offen offset:{1024*i} lds", tag)
    def ga(step):
        x_group_h(a, step, ZSLOT[step % 5], ("A", step))
        wgroup(True, step, ZSLOT[step % 5] + 16384, 1376, ("A", step))
    npro = opt('proZ', 2)
    ga(0)
    nonce_publish(a)
    for st in range(1, npro): ga(st)
    late_srds(a)
    wsp_setup_h(a)
    a("v_lshlrev_b32 v10, 3, v1")
    a(f"s_lshl_b32 s64, s{sRB}, 5")
    a(f"s_add_u32 s64, s64, s{sQ}")
    a("s_lshl_b32 s64, s64, 9")
    a(f"s_add_u32 s64, s64, {WS_ST2}")
    a("s_add_u32 s65, s64, 4096\ns_add_u32 s66, s64, 8192\ns_add_u32 s67, s64, 12288")
    a("v_lshlrev_b32 v11, 4, v1")
    a(f"s_mul_i32 s61, s{sQ}, 6144")
    a(f"s_add_u32 s61, s61, {L_PARK}")
    a("v_add_u32 v11, s61, v11")
    a(f"s_lshl_b32 s61, s{sQ}, 8")
    a(f"s_add_u32 s61, s61, {L_XCH}")
    a("v_lshrrev_b32 v12, 1, v1")
    a("v_lshl_add_u32 v12, v12, 2, s61")
    a("v_lshrrev_b32 v13, 4, v1")
    a("v_lshl_add_u32 v13, v13, 5, s61")
    a("v_lshrrev_b32 v3, 5, v1")
    a("v_mul_u32_u24 v3, 3072, v3")
    a("v_bfe_u32 v30, v1, 4, 1")
    a("v_lshl_add_u32 v3, v30, 9, v3")
    a("v_and_b32 v30, 15, v1")
    a("v_lshl_add_u32 v14, v30, 4, v3")
    a(f"s_lshl_b32 s57, s{sGRP}, 4")
    a(f"s_add_u32 s57, s57, s{sRB}")
    a("s_lshl_b32 s57, s57, 2")
    a(f"s_add_u32 s57, s57, s{sQ}")
    a("s_mul_i32 s57, s57, 6144")
    a(f"s_add_u32 s57, s57, {WS_Z2N}")
    a("v_mov_b32 v16, 0xffff0000")
    a.stamp()
    for s in range(8):
        a.vmwait(("A", s))
        a("s_barrier")
        if s in (0, 1, 4): a.stamp()
        if s == 0:
            for st in range(npro, 5): ga(st)
        elif s <= 3: ga(s + 4)
        else:
            if s == 5:
                a("v_mov_b32 v31, 0")
                a.vmem(f"buffer_load_dword v25, v31, {S4(DBG_)}, 0 offen sc1", "poll")
            for u in (2*(s-4), 2*(s-4)+1): wgroup(False, u, W1SL[u], 0, ("W1", u))
    nonce_check(a)
    a(f"v_mov_b32 v30, s{sT}")
    a(f"v_mov_b32 v31, {L_MISC + 256}")
    a("ds_write_b32 v31, v30")
    a("s_waitcnt lgkmcnt(0)")
    a.stamp()
    a("s_barrier")
    a.vmall()
    a("s_barrier")
    a(f"s_setprio {opt('nprio', 3)}")
    for j in range(6): a(f"ds_read_b128 {V(64+4*j)}, v11 offset:{1024*j}")
    def iss():
        for c in range(8):
            a(f"buffer_load_dwordx2 {V(32+2*c,2)}, v10, {S4(WS_)}, s{64 + (c>>1)} offen offset:{2048*(c&1)} sc1")
    def chk():
        for c in range(8): a(f"v_xor_b32 v{48+c}, s{sT}, v{33+2*c}")
        a("v_or3_b32 v48, v48, v49, v50\nv_or3_b32 v51, v51, v52, v53\nv_or3_b32 v48, v48, v54, v55")
        a("v_or_b32 v48, v48, v51")
        a("v_cmp_ne_u32 vcc, 0, v48")
        a("s_cmp_eq_u64 vcc, 0")
    a("s_waitcnt lgkmcnt(0)")
    for j in range(6):
        for w in range(4):
            a(f"v_lshlrev_b32 v{96+8*j+2*w}, 16, v{64+4*j+w}")
            a(f"v_and_b32 v{96+8*j+2*w+1}, v16, v{64+4*j+w}")
    zcount(a, 62, 58)
    iss(); a("s_waitcnt vmcnt(0)")
    spin(a, iss, chk)
    a.stamp()
    for k in (2, 4, 6): a(f"v_add_f32 v{32+2*k}, v{32+2*k}, v{34+2*k}")
    a("v_add_f32 v32, v32, v34")
    a("v_add_f32 v36, v36, v40")
    a("v_add_f32 v32, v32, v44")
    a("v_add_f32 v32, v32, v36")
    a(f"v_mul_f32 v32, {f2u(1.0/688):#x}, v32")
    a("s_nop 1")
    a("v_mov_b32_dpp v33, v32 quad_perm:[1,0,3,2] row_mask:0xf bank_mask:0xf")
    a("v_fma_f32 v33, -v32, v32, v33")
    a("v_max_f32 v33, 0, v33")
    a(f"v_add_f32 v33, {f2u(1e-5):#x}, v33")
    a("v_rsq_f32 v33, v33")
    a("s_mov_b32 exec_lo, 0x55555555\ns_mov_b32 exec_hi, 0x55555555")
    a("v_mul_f32_e64 v32, -v32, v33")
    a("ds_write_b32 v12, v33")
    a("ds_write_b32 v12, v32 offset:128")
    a("s_mov_b64 exec, -1")
    a("s_waitcnt lgkmcnt(0)")
    for k in range(2): a(f"ds_read_b128 {V(32+4*k)}, v13 offset:{16*k}")
    for k in range(2): a(f"ds_read_b128 {V(40+4*k)}, v13 offset:{128 + 16*k}")
    for j in range(6):
        z = 64 + 4*j; u = 96 + 8*j
        if j == 0: a("s_waitcnt lgkmcnt(0)")
        for w in range(8): a(f"v_fma_f32 v{u+w}, v{u+w}, v{32+w}, v{40+w}")
        for w in range(4): a(f"v_cvt_pk_bf16_f32 v{z+w}, v{u+2*w}, v{u+2*w+1}")
        a(f"s_cmp_gt_u32 s58, {j}")
        a(f"s_cselect_b32 s61, s57, {OOB}")
        a.vmem(f"buffer_store_dwordx4 {V(z)}, v14, {S4(WS_)}, s61 offen offset:{(j>>1)*1024 + (j&1)*256} sc1", "z2n")
    a("s_setprio 0")
    a.stamp()
    a.vmwait("z2n")
    wave_flag(a)
    a.stamp()
    a("s_barrier")
    for v in range(opt('wpre', 3)): wsp_group_h(a, v)

def aq_compute(a, fused):
    AQ, AK, AV, HK, HV = 32, 64, 96, 128, 136
    ONES, SUM, GRM, XA = 28, 224, 232, 240
    CWQ = [128, 132, 136, 140, 240, 244]
    ring = list(range(144, 200, 4))
    MC, MPN, MPA, MB = 200, 204, 208, 216
    a(f"s_lshr_b32 s5, s{sQ}, 1")
    a(f"s_and_b32 s46, s{sQ}, 1")
    a("s_lshl_b32 s61, s5, 13")
    rowfrag_addr(a, 10, 11, "s61")
    rowfrag_addr(a, 12, 13, 16384)
    qw_addr(a, 14)
    a("v_add_u32 v14, 18432, v14")
    a("s_lshl_b32 s61, s46, 6")
    a("v_xor_b32 v14, s61, v14")
    a("v_xor_b32 v15, 32, v14")
    a("v_and_b32 v3, 15, v1")
    a("v_lshrrev_b32 v30, 4, v1")
    a("v_lshlrev_b32 v30, 2, v30")
    a("v_sub_u32 v31, v3, v30")
    a(f"v_mov_b32 v224, {NEG:#x}")
    a("v_mov_b32 v225, 0xffff")
    a("v_mov_b32 v226, 0xffff0000")
    for i in range(4):
        a(f"v_subrev_u32 v227, {i}, v31")
        a("v_cmp_gt_u32 vcc, 8, v227")
        a("v_cmp_gt_i32 s[62:63], -8, v227")
        a("s_nop 0")
        a(f"v_cndmask_b32_e64 v{MC+i}, v224, 0, vcc")
        a(f"v_cndmask_b32_e64 v{228+i}, 0, v{225 + (i&1)}, vcc")
        a(f"v_cndmask_b32_e64 v{MPN+i}, v224, 0, s[62:63]")
    a(f"v_or_b32 v{MB}, v228, v229")
    a(f"v_or_b32 v{MB+1}, v230, v231")
    a("s_lshl_b32 s61, s5, 8")
    a(f"s_add_u32 s61, s61, {L_TAB}")
    a("v_and_b32 v27, 0x30, v1")
    a("v_add_u32 v218, s61, v27")
    a("v_lshl_add_u32 v219, v3, 2, s61")
    a("s_lshl_b32 s61, s46, 7")
    a(f"s_add_u32 s61, s61, {L_CW}")
    a("v_add_u32 v220, s61, v27")
    a("v_lshl_add_u32 v221, v3, 2, s61")
    a("v_lshlrev_b32 v222, 4, v1")
    a("s_lshl_b32 s61, s46, 12")
    a(f"s_add_u32 s61, s61, {L_XCH}")
    a("v_add_u32 v223, s61, v222")
    a(f"s_lshl_b32 s53, s{sRB}, 1")
    a("s_add_u32 s53, s53, s5")
    a("s_lshl_b32 s53, s53, 4")
    a(f"s_add_u32 s53, s53, s{sGRP}")
    a("s_lshl_b32 s53, s53, 1")
    a("s_add_u32 s53, s53, s46")
    a("s_lshl_b32 s53, s53, 11")
    a(f"s_add_u32 s53, s53, {WS_O}")
    a("s_add_u32 s54, s53, 32768")
    a("v_lshrrev_b32 v27, 4, v1")
    a("v_lshlrev_b32 v27, 9, v27")
    a("v_lshl_add_u32 v4, v3, 4, v27")
    AT = 16
    def build(halo, hp):
        fr = {'ones': dict(step=0, reg=ONES, reads=None)}; mf = []
        for s in range(8):
            for kk in range(2):
                for tl in range(4):
                    fr[('x', s, kk, tl)] = dict(step=s, reg=None, reads=[lambda r, kk=kk, tl=tl: f"ds_read_b128 {V(r)}, v{AT+kk} offset:{tl*2048}"])
                fr[('h', s, kk)] = dict(step=s, reg=None, reads=[lambda r, kk=kk: f"ds_read_b128 {V(r)}, v{AT+2+kk}"])
                for m in range(3):
                    for e in range(2):
                        w = ('w', s, kk, m, e)
                        fr[w] = dict(step=s, reg=None, reads=[(lambda r, hh=hh, kk=kk, m=m, e=e: f"ds_read_b64_tr_b16 {V(r+2*hh,2)}, v{AT+4+e} offset:{kk*12288 + m*1024 + hh*512}") for hh in range(2)])
                        for tl in range(4):
                            d = (AQ, AK, AV)[m] + (e*4+tl)*4
                            mf.append((d, w, ('x', s, kk, tl)) if m < 2 else (d, ('x', s, kk, tl), w))
                        if halo and m == 1: mf.append((HK+4*e, w, ('h', s, kk)))
                        if halo and m == 2: mf.append((HV+4*e, ('h', s, kk), w))
                        if not halo: mf.append((CWQ[m*2+e], 'ones', w))
                        if m == 0:
                            x = ('x', s, kk, 2*hp+e)
                            mf.append((SUM+4*e, 'ones', x)); mf.append((GRM+4*e, x, x))
                        if halo and hp == 0 and m == 1:
                            mf.append((XA, 'ones', ('h', s, kk)) if e == 0 else (XA+4, ('h', s, kk), ('h', s, kk)))
        return mf, fr
    def stats_out(halo, hp):
        jobs = [(SUM, GRM, 128*hp), (SUM+4, GRM+4, 128*hp + 64)]
        if halo and hp == 0: jobs.append((XA, XA+4, 512))
        for k, (s_, g_, o) in enumerate(jobs): diag_sel(a, 144+k, g_)
        if not halo:
            for k in range(6): a(f"ds_write_b32 v221, v{CWQ[k]} offset:{256*(k>>1) + 64*(k&1)}")
        for k, (s_, g_, o) in enumerate(jobs): row_finalize(a, s_, 144+k, 0)
        for k, (s_, g_, o) in enumerate(jobs): a(f"v_rsq_f32 v{144+k}, v{144+k}")
        a(f"s_mov_b32 exec_lo, {DIAG_LO:#x}\ns_mov_b32 exec_hi, {DIAG_HI:#x}")
        for k, (s_, g_, o) in enumerate(jobs):
            a(f"ds_write_b32 v219, v{s_} offset:{o}")
            a(f"ds_write_b32 v219, v{144+k} offset:{o + TP}")
        a("s_mov_b64 exec, -1")
    def pre(s):
        for r in range(6): a(f"v_add_u32 v{AT+r}, {QSLOT[s % 3]}, v{10+r}")
    a("v_mov_b32 v26, v30")
    l2_setup(a, 5)
    a("v_mov_b32 v30, v26")
    lr1 = a.label("Lrh1"); lj = a.label("Lqj")
    a("s_cmp_lg_u32 s5, 0")
    a(f"s_cbranch_scc1 {lr1}")
    a("v_lshlrev_b32 v3, 1, v3")
    a("v_sub_u32 v31, v30, v3")
    a(f"s_cmp_eq_u32 s{sRB}, 0")
    a("s_cselect_b32 s61, 1000, 0")
    a("v_subrev_u32 v31, s61, v31")
    for T in range(2):
        for i in range(4):
            if (i ^ T) & 1:
                a(f"v_mov_b32 v{MPA+4*T+i}, v224")
            else:
                a(f"v_cmp_le_i32 vcc, {T + 2 - i}, v31")
                a("s_nop 1")
                a(f"v_cndmask_b32_e64 v{MPA+4*T+i}, v224, 0, vcc")
    n0 = a.nst
    for halo in (True, False):
        if not halo:
            a(f"{lr1}:")
            for i in range(8): a(f"v_mov_b32 v{MPA+i}, v{MPN+(i&3)}")
        lh1 = a.label("Lhp1")
        for r in range(4): a(f"v_mov_b32 v{ONES+r}, 0x3f803f80")
        a("s_cmp_lg_u32 s46, 0")
        a(f"s_cbranch_scc1 {lh1}")
        for hp in range(2):
            if hp: a(f"{lh1}:")
            a.nst = n0
            a.stamp()
            mf, fr = build(halo, hp)
            vm0 = list(a.vm)
            gemm_stream(a, mf, fr, ring, opt('LA', 10), opt('cover', 3), pre, stamps=(0, 1, 4), hooks=l2_hooks(a, 5))
            vm1 = list(a.vm); a.vm = vm0
            a.stamp()
            stats_out(halo, hp)
            a(f"s_branch {lj}")
    a(f"{lj}:")
    a.vm = vm1
    a("s_waitcnt lgkmcnt(0)")
    a("s_barrier")
    for k in range(2): a(f"ds_read_b128 {V(152+4*k)}, v220 offset:{256 + 64*k}")
    for tl in range(4):
        a(f"ds_read_b32 v{162+tl}, v219 offset:{64*tl}")
        a(f"ds_read_b32 v{166+tl}, v219 offset:{64*tl + TP}")
    for e in range(2): a(f"ds_read_b32 v{160+e}, v221 offset:{512 + 64*e}")
    a("s_waitcnt lgkmcnt(2)")
    for tl in range(4):
        a(f"ds_read_b128 {V(172+4*tl)}, v218 offset:{64*tl}")
        a(f"ds_read_b128 {V(10+4*tl)}, v218 offset:{64*tl + TP}")
    for k in range(2): a(f"ds_read_b128 {V(144+4*k)}, v220 offset:{64*k}")
    def corr_t(x, cw, mreg, rreg):
        for p in range(2): a(f"v_pk_fma_f32 {V(x+2*p,2)}, {V(cw+2*p,2)}, {V(mreg&~1,2)}, {V(x+2*p,2)} op_sel:[0,{mreg&1},0] op_sel_hi:[1,{mreg&1},1] neg_lo:[1,0,0] neg_hi:[1,0,0]")
        for p in range(2): a(f"v_pk_mul_f32 {V(x+2*p,2)}, {V(x+2*p,2)}, {V(rreg&~1,2)} op_sel:[0,{rreg&1}] op_sel_hi:[1,{rreg&1}]")
    def corr_c(x, mv, rv, cw):
        for p in range(2): a(f"v_pk_fma_f32 {V(x+2*p,2)}, {V(mv+2*p,2)}, {V(cw&~1,2)}, {V(x+2*p,2)} op_sel:[0,{cw&1},0] op_sel_hi:[1,{cw&1},1] neg_lo:[1,0,0] neg_hi:[1,0,0]")
        for p in range(2): a(f"v_pk_mul_f32 {V(x+2*p,2)}, {V(x+2*p,2)}, {V(rv+2*p,2)}")
    def pack(dst, x):
        for p in range(2): a(f"v_cvt_pk_bf16_f32 v{dst+p}, v{x+2*p}, v{x+2*p+1}")
    KV = 224
    def kp(e, tl): return KV + 8*tl + 2*e
    def vp(e, tl): return KV + 8*tl + 4 + 2*e
    for tl in (2, 3, 0, 1):
        for e in range(2): corr_t(AK + (e*4+tl)*4, 152+4*e, 162+tl, 166+tl)
        for e in range(2): pack(kp(e, tl), AK + (e*4+tl)*4)
    a("s_waitcnt lgkmcnt(0)")
    for tl in (2, 3, 0, 1):
        for e in range(2): corr_c(AV + (e*4+tl)*4, 172+4*tl, 10+4*tl, 160+e)
        for e in range(2): pack(vp(e, tl), AV + (e*4+tl)*4)
        if tl == 3:
            lx = a.label("Lx")
            a("s_cmp_lg_u32 s5, 0")
            a(f"s_cbranch_scc1 {lx}")
            for k in range(4): a(f"ds_write_b128 v223, {V(KV+16+4*k)} offset:{1024*k}")
            a("ds_read_b32 v26, v219 offset:512")
            a(f"ds_read_b32 v27, v219 offset:{512 + TP}")
            a(f"ds_read_b128 {V(188)}, v218 offset:512")
            a(f"ds_read_b128 {V(192)}, v218 offset:{512 + TP}")
            a(f"{lx}:")
    PV = 64
    lh = a.label("Lnh")
    a("s_cmp_lg_u32 s5, 0")
    a(f"s_cbranch_scc1 {lh}")
    a("s_waitcnt lgkmcnt(0)")
    for e in range(2):
        corr_t(HK+4*e, 152+4*e, 26, 27)
        corr_c(HV+4*e, 188, 192, 160+e)
    for e in range(2):
        for T in range(2):
            pack(PV + 8*T + 2*e, HK+4*e)
            pack(PV + 8*T + 4 + 2*e, HV+4*e)
    a(f"{lh}:")
    QP = 96
    for e in range(2):
        for tl in range(4): corr_t(AQ + (e*4+tl)*4, 144+4*e, 162+tl, 166+tl)
    for k in range(8): pack(QP+2*k, AQ+4*k)
    a("s_waitcnt lgkmcnt(0)")
    a("s_barrier")
    lp = a.label("Lp")
    a("s_cmp_eq_u32 s5, 0")
    a(f"s_cbranch_scc1 {lp}")
    for k in range(4): a(f"ds_read_b128 {V(PV+4*k)}, v223 offset:{1024*k}")
    a(f"{lp}:")
    SC, SP = 112, 144
    U = range(8)
    def kprev(u): e, tl = u//4, u%4; return kp(e, tl-2) if tl >= 2 else PV + 8*tl + 2*e
    def vprev(u): e, tl = u//4, u%4; return vp(e, tl-2) if tl >= 2 else PV + 8*tl + 4 + 2*e
    for u in U: a(mfma16(SC+4*u, kp(u//4, u%4), QP+2*u, V(MC)))
    a(f"v_mov_b32 v10, {f2u(0.25*LOG2E):#x}")
    for u in (2, 3, 6, 7): a(mfma16(SP+4*u, kprev(u), QP+2*u, V(MPN)))
    a("s_waitcnt lgkmcnt(0)")
    for u in (0, 1, 4, 5): a(mfma16(SP+4*u, kprev(u), QP+2*u, V(MPA+4*(u&1))))
    MX, TM = 32, 40
    for u in (2, 3, 6, 7, 0, 1, 4, 5):
        for i in range(4): a(f"v_max_f32 v{SC+4*u+i}, v{SC+4*u+i}, v{SP+4*u+i}")
    for u in U: a(f"v_max3_f32 v{MX+u}, v{SC+4*u}, v{SC+4*u+1}, v{SC+4*u+2}")
    for u in U: a(f"v_max_f32 v{MX+u}, v{MX+u}, v{SC+4*u+3}")
    red_g(a, [MX+u for u in U], "v_max_f32", TM)
    for u in range(0, 8, 2): a(f"v_pk_mul_f32 {V(MX+u,2)}, {V(MX+u,2)}, {V(10,2)} op_sel_hi:[1,0]")
    for u in U:
        for p in range(2): a(f"v_pk_fma_f32 {V(SC+4*u+2*p,2)}, {V(SC+4*u+2*p,2)}, {V(10,2)}, {V(MX+(u&~1),2)} op_sel:[0,0,{u&1}] op_sel_hi:[1,0,{u&1}] neg_lo:[0,0,1] neg_hi:[0,0,1]")
    for u in U:
        for i in range(4): a(f"v_exp_f32 v{SC+4*u+i}, v{SC+4*u+i}")
    PC, PP = 144, 160
    for u in U: pack(PP+2*u, SC+4*u)
    for u in U:
        for p in range(2): a(f"v_and_b32 v{PC+2*u+p}, v{MB+p}, v{PP+2*u+p}")
    for u in U:
        for p in range(2): a(f"v_xor_b32 v{PP+2*u+p}, v{PC+2*u+p}, v{PP+2*u+p}")
    OA = 176
    for u in U: a(f"v_pk_add_f32 {V(SC+4*u,2)}, {V(SC+4*u,2)}, {V(SC+4*u+2,2)}")
    for u in U:
        a(mfma16(OA+4*u, vp(u//4, u%4), PC+2*u, "0"))
        a(f"v_add_f32 v{MX+u}, v{SC+4*u}, v{SC+4*u+1}")
    for u in U: a(mfma16(OA+4*u, vprev(u), PP+2*u))
    red_g(a, [MX+u for u in U], "v_add_f32", TM)
    for u in U: a(f"v_rcp_f32 v{MX+u}, v{MX+u}")
    for u in U:
        for p in range(2): a(f"v_pk_mul_f32 {V(OA+4*u+2*p,2)}, {V(OA+4*u+2*p,2)}, {V(MX+(u&~1),2)} op_sel:[0,{u&1}] op_sel_hi:[1,{u&1}]")
    for tl in range(4):
        for e in range(2): pack(112 + 4*tl + 2*e, OA + 4*(e*4+tl))
    for tl in range(4):
        for p in range(2): a(f"v_permlane32_swap_b32 v{112+4*tl+p}, v{112+4*tl+2+p}")
    a.vmwait("b")
    for tl in range(4):
        a.vmem(f"buffer_store_dwordx4 {V(112+4*tl)}, v4, {S4(WS_)}, s{53+(tl>>1)} offen offset:{256*(tl&1)} sc1", "o")
    a.stamp()

def aq_helper(a, fused):
    srd(a, WA_, 66, D*1536*2)
    rowtile_voffs(a, 4, 5, 10)
    a("v_bfe_u32 v3, v1, 4, 1")
    a("v_lshlrev_b32 v3, 1, v3")
    a("v_and_b32 v30, 7, v1")
    a("v_xor_b32 v30, v30, v3")
    a("v_lshrrev_b32 v3, 3, v1")
    a("v_mul_u32_u24 v3, 3072, v3")
    a("v_lshl_add_u32 v6, v30, 4, v3")
    a("v_xor_b32 v30, 4, v30")
    a("v_lshl_add_u32 v7, v30, 4, v3")
    a(f"v_add_u32 v7, {8*3072}, v7")
    a("v_lshrrev_b32 v3, 4, v1")
    a(f"s_lshl_b32 s61, s{sQ}, 1")
    a("v_add_u32 v3, s61, v3")
    a("v_and_b32 v30, 7, v1")
    a("v_xor_b32 v30, v30, v3")
    a("v_and_b32 v30, 7, v30")
    a("v_lshrrev_b32 v3, 3, v1")
    a("v_lshlrev_b32 v3, 10, v3")
    a("v_lshl_add_u32 v20, v30, 4, v3")
    a(f"s_lshl_b32 s53, s{sRB}, 7")
    a("s_sub_u32 s55, s53, 16")
    a("s_max_i32 s55, s55, 0")
    a(f"s_lshl_b32 s61, s{sQ}, 2")
    a("s_add_u32 s55, s55, s61")
    a("s_lshl_b32 s55, s55, 10")
    a(f"s_lshl_b32 s61, s{sQ}, 5")
    a("s_add_u32 s53, s53, s61")
    a("s_lshl_b32 s53, s53, 10")
    a(f"s_mul_i32 s54, s{sQ}, {16*3072}")
    a(f"s_lshl_b32 s61, s{sGRP}, 7")
    a("s_add_u32 s54, s54, s61")
    a(f"s_mul_i32 s56, s{sQ}, 6144")
    a(f"s_lshl_b32 s57, s{sQ}, 9")
    a(f"s_lshl_b32 s60, s{sQ}, 12")
    def ga(step):
        sl = QSLOT[step % 3]; tag = ("A", step)
        x_group_h(a, step, sl, tag)
        a(f"s_mul_i32 s63, s61, {64*3072}")
        a("s_add_u32 s63, s63, s54")
        a(f"s_add_u32 m0, s56, {sl + 18432}")
        a("s_add_u32 s62, s58, s55")
        for m in range(3): a.vmem(f"buffer_load_dwordx4 v6, {S4(WA_)}, s63 offen offset:{1024*m} lds", tag)
        a(f"s_add_u32 m0, s56, {sl + 18432 + 3072}")
        a("s_nop 0")
        for m in range(3): a.vmem(f"buffer_load_dwordx4 v7, {S4(WA_)}, s63 offen offset:{1024*m} lds", tag)
        a(f"s_add_u32 m0, s57, {sl + 16384}")
        a("s_mov_b32 exec_hi, 0")
        a.vmem(f"buffer_load_dwordx4 v20, {S4(X_)}, s62 offen lds", tag)
        a("s_mov_b32 exec_hi, -1")
    ga(0)
    nonce_publish(a)
    ga(1); ga(2)
    late_srds(a)
    if fused: wsp_setup_h(a)
    a.stamp()
    for s in range(8):
        a.vmwait(("A", s))
        a("s_barrier")
        if s in (0, 1, 4): a.stamp()
        if 1 <= s <= 5: ga(s + 2)
        if fused and s == 5:
            a("v_mov_b32 v31, 0")
            a.vmem(f"buffer_load_dword v25, v31, {S4(DBG_)}, 0 offen sc1", "poll")
        if fused and s == 6:
            wsp_group_h(a, 0); wsp_group_h(a, 1)
        if fused and s == 7: wsp_group_h(a, 6)
    a.stamp()
    a("s_barrier")
    if fused:
        for v in (2, 3, 4, 5): wsp_group_h(a, v)
    a("s_barrier")

def flag_store(a, which):
    if which == "F1":
        a(f"s_lshl_b32 s61, s{sRB}, 3")
        a(f"s_add_u32 s61, s61, s{sGRP}")
        off = F1_OFF
    else:
        a(f"s_lshl_b32 s61, s{sRB}, 1")
        a(f"s_add_u32 s61, s61, s{sTYP}")
        a("s_lshl_b32 s61, s61, 3")
        a(f"s_add_u32 s61, s61, s{sGRP}")
        off = F2_OFF
    a("s_lshl_b32 s61, s61, 7")
    a(f"s_add_u32 s61, s61, {off}")
    a(f"s_cmp_eq_u32 s{sQ}, 0")
    a(f"s_cselect_b32 s61, s61, {OOB}")
    a(f"v_mov_b32 v30, s{sT}")
    a("v_mov_b32 v31, 0")
    a("s_mov_b64 exec, 1")
    a.vmem(f"buffer_store_dword v30, v31, {S4(WS_)}, s61 offen sc1", "flag")
    a("s_mov_b64 exec, -1")

def mfma32(d, a, b, c=None):
    c = V(d, 16) if c is None else c
    return f"v_mfma_f32_32x32x16_bf16 {V(d,16)}, {V(a)}, {V(b)}, {c}"

def b_early(a):
    a("v_and_b32 v3, 15, v1")
    a("v_bfe_u32 v31, v1, 4, 1")
    a("v_lshl_add_u32 v3, v3, 1, v31")
    a("v_lshlrev_b32 v3, 1, v3")
    a(f"s_lshl_b32 s61, s{sRB}, 2")
    a(f"s_add_u32 s61, s61, s{sQ}")
    a("s_lshl_b32 s61, s61, 6")
    a(f"s_cmp_eq_u32 s{sKS}, 0")
    a("s_cselect_b32 s61, s61, 4096")
    a.vmem(f"buffer_load_ushort v0, v3, {S4(BSP_)}, s61 offen", "b")

def b_compute(a, fused):
    ACC = 32
    ring = list(range(80, 144, 4))
    Z1 = 144
    a("v_and_b32 v3, 31, v1")
    a("v_lshrrev_b32 v30, 5, v1")
    a("v_bfe_u32 v31, v1, 1, 3")
    a("v_xor_b32 v31, v30, v31")
    a("v_lshlrev_b32 v3, 7, v3")
    a("v_lshl_add_u32 v10, v31, 4, v3")
    a(f"s_lshl_b32 s61, s{sQ}, 12")
    a("v_add_u32 v10, s61, v10")
    for b4 in range(1, 4): a(f"v_xor_b32 v{10+b4}, {32*b4}, v10")
    for b4 in range(4): a(f"v_add_u32 v{14+b4}, 0x10000, v{10+b4}")
    a("v_lshlrev_b32 v19, 4, v1")
    a(f"v_add_u32 v18, {L_Z2}, v19")
    a("v_and_b32 v3, 15, v1")
    a("v_bfe_u32 v31, v1, 4, 1")
    a("v_lshlrev_b32 v20, 9, v31")
    a("v_lshl_add_u32 v20, v30, 8, v20")
    a("v_lshl_add_u32 v20, v3, 4, v20")
    a(f"s_lshl_b32 s57, s{sRB}, 2")
    a(f"s_add_u32 s57, s57, s{sQ}")
    if not fused: b_early(a)
    a(f"s_mul_i32 s55, s{sCG}, 6")
    a("s_min_u32 s55, s55, 40")
    a("s_sub_u32 s58, 40, s55")
    a("s_min_u32 s58, s58, 6")
    a(f"s_cmp_eq_u32 s{sCG}, 7")
    a("s_cselect_b32 s58, 3, s58")
    a("s_mul_i32 s53, s57, 48")
    a("s_add_u32 s53, s53, s55")
    a("s_lshl_b32 s53, s53, 10")
    a(f"s_mul_i32 s61, s{sKS}, {64*48*1024}")
    a("s_add_u32 s54, s53, s61")
    a(f"s_add_u32 s53, s53, {WS_Z1}")
    a(f"s_add_u32 s54, s54, {WS_H}")
    if not fused: a.vmwait("b")
    a("v_lshlrev_b32 v22, 16, v0")
    for r in range(48): a(f"v_mov_b32 v{ACC+r}, v22")
    def z1_load():
        pass
    def z1_piece(j):
        def f():
            if j == 0 and fused:
                a("v_mov_b32 v23, 0")
                a.vmem(f"buffer_load_dword v23, v23, {S4(DBG_)}, 0 offen sc1", "z1")
            if j == 4: a("s_add_u32 s53, s53, 4096")
            a.vmem(f"buffer_load_dwordx4 {V(Z1+4*j)}, v20, {S4(WS_)}, s53 offen offset:{(j%4)*1024} sc1", "z1")
        return f
    extras = []
    zs = opt('z1step', 11)
    for j in range(6): extras.append((zs, z1_piece(j), lambda done: True, 99))
    def preB(st):
        if fused and st == opt('f2step', 3): a.vmall()
    fr = {}; mf = []
    for i in range(16):
        for b4 in range(4):
            fr[('w', i, b4)] = dict(step=i, reg=None, reads=[lambda r, i=i, b4=b4: f"ds_read_b128 {V(r)}, v{10 + b4 + 4*((i%NWS)//4)} offset:{((i%NWS)%4)*16384}"])
            for c in range(3):
                fr[('z', i, b4, c)] = dict(step=i, reg=None, reads=[lambda r, i=i, b4=b4, c=c: f"ds_read_b128 {V(r)}, v18 offset:{(i%4)*12288 + (b4*3+c)*1024}"])
                mf.append((ACC+16*c, ('z', i, b4, c), ('w', i, b4)))
    a.stamp()
    a("s_barrier")
    gemm_stream(a, mf, fr, ring, opt('LAB', 5), opt('coverB', 2), preB,
                first_zero=False, stamps=(0, 1, 8, 10, 12, 14), pergap=opt('pgB', 2), slack=2, op=mfma32, extras=extras)
    assert not extras
    a.stamp()
    a("s_barrier")
    a.vmwait("z1")
    if fused: a(f"v_readfirstlane_b32 s{sT}, v23")
    for j in range(6):
        x = ACC + 8*j; z = Z1 + 4*j; t = 80 + 8*(j&1)
        for k in range(4):
            a(f"v_lshlrev_b32 v{t+2*k}, 16, v{z+k}")
            a(f"v_and_b32 v{t+2*k+1}, 0xffff0000, v{z+k}")
        for k in range(4): a(f"v_pk_mul_f32 {V(x+2*k,2)}, {V(x+2*k,2)}, {V(t+2*k,2)}")
        for k in range(4): a(f"v_cvt_pk_bf16_f32 v{x+k}, v{x+2*k}, v{x+2*k+1}")
        a(f"s_cmp_gt_u32 s58, {j}")
        a(f"s_cselect_b32 s61, s54, {OOB}")
        if j >= 4: a("s_add_u32 s61, s61, 4096")
        a.vmem(f"buffer_store_dwordx4 {V(x)}, v19, {S4(WS_)}, s61 offen offset:{(j%4)*1024} sc1", "h")
    a.stamp()

def cw_setup_h(a):
    a("v_bfe_u32 v3, v1, 4, 1")
    a("v_lshlrev_b32 v3, 2, v3")
    a("v_and_b32 v30, 7, v1")
    a("v_xor_b32 v30, v30, v3")
    a("v_lshrrev_b32 v3, 3, v1")
    a("v_lshlrev_b32 v3, 10, v3")
    a("v_lshl_add_u32 v26, v30, 4, v3")
    for k in range(1, 4): a(f"v_add_u32 v{26+k}, {k*(8192-1024)}, v26")
    a(f"s_lshl_b32 s47, s{sCG}, 7")
    a(f"s_lshl_b32 s61, s{sQ}, 15")
    a("s_add_u32 s47, s47, s61")

def cw_pieces(a, slot):
    R, row0 = (WO_, slot*128) if slot < 4 else (WOUT_, (slot-4)*128)
    out = []
    for k in range(4):
        def f(k=k):
            if k == 0:
                a(f"s_add_u32 m0, s60, {CSLOT[slot]*16384}")
                a(f"s_add_u32 s46, s47, {row0*1024}")
            a.vmem(f"buffer_load_dwordx4 v{26+k}, {S4(R)}, s46 offen offset:{1024*k} lds", ("CW", slot))
        out.append(f)
    return out

CSLOT = [2, 3, 4, 5, 6, 0, 1, 7, 8, 9]
def b_helper(a, fused):
    if not fused:
        late_srds(a)
        wsp_setup_h(a)
        a(f"s_lshl_b32 s60, s{sQ}, 12")
    cw_setup_h(a)
    a("v_lshlrev_b32 v10, 4, v1")
    a(f"s_lshl_b32 s53, s{sCG}, 1")
    a(f"s_add_u32 s53, s53, s{sKS}")
    a(f"s_mul_i32 s53, s53, {16*12288}")
    a(f"s_mul_i32 s54, s{sQ}, 3072")
    a("s_add_u32 s53, s53, s54")
    a(f"s_add_u32 s53, s53, {WS_Z2N}")
    a(f"s_add_u32 s54, s54, {L_Z2}")
    def z2_group(i):
        a(f"s_add_u32 s61, s{sK0B}, {i}")
        a("s_and_b32 s61, s61, 15")
        a("s_mul_i32 s61, s61, 12288")
        a(f"s_add_u32 m0, s54, {(i % 4)*12288}")
        a("s_add_u32 s61, s61, s53")
        for k in range(3): a.vmem(f"buffer_load_dwordx4 v10, {S4(WS_)}, s61 offen offset:{1024*k} sc1 lds", ("Z", i))
    a.stamp()
    if fused:
        a(f"s_lshl_b32 s62, s{sCG}, 1")
        a(f"s_add_u32 s62, s62, s{sKS}")
        a("s_lshl_b32 s62, s62, 12")
        a(f"s_add_u32 s62, s62, {F1_OFF}")
        a("v_and_b32 v31, 31, v1")
        a("v_lshlrev_b32 v31, 7, v31")
        a(f"v_mov_b32 v30, 0")
        def iss(): a(f"buffer_load_dword v30, v31, {S4(WS_)}, s62 offen sc1")
        def chk():
            a(f"v_cmp_ne_u32 vcc, s{sT}, v30")
            a("s_cmp_eq_u64 vcc, 0")
        spin(a, iss, chk)
        a.vm = []
        a.stamp()
    lq = a.label("Lbq"); lz = a.label("Lbz")
    for i in range(3): z2_group(i)
    a("s_barrier")
    z2_group(3)
    a(f"s_cmp_eq_u32 s{sTYP}, 0")
    a(f"s_cbranch_scc1 {lq}")
    vm0 = list(a.vm)
    for v in range(opt('wpre', 3), NWS): wsp_group_h(a, v)
    a(f"s_branch {lz}")
    a(f"{lq}:")
    a("s_mov_b64 exec, 1")
    for v in range(4*(NWS - opt('wpre', 3))): a(f"buffer_load_dword v30, v31, {S4(DBG_)}, 0 offen")
    a("s_mov_b64 exec, -1")
    a(f"{lz}:")
    for i in range(16):
        a.vmwait(("S", i)); a.vmwait(("Z", i))
        if fused and i == opt('z1step', 11): f2_check(a)
        a("s_barrier")
        if i in (0, 1, 8, 10, 12, 14): a.stamp()
        if fused and i == opt('f2step', 3): flag_store(a, "F2")
        if fused and i == opt('z1step', 11) - 3: f2_issue(a)
        if i >= 1 and i + 3 < 16: z2_group(i + 3)
        if i >= 1 and i - 1 + NWS < 16: wsp_group_h(a, i - 1 + NWS)
        if fused and i >= 10: a.run(cw_pieces(a, i - 10))
    a.stamp()
    a("s_barrier")
    if fused:
        for k in range(6, 10): a.run(cw_pieces(a, k))

def f2_issue(a):
    a(f"s_lshr_b32 s61, s{sRC}, 1")
    a("s_lshl_b32 s61, s61, 4")
    a(f"s_lshl_b32 s62, s{sRB}, 4")
    a(f"s_add_u32 s62, s62, s{sCG}")
    a("s_add_u32 s62, s62, 8")
    a("v_add_u32 v20, s61, v1")
    a("v_mov_b32 v21, s62")
    a("v_cmp_gt_u32 vcc, 8, v1")
    a("s_nop 1")
    a("v_cndmask_b32 v20, v21, v20, vcc")
    a("v_lshlrev_b32 v20, 7, v20")
    a(f"v_add_u32 v20, {F2_OFF}, v20")
    a.vmem(f"buffer_load_dword v21, v20, {S4(WS_)}, 0 offen sc1", "f2")
def f2_check(a):
    a.vmwait("f2")
    def iss(): a(f"buffer_load_dword v21, v20, {S4(WS_)}, 0 offen sc1")
    def chk():
        a(f"v_cmp_ne_u32 vcc, s{sT}, v21")
        a("s_cmp_eq_u64 vcc, 0")
    spin(a, iss, chk)

L_RED = 0
def c_waddr(a, d):
    a("v_lshrrev_b32 v3, 5, v1")
    a("v_bfe_u32 v30, v1, 2, 2")
    a("v_lshl_add_u32 v3, v3, 2, v30")
    a("v_lshlrev_b32 v3, 7, v3")
    a("v_and_b32 v30, 2, v30")
    a("v_bfe_u32 v31, v1, 4, 1")
    a("v_or_b32 v30, v30, v31")
    a("v_lshl_add_u32 v3, v30, 5, v3")
    a("v_and_b32 v30, 3, v1")
    a(f"v_lshl_add_u32 v{d}, v30, 3, v3")
    a(f"v_xor_b32 v{d+1}, 64, v{d}")

def c_stream(a, nblk, fragreg, tagf, areg, blk0, ring, ACC, first_zero, loads=(), off0=0):
    fr = {}; mf = []
    for b in range(nblk):
        fr[('h', b)] = dict(step=0, reg=fragreg(b), reads=None)
        for nn in range(2):
            off = CSLOT[(blk0 + b) // 8] * 16384 + ((blk0 + b) % 8) * 2048 - off0
            fr[('w', b, nn)] = dict(step=0, reg=None, reads=[(lambda r, hh=hh, nn=nn, off=off: f"ds_read_b64_tr_b16 {V(r+2*hh,2)}, v{areg(off >> 16) + nn} offset:{(off & 0xffff) + hh*1024}") for hh in range(2)])
            mf.append((ACC+16*nn, ('w', b, nn), ('h', b)))
    cnt = [0]
    def op(d, x, y, c):
        b = cnt[0] // 2
        if cnt[0] % 2 == 1 and loads: loads.pop(0)()
        cnt[0] += 1
        a.vmwait(tagf(b))
        return mfma32(d, x, y, c)
    gemm_stream(a, mf, fr, ring, opt('LAC', 4), 0, lambda st: None, first_zero=first_zero, pergap=2, slack=2, op=op, skip_first_barrier=True)

def c_final(a):
    a("s_barrier")
    for k in range(2):
        a(f"ds_read_b128 {V(16+8*k)}, v6 offset:{17408*k}")
        a(f"ds_read_b128 {V(20+8*k)}, v6 offset:{17408*k + 16}")
    a.vmwait("x")
    for w in range(4):
        a(f"v_lshlrev_b32 v{32+2*w}, 16, v{8+w}")
        a(f"v_and_b32 v{33+2*w}, 0xffff0000, v{8+w}")
    a("s_waitcnt lgkmcnt(2)")
    for w in range(4): a(f"v_pk_add_f32 {V(32+2*w,2)}, {V(32+2*w,2)}, {V(16+2*w,2)}")
    a("s_waitcnt lgkmcnt(0)")
    for w in range(4): a(f"v_pk_add_f32 {V(32+2*w,2)}, {V(32+2*w,2)}, {V(24+2*w,2)}")
    for w in range(4): a(f"v_cvt_pk_bf16_f32 v{32+w}, v{32+2*w}, v{33+2*w}")
    a.vmem(f"buffer_store_dwordx4 {V(32)}, v7, {S4(OUT_)}, s47 offen", "out")

def c_final_setup(a):
    a("v_lshrrev_b32 v3, 3, v1")
    a(f"s_lshl_b32 s61, s{sW}, 3")
    a("v_add_u32 v3, s61, v3")
    a("v_and_b32 v30, 7, v1")
    a("v_mul_u32_u24 v6, 272, v3")
    a("v_lshl_add_u32 v6, v30, 5, v6")
    a("v_add_u32 v6, 32768, v6")
    a("v_and_b32 v31, 15, v3")
    a("v_lshlrev_b32 v31, 1, v31")
    a("v_bfe_u32 v7, v3, 4, 1")
    a("v_add_u32 v31, v31, v7")
    a("v_and_b32 v7, 32, v3")
    a("v_add_u32 v31, v31, v7")
    a("v_lshlrev_b32 v31, 10, v31")
    a("v_lshl_add_u32 v7, v30, 4, v31")
    a(f"s_lshl_b32 s47, s{sRC}, 9")
    a(f"s_add_u32 s47, s47, s{sCG}")
    a("s_lshl_b32 s47, s47, 7")
    a.vmem(f"buffer_load_dwordx4 {V(8)}, v7, {S4(X_)}, s47 offen", "x")

def c_compute(a, fused):
    ACC, HF = 32, 80
    ring = list(range(64, 80, 4)) + [12, 16, 20]
    a("s_barrier")
    if not fused: late_srds(a)
    a(f"s_and_b32 s53, s{sQ}, 1")
    a(f"s_lshr_b32 s54, s{sQ}, 1")
    c_waddr(a, 4)
    a("v_add_u32 v252, 0x10000, v4\nv_add_u32 v253, 0x10000, v5")
    a("v_add_u32 v254, 0x20000, v4\nv_add_u32 v255, 0x20000, v5")
    a("v_mov_b32 v26, v4\nv_mov_b32 v27, v5")
    a(f"s_lshl_b32 s55, s{sRC}, 1")
    a("s_add_u32 s55, s55, s53")
    a("s_lshl_b32 s56, s54, 6")
    a("s_add_u32 s56, s56, s55")
    a("s_mul_i32 s56, s56, 49152")
    a(f"s_add_u32 s56, s56, {WS_H}")
    a("v_lshlrev_b32 v28, 4, v1")
    a(f"s_lshl_b32 s61, s{sQ}, 13")
    a("s_add_u32 s61, s61, 32768")
    a("v_add_u32 v29, s61, v28")
    if fused:
        a.vmall()
        a("s_lshl_b32 s61, s57, 1")
        a(f"s_add_u32 s61, s61, s{sKS}")
        a("s_lshl_b32 s61, s61, 3")
        a(f"s_add_u32 s61, s61, s{sCG}")
        a("s_lshl_b32 s61, s61, 7")
        a(f"s_add_u32 s61, s61, {F3_OFF}")
        a(f"v_mov_b32 v30, s{sT}")
        a("v_mov_b32 v31, 0")
        a("s_mov_b64 exec, 1")
        a.vmem(f"buffer_store_dword v30, v31, {S4(WS_)}, s61 offen sc1", "flag")
        a("s_mov_b64 exec, -1")
        a.stamp()
    c_final_setup(a)
    a("v_and_b32 v3, 31, v1")
    a("v_mul_u32_u24 v3, 272, v3")
    a("v_lshrrev_b32 v30, 5, v1")
    a("v_lshl_add_u32 v3, v30, 4, v3")
    a("s_mul_i32 s61, s54, 17408")
    a(f"s_mul_i32 s62, s53, {32*272}")
    a("s_add_u32 s61, s61, s62")
    a("s_add_u32 s61, s61, 32768")
    a("v_add_u32 v4, s61, v3")
    a("s_barrier")
    a("s_barrier")
    for k in range(8): a(f"ds_read_b128 {V(ACC+4*k)}, v29 offset:{1024*k}")
    if fused:
        a("s_lshl_b32 s62, s55, 1")
        a("s_add_u32 s62, s62, s54")
        a("s_lshl_b32 s62, s62, 10")
        a(f"s_add_u32 s62, s62, {F3_OFF}")
        a("v_and_b32 v31, 7, v1")
        a("v_lshlrev_b32 v31, 7, v31")
        a("v_mov_b32 v30, 0")
    a("s_waitcnt lgkmcnt(0)")
    a("s_barrier")
    if fused:
        def iss(): a(f"buffer_load_dword v30, v31, {S4(WS_)}, s62 offen sc1")
        def chk():
            a(f"v_cmp_ne_u32 vcc, s{sT}, v30")
            a("s_cmp_eq_u64 vcc, 0")
        spin(a, iss, chk)
        a.vm = []
    a.stamp()
    def hload(b):
        if b and b % 4 == 0: a("s_add_u32 s56, s56, 4096")
        a.vmem(f"buffer_load_dwordx4 {V(HF+4*b)}, v28, {S4(WS_)}, s56 offen offset:{(b%4)*1024} sc1", ("H", b))
    PH = opt('PH', 14)
    for b in range(PH): hload(b)
    c_stream(a, 43, lambda b: HF+4*b, lambda b: ("H", b), lambda k: (26, 252, 254)[k], 32, ring, ACC, False, [(lambda b=b: hload(b)) for b in range(PH, 43)])
    a.stamp()
    a("s_nop 15")
    for nn in range(2):
        for jj in range(4): a(f"ds_write_b128 v4, {V(ACC+16*nn+4*jj)} offset:{128*nn + 32*jj}")
    a("s_waitcnt lgkmcnt(0)")
    c_final(a)

def c_helper(a, fused):
    ACC, OF = 32, 80
    ring = list(range(64, 80, 4)) + [144, 148, 152, 156]
    if not fused:
        late_srds(a)
        a(f"s_lshl_b32 s60, s{sQ}, 12")
        cw_setup_h(a)
    a(f"s_and_b32 s53, s{sQ}, 1")
    a(f"s_lshr_b32 s54, s{sQ}, 1")
    a(f"s_lshl_b32 s55, s{sRC}, 1")
    a("s_add_u32 s55, s55, s53")
    a("s_lshl_b32 s55, s55, 1")
    a("s_add_u32 s55, s55, s54")
    a("s_lshl_b32 s55, s55, 14")
    a(f"s_add_u32 s55, s55, {WS_O}")
    a("v_lshlrev_b32 v12, 4, v1")
    for b in range(16):
        if b and b % 4 == 0: a("s_add_u32 s55, s55, 4096")
        a.vmem(f"buffer_load_dwordx4 {V(OF+4*b)}, v12, {S4(WS_)}, s55 offen offset:{(b%4)*1024} sc1", ("O", b))
    if not fused:
        for sl in range(10): a.run(cw_pieces(a, sl))
    c_final_setup(a)
    c_waddr(a, 4)
    a("s_lshl_b32 s61, s54, 15")
    a("s_add_u32 s61, s61, 32768")
    a("v_add_u32 v4, s61, v4\nv_add_u32 v5, s61, v5")
    a(f"s_lshl_b32 s61, s{sQ}, 13")
    a("s_add_u32 s61, s61, 32768")
    a("v_add_u32 v13, s61, v12")
    a.vmwait(("CW", 3))
    a("s_barrier")
    a.stamp()
    c_stream(a, 16, lambda b: OF+4*b, lambda b: ("O", b), lambda k: 4, 0, ring, ACC, True, off0=32768)
    a.stamp()
    a("s_barrier")
    a("s_nop 15")
    for k in range(8): a(f"ds_write_b128 v13, {V(ACC+4*k)} offset:{1024*k}")
    a.vmwait(("CW", 9))
    a("s_waitcnt lgkmcnt(0)")
    a("s_barrier")
    a("s_barrier")
    c_final(a)

def diag_out(a, base):
    if not a.diag: return
    a("v_writelane_b32 v2, s84, 62")
    a("s_memrealtime s[86:87]")
    a("s_waitcnt lgkmcnt(0)")
    a("v_writelane_b32 v2, s86, 63")
    a("s_lshl_b32 s61, s2, 3")
    a(f"s_add_u32 s61, s61, s{sW}")
    a("s_lshl_b32 s61, s61, 8")
    a(f"s_add_u32 s61, s61, {base}")
    a("v_lshlrev_b32 v3, 2, v1")
    a(f"buffer_store_dword v2, v3, {S4(WS_)}, s61 offen")

def simple_kernel(name, diag, idx, comp, helper):
    a = G(diag)
    prologue(a, f"L{name}_end")
    a(f"s_cmp_ge_u32 s{sW}, 4")
    a(f"s_cbranch_scc1 L{name}_h")
    for k, fn in enumerate((comp, helper)):
        if k: a(f"L{name}_h:")
        a.vm = []; a.nst = 0
        fn(a)
        a.vmall(); a.stamp()
        diag_out(a, WS_DBG + idx*0x80000)
        a("s_endpgm")
    a(f"L{name}_end:")
    a("s_endpgm")
    return a.text()

def by_type(fq, fz, lab):
    def f(a):
        a(f"s_cmp_lg_u32 s{sTYP}, 0")
        a(f"s_cbranch_scc1 {lab}_z")
        fq(a, False)
        a.vmall()
        a(f"s_branch {lab}_e")
        n = a.nst
        a(f"{lab}_z:")
        a.vm = []; a.nst = 0
        fz(a, False)
        a(f"{lab}_e:")
        a.nst = max(a.nst, n)
    return f

def multi(diag):
    ka = simple_kernel("A", diag, 0, by_type(aq_compute, az_compute, "LAc"), by_type(aq_helper, az_helper, "LAh"))
    def bc(a): late_srds(a); b_compute(a, False)
    kb = simple_kernel("B", diag, 1, bc, lambda a: b_helper(a, False))
    kc = simple_kernel("C", diag, 2, lambda a: c_compute(a, False), lambda a: c_helper(a, False))
    return [("a_kernel", ka), ("b_kernel", kb), ("c_kernel", kc)]

def fused_kernel(diag):
    a = G(diag)
    prologue(a, "LF_end")
    a(f"s_cmp_ge_u32 s{sW}, 4")
    a("s_cbranch_scc1 LF_h")
    if opt('cpf', 1):
        a("s_getpc_b64 s[62:63]")
        a("LF_pc:")
        a("s_lshr_b32 s61, s2, 3")
        a("s_lshl_b32 s61, s61, 2")
        a(f"s_add_u32 s61, s61, s{sQ}")
        a("s_lshl_b32 s61, s61, 3")
        a("v_add_u32 v3, s61, v1")
        a("v_lshlrev_b32 v3, 7, v3")
        a("v_min_u32 v3, LF_end - LF_pc, v3")
        a(f"s_mov_b32 m0, {L_MISC}")
        a("s_mov_b64 exec, 0xff")
        a("global_load_lds_dword v3, s[62:63]")
        a("s_mov_b64 exec, -1")
    late_srds(a)
    b_early(a)
    a(f"s_cmp_lg_u32 s{sTYP}, 0")
    a("s_cbranch_scc1 LF_cz")
    aq_compute(a, True)
    n = a.nst
    a("s_branch LF_cb")
    a("LF_cz:")
    a.vm = []; a.nst = 0
    az_compute(a, True)
    a("LF_cb:")
    a.vm = []; a.nst = 10
    b_compute(a, True)
    c_compute(a, True)
    a.vmall(); a.stamp()
    diag_out(a, WS_DBG)
    a("s_endpgm")
    a("LF_h:")
    a.vm = []; a.nst = 0
    a(f"s_cmp_lg_u32 s{sTYP}, 0")
    a("s_cbranch_scc1 LF_hz")
    aq_helper(a, True)
    nonce_check(a)
    a("s_branch LF_hb")
    a("LF_hz:")
    a.vm = []; a.nst = 0
    az_helper(a, True)
    a("LF_hb:")
    a.vm = []; a.nst = 10
    b_helper(a, True)
    c_helper(a, True)
    a.vmall(); a.stamp()
    diag_out(a, WS_DBG)
    a("LF_end:")
    a("s_endpgm")
    return [(KNAME, a.text())]

if __name__ == "__main__":
    diag = "diag" in sys.argv
    for x in sys.argv[2:]:
        if "=" in x:
            k, v = x.split("="); OPT[k] = int(v)
    ks = multi(diag) if 'multi' in sys.argv else fused_kernel(diag)
    hdr = open("cdna_kernels/" + KNAME[:-7] + ".s.ref").read().split("; Override")[0]
    txt = file_text([(n, 256, 512, LDS_BYTES) for n, t in ks], [(n, t, 256, 102, 256) for n, t in ks])
    if len(ks) == 1: txt = txt.replace(f"; @launch kernel={KNAME} ", "; @launch ")
    txt = "\n".join(l.strip() if l.startswith("    ") else l for l in txt.split("\n"))
    open(sys.argv[1], "w").write(hdr + txt)
```

```python
import sys, math, struct
from asmgen import Asm, KA, KNAME, file_text
from layout import *

OOB = 0x10000000
LOG2E = 1.4426950408889634
def f2u(x): return struct.unpack("<I", struct.pack("<f", x))[0]
C1 = 2.0 * math.sqrt(2.0 / math.pi) * LOG2E
C2 = C1 * 0.044715
NEG = f2u(-1e30)
OPT = {}
F1_OFF, F2_OFF, F3_OFF = WS_FLG, WS_FLG + 512*128, WS_FLG + 768*128
def opt(k, d): return OPT.get(k, d)

sW, sQ, sRB, sGRP = 3, 4, 6, 7
X_, WA_, WS_, WSP_, WO_, WOUT_, OUT_, BSP_, DBG_ = 8, 12, 16, 20, 24, 28, 32, 36, 40
sK0A, sTYP = 44, 45
sKS, sCG, sK0B, sT = 48, 50, 51, 52
sRC = 49
def S4(b): return f"s[{b}:{b+3}]"
def V(b, n=4): return f"v[{b}:{b+n-1}]" if n > 1 else f"v{b}"

L_TAB = 156*1024
TP = 640
L_CW  = L_TAB + 2560
L_MISC = L_TAB + 3328
L_XCH = 148*1024
L_PARK = 112*1024
L_Z2 = 112*1024
NWS = 7
L_RC = L_TAB + 3584
LDS_BYTES = 160*1024

class G(Asm):
    UID = [0]
    def label(self, base="L"):
        G.UID[0] += 1
        return f"{base}_{G.UID[0]}"
    def __init__(self, diag=False):
        super().__init__()
        self.vm = []; self.diag = diag; self.nst = 0
    def vmem(self, s, tag=None):
        self(s); self.vm.append(tag)
    def has(self, tag): return any(t == tag for t in self.vm)
    def vmwait(self, tag):
        if not self.has(tag): return
        idx = max(i for i, t in enumerate(self.vm) if t == tag)
        n = len(self.vm) - 1 - idx
        assert n <= 63, n
        self(f"s_waitcnt vmcnt({n})")
        self.vm = self.vm[idx+1:]
    def vmall(self):
        self("s_waitcnt vmcnt(0)"); self.vm = []
    def stamp(self):
        if not self.diag: return
        self("s_memtime s[82:83]")
        self("s_waitcnt lgkmcnt(0)")
        self("s_sub_u32 s82, s82, s80")
        self(f"v_writelane_b32 v2, s82, {self.nst}")
        self.nst += 1
    def run(self, fs):
        for f in fs: f() if callable(f) else self(f)

def mfma(d, a, b, c=None):
    c = V(d) if c is None else c
    return f"v_mfma_f32_16x16x32_bf16 {V(d)}, {V(a)}, {V(b)}, {c}"
def mfma16(d, a, b, c=None):
    c = V(d) if c is None else c
    return f"v_mfma_f32_16x16x16_bf16 {V(d)}, {V(a,2)}, {V(b,2)}, {c}"

def gemm_stream(a, mf, frags, ring, LA, cover, pre_barrier, hooks=None, first_zero=True, stamps=(), nobar=0, pergap=1, slack=4, op=None, skip_first_barrier=False, extras=None):
    hooks = hooks or {}
    extra_max = opt('xmax', 1)
    first, last = {}, {}
    for i, (d, x, y) in enumerate(mf):
        for f in (x, y):
            first.setdefault(f, i); last[f] = i
    order = sorted([f for f in first if frags[f].get('reads')], key=lambda f: (frags[f]['step'], first[f]))
    rl = [(f, k) for f in order for k in range(len(frags[f]['reads']))]
    reg = {f: frags[f]['reg'] for f in first if frags[f].get('reg') is not None}
    owner = {r: None for r in ring}
    ptr = 0; cur = (0 if skip_first_barrier else -1); out = []; done = set(f for f in first if not frags[f].get('reads'))
    since = 10**9
    seen = set()
    def issue_one(i, force):
        nonlocal ptr, cur, since, out
        f, k = rl[ptr]
        st = frags[f]['step']
        if st > cur:
            if not force and since < cover: return False
            pre_barrier(st)
            if not (nobar and st > 0):
                if out:
                    a("s_waitcnt lgkmcnt(0)")
                    for g_, _ in out: done.add(g_)
                    out = []
                a("s_barrier")
            cur = st
            if st in stamps: a.stamp()
            if st in hooks: hooks[st]()
        if k == 0 and f not in reg:
            free = [r for r in ring if owner[r] is None or last[owner[r]] < i]
            if not free:
                assert not force, "ring too small"
                return False
            r = min(free, key=lambda r: -1 if owner[r] is None else last[owner[r]])
            reg[f] = r; owner[r] = f
        if len(out) >= 14 and not force: return False
        a(frags[f]['reads'][k](reg[f]))
        out.append((f, k)); ptr += 1; since = 0
        return True
    for i, (d, x, y) in enumerate(mf):
        need = [f for f in (x, y) if f not in done]
        while ptr < len(rl) and any(rl[j][0] in need for j in range(ptr, len(rl)) if first[rl[j][0]] <= i):
            issue_one(i, True)
        n = 0
        while ptr < len(rl) and first[rl[ptr][0]] <= i + LA:
            lim = 12 if i == 0 else (pergap + 1 if first[rl[ptr][0]] <= i + LA - slack else pergap)
            if n >= lim: break
            if not issue_one(i, False): break
            n += 1
        if extras and n <= extra_max and extras[0][0] <= cur and extras[0][2](done):
            extras.pop(0)[1]()
        need = [f for f in (x, y) if f not in done]
        if need:
            idx = max(j for j, (f, k) in enumerate(out) if f in need)
            a(f"s_waitcnt lgkmcnt({len(out) - 1 - idx})")
            for f, k in out[:idx+1]:
                if k == len(frags[f]['reads']) - 1: done.add(f)
            out = out[idx+1:]
        c = None
        if first_zero and d not in seen:
            c = "0"; seen.add(d)
        a((op or mfma)(d, reg[x], reg[y], c))
        since += 1
    assert ptr == len(rl)

def srd(a, d, p, nbytes):
    a(f"s_mov_b32 s{d}, s{p}")
    a(f"s_and_b32 s{d+1}, s{p+1}, 0xffff")
    a(f"s_mov_b32 s{d+2}, {nbytes:#x}")
    a(f"s_mov_b32 s{d+3}, 0x20000")

def prologue(a, endlabel):
    if a.diag:
        a("s_memtime s[80:81]")
    a("s_memrealtime s[84:85]")
    a("s_cmp_ge_u32 s2, 256")
    a(f"s_cbranch_scc1 {endlabel}")
    a("s_load_dwordx16 s[64:79], s[0:1], 0")
    a("s_load_dwordx4 s[88:91], s[0:1], 64")
    a("s_load_dwordx2 s[92:93], s[0:1], 80")
    a("v_lshrrev_b32 v3, 6, v0")
    a("v_and_b32 v1, 63, v0")
    a("v_mov_b32 v2, 0")
    a(f"v_readfirstlane_b32 s{sW}, v3")
    a("s_and_b32 s53, s2, 7")
    a("s_lshr_b32 s54, s2, 3")
    a("s_lshr_b32 s55, s53, 1")
    a("s_and_b32 s56, s54, 3")
    a(f"s_lshr_b32 s{sCG}, s54, 2")
    a(f"s_lshl_b32 s{sRB}, s55, 2")
    a(f"s_add_u32 s{sRB}, s{sRB}, s56")
    a(f"s_and_b32 s{sKS}, s53, 1")
    a(f"s_lshl_b32 s{sRC}, s53, 2")
    a(f"s_add_u32 s{sRC}, s{sRC}, s56")
    a(f"s_lshl_b32 s{sGRP}, s{sKS}, 2")
    a(f"s_and_b32 s58, s{sCG}, 3")
    a(f"s_add_u32 s{sGRP}, s{sGRP}, s58")
    a(f"s_lshr_b32 s{sTYP}, s{sCG}, 2")
    a(f"s_lshl_b32 s{sK0A}, s56, 1")
    a(f"s_add_u32 s{sK0A}, s{sK0A}, s{sCG}")
    a(f"s_add_u32 s{sK0A}, s{sK0A}, s55")
    a(f"s_and_b32 s{sK0A}, s{sK0A}, {opt('rotA', 7)}")
    a(f"s_lshl_b32 s{sK0B}, s{sCG}, 1")
    a(f"s_add_u32 s{sK0B}, s{sK0B}, s{sRB}")
    a(f"s_and_b32 s{sK0B}, s{sK0B}, {opt('rotB', 15)}")
    a(f"s_and_b32 s{sQ}, s{sW}, 3")
    a("s_waitcnt lgkmcnt(0)")
    srd(a, X_, 64, S*D*2)
    srd(a, WS_, 92, 268435456)
    srd(a, DBG_, 90, 256)

def late_srds(a):
    srd(a, WSP_, 74, S*S*2)
    srd(a, WO_, 68, D*D*2)
    srd(a, WOUT_, 78, FH*D*2)
    srd(a, OUT_, 88, S*D*2)
    srd(a, BSP_, 76, S*2)

def rowtile_voffs(a, d0, d1, sh, t0=3, t1=30, t2=31):
    a(f"v_lshrrev_b32 v{t0}, 3, v1")
    a(f"v_lshlrev_b32 v{t0}, {sh+1}, v{t0}")
    a(f"v_lshrrev_b32 v{t1}, 4, v1")
    a(f"v_and_b32 v{t2}, 7, v1")
    a(f"v_xor_b32 v{t1}, v{t1}, v{t2}")
    a(f"v_lshl_add_u32 v{d0}, v{t1}, 4, v{t0}")
    a(f"v_xor_b32 v{t1}, 4, v{t1}")
    a(f"v_lshl_add_u32 v{d1}, v{t1}, 4, v{t0}")
    a(f"v_add_u32 v{d1}, {(16 << sh) - 1024}, v{d1}")

def rowfrag_addr(a, d0, d1, srow, t0=3, t1=30, t2=31):
    a(f"v_and_b32 v{t0}, 15, v1")
    a(f"v_lshrrev_b32 v{t1}, 4, v1")
    a(f"v_lshrrev_b32 v{t2}, 1, v{t0}")
    a(f"v_xor_b32 v{t1}, v{t1}, v{t2}")
    a(f"v_lshlrev_b32 v{t0}, 7, v{t0}")
    a(f"v_add_u32 v{t0}, {srow}, v{t0}")
    a(f"v_lshl_add_u32 v{d0}, v{t1}, 4, v{t0}")
    a(f"v_xor_b32 v{t1}, 4, v{t1}")
    a(f"v_lshl_add_u32 v{d1}, v{t1}, 4, v{t0}")

def zw_addr(a, de, do, t0=3, t1=30, t2=31):
    a(f"v_lshrrev_b32 v{t0}, 4, v1")
    a(f"v_bfe_u32 v{t1}, v1, 2, 2")
    a(f"v_lshl_add_u32 v{t1}, v{t0}, 3, v{t1}")
    a(f"v_mul_u32_u24 v{t1}, 192, v{t1}")
    a(f"v_and_b32 v{t2}, 3, v1")
    a(f"v_lshl_add_u32 v{t1}, v{t2}, 3, v{t1}")
    a(f"v_and_b32 v{t0}, 1, v{t0}")
    a(f"v_lshlrev_b32 v{t0}, 5, v{t0}")
    a(f"v_add_u32 v{de}, v{t1}, v{t0}")
    a(f"v_sub_u32 v{do}, v{t1}, v{t0}")

def qw_addr(a, d, t0=3, t1=30, t2=31):
    a(f"v_lshrrev_b32 v{t0}, 4, v1")
    a(f"v_mul_u32_u24 v{t1}, 3072, v{t0}")
    a(f"v_bfe_u32 v{t2}, v1, 2, 2")
    a(f"v_lshl_add_u32 v{t1}, v{t2}, 7, v{t1}")
    a(f"v_and_b32 v{d}, 3, v1")
    a(f"v_lshl_add_u32 v{t1}, v{d}, 3, v{t1}")
    a(f"v_lshrrev_b32 v{t2}, 1, v{t2}")
    a(f"v_and_b32 v{t0}, 1, v{t0}")
    a(f"v_lshl_or_b32 v{t2}, v{t0}, 1, v{t2}")
    a(f"v_lshl_add_u32 v{d}, v{t2}, 5, v{t1}")

ZSLOT = [56*1024, 84*1024, 112*1024, 0, 28*1024]
W1SL = [0, 12288, 28672, 40960, 57344, 69632, 86016, 98304]
QSLOT = [86016, 43008, 0]

def gelu_core(a, xs, ts, A3, A1, RI):
    for k, (x, t) in enumerate(zip(xs, ts)): a(f"v_pk_mul_f32 {V(t,2)}, {V(x,2)}, {V(x,2)}")
    for k, (x, t) in enumerate(zip(xs, ts)): a(f"v_pk_fma_f32 {V(t,2)}, {V(t,2)}, {A3[k][0]}, {A1[k][0]} {A3[k][1]}")
    for k, (x, t) in enumerate(zip(xs, ts)): a(f"v_pk_mul_f32 {V(t,2)}, {V(t,2)}, {V(x,2)}")
    for k, (x, t) in enumerate(zip(xs, ts)):
        a(f"v_exp_f32 v{t}, v{t}"); a(f"v_exp_f32 v{t+1}, v{t+1}")
    for k, (x, t) in enumerate(zip(xs, ts)): a(f"v_pk_fma_f32 {V(t,2)}, {V(t,2)}, {RI[k][0]}, {RI[k][0]} {RI[k][1]}")
    for k, (x, t) in enumerate(zip(xs, ts)):
        a(f"v_rcp_f32 v{t}, v{t}"); a(f"v_rcp_f32 v{t+1}, v{t+1}")
    for k, (x, t) in enumerate(zip(xs, ts)): a(f"v_pk_mul_f32 {V(x,2)}, {V(x,2)}, {V(t,2)}")

def zcount(a, dG, dN):
    a(f"s_mul_i32 s{dG}, s{sGRP}, 6")
    a(f"s_min_u32 s{dG}, s{dG}, 40")
    a(f"s_sub_u32 s{dN}, 40, s{dG}")
    a(f"s_min_u32 s{dN}, s{dN}, 6")
    a(f"s_cmp_eq_u32 s{sGRP}, 7")
    a(f"s_cselect_b32 s{dN}, 3, s{dN}")

def az_compute(a, fused):
    ACC, XR = 32, 128
    ONES, SUM, GRM, CWA = 28, 80, 88, 96
    ring = list(range(104, 128, 4))
    a(f"s_lshl_b32 s61, s{sQ}, 12")
    rowfrag_addr(a, 10, 11, "s61")
    zw_addr(a, 12, 13)
    a(f"s_bitcmp1_b32 s{sQ}, 0")
    a("s_cselect_b64 vcc, -1, 0")
    a("v_cndmask_b32 v18, v12, v13, vcc")
    a(f"s_lshl_b32 s61, s{sQ}, 5")
    a(f"s_and_b32 s62, s{sQ}, 1")
    a("s_lshl_b32 s62, s62, 5")
    a("s_add_u32 s62, s62, 128")
    a("v_add_u32 v19, s62, v18")
    a("v_add_u32 v18, s61, v18")
    for r in range(4): a(f"v_mov_b32 v{ONES+r}, 0x3f803f80")
    zcount(a, 55, 58)
    a(f"s_lshl_b32 s61, s{sQ}, 7")
    a(f"s_add_u32 s61, s61, {L_TAB}")
    a("v_and_b32 v3, 0x30, v1")
    a("v_add_u32 v4, s61, v3")
    a(f"v_add_u32 v7, {L_CW + 384}, v3")
    a("v_and_b32 v3, 15, v1")
    a("v_lshl_add_u32 v5, v3, 2, s61")
    a("v_lshlrev_b32 v3, 2, v3")
    a(f"v_add_u32 v6, {L_CW}, v3")
    a("v_lshlrev_b32 v8, 4, v1")
    a("v_lshlrev_b32 v9, 3, v1")
    a(f"s_lshl_b32 s61, s{sQ}, 6")
    a(f"s_and_b32 s62, s{sQ}, 1")
    a("s_lshl_b32 s62, s62, 6")
    a("s_add_u32 s62, s62, 256")
    a("v_add_u32 v22, s61, v6")
    a("v_add_u32 v23, s62, v6")
    a("v_add_u32 v24, s61, v7")
    a("v_add_u32 v25, s62, v7")
    a(f"s_lshl_b32 s57, s{sRB}, 2")
    a(f"s_add_u32 s57, s57, s{sQ}")
    a(f"s_lshl_b32 s53, s{sGRP}, 6")
    a("s_add_u32 s53, s53, s57")
    a("s_mul_i32 s53, s53, 6144")
    a(f"s_add_u32 s53, s53, {WS_Z2N}")
    a("s_mul_i32 s54, s57, 48")
    a("s_add_u32 s54, s54, s55")
    a("s_lshl_b32 s54, s54, 10")
    a(f"s_add_u32 s54, s54, {WS_Z1}")
    a(f"s_lshl_b32 s56, s{sRB}, 3")
    a(f"s_add_u32 s56, s56, s{sGRP}")
    a("s_lshl_b32 s56, s56, 2")
    a(f"s_add_u32 s56, s56, s{sQ}")
    a("s_lshl_b32 s56, s56, 9")
    a(f"s_add_u32 s56, s56, {WS_ST2}")
    def xreg(s, kk, T): return XR + ((s*2 + kk)*2 + T)*4
    def wfrag(step, kk, j):
        return dict(step=step, reg=None, reads=[(lambda r, hh=hh: f"ds_read_b64_tr_b16 {V(r+2*hh,2)}, v{16+(j&1)} offset:{j*32 + kk*6144 + hh*768}") for hh in range(2)])
    def cfrag(step, kk, t):
        return dict(step=step, reg=None, reads=[(lambda r, hh=hh: f"ds_read_b64_tr_b16 {V(r+2*hh,2)}, v{20+t} offset:{kk*6144 + hh*768}") for hh in range(2)])
    fr = {}; mf = []
    for s in range(8):
        for kk in range(2):
            for T in range(2):
                fr[('x', s, kk, T)] = dict(step=s, reg=xreg(s, kk, T), reads=[lambda r, kk=kk, T=T: f"ds_read_b128 {V(r)}, v{14+kk} offset:{T*2048}"])
            for j in range(6):
                fr[('w', s, kk, j)] = wfrag(s, kk, j)
                for T in range(2): mf.append((ACC + (j*2+T)*4, ('x', s, kk, T), ('w', s, kk, j)))
                if j in (1, 3):
                    T = j >> 1
                    mf.append((SUM+4*T, 'ones', ('x', s, kk, T)))
                    mf.append((GRM+4*T, ('x', s, kk, T), ('x', s, kk, T)))
                if j in (2, 5):
                    t = j // 3
                    fr[('c', s, kk, t)] = cfrag(s, kk, t)
                    mf.append((CWA+4*t, 'ones', ('c', s, kk, t)))
    fr['ones'] = dict(step=0, reg=ONES, reads=None)
    def pre1(s):
        for r in range(2): a(f"v_add_u32 v{14+r}, {ZSLOT[s % 5]}, v{10+r}")
        for r in range(2): a(f"v_add_u32 v{16+r}, {ZSLOT[s % 5] + 16384}, v{12+r}")
        for r in range(2): a(f"v_add_u32 v{20+r}, {ZSLOT[s % 5] + 16384}, v{18+r}")
    l2_setup(a, 26)
    for r in range(2, 4): a(f"v_mov_b32 v{ONES+r}, 0x3f803f80")
    a.stamp()
    gemm_stream(a, mf, fr, ring, opt('LA', 10), opt('cover', 3), pre1, stamps=(0, 1, 4), hooks=l2_hooks(a, 26))
    a.stamp()
    for T in range(2): diag_sel(a, 104+T, GRM+4*T)
    for T in range(2): row_finalize(a, SUM+4*T, 104+T, 0)
    a(f"ds_write_b32 v22, v{CWA}")
    a(f"ds_write_b32 v23, v{CWA+4}")
    for T in range(2): a(f"v_rsq_f32 v{106+T}, v{104+T}")
    for T in range(2): a(f"v_sqrt_f32 v{104+T}, v{104+T}")
    for T in range(2): a(f"v_mul_f32 v{108+T}, v{106+T}, v{106+T}")
    for T in range(2): a(f"v_mul_f32 v{108+T}, v{108+T}, v{106+T}")
    for T in range(2): a(f"v_mul_f32 v{108+T}, {f2u(-C2):#x}, v{108+T}")
    for T in range(2): a(f"v_mul_f32 v{106+T}, {f2u(-C1):#x}, v{106+T}")
    a(f"s_mov_b32 exec_lo, {DIAG_LO:#x}\ns_mov_b32 exec_hi, {DIAG_HI:#x}")
    for T in range(2):
        for k, r in enumerate((SUM+4*T, 108+T, 106+T, 104+T)): a(f"ds_write_b32 v5, v{r} offset:{64*T + TP*k}")
    a("s_mov_b64 exec, -1")
    for r in range(112, 128): a(f"v_mov_b32 v{r}, 0")
    a("s_waitcnt lgkmcnt(0)")
    for T in range(2):
        for k in range(4): a(f"ds_read_b128 {V(80+16*T+4*k)}, v4 offset:{64*T + TP*k}")
    a("s_barrier")
    CWR = [10, 11, 14, 15, 16, 17]
    for j in range(6): a(f"ds_read_b32 v{CWR[j]}, v6 offset:{64*j}")
    a(f"v_mov_b32 v3, {L_MISC + 256}")
    a("ds_read_b32 v31, v3")
    a(f"s_mul_i32 s61, s{sQ}, 6144")
    a(f"s_add_u32 s61, s61, {L_PARK}")
    a("v_add_u32 v30, s61, v8")
    a("s_waitcnt lgkmcnt(0)")
    for j in range(6):
        skip = a.label("Lz2skip")
        a(f"s_cmp_gt_u32 s58, {j}")
        a(f"s_cbranch_scc0 {skip}")
        xs = [ACC + (j*2+T)*4 + 2*p for T in range(2) for p in range(2)]
        tb = [80 + 16*T + 2*p for T in range(2) for p in range(2)]
        sel = f"op_sel:[0,{j&1},0] op_sel_hi:[1,{j&1},1]"
        for x, t in zip(xs, tb): a(f"v_pk_fma_f32 {V(x,2)}, {V(t,2)}, {V(CWR[j&~1],2)}, {V(x,2)} {sel} neg_lo:[1,0,0] neg_hi:[1,0,0]")
        gelu_core(a, xs, [20, 22, 26, 28], [(V(t+4,2), "") for t in tb], [(V(t+8,2), "") for t in tb], [(V(t+12,2), "") for t in tb])
        for k, x in enumerate(xs): a(f"v_pk_add_f32 {V(112+2*k,2)}, {V(112+2*k,2)}, {V(x,2)}")
        for k, x in enumerate(xs): a(f"v_pk_fma_f32 {V(120+2*k,2)}, {V(x,2)}, {V(x,2)}, {V(120+2*k,2)}")
        e, o = ACC + j*8, ACC + j*8 + 4
        for i in range(4): a(f"v_cvt_pk_bf16_f32 v{e+i}, v{e+i}, v{o+i}")
        a(f"ds_write_b128 v30, {V(e)} offset:{j*1024}")
        a(f"{skip}:")
    def val(i, T, st): return 112 + 8*st + 4*T + i
    for st in range(2):
        for T in range(2):
            for i in range(2):
                A, B = val(i, T, st), val(i+2, T, st)
                a(f"v_add_f32_dpp v{A}, v{A}, v{A} row_ror:8 row_mask:0xf bank_mask:0x3")
                a(f"v_add_f32_dpp v{A}, v{B}, v{B} row_ror:8 row_mask:0xf bank_mask:0xc")
    a("s_mov_b32 s60, 0x22222222\ns_mov_b32 s61, 0x22222222")
    for st in range(2):
        for T in range(2):
            A, B = val(0, T, st), val(1, T, st)
            a(f"v_add_f32_dpp v{A}, v{A}, v{A} row_half_mirror row_mask:0xf bank_mask:0x5")
            a(f"v_add_f32_dpp v{A}, v{B}, v{B} row_half_mirror row_mask:0xf bank_mask:0xa")
    a("s_mov_b32 s62, 0x44444444\ns_mov_b32 s63, 0x44444444")
    for qp in ("[1,0,3,2]", "[2,3,0,1]"):
        for st in range(2):
            for T in range(2):
                A = val(0, T, st)
                a(f"v_add_f32_dpp v{A}, v{A}, v{A} quad_perm:{qp} row_mask:0xf bank_mask:0xf")
    a(f"v_cndmask_b32 v112, v{val(0,0,0)}, v{val(0,0,1)}, s[60:61]")
    a("s_mov_b32 s60, 0x88888888\ns_mov_b32 s61, 0x88888888")
    a(f"v_cndmask_b32 v112, v112, v{val(0,1,0)}, s[62:63]")
    a(f"v_cndmask_b32 v112, v112, v{val(0,1,1)}, s[60:61]")
    a("v_mov_b32 v113, v31")
    a.vmem(f"buffer_store_dwordx2 {V(112,2)}, v9, {S4(WS_)}, s56 offen sc1", "st")
    a.stamp()
    fr = {}; mf = []
    for u in range(8):
        for kk in range(2):
            for T in range(2): fr[('x', u, kk, T)] = dict(step=u, reg=xreg(u, kk, T), reads=None)
            for j in range(6):
                fr[('w', u, kk, j)] = wfrag(u, kk, j)
                for T in range(2): mf.append((ACC + (j*2+T)*4, ('w', u, kk, j), ('x', u, kk, T)))
                if j in (2, 5):
                    t = j // 3
                    fr[('c', u, kk, t)] = cfrag(u, kk, t)
                    mf.append((120+4*t, ('c', u, kk, t), 'ones'))
    fr['ones'] = dict(step=0, reg=ONES, reads=None)
    for r in range(4): a(f"v_mov_b32 v{ONES+r}, 0x3f803f80")
    a("s_waitcnt lgkmcnt(0)")
    def pre2(u):
        for r in range(2): a(f"v_add_u32 v{16+r}, {W1SL[u]}, v{12+r}")
        for r in range(2): a(f"v_add_u32 v{20+r}, {W1SL[u]}, v{18+r}")
    ring2 = list(range(80, 112, 4))
    gemm_stream(a, mf, fr, ring2, opt('LA', 10), opt('cover', 3), pre2, nobar=1)
    a.stamp()
    for T in range(2):
        for k in range(4): a(f"ds_read_b32 v{104+4*k+2*T}, v5 offset:{64*T + TP*k}")
    a("s_mov_b32 exec_lo, 0x00010001\ns_mov_b32 exec_hi, 0x00010001")
    a(f"ds_write_b128 v24, {V(120)}")
    a(f"ds_write_b128 v25, {V(124)}")
    a("s_mov_b64 exec, -1")
    a("s_waitcnt lgkmcnt(0)")
    a.vmall()
    a("s_barrier")
    for j in range(6): a(f"ds_read_b128 {V(80+4*j)}, v7 offset:{64*j}")
    a("s_waitcnt lgkmcnt(0)")
    for j in range(6):
        skip = a.label("Lz1skip")
        a(f"s_cmp_gt_u32 s58, {j}")
        a(f"s_cselect_b32 s61, s54, {OOB}")
        a(f"s_cbranch_scc0 {skip}")
        xs = [ACC + (j*2+T)*4 + 2*p for T in range(2) for p in range(2)]
        for k, x in enumerate(xs): a(f"v_pk_fma_f32 {V(x,2)}, {V(80+4*j+2*(k%2),2)}, {V(104+2*(k//2),2)}, {V(x,2)} op_sel_hi:[1,0,1] neg_lo:[1,0,0] neg_hi:[1,0,0]")
        b = "op_sel_hi:[1,0,0]"
        gelu_core(a, xs, [20, 22, 26, 28], [(V(108+2*(k//2),2), b) for k in range(4)], [(V(112+2*(k//2),2), b) for k in range(4)], [(V(116+2*(k//2),2), b) for k in range(4)])
        e = ACC + j*8
        for k, x in enumerate(xs): a(f"v_cvt_pk_bf16_f32 v{e+k}, v{x}, v{x+1}")
        a("s_nop 1")
        for p in range(2): a(f"v_permlane32_swap_b32 v{e+p}, v{e+2+p}")
        a(f"{skip}:")
        if j >= 4: a("s_add_u32 s61, s61, 4096")
        a.vmem(f"buffer_store_dwordx4 {V(e)}, v8, {S4(WS_)}, s61 offen offset:{(j%4)*1024} sc1", "z1")
    a.stamp()

def red_g(a, regs, op="v_add_f32", tmp=60):
    n = len(regs)
    for sw in ("v_permlane32_swap_b32", "v_permlane16_swap_b32"):
        for k, r in enumerate(regs): a(f"v_mov_b32 v{tmp+k}, v{r}")
        if n < 3: a("s_nop 1")
        for k, r in enumerate(regs): a(f"{sw} v{r}, v{tmp+k}")
        for k, r in enumerate(regs): a(f"{op} v{r}, v{r}, v{tmp+k}")

def wsp_setup_h(a):
    rowtile_voffs(a, 8, 9, 12)
    a(f"s_lshl_b32 s59, s{sRB}, 2")
    a(f"s_add_u32 s59, s59, s{sQ}")
    a("s_lshl_b32 s59, s59, 17")
    a(f"s_lshl_b32 s61, s{sKS}, 11")
    a("s_add_u32 s59, s59, s61")

def wsp_group_h(a, v):
    a(f"s_add_u32 s61, s{sK0B}, {v}")
    a("s_and_b32 s61, s61, 15")
    a("s_lshl_b32 s61, s61, 7")
    a("s_add_u32 s61, s61, s59")
    a(f"s_add_u32 m0, s60, {(v % NWS) * 16384}")
    a("s_add_u32 s62, s61, 4096")
    a.vmem(f"buffer_load_dwordx4 v8, {S4(WSP_)}, s61 offen lds", ("S", v))
    a.vmem(f"buffer_load_dwordx4 v9, {S4(WSP_)}, s61 offen offset:1024 lds", ("S", v))
    a(f"s_add_u32 m0, s60, {(v % NWS) * 16384 + 2048}")
    a("s_nop 0")
    a.vmem(f"buffer_load_dwordx4 v8, {S4(WSP_)}, s62 offen lds", ("S", v))
    a.vmem(f"buffer_load_dwordx4 v9, {S4(WSP_)}, s62 offen offset:1024 lds", ("S", v))

def l2_setup(a, d):
    a("v_lshrrev_b32 v31, 1, v1")
    a("v_lshlrev_b32 v31, 12, v31")
    a("v_and_b32 v30, 1, v1")
    a(f"v_lshl_add_u32 v{d}, v30, 7, v31")
    a(f"v_lshlrev_b32 v{d+1}, 7, v1")
    a(f"s_lshl_b32 s68, s{sRB}, 2")
    a(f"s_add_u32 s68, s68, s{sQ}")
    a("s_lshl_b32 s68, s68, 17")
    a(f"s_lshl_b32 s61, s{sKS}, 3")
    a(f"s_add_u32 s61, s61, s{sCG}")
    a("s_lshl_b32 s61, s61, 8")
    a("s_add_u32 s68, s68, s61")
    a("s_lshr_b32 s61, s2, 3")
    a("s_lshl_b32 s61, s61, 2")
    a(f"s_add_u32 s61, s61, s{sQ}")
    a("s_lshl_b32 s69, s61, 12")
    a(f"s_mul_i32 s70, s61, {43*128}")
    a(f"s_mov_b32 m0, {L_MISC}")
def l2_hooks(a, d):
    o = opt('l2step', 7)
    def h0(): a.vmem(f"buffer_load_dword v{d}, {S4(WSP_)}, s68 offen {'nt' if opt('l2nt', 0) else ''} lds", "pf")
    def h1():
        a("s_mov_b32 exec_hi, 0")
        a.vmem(f"buffer_load_dword v{d+1}, {S4(WO_)}, s69 offen lds", "pf")
        a("s_mov_b32 exec_hi, 0x7ff")
        a.vmem(f"buffer_load_dword v{d+1}, {S4(WOUT_)}, s70 offen lds", "pf")
        a("s_mov_b32 exec_hi, -1")
    return {o: h0, opt('l2step2', 5): h1} if opt('l2pf', 1) else {}

def x_group_h(a, step, sl, tag):
    a(f"s_add_u32 s61, s{sK0A}, {step}")
    a("s_and_b32 s61, s61, 7")
    a("s_lshl_b32 s58, s61, 7")
    a("s_add_u32 s62, s58, s53")
    a(f"s_add_u32 m0, s60, {sl}")
    a("s_add_u32 s63, s62, 1024")
    a.vmem(f"buffer_load_dwordx4 v4, {S4(X_)}, s62 offen lds", tag)
    a.vmem(f"buffer_load_dwordx4 v5, {S4(X_)}, s62 offen offset:1024 lds", tag)
    a(f"s_add_u32 m0, s60, {sl + 2048}")
    a("s_nop 0")
    a.vmem(f"buffer_load_dwordx4 v4, {S4(X_)}, s63 offen lds", tag)
    a.vmem(f"buffer_load_dwordx4 v5, {S4(X_)}, s63 offen offset:1024 lds", tag)

def dots_x(a, fr, acc_s, acc_q, ones):
    for i in range(4):
        a(f"v_dot2_f32_bf16 v{acc_s}, v{fr+i}, v{ones}, v{acc_s}")
        a(f"v_dot2_f32_bf16 v{acc_q}, v{fr+i}, v{fr+i}, v{acc_q}")

def diag_sel(a, dst, gram):
    a("s_mov_b32 s62, 0x22222222\ns_mov_b32 s63, 0x22222222")
    a(f"v_cndmask_b32 v{dst}, v{gram}, v{gram+1}, s[62:63]")
    a("s_mov_b32 s62, 0x44444444\ns_mov_b32 s63, 0x44444444")
    a(f"v_cndmask_b32 v{dst}, v{dst}, v{gram+2}, s[62:63]")
    a("s_mov_b32 s62, 0x88888888\ns_mov_b32 s63, 0x88888888")
    a(f"v_cndmask_b32 v{dst}, v{dst}, v{gram+3}, s[62:63]")
DIAG_LO, DIAG_HI = 0x00f0000f, 0xf0000f00

def row_finalize(a, s_, q_, t):
    a(f"v_mul_f32 v{s_}, {f2u(1.0/512):#x}, v{s_}")
    a(f"v_mul_f32 v{q_}, {f2u(1.0/512):#x}, v{q_}")
    a(f"v_fma_f32 v{q_}, -v{s_}, v{s_}, v{q_}")
    a(f"v_max_f32 v{q_}, 0, v{q_}")
    a(f"v_add_f32 v{q_}, {f2u(1e-5):#x}, v{q_}")

def nonce_publish(a):
    a(f"s_or_b32 s61, s2, s{sQ}")
    a("s_cmp_eq_u32 s61, 0")
    a("s_cselect_b32 s61, 0, 256")
    a("s_or_b32 s62, s84, 1")
    a("v_mov_b32 v30, s62")
    a("v_mov_b32 v31, 0")
    a("s_mov_b64 exec, 1")
    a.vmem(f"buffer_store_dword v30, v31, {S4(DBG_)}, s61 offen sc1", "nonce")
    a("s_mov_b64 exec, -1")

def nonce_check(a):
    a.vmwait("poll")
    def chk():
        a(f"v_readfirstlane_b32 s{sT}, v25")
        a(f"s_cmp_lg_u32 s{sT}, 0")
    def iss():
        a("v_mov_b32 v31, 0")
        a(f"buffer_load_dword v25, v31, {S4(DBG_)}, 0 offen sc1")
    spin(a, iss, chk)

def wave_flag(a):
    a(f"s_lshl_b32 s61, s{sGRP}, 4")
    a(f"s_add_u32 s61, s61, s{sRB}")
    a("s_lshl_b32 s61, s61, 2")
    a(f"s_add_u32 s61, s61, s{sQ}")
    a("s_lshl_b32 s61, s61, 7")
    a(f"s_add_u32 s61, s61, {F1_OFF}")
    a(f"v_mov_b32 v30, s{sT}")
    a("v_mov_b32 v31, 0")
    a("s_mov_b64 exec, 1")
    a.vmem(f"buffer_store_dword v30, v31, {S4(WS_)}, s61 offen sc1", "flag")
    a("s_mov_b64 exec, -1")

def spin(a, issue, check_ok, limit=0x40000):
    lp = a.label("Lspin"); ok = a.label("Lok")
    check_ok()
    a(f"s_cbranch_scc1 {ok}")
    a("s_mov_b32 s63, 0")
    a(f"{lp}:")
    issue()
    a("s_waitcnt vmcnt(0)")
    a("s_add_u32 s63, s63, 1")
    a(f"s_cmp_gt_u32 s63, {limit}")
    a(f"s_cbranch_scc1 {ok}")
    check_ok()
    a(f"s_cbranch_scc0 {lp}")
    a(f"{ok}:")

def az_helper(a, fused):
    srd(a, WA_, 72, D*F2*2)
    rowtile_voffs(a, 4, 5, 10)
    for i in range(3):
        a(f"v_add_u32 v3, {64*i}, v1")
        a("v_mul_u32_u24 v30, 683, v3")
        a("v_lshrrev_b32 v30, 13, v30")
        a("v_mul_u32_u24 v31, 12, v30")
        a("v_sub_u32 v31, v3, v31")
        a("v_lshrrev_b32 v3, 2, v30")
        a("v_and_b32 v3, 2, v3")
        a("v_xor_b32 v31, v3, v31")
        a("v_mul_u32_u24 v30, 2752, v30")
        a(f"v_lshl_add_u32 v{20+i}, v31, 4, v30")
        if i: a(f"v_subrev_u32 v{20+i}, {1024*i}, v{20+i}")
    a(f"s_lshl_b32 s53, s{sRB}, 2")
    a(f"s_add_u32 s53, s53, s{sQ}")
    a("s_lshl_b32 s53, s53, 15")
    a(f"s_mul_i32 s55, s{sGRP}, 6")
    a("s_min_u32 s55, s55, 40")
    a(f"s_mul_i32 s54, s{sQ}, {16*2752}")
    a("s_lshl_b32 s61, s55, 5")
    a("s_add_u32 s54, s54, s61")
    a(f"s_mul_i32 s56, s{sQ}, 3072")
    a(f"s_lshl_b32 s60, s{sQ}, 12")
    def wgroup(kreg_ready, step, dst, add, tag):
        if not kreg_ready:
            a(f"s_add_u32 s61, s{sK0A}, {step}")
            a("s_and_b32 s61, s61, 7")
        a(f"s_mul_i32 s63, s61, {64*2752}")
        a("s_add_u32 s63, s63, s54")
        a(f"s_add_u32 m0, s56, {dst}")
        if add: a(f"s_add_u32 s63, s63, {add}")
        else: a("s_nop 0")
        for i in range(3):
            a.vmem(f"buffer_load_dwordx4 v{20+i}, {S4(WA_)}, s63 offen offset:{1024*i} lds", tag)
    def ga(step):
        x_group_h(a, step, ZSLOT[step % 5], ("A", step))
        wgroup(True, step, ZSLOT[step % 5] + 16384, 1376, ("A", step))
    npro = opt('proZ', 2)
    ga(0)
    nonce_publish(a)
    for st in range(1, npro): ga(st)
    late_srds(a)
    wsp_setup_h(a)
    a("v_lshlrev_b32 v10, 3, v1")
    a(f"s_lshl_b32 s64, s{sRB}, 5")
    a(f"s_add_u32 s64, s64, s{sQ}")
    a("s_lshl_b32 s64, s64, 9")
    a(f"s_add_u32 s64, s64, {WS_ST2}")
    a("s_add_u32 s65, s64, 4096\ns_add_u32 s66, s64, 8192\ns_add_u32 s67, s64, 12288")
    a("v_lshlrev_b32 v11, 4, v1")
    a(f"s_mul_i32 s61, s{sQ}, 6144")
    a(f"s_add_u32 s61, s61, {L_PARK}")
    a("v_add_u32 v11, s61, v11")
    a(f"s_lshl_b32 s61, s{sQ}, 8")
    a(f"s_add_u32 s61, s61, {L_XCH}")
    a("v_lshrrev_b32 v12, 1, v1")
    a("v_lshl_add_u32 v12, v12, 2, s61")
    a("v_lshrrev_b32 v13, 4, v1")
    a("v_lshl_add_u32 v13, v13, 5, s61")
    a("v_lshrrev_b32 v3, 5, v1")
    a("v_mul_u32_u24 v3, 3072, v3")
    a("v_bfe_u32 v30, v1, 4, 1")
    a("v_lshl_add_u32 v3, v30, 9, v3")
    a("v_and_b32 v30, 15, v1")
    a("v_lshl_add_u32 v14, v30, 4, v3")
    a(f"s_lshl_b32 s57, s{sGRP}, 4")
    a(f"s_add_u32 s57, s57, s{sRB}")
    a("s_lshl_b32 s57, s57, 2")
    a(f"s_add_u32 s57, s57, s{sQ}")
    a("s_mul_i32 s57, s57, 6144")
    a(f"s_add_u32 s57, s57, {WS_Z2N}")
    a("v_mov_b32 v16, 0xffff0000")
    a.stamp()
    for s in range(8):
        a.vmwait(("A", s))
        a("s_barrier")
        if s in (0, 1, 4): a.stamp()
        if s == 0:
            for st in range(npro, 5): ga(st)
        elif s <= 3: ga(s + 4)
        else:
            if s == 5:
                a("v_mov_b32 v31, 0")
                a.vmem(f"buffer_load_dword v25, v31, {S4(DBG_)}, 0 offen sc1", "poll")
            for u in (2*(s-4), 2*(s-4)+1): wgroup(False, u, W1SL[u], 0, ("W1", u))
    nonce_check(a)
    a(f"v_mov_b32 v30, s{sT}")
    a(f"v_mov_b32 v31, {L_MISC + 256}")
    a("ds_write_b32 v31, v30")
    a("s_waitcnt lgkmcnt(0)")
    a.stamp()
    a("s_barrier")
    a.vmall()
    a("s_barrier")
    a(f"s_setprio {opt('nprio', 3)}")
    for j in range(6): a(f"ds_read_b128 {V(64+4*j)}, v11 offset:{1024*j}")
    def iss():
        for c in range(8):
            a(f"buffer_load_dwordx2 {V(32+2*c,2)}, v10, {S4(WS_)}, s{64 + (c>>1)} offen offset:{2048*(c&1)} sc1")
    def chk():
        for c in range(8): a(f"v_xor_b32 v{48+c}, s{sT}, v{33+2*c}")
        a("v_or3_b32 v48, v48, v49, v50\nv_or3_b32 v51, v51, v52, v53\nv_or3_b32 v48, v48, v54, v55")
        a("v_or_b32 v48, v48, v51")
        a("v_cmp_ne_u32 vcc, 0, v48")
        a("s_cmp_eq_u64 vcc, 0")
    a("s_waitcnt lgkmcnt(0)")
    for j in range(6):
        for w in range(4):
            a(f"v_lshlrev_b32 v{96+8*j+2*w}, 16, v{64+4*j+w}")
            a(f"v_and_b32 v{96+8*j+2*w+1}, v16, v{64+4*j+w}")
    zcount(a, 62, 58)
    iss(); a("s_waitcnt vmcnt(0)")
    spin(a, iss, chk)
    a.stamp()
    for k in (2, 4, 6): a(f"v_add_f32 v{32+2*k}, v{32+2*k}, v{34+2*k}")
    a("v_add_f32 v32, v32, v34")
    a("v_add_f32 v36, v36, v40")
    a("v_add_f32 v32, v32, v44")
    a("v_add_f32 v32, v32, v36")
    a(f"v_mul_f32 v32, {f2u(1.0/688):#x}, v32")
    a("s_nop 1")
    a("v_mov_b32_dpp v33, v32 quad_perm:[1,0,3,2] row_mask:0xf bank_mask:0xf")
    a("v_fma_f32 v33, -v32, v32, v33")
    a("v_max_f32 v33, 0, v33")
    a(f"v_add_f32 v33, {f2u(1e-5):#x}, v33")
    a("v_rsq_f32 v33, v33")
    a("s_mov_b32 exec_lo, 0x55555555\ns_mov_b32 exec_hi, 0x55555555")
    a("v_mul_f32_e64 v32, -v32, v33")
    a("ds_write_b32 v12, v33")
    a("ds_write_b32 v12, v32 offset:128")
    a("s_mov_b64 exec, -1")
    a("s_waitcnt lgkmcnt(0)")
    for k in range(2): a(f"ds_read_b128 {V(32+4*k)}, v13 offset:{16*k}")
    for k in range(2): a(f"ds_read_b128 {V(40+4*k)}, v13 offset:{128 + 16*k}")
    for j in range(6):
        z = 64 + 4*j; u = 96 + 8*j
        if j == 0: a("s_waitcnt lgkmcnt(0)")
        for w in range(8): a(f"v_fma_f32 v{u+w}, v{u+w}, v{32+w}, v{40+w}")
        for w in range(4): a(f"v_cvt_pk_bf16_f32 v{z+w}, v{u+2*w}, v{u+2*w+1}")
        a(f"s_cmp_gt_u32 s58, {j}")
        a(f"s_cselect_b32 s61, s57, {OOB}")
        a.vmem(f"buffer_store_dwordx4 {V(z)}, v14, {S4(WS_)}, s61 offen offset:{(j>>1)*1024 + (j&1)*256} sc1", "z2n")
    a("s_setprio 0")
    a.stamp()
    a.vmwait("z2n")
    wave_flag(a)
    a.stamp()
    a("s_barrier")
    for v in range(opt('wpre', 3)): wsp_group_h(a, v)

def aq_compute(a, fused):
    AQ, AK, AV, HK, HV = 32, 64, 96, 128, 136
    ONES, SUM, GRM, XA = 28, 224, 232, 240
    CWQ = [128, 132, 136, 140, 240, 244]
    ring = list(range(144, 200, 4))
    MC, MPN, MPA, MB = 200, 204, 208, 216
    a(f"s_lshr_b32 s5, s{sQ}, 1")
    a(f"s_and_b32 s46, s{sQ}, 1")
    a("s_lshl_b32 s61, s5, 13")
    rowfrag_addr(a, 10, 11, "s61")
    rowfrag_addr(a, 12, 13, 16384)
    qw_addr(a, 14)
    a("v_add_u32 v14, 18432, v14")
    a("s_lshl_b32 s61, s46, 6")
    a("v_xor_b32 v14, s61, v14")
    a("v_xor_b32 v15, 32, v14")
    a("v_and_b32 v3, 15, v1")
    a("v_lshrrev_b32 v30, 4, v1")
    a("v_lshlrev_b32 v30, 2, v30")
    a("v_sub_u32 v31, v3, v30")
    a(f"v_mov_b32 v224, {NEG:#x}")
    a("v_mov_b32 v225, 0xffff")
    a("v_mov_b32 v226, 0xffff0000")
    for i in range(4):
        a(f"v_subrev_u32 v227, {i}, v31")
        a("v_cmp_gt_u32 vcc, 8, v227")
        a("v_cmp_gt_i32 s[62:63], -8, v227")
        a("s_nop 0")
        a(f"v_cndmask_b32_e64 v{MC+i}, v224, 0, vcc")
        a(f"v_cndmask_b32_e64 v{228+i}, 0, v{225 + (i&1)}, vcc")
        a(f"v_cndmask_b32_e64 v{MPN+i}, v224, 0, s[62:63]")
    a(f"v_or_b32 v{MB}, v228, v229")
    a(f"v_or_b32 v{MB+1}, v230, v231")
    a("s_lshl_b32 s61, s5, 8")
    a(f"s_add_u32 s61, s61, {L_TAB}")
    a("v_and_b32 v27, 0x30, v1")
    a("v_add_u32 v218, s61, v27")
    a("v_lshl_add_u32 v219, v3, 2, s61")
    a("s_lshl_b32 s61, s46, 7")
    a(f"s_add_u32 s61, s61, {L_CW}")
    a("v_add_u32 v220, s61, v27")
    a("v_lshl_add_u32 v221, v3, 2, s61")
    a("v_lshlrev_b32 v222, 4, v1")
    a("s_lshl_b32 s61, s46, 12")
    a(f"s_add_u32 s61, s61, {L_XCH}")
    a("v_add_u32 v223, s61, v222")
    a(f"s_lshl_b32 s53, s{sRB}, 1")
    a("s_add_u32 s53, s53, s5")
    a("s_lshl_b32 s53, s53, 4")
    a(f"s_add_u32 s53, s53, s{sGRP}")
    a("s_lshl_b32 s53, s53, 1")
    a("s_add_u32 s53, s53, s46")
    a("s_lshl_b32 s53, s53, 11")
    a(f"s_add_u32 s53, s53, {WS_O}")
    a("s_add_u32 s54, s53, 32768")
    a("v_lshrrev_b32 v27, 4, v1")
    a("v_lshlrev_b32 v27, 9, v27")
    a("v_lshl_add_u32 v4, v3, 4, v27")
    AT = 16
    def build(halo, hp):
        fr = {'ones': dict(step=0, reg=ONES, reads=None)}; mf = []
        for s in range(8):
            for kk in range(2):
                for tl in range(4):
                    fr[('x', s, kk, tl)] = dict(step=s, reg=None, reads=[lambda r, kk=kk, tl=tl: f"ds_read_b128 {V(r)}, v{AT+kk} offset:{tl*2048}"])
                fr[('h', s, kk)] = dict(step=s, reg=None, reads=[lambda r, kk=kk: f"ds_read_b128 {V(r)}, v{AT+2+kk}"])
                for m in range(3):
                    for e in range(2):
                        w = ('w', s, kk, m, e)
                        fr[w] = dict(step=s, reg=None, reads=[(lambda r, hh=hh, kk=kk, m=m, e=e: f"ds_read_b64_tr_b16 {V(r+2*hh,2)}, v{AT+4+e} offset:{kk*12288 + m*1024 + hh*512}") for hh in range(2)])
                        for tl in range(4):
                            d = (AQ, AK, AV)[m] + (e*4+tl)*4
                            mf.append((d, w, ('x', s, kk, tl)) if m < 2 else (d, ('x', s, kk, tl), w))
                        if halo and m == 1: mf.append((HK+4*e, w, ('h', s, kk)))
                        if halo and m == 2: mf.append((HV+4*e, ('h', s, kk), w))
                        if not halo: mf.append((CWQ[m*2+e], 'ones', w))
                        if m == 0:
                            x = ('x', s, kk, 2*hp+e)
                            mf.append((SUM+4*e, 'ones', x)); mf.append((GRM+4*e, x, x))
                        if halo and hp == 0 and m == 1:
                            mf.append((XA, 'ones', ('h', s, kk)) if e == 0 else (XA+4, ('h', s, kk), ('h', s, kk)))
        return mf, fr
    def stats_out(halo, hp):
        jobs = [(SUM, GRM, 128*hp), (SUM+4, GRM+4, 128*hp + 64)]
        if halo and hp == 0: jobs.append((XA, XA+4, 512))
        for k, (s_, g_, o) in enumerate(jobs): diag_sel(a, 144+k, g_)
        if not halo:
            for k in range(6): a(f"ds_write_b32 v221, v{CWQ[k]} offset:{256*(k>>1) + 64*(k&1)}")
        for k, (s_, g_, o) in enumerate(jobs): row_finalize(a, s_, 144+k, 0)
        for k, (s_, g_, o) in enumerate(jobs): a(f"v_rsq_f32 v{144+k}, v{144+k}")
        a(f"s_mov_b32 exec_lo, {DIAG_LO:#x}\ns_mov_b32 exec_hi, {DIAG_HI:#x}")
        for k, (s_, g_, o) in enumerate(jobs):
            a(f"ds_write_b32 v219, v{s_} offset:{o}")
            a(f"ds_write_b32 v219, v{144+k} offset:{o + TP}")
        a("s_mov_b64 exec, -1")
    def pre(s):
        for r in range(6): a(f"v_add_u32 v{AT+r}, {QSLOT[s % 3]}, v{10+r}")
    a("v_mov_b32 v26, v30")
    l2_setup(a, 5)
    a("v_mov_b32 v30, v26")
    lr1 = a.label("Lrh1"); lj = a.label("Lqj")
    a("s_cmp_lg_u32 s5, 0")
    a(f"s_cbranch_scc1 {lr1}")
    a("v_lshlrev_b32 v3, 1, v3")
    a("v_sub_u32 v31, v30, v3")
    a(f"s_cmp_eq_u32 s{sRB}, 0")
    a("s_cselect_b32 s61, 1000, 0")
    a("v_subrev_u32 v31, s61, v31")
    for T in range(2):
        for i in range(4):
            if (i ^ T) & 1:
                a(f"v_mov_b32 v{MPA+4*T+i}, v224")
            else:
                a(f"v_cmp_le_i32 vcc, {T + 2 - i}, v31")
                a("s_nop 1")
                a(f"v_cndmask_b32_e64 v{MPA+4*T+i}, v224, 0, vcc")
    n0 = a.nst
    for halo in (True, False):
        if not halo:
            a(f"{lr1}:")
            for i in range(8): a(f"v_mov_b32 v{MPA+i}, v{MPN+(i&3)}")
        lh1 = a.label("Lhp1")
        for r in range(4): a(f"v_mov_b32 v{ONES+r}, 0x3f803f80")
        a("s_cmp_lg_u32 s46, 0")
        a(f"s_cbranch_scc1 {lh1}")
        for hp in range(2):
            if hp: a(f"{lh1}:")
            a.nst = n0
            a.stamp()
            mf, fr = build(halo, hp)
            vm0 = list(a.vm)
            gemm_stream(a, mf, fr, ring, opt('LA', 10), opt('cover', 3), pre, stamps=(0, 1, 4), hooks=l2_hooks(a, 5))
            vm1 = list(a.vm); a.vm = vm0
            a.stamp()
            stats_out(halo, hp)
            a(f"s_branch {lj}")
    a(f"{lj}:")
    a.vm = vm1
    a("s_waitcnt lgkmcnt(0)")
    a("s_barrier")
    for k in range(2): a(f"ds_read_b128 {V(152+4*k)}, v220 offset:{256 + 64*k}")
    for tl in range(4):
        a(f"ds_read_b32 v{162+tl}, v219 offset:{64*tl}")
        a(f"ds_read_b32 v{166+tl}, v219 offset:{64*tl + TP}")
    for e in range(2): a(f"ds_read_b32 v{160+e}, v221 offset:{512 + 64*e}")
    a("s_waitcnt lgkmcnt(2)")
    for tl in range(4):
        a(f"ds_read_b128 {V(172+4*tl)}, v218 offset:{64*tl}")
        a(f"ds_read_b128 {V(10+4*tl)}, v218 offset:{64*tl + TP}")
    for k in range(2): a(f"ds_read_b128 {V(144+4*k)}, v220 offset:{64*k}")
    def corr_t(x, cw, mreg, rreg):
        for p in range(2): a(f"v_pk_fma_f32 {V(x+2*p,2)}, {V(cw+2*p,2)}, {V(mreg&~1,2)}, {V(x+2*p,2)} op_sel:[0,{mreg&1},0] op_sel_hi:[1,{mreg&1},1] neg_lo:[1,0,0] neg_hi:[1,0,0]")
        for p in range(2): a(f"v_pk_mul_f32 {V(x+2*p,2)}, {V(x+2*p,2)}, {V(rreg&~1,2)} op_sel:[0,{rreg&1}] op_sel_hi:[1,{rreg&1}]")
    def corr_c(x, mv, rv, cw):
        for p in range(2): a(f"v_pk_fma_f32 {V(x+2*p,2)}, {V(mv+2*p,2)}, {V(cw&~1,2)}, {V(x+2*p,2)} op_sel:[0,{cw&1},0] op_sel_hi:[1,{cw&1},1] neg_lo:[1,0,0] neg_hi:[1,0,0]")
        for p in range(2): a(f"v_pk_mul_f32 {V(x+2*p,2)}, {V(x+2*p,2)}, {V(rv+2*p,2)}")
    def pack(dst, x):
        for p in range(2): a(f"v_cvt_pk_bf16_f32 v{dst+p}, v{x+2*p}, v{x+2*p+1}")
    KV = 224
    def kp(e, tl): return KV + 8*tl + 2*e
    def vp(e, tl): return KV + 8*tl + 4 + 2*e
    for tl in (2, 3, 0, 1):
        for e in range(2): corr_t(AK + (e*4+tl)*4, 152+4*e, 162+tl, 166+tl)
        for e in range(2): pack(kp(e, tl), AK + (e*4+tl)*4)
    a("s_waitcnt lgkmcnt(0)")
    for tl in (2, 3, 0, 1):
        for e in range(2): corr_c(AV + (e*4+tl)*4, 172+4*tl, 10+4*tl, 160+e)
        for e in range(2): pack(vp(e, tl), AV + (e*4+tl)*4)
        if tl == 3:
            lx = a.label("Lx")
            a("s_cmp_lg_u32 s5, 0")
            a(f"s_cbranch_scc1 {lx}")
            for k in range(4): a(f"ds_write_b128 v223, {V(KV+16+4*k)} offset:{1024*k}")
            a("ds_read_b32 v26, v219 offset:512")
            a(f"ds_read_b32 v27, v219 offset:{512 + TP}")
            a(f"ds_read_b128 {V(188)}, v218 offset:512")
            a(f"ds_read_b128 {V(192)}, v218 offset:{512 + TP}")
            a(f"{lx}:")
    PV = 64
    lh = a.label("Lnh")
    a("s_cmp_lg_u32 s5, 0")
    a(f"s_cbranch_scc1 {lh}")
    a("s_waitcnt lgkmcnt(0)")
    for e in range(2):
        corr_t(HK+4*e, 152+4*e, 26, 27)
        corr_c(HV+4*e, 188, 192, 160+e)
    for e in range(2):
        for T in range(2):
            pack(PV + 8*T + 2*e, HK+4*e)
            pack(PV + 8*T + 4 + 2*e, HV+4*e)
    a(f"{lh}:")
    QP = 96
    for e in range(2):
        for tl in range(4): corr_t(AQ + (e*4+tl)*4, 144+4*e, 162+tl, 166+tl)
    for k in range(8): pack(QP+2*k, AQ+4*k)
    a("s_waitcnt lgkmcnt(0)")
    a("s_barrier")
    lp = a.label("Lp")
    a("s_cmp_eq_u32 s5, 0")
    a(f"s_cbranch_scc1 {lp}")
    for k in range(4): a(f"ds_read_b128 {V(PV+4*k)}, v223 offset:{1024*k}")
    a(f"{lp}:")
    SC, SP = 112, 144
    U = range(8)
    def kprev(u): e, tl = u//4, u%4; return kp(e, tl-2) if tl >= 2 else PV + 8*tl + 2*e
    def vprev(u): e, tl = u//4, u%4; return vp(e, tl-2) if tl >= 2 else PV + 8*tl + 4 + 2*e
    for u in U: a(mfma16(SC+4*u, kp(u//4, u%4), QP+2*u, V(MC)))
    a(f"v_mov_b32 v10, {f2u(0.25*LOG2E):#x}")
    for u in (2, 3, 6, 7): a(mfma16(SP+4*u, kprev(u), QP+2*u, V(MPN)))
    a("s_waitcnt lgkmcnt(0)")
    for u in (0, 1, 4, 5): a(mfma16(SP+4*u, kprev(u), QP+2*u, V(MPA+4*(u&1))))
    MX, TM = 32, 40
    for u in (2, 3, 6, 7, 0, 1, 4, 5):
        for i in range(4): a(f"v_max_f32 v{SC+4*u+i}, v{SC+4*u+i}, v{SP+4*u+i}")
    for u in U: a(f"v_max3_f32 v{MX+u}, v{SC+4*u}, v{SC+4*u+1}, v{SC+4*u+2}")
    for u in U: a(f"v_max_f32 v{MX+u}, v{MX+u}, v{SC+4*u+3}")
    red_g(a, [MX+u for u in U], "v_max_f32", TM)
    for u in range(0, 8, 2): a(f"v_pk_mul_f32 {V(MX+u,2)}, {V(MX+u,2)}, {V(10,2)} op_sel_hi:[1,0]")
    for u in U:
        for p in range(2): a(f"v_pk_fma_f32 {V(SC+4*u+2*p,2)}, {V(SC+4*u+2*p,2)}, {V(10,2)}, {V(MX+(u&~1),2)} op_sel:[0,0,{u&1}] op_sel_hi:[1,0,{u&1}] neg_lo:[0,0,1] neg_hi:[0,0,1]")
    for u in U:
        for i in range(4): a(f"v_exp_f32 v{SC+4*u+i}, v{SC+4*u+i}")
    PC, PP = 144, 160
    for u in U: pack(PP+2*u, SC+4*u)
    for u in U:
        for p in range(2): a(f"v_and_b32 v{PC+2*u+p}, v{MB+p}, v{PP+2*u+p}")
    for u in U:
        for p in range(2): a(f"v_xor_b32 v{PP+2*u+p}, v{PC+2*u+p}, v{PP+2*u+p}")
    OA = 176
    for u in U: a(f"v_pk_add_f32 {V(SC+4*u,2)}, {V(SC+4*u,2)}, {V(SC+4*u+2,2)}")
    for u in U:
        a(mfma16(OA+4*u, vp(u//4, u%4), PC+2*u, "0"))
        a(f"v_add_f32 v{MX+u}, v{SC+4*u}, v{SC+4*u+1}")
    for u in U: a(mfma16(OA+4*u, vprev(u), PP+2*u))
    red_g(a, [MX+u for u in U], "v_add_f32", TM)
    for u in U: a(f"v_rcp_f32 v{MX+u}, v{MX+u}")
    for u in U:
        for p in range(2): a(f"v_pk_mul_f32 {V(OA+4*u+2*p,2)}, {V(OA+4*u+2*p,2)}, {V(MX+(u&~1),2)} op_sel:[0,{u&1}] op_sel_hi:[1,{u&1}]")
    for tl in range(4):
        for e in range(2): pack(112 + 4*tl + 2*e, OA + 4*(e*4+tl))
    for tl in range(4):
        for p in range(2): a(f"v_permlane32_swap_b32 v{112+4*tl+p}, v{112+4*tl+2+p}")
    a.vmwait("b")
    for tl in range(4):
        a.vmem(f"buffer_store_dwordx4 {V(112+4*tl)}, v4, {S4(WS_)}, s{53+(tl>>1)} offen offset:{256*(tl&1)} sc1", "o")
    a.stamp()

def aq_helper(a, fused):
    srd(a, WA_, 66, D*1536*2)
    rowtile_voffs(a, 4, 5, 10)
    a("v_bfe_u32 v3, v1, 4, 1")
    a("v_lshlrev_b32 v3, 1, v3")
    a("v_and_b32 v30, 7, v1")
    a("v_xor_b32 v30, v30, v3")
    a("v_lshrrev_b32 v3, 3, v1")
    a("v_mul_u32_u24 v3, 3072, v3")
    a("v_lshl_add_u32 v6, v30, 4, v3")
    a("v_xor_b32 v30, 4, v30")
    a("v_lshl_add_u32 v7, v30, 4, v3")
    a(f"v_add_u32 v7, {8*3072}, v7")
    a("v_lshrrev_b32 v3, 4, v1")
    a(f"s_lshl_b32 s61, s{sQ}, 1")
    a("v_add_u32 v3, s61, v3")
    a("v_and_b32 v30, 7, v1")
    a("v_xor_b32 v30, v30, v3")
    a("v_and_b32 v30, 7, v30")
    a("v_lshrrev_b32 v3, 3, v1")
    a("v_lshlrev_b32 v3, 10, v3")
    a("v_lshl_add_u32 v20, v30, 4, v3")
    a(f"s_lshl_b32 s53, s{sRB}, 7")
    a("s_sub_u32 s55, s53, 16")
    a("s_max_i32 s55, s55, 0")
    a(f"s_lshl_b32 s61, s{sQ}, 2")
    a("s_add_u32 s55, s55, s61")
    a("s_lshl_b32 s55, s55, 10")
    a(f"s_lshl_b32 s61, s{sQ}, 5")
    a("s_add_u32 s53, s53, s61")
    a("s_lshl_b32 s53, s53, 10")
    a(f"s_mul_i32 s54, s{sQ}, {16*3072}")
    a(f"s_lshl_b32 s61, s{sGRP}, 7")
    a("s_add_u32 s54, s54, s61")
    a(f"s_mul_i32 s56, s{sQ}, 6144")
    a(f"s_lshl_b32 s57, s{sQ}, 9")
    a(f"s_lshl_b32 s60, s{sQ}, 12")
    def ga(step):
        sl = QSLOT[step % 3]; tag = ("A", step)
        x_group_h(a, step, sl, tag)
        a(f"s_mul_i32 s63, s61, {64*3072}")
        a("s_add_u32 s63, s63, s54")
        a(f"s_add_u32 m0, s56, {sl + 18432}")
        a("s_add_u32 s62, s58, s55")
        for m in range(3): a.vmem(f"buffer_load_dwordx4 v6, {S4(WA_)}, s63 offen offset:{1024*m} lds", tag)
        a(f"s_add_u32 m0, s56, {sl + 18432 + 3072}")
        a("s_nop 0")
        for m in range(3): a.vmem(f"buffer_load_dwordx4 v7, {S4(WA_)}, s63 offen offset:{1024*m} lds", tag)
        a(f"s_add_u32 m0, s57, {sl + 16384}")
        a("s_mov_b32 exec_hi, 0")
        a.vmem(f"buffer_load_dwordx4 v20, {S4(X_)}, s62 offen lds", tag)
        a("s_mov_b32 exec_hi, -1")
    ga(0)
    nonce_publish(a)
    ga(1); ga(2)
    late_srds(a)
    if fused: wsp_setup_h(a)
    a.stamp()
    for s in range(8):
        a.vmwait(("A", s))
        a("s_barrier")
        if s in (0, 1, 4): a.stamp()
        if 1 <= s <= 5: ga(s + 2)
        if fused and s == 5:
            a("v_mov_b32 v31, 0")
            a.vmem(f"buffer_load_dword v25, v31, {S4(DBG_)}, 0 offen sc1", "poll")
        if fused and s == 6:
            wsp_group_h(a, 0); wsp_group_h(a, 1)
        if fused and s == 7: wsp_group_h(a, 6)
    a.stamp()
    a("s_barrier")
    if fused:
        for v in (2, 3, 4, 5): wsp_group_h(a, v)
    a("s_barrier")

def flag_store(a, which):
    if which == "F1":
        a(f"s_lshl_b32 s61, s{sRB}, 3")
        a(f"s_add_u32 s61, s61, s{sGRP}")
        off = F1_OFF
    else:
        a(f"s_lshl_b32 s61, s{sRB}, 1")
        a(f"s_add_u32 s61, s61, s{sTYP}")
        a("s_lshl_b32 s61, s61, 3")
        a(f"s_add_u32 s61, s61, s{sGRP}")
        off = F2_OFF
    a("s_lshl_b32 s61, s61, 7")
    a(f"s_add_u32 s61, s61, {off}")
    a(f"s_cmp_eq_u32 s{sQ}, 0")
    a(f"s_cselect_b32 s61, s61, {OOB}")
    a(f"v_mov_b32 v30, s{sT}")
    a("v_mov_b32 v31, 0")
    a("s_mov_b64 exec, 1")
    a.vmem(f"buffer_store_dword v30, v31, {S4(WS_)}, s61 offen sc1", "flag")
    a("s_mov_b64 exec, -1")

def mfma32(d, a, b, c=None):
    c = V(d, 16) if c is None else c
    return f"v_mfma_f32_32x32x16_bf16 {V(d,16)}, {V(a)}, {V(b)}, {c}"

def b_early(a):
    a("v_and_b32 v3, 15, v1")
    a("v_bfe_u32 v31, v1, 4, 1")
    a("v_lshl_add_u32 v3, v3, 1, v31")
    a("v_lshlrev_b32 v3, 1, v3")
    a(f"s_lshl_b32 s61, s{sRB}, 2")
    a(f"s_add_u32 s61, s61, s{sQ}")
    a("s_lshl_b32 s61, s61, 6")
    a(f"s_cmp_eq_u32 s{sKS}, 0")
    a("s_cselect_b32 s61, s61, 4096")
    a.vmem(f"buffer_load_ushort v0, v3, {S4(BSP_)}, s61 offen", "b")

def b_compute(a, fused):
    ACC = 32
    ring = list(range(80, 144, 4))
    Z1 = 144
    a("v_and_b32 v3, 31, v1")
    a("v_lshrrev_b32 v30, 5, v1")
    a("v_bfe_u32 v31, v1, 1, 3")
    a("v_xor_b32 v31, v30, v31")
    a("v_lshlrev_b32 v3, 7, v3")
    a("v_lshl_add_u32 v10, v31, 4, v3")
    a(f"s_lshl_b32 s61, s{sQ}, 12")
    a("v_add_u32 v10, s61, v10")
    for b4 in range(1, 4): a(f"v_xor_b32 v{10+b4}, {32*b4}, v10")
    for b4 in range(4): a(f"v_add_u32 v{14+b4}, 0x10000, v{10+b4}")
    a("v_lshlrev_b32 v19, 4, v1")
    a(f"v_add_u32 v18, {L_Z2}, v19")
    a("v_and_b32 v3, 15, v1")
    a("v_bfe_u32 v31, v1, 4, 1")
    a("v_lshlrev_b32 v20, 9, v31")
    a("v_lshl_add_u32 v20, v30, 8, v20")
    a("v_lshl_add_u32 v20, v3, 4, v20")
    a(f"s_lshl_b32 s57, s{sRB}, 2")
    a(f"s_add_u32 s57, s57, s{sQ}")
    if not fused: b_early(a)
    a(f"s_mul_i32 s55, s{sCG}, 6")
    a("s_min_u32 s55, s55, 40")
    a("s_sub_u32 s58, 40, s55")
    a("s_min_u32 s58, s58, 6")
    a(f"s_cmp_eq_u32 s{sCG}, 7")
    a("s_cselect_b32 s58, 3, s58")
    a("s_mul_i32 s53, s57, 48")
    a("s_add_u32 s53, s53, s55")
    a("s_lshl_b32 s53, s53, 10")
    a(f"s_mul_i32 s61, s{sKS}, {64*48*1024}")
    a("s_add_u32 s54, s53, s61")
    a(f"s_add_u32 s53, s53, {WS_Z1}")
    a(f"s_add_u32 s54, s54, {WS_H}")
    if not fused: a.vmwait("b")
    a("v_lshlrev_b32 v22, 16, v0")
    for r in range(48): a(f"v_mov_b32 v{ACC+r}, v22")
    def z1_load():
        pass
    def z1_piece(j):
        def f():
            if j == 0 and fused:
                a("v_mov_b32 v23, 0")
                a.vmem(f"buffer_load_dword v23, v23, {S4(DBG_)}, 0 offen sc1", "z1")
            if j == 4: a("s_add_u32 s53, s53, 4096")
            a.vmem(f"buffer_load_dwordx4 {V(Z1+4*j)}, v20, {S4(WS_)}, s53 offen offset:{(j%4)*1024} sc1", "z1")
        return f
    extras = []
    zs = opt('z1step', 11)
    for j in range(6): extras.append((zs, z1_piece(j), lambda done: True, 99))
    def preB(st):
        if fused and st == opt('f2step', 3): a.vmall()
    fr = {}; mf = []
    for i in range(16):
        for b4 in range(4):
            fr[('w', i, b4)] = dict(step=i, reg=None, reads=[lambda r, i=i, b4=b4: f"ds_read_b128 {V(r)}, v{10 + b4 + 4*((i%NWS)//4)} offset:{((i%NWS)%4)*16384}"])
            for c in range(3):
                fr[('z', i, b4, c)] = dict(step=i, reg=None, reads=[lambda r, i=i, b4=b4, c=c: f"ds_read_b128 {V(r)}, v18 offset:{(i%4)*12288 + (b4*3+c)*1024}"])
                mf.append((ACC+16*c, ('z', i, b4, c), ('w', i, b4)))
    a.stamp()
    a("s_barrier")
    gemm_stream(a, mf, fr, ring, opt('LAB', 5), opt('coverB', 2), preB,
                first_zero=False, stamps=(0, 1, 8, 10, 12, 14), pergap=opt('pgB', 2), slack=2, op=mfma32, extras=extras)
    assert not extras
    a.stamp()
    a("s_barrier")
    a.vmwait("z1")
    if fused: a(f"v_readfirstlane_b32 s{sT}, v23")
    for j in range(6):
        x = ACC + 8*j; z = Z1 + 4*j; t = 80 + 8*(j&1)
        for k in range(4):
            a(f"v_lshlrev_b32 v{t+2*k}, 16, v{z+k}")
            a(f"v_and_b32 v{t+2*k+1}, 0xffff0000, v{z+k}")
        for k in range(4): a(f"v_pk_mul_f32 {V(x+2*k,2)}, {V(x+2*k,2)}, {V(t+2*k,2)}")
        for k in range(4): a(f"v_cvt_pk_bf16_f32 v{x+k}, v{x+2*k}, v{x+2*k+1}")
        a(f"s_cmp_gt_u32 s58, {j}")
        a(f"s_cselect_b32 s61, s54, {OOB}")
        if j >= 4: a("s_add_u32 s61, s61, 4096")
        a.vmem(f"buffer_store_dwordx4 {V(x)}, v19, {S4(WS_)}, s61 offen offset:{(j%4)*1024} sc1", "h")
    a.stamp()

def cw_setup_h(a):
    a("v_bfe_u32 v3, v1, 4, 1")
    a("v_lshlrev_b32 v3, 2, v3")
    a("v_and_b32 v30, 7, v1")
    a("v_xor_b32 v30, v30, v3")
    a("v_lshrrev_b32 v3, 3, v1")
    a("v_lshlrev_b32 v3, 10, v3")
    a("v_lshl_add_u32 v26, v30, 4, v3")
    for k in range(1, 4): a(f"v_add_u32 v{26+k}, {k*(8192-1024)}, v26")
    a(f"s_lshl_b32 s47, s{sCG}, 7")
    a(f"s_lshl_b32 s61, s{sQ}, 15")
    a("s_add_u32 s47, s47, s61")

def cw_pieces(a, slot):
    R, row0 = (WO_, slot*128) if slot < 4 else (WOUT_, (slot-4)*128)
    out = []
    for k in range(4):
        def f(k=k):
            if k == 0:
                a(f"s_add_u32 m0, s60, {CSLOT[slot]*16384}")
                a(f"s_add_u32 s46, s47, {row0*1024}")
            a.vmem(f"buffer_load_dwordx4 v{26+k}, {S4(R)}, s46 offen offset:{1024*k} lds", ("CW", slot))
        out.append(f)
    return out

CSLOT = [2, 3, 4, 5, 6, 0, 1, 7, 8, 9]
def b_helper(a, fused):
    if not fused:
        late_srds(a)
        wsp_setup_h(a)
        a(f"s_lshl_b32 s60, s{sQ}, 12")
    cw_setup_h(a)
    a("v_lshlrev_b32 v10, 4, v1")
    a(f"s_lshl_b32 s53, s{sCG}, 1")
    a(f"s_add_u32 s53, s53, s{sKS}")
    a(f"s_mul_i32 s53, s53, {16*12288}")
    a(f"s_mul_i32 s54, s{sQ}, 3072")
    a("s_add_u32 s53, s53, s54")
    a(f"s_add_u32 s53, s53, {WS_Z2N}")
    a(f"s_add_u32 s54, s54, {L_Z2}")
    def z2_group(i):
        a(f"s_add_u32 s61, s{sK0B}, {i}")
        a("s_and_b32 s61, s61, 15")
        a("s_mul_i32 s61, s61, 12288")
        a(f"s_add_u32 m0, s54, {(i % 4)*12288}")
        a("s_add_u32 s61, s61, s53")
        for k in range(3): a.vmem(f"buffer_load_dwordx4 v10, {S4(WS_)}, s61 offen offset:{1024*k} sc1 lds", ("Z", i))
    a.stamp()
    if fused:
        a(f"s_lshl_b32 s62, s{sCG}, 1")
        a(f"s_add_u32 s62, s62, s{sKS}")
        a("s_lshl_b32 s62, s62, 12")
        a(f"s_add_u32 s62, s62, {F1_OFF}")
        a("v_and_b32 v31, 31, v1")
        a("v_lshlrev_b32 v31, 7, v31")
        a(f"v_mov_b32 v30, 0")
        def iss(): a(f"buffer_load_dword v30, v31, {S4(WS_)}, s62 offen sc1")
        def chk():
            a(f"v_cmp_ne_u32 vcc, s{sT}, v30")
            a("s_cmp_eq_u64 vcc, 0")
        spin(a, iss, chk)
        a.vm = []
        a.stamp()
    lq = a.label("Lbq"); lz = a.label("Lbz")
    for i in range(3): z2_group(i)
    a("s_barrier")
    z2_group(3)
    a(f"s_cmp_eq_u32 s{sTYP}, 0")
    a(f"s_cbranch_scc1 {lq}")
    vm0 = list(a.vm)
    for v in range(opt('wpre', 3), NWS): wsp_group_h(a, v)
    a(f"s_branch {lz}")
    a(f"{lq}:")
    a("s_mov_b64 exec, 1")
    for v in range(4*(NWS - opt('wpre', 3))): a(f"buffer_load_dword v30, v31, {S4(DBG_)}, 0 offen")
    a("s_mov_b64 exec, -1")
    a(f"{lz}:")
    for i in range(16):
        a.vmwait(("S", i)); a.vmwait(("Z", i))
        if fused and i == opt('z1step', 11): f2_check(a)
        a("s_barrier")
        if i in (0, 1, 8, 10, 12, 14): a.stamp()
        if fused and i == opt('f2step', 3): flag_store(a, "F2")
        if fused and i == opt('z1step', 11) - 3: f2_issue(a)
        if i >= 1 and i + 3 < 16: z2_group(i + 3)
        if i >= 1 and i - 1 + NWS < 16: wsp_group_h(a, i - 1 + NWS)
        if fused and i >= 10: a.run(cw_pieces(a, i - 10))
    a.stamp()
    a("s_barrier")
    if fused:
        for k in range(6, 10): a.run(cw_pieces(a, k))

def f2_issue(a):
    a(f"s_lshr_b32 s61, s{sRC}, 1")
    a("s_lshl_b32 s61, s61, 4")
    a(f"s_lshl_b32 s62, s{sRB}, 4")
    a(f"s_add_u32 s62, s62, s{sCG}")
    a("s_add_u32 s62, s62, 8")
    a("v_add_u32 v20, s61, v1")
    a("v_mov_b32 v21, s62")
    a("v_cmp_gt_u32 vcc, 8, v1")
    a("s_nop 1")
    a("v_cndmask_b32 v20, v21, v20, vcc")
    a("v_lshlrev_b32 v20, 7, v20")
    a(f"v_add_u32 v20, {F2_OFF}, v20")
    a.vmem(f"buffer_load_dword v21, v20, {S4(WS_)}, 0 offen sc1", "f2")
def f2_check(a):
    a.vmwait("f2")
    def iss(): a(f"buffer_load_dword v21, v20, {S4(WS_)}, 0 offen sc1")
    def chk():
        a(f"v_cmp_ne_u32 vcc, s{sT}, v21")
        a("s_cmp_eq_u64 vcc, 0")
    spin(a, iss, chk)

L_RED = 0
def c_waddr(a, d):
    a("v_lshrrev_b32 v3, 5, v1")
    a("v_bfe_u32 v30, v1, 2, 2")
    a("v_lshl_add_u32 v3, v3, 2, v30")
    a("v_lshlrev_b32 v3, 7, v3")
    a("v_and_b32 v30, 2, v30")
    a("v_bfe_u32 v31, v1, 4, 1")
    a("v_or_b32 v30, v30, v31")
    a("v_lshl_add_u32 v3, v30, 5, v3")
    a("v_and_b32 v30, 3, v1")
    a(f"v_lshl_add_u32 v{d}, v30, 3, v3")
    a(f"v_xor_b32 v{d+1}, 64, v{d}")

def c_stream(a, nblk, fragreg, tagf, areg, blk0, ring, ACC, first_zero, loads=(), off0=0):
    fr = {}; mf = []
    for b in range(nblk):
        fr[('h', b)] = dict(step=0, reg=fragreg(b), reads=None)
        for nn in range(2):
            off = CSLOT[(blk0 + b) // 8] * 16384 + ((blk0 + b) % 8) * 2048 - off0
            fr[('w', b, nn)] = dict(step=0, reg=None, reads=[(lambda r, hh=hh, nn=nn, off=off: f"ds_read_b64_tr_b16 {V(r+2*hh,2)}, v{areg(off >> 16) + nn} offset:{(off & 0xffff) + hh*1024}") for hh in range(2)])
            mf.append((ACC+16*nn, ('w', b, nn), ('h', b)))
    cnt = [0]
    def op(d, x, y, c):
        b = cnt[0] // 2
        if cnt[0] % 2 == 1 and loads: loads.pop(0)()
        cnt[0] += 1
        a.vmwait(tagf(b))
        return mfma32(d, x, y, c)
    gemm_stream(a, mf, fr, ring, opt('LAC', 4), 0, lambda st: None, first_zero=first_zero, pergap=2, slack=2, op=op, skip_first_barrier=True)

def c_final(a):
    a("s_barrier")
    for k in range(2):
        a(f"ds_read_b128 {V(16+8*k)}, v6 offset:{17408*k}")
        a(f"ds_read_b128 {V(20+8*k)}, v6 offset:{17408*k + 16}")
    a.vmwait("x")
    for w in range(4):
        a(f"v_lshlrev_b32 v{32+2*w}, 16, v{8+w}")
        a(f"v_and_b32 v{33+2*w}, 0xffff0000, v{8+w}")
    a("s_waitcnt lgkmcnt(2)")
    for w in range(4): a(f"v_pk_add_f32 {V(32+2*w,2)}, {V(32+2*w,2)}, {V(16+2*w,2)}")
    a("s_waitcnt lgkmcnt(0)")
    for w in range(4): a(f"v_pk_add_f32 {V(32+2*w,2)}, {V(32+2*w,2)}, {V(24+2*w,2)}")
    for w in range(4): a(f"v_cvt_pk_bf16_f32 v{32+w}, v{32+2*w}, v{33+2*w}")
    a.vmem(f"buffer_store_dwordx4 {V(32)}, v7, {S4(OUT_)}, s47 offen", "out")

def c_final_setup(a):
    a("v_lshrrev_b32 v3, 3, v1")
    a(f"s_lshl_b32 s61, s{sW}, 3")
    a("v_add_u32 v3, s61, v3")
    a("v_and_b32 v30, 7, v1")
    a("v_mul_u32_u24 v6, 272, v3")
    a("v_lshl_add_u32 v6, v30, 5, v6")
    a("v_add_u32 v6, 32768, v6")
    a("v_and_b32 v31, 15, v3")
    a("v_lshlrev_b32 v31, 1, v31")
    a("v_bfe_u32 v7, v3, 4, 1")
    a("v_add_u32 v31, v31, v7")
    a("v_and_b32 v7, 32, v3")
    a("v_add_u32 v31, v31, v7")
    a("v_lshlrev_b32 v31, 10, v31")
    a("v_lshl_add_u32 v7, v30, 4, v31")
    a(f"s_lshl_b32 s47, s{sRC}, 9")
    a(f"s_add_u32 s47, s47, s{sCG}")
    a("s_lshl_b32 s47, s47, 7")
    a.vmem(f"buffer_load_dwordx4 {V(8)}, v7, {S4(X_)}, s47 offen", "x")

def c_compute(a, fused):
    ACC, HF = 32, 80
    ring = list(range(64, 80, 4)) + [12, 16, 20]
    a("s_barrier")
    if not fused: late_srds(a)
    a(f"s_and_b32 s53, s{sQ}, 1")
    a(f"s_lshr_b32 s54, s{sQ}, 1")
    c_waddr(a, 4)
    a("v_add_u32 v252, 0x10000, v4\nv_add_u32 v253, 0x10000, v5")
    a("v_add_u32 v254, 0x20000, v4\nv_add_u32 v255, 0x20000, v5")
    a("v_mov_b32 v26, v4\nv_mov_b32 v27, v5")
    a(f"s_lshl_b32 s55, s{sRC}, 1")
    a("s_add_u32 s55, s55, s53")
    a("s_lshl_b32 s56, s54, 6")
    a("s_add_u32 s56, s56, s55")
    a("s_mul_i32 s56, s56, 49152")
    a(f"s_add_u32 s56, s56, {WS_H}")
    a("v_lshlrev_b32 v28, 4, v1")
    a(f"s_lshl_b32 s61, s{sQ}, 13")
    a("s_add_u32 s61, s61, 32768")
    a("v_add_u32 v29, s61, v28")
    if fused:
        a.vmall()
        a("s_lshl_b32 s61, s57, 1")
        a(f"s_add_u32 s61, s61, s{sKS}")
        a("s_lshl_b32 s61, s61, 3")
        a(f"s_add_u32 s61, s61, s{sCG}")
        a("s_lshl_b32 s61, s61, 7")
        a(f"s_add_u32 s61, s61, {F3_OFF}")
        a(f"v_mov_b32 v30, s{sT}")
        a("v_mov_b32 v31, 0")
        a("s_mov_b64 exec, 1")
        a.vmem(f"buffer_store_dword v30, v31, {S4(WS_)}, s61 offen sc1", "flag")
        a("s_mov_b64 exec, -1")
        a.stamp()
    c_final_setup(a)
    a("v_and_b32 v3, 31, v1")
    a("v_mul_u32_u24 v3, 272, v3")
    a("v_lshrrev_b32 v30, 5, v1")
    a("v_lshl_add_u32 v3, v30, 4, v3")
    a("s_mul_i32 s61, s54, 17408")
    a(f"s_mul_i32 s62, s53, {32*272}")
    a("s_add_u32 s61, s61, s62")
    a("s_add_u32 s61, s61, 32768")
    a("v_add_u32 v4, s61, v3")
    a("s_barrier")
    a("s_barrier")
    for k in range(8): a(f"ds_read_b128 {V(ACC+4*k)}, v29 offset:{1024*k}")
    if fused:
        a("s_lshl_b32 s62, s55, 1")
        a("s_add_u32 s62, s62, s54")
        a("s_lshl_b32 s62, s62, 10")
        a(f"s_add_u32 s62, s62, {F3_OFF}")
        a("v_and_b32 v31, 7, v1")
        a("v_lshlrev_b32 v31, 7, v31")
        a("v_mov_b32 v30, 0")
    a("s_waitcnt lgkmcnt(0)")
    a("s_barrier")
    if fused:
        def iss(): a(f"buffer_load_dword v30, v31, {S4(WS_)}, s62 offen sc1")
        def chk():
            a(f"v_cmp_ne_u32 vcc, s{sT}, v30")
            a("s_cmp_eq_u64 vcc, 0")
        spin(a, iss, chk)
        a.vm = []
    a.stamp()
    def hload(b):
        if b and b % 4 == 0: a("s_add_u32 s56, s56, 4096")
        a.vmem(f"buffer_load_dwordx4 {V(HF+4*b)}, v28, {S4(WS_)}, s56 offen offset:{(b%4)*1024} sc1", ("H", b))
    PH = opt('PH', 14)
    for b in range(PH): hload(b)
    c_stream(a, 43, lambda b: HF+4*b, lambda b: ("H", b), lambda k: (26, 252, 254)[k], 32, ring, ACC, False, [(lambda b=b: hload(b)) for b in range(PH, 43)])
    a.stamp()
    a("s_nop 15")
    for nn in range(2):
        for jj in range(4): a(f"ds_write_b128 v4, {V(ACC+16*nn+4*jj)} offset:{128*nn + 32*jj}")
    a("s_waitcnt lgkmcnt(0)")
    c_final(a)

def c_helper(a, fused):
    ACC, OF = 32, 80
    ring = list(range(64, 80, 4)) + [144, 148, 152, 156]
    if not fused:
        late_srds(a)
        a(f"s_lshl_b32 s60, s{sQ}, 12")
        cw_setup_h(a)
    a(f"s_and_b32 s53, s{sQ}, 1")
    a(f"s_lshr_b32 s54, s{sQ}, 1")
    a(f"s_lshl_b32 s55, s{sRC}, 1")
    a("s_add_u32 s55, s55, s53")
    a("s_lshl_b32 s55, s55, 1")
    a("s_add_u32 s55, s55, s54")
    a("s_lshl_b32 s55, s55, 14")
    a(f"s_add_u32 s55, s55, {WS_O}")
    a("v_lshlrev_b32 v12, 4, v1")
    for b in range(16):
        if b and b % 4 == 0: a("s_add_u32 s55, s55, 4096")
        a.vmem(f"buffer_load_dwordx4 {V(OF+4*b)}, v12, {S4(WS_)}, s55 offen offset:{(b%4)*1024} sc1", ("O", b))
    if not fused:
        for sl in range(10): a.run(cw_pieces(a, sl))
    c_final_setup(a)
    c_waddr(a, 4)
    a("s_lshl_b32 s61, s54, 15")
    a("s_add_u32 s61, s61, 32768")
    a("v_add_u32 v4, s61, v4\nv_add_u32 v5, s61, v5")
    a(f"s_lshl_b32 s61, s{sQ}, 13")
    a("s_add_u32 s61, s61, 32768")
    a("v_add_u32 v13, s61, v12")
    a.vmwait(("CW", 3))
    a("s_barrier")
    a.stamp()
    c_stream(a, 16, lambda b: OF+4*b, lambda b: ("O", b), lambda k: 4, 0, ring, ACC, True, off0=32768)
    a.stamp()
    a("s_barrier")
    a("s_nop 15")
    for k in range(8): a(f"ds_write_b128 v13, {V(ACC+4*k)} offset:{1024*k}")
    a.vmwait(("CW", 9))
    a("s_waitcnt lgkmcnt(0)")
    a("s_barrier")
    a("s_barrier")
    c_final(a)

def diag_out(a, base):
    if not a.diag: return
    a("v_writelane_b32 v2, s84, 62")
    a("s_memrealtime s[86:87]")
    a("s_waitcnt lgkmcnt(0)")
    a("v_writelane_b32 v2, s86, 63")
    a("s_lshl_b32 s61, s2, 3")
    a(f"s_add_u32 s61, s61, s{sW}")
    a("s_lshl_b32 s61, s61, 8")
    a(f"s_add_u32 s61, s61, {base}")
    a("v_lshlrev_b32 v3, 2, v1")
    a(f"buffer_store_dword v2, v3, {S4(WS_)}, s61 offen")
    if opt('hdbg', -1) >= 0:
        l = a.label("Lhd")
        a(f"s_cmp_lg_u32 s2, {opt('hdbg', 0)}")
        a(f"s_cbranch_scc1 {l}")
        a(f"s_cmp_lg_u32 s{sW}, 0")
        a(f"s_cbranch_scc1 {l}")
        a("s_sub_u32 s86, s86, s84")
        a("v_mov_b32 v4, 0")
        a("v_writelane_b32 v4, s86, 1")
        for k, src in enumerate((0, 1, 3, 4, 5, 6, 7, 10, 11, 17, 18, 19, 20, 22)):
            a(f"v_readlane_b32 s61, v2, {src}")
            a("s_nop 3")
            a(f"v_writelane_b32 v4, s61, {2+k}")
        a("s_mov_b64 exec, 0xfffe")
        a(f"buffer_store_dword v4, v3, {S4(DBG_)}, 0 offen")
        a(f"{l}:")

def simple_kernel(name, diag, idx, comp, helper):
    a = G(diag)
    prologue(a, f"L{name}_end")
    a(f"s_cmp_ge_u32 s{sW}, 4")
    a(f"s_cbranch_scc1 L{name}_h")
    for k, fn in enumerate((comp, helper)):
        if k: a(f"L{name}_h:")
        a.vm = []; a.nst = 0
        fn(a)
        a.vmall(); a.stamp()
        diag_out(a, WS_DBG + idx*0x80000)
        a("s_endpgm")
    a(f"L{name}_end:")
    a("s_endpgm")
    return a.text()

def by_type(fq, fz, lab):
    def f(a):
        a(f"s_cmp_lg_u32 s{sTYP}, 0")
        a(f"s_cbranch_scc1 {lab}_z")
        fq(a, False)
        a.vmall()
        a(f"s_branch {lab}_e")
        n = a.nst
        a(f"{lab}_z:")
        a.vm = []; a.nst = 0
        fz(a, False)
        a(f"{lab}_e:")
        a.nst = max(a.nst, n)
    return f

def multi(diag):
    ka = simple_kernel("A", diag, 0, by_type(aq_compute, az_compute, "LAc"), by_type(aq_helper, az_helper, "LAh"))
    def bc(a): late_srds(a); b_compute(a, False)
    kb = simple_kernel("B", diag, 1, bc, lambda a: b_helper(a, False))
    kc = simple_kernel("C", diag, 2, lambda a: c_compute(a, False), lambda a: c_helper(a, False))
    return [("a_kernel", ka), ("b_kernel", kb), ("c_kernel", kc)]

def fused_kernel(diag):
    a = G(diag)
    prologue(a, "LF_end")
    a(f"s_cmp_ge_u32 s{sW}, 4")
    a("s_cbranch_scc1 LF_h")
    if opt('cpf', 1):
        a("s_getpc_b64 s[62:63]")
        a("LF_pc:")
        a("s_lshr_b32 s61, s2, 3")
        a("s_lshl_b32 s61, s61, 2")
        a(f"s_add_u32 s61, s61, s{sQ}")
        a("s_lshl_b32 s61, s61, 3")
        a("v_add_u32 v3, s61, v1")
        a("v_lshlrev_b32 v3, 7, v3")
        a("v_min_u32 v3, LF_end - LF_pc, v3")
        a(f"s_mov_b32 m0, {L_MISC}")
        a("s_mov_b64 exec, 0xff")
        a("global_load_lds_dword v3, s[62:63]")
        a("s_mov_b64 exec, -1")
    late_srds(a)
    b_early(a)
    a(f"s_cmp_lg_u32 s{sTYP}, 0")
    a("s_cbranch_scc1 LF_cz")
    aq_compute(a, True)
    n = a.nst
    a("s_branch LF_cb")
    a("LF_cz:")
    a.vm = []; a.nst = 0
    az_compute(a, True)
    a("LF_cb:")
    a.vm = []; a.nst = 10
    b_compute(a, True)
    c_compute(a, True)
    a.vmall(); a.stamp()
    diag_out(a, WS_DBG)
    a("s_endpgm")
    a("LF_h:")
    a.vm = []; a.nst = 0
    a(f"s_cmp_lg_u32 s{sTYP}, 0")
    a("s_cbranch_scc1 LF_hz")
    aq_helper(a, True)
    nonce_check(a)
    a("s_branch LF_hb")
    a("LF_hz:")
    a.vm = []; a.nst = 0
    az_helper(a, True)
    a("LF_hb:")
    a.vm = []; a.nst = 10
    b_helper(a, True)
    c_helper(a, True)
    a.vmall(); a.stamp()
    diag_out(a, WS_DBG)
    a("LF_end:")
    a("s_endpgm")
    return [(KNAME, a.text())]

if __name__ == "__main__":
    diag = "diag" in sys.argv
    for x in sys.argv[2:]:
        if "=" in x:
            k, v = x.split("="); OPT[k] = int(v)
    ks = multi(diag) if 'multi' in sys.argv else fused_kernel(diag)
    hdr = open("cdna_kernels/" + KNAME[:-7] + ".s.ref").read().split("; Override")[0]
    txt = file_text([(n, 256, 512, LDS_BYTES) for n, t in ks], [(n, t, 256, 102, 256) for n, t in ks])
    if len(ks) == 1: txt = txt.replace(f"; @launch kernel={KNAME} ", "; @launch ")
    txt = "\n".join(l.strip() if l.startswith("    ") else l for l in txt.split("\n"))
    open(sys.argv[1], "w").write(hdr + txt)
```

```python
import sys, math, struct
from asmgen import Asm, KA, KNAME, file_text
from layout import *

OOB = 0x10000000
LOG2E = 1.4426950408889634
def f2u(x): return struct.unpack("<I", struct.pack("<f", x))[0]
C1 = 2.0 * math.sqrt(2.0 / math.pi) * LOG2E
C2 = C1 * 0.044715
NEG = f2u(-1e30)
OPT = {}
F1_OFF, F2_OFF, F3_OFF = WS_FLG, WS_FLG + 512*128, WS_FLG + 768*128
def opt(k, d): return OPT.get(k, d)

sW, sQ, sRB, sGRP = 3, 4, 6, 7
X_, WA_, WS_, WSP_, WO_, WOUT_, OUT_, BSP_, DBG_ = 8, 12, 16, 20, 24, 28, 32, 36, 40
sK0A, sTYP = 44, 45
sKS, sCG, sK0B, sT = 48, 50, 51, 52
sRC = 49
def S4(b): return f"s[{b}:{b+3}]"
def V(b, n=4): return f"v[{b}:{b+n-1}]" if n > 1 else f"v{b}"

L_TAB = 156*1024
TP = 640
L_CW  = L_TAB + 2560
L_MISC = L_TAB + 3328
L_XCH = 148*1024
L_PARK = 112*1024
L_Z2 = 112*1024
NWS = 7
L_RC = L_TAB + 3584
LDS_BYTES = 160*1024

class G(Asm):
    UID = [0]
    def label(self, base="L"):
        G.UID[0] += 1
        return f"{base}_{G.UID[0]}"
    def __init__(self, diag=False):
        super().__init__()
        self.vm = []; self.diag = diag; self.nst = 0
    def vmem(self, s, tag=None):
        self(s); self.vm.append(tag)
    def has(self, tag): return any(t == tag for t in self.vm)
    def vmwait(self, tag):
        if not self.has(tag): return
        idx = max(i for i, t in enumerate(self.vm) if t == tag)
        n = len(self.vm) - 1 - idx
        assert n <= 63, n
        self(f"s_waitcnt vmcnt({n})")
        self.vm = self.vm[idx+1:]
    def vmall(self):
        self("s_waitcnt vmcnt(0)"); self.vm = []
    def stamp(self):
        if not self.diag: return
        self("s_memtime s[82:83]")
        self("s_waitcnt lgkmcnt(0)")
        self("s_sub_u32 s82, s82, s80")
        self(f"v_writelane_b32 v2, s82, {self.nst}")
        self.nst += 1
    def run(self, fs):
        for f in fs: f() if callable(f) else self(f)

def mfma(d, a, b, c=None):
    c = V(d) if c is None else c
    return f"v_mfma_f32_16x16x32_bf16 {V(d)}, {V(a)}, {V(b)}, {c}"
def mfma16(d, a, b, c=None):
    c = V(d) if c is None else c
    return f"v_mfma_f32_16x16x16_bf16 {V(d)}, {V(a,2)}, {V(b,2)}, {c}"

def gemm_stream(a, mf, frags, ring, LA, cover, pre_barrier, hooks=None, first_zero=True, stamps=(), nobar=0, pergap=1, slack=4, op=None, skip_first_barrier=False, extras=None):
    hooks = hooks or {}
    extra_max = opt('xmax', 1)
    first, last = {}, {}
    for i, (d, x, y) in enumerate(mf):
        for f in (x, y):
            first.setdefault(f, i); last[f] = i
    order = sorted([f for f in first if frags[f].get('reads')], key=lambda f: (frags[f]['step'], first[f]))
    rl = [(f, k) for f in order for k in range(len(frags[f]['reads']))]
    reg = {f: frags[f]['reg'] for f in first if frags[f].get('reg') is not None}
    owner = {r: None for r in ring}
    ptr = 0; cur = (0 if skip_first_barrier else -1); out = []; done = set(f for f in first if not frags[f].get('reads'))
    since = 10**9
    seen = set()
    def issue_one(i, force):
        nonlocal ptr, cur, since, out
        f, k = rl[ptr]
        st = frags[f]['step']
        if st > cur:
            if not force and since < cover: return False
            pre_barrier(st)
            if not (nobar and st > 0):
                if out:
                    a("s_waitcnt lgkmcnt(0)")
                    for g_, _ in out: done.add(g_)
                    out = []
                a("s_barrier")
            cur = st
            if st in stamps: a.stamp()
            if st in hooks: hooks[st]()
        if k == 0 and f not in reg:
            free = [r for r in ring if owner[r] is None or last[owner[r]] < i]
            if not free:
                assert not force, "ring too small"
                return False
            r = min(free, key=lambda r: -1 if owner[r] is None else last[owner[r]])
            reg[f] = r; owner[r] = f
        if len(out) >= 14 and not force: return False
        a(frags[f]['reads'][k](reg[f]))
        out.append((f, k)); ptr += 1; since = 0
        return True
    for i, (d, x, y) in enumerate(mf):
        need = [f for f in (x, y) if f not in done]
        while ptr < len(rl) and any(rl[j][0] in need for j in range(ptr, len(rl)) if first[rl[j][0]] <= i):
            issue_one(i, True)
        n = 0
        while ptr < len(rl) and first[rl[ptr][0]] <= i + LA:
            lim = 12 if i == 0 else (pergap + 1 if first[rl[ptr][0]] <= i + LA - slack else pergap)
            if n >= lim: break
            if not issue_one(i, False): break
            n += 1
        if extras and n <= extra_max and extras[0][0] <= cur and extras[0][2](done):
            extras.pop(0)[1]()
        need = [f for f in (x, y) if f not in done]
        if need:
            idx = max(j for j, (f, k) in enumerate(out) if f in need)
            a(f"s_waitcnt lgkmcnt({len(out) - 1 - idx})")
            for f, k in out[:idx+1]:
                if k == len(frags[f]['reads']) - 1: done.add(f)
            out = out[idx+1:]
        c = None
        if first_zero and d not in seen:
            c = "0"; seen.add(d)
        a((op or mfma)(d, reg[x], reg[y], c))
        since += 1
    assert ptr == len(rl)

def srd(a, d, p, nbytes):
    a(f"s_mov_b32 s{d}, s{p}")
    a(f"s_and_b32 s{d+1}, s{p+1}, 0xffff")
    a(f"s_mov_b32 s{d+2}, {nbytes:#x}")
    a(f"s_mov_b32 s{d+3}, 0x20000")

def prologue(a, endlabel):
    if a.diag:
        a("s_memtime s[80:81]")
    a("s_memrealtime s[84:85]")
    a("s_cmp_ge_u32 s2, 256")
    a(f"s_cbranch_scc1 {endlabel}")
    a("s_load_dwordx16 s[64:79], s[0:1], 0")
    a("s_load_dwordx4 s[88:91], s[0:1], 64")
    a("s_load_dwordx2 s[92:93], s[0:1], 80")
    a("v_lshrrev_b32 v3, 6, v0")
    a("v_and_b32 v1, 63, v0")
    a("v_mov_b32 v2, 0")
    a(f"v_readfirstlane_b32 s{sW}, v3")
    a("s_and_b32 s53, s2, 7")
    a("s_lshr_b32 s54, s2, 3")
    a("s_lshr_b32 s55, s53, 1")
    a("s_and_b32 s56, s54, 3")
    a(f"s_lshr_b32 s{sCG}, s54, 2")
    a(f"s_lshl_b32 s{sRB}, s55, 2")
    a(f"s_add_u32 s{sRB}, s{sRB}, s56")
    a(f"s_and_b32 s{sKS}, s53, 1")
    a(f"s_lshl_b32 s{sRC}, s53, 2")
    a(f"s_add_u32 s{sRC}, s{sRC}, s56")
    a(f"s_lshl_b32 s{sGRP}, s{sKS}, 2")
    a(f"s_and_b32 s58, s{sCG}, 3")
    a(f"s_add_u32 s{sGRP}, s{sGRP}, s58")
    a(f"s_lshr_b32 s{sTYP}, s{sCG}, 2")
    a(f"s_lshl_b32 s{sK0A}, s56, 1")
    a(f"s_add_u32 s{sK0A}, s{sK0A}, s{sCG}")
    a(f"s_add_u32 s{sK0A}, s{sK0A}, s55")
    a(f"s_and_b32 s{sK0A}, s{sK0A}, {opt('rotA', 7)}")
    a(f"s_lshl_b32 s{sK0B}, s{sCG}, 1")
    a(f"s_add_u32 s{sK0B}, s{sK0B}, s{sRB}")
    a(f"s_and_b32 s{sK0B}, s{sK0B}, {opt('rotB', 15)}")
    a(f"s_and_b32 s{sQ}, s{sW}, 3")
    a("s_waitcnt lgkmcnt(0)")
    srd(a, X_, 64, S*D*2)
    srd(a, WS_, 92, 268435456)
    srd(a, DBG_, 90, 256)

def late_srds(a):
    srd(a, WSP_, 74, S*S*2)
    srd(a, WO_, 68, D*D*2)
    srd(a, WOUT_, 78, FH*D*2)
    srd(a, OUT_, 88, S*D*2)
    srd(a, BSP_, 76, S*2)

def rowtile_voffs(a, d0, d1, sh, t0=3, t1=30, t2=31):
    a(f"v_lshrrev_b32 v{t0}, 3, v1")
    a(f"v_lshlrev_b32 v{t0}, {sh+1}, v{t0}")
    a(f"v_lshrrev_b32 v{t1}, 4, v1")
    a(f"v_and_b32 v{t2}, 7, v1")
    a(f"v_xor_b32 v{t1}, v{t1}, v{t2}")
    a(f"v_lshl_add_u32 v{d0}, v{t1}, 4, v{t0}")
    a(f"v_xor_b32 v{t1}, 4, v{t1}")
    a(f"v_lshl_add_u32 v{d1}, v{t1}, 4, v{t0}")
    a(f"v_add_u32 v{d1}, {(16 << sh) - 1024}, v{d1}")

def rowfrag_addr(a, d0, d1, srow, t0=3, t1=30, t2=31):
    a(f"v_and_b32 v{t0}, 15, v1")
    a(f"v_lshrrev_b32 v{t1}, 4, v1")
    a(f"v_lshrrev_b32 v{t2}, 1, v{t0}")
    a(f"v_xor_b32 v{t1}, v{t1}, v{t2}")
    a(f"v_lshlrev_b32 v{t0}, 7, v{t0}")
    a(f"v_add_u32 v{t0}, {srow}, v{t0}")
    a(f"v_lshl_add_u32 v{d0}, v{t1}, 4, v{t0}")
    a(f"v_xor_b32 v{t1}, 4, v{t1}")
    a(f"v_lshl_add_u32 v{d1}, v{t1}, 4, v{t0}")

def zw_addr(a, de, do, t0=3, t1=30, t2=31):
    a(f"v_lshrrev_b32 v{t0}, 4, v1")
    a(f"v_bfe_u32 v{t1}, v1, 2, 2")
    a(f"v_lshl_add_u32 v{t1}, v{t0}, 3, v{t1}")
    a(f"v_mul_u32_u24 v{t1}, 192, v{t1}")
    a(f"v_and_b32 v{t2}, 3, v1")
    a(f"v_lshl_add_u32 v{t1}, v{t2}, 3, v{t1}")
    a(f"v_and_b32 v{t0}, 1, v{t0}")
    a(f"v_lshlrev_b32 v{t0}, 5, v{t0}")
    a(f"v_add_u32 v{de}, v{t1}, v{t0}")
    a(f"v_sub_u32 v{do}, v{t1}, v{t0}")

def qw_addr(a, d, t0=3, t1=30, t2=31):
    a(f"v_lshrrev_b32 v{t0}, 4, v1")
    a(f"v_mul_u32_u24 v{t1}, 3072, v{t0}")
    a(f"v_bfe_u32 v{t2}, v1, 2, 2")
    a(f"v_lshl_add_u32 v{t1}, v{t2}, 7, v{t1}")
    a(f"v_and_b32 v{d}, 3, v1")
    a(f"v_lshl_add_u32 v{t1}, v{d}, 3, v{t1}")
    a(f"v_lshrrev_b32 v{t2}, 1, v{t2}")
    a(f"v_and_b32 v{t0}, 1, v{t0}")
    a(f"v_lshl_or_b32 v{t2}, v{t0}, 1, v{t2}")
    a(f"v_lshl_add_u32 v{d}, v{t2}, 5, v{t1}")

ZSLOT = [56*1024, 84*1024, 112*1024, 0, 28*1024]
W1SL = [0, 12288, 28672, 40960, 57344, 69632, 86016, 98304]
QSLOT = [86016, 43008, 0]

def gelu_core(a, xs, ts, A3, A1, RI):
    for k, (x, t) in enumerate(zip(xs, ts)): a(f"v_pk_mul_f32 {V(t,2)}, {V(x,2)}, {V(x,2)}")
    for k, (x, t) in enumerate(zip(xs, ts)): a(f"v_pk_fma_f32 {V(t,2)}, {V(t,2)}, {A3[k][0]}, {A1[k][0]} {A3[k][1]}")
    for k, (x, t) in enumerate(zip(xs, ts)): a(f"v_pk_mul_f32 {V(t,2)}, {V(t,2)}, {V(x,2)}")
    for k, (x, t) in enumerate(zip(xs, ts)):
        a(f"v_exp_f32 v{t}, v{t}"); a(f"v_exp_f32 v{t+1}, v{t+1}")
    for k, (x, t) in enumerate(zip(xs, ts)): a(f"v_pk_fma_f32 {V(t,2)}, {V(t,2)}, {RI[k][0]}, {RI[k][0]} {RI[k][1]}")
    for k, (x, t) in enumerate(zip(xs, ts)):
        a(f"v_rcp_f32 v{t}, v{t}"); a(f"v_rcp_f32 v{t+1}, v{t+1}")
    for k, (x, t) in enumerate(zip(xs, ts)): a(f"v_pk_mul_f32 {V(x,2)}, {V(x,2)}, {V(t,2)}")

def zcount(a, dG, dN):
    a(f"s_mul_i32 s{dG}, s{sGRP}, 6")
    a(f"s_min_u32 s{dG}, s{dG}, 40")
    a(f"s_sub_u32 s{dN}, 40, s{dG}")
    a(f"s_min_u32 s{dN}, s{dN}, 6")
    a(f"s_cmp_eq_u32 s{sGRP}, 7")
    a(f"s_cselect_b32 s{dN}, 3, s{dN}")

def az_compute(a, fused):
    ACC, XR = 32, 128
    ONES, SUM, GRM, CWA = 28, 80, 88, 96
    ring = list(range(104, 128, 4))
    a(f"s_lshl_b32 s61, s{sQ}, 12")
    rowfrag_addr(a, 10, 11, "s61")
    zw_addr(a, 12, 13)
    a(f"s_bitcmp1_b32 s{sQ}, 0")
    a("s_cselect_b64 vcc, -1, 0")
    a("v_cndmask_b32 v18, v12, v13, vcc")
    a(f"s_lshl_b32 s61, s{sQ}, 5")
    a(f"s_and_b32 s62, s{sQ}, 1")
    a("s_lshl_b32 s62, s62, 5")
    a("s_add_u32 s62, s62, 128")
    a("v_add_u32 v19, s62, v18")
    a("v_add_u32 v18, s61, v18")
    for r in range(4): a(f"v_mov_b32 v{ONES+r}, 0x3f803f80")
    zcount(a, 55, 58)
    a(f"s_lshl_b32 s61, s{sQ}, 7")
    a(f"s_add_u32 s61, s61, {L_TAB}")
    a("v_and_b32 v3, 0x30, v1")
    a("v_add_u32 v4, s61, v3")
    a(f"v_add_u32 v7, {L_CW + 384}, v3")
    a("v_and_b32 v3, 15, v1")
    a("v_lshl_add_u32 v5, v3, 2, s61")
    a("v_lshlrev_b32 v3, 2, v3")
    a(f"v_add_u32 v6, {L_CW}, v3")
    a("v_lshlrev_b32 v8, 4, v1")
    a("v_lshlrev_b32 v9, 3, v1")
    a(f"s_lshl_b32 s61, s{sQ}, 6")
    a(f"s_and_b32 s62, s{sQ}, 1")
    a("s_lshl_b32 s62, s62, 6")
    a("s_add_u32 s62, s62, 256")
    a("v_add_u32 v22, s61, v6")
    a("v_add_u32 v23, s62, v6")
    a("v_add_u32 v24, s61, v7")
    a("v_add_u32 v25, s62, v7")
    a(f"s_lshl_b32 s57, s{sRB}, 2")
    a(f"s_add_u32 s57, s57, s{sQ}")
    a(f"s_lshl_b32 s53, s{sGRP}, 6")
    a("s_add_u32 s53, s53, s57")
    a("s_mul_i32 s53, s53, 6144")
    a(f"s_add_u32 s53, s53, {WS_Z2N}")
    a("s_mul_i32 s54, s57, 48")
    a("s_add_u32 s54, s54, s55")
    a("s_lshl_b32 s54, s54, 10")
    a(f"s_add_u32 s54, s54, {WS_Z1}")
    a(f"s_lshl_b32 s56, s{sRB}, 3")
    a(f"s_add_u32 s56, s56, s{sGRP}")
    a("s_lshl_b32 s56, s56, 2")
    a(f"s_add_u32 s56, s56, s{sQ}")
    a("s_lshl_b32 s56, s56, 9")
    a(f"s_add_u32 s56, s56, {WS_ST2}")
    def xreg(s, kk, T): return XR + ((s*2 + kk)*2 + T)*4
    def wfrag(step, kk, j):
        return dict(step=step, reg=None, reads=[(lambda r, hh=hh: f"ds_read_b64_tr_b16 {V(r+2*hh,2)}, v{16+(j&1)} offset:{j*32 + kk*6144 + hh*768}") for hh in range(2)])
    def cfrag(step, kk, t):
        return dict(step=step, reg=None, reads=[(lambda r, hh=hh: f"ds_read_b64_tr_b16 {V(r+2*hh,2)}, v{20+t} offset:{kk*6144 + hh*768}") for hh in range(2)])
    fr = {}; mf = []
    for s in range(8):
        for kk in range(2):
            for T in range(2):
                fr[('x', s, kk, T)] = dict(step=s, reg=xreg(s, kk, T), reads=[lambda r, kk=kk, T=T: f"ds_read_b128 {V(r)}, v{14+kk} offset:{T*2048}"])
            for j in range(6):
                fr[('w', s, kk, j)] = wfrag(s, kk, j)
                for T in range(2): mf.append((ACC + (j*2+T)*4, ('x', s, kk, T), ('w', s, kk, j)))
                if j in (1, 3):
                    T = j >> 1
                    mf.append((SUM+4*T, 'ones', ('x', s, kk, T)))
                    mf.append((GRM+4*T, ('x', s, kk, T), ('x', s, kk, T)))
                if j in (2, 5):
                    t = j // 3
                    fr[('c', s, kk, t)] = cfrag(s, kk, t)
                    mf.append((CWA+4*t, 'ones', ('c', s, kk, t)))
    fr['ones'] = dict(step=0, reg=ONES, reads=None)
    def pre1(s):
        for r in range(2): a(f"v_add_u32 v{14+r}, {ZSLOT[s % 5]}, v{10+r}")
        for r in range(2): a(f"v_add_u32 v{16+r}, {ZSLOT[s % 5] + 16384}, v{12+r}")
        for r in range(2): a(f"v_add_u32 v{20+r}, {ZSLOT[s % 5] + 16384}, v{18+r}")
    l2_setup(a, 26)
    for r in range(2, 4): a(f"v_mov_b32 v{ONES+r}, 0x3f803f80")
    a.stamp()
    gemm_stream(a, mf, fr, ring, opt('LA', 10), opt('cover', 3), pre1, stamps=(0, 1, 4), hooks=l2_hooks(a, 26))
    a.stamp()
    for T in range(2): diag_sel(a, 104+T, GRM+4*T)
    for T in range(2): row_finalize(a, SUM+4*T, 104+T, 0)
    a(f"ds_write_b32 v22, v{CWA}")
    a(f"ds_write_b32 v23, v{CWA+4}")
    for T in range(2): a(f"v_rsq_f32 v{106+T}, v{104+T}")
    for T in range(2): a(f"v_sqrt_f32 v{104+T}, v{104+T}")
    for T in range(2): a(f"v_mul_f32 v{108+T}, v{106+T}, v{106+T}")
    for T in range(2): a(f"v_mul_f32 v{108+T}, v{108+T}, v{106+T}")
    for T in range(2): a(f"v_mul_f32 v{108+T}, {f2u(-C2):#x}, v{108+T}")
    for T in range(2): a(f"v_mul_f32 v{106+T}, {f2u(-C1):#x}, v{106+T}")
    a(f"s_mov_b32 exec_lo, {DIAG_LO:#x}\ns_mov_b32 exec_hi, {DIAG_HI:#x}")
    for T in range(2):
        for k, r in enumerate((SUM+4*T, 108+T, 106+T, 104+T)): a(f"ds_write_b32 v5, v{r} offset:{64*T + TP*k}")
    a("s_mov_b64 exec, -1")
    for r in range(112, 128): a(f"v_mov_b32 v{r}, 0")
    a("s_waitcnt lgkmcnt(0)")
    for T in range(2):
        for k in range(4): a(f"ds_read_b128 {V(80+16*T+4*k)}, v4 offset:{64*T + TP*k}")
    a("s_barrier")
    CWR = [10, 11, 14, 15, 16, 17]
    for j in range(6): a(f"ds_read_b32 v{CWR[j]}, v6 offset:{64*j}")
    a(f"v_mov_b32 v3, {L_MISC + 256}")
    a("ds_read_b32 v31, v3")
    a(f"s_mul_i32 s61, s{sQ}, 6144")
    a(f"s_add_u32 s61, s61, {L_PARK}")
    a("v_add_u32 v30, s61, v8")
    a("s_waitcnt lgkmcnt(0)")
    for j in range(6):
        skip = a.label("Lz2skip")
        a(f"s_cmp_gt_u32 s58, {j}")
        a(f"s_cbranch_scc0 {skip}")
        xs = [ACC + (j*2+T)*4 + 2*p for T in range(2) for p in range(2)]
        tb = [80 + 16*T + 2*p for T in range(2) for p in range(2)]
        sel = f"op_sel:[0,{j&1},0] op_sel_hi:[1,{j&1},1]"
        for x, t in zip(xs, tb): a(f"v_pk_fma_f32 {V(x,2)}, {V(t,2)}, {V(CWR[j&~1],2)}, {V(x,2)} {sel} neg_lo:[1,0,0] neg_hi:[1,0,0]")
        gelu_core(a, xs, [20, 22, 26, 28], [(V(t+4,2), "") for t in tb], [(V(t+8,2), "") for t in tb], [(V(t+12,2), "") for t in tb])
        for k, x in enumerate(xs): a(f"v_pk_add_f32 {V(112+2*k,2)}, {V(112+2*k,2)}, {V(x,2)}")
        for k, x in enumerate(xs): a(f"v_pk_fma_f32 {V(120+2*k,2)}, {V(x,2)}, {V(x,2)}, {V(120+2*k,2)}")
        e, o = ACC + j*8, ACC + j*8 + 4
        for i in range(4): a(f"v_cvt_pk_bf16_f32 v{e+i}, v{e+i}, v{o+i}")
        a(f"ds_write_b128 v30, {V(e)} offset:{j*1024}")
        a(f"{skip}:")
    def val(i, T, st): return 112 + 8*st + 4*T + i
    for st in range(2):
        for T in range(2):
            for i in range(2):
                A, B = val(i, T, st), val(i+2, T, st)
                a(f"v_add_f32_dpp v{A}, v{A}, v{A} row_ror:8 row_mask:0xf bank_mask:0x3")
                a(f"v_add_f32_dpp v{A}, v{B}, v{B} row_ror:8 row_mask:0xf bank_mask:0xc")
    a("s_mov_b32 s60, 0x22222222\ns_mov_b32 s61, 0x22222222")
    for st in range(2):
        for T in range(2):
            A, B = val(0, T, st), val(1, T, st)
            a(f"v_add_f32_dpp v{A}, v{A}, v{A} row_half_mirror row_mask:0xf bank_mask:0x5")
            a(f"v_add_f32_dpp v{A}, v{B}, v{B} row_half_mirror row_mask:0xf bank_mask:0xa")
    a("s_mov_b32 s62, 0x44444444\ns_mov_b32 s63, 0x44444444")
    for qp in ("[1,0,3,2]", "[2,3,0,1]"):
        for st in range(2):
            for T in range(2):
                A = val(0, T, st)
                a(f"v_add_f32_dpp v{A}, v{A}, v{A} quad_perm:{qp} row_mask:0xf bank_mask:0xf")
    a(f"v_cndmask_b32 v112, v{val(0,0,0)}, v{val(0,0,1)}, s[60:61]")
    a("s_mov_b32 s60, 0x88888888\ns_mov_b32 s61, 0x88888888")
    a(f"v_cndmask_b32 v112, v112, v{val(0,1,0)}, s[62:63]")
    a(f"v_cndmask_b32 v112, v112, v{val(0,1,1)}, s[60:61]")
    a("v_mov_b32 v113, v31")
    a.vmem(f"buffer_store_dwordx2 {V(112,2)}, v9, {S4(WS_)}, s56 offen sc1", "st")
    a.stamp()
    fr = {}; mf = []
    for u in range(8):
        for kk in range(2):
            for T in range(2): fr[('x', u, kk, T)] = dict(step=u, reg=xreg(u, kk, T), reads=None)
            for j in range(6):
                fr[('w', u, kk, j)] = wfrag(u, kk, j)
                for T in range(2): mf.append((ACC + (j*2+T)*4, ('w', u, kk, j), ('x', u, kk, T)))
                if j in (2, 5):
                    t = j // 3
                    fr[('c', u, kk, t)] = cfrag(u, kk, t)
                    mf.append((120+4*t, ('c', u, kk, t), 'ones'))
    fr['ones'] = dict(step=0, reg=ONES, reads=None)
    for r in range(4): a(f"v_mov_b32 v{ONES+r}, 0x3f803f80")
    a("s_waitcnt lgkmcnt(0)")
    def pre2(u):
        for r in range(2): a(f"v_add_u32 v{16+r}, {W1SL[u]}, v{12+r}")
        for r in range(2): a(f"v_add_u32 v{20+r}, {W1SL[u]}, v{18+r}")
    ring2 = list(range(80, 112, 4))
    gemm_stream(a, mf, fr, ring2, opt('LA', 10), opt('cover', 3), pre2, nobar=1)
    a.stamp()
    for T in range(2):
        for k in range(4): a(f"ds_read_b32 v{104+4*k+2*T}, v5 offset:{64*T + TP*k}")
    a("s_mov_b32 exec_lo, 0x00010001\ns_mov_b32 exec_hi, 0x00010001")
    a(f"ds_write_b128 v24, {V(120)}")
    a(f"ds_write_b128 v25, {V(124)}")
    a("s_mov_b64 exec, -1")
    a("s_waitcnt lgkmcnt(0)")
    a.vmall()
    a("s_barrier")
    for j in range(6): a(f"ds_read_b128 {V(80+4*j)}, v7 offset:{64*j}")
    a("s_waitcnt lgkmcnt(0)")
    for j in range(6):
        skip = a.label("Lz1skip")
        a(f"s_cmp_gt_u32 s58, {j}")
        a(f"s_cselect_b32 s61, s54, {OOB}")
        a(f"s_cbranch_scc0 {skip}")
        xs = [ACC + (j*2+T)*4 + 2*p for T in range(2) for p in range(2)]
        for k, x in enumerate(xs): a(f"v_pk_fma_f32 {V(x,2)}, {V(80+4*j+2*(k%2),2)}, {V(104+2*(k//2),2)}, {V(x,2)} op_sel_hi:[1,0,1] neg_lo:[1,0,0] neg_hi:[1,0,0]")
        b = "op_sel_hi:[1,0,0]"
        gelu_core(a, xs, [20, 22, 26, 28], [(V(108+2*(k//2),2), b) for k in range(4)], [(V(112+2*(k//2),2), b) for k in range(4)], [(V(116+2*(k//2),2), b) for k in range(4)])
        e = ACC + j*8
        for k, x in enumerate(xs): a(f"v_cvt_pk_bf16_f32 v{e+k}, v{x}, v{x+1}")
        a("s_nop 1")
        for p in range(2): a(f"v_permlane32_swap_b32 v{e+p}, v{e+2+p}")
        a(f"{skip}:")
        if j >= 4: a("s_add_u32 s61, s61, 4096")
        a.vmem(f"buffer_store_dwordx4 {V(e)}, v8, {S4(WS_)}, s61 offen offset:{(j%4)*1024} sc1", "z1")
    a.stamp()

def red_g(a, regs, op="v_add_f32", tmp=60):
    n = len(regs)
    for sw in ("v_permlane32_swap_b32", "v_permlane16_swap_b32"):
        for k, r in enumerate(regs): a(f"v_mov_b32 v{tmp+k}, v{r}")
        if n < 3: a("s_nop 1")
        for k, r in enumerate(regs): a(f"{sw} v{r}, v{tmp+k}")
        for k, r in enumerate(regs): a(f"{op} v{r}, v{r}, v{tmp+k}")

def wsp_setup_h(a):
    rowtile_voffs(a, 8, 9, 12)
    a(f"s_lshl_b32 s59, s{sRB}, 2")
    a(f"s_add_u32 s59, s59, s{sQ}")
    a("s_lshl_b32 s59, s59, 17")
    a(f"s_lshl_b32 s61, s{sKS}, 11")
    a("s_add_u32 s59, s59, s61")

def wsp_group_h(a, v):
    a(f"s_add_u32 s61, s{sK0B}, {v}")
    a("s_and_b32 s61, s61, 15")
    a("s_lshl_b32 s61, s61, 7")
    a("s_add_u32 s61, s61, s59")
    a(f"s_add_u32 m0, s60, {(v % NWS) * 16384}")
    a("s_add_u32 s62, s61, 4096")
    a.vmem(f"buffer_load_dwordx4 v8, {S4(WSP_)}, s61 offen lds", ("S", v))
    a.vmem(f"buffer_load_dwordx4 v9, {S4(WSP_)}, s61 offen offset:1024 lds", ("S", v))
    a(f"s_add_u32 m0, s60, {(v % NWS) * 16384 + 2048}")
    a("s_nop 0")
    a.vmem(f"buffer_load_dwordx4 v8, {S4(WSP_)}, s62 offen lds", ("S", v))
    a.vmem(f"buffer_load_dwordx4 v9, {S4(WSP_)}, s62 offen offset:1024 lds", ("S", v))

def l2_setup(a, d):
    a("v_lshrrev_b32 v31, 1, v1")
    a("v_lshlrev_b32 v31, 12, v31")
    a("v_and_b32 v30, 1, v1")
    a(f"v_lshl_add_u32 v{d}, v30, 7, v31")
    a(f"v_lshlrev_b32 v{d+1}, 7, v1")
    a(f"s_lshl_b32 s68, s{sRB}, 2")
    a(f"s_add_u32 s68, s68, s{sQ}")
    a("s_lshl_b32 s68, s68, 17")
    a(f"s_lshl_b32 s61, s{sKS}, 3")
    a(f"s_add_u32 s61, s61, s{sCG}")
    a("s_lshl_b32 s61, s61, 8")
    a("s_add_u32 s68, s68, s61")
    a("s_lshr_b32 s61, s2, 3")
    a("s_lshl_b32 s61, s61, 2")
    a(f"s_add_u32 s61, s61, s{sQ}")
    a("s_lshl_b32 s69, s61, 12")
    a(f"s_mul_i32 s70, s61, {43*128}")
    a(f"s_mov_b32 m0, {L_MISC}")
def l2_hooks(a, d):
    o = opt('l2step', 7)
    def h0(): a.vmem(f"buffer_load_dword v{d}, {S4(WSP_)}, s68 offen {'nt' if opt('l2nt', 0) else ''} lds", "pf")
    def h1():
        a("s_mov_b32 exec_hi, 0")
        a.vmem(f"buffer_load_dword v{d+1}, {S4(WO_)}, s69 offen lds", "pf")
        a("s_mov_b32 exec_hi, 0x7ff")
        a.vmem(f"buffer_load_dword v{d+1}, {S4(WOUT_)}, s70 offen lds", "pf")
        a("s_mov_b32 exec_hi, -1")
    return {o: h0, opt('l2step2', 5): h1} if opt('l2pf', 1) else {}

def x_group_h(a, step, sl, tag):
    a(f"s_add_u32 s61, s{sK0A}, {step}")
    a("s_and_b32 s61, s61, 7")
    a("s_lshl_b32 s58, s61, 7")
    a("s_add_u32 s62, s58, s53")
    a(f"s_add_u32 m0, s60, {sl}")
    a("s_add_u32 s63, s62, 1024")
    a.vmem(f"buffer_load_dwordx4 v4, {S4(X_)}, s62 offen lds", tag)
    a.vmem(f"buffer_load_dwordx4 v5, {S4(X_)}, s62 offen offset:1024 lds", tag)
    a(f"s_add_u32 m0, s60, {sl + 2048}")
    a("s_nop 0")
    a.vmem(f"buffer_load_dwordx4 v4, {S4(X_)}, s63 offen lds", tag)
    a.vmem(f"buffer_load_dwordx4 v5, {S4(X_)}, s63 offen offset:1024 lds", tag)

def dots_x(a, fr, acc_s, acc_q, ones):
    for i in range(4):
        a(f"v_dot2_f32_bf16 v{acc_s}, v{fr+i}, v{ones}, v{acc_s}")
        a(f"v_dot2_f32_bf16 v{acc_q}, v{fr+i}, v{fr+i}, v{acc_q}")

def diag_sel(a, dst, gram):
    a("s_mov_b32 s62, 0x22222222\ns_mov_b32 s63, 0x22222222")
    a(f"v_cndmask_b32 v{dst}, v{gram}, v{gram+1}, s[62:63]")
    a("s_mov_b32 s62, 0x44444444\ns_mov_b32 s63, 0x44444444")
    a(f"v_cndmask_b32 v{dst}, v{dst}, v{gram+2}, s[62:63]")
    a("s_mov_b32 s62, 0x88888888\ns_mov_b32 s63, 0x88888888")
    a(f"v_cndmask_b32 v{dst}, v{dst}, v{gram+3}, s[62:63]")
DIAG_LO, DIAG_HI = 0x00f0000f, 0xf0000f00

def row_finalize(a, s_, q_, t):
    a(f"v_mul_f32 v{s_}, {f2u(1.0/512):#x}, v{s_}")
    a(f"v_mul_f32 v{q_}, {f2u(1.0/512):#x}, v{q_}")
    a(f"v_fma_f32 v{q_}, -v{s_}, v{s_}, v{q_}")
    a(f"v_max_f32 v{q_}, 0, v{q_}")
    a(f"v_add_f32 v{q_}, {f2u(1e-5):#x}, v{q_}")

def nonce_publish(a):
    a(f"s_or_b32 s61, s2, s{sQ}")
    a("s_cmp_eq_u32 s61, 0")
    a("s_cselect_b32 s61, 0, 256")
    a("s_or_b32 s62, s84, 1")
    a("v_mov_b32 v30, s62")
    a("v_mov_b32 v31, 0")
    a("s_mov_b64 exec, 1")
    a.vmem(f"buffer_store_dword v30, v31, {S4(DBG_)}, s61 offen sc1", "nonce")
    a("s_mov_b64 exec, -1")

def nonce_check(a):
    a.vmwait("poll")
    def chk():
        a(f"v_readfirstlane_b32 s{sT}, v25")
        a(f"s_cmp_lg_u32 s{sT}, 0")
    def iss():
        a("v_mov_b32 v31, 0")
        a(f"buffer_load_dword v25, v31, {S4(DBG_)}, 0 offen sc1")
    spin(a, iss, chk)

def wave_flag(a):
    a(f"s_lshl_b32 s61, s{sGRP}, 4")
    a(f"s_add_u32 s61, s61, s{sRB}")
    a("s_lshl_b32 s61, s61, 2")
    a(f"s_add_u32 s61, s61, s{sQ}")
    a("s_lshl_b32 s61, s61, 7")
    a(f"s_add_u32 s61, s61, {F1_OFF}")
    a(f"v_mov_b32 v30, s{sT}")
    a("v_mov_b32 v31, 0")
    a("s_mov_b64 exec, 1")
    a.vmem(f"buffer_store_dword v30, v31, {S4(WS_)}, s61 offen sc1", "flag")
    a("s_mov_b64 exec, -1")

def spin(a, issue, check_ok, limit=0x40000):
    lp = a.label("Lspin"); ok = a.label("Lok")
    check_ok()
    a(f"s_cbranch_scc1 {ok}")
    a("s_mov_b32 s63, 0")
    a(f"{lp}:")
    issue()
    a("s_waitcnt vmcnt(0)")
    a("s_add_u32 s63, s63, 1")
    a(f"s_cmp_gt_u32 s63, {limit}")
    a(f"s_cbranch_scc1 {ok}")
    check_ok()
    a(f"s_cbranch_scc0 {lp}")
    a(f"{ok}:")

def az_helper(a, fused):
    srd(a, WA_, 72, D*F2*2)
    rowtile_voffs(a, 4, 5, 10)
    for i in range(3):
        a(f"v_add_u32 v3, {64*i}, v1")
        a("v_mul_u32_u24 v30, 683, v3")
        a("v_lshrrev_b32 v30, 13, v30")
        a("v_mul_u32_u24 v31, 12, v30")
        a("v_sub_u32 v31, v3, v31")
        a("v_lshrrev_b32 v3, 2, v30")
        a("v_and_b32 v3, 2, v3")
        a("v_xor_b32 v31, v3, v31")
        a("v_mul_u32_u24 v30, 2752, v30")
        a(f"v_lshl_add_u32 v{20+i}, v31, 4, v30")
        if i: a(f"v_subrev_u32 v{20+i}, {1024*i}, v{20+i}")
    a(f"s_lshl_b32 s53, s{sRB}, 2")
    a(f"s_add_u32 s53, s53, s{sQ}")
    a("s_lshl_b32 s53, s53, 15")
    a(f"s_mul_i32 s55, s{sGRP}, 6")
    a("s_min_u32 s55, s55, 40")
    a(f"s_mul_i32 s54, s{sQ}, {16*2752}")
    a("s_lshl_b32 s61, s55, 5")
    a("s_add_u32 s54, s54, s61")
    a(f"s_mul_i32 s56, s{sQ}, 3072")
    a(f"s_lshl_b32 s60, s{sQ}, 12")
    def wgroup(kreg_ready, step, dst, add, tag):
        if not kreg_ready:
            a(f"s_add_u32 s61, s{sK0A}, {step}")
            a("s_and_b32 s61, s61, 7")
        a(f"s_mul_i32 s63, s61, {64*2752}")
        a("s_add_u32 s63, s63, s54")
        a(f"s_add_u32 m0, s56, {dst}")
        if add: a(f"s_add_u32 s63, s63, {add}")
        else: a("s_nop 0")
        for i in range(3):
            a.vmem(f"buffer_load_dwordx4 v{20+i}, {S4(WA_)}, s63 offen offset:{1024*i} lds", tag)
    def ga(step):
        x_group_h(a, step, ZSLOT[step % 5], ("A", step))
        wgroup(True, step, ZSLOT[step % 5] + 16384, 1376, ("A", step))
    npro = opt('proZ', 2)
    ga(0)
    nonce_publish(a)
    for st in range(1, npro): ga(st)
    late_srds(a)
    wsp_setup_h(a)
    a("v_lshlrev_b32 v10, 3, v1")
    a(f"s_lshl_b32 s64, s{sRB}, 5")
    a(f"s_add_u32 s64, s64, s{sQ}")
    a("s_lshl_b32 s64, s64, 9")
    a(f"s_add_u32 s64, s64, {WS_ST2}")
    a("s_add_u32 s65, s64, 4096\ns_add_u32 s66, s64, 8192\ns_add_u32 s67, s64, 12288")
    a("v_lshlrev_b32 v11, 4, v1")
    a(f"s_mul_i32 s61, s{sQ}, 6144")
    a(f"s_add_u32 s61, s61, {L_PARK}")
    a("v_add_u32 v11, s61, v11")
    a(f"s_lshl_b32 s61, s{sQ}, 8")
    a(f"s_add_u32 s61, s61, {L_XCH}")
    a("v_lshrrev_b32 v12, 1, v1")
    a("v_lshl_add_u32 v12, v12, 2, s61")
    a("v_lshrrev_b32 v13, 4, v1")
    a("v_lshl_add_u32 v13, v13, 5, s61")
    a("v_lshrrev_b32 v3, 5, v1")
    a("v_mul_u32_u24 v3, 3072, v3")
    a("v_bfe_u32 v30, v1, 4, 1")
    a("v_lshl_add_u32 v3, v30, 9, v3")
    a("v_and_b32 v30, 15, v1")
    a("v_lshl_add_u32 v14, v30, 4, v3")
    a(f"s_lshl_b32 s57, s{sGRP}, 4")
    a(f"s_add_u32 s57, s57, s{sRB}")
    a("s_lshl_b32 s57, s57, 2")
    a(f"s_add_u32 s57, s57, s{sQ}")
    a("s_mul_i32 s57, s57, 6144")
    a(f"s_add_u32 s57, s57, {WS_Z2N}")
    a("v_mov_b32 v16, 0xffff0000")
    a.stamp()
    for s in range(8):
        a.vmwait(("A", s))
        a("s_barrier")
        if s in (0, 1, 4): a.stamp()
        if s == 0:
            for st in range(npro, 5): ga(st)
        elif s <= 3: ga(s + 4)
        else:
            if s == 5:
                a("v_mov_b32 v31, 0")
                a.vmem(f"buffer_load_dword v25, v31, {S4(DBG_)}, 0 offen sc1", "poll")
            for u in (2*(s-4), 2*(s-4)+1): wgroup(False, u, W1SL[u], 0, ("W1", u))
    nonce_check(a)
    a(f"v_mov_b32 v30, s{sT}")
    a(f"v_mov_b32 v31, {L_MISC + 256}")
    a("ds_write_b32 v31, v30")
    a("s_waitcnt lgkmcnt(0)")
    a.stamp()
    a("s_barrier")
    a.vmall()
    a("s_barrier")
    a(f"s_setprio {opt('nprio', 3)}")
    for j in range(6): a(f"ds_read_b128 {V(64+4*j)}, v11 offset:{1024*j}")
    def iss():
        for c in range(8):
            a(f"buffer_load_dwordx2 {V(32+2*c,2)}, v10, {S4(WS_)}, s{64 + (c>>1)} offen offset:{2048*(c&1)} sc1")
    def chk():
        for c in range(8): a(f"v_xor_b32 v{48+c}, s{sT}, v{33+2*c}")
        a("v_or3_b32 v48, v48, v49, v50\nv_or3_b32 v51, v51, v52, v53\nv_or3_b32 v48, v48, v54, v55")
        a("v_or_b32 v48, v48, v51")
        a("v_cmp_ne_u32 vcc, 0, v48")
        a("s_cmp_eq_u64 vcc, 0")
    a("s_waitcnt lgkmcnt(0)")
    for j in range(6):
        for w in range(4):
            a(f"v_lshlrev_b32 v{96+8*j+2*w}, 16, v{64+4*j+w}")
            a(f"v_and_b32 v{96+8*j+2*w+1}, v16, v{64+4*j+w}")
    zcount(a, 62, 58)
    iss(); a("s_waitcnt vmcnt(0)")
    spin(a, iss, chk)
    a.stamp()
    for k in (2, 4, 6): a(f"v_add_f32 v{32+2*k}, v{32+2*k}, v{34+2*k}")
    a("v_add_f32 v32, v32, v34")
    a("v_add_f32 v36, v36, v40")
    a("v_add_f32 v32, v32, v44")
    a("v_add_f32 v32, v32, v36")
    a(f"v_mul_f32 v32, {f2u(1.0/688):#x}, v32")
    a("s_nop 1")
    a("v_mov_b32_dpp v33, v32 quad_perm:[1,0,3,2] row_mask:0xf bank_mask:0xf")
    a("v_fma_f32 v33, -v32, v32, v33")
    a("v_max_f32 v33, 0, v33")
    a(f"v_add_f32 v33, {f2u(1e-5):#x}, v33")
    a("v_rsq_f32 v33, v33")
    a("s_mov_b32 exec_lo, 0x55555555\ns_mov_b32 exec_hi, 0x55555555")
    a("v_mul_f32_e64 v32, -v32, v33")
    a("ds_write_b32 v12, v33")
    a("ds_write_b32 v12, v32 offset:128")
    a("s_mov_b64 exec, -1")
    a("s_waitcnt lgkmcnt(0)")
    for k in range(2): a(f"ds_read_b128 {V(32+4*k)}, v13 offset:{16*k}")
    for k in range(2): a(f"ds_read_b128 {V(40+4*k)}, v13 offset:{128 + 16*k}")
    for j in range(6):
        z = 64 + 4*j; u = 96 + 8*j
        if j == 0: a("s_waitcnt lgkmcnt(0)")
        for w in range(8): a(f"v_fma_f32 v{u+w}, v{u+w}, v{32+w}, v{40+w}")
        for w in range(4): a(f"v_cvt_pk_bf16_f32 v{z+w}, v{u+2*w}, v{u+2*w+1}")
        a(f"s_cmp_gt_u32 s58, {j}")
        a(f"s_cselect_b32 s61, s57, {OOB}")
        a.vmem(f"buffer_store_dwordx4 {V(z)}, v14, {S4(WS_)}, s61 offen offset:{(j>>1)*1024 + (j&1)*256} sc1", "z2n")
    a("s_setprio 0")
    a.stamp()
    a.vmwait("z2n")
    wave_flag(a)
    a.stamp()
    a("s_barrier")
    for v in range(opt('wpre', 3)): wsp_group_h(a, v)

def aq_compute(a, fused):
    AQ, AK, AV, HK, HV = 32, 64, 96, 128, 136
    ONES, SUM, GRM, XA = 28, 224, 232, 240
    CWQ = [128, 132, 136, 140, 240, 244]
    ring = list(range(144, 200, 4))
    MC, MPN, MPA, MB = 200, 204, 208, 216
    a(f"s_lshr_b32 s5, s{sQ}, 1")
    a(f"s_and_b32 s46, s{sQ}, 1")
    a("s_lshl_b32 s61, s5, 13")
    rowfrag_addr(a, 10, 11, "s61")
    rowfrag_addr(a, 12, 13, 16384)
    qw_addr(a, 14)
    a("v_add_u32 v14, 18432, v14")
    a("s_lshl_b32 s61, s46, 6")
    a("v_xor_b32 v14, s61, v14")
    a("v_xor_b32 v15, 32, v14")
    a("v_and_b32 v3, 15, v1")
    a("v_lshrrev_b32 v30, 4, v1")
    a("v_lshlrev_b32 v30, 2, v30")
    a("v_sub_u32 v31, v3, v30")
    a(f"v_mov_b32 v224, {NEG:#x}")
    a("v_mov_b32 v225, 0xffff")
    a("v_mov_b32 v226, 0xffff0000")
    for i in range(4):
        a(f"v_subrev_u32 v227, {i}, v31")
        a("v_cmp_gt_u32 vcc, 8, v227")
        a("v_cmp_gt_i32 s[62:63], -8, v227")
        a("s_nop 0")
        a(f"v_cndmask_b32_e64 v{MC+i}, v224, 0, vcc")
        a(f"v_cndmask_b32_e64 v{228+i}, 0, v{225 + (i&1)}, vcc")
        a(f"v_cndmask_b32_e64 v{MPN+i}, v224, 0, s[62:63]")
    a(f"v_or_b32 v{MB}, v228, v229")
    a(f"v_or_b32 v{MB+1}, v230, v231")
    a("s_lshl_b32 s61, s5, 8")
    a(f"s_add_u32 s61, s61, {L_TAB}")
    a("v_and_b32 v27, 0x30, v1")
    a("v_add_u32 v218, s61, v27")
    a("v_lshl_add_u32 v219, v3, 2, s61")
    a("s_lshl_b32 s61, s46, 7")
    a(f"s_add_u32 s61, s61, {L_CW}")
    a("v_add_u32 v220, s61, v27")
    a("v_lshl_add_u32 v221, v3, 2, s61")
    a("v_lshlrev_b32 v222, 4, v1")
    a("s_lshl_b32 s61, s46, 12")
    a(f"s_add_u32 s61, s61, {L_XCH}")
    a("v_add_u32 v223, s61, v222")
    a(f"s_lshl_b32 s53, s{sRB}, 1")
    a("s_add_u32 s53, s53, s5")
    a("s_lshl_b32 s53, s53, 4")
    a(f"s_add_u32 s53, s53, s{sGRP}")
    a("s_lshl_b32 s53, s53, 1")
    a("s_add_u32 s53, s53, s46")
    a("s_lshl_b32 s53, s53, 11")
    a(f"s_add_u32 s53, s53, {WS_O}")
    a("s_add_u32 s54, s53, 32768")
    a("v_lshrrev_b32 v27, 4, v1")
    a("v_lshlrev_b32 v27, 9, v27")
    a("v_lshl_add_u32 v4, v3, 4, v27")
    AT = 16
    def build(halo, hp):
        fr = {'ones': dict(step=0, reg=ONES, reads=None)}; mf = []
        for s in range(8):
            for kk in range(2):
                for tl in range(4):
                    fr[('x', s, kk, tl)] = dict(step=s, reg=None, reads=[lambda r, kk=kk, tl=tl: f"ds_read_b128 {V(r)}, v{AT+kk} offset:{tl*2048}"])
                fr[('h', s, kk)] = dict(step=s, reg=None, reads=[lambda r, kk=kk: f"ds_read_b128 {V(r)}, v{AT+2+kk}"])
                for m in range(3):
                    for e in range(2):
                        w = ('w', s, kk, m, e)
                        fr[w] = dict(step=s, reg=None, reads=[(lambda r, hh=hh, kk=kk, m=m, e=e: f"ds_read_b64_tr_b16 {V(r+2*hh,2)}, v{AT+4+e} offset:{kk*12288 + m*1024 + hh*512}") for hh in range(2)])
                        for tl in range(4):
                            d = (AQ, AK, AV)[m] + (e*4+tl)*4
                            mf.append((d, w, ('x', s, kk, tl)) if m < 2 else (d, ('x', s, kk, tl), w))
                        if halo and m == 1: mf.append((HK+4*e, w, ('h', s, kk)))
                        if halo and m == 2: mf.append((HV+4*e, ('h', s, kk), w))
                        if not halo: mf.append((CWQ[m*2+e], 'ones', w))
                        if m == 0:
                            x = ('x', s, kk, 2*hp+e)
                            mf.append((SUM+4*e, 'ones', x)); mf.append((GRM+4*e, x, x))
                        if halo and hp == 0 and m == 1:
                            mf.append((XA, 'ones', ('h', s, kk)) if e == 0 else (XA+4, ('h', s, kk), ('h', s, kk)))
        return mf, fr
    def stats_out(halo, hp):
        jobs = [(SUM, GRM, 128*hp), (SUM+4, GRM+4, 128*hp + 64)]
        if halo and hp == 0: jobs.append((XA, XA+4, 512))
        for k, (s_, g_, o) in enumerate(jobs): diag_sel(a, 144+k, g_)
        if not halo:
            for k in range(6): a(f"ds_write_b32 v221, v{CWQ[k]} offset:{256*(k>>1) + 64*(k&1)}")
        for k, (s_, g_, o) in enumerate(jobs): row_finalize(a, s_, 144+k, 0)
        for k, (s_, g_, o) in enumerate(jobs): a(f"v_rsq_f32 v{144+k}, v{144+k}")
        a(f"s_mov_b32 exec_lo, {DIAG_LO:#x}\ns_mov_b32 exec_hi, {DIAG_HI:#x}")
        for k, (s_, g_, o) in enumerate(jobs):
            a(f"ds_write_b32 v219, v{s_} offset:{o}")
            a(f"ds_write_b32 v219, v{144+k} offset:{o + TP}")
        a("s_mov_b64 exec, -1")
    def pre(s):
        for r in range(6): a(f"v_add_u32 v{AT+r}, {QSLOT[s % 3]}, v{10+r}")
    a("v_mov_b32 v26, v30")
    l2_setup(a, 5)
    a("v_mov_b32 v30, v26")
    lr1 = a.label("Lrh1"); lj = a.label("Lqj")
    a("s_cmp_lg_u32 s5, 0")
    a(f"s_cbranch_scc1 {lr1}")
    a("v_lshlrev_b32 v3, 1, v3")
    a("v_sub_u32 v31, v30, v3")
    a(f"s_cmp_eq_u32 s{sRB}, 0")
    a("s_cselect_b32 s61, 1000, 0")
    a("v_subrev_u32 v31, s61, v31")
    for T in range(2):
        for i in range(4):
            if (i ^ T) & 1:
                a(f"v_mov_b32 v{MPA+4*T+i}, v224")
            else:
                a(f"v_cmp_le_i32 vcc, {T + 2 - i}, v31")
                a("s_nop 1")
                a(f"v_cndmask_b32_e64 v{MPA+4*T+i}, v224, 0, vcc")
    n0 = a.nst
    for halo in (True, False):
        if not halo:
            a(f"{lr1}:")
            for i in range(8): a(f"v_mov_b32 v{MPA+i}, v{MPN+(i&3)}")
        lh1 = a.label("Lhp1")
        for r in range(4): a(f"v_mov_b32 v{ONES+r}, 0x3f803f80")
        a("s_cmp_lg_u32 s46, 0")
        a(f"s_cbranch_scc1 {lh1}")
        for hp in range(2):
            if hp: a(f"{lh1}:")
            a.nst = n0
            a.stamp()
            mf, fr = build(halo, hp)
            vm0 = list(a.vm)
            gemm_stream(a, mf, fr, ring, opt('LA', 10), opt('cover', 3), pre, stamps=(0, 1, 4), hooks=l2_hooks(a, 5))
            vm1 = list(a.vm); a.vm = vm0
            a.stamp()
            stats_out(halo, hp)
            a(f"s_branch {lj}")
    a(f"{lj}:")
    a.vm = vm1
    a("s_waitcnt lgkmcnt(0)")
    a("s_barrier")
    for k in range(2): a(f"ds_read_b128 {V(152+4*k)}, v220 offset:{256 + 64*k}")
    for tl in range(4):
        a(f"ds_read_b32 v{162+tl}, v219 offset:{64*tl}")
        a(f"ds_read_b32 v{166+tl}, v219 offset:{64*tl + TP}")
    for e in range(2): a(f"ds_read_b32 v{160+e}, v221 offset:{512 + 64*e}")
    a("s_waitcnt lgkmcnt(2)")
    for tl in range(4):
        a(f"ds_read_b128 {V(172+4*tl)}, v218 offset:{64*tl}")
        a(f"ds_read_b128 {V(10+4*tl)}, v218 offset:{64*tl + TP}")
    for k in range(2): a(f"ds_read_b128 {V(144+4*k)}, v220 offset:{64*k}")
    def corr_t(x, cw, mreg, rreg):
        for p in range(2): a(f"v_pk_fma_f32 {V(x+2*p,2)}, {V(cw+2*p,2)}, {V(mreg&~1,2)}, {V(x+2*p,2)} op_sel:[0,{mreg&1},0] op_sel_hi:[1,{mreg&1},1] neg_lo:[1,0,0] neg_hi:[1,0,0]")
        for p in range(2): a(f"v_pk_mul_f32 {V(x+2*p,2)}, {V(x+2*p,2)}, {V(rreg&~1,2)} op_sel:[0,{rreg&1}] op_sel_hi:[1,{rreg&1}]")
    def corr_c(x, mv, rv, cw):
        for p in range(2): a(f"v_pk_fma_f32 {V(x+2*p,2)}, {V(mv+2*p,2)}, {V(cw&~1,2)}, {V(x+2*p,2)} op_sel:[0,{cw&1},0] op_sel_hi:[1,{cw&1},1] neg_lo:[1,0,0] neg_hi:[1,0,0]")
        for p in range(2): a(f"v_pk_mul_f32 {V(x+2*p,2)}, {V(x+2*p,2)}, {V(rv+2*p,2)}")
    def pack(dst, x):
        for p in range(2): a(f"v_cvt_pk_bf16_f32 v{dst+p}, v{x+2*p}, v{x+2*p+1}")
    KV = 224
    def kp(e, tl): return KV + 8*tl + 2*e
    def vp(e, tl): return KV + 8*tl + 4 + 2*e
    for tl in (2, 3, 0, 1):
        for e in range(2): corr_t(AK + (e*4+tl)*4, 152+4*e, 162+tl, 166+tl)
        for e in range(2): pack(kp(e, tl), AK + (e*4+tl)*4)
    a("s_waitcnt lgkmcnt(0)")
    for tl in (2, 3, 0, 1):
        for e in range(2): corr_c(AV + (e*4+tl)*4, 172+4*tl, 10+4*tl, 160+e)
        for e in range(2): pack(vp(e, tl), AV + (e*4+tl)*4)
        if tl == 3:
            lx = a.label("Lx")
            a("s_cmp_lg_u32 s5, 0")
            a(f"s_cbranch_scc1 {lx}")
            for k in range(4): a(f"ds_write_b128 v223, {V(KV+16+4*k)} offset:{1024*k}")
            a("ds_read_b32 v26, v219 offset:512")
            a(f"ds_read_b32 v27, v219 offset:{512 + TP}")
            a(f"ds_read_b128 {V(188)}, v218 offset:512")
            a(f"ds_read_b128 {V(192)}, v218 offset:{512 + TP}")
            a(f"{lx}:")
    PV = 64
    lh = a.label("Lnh")
    a("s_cmp_lg_u32 s5, 0")
    a(f"s_cbranch_scc1 {lh}")
    a("s_waitcnt lgkmcnt(0)")
    for e in range(2):
        corr_t(HK+4*e, 152+4*e, 26, 27)
        corr_c(HV+4*e, 188, 192, 160+e)
    for e in range(2):
        for T in range(2):
            pack(PV + 8*T + 2*e, HK+4*e)
            pack(PV + 8*T + 4 + 2*e, HV+4*e)
    a(f"{lh}:")
    QP = 96
    for e in range(2):
        for tl in range(4): corr_t(AQ + (e*4+tl)*4, 144+4*e, 162+tl, 166+tl)
    for k in range(8): pack(QP+2*k, AQ+4*k)
    a("s_waitcnt lgkmcnt(0)")
    a("s_barrier")
    lp = a.label("Lp")
    a("s_cmp_eq_u32 s5, 0")
    a(f"s_cbranch_scc1 {lp}")
    for k in range(4): a(f"ds_read_b128 {V(PV+4*k)}, v223 offset:{1024*k}")
    a(f"{lp}:")
    SC, SP = 112, 144
    U = range(8)
    def kprev(u): e, tl = u//4, u%4; return kp(e, tl-2) if tl >= 2 else PV + 8*tl + 2*e
    def vprev(u): e, tl = u//4, u%4; return vp(e, tl-2) if tl >= 2 else PV + 8*tl + 4 + 2*e
    for u in U: a(mfma16(SC+4*u, kp(u//4, u%4), QP+2*u, V(MC)))
    a(f"v_mov_b32 v10, {f2u(0.25*LOG2E):#x}")
    for u in (2, 3, 6, 7): a(mfma16(SP+4*u, kprev(u), QP+2*u, V(MPN)))
    a("s_waitcnt lgkmcnt(0)")
    for u in (0, 1, 4, 5): a(mfma16(SP+4*u, kprev(u), QP+2*u, V(MPA+4*(u&1))))
    MX, TM = 32, 40
    for u in (2, 3, 6, 7, 0, 1, 4, 5):
        for i in range(4): a(f"v_max_f32 v{SC+4*u+i}, v{SC+4*u+i}, v{SP+4*u+i}")
    for u in U: a(f"v_max3_f32 v{MX+u}, v{SC+4*u}, v{SC+4*u+1}, v{SC+4*u+2}")
    for u in U: a(f"v_max_f32 v{MX+u}, v{MX+u}, v{SC+4*u+3}")
    red_g(a, [MX+u for u in U], "v_max_f32", TM)
    for u in range(0, 8, 2): a(f"v_pk_mul_f32 {V(MX+u,2)}, {V(MX+u,2)}, {V(10,2)} op_sel_hi:[1,0]")
    for u in U:
        for p in range(2): a(f"v_pk_fma_f32 {V(SC+4*u+2*p,2)}, {V(SC+4*u+2*p,2)}, {V(10,2)}, {V(MX+(u&~1),2)} op_sel:[0,0,{u&1}] op_sel_hi:[1,0,{u&1}] neg_lo:[0,0,1] neg_hi:[0,0,1]")
    for u in U:
        for i in range(4): a(f"v_exp_f32 v{SC+4*u+i}, v{SC+4*u+i}")
    PC, PP = 144, 160
    for u in U: pack(PP+2*u, SC+4*u)
    for u in U:
        for p in range(2): a(f"v_and_b32 v{PC+2*u+p}, v{MB+p}, v{PP+2*u+p}")
    for u in U:
        for p in range(2): a(f"v_xor_b32 v{PP+2*u+p}, v{PC+2*u+p}, v{PP+2*u+p}")
    OA = 176
    for u in U: a(f"v_pk_add_f32 {V(SC+4*u,2)}, {V(SC+4*u,2)}, {V(SC+4*u+2,2)}")
    for u in U:
        a(mfma16(OA+4*u, vp(u//4, u%4), PC+2*u, "0"))
        a(f"v_add_f32 v{MX+u}, v{SC+4*u}, v{SC+4*u+1}")
    for u in U: a(mfma16(OA+4*u, vprev(u), PP+2*u))
    red_g(a, [MX+u for u in U], "v_add_f32", TM)
    for u in U: a(f"v_rcp_f32 v{MX+u}, v{MX+u}")
    for u in U:
        for p in range(2): a(f"v_pk_mul_f32 {V(OA+4*u+2*p,2)}, {V(OA+4*u+2*p,2)}, {V(MX+(u&~1),2)} op_sel:[0,{u&1}] op_sel_hi:[1,{u&1}]")
    for tl in range(4):
        for e in range(2): pack(112 + 4*tl + 2*e, OA + 4*(e*4+tl))
    for tl in range(4):
        for p in range(2): a(f"v_permlane32_swap_b32 v{112+4*tl+p}, v{112+4*tl+2+p}")
    a.vmwait("b")
    for tl in range(4):
        a.vmem(f"buffer_store_dwordx4 {V(112+4*tl)}, v4, {S4(WS_)}, s{53+(tl>>1)} offen offset:{256*(tl&1)} sc1", "o")
    a.stamp()

def aq_helper(a, fused):
    srd(a, WA_, 66, D*1536*2)
    rowtile_voffs(a, 4, 5, 10)
    a("v_bfe_u32 v3, v1, 4, 1")
    a("v_lshlrev_b32 v3, 1, v3")
    a("v_and_b32 v30, 7, v1")
    a("v_xor_b32 v30, v30, v3")
    a("v_lshrrev_b32 v3, 3, v1")
    a("v_mul_u32_u24 v3, 3072, v3")
    a("v_lshl_add_u32 v6, v30, 4, v3")
    a("v_xor_b32 v30, 4, v30")
    a("v_lshl_add_u32 v7, v30, 4, v3")
    a(f"v_add_u32 v7, {8*3072}, v7")
    a("v_lshrrev_b32 v3, 4, v1")
    a(f"s_lshl_b32 s61, s{sQ}, 1")
    a("v_add_u32 v3, s61, v3")
    a("v_and_b32 v30, 7, v1")
    a("v_xor_b32 v30, v30, v3")
    a("v_and_b32 v30, 7, v30")
    a("v_lshrrev_b32 v3, 3, v1")
    a("v_lshlrev_b32 v3, 10, v3")
    a("v_lshl_add_u32 v20, v30, 4, v3")
    a(f"s_lshl_b32 s53, s{sRB}, 7")
    a("s_sub_u32 s55, s53, 16")
    a("s_max_i32 s55, s55, 0")
    a(f"s_lshl_b32 s61, s{sQ}, 2")
    a("s_add_u32 s55, s55, s61")
    a("s_lshl_b32 s55, s55, 10")
    a(f"s_lshl_b32 s61, s{sQ}, 5")
    a("s_add_u32 s53, s53, s61")
    a("s_lshl_b32 s53, s53, 10")
    a(f"s_mul_i32 s54, s{sQ}, {16*3072}")
    a(f"s_lshl_b32 s61, s{sGRP}, 7")
    a("s_add_u32 s54, s54, s61")
    a(f"s_mul_i32 s56, s{sQ}, 6144")
    a(f"s_lshl_b32 s57, s{sQ}, 9")
    a(f"s_lshl_b32 s60, s{sQ}, 12")
    def ga(step):
        sl = QSLOT[step % 3]; tag = ("A", step)
        x_group_h(a, step, sl, tag)
        a(f"s_mul_i32 s63, s61, {64*3072}")
        a("s_add_u32 s63, s63, s54")
        a(f"s_add_u32 m0, s56, {sl + 18432}")
        a("s_add_u32 s62, s58, s55")
        for m in range(3): a.vmem(f"buffer_load_dwordx4 v6, {S4(WA_)}, s63 offen offset:{1024*m} lds", tag)
        a(f"s_add_u32 m0, s56, {sl + 18432 + 3072}")
        a("s_nop 0")
        for m in range(3): a.vmem(f"buffer_load_dwordx4 v7, {S4(WA_)}, s63 offen offset:{1024*m} lds", tag)
        a(f"s_add_u32 m0, s57, {sl + 16384}")
        a("s_mov_b32 exec_hi, 0")
        a.vmem(f"buffer_load_dwordx4 v20, {S4(X_)}, s62 offen lds", tag)
        a("s_mov_b32 exec_hi, -1")
    ga(0)
    nonce_publish(a)
    ga(1); ga(2)
    late_srds(a)
    if fused: wsp_setup_h(a)
    a.stamp()
    for s in range(8):
        a.vmwait(("A", s))
        a("s_barrier")
        if s in (0, 1, 4): a.stamp()
        if 1 <= s <= 5: ga(s + 2)
        if fused and s == 5:
            a("v_mov_b32 v31, 0")
            a.vmem(f"buffer_load_dword v25, v31, {S4(DBG_)}, 0 offen sc1", "poll")
        if fused and s == 6:
            wsp_group_h(a, 0); wsp_group_h(a, 1)
        if fused and s == 7: wsp_group_h(a, 6)
    a.stamp()
    a("s_barrier")
    if fused:
        for v in (2, 3, 4, 5): wsp_group_h(a, v)
    a("s_barrier")

def flag_store(a, which):
    if which == "F1":
        a(f"s_lshl_b32 s61, s{sRB}, 3")
        a(f"s_add_u32 s61, s61, s{sGRP}")
        off = F1_OFF
    else:
        a(f"s_lshl_b32 s61, s{sRB}, 1")
        a(f"s_add_u32 s61, s61, s{sTYP}")
        a("s_lshl_b32 s61, s61, 3")
        a(f"s_add_u32 s61, s61, s{sGRP}")
        off = F2_OFF
    a("s_lshl_b32 s61, s61, 7")
    a(f"s_add_u32 s61, s61, {off}")
    a(f"s_cmp_eq_u32 s{sQ}, 0")
    a(f"s_cselect_b32 s61, s61, {OOB}")
    a(f"v_mov_b32 v30, s{sT}")
    a("v_mov_b32 v31, 0")
    a("s_mov_b64 exec, 1")
    a.vmem(f"buffer_store_dword v30, v31, {S4(WS_)}, s61 offen sc1", "flag")
    a("s_mov_b64 exec, -1")

def mfma32(d, a, b, c=None):
    c = V(d, 16) if c is None else c
    return f"v_mfma_f32_32x32x16_bf16 {V(d,16)}, {V(a)}, {V(b)}, {c}"

def b_early(a):
    a("v_and_b32 v3, 15, v1")
    a("v_bfe_u32 v31, v1, 4, 1")
    a("v_lshl_add_u32 v3, v3, 1, v31")
    a("v_lshlrev_b32 v3, 1, v3")
    a(f"s_lshl_b32 s61, s{sRB}, 2")
    a(f"s_add_u32 s61, s61, s{sQ}")
    a("s_lshl_b32 s61, s61, 6")
    a(f"s_cmp_eq_u32 s{sKS}, 0")
    a("s_cselect_b32 s61, s61, 4096")
    a.vmem(f"buffer_load_ushort v0, v3, {S4(BSP_)}, s61 offen", "b")

def b_compute(a, fused):
    ACC = 32
    ring = list(range(80, 144, 4))
    Z1 = 144
    a("v_and_b32 v3, 31, v1")
    a("v_lshrrev_b32 v30, 5, v1")
    a("v_bfe_u32 v31, v1, 1, 3")
    a("v_xor_b32 v31, v30, v31")
    a("v_lshlrev_b32 v3, 7, v3")
    a("v_lshl_add_u32 v10, v31, 4, v3")
    a(f"s_lshl_b32 s61, s{sQ}, 12")
    a("v_add_u32 v10, s61, v10")
    for b4 in range(1, 4): a(f"v_xor_b32 v{10+b4}, {32*b4}, v10")
    for b4 in range(4): a(f"v_add_u32 v{14+b4}, 0x10000, v{10+b4}")
    a("v_lshlrev_b32 v19, 4, v1")
    a(f"v_add_u32 v18, {L_Z2}, v19")
    a("v_and_b32 v3, 15, v1")
    a("v_bfe_u32 v31, v1, 4, 1")
    a("v_lshlrev_b32 v20, 9, v31")
    a("v_lshl_add_u32 v20, v30, 8, v20")
    a("v_lshl_add_u32 v20, v3, 4, v20")
    a(f"s_lshl_b32 s57, s{sRB}, 2")
    a(f"s_add_u32 s57, s57, s{sQ}")
    if not fused: b_early(a)
    a(f"s_mul_i32 s55, s{sCG}, 6")
    a("s_min_u32 s55, s55, 40")
    a("s_sub_u32 s58, 40, s55")
    a("s_min_u32 s58, s58, 6")
    a(f"s_cmp_eq_u32 s{sCG}, 7")
    a("s_cselect_b32 s58, 3, s58")
    a("s_mul_i32 s53, s57, 48")
    a("s_add_u32 s53, s53, s55")
    a("s_lshl_b32 s53, s53, 10")
    a(f"s_mul_i32 s61, s{sKS}, {64*48*1024}")
    a("s_add_u32 s54, s53, s61")
    a(f"s_add_u32 s53, s53, {WS_Z1}")
    a(f"s_add_u32 s54, s54, {WS_H}")
    if not fused: a.vmwait("b")
    a("v_lshlrev_b32 v22, 16, v0")
    for r in range(48): a(f"v_mov_b32 v{ACC+r}, v22")
    def z1_load():
        pass
    def z1_piece(j):
        def f():
            if j == 0 and fused:
                a("v_mov_b32 v23, 0")
                a.vmem(f"buffer_load_dword v23, v23, {S4(DBG_)}, 0 offen sc1", "z1")
            if j == 4: a("s_add_u32 s53, s53, 4096")
            a.vmem(f"buffer_load_dwordx4 {V(Z1+4*j)}, v20, {S4(WS_)}, s53 offen offset:{(j%4)*1024} sc1", "z1")
        return f
    extras = []
    zs = opt('z1step', 11)
    for j in range(6): extras.append((zs, z1_piece(j), lambda done: True, 99))
    def preB(st):
        if fused and st == opt('f2step', 3): a.vmall()
    fr = {}; mf = []
    for i in range(16):
        for b4 in range(4):
            fr[('w', i, b4)] = dict(step=i, reg=None, reads=[lambda r, i=i, b4=b4: f"ds_read_b128 {V(r)}, v{10 + b4 + 4*((i%NWS)//4)} offset:{((i%NWS)%4)*16384}"])
            for c in range(3):
                fr[('z', i, b4, c)] = dict(step=i, reg=None, reads=[lambda r, i=i, b4=b4, c=c: f"ds_read_b128 {V(r)}, v18 offset:{(i%4)*12288 + (b4*3+c)*1024}"])
                mf.append((ACC+16*c, ('z', i, b4, c), ('w', i, b4)))
    a.stamp()
    a("s_barrier")
    gemm_stream(a, mf, fr, ring, opt('LAB', 5), opt('coverB', 2), preB,
                first_zero=False, stamps=(0, 1, 8, 10, 12, 14), pergap=opt('pgB', 2), slack=2, op=mfma32, extras=extras)
    assert not extras
    a.stamp()
    a("s_barrier")
    a.vmwait("z1")
    if fused: a(f"v_readfirstlane_b32 s{sT}, v23")
    for j in range(6):
        x = ACC + 8*j; z = Z1 + 4*j; t = 80 + 8*(j&1)
        for k in range(4):
            a(f"v_lshlrev_b32 v{t+2*k}, 16, v{z+k}")
            a(f"v_and_b32 v{t+2*k+1}, 0xffff0000, v{z+k}")
        for k in range(4): a(f"v_pk_mul_f32 {V(x+2*k,2)}, {V(x+2*k,2)}, {V(t+2*k,2)}")
        for k in range(4): a(f"v_cvt_pk_bf16_f32 v{x+k}, v{x+2*k}, v{x+2*k+1}")
        a(f"s_cmp_gt_u32 s58, {j}")
        a(f"s_cselect_b32 s61, s54, {OOB}")
        if j >= 4: a("s_add_u32 s61, s61, 4096")
        a.vmem(f"buffer_store_dwordx4 {V(x)}, v19, {S4(WS_)}, s61 offen offset:{(j%4)*1024} sc1", "h")
    a.stamp()

def cw_setup_h(a):
    a("v_bfe_u32 v3, v1, 4, 1")
    a("v_lshlrev_b32 v3, 2, v3")
    a("v_and_b32 v30, 7, v1")
    a("v_xor_b32 v30, v30, v3")
    a("v_lshrrev_b32 v3, 3, v1")
    a("v_lshlrev_b32 v3, 10, v3")
    a("v_lshl_add_u32 v26, v30, 4, v3")
    for k in range(1, 4): a(f"v_add_u32 v{26+k}, {k*(8192-1024)}, v26")
    a(f"s_lshl_b32 s47, s{sCG}, 7")
    a(f"s_lshl_b32 s61, s{sQ}, 15")
    a("s_add_u32 s47, s47, s61")

def cw_pieces(a, slot):
    R, row0 = (WO_, slot*128) if slot < 4 else (WOUT_, (slot-4)*128)
    out = []
    for k in range(4):
        def f(k=k):
            if k == 0:
                a(f"s_add_u32 m0, s60, {CSLOT[slot]*16384}")
                a(f"s_add_u32 s46, s47, {row0*1024}")
            a.vmem(f"buffer_load_dwordx4 v{26+k}, {S4(R)}, s46 offen offset:{1024*k} lds", ("CW", slot))
        out.append(f)
    return out

CSLOT = [2, 3, 4, 5, 6, 0, 1, 7, 8, 9]
def b_helper(a, fused):
    if not fused:
        late_srds(a)
        wsp_setup_h(a)
        a(f"s_lshl_b32 s60, s{sQ}, 12")
    cw_setup_h(a)
    a("v_lshlrev_b32 v10, 4, v1")
    a(f"s_lshl_b32 s53, s{sCG}, 1")
    a(f"s_add_u32 s53, s53, s{sKS}")
    a(f"s_mul_i32 s53, s53, {16*12288}")
    a(f"s_mul_i32 s54, s{sQ}, 3072")
    a("s_add_u32 s53, s53, s54")
    a(f"s_add_u32 s53, s53, {WS_Z2N}")
    a(f"s_add_u32 s54, s54, {L_Z2}")
    def z2_group(i):
        a(f"s_add_u32 s61, s{sK0B}, {i}")
        a("s_and_b32 s61, s61, 15")
        a("s_mul_i32 s61, s61, 12288")
        a(f"s_add_u32 m0, s54, {(i % 4)*12288}")
        a("s_add_u32 s61, s61, s53")
        for k in range(3): a.vmem(f"buffer_load_dwordx4 v10, {S4(WS_)}, s61 offen offset:{1024*k} sc1 lds", ("Z", i))
    a.stamp()
    if fused:
        a(f"s_lshl_b32 s62, s{sCG}, 1")
        a(f"s_add_u32 s62, s62, s{sKS}")
        a("s_lshl_b32 s62, s62, 12")
        a(f"s_add_u32 s62, s62, {F1_OFF}")
        a("v_and_b32 v31, 31, v1")
        a("v_lshlrev_b32 v31, 7, v31")
        a(f"v_mov_b32 v30, 0")
        def iss(): a(f"buffer_load_dword v30, v31, {S4(WS_)}, s62 offen sc1")
        def chk():
            a(f"v_cmp_ne_u32 vcc, s{sT}, v30")
            a("s_cmp_eq_u64 vcc, 0")
        spin(a, iss, chk)
        a.vm = []
        a.stamp()
    lq = a.label("Lbq"); lz = a.label("Lbz")
    for i in range(3): z2_group(i)
    a("s_barrier")
    z2_group(3)
    a(f"s_cmp_eq_u32 s{sTYP}, 0")
    a(f"s_cbranch_scc1 {lq}")
    vm0 = list(a.vm)
    for v in range(opt('wpre', 3), NWS): wsp_group_h(a, v)
    a(f"s_branch {lz}")
    a(f"{lq}:")
    a("s_mov_b64 exec, 1")
    for v in range(4*(NWS - opt('wpre', 3))): a(f"buffer_load_dword v30, v31, {S4(DBG_)}, 0 offen")
    a("s_mov_b64 exec, -1")
    a(f"{lz}:")
    for i in range(16):
        a.vmwait(("S", i)); a.vmwait(("Z", i))
        if fused and i == opt('z1step', 11): f2_check(a)
        a("s_barrier")
        if i in (0, 1, 8, 10, 12, 14): a.stamp()
        if fused and i == opt('f2step', 3): flag_store(a, "F2")
        if fused and i == opt('z1step', 11) - 3: f2_issue(a)
        if i >= 1 and i + 3 < 16: z2_group(i + 3)
        if i >= 1 and i - 1 + NWS < 16: wsp_group_h(a, i - 1 + NWS)
        if fused and i >= 10: a.run(cw_pieces(a, i - 10))
    a.stamp()
    a("s_barrier")
    if fused:
        for k in range(6, 10): a.run(cw_pieces(a, k))

def f2_issue(a):
    a(f"s_lshr_b32 s61, s{sRC}, 1")
    a("s_lshl_b32 s61, s61, 4")
    a(f"s_lshl_b32 s62, s{sRB}, 4")
    a(f"s_add_u32 s62, s62, s{sCG}")
    a("s_add_u32 s62, s62, 8")
    a("v_add_u32 v20, s61, v1")
    a("v_mov_b32 v21, s62")
    a("v_cmp_gt_u32 vcc, 8, v1")
    a("s_nop 1")
    a("v_cndmask_b32 v20, v21, v20, vcc")
    a("v_lshlrev_b32 v20, 7, v20")
    a(f"v_add_u32 v20, {F2_OFF}, v20")
    a.vmem(f"buffer_load_dword v21, v20, {S4(WS_)}, 0 offen sc1", "f2")
def f2_check(a):
    a.vmwait("f2")
    def iss(): a(f"buffer_load_dword v21, v20, {S4(WS_)}, 0 offen sc1")
    def chk():
        a(f"v_cmp_ne_u32 vcc, s{sT}, v21")
        a("s_cmp_eq_u64 vcc, 0")
    spin(a, iss, chk)

L_RED = 0
def c_waddr(a, d):
    a("v_lshrrev_b32 v3, 5, v1")
    a("v_bfe_u32 v30, v1, 2, 2")
    a("v_lshl_add_u32 v3, v3, 2, v30")
    a("v_lshlrev_b32 v3, 7, v3")
    a("v_and_b32 v30, 2, v30")
    a("v_bfe_u32 v31, v1, 4, 1")
    a("v_or_b32 v30, v30, v31")
    a("v_lshl_add_u32 v3, v30, 5, v3")
    a("v_and_b32 v30, 3, v1")
    a(f"v_lshl_add_u32 v{d}, v30, 3, v3")
    a(f"v_xor_b32 v{d+1}, 64, v{d}")

def c_stream(a, nblk, fragreg, tagf, areg, blk0, ring, ACC, first_zero, loads=(), off0=0):
    fr = {}; mf = []
    for b in range(nblk):
        fr[('h', b)] = dict(step=0, reg=fragreg(b), reads=None)
        for nn in range(2):
            off = CSLOT[(blk0 + b) // 8] * 16384 + ((blk0 + b) % 8) * 2048 - off0
            fr[('w', b, nn)] = dict(step=0, reg=None, reads=[(lambda r, hh=hh, nn=nn, off=off: f"ds_read_b64_tr_b16 {V(r+2*hh,2)}, v{areg(off >> 16) + nn} offset:{(off & 0xffff) + hh*1024}") for hh in range(2)])
            mf.append((ACC+16*nn, ('w', b, nn), ('h', b)))
    cnt = [0]
    def op(d, x, y, c):
        b = cnt[0] // 2
        if cnt[0] % 2 == 1 and loads: loads.pop(0)()
        cnt[0] += 1
        a.vmwait(tagf(b))
        return mfma32(d, x, y, c)
    gemm_stream(a, mf, fr, ring, opt('LAC', 4), 0, lambda st: None, first_zero=first_zero, pergap=2, slack=2, op=op, skip_first_barrier=True)

def c_final(a):
    a("s_barrier")
    for k in range(2):
        a(f"ds_read_b128 {V(16+8*k)}, v6 offset:{17408*k}")
        a(f"ds_read_b128 {V(20+8*k)}, v6 offset:{17408*k + 16}")
    a.vmwait("x")
    for w in range(4):
        a(f"v_lshlrev_b32 v{32+2*w}, 16, v{8+w}")
        a(f"v_and_b32 v{33+2*w}, 0xffff0000, v{8+w}")
    a("s_waitcnt lgkmcnt(2)")
    for w in range(4): a(f"v_pk_add_f32 {V(32+2*w,2)}, {V(32+2*w,2)}, {V(16+2*w,2)}")
    a("s_waitcnt lgkmcnt(0)")
    for w in range(4): a(f"v_pk_add_f32 {V(32+2*w,2)}, {V(32+2*w,2)}, {V(24+2*w,2)}")
    for w in range(4): a(f"v_cvt_pk_bf16_f32 v{32+w}, v{32+2*w}, v{33+2*w}")
    a.vmem(f"buffer_store_dwordx4 {V(32)}, v7, {S4(OUT_)}, s47 offen", "out")

def c_final_setup(a):
    a("v_lshrrev_b32 v3, 3, v1")
    a(f"s_lshl_b32 s61, s{sW}, 3")
    a("v_add_u32 v3, s61, v3")
    a("v_and_b32 v30, 7, v1")
    a("v_mul_u32_u24 v6, 272, v3")
    a("v_lshl_add_u32 v6, v30, 5, v6")
    a("v_add_u32 v6, 32768, v6")
    a("v_and_b32 v31, 15, v3")
    a("v_lshlrev_b32 v31, 1, v31")
    a("v_bfe_u32 v7, v3, 4, 1")
    a("v_add_u32 v31, v31, v7")
    a("v_and_b32 v7, 32, v3")
    a("v_add_u32 v31, v31, v7")
    a("v_lshlrev_b32 v31, 10, v31")
    a("v_lshl_add_u32 v7, v30, 4, v31")
    a(f"s_lshl_b32 s47, s{sRC}, 9")
    a(f"s_add_u32 s47, s47, s{sCG}")
    a("s_lshl_b32 s47, s47, 7")
    a.vmem(f"buffer_load_dwordx4 {V(8)}, v7, {S4(X_)}, s47 offen", "x")

def c_compute(a, fused):
    ACC, HF = 32, 80
    ring = list(range(64, 80, 4)) + [12, 16, 20]
    a("s_barrier")
    if not fused: late_srds(a)
    a(f"s_and_b32 s53, s{sQ}, 1")
    a(f"s_lshr_b32 s54, s{sQ}, 1")
    c_waddr(a, 4)
    a("v_add_u32 v252, 0x10000, v4\nv_add_u32 v253, 0x10000, v5")
    a("v_add_u32 v254, 0x20000, v4\nv_add_u32 v255, 0x20000, v5")
    a("v_mov_b32 v26, v4\nv_mov_b32 v27, v5")
    a(f"s_lshl_b32 s55, s{sRC}, 1")
    a("s_add_u32 s55, s55, s53")
    a("s_lshl_b32 s56, s54, 6")
    a("s_add_u32 s56, s56, s55")
    a("s_mul_i32 s56, s56, 49152")
    a(f"s_add_u32 s56, s56, {WS_H}")
    a("v_lshlrev_b32 v28, 4, v1")
    a(f"s_lshl_b32 s61, s{sQ}, 13")
    a("s_add_u32 s61, s61, 32768")
    a("v_add_u32 v29, s61, v28")
    if fused:
        a.vmall()
        a("s_lshl_b32 s61, s57, 1")
        a(f"s_add_u32 s61, s61, s{sKS}")
        a("s_lshl_b32 s61, s61, 3")
        a(f"s_add_u32 s61, s61, s{sCG}")
        a("s_lshl_b32 s61, s61, 7")
        a(f"s_add_u32 s61, s61, {F3_OFF}")
        a(f"v_mov_b32 v30, s{sT}")
        a("v_mov_b32 v31, 0")
        a("s_mov_b64 exec, 1")
        a.vmem(f"buffer_store_dword v30, v31, {S4(WS_)}, s61 offen sc1", "flag")
        a("s_mov_b64 exec, -1")
        a.stamp()
    c_final_setup(a)
    a("v_and_b32 v3, 31, v1")
    a("v_mul_u32_u24 v3, 272, v3")
    a("v_lshrrev_b32 v30, 5, v1")
    a("v_lshl_add_u32 v3, v30, 4, v3")
    a("s_mul_i32 s61, s54, 17408")
    a(f"s_mul_i32 s62, s53, {32*272}")
    a("s_add_u32 s61, s61, s62")
    a("s_add_u32 s61, s61, 32768")
    a("v_add_u32 v4, s61, v3")
    a("s_barrier")
    a("s_barrier")
    for k in range(8): a(f"ds_read_b128 {V(ACC+4*k)}, v29 offset:{1024*k}")
    if fused:
        a("s_lshl_b32 s62, s55, 1")
        a("s_add_u32 s62, s62, s54")
        a("s_lshl_b32 s62, s62, 10")
        a(f"s_add_u32 s62, s62, {F3_OFF}")
        a("v_and_b32 v31, 7, v1")
        a("v_lshlrev_b32 v31, 7, v31")
        a("v_mov_b32 v30, 0")
    a("s_waitcnt lgkmcnt(0)")
    a("s_barrier")
    if fused:
        def iss(): a(f"buffer_load_dword v30, v31, {S4(WS_)}, s62 offen sc1")
        def chk():
            a(f"v_cmp_ne_u32 vcc, s{sT}, v30")
            a("s_cmp_eq_u64 vcc, 0")
        spin(a, iss, chk)
        a.vm = []
    a.stamp()
    def hload(b):
        if b and b % 4 == 0: a("s_add_u32 s56, s56, 4096")
        a.vmem(f"buffer_load_dwordx4 {V(HF+4*b)}, v28, {S4(WS_)}, s56 offen offset:{(b%4)*1024} sc1", ("H", b))
    PH = opt('PH', 14)
    for b in range(PH): hload(b)
    c_stream(a, 43, lambda b: HF+4*b, lambda b: ("H", b), lambda k: (26, 252, 254)[k], 32, ring, ACC, False, [(lambda b=b: hload(b)) for b in range(PH, 43)])
    a.stamp()
    a("s_nop 15")
    for nn in range(2):
        for jj in range(4): a(f"ds_write_b128 v4, {V(ACC+16*nn+4*jj)} offset:{128*nn + 32*jj}")
    a("s_waitcnt lgkmcnt(0)")
    c_final(a)

def c_helper(a, fused):
    ACC, OF = 32, 80
    ring = list(range(64, 80, 4)) + [144, 148, 152, 156]
    if not fused:
        late_srds(a)
        a(f"s_lshl_b32 s60, s{sQ}, 12")
        cw_setup_h(a)
    a(f"s_and_b32 s53, s{sQ}, 1")
    a(f"s_lshr_b32 s54, s{sQ}, 1")
    a(f"s_lshl_b32 s55, s{sRC}, 1")
    a("s_add_u32 s55, s55, s53")
    a("s_lshl_b32 s55, s55, 1")
    a("s_add_u32 s55, s55, s54")
    a("s_lshl_b32 s55, s55, 14")
    a(f"s_add_u32 s55, s55, {WS_O}")
    a("v_lshlrev_b32 v12, 4, v1")
    for b in range(16):
        if b and b % 4 == 0: a("s_add_u32 s55, s55, 4096")
        a.vmem(f"buffer_load_dwordx4 {V(OF+4*b)}, v12, {S4(WS_)}, s55 offen offset:{(b%4)*1024} sc1", ("O", b))
    if not fused:
        for sl in range(10): a.run(cw_pieces(a, sl))
    c_final_setup(a)
    c_waddr(a, 4)
    a("s_lshl_b32 s61, s54, 15")
    a("s_add_u32 s61, s61, 32768")
    a("v_add_u32 v4, s61, v4\nv_add_u32 v5, s61, v5")
    a(f"s_lshl_b32 s61, s{sQ}, 13")
    a("s_add_u32 s61, s61, 32768")
    a("v_add_u32 v13, s61, v12")
    a.vmwait(("CW", 3))
    a("s_barrier")
    a.stamp()
    c_stream(a, 16, lambda b: OF+4*b, lambda b: ("O", b), lambda k: 4, 0, ring, ACC, True, off0=32768)
    a.stamp()
    a("s_barrier")
    a("s_nop 15")
    for k in range(8): a(f"ds_write_b128 v13, {V(ACC+4*k)} offset:{1024*k}")
    a.vmwait(("CW", 9))
    a("s_waitcnt lgkmcnt(0)")
    a("s_barrier")
    a("s_barrier")
    c_final(a)

def diag_out(a, base):
    if opt('padto', 0):
        l = a.label("Lpad")
        a(f"{l}:")
        a("s_sleep 1")
        a("s_memrealtime s[86:87]")
        a("s_waitcnt lgkmcnt(0)")
        a("s_sub_u32 s86, s86, s84")
        a(f"s_cmp_lt_u32 s86, {opt('padto', 0)}")
        a(f"s_cbranch_scc1 {l}")
    if not a.diag: return
    a("v_writelane_b32 v2, s84, 62")
    a("s_memrealtime s[86:87]")
    a("s_waitcnt lgkmcnt(0)")
    a("v_writelane_b32 v2, s86, 63")
    a("s_lshl_b32 s61, s2, 3")
    a(f"s_add_u32 s61, s61, s{sW}")
    a("s_lshl_b32 s61, s61, 8")
    a(f"s_add_u32 s61, s61, {base}")
    a("v_lshlrev_b32 v3, 2, v1")
    a(f"buffer_store_dword v2, v3, {S4(WS_)}, s61 offen")
    if opt('hdbg', -1) >= 0:
        l = a.label("Lhd")
        a(f"s_cmp_lg_u32 s2, {opt('hdbg', 0)}")
        a(f"s_cbranch_scc1 {l}")
        a(f"s_cmp_lg_u32 s{sW}, 0")
        a(f"s_cbranch_scc1 {l}")
        a("s_sub_u32 s86, s86, s84")
        a("v_mov_b32 v4, 0")
        a("v_writelane_b32 v4, s86, 1")
        for k, src in enumerate((0, 1, 3, 4, 5, 6, 7, 10, 11, 17, 18, 19, 20, 22)):
            a(f"v_readlane_b32 s61, v2, {src}")
            a("s_nop 3")
            a(f"v_writelane_b32 v4, s61, {2+k}")
        a("s_mov_b64 exec, 0xfffe")
        a(f"buffer_store_dword v4, v3, {S4(DBG_)}, 0 offen")
        a(f"{l}:")

def simple_kernel(name, diag, idx, comp, helper):
    a = G(diag)
    prologue(a, f"L{name}_end")
    a(f"s_cmp_ge_u32 s{sW}, 4")
    a(f"s_cbranch_scc1 L{name}_h")
    for k, fn in enumerate((comp, helper)):
        if k: a(f"L{name}_h:")
        a.vm = []; a.nst = 0
        fn(a)
        a.vmall(); a.stamp()
        diag_out(a, WS_DBG + idx*0x80000)
        a("s_endpgm")
    a(f"L{name}_end:")
    a("s_endpgm")
    return a.text()

def by_type(fq, fz, lab):
    def f(a):
        a(f"s_cmp_lg_u32 s{sTYP}, 0")
        a(f"s_cbranch_scc1 {lab}_z")
        fq(a, False)
        a.vmall()
        a(f"s_branch {lab}_e")
        n = a.nst
        a(f"{lab}_z:")
        a.vm = []; a.nst = 0
        fz(a, False)
        a(f"{lab}_e:")
        a.nst = max(a.nst, n)
    return f

def multi(diag):
    ka = simple_kernel("A", diag, 0, by_type(aq_compute, az_compute, "LAc"), by_type(aq_helper, az_helper, "LAh"))
    def bc(a): late_srds(a); b_compute(a, False)
    kb = simple_kernel("B", diag, 1, bc, lambda a: b_helper(a, False))
    kc = simple_kernel("C", diag, 2, lambda a: c_compute(a, False), lambda a: c_helper(a, False))
    return [("a_kernel", ka), ("b_kernel", kb), ("c_kernel", kc)]

def fused_kernel(diag):
    a = G(diag)
    prologue(a, "LF_end")
    a(f"s_cmp_ge_u32 s{sW}, 4")
    a("s_cbranch_scc1 LF_h")
    if opt('cpf', 1):
        a("s_getpc_b64 s[62:63]")
        a("LF_pc:")
        a("s_lshr_b32 s61, s2, 3")
        a("s_lshl_b32 s61, s61, 2")
        a(f"s_add_u32 s61, s61, s{sQ}")
        a("s_lshl_b32 s61, s61, 3")
        a("v_add_u32 v3, s61, v1")
        a("v_lshlrev_b32 v3, 7, v3")
        a("v_min_u32 v3, LF_end - LF_pc, v3")
        a(f"s_mov_b32 m0, {L_MISC}")
        a("s_mov_b64 exec, 0xff")
        a("global_load_lds_dword v3, s[62:63]")
        a("s_mov_b64 exec, -1")
    late_srds(a)
    b_early(a)
    a(f"s_cmp_lg_u32 s{sTYP}, 0")
    a("s_cbranch_scc1 LF_cz")
    aq_compute(a, True)
    n = a.nst
    a("s_branch LF_cb")
    a("LF_cz:")
    a.vm = []; a.nst = 0
    az_compute(a, True)
    a("LF_cb:")
    a.vm = []; a.nst = 10
    b_compute(a, True)
    c_compute(a, True)
    a.vmall(); a.stamp()
    diag_out(a, WS_DBG)
    a("s_endpgm")
    a("LF_h:")
    a.vm = []; a.nst = 0
    a(f"s_cmp_lg_u32 s{sTYP}, 0")
    a("s_cbranch_scc1 LF_hz")
    aq_helper(a, True)
    nonce_check(a)
    a("s_branch LF_hb")
    a("LF_hz:")
    a.vm = []; a.nst = 0
    az_helper(a, True)
    a("LF_hb:")
    a.vm = []; a.nst = 10
    b_helper(a, True)
    c_helper(a, True)
    a.vmall(); a.stamp()
    diag_out(a, WS_DBG)
    a("LF_end:")
    a("s_endpgm")
    return [(KNAME, a.text())]

if __name__ == "__main__":
    diag = "diag" in sys.argv
    for x in sys.argv[2:]:
        if "=" in x:
            k, v = x.split("="); OPT[k] = int(v)
    ks = multi(diag) if 'multi' in sys.argv else fused_kernel(diag)
    hdr = open("cdna_kernels/" + KNAME[:-7] + ".s.ref").read().split("; Override")[0]
    txt = file_text([(n, 256, 512, LDS_BYTES) for n, t in ks], [(n, t, 256, 102, 256) for n, t in ks])
    if len(ks) == 1: txt = txt.replace(f"; @launch kernel={KNAME} ", "; @launch ")
    txt = "\n".join(l.strip() if l.startswith("    ") else l for l in txt.split("\n"))
    open(sys.argv[1], "w").write(hdr + txt)
```

```python
import sys, math, struct
from asmgen import Asm, KA, KNAME, file_text
from layout import *

OOB = 0x10000000
LOG2E = 1.4426950408889634
def f2u(x): return struct.unpack("<I", struct.pack("<f", x))[0]
C1 = 2.0 * math.sqrt(2.0 / math.pi) * LOG2E
C2 = C1 * 0.044715
NEG = f2u(-1e30)
OPT = {}
F1_OFF, F2_OFF, F3_OFF = WS_FLG, WS_FLG + 512*128, WS_FLG + 768*128
def opt(k, d): return OPT.get(k, d)

sW, sQ, sRB, sGRP = 3, 4, 6, 7
X_, WA_, WS_, WSP_, WO_, WOUT_, OUT_, BSP_, DBG_ = 8, 12, 16, 20, 24, 28, 32, 36, 40
sK0A, sTYP = 44, 45
sKS, sCG, sK0B, sT = 48, 50, 51, 52
sRC = 49
def S4(b): return f"s[{b}:{b+3}]"
def V(b, n=4): return f"v[{b}:{b+n-1}]" if n > 1 else f"v{b}"

L_TAB = 156*1024
TP = 640
L_CW  = L_TAB + 2560
L_MISC = L_TAB + 3328
L_XCH = 148*1024
L_PARK = 112*1024
L_Z2 = 112*1024
NWS = 7
L_RC = L_TAB + 3584
LDS_BYTES = 160*1024

class G(Asm):
    UID = [0]
    def label(self, base="L"):
        G.UID[0] += 1
        return f"{base}_{G.UID[0]}"
    def __init__(self, diag=False):
        super().__init__()
        self.vm = []; self.diag = diag; self.nst = 0
    def vmem(self, s, tag=None):
        self(s); self.vm.append(tag)
    def has(self, tag): return any(t == tag for t in self.vm)
    def vmwait(self, tag):
        if not self.has(tag): return
        idx = max(i for i, t in enumerate(self.vm) if t == tag)
        n = len(self.vm) - 1 - idx
        assert n <= 63, n
        self(f"s_waitcnt vmcnt({n})")
        self.vm = self.vm[idx+1:]
    def vmall(self):
        self("s_waitcnt vmcnt(0)"); self.vm = []
    def stamp(self):
        if not self.diag: return
        self("s_memtime s[82:83]")
        self("s_waitcnt lgkmcnt(0)")
        self("s_sub_u32 s82, s82, s80")
        self(f"v_writelane_b32 v2, s82, {self.nst}")
        self.nst += 1
    def run(self, fs):
        for f in fs: f() if callable(f) else self(f)

def mfma(d, a, b, c=None):
    c = V(d) if c is None else c
    return f"v_mfma_f32_16x16x32_bf16 {V(d)}, {V(a)}, {V(b)}, {c}"
def mfma16(d, a, b, c=None):
    c = V(d) if c is None else c
    return f"v_mfma_f32_16x16x16_bf16 {V(d)}, {V(a,2)}, {V(b,2)}, {c}"

def gemm_stream(a, mf, frags, ring, LA, cover, pre_barrier, hooks=None, first_zero=True, stamps=(), nobar=0, pergap=1, slack=4, op=None, skip_first_barrier=False, extras=None):
    hooks = hooks or {}
    extra_max = opt('xmax', 1)
    first, last = {}, {}
    for i, (d, x, y) in enumerate(mf):
        for f in (x, y):
            first.setdefault(f, i); last[f] = i
    order = sorted([f for f in first if frags[f].get('reads')], key=lambda f: (frags[f]['step'], first[f]))
    rl = [(f, k) for f in order for k in range(len(frags[f]['reads']))]
    reg = {f: frags[f]['reg'] for f in first if frags[f].get('reg') is not None}
    owner = {r: None for r in ring}
    ptr = 0; cur = (0 if skip_first_barrier else -1); out = []; done = set(f for f in first if not frags[f].get('reads'))
    since = 10**9
    seen = set()
    def issue_one(i, force):
        nonlocal ptr, cur, since, out
        f, k = rl[ptr]
        st = frags[f]['step']
        if st > cur:
            if not force and since < cover: return False
            pre_barrier(st)
            if not (nobar and st > 0):
                if out:
                    a("s_waitcnt lgkmcnt(0)")
                    for g_, _ in out: done.add(g_)
                    out = []
                a("s_barrier")
            cur = st
            if st in stamps: a.stamp()
            if st in hooks: hooks[st]()
        if k == 0 and f not in reg:
            free = [r for r in ring if owner[r] is None or last[owner[r]] < i]
            if not free:
                assert not force, "ring too small"
                return False
            r = min(free, key=lambda r: -1 if owner[r] is None else last[owner[r]])
            reg[f] = r; owner[r] = f
        if len(out) >= 14 and not force: return False
        a(frags[f]['reads'][k](reg[f]))
        out.append((f, k)); ptr += 1; since = 0
        return True
    for i, (d, x, y) in enumerate(mf):
        need = [f for f in (x, y) if f not in done]
        while ptr < len(rl) and any(rl[j][0] in need for j in range(ptr, len(rl)) if first[rl[j][0]] <= i):
            issue_one(i, True)
        n = 0
        while ptr < len(rl) and first[rl[ptr][0]] <= i + LA:
            lim = 12 if i == 0 else (pergap + 1 if first[rl[ptr][0]] <= i + LA - slack else pergap)
            if n >= lim: break
            if not issue_one(i, False): break
            n += 1
        if extras and n <= extra_max and extras[0][0] <= cur and extras[0][2](done):
            extras.pop(0)[1]()
        need = [f for f in (x, y) if f not in done]
        if need:
            idx = max(j for j, (f, k) in enumerate(out) if f in need)
            a(f"s_waitcnt lgkmcnt({len(out) - 1 - idx})")
            for f, k in out[:idx+1]:
                if k == len(frags[f]['reads']) - 1: done.add(f)
            out = out[idx+1:]
        c = None
        if first_zero and d not in seen:
            c = "0"; seen.add(d)
        a((op or mfma)(d, reg[x], reg[y], c))
        since += 1
    assert ptr == len(rl)

def srd(a, d, p, nbytes):
    a(f"s_mov_b32 s{d}, s{p}")
    a(f"s_and_b32 s{d+1}, s{p+1}, 0xffff")
    a(f"s_mov_b32 s{d+2}, {nbytes:#x}")
    a(f"s_mov_b32 s{d+3}, 0x20000")

def prologue(a, endlabel):
    if a.diag:
        a("s_memtime s[80:81]")
    a("s_memrealtime s[84:85]")
    a("s_cmp_ge_u32 s2, 256")
    a(f"s_cbranch_scc1 {endlabel}")
    a("s_load_dwordx16 s[64:79], s[0:1], 0")
    a("s_load_dwordx4 s[88:91], s[0:1], 64")
    a("s_load_dwordx2 s[92:93], s[0:1], 80")
    a("v_lshrrev_b32 v3, 6, v0")
    a("v_and_b32 v1, 63, v0")
    a("v_mov_b32 v2, 0")
    a(f"v_readfirstlane_b32 s{sW}, v3")
    a("s_and_b32 s53, s2, 7")
    a("s_lshr_b32 s54, s2, 3")
    a("s_lshr_b32 s55, s53, 1")
    a("s_and_b32 s56, s54, 3")
    a(f"s_lshr_b32 s{sCG}, s54, 2")
    a(f"s_lshl_b32 s{sRB}, s55, 2")
    a(f"s_add_u32 s{sRB}, s{sRB}, s56")
    a(f"s_and_b32 s{sKS}, s53, 1")
    a(f"s_lshl_b32 s{sRC}, s53, 2")
    a(f"s_add_u32 s{sRC}, s{sRC}, s56")
    a(f"s_lshl_b32 s{sGRP}, s{sKS}, 2")
    a(f"s_and_b32 s58, s{sCG}, 3")
    a(f"s_add_u32 s{sGRP}, s{sGRP}, s58")
    a(f"s_lshr_b32 s{sTYP}, s{sCG}, 2")
    a(f"s_lshl_b32 s{sK0A}, s56, 1")
    a(f"s_add_u32 s{sK0A}, s{sK0A}, s{sCG}")
    a(f"s_add_u32 s{sK0A}, s{sK0A}, s55")
    a(f"s_and_b32 s{sK0A}, s{sK0A}, {opt('rotA', 7)}")
    a(f"s_lshl_b32 s{sK0B}, s{sCG}, 1")
    a(f"s_add_u32 s{sK0B}, s{sK0B}, s{sRB}")
    a(f"s_and_b32 s{sK0B}, s{sK0B}, {opt('rotB', 15)}")
    a(f"s_and_b32 s{sQ}, s{sW}, 3")
    a("s_waitcnt lgkmcnt(0)")
    srd(a, X_, 64, S*D*2)
    srd(a, WS_, 92, 268435456)
    srd(a, DBG_, 90, 256)

def late_srds(a):
    srd(a, WSP_, 74, S*S*2)
    srd(a, WO_, 68, D*D*2)
    srd(a, WOUT_, 78, FH*D*2)
    srd(a, OUT_, 88, S*D*2)
    srd(a, BSP_, 76, S*2)

def rowtile_voffs(a, d0, d1, sh, t0=3, t1=30, t2=31):
    a(f"v_lshrrev_b32 v{t0}, 3, v1")
    a(f"v_lshlrev_b32 v{t0}, {sh+1}, v{t0}")
    a(f"v_lshrrev_b32 v{t1}, 4, v1")
    a(f"v_and_b32 v{t2}, 7, v1")
    a(f"v_xor_b32 v{t1}, v{t1}, v{t2}")
    a(f"v_lshl_add_u32 v{d0}, v{t1}, 4, v{t0}")
    a(f"v_xor_b32 v{t1}, 4, v{t1}")
    a(f"v_lshl_add_u32 v{d1}, v{t1}, 4, v{t0}")
    a(f"v_add_u32 v{d1}, {(16 << sh) - 1024}, v{d1}")

def rowfrag_addr(a, d0, d1, srow, t0=3, t1=30, t2=31):
    a(f"v_and_b32 v{t0}, 15, v1")
    a(f"v_lshrrev_b32 v{t1}, 4, v1")
    a(f"v_lshrrev_b32 v{t2}, 1, v{t0}")
    a(f"v_xor_b32 v{t1}, v{t1}, v{t2}")
    a(f"v_lshlrev_b32 v{t0}, 7, v{t0}")
    a(f"v_add_u32 v{t0}, {srow}, v{t0}")
    a(f"v_lshl_add_u32 v{d0}, v{t1}, 4, v{t0}")
    a(f"v_xor_b32 v{t1}, 4, v{t1}")
    a(f"v_lshl_add_u32 v{d1}, v{t1}, 4, v{t0}")

def zw_addr(a, de, do, t0=3, t1=30, t2=31):
    a(f"v_lshrrev_b32 v{t0}, 4, v1")
    a(f"v_bfe_u32 v{t1}, v1, 2, 2")
    a(f"v_lshl_add_u32 v{t1}, v{t0}, 3, v{t1}")
    a(f"v_mul_u32_u24 v{t1}, 192, v{t1}")
    a(f"v_and_b32 v{t2}, 3, v1")
    a(f"v_lshl_add_u32 v{t1}, v{t2}, 3, v{t1}")
    a(f"v_and_b32 v{t0}, 1, v{t0}")
    a(f"v_lshlrev_b32 v{t0}, 5, v{t0}")
    a(f"v_add_u32 v{de}, v{t1}, v{t0}")
    a(f"v_sub_u32 v{do}, v{t1}, v{t0}")

def qw_addr(a, d, t0=3, t1=30, t2=31):
    a(f"v_lshrrev_b32 v{t0}, 4, v1")
    a(f"v_mul_u32_u24 v{t1}, 3072, v{t0}")
    a(f"v_bfe_u32 v{t2}, v1, 2, 2")
    a(f"v_lshl_add_u32 v{t1}, v{t2}, 7, v{t1}")
    a(f"v_and_b32 v{d}, 3, v1")
    a(f"v_lshl_add_u32 v{t1}, v{d}, 3, v{t1}")
    a(f"v_lshrrev_b32 v{t2}, 1, v{t2}")
    a(f"v_and_b32 v{t0}, 1, v{t0}")
    a(f"v_lshl_or_b32 v{t2}, v{t0}, 1, v{t2}")
    a(f"v_lshl_add_u32 v{d}, v{t2}, 5, v{t1}")

ZSLOT = [56*1024, 84*1024, 112*1024, 0, 28*1024]
W1SL = [0, 12288, 28672, 40960, 57344, 69632, 86016, 98304]
QSLOT = [86016, 43008, 0]

def gelu_core(a, xs, ts, A3, A1, RI):
    for k, (x, t) in enumerate(zip(xs, ts)): a(f"v_pk_mul_f32 {V(t,2)}, {V(x,2)}, {V(x,2)}")
    for k, (x, t) in enumerate(zip(xs, ts)): a(f"v_pk_fma_f32 {V(t,2)}, {V(t,2)}, {A3[k][0]}, {A1[k][0]} {A3[k][1]}")
    for k, (x, t) in enumerate(zip(xs, ts)): a(f"v_pk_mul_f32 {V(t,2)}, {V(t,2)}, {V(x,2)}")
    for k, (x, t) in enumerate(zip(xs, ts)):
        a(f"v_exp_f32 v{t}, v{t}"); a(f"v_exp_f32 v{t+1}, v{t+1}")
    for k, (x, t) in enumerate(zip(xs, ts)): a(f"v_pk_fma_f32 {V(t,2)}, {V(t,2)}, {RI[k][0]}, {RI[k][0]} {RI[k][1]}")
    for k, (x, t) in enumerate(zip(xs, ts)):
        a(f"v_rcp_f32 v{t}, v{t}"); a(f"v_rcp_f32 v{t+1}, v{t+1}")
    for k, (x, t) in enumerate(zip(xs, ts)): a(f"v_pk_mul_f32 {V(x,2)}, {V(x,2)}, {V(t,2)}")

def zcount(a, dG, dN):
    a(f"s_mul_i32 s{dG}, s{sGRP}, 6")
    a(f"s_min_u32 s{dG}, s{dG}, 40")
    a(f"s_sub_u32 s{dN}, 40, s{dG}")
    a(f"s_min_u32 s{dN}, s{dN}, 6")
    a(f"s_cmp_eq_u32 s{sGRP}, 7")
    a(f"s_cselect_b32 s{dN}, 3, s{dN}")

def az_compute(a, fused):
    ACC, XR = 32, 128
    ONES, SUM, GRM, CWA = 28, 80, 88, 96
    ring = list(range(104, 128, 4))
    a(f"s_lshl_b32 s61, s{sQ}, 12")
    rowfrag_addr(a, 10, 11, "s61")
    zw_addr(a, 12, 13)
    a(f"s_bitcmp1_b32 s{sQ}, 0")
    a("s_cselect_b64 vcc, -1, 0")
    a("v_cndmask_b32 v18, v12, v13, vcc")
    a(f"s_lshl_b32 s61, s{sQ}, 5")
    a(f"s_and_b32 s62, s{sQ}, 1")
    a("s_lshl_b32 s62, s62, 5")
    a("s_add_u32 s62, s62, 128")
    a("v_add_u32 v19, s62, v18")
    a("v_add_u32 v18, s61, v18")
    for r in range(4): a(f"v_mov_b32 v{ONES+r}, 0x3f803f80")
    zcount(a, 55, 58)
    a(f"s_lshl_b32 s61, s{sQ}, 7")
    a(f"s_add_u32 s61, s61, {L_TAB}")
    a("v_and_b32 v3, 0x30, v1")
    a("v_add_u32 v4, s61, v3")
    a(f"v_add_u32 v7, {L_CW + 384}, v3")
    a("v_and_b32 v3, 15, v1")
    a("v_lshl_add_u32 v5, v3, 2, s61")
    a("v_lshlrev_b32 v3, 2, v3")
    a(f"v_add_u32 v6, {L_CW}, v3")
    a("v_lshlrev_b32 v8, 4, v1")
    a("v_lshlrev_b32 v9, 3, v1")
    a(f"s_lshl_b32 s61, s{sQ}, 6")
    a(f"s_and_b32 s62, s{sQ}, 1")
    a("s_lshl_b32 s62, s62, 6")
    a("s_add_u32 s62, s62, 256")
    a("v_add_u32 v22, s61, v6")
    a("v_add_u32 v23, s62, v6")
    a("v_add_u32 v24, s61, v7")
    a("v_add_u32 v25, s62, v7")
    a(f"s_lshl_b32 s57, s{sRB}, 2")
    a(f"s_add_u32 s57, s57, s{sQ}")
    a(f"s_lshl_b32 s53, s{sGRP}, 6")
    a("s_add_u32 s53, s53, s57")
    a("s_mul_i32 s53, s53, 6144")
    a(f"s_add_u32 s53, s53, {WS_Z2N}")
    a("s_mul_i32 s54, s57, 48")
    a("s_add_u32 s54, s54, s55")
    a("s_lshl_b32 s54, s54, 10")
    a(f"s_add_u32 s54, s54, {WS_Z1}")
    a(f"s_lshl_b32 s56, s{sRB}, 3")
    a(f"s_add_u32 s56, s56, s{sGRP}")
    a("s_lshl_b32 s56, s56, 2")
    a(f"s_add_u32 s56, s56, s{sQ}")
    a("s_lshl_b32 s56, s56, 9")
    a(f"s_add_u32 s56, s56, {WS_ST2}")
    def xreg(s, kk, T): return XR + ((s*2 + kk)*2 + T)*4
    def wfrag(step, kk, j):
        return dict(step=step, reg=None, reads=[(lambda r, hh=hh: f"ds_read_b64_tr_b16 {V(r+2*hh,2)}, v{16+(j&1)} offset:{j*32 + kk*6144 + hh*768}") for hh in range(2)])
    def cfrag(step, kk, t):
        return dict(step=step, reg=None, reads=[(lambda r, hh=hh: f"ds_read_b64_tr_b16 {V(r+2*hh,2)}, v{20+t} offset:{kk*6144 + hh*768}") for hh in range(2)])
    fr = {}; mf = []
    for s in range(8):
        for kk in range(2):
            for T in range(2):
                fr[('x', s, kk, T)] = dict(step=s, reg=xreg(s, kk, T), reads=[lambda r, kk=kk, T=T: f"ds_read_b128 {V(r)}, v{14+kk} offset:{T*2048}"])
            for j in range(6):
                fr[('w', s, kk, j)] = wfrag(s, kk, j)
                for T in range(2): mf.append((ACC + (j*2+T)*4, ('x', s, kk, T), ('w', s, kk, j)))
                if j in (1, 3):
                    T = j >> 1
                    mf.append((SUM+4*T, 'ones', ('x', s, kk, T)))
                    mf.append((GRM+4*T, ('x', s, kk, T), ('x', s, kk, T)))
                if j in (2, 5):
                    t = j // 3
                    fr[('c', s, kk, t)] = cfrag(s, kk, t)
                    mf.append((CWA+4*t, 'ones', ('c', s, kk, t)))
    fr['ones'] = dict(step=0, reg=ONES, reads=None)
    def pre1(s):
        for r in range(2): a(f"v_add_u32 v{14+r}, {ZSLOT[s % 5]}, v{10+r}")
        for r in range(2): a(f"v_add_u32 v{16+r}, {ZSLOT[s % 5] + 16384}, v{12+r}")
        for r in range(2): a(f"v_add_u32 v{20+r}, {ZSLOT[s % 5] + 16384}, v{18+r}")
    l2_setup(a, 26)
    for r in range(2, 4): a(f"v_mov_b32 v{ONES+r}, 0x3f803f80")
    a.stamp()
    gemm_stream(a, mf, fr, ring, opt('LA', 10), opt('cover', 3), pre1, stamps=(0, 1, 4), hooks=l2_hooks(a, 26))
    a.stamp()
    for T in range(2): diag_sel(a, 104+T, GRM+4*T)
    for T in range(2): row_finalize(a, SUM+4*T, 104+T, 0)
    a(f"ds_write_b32 v22, v{CWA}")
    a(f"ds_write_b32 v23, v{CWA+4}")
    for T in range(2): a(f"v_rsq_f32 v{106+T}, v{104+T}")
    for T in range(2): a(f"v_sqrt_f32 v{104+T}, v{104+T}")
    for T in range(2): a(f"v_mul_f32 v{108+T}, v{106+T}, v{106+T}")
    for T in range(2): a(f"v_mul_f32 v{108+T}, v{108+T}, v{106+T}")
    for T in range(2): a(f"v_mul_f32 v{108+T}, {f2u(-C2):#x}, v{108+T}")
    for T in range(2): a(f"v_mul_f32 v{106+T}, {f2u(-C1):#x}, v{106+T}")
    a(f"s_mov_b32 exec_lo, {DIAG_LO:#x}\ns_mov_b32 exec_hi, {DIAG_HI:#x}")
    for T in range(2):
        for k, r in enumerate((SUM+4*T, 108+T, 106+T, 104+T)): a(f"ds_write_b32 v5, v{r} offset:{64*T + TP*k}")
    a("s_mov_b64 exec, -1")
    for r in range(112, 128): a(f"v_mov_b32 v{r}, 0")
    a("s_waitcnt lgkmcnt(0)")
    for T in range(2):
        for k in range(4): a(f"ds_read_b128 {V(80+16*T+4*k)}, v4 offset:{64*T + TP*k}")
    a("s_barrier")
    CWR = [10, 11, 14, 15, 16, 17]
    for j in range(6): a(f"ds_read_b32 v{CWR[j]}, v6 offset:{64*j}")
    a(f"v_mov_b32 v3, {L_MISC + 256}")
    a("ds_read_b32 v31, v3")
    a(f"s_mul_i32 s61, s{sQ}, 6144")
    a(f"s_add_u32 s61, s61, {L_PARK}")
    a("v_add_u32 v30, s61, v8")
    a("s_waitcnt lgkmcnt(0)")
    for j in range(6):
        skip = a.label("Lz2skip")
        a(f"s_cmp_gt_u32 s58, {j}")
        a(f"s_cbranch_scc0 {skip}")
        xs = [ACC + (j*2+T)*4 + 2*p for T in range(2) for p in range(2)]
        tb = [80 + 16*T + 2*p for T in range(2) for p in range(2)]
        sel = f"op_sel:[0,{j&1},0] op_sel_hi:[1,{j&1},1]"
        for x, t in zip(xs, tb): a(f"v_pk_fma_f32 {V(x,2)}, {V(t,2)}, {V(CWR[j&~1],2)}, {V(x,2)} {sel} neg_lo:[1,0,0] neg_hi:[1,0,0]")
        gelu_core(a, xs, [20, 22, 26, 28], [(V(t+4,2), "") for t in tb], [(V(t+8,2), "") for t in tb], [(V(t+12,2), "") for t in tb])
        for k, x in enumerate(xs): a(f"v_pk_add_f32 {V(112+2*k,2)}, {V(112+2*k,2)}, {V(x,2)}")
        for k, x in enumerate(xs): a(f"v_pk_fma_f32 {V(120+2*k,2)}, {V(x,2)}, {V(x,2)}, {V(120+2*k,2)}")
        e, o = ACC + j*8, ACC + j*8 + 4
        for i in range(4): a(f"v_cvt_pk_bf16_f32 v{e+i}, v{e+i}, v{o+i}")
        a(f"ds_write_b128 v30, {V(e)} offset:{j*1024}")
        a(f"{skip}:")
    def val(i, T, st): return 112 + 8*st + 4*T + i
    for st in range(2):
        for T in range(2):
            for i in range(2):
                A, B = val(i, T, st), val(i+2, T, st)
                a(f"v_add_f32_dpp v{A}, v{A}, v{A} row_ror:8 row_mask:0xf bank_mask:0x3")
                a(f"v_add_f32_dpp v{A}, v{B}, v{B} row_ror:8 row_mask:0xf bank_mask:0xc")
    a("s_mov_b32 s60, 0x22222222\ns_mov_b32 s61, 0x22222222")
    for st in range(2):
        for T in range(2):
            A, B = val(0, T, st), val(1, T, st)
            a(f"v_add_f32_dpp v{A}, v{A}, v{A} row_half_mirror row_mask:0xf bank_mask:0x5")
            a(f"v_add_f32_dpp v{A}, v{B}, v{B} row_half_mirror row_mask:0xf bank_mask:0xa")
    a("s_mov_b32 s62, 0x44444444\ns_mov_b32 s63, 0x44444444")
    for qp in ("[1,0,3,2]", "[2,3,0,1]"):
        for st in range(2):
            for T in range(2):
                A = val(0, T, st)
                a(f"v_add_f32_dpp v{A}, v{A}, v{A} quad_perm:{qp} row_mask:0xf bank_mask:0xf")
    a(f"v_cndmask_b32 v112, v{val(0,0,0)}, v{val(0,0,1)}, s[60:61]")
    a("s_mov_b32 s60, 0x88888888\ns_mov_b32 s61, 0x88888888")
    a(f"v_cndmask_b32 v112, v112, v{val(0,1,0)}, s[62:63]")
    a(f"v_cndmask_b32 v112, v112, v{val(0,1,1)}, s[60:61]")
    a("v_mov_b32 v113, v31")
    a.vmem(f"buffer_store_dwordx2 {V(112,2)}, v9, {S4(WS_)}, s56 offen sc1", "st")
    a.stamp()
    fr = {}; mf = []
    for u in range(8):
        for kk in range(2):
            for T in range(2): fr[('x', u, kk, T)] = dict(step=u, reg=xreg(u, kk, T), reads=None)
            for j in range(6):
                fr[('w', u, kk, j)] = wfrag(u, kk, j)
                for T in range(2): mf.append((ACC + (j*2+T)*4, ('w', u, kk, j), ('x', u, kk, T)))
                if j in (2, 5):
                    t = j // 3
                    fr[('c', u, kk, t)] = cfrag(u, kk, t)
                    mf.append((120+4*t, ('c', u, kk, t), 'ones'))
    fr['ones'] = dict(step=0, reg=ONES, reads=None)
    for r in range(4): a(f"v_mov_b32 v{ONES+r}, 0x3f803f80")
    a("s_waitcnt lgkmcnt(0)")
    def pre2(u):
        for r in range(2): a(f"v_add_u32 v{16+r}, {W1SL[u]}, v{12+r}")
        for r in range(2): a(f"v_add_u32 v{20+r}, {W1SL[u]}, v{18+r}")
    ring2 = list(range(80, 112, 4))
    gemm_stream(a, mf, fr, ring2, opt('LA', 10), opt('cover', 3), pre2, nobar=1)
    a.stamp()
    for T in range(2):
        for k in range(4): a(f"ds_read_b32 v{104+4*k+2*T}, v5 offset:{64*T + TP*k}")
    a("s_mov_b32 exec_lo, 0x00010001\ns_mov_b32 exec_hi, 0x00010001")
    a(f"ds_write_b128 v24, {V(120)}")
    a(f"ds_write_b128 v25, {V(124)}")
    a("s_mov_b64 exec, -1")
    a("s_waitcnt lgkmcnt(0)")
    a.vmall()
    a("s_barrier")
    for j in range(6): a(f"ds_read_b128 {V(80+4*j)}, v7 offset:{64*j}")
    a("s_waitcnt lgkmcnt(0)")
    for j in range(6):
        skip = a.label("Lz1skip")
        a(f"s_cmp_gt_u32 s58, {j}")
        a(f"s_cselect_b32 s61, s54, {OOB}")
        a(f"s_cbranch_scc0 {skip}")
        xs = [ACC + (j*2+T)*4 + 2*p for T in range(2) for p in range(2)]
        for k, x in enumerate(xs): a(f"v_pk_fma_f32 {V(x,2)}, {V(80+4*j+2*(k%2),2)}, {V(104+2*(k//2),2)}, {V(x,2)} op_sel_hi:[1,0,1] neg_lo:[1,0,0] neg_hi:[1,0,0]")
        b = "op_sel_hi:[1,0,0]"
        gelu_core(a, xs, [20, 22, 26, 28], [(V(108+2*(k//2),2), b) for k in range(4)], [(V(112+2*(k//2),2), b) for k in range(4)], [(V(116+2*(k//2),2), b) for k in range(4)])
        e = ACC + j*8
        for k, x in enumerate(xs): a(f"v_cvt_pk_bf16_f32 v{e+k}, v{x}, v{x+1}")
        a("s_nop 1")
        for p in range(2): a(f"v_permlane32_swap_b32 v{e+p}, v{e+2+p}")
        a(f"{skip}:")
        if j >= 4: a("s_add_u32 s61, s61, 4096")
        a.vmem(f"buffer_store_dwordx4 {V(e)}, v8, {S4(WS_)}, s61 offen offset:{(j%4)*1024} sc1", "z1")
    a.stamp()

def red_g(a, regs, op="v_add_f32", tmp=60):
    n = len(regs)
    for sw in ("v_permlane32_swap_b32", "v_permlane16_swap_b32"):
        for k, r in enumerate(regs): a(f"v_mov_b32 v{tmp+k}, v{r}")
        if n < 3: a("s_nop 1")
        for k, r in enumerate(regs): a(f"{sw} v{r}, v{tmp+k}")
        for k, r in enumerate(regs): a(f"{op} v{r}, v{r}, v{tmp+k}")

def wsp_setup_h(a):
    rowtile_voffs(a, 8, 9, 12)
    a(f"s_lshl_b32 s59, s{sRB}, 2")
    a(f"s_add_u32 s59, s59, s{sQ}")
    a("s_lshl_b32 s59, s59, 17")
    a(f"s_lshl_b32 s61, s{sKS}, 11")
    a("s_add_u32 s59, s59, s61")

def wsp_group_h(a, v):
    a(f"s_add_u32 s61, s{sK0B}, {v}")
    a("s_and_b32 s61, s61, 15")
    a("s_lshl_b32 s61, s61, 7")
    a("s_add_u32 s61, s61, s59")
    a(f"s_add_u32 m0, s60, {(v % NWS) * 16384}")
    a("s_add_u32 s62, s61, 4096")
    a.vmem(f"buffer_load_dwordx4 v8, {S4(WSP_)}, s61 offen lds", ("S", v))
    a.vmem(f"buffer_load_dwordx4 v9, {S4(WSP_)}, s61 offen offset:1024 lds", ("S", v))
    a(f"s_add_u32 m0, s60, {(v % NWS) * 16384 + 2048}")
    a("s_nop 0")
    a.vmem(f"buffer_load_dwordx4 v8, {S4(WSP_)}, s62 offen lds", ("S", v))
    a.vmem(f"buffer_load_dwordx4 v9, {S4(WSP_)}, s62 offen offset:1024 lds", ("S", v))

def l2_setup(a, d):
    a("v_lshrrev_b32 v31, 1, v1")
    a("v_lshlrev_b32 v31, 12, v31")
    a("v_and_b32 v30, 1, v1")
    a(f"v_lshl_add_u32 v{d}, v30, 7, v31")
    a(f"v_lshlrev_b32 v{d+1}, 7, v1")
    a(f"s_lshl_b32 s68, s{sRB}, 2")
    a(f"s_add_u32 s68, s68, s{sQ}")
    a("s_lshl_b32 s68, s68, 17")
    a(f"s_lshl_b32 s61, s{sKS}, 3")
    a(f"s_add_u32 s61, s61, s{sCG}")
    a("s_lshl_b32 s61, s61, 8")
    a("s_add_u32 s68, s68, s61")
    a("s_lshr_b32 s61, s2, 3")
    a("s_lshl_b32 s61, s61, 2")
    a(f"s_add_u32 s61, s61, s{sQ}")
    a("s_lshl_b32 s69, s61, 12")
    a(f"s_mul_i32 s70, s61, {43*128}")
    a(f"s_mov_b32 m0, {L_MISC}")
def l2_hooks(a, d):
    o = opt('l2step', 7)
    def h0(): a.vmem(f"buffer_load_dword v{d}, {S4(WSP_)}, s68 offen {'nt' if opt('l2nt', 0) else ''} lds", "pf")
    def h1():
        a("s_mov_b32 exec_hi, 0")
        a.vmem(f"buffer_load_dword v{d+1}, {S4(WO_)}, s69 offen lds", "pf")
        a("s_mov_b32 exec_hi, 0x7ff")
        a.vmem(f"buffer_load_dword v{d+1}, {S4(WOUT_)}, s70 offen lds", "pf")
        a("s_mov_b32 exec_hi, -1")
    return {o: h0, opt('l2step2', 5): h1} if opt('l2pf', 1) else {}

def x_group_h(a, step, sl, tag):
    a(f"s_add_u32 s61, s{sK0A}, {step}")
    a("s_and_b32 s61, s61, 7")
    a("s_lshl_b32 s58, s61, 7")
    a("s_add_u32 s62, s58, s53")
    a(f"s_add_u32 m0, s60, {sl}")
    a("s_add_u32 s63, s62, 1024")
    a.vmem(f"buffer_load_dwordx4 v4, {S4(X_)}, s62 offen lds", tag)
    a.vmem(f"buffer_load_dwordx4 v5, {S4(X_)}, s62 offen offset:1024 lds", tag)
    a(f"s_add_u32 m0, s60, {sl + 2048}")
    a("s_nop 0")
    a.vmem(f"buffer_load_dwordx4 v4, {S4(X_)}, s63 offen lds", tag)
    a.vmem(f"buffer_load_dwordx4 v5, {S4(X_)}, s63 offen offset:1024 lds", tag)

def dots_x(a, fr, acc_s, acc_q, ones):
    for i in range(4):
        a(f"v_dot2_f32_bf16 v{acc_s}, v{fr+i}, v{ones}, v{acc_s}")
        a(f"v_dot2_f32_bf16 v{acc_q}, v{fr+i}, v{fr+i}, v{acc_q}")

def diag_sel(a, dst, gram):
    a("s_mov_b32 s62, 0x22222222\ns_mov_b32 s63, 0x22222222")
    a(f"v_cndmask_b32 v{dst}, v{gram}, v{gram+1}, s[62:63]")
    a("s_mov_b32 s62, 0x44444444\ns_mov_b32 s63, 0x44444444")
    a(f"v_cndmask_b32 v{dst}, v{dst}, v{gram+2}, s[62:63]")
    a("s_mov_b32 s62, 0x88888888\ns_mov_b32 s63, 0x88888888")
    a(f"v_cndmask_b32 v{dst}, v{dst}, v{gram+3}, s[62:63]")
DIAG_LO, DIAG_HI = 0x00f0000f, 0xf0000f00

def row_finalize(a, s_, q_, t):
    a(f"v_mul_f32 v{s_}, {f2u(1.0/512):#x}, v{s_}")
    a(f"v_mul_f32 v{q_}, {f2u(1.0/512):#x}, v{q_}")
    a(f"v_fma_f32 v{q_}, -v{s_}, v{s_}, v{q_}")
    a(f"v_max_f32 v{q_}, 0, v{q_}")
    a(f"v_add_f32 v{q_}, {f2u(1e-5):#x}, v{q_}")

def nonce_publish(a):
    a(f"s_or_b32 s61, s2, s{sQ}")
    a("s_cmp_eq_u32 s61, 0")
    a("s_cselect_b32 s61, 0, 256")
    a("s_or_b32 s62, s84, 1")
    a("v_mov_b32 v30, s62")
    a("v_mov_b32 v31, 0")
    a("s_mov_b64 exec, 1")
    a.vmem(f"buffer_store_dword v30, v31, {S4(DBG_)}, s61 offen sc1", "nonce")
    a("s_mov_b64 exec, -1")

def nonce_check(a):
    a.vmwait("poll")
    def chk():
        a(f"v_readfirstlane_b32 s{sT}, v25")
        a(f"s_cmp_lg_u32 s{sT}, 0")
    def iss():
        a("v_mov_b32 v31, 0")
        a(f"buffer_load_dword v25, v31, {S4(DBG_)}, 0 offen sc1")
    spin(a, iss, chk)

def wave_flag(a):
    a(f"s_lshl_b32 s61, s{sGRP}, 4")
    a(f"s_add_u32 s61, s61, s{sRB}")
    a("s_lshl_b32 s61, s61, 2")
    a(f"s_add_u32 s61, s61, s{sQ}")
    a("s_lshl_b32 s61, s61, 7")
    a(f"s_add_u32 s61, s61, {F1_OFF}")
    a(f"v_mov_b32 v30, s{sT}")
    a("v_mov_b32 v31, 0")
    a("s_mov_b64 exec, 1")
    a.vmem(f"buffer_store_dword v30, v31, {S4(WS_)}, s61 offen sc1", "flag")
    a("s_mov_b64 exec, -1")

def spin(a, issue, check_ok, limit=0x40000):
    lp = a.label("Lspin"); ok = a.label("Lok")
    check_ok()
    a(f"s_cbranch_scc1 {ok}")
    a("s_mov_b32 s63, 0")
    a(f"{lp}:")
    issue()
    a("s_waitcnt vmcnt(0)")
    a("s_add_u32 s63, s63, 1")
    a(f"s_cmp_gt_u32 s63, {limit}")
    a(f"s_cbranch_scc1 {ok}")
    check_ok()
    a(f"s_cbranch_scc0 {lp}")
    a(f"{ok}:")

def az_helper(a, fused):
    srd(a, WA_, 72, D*F2*2)
    rowtile_voffs(a, 4, 5, 10)
    for i in range(3):
        a(f"v_add_u32 v3, {64*i}, v1")
        a("v_mul_u32_u24 v30, 683, v3")
        a("v_lshrrev_b32 v30, 13, v30")
        a("v_mul_u32_u24 v31, 12, v30")
        a("v_sub_u32 v31, v3, v31")
        a("v_lshrrev_b32 v3, 2, v30")
        a("v_and_b32 v3, 2, v3")
        a("v_xor_b32 v31, v3, v31")
        a("v_mul_u32_u24 v30, 2752, v30")
        a(f"v_lshl_add_u32 v{20+i}, v31, 4, v30")
        if i: a(f"v_subrev_u32 v{20+i}, {1024*i}, v{20+i}")
    a(f"s_lshl_b32 s53, s{sRB}, 2")
    a(f"s_add_u32 s53, s53, s{sQ}")
    a("s_lshl_b32 s53, s53, 15")
    a(f"s_mul_i32 s55, s{sGRP}, 6")
    a("s_min_u32 s55, s55, 40")
    a(f"s_mul_i32 s54, s{sQ}, {16*2752}")
    a("s_lshl_b32 s61, s55, 5")
    a("s_add_u32 s54, s54, s61")
    a(f"s_mul_i32 s56, s{sQ}, 3072")
    a(f"s_lshl_b32 s60, s{sQ}, 12")
    def wgroup(kreg_ready, step, dst, add, tag):
        if not kreg_ready:
            a(f"s_add_u32 s61, s{sK0A}, {step}")
            a("s_and_b32 s61, s61, 7")
        a(f"s_mul_i32 s63, s61, {64*2752}")
        a("s_add_u32 s63, s63, s54")
        a(f"s_add_u32 m0, s56, {dst}")
        if add: a(f"s_add_u32 s63, s63, {add}")
        else: a("s_nop 0")
        for i in range(3):
            a.vmem(f"buffer_load_dwordx4 v{20+i}, {S4(WA_)}, s63 offen offset:{1024*i} lds", tag)
    def ga(step):
        x_group_h(a, step, ZSLOT[step % 5], ("A", step))
        wgroup(True, step, ZSLOT[step % 5] + 16384, 1376, ("A", step))
    npro = opt('proZ', 2)
    ga(0)
    nonce_publish(a)
    for st in range(1, npro): ga(st)
    late_srds(a)
    wsp_setup_h(a)
    a("v_lshlrev_b32 v10, 3, v1")
    a(f"s_lshl_b32 s64, s{sRB}, 5")
    a(f"s_add_u32 s64, s64, s{sQ}")
    a("s_lshl_b32 s64, s64, 9")
    a(f"s_add_u32 s64, s64, {WS_ST2}")
    a("s_add_u32 s65, s64, 4096\ns_add_u32 s66, s64, 8192\ns_add_u32 s67, s64, 12288")
    a("v_lshlrev_b32 v11, 4, v1")
    a(f"s_mul_i32 s61, s{sQ}, 6144")
    a(f"s_add_u32 s61, s61, {L_PARK}")
    a("v_add_u32 v11, s61, v11")
    a(f"s_lshl_b32 s61, s{sQ}, 8")
    a(f"s_add_u32 s61, s61, {L_XCH}")
    a("v_lshrrev_b32 v12, 1, v1")
    a("v_lshl_add_u32 v12, v12, 2, s61")
    a("v_lshrrev_b32 v13, 4, v1")
    a("v_lshl_add_u32 v13, v13, 5, s61")
    a("v_lshrrev_b32 v3, 5, v1")
    a("v_mul_u32_u24 v3, 3072, v3")
    a("v_bfe_u32 v30, v1, 4, 1")
    a("v_lshl_add_u32 v3, v30, 9, v3")
    a("v_and_b32 v30, 15, v1")
    a("v_lshl_add_u32 v14, v30, 4, v3")
    a(f"s_lshl_b32 s57, s{sGRP}, 4")
    a(f"s_add_u32 s57, s57, s{sRB}")
    a("s_lshl_b32 s57, s57, 2")
    a(f"s_add_u32 s57, s57, s{sQ}")
    a("s_mul_i32 s57, s57, 6144")
    a(f"s_add_u32 s57, s57, {WS_Z2N}")
    a("v_mov_b32 v16, 0xffff0000")
    a.stamp()
    for s in range(8):
        a.vmwait(("A", s))
        a("s_barrier")
        if s in (0, 1, 4): a.stamp()
        if s == 0:
            for st in range(npro, 5): ga(st)
        elif s <= 3: ga(s + 4)
        else:
            if s == 5:
                a("v_mov_b32 v31, 0")
                a.vmem(f"buffer_load_dword v25, v31, {S4(DBG_)}, 0 offen sc1", "poll")
            for u in (2*(s-4), 2*(s-4)+1): wgroup(False, u, W1SL[u], 0, ("W1", u))
    nonce_check(a)
    a(f"v_mov_b32 v30, s{sT}")
    a(f"v_mov_b32 v31, {L_MISC + 256}")
    a("ds_write_b32 v31, v30")
    a("s_waitcnt lgkmcnt(0)")
    a.stamp()
    a("s_barrier")
    a.vmall()
    a("s_barrier")
    a(f"s_setprio {opt('nprio', 3)}")
    for j in range(6): a(f"ds_read_b128 {V(64+4*j)}, v11 offset:{1024*j}")
    def iss():
        for c in range(8):
            a(f"buffer_load_dwordx2 {V(32+2*c,2)}, v10, {S4(WS_)}, s{64 + (c>>1)} offen offset:{2048*(c&1)} sc1")
    def chk():
        for c in range(8): a(f"v_xor_b32 v{48+c}, s{sT}, v{33+2*c}")
        a("v_or3_b32 v48, v48, v49, v50\nv_or3_b32 v51, v51, v52, v53\nv_or3_b32 v48, v48, v54, v55")
        a("v_or_b32 v48, v48, v51")
        a("v_cmp_ne_u32 vcc, 0, v48")
        a("s_cmp_eq_u64 vcc, 0")
    a("s_waitcnt lgkmcnt(0)")
    for j in range(6):
        for w in range(4):
            a(f"v_lshlrev_b32 v{96+8*j+2*w}, 16, v{64+4*j+w}")
            a(f"v_and_b32 v{96+8*j+2*w+1}, v16, v{64+4*j+w}")
    zcount(a, 62, 58)
    iss(); a("s_waitcnt vmcnt(0)")
    spin(a, iss, chk)
    a.stamp()
    for k in (2, 4, 6): a(f"v_add_f32 v{32+2*k}, v{32+2*k}, v{34+2*k}")
    a("v_add_f32 v32, v32, v34")
    a("v_add_f32 v36, v36, v40")
    a("v_add_f32 v32, v32, v44")
    a("v_add_f32 v32, v32, v36")
    a(f"v_mul_f32 v32, {f2u(1.0/688):#x}, v32")
    a("s_nop 1")
    a("v_mov_b32_dpp v33, v32 quad_perm:[1,0,3,2] row_mask:0xf bank_mask:0xf")
    a("v_fma_f32 v33, -v32, v32, v33")
    a("v_max_f32 v33, 0, v33")
    a(f"v_add_f32 v33, {f2u(1e-5):#x}, v33")
    a("v_rsq_f32 v33, v33")
    a("s_mov_b32 exec_lo, 0x55555555\ns_mov_b32 exec_hi, 0x55555555")
    a("v_mul_f32_e64 v32, -v32, v33")
    a("ds_write_b32 v12, v33")
    a("ds_write_b32 v12, v32 offset:128")
    a("s_mov_b64 exec, -1")
    a("s_waitcnt lgkmcnt(0)")
    for k in range(2): a(f"ds_read_b128 {V(32+4*k)}, v13 offset:{16*k}")
    for k in range(2): a(f"ds_read_b128 {V(40+4*k)}, v13 offset:{128 + 16*k}")
    for j in range(6):
        z = 64 + 4*j; u = 96 + 8*j
        if j == 0: a("s_waitcnt lgkmcnt(0)")
        for w in range(8): a(f"v_fma_f32 v{u+w}, v{u+w}, v{32+w}, v{40+w}")
        for w in range(4): a(f"v_cvt_pk_bf16_f32 v{z+w}, v{u+2*w}, v{u+2*w+1}")
        a(f"s_cmp_gt_u32 s58, {j}")
        a(f"s_cselect_b32 s61, s57, {OOB}")
        a.vmem(f"buffer_store_dwordx4 {V(z)}, v14, {S4(WS_)}, s61 offen offset:{(j>>1)*1024 + (j&1)*256} sc1", "z2n")
    a("s_setprio 0")
    a.stamp()
    a.vmwait("z2n")
    wave_flag(a)
    a.stamp()
    a("s_barrier")
    for v in range(opt('wpre', 3)): wsp_group_h(a, v)

def aq_compute(a, fused):
    AQ, AK, AV, HK, HV = 32, 64, 96, 128, 136
    ONES, SUM, GRM, XA = 28, 224, 232, 240
    CWQ = [128, 132, 136, 140, 240, 244]
    ring = list(range(144, 200, 4))
    MC, MPN, MPA, MB = 200, 204, 208, 216
    a(f"s_lshr_b32 s5, s{sQ}, 1")
    a(f"s_and_b32 s46, s{sQ}, 1")
    a("s_lshl_b32 s61, s5, 13")
    rowfrag_addr(a, 10, 11, "s61")
    rowfrag_addr(a, 12, 13, 16384)
    qw_addr(a, 14)
    a("v_add_u32 v14, 18432, v14")
    a("s_lshl_b32 s61, s46, 6")
    a("v_xor_b32 v14, s61, v14")
    a("v_xor_b32 v15, 32, v14")
    a("v_and_b32 v3, 15, v1")
    a("v_lshrrev_b32 v30, 4, v1")
    a("v_lshlrev_b32 v30, 2, v30")
    a("v_sub_u32 v31, v3, v30")
    a(f"v_mov_b32 v224, {NEG:#x}")
    a("v_mov_b32 v225, 0xffff")
    a("v_mov_b32 v226, 0xffff0000")
    for i in range(4):
        a(f"v_subrev_u32 v227, {i}, v31")
        a("v_cmp_gt_u32 vcc, 8, v227")
        a("v_cmp_gt_i32 s[62:63], -8, v227")
        a("s_nop 0")
        a(f"v_cndmask_b32_e64 v{MC+i}, v224, 0, vcc")
        a(f"v_cndmask_b32_e64 v{228+i}, 0, v{225 + (i&1)}, vcc")
        a(f"v_cndmask_b32_e64 v{MPN+i}, v224, 0, s[62:63]")
    a(f"v_or_b32 v{MB}, v228, v229")
    a(f"v_or_b32 v{MB+1}, v230, v231")
    a("s_lshl_b32 s61, s5, 8")
    a(f"s_add_u32 s61, s61, {L_TAB}")
    a("v_and_b32 v27, 0x30, v1")
    a("v_add_u32 v218, s61, v27")
    a("v_lshl_add_u32 v219, v3, 2, s61")
    a("s_lshl_b32 s61, s46, 7")
    a(f"s_add_u32 s61, s61, {L_CW}")
    a("v_add_u32 v220, s61, v27")
    a("v_lshl_add_u32 v221, v3, 2, s61")
    a("v_lshlrev_b32 v222, 4, v1")
    a("s_lshl_b32 s61, s46, 12")
    a(f"s_add_u32 s61, s61, {L_XCH}")
    a("v_add_u32 v223, s61, v222")
    a(f"s_lshl_b32 s53, s{sRB}, 1")
    a("s_add_u32 s53, s53, s5")
    a("s_lshl_b32 s53, s53, 4")
    a(f"s_add_u32 s53, s53, s{sGRP}")
    a("s_lshl_b32 s53, s53, 1")
    a("s_add_u32 s53, s53, s46")
    a("s_lshl_b32 s53, s53, 11")
    a(f"s_add_u32 s53, s53, {WS_O}")
    a("s_add_u32 s54, s53, 32768")
    a("v_lshrrev_b32 v27, 4, v1")
    a("v_lshlrev_b32 v27, 9, v27")
    a("v_lshl_add_u32 v4, v3, 4, v27")
    AT = 16
    def build(halo, hp):
        fr = {'ones': dict(step=0, reg=ONES, reads=None)}; mf = []
        for s in range(8):
            for kk in range(2):
                for tl in range(4):
                    fr[('x', s, kk, tl)] = dict(step=s, reg=None, reads=[lambda r, kk=kk, tl=tl: f"ds_read_b128 {V(r)}, v{AT+kk} offset:{tl*2048}"])
                fr[('h', s, kk)] = dict(step=s, reg=None, reads=[lambda r, kk=kk: f"ds_read_b128 {V(r)}, v{AT+2+kk}"])
                for m in range(3):
                    for e in range(2):
                        w = ('w', s, kk, m, e)
                        fr[w] = dict(step=s, reg=None, reads=[(lambda r, hh=hh, kk=kk, m=m, e=e: f"ds_read_b64_tr_b16 {V(r+2*hh,2)}, v{AT+4+e} offset:{kk*12288 + m*1024 + hh*512}") for hh in range(2)])
                        for tl in range(4):
                            d = (AQ, AK, AV)[m] + (e*4+tl)*4
                            mf.append((d, w, ('x', s, kk, tl)) if m < 2 else (d, ('x', s, kk, tl), w))
                        if halo and m == 1: mf.append((HK+4*e, w, ('h', s, kk)))
                        if halo and m == 2: mf.append((HV+4*e, ('h', s, kk), w))
                        if not halo: mf.append((CWQ[m*2+e], 'ones', w))
                        if m == 0:
                            x = ('x', s, kk, 2*hp+e)
                            mf.append((SUM+4*e, 'ones', x)); mf.append((GRM+4*e, x, x))
                        if halo and hp == 0 and m == 1:
                            mf.append((XA, 'ones', ('h', s, kk)) if e == 0 else (XA+4, ('h', s, kk), ('h', s, kk)))
        return mf, fr
    def stats_out(halo, hp):
        jobs = [(SUM, GRM, 128*hp), (SUM+4, GRM+4, 128*hp + 64)]
        if halo and hp == 0: jobs.append((XA, XA+4, 512))
        for k, (s_, g_, o) in enumerate(jobs): diag_sel(a, 144+k, g_)
        if not halo:
            for k in range(6): a(f"ds_write_b32 v221, v{CWQ[k]} offset:{256*(k>>1) + 64*(k&1)}")
        for k, (s_, g_, o) in enumerate(jobs): row_finalize(a, s_, 144+k, 0)
        for k, (s_, g_, o) in enumerate(jobs): a(f"v_rsq_f32 v{144+k}, v{144+k}")
        a(f"s_mov_b32 exec_lo, {DIAG_LO:#x}\ns_mov_b32 exec_hi, {DIAG_HI:#x}")
        for k, (s_, g_, o) in enumerate(jobs):
            a(f"ds_write_b32 v219, v{s_} offset:{o}")
            a(f"ds_write_b32 v219, v{144+k} offset:{o + TP}")
        a("s_mov_b64 exec, -1")
    def pre(s):
        for r in range(6): a(f"v_add_u32 v{AT+r}, {QSLOT[s % 3]}, v{10+r}")
    a("v_mov_b32 v26, v30")
    l2_setup(a, 5)
    a("v_mov_b32 v30, v26")
    lr1 = a.label("Lrh1"); lj = a.label("Lqj")
    a("s_cmp_lg_u32 s5, 0")
    a(f"s_cbranch_scc1 {lr1}")
    a("v_lshlrev_b32 v3, 1, v3")
    a("v_sub_u32 v31, v30, v3")
    a(f"s_cmp_eq_u32 s{sRB}, 0")
    a("s_cselect_b32 s61, 1000, 0")
    a("v_subrev_u32 v31, s61, v31")
    for T in range(2):
        for i in range(4):
            if (i ^ T) & 1:
                a(f"v_mov_b32 v{MPA+4*T+i}, v224")
            else:
                a(f"v_cmp_le_i32 vcc, {T + 2 - i}, v31")
                a("s_nop 1")
                a(f"v_cndmask_b32_e64 v{MPA+4*T+i}, v224, 0, vcc")
    n0 = a.nst
    for halo in (True, False):
        if not halo:
            a(f"{lr1}:")
            for i in range(8): a(f"v_mov_b32 v{MPA+i}, v{MPN+(i&3)}")
        lh1 = a.label("Lhp1")
        for r in range(4): a(f"v_mov_b32 v{ONES+r}, 0x3f803f80")
        a("s_cmp_lg_u32 s46, 0")
        a(f"s_cbranch_scc1 {lh1}")
        for hp in range(2):
            if hp: a(f"{lh1}:")
            a.nst = n0
            a.stamp()
            mf, fr = build(halo, hp)
            vm0 = list(a.vm)
            gemm_stream(a, mf, fr, ring, opt('LA', 10), opt('cover', 3), pre, stamps=(0, 1, 4), hooks=l2_hooks(a, 5))
            vm1 = list(a.vm); a.vm = vm0
            a.stamp()
            stats_out(halo, hp)
            a(f"s_branch {lj}")
    a(f"{lj}:")
    a.vm = vm1
    a("s_waitcnt lgkmcnt(0)")
    a("s_barrier")
    for k in range(2): a(f"ds_read_b128 {V(152+4*k)}, v220 offset:{256 + 64*k}")
    for tl in range(4):
        a(f"ds_read_b32 v{162+tl}, v219 offset:{64*tl}")
        a(f"ds_read_b32 v{166+tl}, v219 offset:{64*tl + TP}")
    for e in range(2): a(f"ds_read_b32 v{160+e}, v221 offset:{512 + 64*e}")
    a("s_waitcnt lgkmcnt(2)")
    for tl in range(4):
        a(f"ds_read_b128 {V(172+4*tl)}, v218 offset:{64*tl}")
        a(f"ds_read_b128 {V(10+4*tl)}, v218 offset:{64*tl + TP}")
    for k in range(2): a(f"ds_read_b128 {V(144+4*k)}, v220 offset:{64*k}")
    def corr_t(x, cw, mreg, rreg):
        for p in range(2): a(f"v_pk_fma_f32 {V(x+2*p,2)}, {V(cw+2*p,2)}, {V(mreg&~1,2)}, {V(x+2*p,2)} op_sel:[0,{mreg&1},0] op_sel_hi:[1,{mreg&1},1] neg_lo:[1,0,0] neg_hi:[1,0,0]")
        for p in range(2): a(f"v_pk_mul_f32 {V(x+2*p,2)}, {V(x+2*p,2)}, {V(rreg&~1,2)} op_sel:[0,{rreg&1}] op_sel_hi:[1,{rreg&1}]")
    def corr_c(x, mv, rv, cw):
        for p in range(2): a(f"v_pk_fma_f32 {V(x+2*p,2)}, {V(mv+2*p,2)}, {V(cw&~1,2)}, {V(x+2*p,2)} op_sel:[0,{cw&1},0] op_sel_hi:[1,{cw&1},1] neg_lo:[1,0,0] neg_hi:[1,0,0]")
        for p in range(2): a(f"v_pk_mul_f32 {V(x+2*p,2)}, {V(x+2*p,2)}, {V(rv+2*p,2)}")
    def pack(dst, x):
        for p in range(2): a(f"v_cvt_pk_bf16_f32 v{dst+p}, v{x+2*p}, v{x+2*p+1}")
    KV = 224
    def kp(e, tl): return KV + 8*tl + 2*e
    def vp(e, tl): return KV + 8*tl + 4 + 2*e
    for tl in (2, 3, 0, 1):
        for e in range(2): corr_t(AK + (e*4+tl)*4, 152+4*e, 162+tl, 166+tl)
        for e in range(2): pack(kp(e, tl), AK + (e*4+tl)*4)
    a("s_waitcnt lgkmcnt(0)")
    for tl in (2, 3, 0, 1):
        for e in range(2): corr_c(AV + (e*4+tl)*4, 172+4*tl, 10+4*tl, 160+e)
        for e in range(2): pack(vp(e, tl), AV + (e*4+tl)*4)
        if tl == 3:
            lx = a.label("Lx")
            a("s_cmp_lg_u32 s5, 0")
            a(f"s_cbranch_scc1 {lx}")
            for k in range(4): a(f"ds_write_b128 v223, {V(KV+16+4*k)} offset:{1024*k}")
            a("ds_read_b32 v26, v219 offset:512")
            a(f"ds_read_b32 v27, v219 offset:{512 + TP}")
            a(f"ds_read_b128 {V(188)}, v218 offset:512")
            a(f"ds_read_b128 {V(192)}, v218 offset:{512 + TP}")
            a(f"{lx}:")
    PV = 64
    lh = a.label("Lnh")
    a("s_cmp_lg_u32 s5, 0")
    a(f"s_cbranch_scc1 {lh}")
    a("s_waitcnt lgkmcnt(0)")
    for e in range(2):
        corr_t(HK+4*e, 152+4*e, 26, 27)
        corr_c(HV+4*e, 188, 192, 160+e)
    for e in range(2):
        for T in range(2):
            pack(PV + 8*T + 2*e, HK+4*e)
            pack(PV + 8*T + 4 + 2*e, HV+4*e)
    a(f"{lh}:")
    QP = 96
    for e in range(2):
        for tl in range(4): corr_t(AQ + (e*4+tl)*4, 144+4*e, 162+tl, 166+tl)
    for k in range(8): pack(QP+2*k, AQ+4*k)
    a("s_waitcnt lgkmcnt(0)")
    a("s_barrier")
    lp = a.label("Lp")
    a("s_cmp_eq_u32 s5, 0")
    a(f"s_cbranch_scc1 {lp}")
    for k in range(4): a(f"ds_read_b128 {V(PV+4*k)}, v223 offset:{1024*k}")
    a(f"{lp}:")
    SC, SP = 112, 144
    U = range(8)
    def kprev(u): e, tl = u//4, u%4; return kp(e, tl-2) if tl >= 2 else PV + 8*tl + 2*e
    def vprev(u): e, tl = u//4, u%4; return vp(e, tl-2) if tl >= 2 else PV + 8*tl + 4 + 2*e
    for u in U: a(mfma16(SC+4*u, kp(u//4, u%4), QP+2*u, V(MC)))
    a(f"v_mov_b32 v10, {f2u(0.25*LOG2E):#x}")
    for u in (2, 3, 6, 7): a(mfma16(SP+4*u, kprev(u), QP+2*u, V(MPN)))
    a("s_waitcnt lgkmcnt(0)")
    for u in (0, 1, 4, 5): a(mfma16(SP+4*u, kprev(u), QP+2*u, V(MPA+4*(u&1))))
    MX, TM = 32, 40
    for u in (2, 3, 6, 7, 0, 1, 4, 5):
        for i in range(4): a(f"v_max_f32 v{SC+4*u+i}, v{SC+4*u+i}, v{SP+4*u+i}")
    for u in U: a(f"v_max3_f32 v{MX+u}, v{SC+4*u}, v{SC+4*u+1}, v{SC+4*u+2}")
    for u in U: a(f"v_max_f32 v{MX+u}, v{MX+u}, v{SC+4*u+3}")
    red_g(a, [MX+u for u in U], "v_max_f32", TM)
    for u in range(0, 8, 2): a(f"v_pk_mul_f32 {V(MX+u,2)}, {V(MX+u,2)}, {V(10,2)} op_sel_hi:[1,0]")
    for u in U:
        for p in range(2): a(f"v_pk_fma_f32 {V(SC+4*u+2*p,2)}, {V(SC+4*u+2*p,2)}, {V(10,2)}, {V(MX+(u&~1),2)} op_sel:[0,0,{u&1}] op_sel_hi:[1,0,{u&1}] neg_lo:[0,0,1] neg_hi:[0,0,1]")
    for u in U:
        for i in range(4): a(f"v_exp_f32 v{SC+4*u+i}, v{SC+4*u+i}")
    PC, PP = 144, 160
    for u in U: pack(PP+2*u, SC+4*u)
    for u in U:
        for p in range(2): a(f"v_and_b32 v{PC+2*u+p}, v{MB+p}, v{PP+2*u+p}")
    for u in U:
        for p in range(2): a(f"v_xor_b32 v{PP+2*u+p}, v{PC+2*u+p}, v{PP+2*u+p}")
    OA = 176
    for u in U: a(f"v_pk_add_f32 {V(SC+4*u,2)}, {V(SC+4*u,2)}, {V(SC+4*u+2,2)}")
    for u in U:
        a(mfma16(OA+4*u, vp(u//4, u%4), PC+2*u, "0"))
        a(f"v_add_f32 v{MX+u}, v{SC+4*u}, v{SC+4*u+1}")
    for u in U: a(mfma16(OA+4*u, vprev(u), PP+2*u))
    red_g(a, [MX+u for u in U], "v_add_f32", TM)
    for u in U: a(f"v_rcp_f32 v{MX+u}, v{MX+u}")
    for u in U:
        for p in range(2): a(f"v_pk_mul_f32 {V(OA+4*u+2*p,2)}, {V(OA+4*u+2*p,2)}, {V(MX+(u&~1),2)} op_sel:[0,{u&1}] op_sel_hi:[1,{u&1}]")
    for tl in range(4):
        for e in range(2): pack(112 + 4*tl + 2*e, OA + 4*(e*4+tl))
    for tl in range(4):
        for p in range(2): a(f"v_permlane32_swap_b32 v{112+4*tl+p}, v{112+4*tl+2+p}")
    a.vmwait("b")
    for tl in range(4):
        a.vmem(f"buffer_store_dwordx4 {V(112+4*tl)}, v4, {S4(WS_)}, s{53+(tl>>1)} offen offset:{256*(tl&1)} sc1", "o")
    a.stamp()

def aq_helper(a, fused):
    srd(a, WA_, 66, D*1536*2)
    rowtile_voffs(a, 4, 5, 10)
    a("v_bfe_u32 v3, v1, 4, 1")
    a("v_lshlrev_b32 v3, 1, v3")
    a("v_and_b32 v30, 7, v1")
    a("v_xor_b32 v30, v30, v3")
    a("v_lshrrev_b32 v3, 3, v1")
    a("v_mul_u32_u24 v3, 3072, v3")
    a("v_lshl_add_u32 v6, v30, 4, v3")
    a("v_xor_b32 v30, 4, v30")
    a("v_lshl_add_u32 v7, v30, 4, v3")
    a(f"v_add_u32 v7, {8*3072}, v7")
    a("v_lshrrev_b32 v3, 4, v1")
    a(f"s_lshl_b32 s61, s{sQ}, 1")
    a("v_add_u32 v3, s61, v3")
    a("v_and_b32 v30, 7, v1")
    a("v_xor_b32 v30, v30, v3")
    a("v_and_b32 v30, 7, v30")
    a("v_lshrrev_b32 v3, 3, v1")
    a("v_lshlrev_b32 v3, 10, v3")
    a("v_lshl_add_u32 v20, v30, 4, v3")
    a(f"s_lshl_b32 s53, s{sRB}, 7")
    a("s_sub_u32 s55, s53, 16")
    a("s_max_i32 s55, s55, 0")
    a(f"s_lshl_b32 s61, s{sQ}, 2")
    a("s_add_u32 s55, s55, s61")
    a("s_lshl_b32 s55, s55, 10")
    a(f"s_lshl_b32 s61, s{sQ}, 5")
    a("s_add_u32 s53, s53, s61")
    a("s_lshl_b32 s53, s53, 10")
    a(f"s_mul_i32 s54, s{sQ}, {16*3072}")
    a(f"s_lshl_b32 s61, s{sGRP}, 7")
    a("s_add_u32 s54, s54, s61")
    a(f"s_mul_i32 s56, s{sQ}, 6144")
    a(f"s_lshl_b32 s57, s{sQ}, 9")
    a(f"s_lshl_b32 s60, s{sQ}, 12")
    def ga(step):
        sl = QSLOT[step % 3]; tag = ("A", step)
        x_group_h(a, step, sl, tag)
        a(f"s_mul_i32 s63, s61, {64*3072}")
        a("s_add_u32 s63, s63, s54")
        a(f"s_add_u32 m0, s56, {sl + 18432}")
        a("s_add_u32 s62, s58, s55")
        for m in range(3): a.vmem(f"buffer_load_dwordx4 v6, {S4(WA_)}, s63 offen offset:{1024*m} lds", tag)
        a(f"s_add_u32 m0, s56, {sl + 18432 + 3072}")
        a("s_nop 0")
        for m in range(3): a.vmem(f"buffer_load_dwordx4 v7, {S4(WA_)}, s63 offen offset:{1024*m} lds", tag)
        a(f"s_add_u32 m0, s57, {sl + 16384}")
        a("s_mov_b32 exec_hi, 0")
        a.vmem(f"buffer_load_dwordx4 v20, {S4(X_)}, s62 offen lds", tag)
        a("s_mov_b32 exec_hi, -1")
    ga(0)
    nonce_publish(a)
    ga(1); ga(2)
    late_srds(a)
    if fused: wsp_setup_h(a)
    a.stamp()
    for s in range(8):
        a.vmwait(("A", s))
        a("s_barrier")
        if s in (0, 1, 4): a.stamp()
        if 1 <= s <= 5: ga(s + 2)
        if fused and s == 5:
            a("v_mov_b32 v31, 0")
            a.vmem(f"buffer_load_dword v25, v31, {S4(DBG_)}, 0 offen sc1", "poll")
        if fused and s == 6:
            wsp_group_h(a, 0); wsp_group_h(a, 1)
        if fused and s == 7: wsp_group_h(a, 6)
    a.stamp()
    a("s_barrier")
    if fused:
        for v in (2, 3, 4, 5): wsp_group_h(a, v)
    a("s_barrier")

def flag_store(a, which):
    if which == "F1":
        a(f"s_lshl_b32 s61, s{sRB}, 3")
        a(f"s_add_u32 s61, s61, s{sGRP}")
        off = F1_OFF
    else:
        a(f"s_lshl_b32 s61, s{sRB}, 1")
        a(f"s_add_u32 s61, s61, s{sTYP}")
        a("s_lshl_b32 s61, s61, 3")
        a(f"s_add_u32 s61, s61, s{sGRP}")
        off = F2_OFF
    a("s_lshl_b32 s61, s61, 7")
    a(f"s_add_u32 s61, s61, {off}")
    a(f"s_cmp_eq_u32 s{sQ}, 0")
    a(f"s_cselect_b32 s61, s61, {OOB}")
    a(f"v_mov_b32 v30, s{sT}")
    a("v_mov_b32 v31, 0")
    a("s_mov_b64 exec, 1")
    a.vmem(f"buffer_store_dword v30, v31, {S4(WS_)}, s61 offen sc1", "flag")
    a("s_mov_b64 exec, -1")

def mfma32(d, a, b, c=None):
    c = V(d, 16) if c is None else c
    return f"v_mfma_f32_32x32x16_bf16 {V(d,16)}, {V(a)}, {V(b)}, {c}"

def b_early(a):
    a("v_and_b32 v3, 15, v1")
    a("v_bfe_u32 v31, v1, 4, 1")
    a("v_lshl_add_u32 v3, v3, 1, v31")
    a("v_lshlrev_b32 v3, 1, v3")
    a(f"s_lshl_b32 s61, s{sRB}, 2")
    a(f"s_add_u32 s61, s61, s{sQ}")
    a("s_lshl_b32 s61, s61, 6")
    a(f"s_cmp_eq_u32 s{sKS}, 0")
    a("s_cselect_b32 s61, s61, 4096")
    a.vmem(f"buffer_load_ushort v0, v3, {S4(BSP_)}, s61 offen", "b")

def b_compute(a, fused):
    ACC = 32
    ring = list(range(80, 144, 4))
    Z1 = 144
    a("v_and_b32 v3, 31, v1")
    a("v_lshrrev_b32 v30, 5, v1")
    a("v_bfe_u32 v31, v1, 1, 3")
    a("v_xor_b32 v31, v30, v31")
    a("v_lshlrev_b32 v3, 7, v3")
    a("v_lshl_add_u32 v10, v31, 4, v3")
    a(f"s_lshl_b32 s61, s{sQ}, 12")
    a("v_add_u32 v10, s61, v10")
    for b4 in range(1, 4): a(f"v_xor_b32 v{10+b4}, {32*b4}, v10")
    for b4 in range(4): a(f"v_add_u32 v{14+b4}, 0x10000, v{10+b4}")
    a("v_lshlrev_b32 v19, 4, v1")
    a(f"v_add_u32 v18, {L_Z2}, v19")
    a("v_and_b32 v3, 15, v1")
    a("v_bfe_u32 v31, v1, 4, 1")
    a("v_lshlrev_b32 v20, 9, v31")
    a("v_lshl_add_u32 v20, v30, 8, v20")
    a("v_lshl_add_u32 v20, v3, 4, v20")
    a(f"s_lshl_b32 s57, s{sRB}, 2")
    a(f"s_add_u32 s57, s57, s{sQ}")
    if not fused: b_early(a)
    a(f"s_mul_i32 s55, s{sCG}, 6")
    a("s_min_u32 s55, s55, 40")
    a("s_sub_u32 s58, 40, s55")
    a("s_min_u32 s58, s58, 6")
    a(f"s_cmp_eq_u32 s{sCG}, 7")
    a("s_cselect_b32 s58, 3, s58")
    a("s_mul_i32 s53, s57, 48")
    a("s_add_u32 s53, s53, s55")
    a("s_lshl_b32 s53, s53, 10")
    a(f"s_mul_i32 s61, s{sKS}, {64*48*1024}")
    a("s_add_u32 s54, s53, s61")
    a(f"s_add_u32 s53, s53, {WS_Z1}")
    a(f"s_add_u32 s54, s54, {WS_H}")
    if not fused: a.vmwait("b")
    a("v_lshlrev_b32 v22, 16, v0")
    for r in range(48): a(f"v_mov_b32 v{ACC+r}, v22")
    def z1_load():
        pass
    def z1_piece(j):
        def f():
            if j == 0 and fused:
                a("v_mov_b32 v23, 0")
                a.vmem(f"buffer_load_dword v23, v23, {S4(DBG_)}, 0 offen sc1", "z1")
            if j == 4: a("s_add_u32 s53, s53, 4096")
            a.vmem(f"buffer_load_dwordx4 {V(Z1+4*j)}, v20, {S4(WS_)}, s53 offen offset:{(j%4)*1024} sc1", "z1")
        return f
    extras = []
    zs = opt('z1step', 11)
    for j in range(6): extras.append((zs, z1_piece(j), lambda done: True, 99))
    def preB(st):
        if fused and st == opt('f2step', 3): a.vmall()
    fr = {}; mf = []
    for i in range(16):
        for b4 in range(4):
            fr[('w', i, b4)] = dict(step=i, reg=None, reads=[lambda r, i=i, b4=b4: f"ds_read_b128 {V(r)}, v{10 + b4 + 4*((i%NWS)//4)} offset:{((i%NWS)%4)*16384}"])
            for c in range(3):
                fr[('z', i, b4, c)] = dict(step=i, reg=None, reads=[lambda r, i=i, b4=b4, c=c: f"ds_read_b128 {V(r)}, v18 offset:{(i%4)*12288 + (b4*3+c)*1024}"])
                mf.append((ACC+16*c, ('z', i, b4, c), ('w', i, b4)))
    a.stamp()
    a("s_barrier")
    gemm_stream(a, mf, fr, ring, opt('LAB', 5), opt('coverB', 2), preB,
                first_zero=False, stamps=(0, 1, 8, 10, 12, 14), pergap=opt('pgB', 2), slack=2, op=mfma32, extras=extras)
    assert not extras
    a.stamp()
    a("s_barrier")
    a.vmwait("z1")
    if fused: a(f"v_readfirstlane_b32 s{sT}, v23")
    for j in range(6):
        x = ACC + 8*j; z = Z1 + 4*j; t = 80 + 8*(j&1)
        for k in range(4):
            a(f"v_lshlrev_b32 v{t+2*k}, 16, v{z+k}")
            a(f"v_and_b32 v{t+2*k+1}, 0xffff0000, v{z+k}")
        for k in range(4): a(f"v_pk_mul_f32 {V(x+2*k,2)}, {V(x+2*k,2)}, {V(t+2*k,2)}")
        for k in range(4): a(f"v_cvt_pk_bf16_f32 v{x+k}, v{x+2*k}, v{x+2*k+1}")
        a(f"s_cmp_gt_u32 s58, {j}")
        a(f"s_cselect_b32 s61, s54, {OOB}")
        if j >= 4: a("s_add_u32 s61, s61, 4096")
        a.vmem(f"buffer_store_dwordx4 {V(x)}, v19, {S4(WS_)}, s61 offen offset:{(j%4)*1024} sc1", "h")
    a.stamp()

def cw_setup_h(a):
    a("v_bfe_u32 v3, v1, 4, 1")
    a("v_lshlrev_b32 v3, 2, v3")
    a("v_and_b32 v30, 7, v1")
    a("v_xor_b32 v30, v30, v3")
    a("v_lshrrev_b32 v3, 3, v1")
    a("v_lshlrev_b32 v3, 10, v3")
    a("v_lshl_add_u32 v26, v30, 4, v3")
    for k in range(1, 4): a(f"v_add_u32 v{26+k}, {k*(8192-1024)}, v26")
    a(f"s_lshl_b32 s47, s{sCG}, 7")
    a(f"s_lshl_b32 s61, s{sQ}, 15")
    a("s_add_u32 s47, s47, s61")

def cw_pieces(a, slot):
    R, row0 = (WO_, slot*128) if slot < 4 else (WOUT_, (slot-4)*128)
    out = []
    for k in range(4):
        def f(k=k):
            if k == 0:
                a(f"s_add_u32 m0, s60, {CSLOT[slot]*16384}")
                a(f"s_add_u32 s46, s47, {row0*1024}")
            a.vmem(f"buffer_load_dwordx4 v{26+k}, {S4(R)}, s46 offen offset:{1024*k} lds", ("CW", slot))
        out.append(f)
    return out

CSLOT = [2, 3, 4, 5, 6, 0, 1, 7, 8, 9]
def b_helper(a, fused):
    if not fused:
        late_srds(a)
        wsp_setup_h(a)
        a(f"s_lshl_b32 s60, s{sQ}, 12")
    cw_setup_h(a)
    a("v_lshlrev_b32 v10, 4, v1")
    a(f"s_lshl_b32 s53, s{sCG}, 1")
    a(f"s_add_u32 s53, s53, s{sKS}")
    a(f"s_mul_i32 s53, s53, {16*12288}")
    a(f"s_mul_i32 s54, s{sQ}, 3072")
    a("s_add_u32 s53, s53, s54")
    a(f"s_add_u32 s53, s53, {WS_Z2N}")
    a(f"s_add_u32 s54, s54, {L_Z2}")
    def z2_group(i):
        a(f"s_add_u32 s61, s{sK0B}, {i}")
        a("s_and_b32 s61, s61, 15")
        a("s_mul_i32 s61, s61, 12288")
        a(f"s_add_u32 m0, s54, {(i % 4)*12288}")
        a("s_add_u32 s61, s61, s53")
        for k in range(3): a.vmem(f"buffer_load_dwordx4 v10, {S4(WS_)}, s61 offen offset:{1024*k} sc1 lds", ("Z", i))
    a.stamp()
    if fused:
        a(f"s_lshl_b32 s62, s{sCG}, 1")
        a(f"s_add_u32 s62, s62, s{sKS}")
        a("s_lshl_b32 s62, s62, 12")
        a(f"s_add_u32 s62, s62, {F1_OFF}")
        a("v_and_b32 v31, 31, v1")
        a("v_lshlrev_b32 v31, 7, v31")
        a(f"v_mov_b32 v30, 0")
        def iss(): a(f"buffer_load_dword v30, v31, {S4(WS_)}, s62 offen sc1")
        def chk():
            a(f"v_cmp_ne_u32 vcc, s{sT}, v30")
            a("s_cmp_eq_u64 vcc, 0")
        spin(a, iss, chk)
        a.vm = []
        a.stamp()
    lq = a.label("Lbq"); lz = a.label("Lbz")
    for i in range(3): z2_group(i)
    a("s_barrier")
    z2_group(3)
    a(f"s_cmp_eq_u32 s{sTYP}, 0")
    a(f"s_cbranch_scc1 {lq}")
    vm0 = list(a.vm)
    for v in range(opt('wpre', 3), NWS): wsp_group_h(a, v)
    a(f"s_branch {lz}")
    a(f"{lq}:")
    a("s_mov_b64 exec, 1")
    for v in range(4*(NWS - opt('wpre', 3))): a(f"buffer_load_dword v30, v31, {S4(DBG_)}, 0 offen")
    a("s_mov_b64 exec, -1")
    a(f"{lz}:")
    for i in range(16):
        a.vmwait(("S", i)); a.vmwait(("Z", i))
        if fused and i == opt('z1step', 11): f2_check(a)
        a("s_barrier")
        if i in (0, 1, 8, 10, 12, 14): a.stamp()
        if fused and i == opt('f2step', 3): flag_store(a, "F2")
        if fused and i == opt('z1step', 11) - 3: f2_issue(a)
        if i >= 1 and i + 3 < 16: z2_group(i + 3)
        if i >= 1 and i - 1 + NWS < 16: wsp_group_h(a, i - 1 + NWS)
        if fused and i >= 10: a.run(cw_pieces(a, i - 10))
    a.stamp()
    a("s_barrier")
    if fused:
        for k in range(6, 10): a.run(cw_pieces(a, k))

def f2_issue(a):
    a(f"s_lshr_b32 s61, s{sRC}, 1")
    a("s_lshl_b32 s61, s61, 4")
    a(f"s_lshl_b32 s62, s{sRB}, 4")
    a(f"s_add_u32 s62, s62, s{sCG}")
    a("s_add_u32 s62, s62, 8")
    a("v_add_u32 v20, s61, v1")
    a("v_mov_b32 v21, s62")
    a("v_cmp_gt_u32 vcc, 8, v1")
    a("s_nop 1")
    a("v_cndmask_b32 v20, v21, v20, vcc")
    a("v_lshlrev_b32 v20, 7, v20")
    a(f"v_add_u32 v20, {F2_OFF}, v20")
    a.vmem(f"buffer_load_dword v21, v20, {S4(WS_)}, 0 offen sc1", "f2")
def f2_check(a):
    a.vmwait("f2")
    def iss(): a(f"buffer_load_dword v21, v20, {S4(WS_)}, 0 offen sc1")
    def chk():
        a(f"v_cmp_ne_u32 vcc, s{sT}, v21")
        a("s_cmp_eq_u64 vcc, 0")
    spin(a, iss, chk)

L_RED = 0
def c_waddr(a, d):
    a("v_lshrrev_b32 v3, 5, v1")
    a("v_bfe_u32 v30, v1, 2, 2")
    a("v_lshl_add_u32 v3, v3, 2, v30")
    a("v_lshlrev_b32 v3, 7, v3")
    a("v_and_b32 v30, 2, v30")
    a("v_bfe_u32 v31, v1, 4, 1")
    a("v_or_b32 v30, v30, v31")
    a("v_lshl_add_u32 v3, v30, 5, v3")
    a("v_and_b32 v30, 3, v1")
    a(f"v_lshl_add_u32 v{d}, v30, 3, v3")
    a(f"v_xor_b32 v{d+1}, 64, v{d}")

def c_stream(a, nblk, fragreg, tagf, areg, blk0, ring, ACC, first_zero, loads=(), off0=0):
    fr = {}; mf = []
    for b in range(nblk):
        fr[('h', b)] = dict(step=0, reg=fragreg(b), reads=None)
        for nn in range(2):
            off = CSLOT[(blk0 + b) // 8] * 16384 + ((blk0 + b) % 8) * 2048 - off0
            fr[('w', b, nn)] = dict(step=0, reg=None, reads=[(lambda r, hh=hh, nn=nn, off=off: f"ds_read_b64_tr_b16 {V(r+2*hh,2)}, v{areg(off >> 16) + nn} offset:{(off & 0xffff) + hh*1024}") for hh in range(2)])
            mf.append((ACC+16*nn, ('w', b, nn), ('h', b)))
    cnt = [0]
    def op(d, x, y, c):
        b = cnt[0] // 2
        if cnt[0] % 2 == 1 and loads: loads.pop(0)()
        cnt[0] += 1
        a.vmwait(tagf(b))
        return mfma32(d, x, y, c)
    gemm_stream(a, mf, fr, ring, opt('LAC', 4), 0, lambda st: None, first_zero=first_zero, pergap=2, slack=2, op=op, skip_first_barrier=True)

def c_final(a):
    a("s_barrier")
    for k in range(2):
        a(f"ds_read_b128 {V(16+8*k)}, v6 offset:{17408*k}")
        a(f"ds_read_b128 {V(20+8*k)}, v6 offset:{17408*k + 16}")
    a.vmwait("x")
    for w in range(4):
        a(f"v_lshlrev_b32 v{32+2*w}, 16, v{8+w}")
        a(f"v_and_b32 v{33+2*w}, 0xffff0000, v{8+w}")
    a("s_waitcnt lgkmcnt(2)")
    for w in range(4): a(f"v_pk_add_f32 {V(32+2*w,2)}, {V(32+2*w,2)}, {V(16+2*w,2)}")
    a("s_waitcnt lgkmcnt(0)")
    for w in range(4): a(f"v_pk_add_f32 {V(32+2*w,2)}, {V(32+2*w,2)}, {V(24+2*w,2)}")
    for w in range(4): a(f"v_cvt_pk_bf16_f32 v{32+w}, v{32+2*w}, v{33+2*w}")
    a.vmem(f"buffer_store_dwordx4 {V(32)}, v7, {S4(OUT_)}, s47 offen {('', 'sc1', 'nt', 'sc0 sc1', 'sc1 nt')[opt('outf', 0)]}", "out")

def c_final_setup(a):
    a("v_lshrrev_b32 v3, 3, v1")
    a(f"s_lshl_b32 s61, s{sW}, 3")
    a("v_add_u32 v3, s61, v3")
    a("v_and_b32 v30, 7, v1")
    a("v_mul_u32_u24 v6, 272, v3")
    a("v_lshl_add_u32 v6, v30, 5, v6")
    a("v_add_u32 v6, 32768, v6")
    a("v_and_b32 v31, 15, v3")
    a("v_lshlrev_b32 v31, 1, v31")
    a("v_bfe_u32 v7, v3, 4, 1")
    a("v_add_u32 v31, v31, v7")
    a("v_and_b32 v7, 32, v3")
    a("v_add_u32 v31, v31, v7")
    a("v_lshlrev_b32 v31, 10, v31")
    a("v_lshl_add_u32 v7, v30, 4, v31")
    a(f"s_lshl_b32 s47, s{sRC}, 9")
    a(f"s_add_u32 s47, s47, s{sCG}")
    a("s_lshl_b32 s47, s47, 7")
    a.vmem(f"buffer_load_dwordx4 {V(8)}, v7, {S4(X_)}, s47 offen", "x")

def c_compute(a, fused):
    ACC, HF = 32, 80
    ring = list(range(64, 80, 4)) + [12, 16, 20]
    a("s_barrier")
    if not fused: late_srds(a)
    a(f"s_and_b32 s53, s{sQ}, 1")
    a(f"s_lshr_b32 s54, s{sQ}, 1")
    c_waddr(a, 4)
    a("v_add_u32 v252, 0x10000, v4\nv_add_u32 v253, 0x10000, v5")
    a("v_add_u32 v254, 0x20000, v4\nv_add_u32 v255, 0x20000, v5")
    a("v_mov_b32 v26, v4\nv_mov_b32 v27, v5")
    a(f"s_lshl_b32 s55, s{sRC}, 1")
    a("s_add_u32 s55, s55, s53")
    a("s_lshl_b32 s56, s54, 6")
    a("s_add_u32 s56, s56, s55")
    a("s_mul_i32 s56, s56, 49152")
    a(f"s_add_u32 s56, s56, {WS_H}")
    a("v_lshlrev_b32 v28, 4, v1")
    a(f"s_lshl_b32 s61, s{sQ}, 13")
    a("s_add_u32 s61, s61, 32768")
    a("v_add_u32 v29, s61, v28")
    if fused:
        a.vmall()
        a("s_lshl_b32 s61, s57, 1")
        a(f"s_add_u32 s61, s61, s{sKS}")
        a("s_lshl_b32 s61, s61, 3")
        a(f"s_add_u32 s61, s61, s{sCG}")
        a("s_lshl_b32 s61, s61, 7")
        a(f"s_add_u32 s61, s61, {F3_OFF}")
        a(f"v_mov_b32 v30, s{sT}")
        a("v_mov_b32 v31, 0")
        a("s_mov_b64 exec, 1")
        a.vmem(f"buffer_store_dword v30, v31, {S4(WS_)}, s61 offen sc1", "flag")
        a("s_mov_b64 exec, -1")
        a.stamp()
    c_final_setup(a)
    a("v_and_b32 v3, 31, v1")
    a("v_mul_u32_u24 v3, 272, v3")
    a("v_lshrrev_b32 v30, 5, v1")
    a("v_lshl_add_u32 v3, v30, 4, v3")
    a("s_mul_i32 s61, s54, 17408")
    a(f"s_mul_i32 s62, s53, {32*272}")
    a("s_add_u32 s61, s61, s62")
    a("s_add_u32 s61, s61, 32768")
    a("v_add_u32 v4, s61, v3")
    a("s_barrier")
    a("s_barrier")
    for k in range(8): a(f"ds_read_b128 {V(ACC+4*k)}, v29 offset:{1024*k}")
    if fused:
        a("s_lshl_b32 s62, s55, 1")
        a("s_add_u32 s62, s62, s54")
        a("s_lshl_b32 s62, s62, 10")
        a(f"s_add_u32 s62, s62, {F3_OFF}")
        a("v_and_b32 v31, 7, v1")
        a("v_lshlrev_b32 v31, 7, v31")
        a("v_mov_b32 v30, 0")
    a("s_waitcnt lgkmcnt(0)")
    a("s_barrier")
    if fused:
        def iss(): a(f"buffer_load_dword v30, v31, {S4(WS_)}, s62 offen sc1")
        def chk():
            a(f"v_cmp_ne_u32 vcc, s{sT}, v30")
            a("s_cmp_eq_u64 vcc, 0")
        spin(a, iss, chk)
        a.vm = []
    a.stamp()
    def hload(b):
        if b and b % 4 == 0: a("s_add_u32 s56, s56, 4096")
        a.vmem(f"buffer_load_dwordx4 {V(HF+4*b)}, v28, {S4(WS_)}, s56 offen offset:{(b%4)*1024} sc1", ("H", b))
    PH = opt('PH', 14)
    for b in range(PH): hload(b)
    c_stream(a, 43, lambda b: HF+4*b, lambda b: ("H", b), lambda k: (26, 252, 254)[k], 32, ring, ACC, False, [(lambda b=b: hload(b)) for b in range(PH, 43)])
    a.stamp()
    a("s_nop 15")
    for nn in range(2):
        for jj in range(4): a(f"ds_write_b128 v4, {V(ACC+16*nn+4*jj)} offset:{128*nn + 32*jj}")
    a("s_waitcnt lgkmcnt(0)")
    c_final(a)

def c_helper(a, fused):
    ACC, OF = 32, 80
    ring = list(range(64, 80, 4)) + [144, 148, 152, 156]
    if not fused:
        late_srds(a)
        a(f"s_lshl_b32 s60, s{sQ}, 12")
        cw_setup_h(a)
    a(f"s_and_b32 s53, s{sQ}, 1")
    a(f"s_lshr_b32 s54, s{sQ}, 1")
    a(f"s_lshl_b32 s55, s{sRC}, 1")
    a("s_add_u32 s55, s55, s53")
    a("s_lshl_b32 s55, s55, 1")
    a("s_add_u32 s55, s55, s54")
    a("s_lshl_b32 s55, s55, 14")
    a(f"s_add_u32 s55, s55, {WS_O}")
    a("v_lshlrev_b32 v12, 4, v1")
    for b in range(16):
        if b and b % 4 == 0: a("s_add_u32 s55, s55, 4096")
        a.vmem(f"buffer_load_dwordx4 {V(OF+4*b)}, v12, {S4(WS_)}, s55 offen offset:{(b%4)*1024} sc1", ("O", b))
    if not fused:
        for sl in range(10): a.run(cw_pieces(a, sl))
    c_final_setup(a)
    c_waddr(a, 4)
    a("s_lshl_b32 s61, s54, 15")
    a("s_add_u32 s61, s61, 32768")
    a("v_add_u32 v4, s61, v4\nv_add_u32 v5, s61, v5")
    a(f"s_lshl_b32 s61, s{sQ}, 13")
    a("s_add_u32 s61, s61, 32768")
    a("v_add_u32 v13, s61, v12")
    a.vmwait(("CW", 3))
    a("s_barrier")
    a.stamp()
    c_stream(a, 16, lambda b: OF+4*b, lambda b: ("O", b), lambda k: 4, 0, ring, ACC, True, off0=32768)
    a.stamp()
    a("s_barrier")
    a("s_nop 15")
    for k in range(8): a(f"ds_write_b128 v13, {V(ACC+4*k)} offset:{1024*k}")
    a.vmwait(("CW", 9))
    a("s_waitcnt lgkmcnt(0)")
    a("s_barrier")
    a("s_barrier")
    c_final(a)

def diag_out(a, base):
    if opt('padto', 0):
        l = a.label("Lpad")
        a(f"{l}:")
        a("s_sleep 1")
        a("s_memrealtime s[86:87]")
        a("s_waitcnt lgkmcnt(0)")
        a(f"s_sub_u32 s86, s86, s{sT if opt('padT', 0) else 84}")
        a(f"s_cmp_lt_u32 s86, {opt('padto', 0)}")
        a(f"s_cbranch_scc1 {l}")
    if opt('skew', 0):
        a(f"s_sub_u32 s61, s84, s{sT}")
        a("s_add_u32 s61, s61, 100000")
        a("v_mov_b32 v4, s61")
        a("v_mov_b32 v5, 8")
        a("s_mov_b64 exec, 1")
        a(f"buffer_atomic_umax v4, v5, {S4(DBG_)}, 0 offen")
        a("s_sub_u32 s61, 200000, s61")
        a("v_mov_b32 v4, s61")
        a(f"buffer_atomic_umax v4, v5, {S4(DBG_)}, 0 offen offset:4")
        a("s_mov_b64 exec, -1")
    if not a.diag: return
    a("v_writelane_b32 v2, s84, 62")
    a("s_memrealtime s[86:87]")
    a("s_waitcnt lgkmcnt(0)")
    a("v_writelane_b32 v2, s86, 63")
    a("s_lshl_b32 s61, s2, 3")
    a(f"s_add_u32 s61, s61, s{sW}")
    a("s_lshl_b32 s61, s61, 8")
    a(f"s_add_u32 s61, s61, {base}")
    a("v_lshlrev_b32 v3, 2, v1")
    a(f"buffer_store_dword v2, v3, {S4(WS_)}, s61 offen")
    if opt('hdbg', -1) >= 0:
        l = a.label("Lhd")
        a(f"s_cmp_lg_u32 s2, {opt('hdbg', 0)}")
        a(f"s_cbranch_scc1 {l}")
        a(f"s_cmp_lg_u32 s{sW}, 0")
        a(f"s_cbranch_scc1 {l}")
        a("s_sub_u32 s86, s86, s84")
        a("v_mov_b32 v4, 0")
        a("v_writelane_b32 v4, s86, 1")
        for k, src in enumerate((0, 1, 3, 4, 5, 6, 7, 10, 11, 17, 18, 19, 20, 22)):
            a(f"v_readlane_b32 s61, v2, {src}")
            a("s_nop 3")
            a(f"v_writelane_b32 v4, s61, {2+k}")
        a("s_mov_b64 exec, 0xfffe")
        a(f"buffer_store_dword v4, v3, {S4(DBG_)}, 0 offen")
        a(f"{l}:")

def simple_kernel(name, diag, idx, comp, helper):
    a = G(diag)
    prologue(a, f"L{name}_end")
    a(f"s_cmp_ge_u32 s{sW}, 4")
    a(f"s_cbranch_scc1 L{name}_h")
    for k, fn in enumerate((comp, helper)):
        if k: a(f"L{name}_h:")
        a.vm = []; a.nst = 0
        fn(a)
        a.vmall(); a.stamp()
        diag_out(a, WS_DBG + idx*0x80000)
        a("s_endpgm")
    a(f"L{name}_end:")
    a("s_endpgm")
    return a.text()

def by_type(fq, fz, lab):
    def f(a):
        a(f"s_cmp_lg_u32 s{sTYP}, 0")
        a(f"s_cbranch_scc1 {lab}_z")
        fq(a, False)
        a.vmall()
        a(f"s_branch {lab}_e")
        n = a.nst
        a(f"{lab}_z:")
        a.vm = []; a.nst = 0
        fz(a, False)
        a(f"{lab}_e:")
        a.nst = max(a.nst, n)
    return f

def multi(diag):
    ka = simple_kernel("A", diag, 0, by_type(aq_compute, az_compute, "LAc"), by_type(aq_helper, az_helper, "LAh"))
    def bc(a): late_srds(a); b_compute(a, False)
    kb = simple_kernel("B", diag, 1, bc, lambda a: b_helper(a, False))
    kc = simple_kernel("C", diag, 2, lambda a: c_compute(a, False), lambda a: c_helper(a, False))
    return [("a_kernel", ka), ("b_kernel", kb), ("c_kernel", kc)]

def fused_kernel(diag):
    a = G(diag)
    prologue(a, "LF_end")
    a(f"s_cmp_ge_u32 s{sW}, 4")
    a("s_cbranch_scc1 LF_h")
    if opt('cpf', 1):
        a("s_getpc_b64 s[62:63]")
        a("LF_pc:")
        a("s_lshr_b32 s61, s2, 3")
        a("s_lshl_b32 s61, s61, 2")
        a(f"s_add_u32 s61, s61, s{sQ}")
        a("s_lshl_b32 s61, s61, 3")
        a("v_add_u32 v3, s61, v1")
        a("v_lshlrev_b32 v3, 7, v3")
        a("v_min_u32 v3, LF_end - LF_pc, v3")
        a(f"s_mov_b32 m0, {L_MISC}")
        a("s_mov_b64 exec, 0xff")
        a("global_load_lds_dword v3, s[62:63]")
        a("s_mov_b64 exec, -1")
    late_srds(a)
    b_early(a)
    a(f"s_cmp_lg_u32 s{sTYP}, 0")
    a("s_cbranch_scc1 LF_cz")
    aq_compute(a, True)
    n = a.nst
    a("s_branch LF_cb")
    a("LF_cz:")
    a.vm = []; a.nst = 0
    az_compute(a, True)
    a("LF_cb:")
    a.vm = []; a.nst = 10
    b_compute(a, True)
    c_compute(a, True)
    a.vmall(); a.stamp()
    diag_out(a, WS_DBG)
    a("s_endpgm")
    a("LF_h:")
    a.vm = []; a.nst = 0
    a(f"s_cmp_lg_u32 s{sTYP}, 0")
    a("s_cbranch_scc1 LF_hz")
    aq_helper(a, True)
    nonce_check(a)
    a("s_branch LF_hb")
    a("LF_hz:")
    a.vm = []; a.nst = 0
    az_helper(a, True)
    a("LF_hb:")
    a.vm = []; a.nst = 10
    b_helper(a, True)
    c_helper(a, True)
    a.vmall(); a.stamp()
    diag_out(a, WS_DBG)
    a("LF_end:")
    a("s_endpgm")
    return [(KNAME, a.text())]

if __name__ == "__main__":
    diag = "diag" in sys.argv
    for x in sys.argv[2:]:
        if "=" in x:
            k, v = x.split("="); OPT[k] = int(v)
    ks = multi(diag) if 'multi' in sys.argv else fused_kernel(diag)
    hdr = open("cdna_kernels/" + KNAME[:-7] + ".s.ref").read().split("; Override")[0]
    txt = file_text([(n, 256, 512, LDS_BYTES) for n, t in ks], [(n, t, 256, 102, 256) for n, t in ks])
    if len(ks) == 1: txt = txt.replace(f"; @launch kernel={KNAME} ", "; @launch ")
    txt = "\n".join(l.strip() if l.startswith("    ") else l for l in txt.split("\n"))
    open(sys.argv[1], "w").write(hdr + txt)
```

```python
import sys, math, struct
from asmgen import Asm, KA, KNAME, file_text
from layout import *

OOB = 0x10000000
LOG2E = 1.4426950408889634
def f2u(x): return struct.unpack("<I", struct.pack("<f", x))[0]
C1 = 2.0 * math.sqrt(2.0 / math.pi) * LOG2E
C2 = C1 * 0.044715
NEG = f2u(-1e30)
OPT = {}
F1_OFF, F2_OFF, F3_OFF = WS_FLG, WS_FLG + 512*128, WS_FLG + 768*128
def opt(k, d): return OPT.get(k, d)

sW, sQ, sRB, sGRP = 3, 4, 6, 7
X_, WA_, WS_, WSP_, WO_, WOUT_, OUT_, BSP_, DBG_ = 8, 12, 16, 20, 24, 28, 32, 36, 40
sK0A, sTYP = 44, 45
sKS, sCG, sK0B, sT = 48, 50, 51, 52
sRC = 49
def S4(b): return f"s[{b}:{b+3}]"
def V(b, n=4): return f"v[{b}:{b+n-1}]" if n > 1 else f"v{b}"

L_TAB = 156*1024
TP = 640
L_CW  = L_TAB + 2560
L_MISC = L_TAB + 3328
L_XCH = 148*1024
L_PARK = 112*1024
L_Z2 = 112*1024
NWS = 7
L_RC = L_TAB + 3584
LDS_BYTES = 160*1024

class G(Asm):
    UID = [0]
    def label(self, base="L"):
        G.UID[0] += 1
        return f"{base}_{G.UID[0]}"
    def __init__(self, diag=False):
        super().__init__()
        self.vm = []; self.diag = diag; self.nst = 0
    def vmem(self, s, tag=None):
        self(s); self.vm.append(tag)
    def has(self, tag): return any(t == tag for t in self.vm)
    def vmwait(self, tag):
        if not self.has(tag): return
        idx = max(i for i, t in enumerate(self.vm) if t == tag)
        n = len(self.vm) - 1 - idx
        assert n <= 63, n
        self(f"s_waitcnt vmcnt({n})")
        self.vm = self.vm[idx+1:]
    def vmall(self):
        self("s_waitcnt vmcnt(0)"); self.vm = []
    def stamp(self):
        if not self.diag: return
        self("s_memtime s[82:83]")
        self("s_waitcnt lgkmcnt(0)")
        self("s_sub_u32 s82, s82, s80")
        self(f"v_writelane_b32 v2, s82, {self.nst}")
        self.nst += 1
    def run(self, fs):
        for f in fs: f() if callable(f) else self(f)

def mfma(d, a, b, c=None):
    c = V(d) if c is None else c
    return f"v_mfma_f32_16x16x32_bf16 {V(d)}, {V(a)}, {V(b)}, {c}"
def mfma16(d, a, b, c=None):
    c = V(d) if c is None else c
    return f"v_mfma_f32_16x16x16_bf16 {V(d)}, {V(a,2)}, {V(b,2)}, {c}"

def gemm_stream(a, mf, frags, ring, LA, cover, pre_barrier, hooks=None, first_zero=True, stamps=(), nobar=0, pergap=1, slack=4, op=None, skip_first_barrier=False, extras=None):
    hooks = hooks or {}
    extra_max = opt('xmax', 1)
    first, last = {}, {}
    for i, (d, x, y) in enumerate(mf):
        for f in (x, y):
            first.setdefault(f, i); last[f] = i
    order = sorted([f for f in first if frags[f].get('reads')], key=lambda f: (frags[f]['step'], first[f]))
    rl = [(f, k) for f in order for k in range(len(frags[f]['reads']))]
    reg = {f: frags[f]['reg'] for f in first if frags[f].get('reg') is not None}
    owner = {r: None for r in ring}
    ptr = 0; cur = (0 if skip_first_barrier else -1); out = []; done = set(f for f in first if not frags[f].get('reads'))
    since = 10**9
    seen = set()
    def issue_one(i, force):
        nonlocal ptr, cur, since, out
        f, k = rl[ptr]
        st = frags[f]['step']
        if st > cur:
            if not force and since < cover: return False
            pre_barrier(st)
            if not (nobar and st > 0):
                if out:
                    a("s_waitcnt lgkmcnt(0)")
                    for g_, _ in out: done.add(g_)
                    out = []
                a("s_barrier")
            cur = st
            if st in stamps: a.stamp()
            if st in hooks: hooks[st]()
        if k == 0 and f not in reg:
            free = [r for r in ring if owner[r] is None or last[owner[r]] < i]
            if not free:
                assert not force, "ring too small"
                return False
            r = min(free, key=lambda r: -1 if owner[r] is None else last[owner[r]])
            reg[f] = r; owner[r] = f
        if len(out) >= 14 and not force: return False
        a(frags[f]['reads'][k](reg[f]))
        out.append((f, k)); ptr += 1; since = 0
        return True
    for i, (d, x, y) in enumerate(mf):
        need = [f for f in (x, y) if f not in done]
        while ptr < len(rl) and any(rl[j][0] in need for j in range(ptr, len(rl)) if first[rl[j][0]] <= i):
            issue_one(i, True)
        n = 0
        while ptr < len(rl) and first[rl[ptr][0]] <= i + LA:
            lim = 12 if i == 0 else (pergap + 1 if first[rl[ptr][0]] <= i + LA - slack else pergap)
            if n >= lim: break
            if not issue_one(i, False): break
            n += 1
        if extras and n <= extra_max and extras[0][0] <= cur and extras[0][2](done):
            extras.pop(0)[1]()
        need = [f for f in (x, y) if f not in done]
        if need:
            idx = max(j for j, (f, k) in enumerate(out) if f in need)
            a(f"s_waitcnt lgkmcnt({len(out) - 1 - idx})")
            for f, k in out[:idx+1]:
                if k == len(frags[f]['reads']) - 1: done.add(f)
            out = out[idx+1:]
        c = None
        if first_zero and d not in seen:
            c = "0"; seen.add(d)
        a((op or mfma)(d, reg[x], reg[y], c))
        since += 1
    assert ptr == len(rl)

def srd(a, d, p, nbytes):
    a(f"s_mov_b32 s{d}, s{p}")
    a(f"s_and_b32 s{d+1}, s{p+1}, 0xffff")
    a(f"s_mov_b32 s{d+2}, {nbytes:#x}")
    a(f"s_mov_b32 s{d+3}, 0x20000")

def prologue(a, endlabel):
    if a.diag:
        a("s_memtime s[80:81]")
    a("s_memrealtime s[84:85]")
    a("s_cmp_ge_u32 s2, 256")
    a(f"s_cbranch_scc1 {endlabel}")
    a("s_load_dwordx16 s[64:79], s[0:1], 0")
    a("s_load_dwordx4 s[88:91], s[0:1], 64")
    a("s_load_dwordx2 s[92:93], s[0:1], 80")
    a("v_lshrrev_b32 v3, 6, v0")
    a("v_and_b32 v1, 63, v0")
    a("v_mov_b32 v2, 0")
    a(f"v_readfirstlane_b32 s{sW}, v3")
    a("s_and_b32 s53, s2, 7")
    a("s_lshr_b32 s54, s2, 3")
    a("s_lshr_b32 s55, s53, 1")
    a("s_and_b32 s56, s54, 3")
    a(f"s_lshr_b32 s{sCG}, s54, 2")
    a(f"s_lshl_b32 s{sRB}, s55, 2")
    a(f"s_add_u32 s{sRB}, s{sRB}, s56")
    a(f"s_and_b32 s{sKS}, s53, 1")
    a(f"s_lshl_b32 s{sRC}, s53, 2")
    a(f"s_add_u32 s{sRC}, s{sRC}, s56")
    a(f"s_lshl_b32 s{sGRP}, s{sKS}, 2")
    a(f"s_and_b32 s58, s{sCG}, 3")
    a(f"s_add_u32 s{sGRP}, s{sGRP}, s58")
    a(f"s_lshr_b32 s{sTYP}, s{sCG}, 2")
    if opt('rotAm', 1) == 0:
        a(f"s_lshl_b32 s{sK0A}, s56, 1")
        a(f"s_add_u32 s{sK0A}, s{sK0A}, s{sCG}")
        a(f"s_add_u32 s{sK0A}, s{sK0A}, s55")
    else:
        a(f"s_lshl_b32 s{sK0A}, s{sKS}, 1")
        a(f"s_add_u32 s{sK0A}, s{sK0A}, s55")
        a(f"s_lshl_b32 s{sK0A}, s{sK0A}, 1")
        if opt('rotAm', 1) == 2:
            a("s_and_b32 s58, s56, 1")
            a(f"s_add_u32 s{sK0A}, s{sK0A}, s58")
    a(f"s_and_b32 s{sK0A}, s{sK0A}, {opt('rotA', 7)}")
    a(f"s_lshl_b32 s{sK0B}, s{sCG}, 1")
    a(f"s_add_u32 s{sK0B}, s{sK0B}, s{sRB}")
    a(f"s_and_b32 s{sK0B}, s{sK0B}, {opt('rotB', 15)}")
    a(f"s_and_b32 s{sQ}, s{sW}, 3")
    a("s_waitcnt lgkmcnt(0)")
    srd(a, X_, 64, S*D*2)
    srd(a, WS_, 92, 268435456)
    srd(a, DBG_, 90, 256)

def late_srds(a):
    srd(a, WSP_, 74, S*S*2)
    srd(a, WO_, 68, D*D*2)
    srd(a, WOUT_, 78, FH*D*2)
    srd(a, OUT_, 88, S*D*2)
    srd(a, BSP_, 76, S*2)

def rowtile_voffs(a, d0, d1, sh, t0=3, t1=30, t2=31):
    a(f"v_lshrrev_b32 v{t0}, 3, v1")
    a(f"v_lshlrev_b32 v{t0}, {sh+1}, v{t0}")
    a(f"v_lshrrev_b32 v{t1}, 4, v1")
    a(f"v_and_b32 v{t2}, 7, v1")
    a(f"v_xor_b32 v{t1}, v{t1}, v{t2}")
    a(f"v_lshl_add_u32 v{d0}, v{t1}, 4, v{t0}")
    a(f"v_xor_b32 v{t1}, 4, v{t1}")
    a(f"v_lshl_add_u32 v{d1}, v{t1}, 4, v{t0}")
    a(f"v_add_u32 v{d1}, {(16 << sh) - 1024}, v{d1}")

def rowfrag_addr(a, d0, d1, srow, t0=3, t1=30, t2=31):
    a(f"v_and_b32 v{t0}, 15, v1")
    a(f"v_lshrrev_b32 v{t1}, 4, v1")
    a(f"v_lshrrev_b32 v{t2}, 1, v{t0}")
    a(f"v_xor_b32 v{t1}, v{t1}, v{t2}")
    a(f"v_lshlrev_b32 v{t0}, 7, v{t0}")
    a(f"v_add_u32 v{t0}, {srow}, v{t0}")
    a(f"v_lshl_add_u32 v{d0}, v{t1}, 4, v{t0}")
    a(f"v_xor_b32 v{t1}, 4, v{t1}")
    a(f"v_lshl_add_u32 v{d1}, v{t1}, 4, v{t0}")

def zw_addr(a, de, do, t0=3, t1=30, t2=31):
    a(f"v_lshrrev_b32 v{t0}, 4, v1")
    a(f"v_bfe_u32 v{t1}, v1, 2, 2")
    a(f"v_lshl_add_u32 v{t1}, v{t0}, 3, v{t1}")
    a(f"v_mul_u32_u24 v{t1}, 192, v{t1}")
    a(f"v_and_b32 v{t2}, 3, v1")
    a(f"v_lshl_add_u32 v{t1}, v{t2}, 3, v{t1}")
    a(f"v_and_b32 v{t0}, 1, v{t0}")
    a(f"v_lshlrev_b32 v{t0}, 5, v{t0}")
    a(f"v_add_u32 v{de}, v{t1}, v{t0}")
    a(f"v_sub_u32 v{do}, v{t1}, v{t0}")

def qw_addr(a, d, t0=3, t1=30, t2=31):
    a(f"v_lshrrev_b32 v{t0}, 4, v1")
    a(f"v_mul_u32_u24 v{t1}, 3072, v{t0}")
    a(f"v_bfe_u32 v{t2}, v1, 2, 2")
    a(f"v_lshl_add_u32 v{t1}, v{t2}, 7, v{t1}")
    a(f"v_and_b32 v{d}, 3, v1")
    a(f"v_lshl_add_u32 v{t1}, v{d}, 3, v{t1}")
    a(f"v_lshrrev_b32 v{t2}, 1, v{t2}")
    a(f"v_and_b32 v{t0}, 1, v{t0}")
    a(f"v_lshl_or_b32 v{t2}, v{t0}, 1, v{t2}")
    a(f"v_lshl_add_u32 v{d}, v{t2}, 5, v{t1}")

ZSLOT = [56*1024, 84*1024, 112*1024, 0, 28*1024]
W1SL = [0, 12288, 28672, 40960, 57344, 69632, 86016, 98304]
QSLOT = [86016, 43008, 0]

def gelu_core(a, xs, ts, A3, A1, RI):
    for k, (x, t) in enumerate(zip(xs, ts)): a(f"v_pk_mul_f32 {V(t,2)}, {V(x,2)}, {V(x,2)}")
    for k, (x, t) in enumerate(zip(xs, ts)): a(f"v_pk_fma_f32 {V(t,2)}, {V(t,2)}, {A3[k][0]}, {A1[k][0]} {A3[k][1]}")
    for k, (x, t) in enumerate(zip(xs, ts)): a(f"v_pk_mul_f32 {V(t,2)}, {V(t,2)}, {V(x,2)}")
    for k, (x, t) in enumerate(zip(xs, ts)):
        a(f"v_exp_f32 v{t}, v{t}"); a(f"v_exp_f32 v{t+1}, v{t+1}")
    for k, (x, t) in enumerate(zip(xs, ts)): a(f"v_pk_fma_f32 {V(t,2)}, {V(t,2)}, {RI[k][0]}, {RI[k][0]} {RI[k][1]}")
    for k, (x, t) in enumerate(zip(xs, ts)):
        a(f"v_rcp_f32 v{t}, v{t}"); a(f"v_rcp_f32 v{t+1}, v{t+1}")
    for k, (x, t) in enumerate(zip(xs, ts)): a(f"v_pk_mul_f32 {V(x,2)}, {V(x,2)}, {V(t,2)}")

def zcount(a, dG, dN):
    a(f"s_mul_i32 s{dG}, s{sGRP}, 6")
    a(f"s_min_u32 s{dG}, s{dG}, 40")
    a(f"s_sub_u32 s{dN}, 40, s{dG}")
    a(f"s_min_u32 s{dN}, s{dN}, 6")
    a(f"s_cmp_eq_u32 s{sGRP}, 7")
    a(f"s_cselect_b32 s{dN}, 3, s{dN}")

def az_compute(a, fused):
    ACC, XR = 32, 128
    ONES, SUM, GRM, CWA = 28, 80, 88, 96
    ring = list(range(104, 128, 4))
    a(f"s_lshl_b32 s61, s{sQ}, 12")
    rowfrag_addr(a, 10, 11, "s61")
    zw_addr(a, 12, 13)
    a(f"s_bitcmp1_b32 s{sQ}, 0")
    a("s_cselect_b64 vcc, -1, 0")
    a("v_cndmask_b32 v18, v12, v13, vcc")
    a(f"s_lshl_b32 s61, s{sQ}, 5")
    a(f"s_and_b32 s62, s{sQ}, 1")
    a("s_lshl_b32 s62, s62, 5")
    a("s_add_u32 s62, s62, 128")
    a("v_add_u32 v19, s62, v18")
    a("v_add_u32 v18, s61, v18")
    for r in range(4): a(f"v_mov_b32 v{ONES+r}, 0x3f803f80")
    zcount(a, 55, 58)
    a(f"s_lshl_b32 s61, s{sQ}, 7")
    a(f"s_add_u32 s61, s61, {L_TAB}")
    a("v_and_b32 v3, 0x30, v1")
    a("v_add_u32 v4, s61, v3")
    a(f"v_add_u32 v7, {L_CW + 384}, v3")
    a("v_and_b32 v3, 15, v1")
    a("v_lshl_add_u32 v5, v3, 2, s61")
    a("v_lshlrev_b32 v3, 2, v3")
    a(f"v_add_u32 v6, {L_CW}, v3")
    a("v_lshlrev_b32 v8, 4, v1")
    a("v_lshlrev_b32 v9, 3, v1")
    a(f"s_lshl_b32 s61, s{sQ}, 6")
    a(f"s_and_b32 s62, s{sQ}, 1")
    a("s_lshl_b32 s62, s62, 6")
    a("s_add_u32 s62, s62, 256")
    a("v_add_u32 v22, s61, v6")
    a("v_add_u32 v23, s62, v6")
    a("v_add_u32 v24, s61, v7")
    a("v_add_u32 v25, s62, v7")
    a(f"s_lshl_b32 s57, s{sRB}, 2")
    a(f"s_add_u32 s57, s57, s{sQ}")
    a(f"s_lshl_b32 s53, s{sGRP}, 6")
    a("s_add_u32 s53, s53, s57")
    a("s_mul_i32 s53, s53, 6144")
    a(f"s_add_u32 s53, s53, {WS_Z2N}")
    a("s_mul_i32 s54, s57, 48")
    a("s_add_u32 s54, s54, s55")
    a("s_lshl_b32 s54, s54, 10")
    a(f"s_add_u32 s54, s54, {WS_Z1}")
    a(f"s_lshl_b32 s56, s{sRB}, 3")
    a(f"s_add_u32 s56, s56, s{sGRP}")
    a("s_lshl_b32 s56, s56, 2")
    a(f"s_add_u32 s56, s56, s{sQ}")
    a("s_lshl_b32 s56, s56, 9")
    a(f"s_add_u32 s56, s56, {WS_ST2}")
    def xreg(s, kk, T): return XR + ((s*2 + kk)*2 + T)*4
    def wfrag(step, kk, j):
        return dict(step=step, reg=None, reads=[(lambda r, hh=hh: f"ds_read_b64_tr_b16 {V(r+2*hh,2)}, v{16+(j&1)} offset:{j*32 + kk*6144 + hh*768}") for hh in range(2)])
    def cfrag(step, kk, t):
        return dict(step=step, reg=None, reads=[(lambda r, hh=hh: f"ds_read_b64_tr_b16 {V(r+2*hh,2)}, v{20+t} offset:{kk*6144 + hh*768}") for hh in range(2)])
    fr = {}; mf = []
    for s in range(8):
        for kk in range(2):
            for T in range(2):
                fr[('x', s, kk, T)] = dict(step=s, reg=xreg(s, kk, T), reads=[lambda r, kk=kk, T=T: f"ds_read_b128 {V(r)}, v{14+kk} offset:{T*2048}"])
            for j in range(6):
                fr[('w', s, kk, j)] = wfrag(s, kk, j)
                for T in range(2): mf.append((ACC + (j*2+T)*4, ('x', s, kk, T), ('w', s, kk, j)))
                if j in (1, 3):
                    T = j >> 1
                    mf.append((SUM+4*T, 'ones', ('x', s, kk, T)))
                    mf.append((GRM+4*T, ('x', s, kk, T), ('x', s, kk, T)))
                if j in (2, 5):
                    t = j // 3
                    fr[('c', s, kk, t)] = cfrag(s, kk, t)
                    mf.append((CWA+4*t, 'ones', ('c', s, kk, t)))
    fr['ones'] = dict(step=0, reg=ONES, reads=None)
    def pre1(s):
        for r in range(2): a(f"v_add_u32 v{14+r}, {ZSLOT[s % 5]}, v{10+r}")
        for r in range(2): a(f"v_add_u32 v{16+r}, {ZSLOT[s % 5] + 16384}, v{12+r}")
        for r in range(2): a(f"v_add_u32 v{20+r}, {ZSLOT[s % 5] + 16384}, v{18+r}")
    l2_setup(a, 26)
    for r in range(2, 4): a(f"v_mov_b32 v{ONES+r}, 0x3f803f80")
    a.stamp()
    gemm_stream(a, mf, fr, ring, opt('LA', 10), opt('cover', 3), pre1, stamps=(0, 1, 4), hooks=l2_hooks(a, 26))
    a.stamp()
    for T in range(2): diag_sel(a, 104+T, GRM+4*T)
    for T in range(2): row_finalize(a, SUM+4*T, 104+T, 0)
    a(f"ds_write_b32 v22, v{CWA}")
    a(f"ds_write_b32 v23, v{CWA+4}")
    for T in range(2): a(f"v_rsq_f32 v{106+T}, v{104+T}")
    for T in range(2): a(f"v_sqrt_f32 v{104+T}, v{104+T}")
    for T in range(2): a(f"v_mul_f32 v{108+T}, v{106+T}, v{106+T}")
    for T in range(2): a(f"v_mul_f32 v{108+T}, v{108+T}, v{106+T}")
    for T in range(2): a(f"v_mul_f32 v{108+T}, {f2u(-C2):#x}, v{108+T}")
    for T in range(2): a(f"v_mul_f32 v{106+T}, {f2u(-C1):#x}, v{106+T}")
    a(f"s_mov_b32 exec_lo, {DIAG_LO:#x}\ns_mov_b32 exec_hi, {DIAG_HI:#x}")
    for T in range(2):
        for k, r in enumerate((SUM+4*T, 108+T, 106+T, 104+T)): a(f"ds_write_b32 v5, v{r} offset:{64*T + TP*k}")
    a("s_mov_b64 exec, -1")
    for r in range(112, 128): a(f"v_mov_b32 v{r}, 0")
    a("s_waitcnt lgkmcnt(0)")
    for T in range(2):
        for k in range(4): a(f"ds_read_b128 {V(80+16*T+4*k)}, v4 offset:{64*T + TP*k}")
    a("s_barrier")
    CWR = [10, 11, 14, 15, 16, 17]
    for j in range(6): a(f"ds_read_b32 v{CWR[j]}, v6 offset:{64*j}")
    a(f"v_mov_b32 v3, {L_MISC + 256}")
    a("ds_read_b32 v31, v3")
    a(f"s_mul_i32 s61, s{sQ}, 6144")
    a(f"s_add_u32 s61, s61, {L_PARK}")
    a("v_add_u32 v30, s61, v8")
    a("s_waitcnt lgkmcnt(0)")
    for j in range(6):
        skip = a.label("Lz2skip")
        a(f"s_cmp_gt_u32 s58, {j}")
        a(f"s_cbranch_scc0 {skip}")
        xs = [ACC + (j*2+T)*4 + 2*p for T in range(2) for p in range(2)]
        tb = [80 + 16*T + 2*p for T in range(2) for p in range(2)]
        sel = f"op_sel:[0,{j&1},0] op_sel_hi:[1,{j&1},1]"
        for x, t in zip(xs, tb): a(f"v_pk_fma_f32 {V(x,2)}, {V(t,2)}, {V(CWR[j&~1],2)}, {V(x,2)} {sel} neg_lo:[1,0,0] neg_hi:[1,0,0]")
        gelu_core(a, xs, [20, 22, 26, 28], [(V(t+4,2), "") for t in tb], [(V(t+8,2), "") for t in tb], [(V(t+12,2), "") for t in tb])
        for k, x in enumerate(xs): a(f"v_pk_add_f32 {V(112+2*k,2)}, {V(112+2*k,2)}, {V(x,2)}")
        for k, x in enumerate(xs): a(f"v_pk_fma_f32 {V(120+2*k,2)}, {V(x,2)}, {V(x,2)}, {V(120+2*k,2)}")
        e, o = ACC + j*8, ACC + j*8 + 4
        for i in range(4): a(f"v_cvt_pk_bf16_f32 v{e+i}, v{e+i}, v{o+i}")
        a(f"ds_write_b128 v30, {V(e)} offset:{j*1024}")
        a(f"{skip}:")
    def val(i, T, st): return 112 + 8*st + 4*T + i
    for st in range(2):
        for T in range(2):
            for i in range(2):
                A, B = val(i, T, st), val(i+2, T, st)
                a(f"v_add_f32_dpp v{A}, v{A}, v{A} row_ror:8 row_mask:0xf bank_mask:0x3")
                a(f"v_add_f32_dpp v{A}, v{B}, v{B} row_ror:8 row_mask:0xf bank_mask:0xc")
    a("s_mov_b32 s60, 0x22222222\ns_mov_b32 s61, 0x22222222")
    for st in range(2):
        for T in range(2):
            A, B = val(0, T, st), val(1, T, st)
            a(f"v_add_f32_dpp v{A}, v{A}, v{A} row_half_mirror row_mask:0xf bank_mask:0x5")
            a(f"v_add_f32_dpp v{A}, v{B}, v{B} row_half_mirror row_mask:0xf bank_mask:0xa")
    a("s_mov_b32 s62, 0x44444444\ns_mov_b32 s63, 0x44444444")
    for qp in ("[1,0,3,2]", "[2,3,0,1]"):
        for st in range(2):
            for T in range(2):
                A = val(0, T, st)
                a(f"v_add_f32_dpp v{A}, v{A}, v{A} quad_perm:{qp} row_mask:0xf bank_mask:0xf")
    a(f"v_cndmask_b32 v112, v{val(0,0,0)}, v{val(0,0,1)}, s[60:61]")
    a("s_mov_b32 s60, 0x88888888\ns_mov_b32 s61, 0x88888888")
    a(f"v_cndmask_b32 v112, v112, v{val(0,1,0)}, s[62:63]")
    a(f"v_cndmask_b32 v112, v112, v{val(0,1,1)}, s[60:61]")
    a("v_mov_b32 v113, v31")
    a.vmem(f"buffer_store_dwordx2 {V(112,2)}, v9, {S4(WS_)}, s56 offen sc1", "st")
    a.stamp()
    fr = {}; mf = []
    for u in range(8):
        for kk in range(2):
            for T in range(2): fr[('x', u, kk, T)] = dict(step=u, reg=xreg(u, kk, T), reads=None)
            for j in range(6):
                fr[('w', u, kk, j)] = wfrag(u, kk, j)
                for T in range(2): mf.append((ACC + (j*2+T)*4, ('w', u, kk, j), ('x', u, kk, T)))
                if j in (2, 5):
                    t = j // 3
                    fr[('c', u, kk, t)] = cfrag(u, kk, t)
                    mf.append((120+4*t, ('c', u, kk, t), 'ones'))
    fr['ones'] = dict(step=0, reg=ONES, reads=None)
    for r in range(4): a(f"v_mov_b32 v{ONES+r}, 0x3f803f80")
    a("s_waitcnt lgkmcnt(0)")
    def pre2(u):
        for r in range(2): a(f"v_add_u32 v{16+r}, {W1SL[u]}, v{12+r}")
        for r in range(2): a(f"v_add_u32 v{20+r}, {W1SL[u]}, v{18+r}")
    ring2 = list(range(80, 112, 4))
    gemm_stream(a, mf, fr, ring2, opt('LA', 10), opt('cover', 3), pre2, nobar=1)
    a.stamp()
    for T in range(2):
        for k in range(4): a(f"ds_read_b32 v{104+4*k+2*T}, v5 offset:{64*T + TP*k}")
    a("s_mov_b32 exec_lo, 0x00010001\ns_mov_b32 exec_hi, 0x00010001")
    a(f"ds_write_b128 v24, {V(120)}")
    a(f"ds_write_b128 v25, {V(124)}")
    a("s_mov_b64 exec, -1")
    a("s_waitcnt lgkmcnt(0)")
    a.vmall()
    a("s_barrier")
    for j in range(6): a(f"ds_read_b128 {V(80+4*j)}, v7 offset:{64*j}")
    a("s_waitcnt lgkmcnt(0)")
    for j in range(6):
        skip = a.label("Lz1skip")
        a(f"s_cmp_gt_u32 s58, {j}")
        a(f"s_cselect_b32 s61, s54, {OOB}")
        a(f"s_cbranch_scc0 {skip}")
        xs = [ACC + (j*2+T)*4 + 2*p for T in range(2) for p in range(2)]
        for k, x in enumerate(xs): a(f"v_pk_fma_f32 {V(x,2)}, {V(80+4*j+2*(k%2),2)}, {V(104+2*(k//2),2)}, {V(x,2)} op_sel_hi:[1,0,1] neg_lo:[1,0,0] neg_hi:[1,0,0]")
        b = "op_sel_hi:[1,0,0]"
        gelu_core(a, xs, [20, 22, 26, 28], [(V(108+2*(k//2),2), b) for k in range(4)], [(V(112+2*(k//2),2), b) for k in range(4)], [(V(116+2*(k//2),2), b) for k in range(4)])
        e = ACC + j*8
        for k, x in enumerate(xs): a(f"v_cvt_pk_bf16_f32 v{e+k}, v{x}, v{x+1}")
        a("s_nop 1")
        for p in range(2): a(f"v_permlane32_swap_b32 v{e+p}, v{e+2+p}")
        a(f"{skip}:")
        if j >= 4: a("s_add_u32 s61, s61, 4096")
        a.vmem(f"buffer_store_dwordx4 {V(e)}, v8, {S4(WS_)}, s61 offen offset:{(j%4)*1024} sc1", "z1")
    a.stamp()

def red_g(a, regs, op="v_add_f32", tmp=60):
    n = len(regs)
    for sw in ("v_permlane32_swap_b32", "v_permlane16_swap_b32"):
        for k, r in enumerate(regs): a(f"v_mov_b32 v{tmp+k}, v{r}")
        if n < 3: a("s_nop 1")
        for k, r in enumerate(regs): a(f"{sw} v{r}, v{tmp+k}")
        for k, r in enumerate(regs): a(f"{op} v{r}, v{r}, v{tmp+k}")

def wsp_setup_h(a):
    rowtile_voffs(a, 8, 9, 12)
    a(f"s_lshl_b32 s59, s{sRB}, 2")
    a(f"s_add_u32 s59, s59, s{sQ}")
    a("s_lshl_b32 s59, s59, 17")
    a(f"s_lshl_b32 s61, s{sKS}, 11")
    a("s_add_u32 s59, s59, s61")

def wsp_group_h(a, v):
    a(f"s_add_u32 s61, s{sK0B}, {v}")
    a("s_and_b32 s61, s61, 15")
    a("s_lshl_b32 s61, s61, 7")
    a("s_add_u32 s61, s61, s59")
    a(f"s_add_u32 m0, s60, {(v % NWS) * 16384}")
    a("s_add_u32 s62, s61, 4096")
    a.vmem(f"buffer_load_dwordx4 v8, {S4(WSP_)}, s61 offen lds", ("S", v))
    a.vmem(f"buffer_load_dwordx4 v9, {S4(WSP_)}, s61 offen offset:1024 lds", ("S", v))
    a(f"s_add_u32 m0, s60, {(v % NWS) * 16384 + 2048}")
    a("s_nop 0")
    a.vmem(f"buffer_load_dwordx4 v8, {S4(WSP_)}, s62 offen lds", ("S", v))
    a.vmem(f"buffer_load_dwordx4 v9, {S4(WSP_)}, s62 offen offset:1024 lds", ("S", v))

def l2_setup(a, d):
    a("v_lshrrev_b32 v31, 1, v1")
    a("v_lshlrev_b32 v31, 12, v31")
    a("v_and_b32 v30, 1, v1")
    a(f"v_lshl_add_u32 v{d}, v30, 7, v31")
    a(f"v_lshlrev_b32 v{d+1}, 7, v1")
    a(f"s_lshl_b32 s68, s{sRB}, 2")
    a(f"s_add_u32 s68, s68, s{sQ}")
    a("s_lshl_b32 s68, s68, 17")
    a(f"s_lshl_b32 s61, s{sKS}, 3")
    a(f"s_add_u32 s61, s61, s{sCG}")
    a("s_lshl_b32 s61, s61, 8")
    a("s_add_u32 s68, s68, s61")
    a("s_lshr_b32 s61, s2, 3")
    a("s_lshl_b32 s61, s61, 2")
    a(f"s_add_u32 s61, s61, s{sQ}")
    a("s_lshl_b32 s69, s61, 12")
    a(f"s_mul_i32 s70, s61, {43*128}")
    a(f"s_mov_b32 m0, {L_MISC}")
def l2_hooks(a, d):
    if not opt('l2pf', 1): return {}
    nt = 'nt' if opt('l2nt', 0) else ''
    s0 = opt('l2s0', 1); n = 8 - s0
    def mk(k):
        def lanes(tot):
            lo, hi = k*tot//n, (k+1)*tot//n
            m = ((1 << hi) - 1) ^ ((1 << lo) - 1)
            a(f"s_mov_b32 exec_lo, {m & 0xffffffff:#x}\ns_mov_b32 exec_hi, {m >> 32:#x}")
        def h():
            lanes(64)
            a.vmem(f"buffer_load_dword v{d}, {S4(WSP_)}, s68 offen {nt} lds", "pf")
            if opt('l2cw', 1):
                lanes(32)
                a.vmem(f"buffer_load_dword v{d+1}, {S4(WO_)}, s69 offen lds", "pf")
                lanes(43)
                a.vmem(f"buffer_load_dword v{d+1}, {S4(WOUT_)}, s70 offen lds", "pf")
            a("s_mov_b64 exec, -1")
        return h
    return {s0 + k: mk(k) for k in range(n)}

def x_group_h(a, step, sl, tag):
    a(f"s_add_u32 s61, s{sK0A}, {step}")
    a("s_and_b32 s61, s61, 7")
    a("s_lshl_b32 s58, s61, 7")
    a("s_add_u32 s62, s58, s53")
    a(f"s_add_u32 m0, s60, {sl}")
    a("s_add_u32 s63, s62, 1024")
    a.vmem(f"buffer_load_dwordx4 v4, {S4(X_)}, s62 offen lds", tag)
    a.vmem(f"buffer_load_dwordx4 v5, {S4(X_)}, s62 offen offset:1024 lds", tag)
    a(f"s_add_u32 m0, s60, {sl + 2048}")
    a("s_nop 0")
    a.vmem(f"buffer_load_dwordx4 v4, {S4(X_)}, s63 offen lds", tag)
    a.vmem(f"buffer_load_dwordx4 v5, {S4(X_)}, s63 offen offset:1024 lds", tag)

def dots_x(a, fr, acc_s, acc_q, ones):
    for i in range(4):
        a(f"v_dot2_f32_bf16 v{acc_s}, v{fr+i}, v{ones}, v{acc_s}")
        a(f"v_dot2_f32_bf16 v{acc_q}, v{fr+i}, v{fr+i}, v{acc_q}")

def diag_sel(a, dst, gram):
    a("s_mov_b32 s62, 0x22222222\ns_mov_b32 s63, 0x22222222")
    a(f"v_cndmask_b32 v{dst}, v{gram}, v{gram+1}, s[62:63]")
    a("s_mov_b32 s62, 0x44444444\ns_mov_b32 s63, 0x44444444")
    a(f"v_cndmask_b32 v{dst}, v{dst}, v{gram+2}, s[62:63]")
    a("s_mov_b32 s62, 0x88888888\ns_mov_b32 s63, 0x88888888")
    a(f"v_cndmask_b32 v{dst}, v{dst}, v{gram+3}, s[62:63]")
DIAG_LO, DIAG_HI = 0x00f0000f, 0xf0000f00

def row_finalize(a, s_, q_, t):
    a(f"v_mul_f32 v{s_}, {f2u(1.0/512):#x}, v{s_}")
    a(f"v_mul_f32 v{q_}, {f2u(1.0/512):#x}, v{q_}")
    a(f"v_fma_f32 v{q_}, -v{s_}, v{s_}, v{q_}")
    a(f"v_max_f32 v{q_}, 0, v{q_}")
    a(f"v_add_f32 v{q_}, {f2u(1e-5):#x}, v{q_}")

def nonce_publish(a):
    a(f"s_or_b32 s61, s2, s{sQ}")
    a("s_cmp_eq_u32 s61, 0")
    a("s_cselect_b32 s61, 0, 256")
    a("s_or_b32 s62, s84, 1")
    a("v_mov_b32 v30, s62")
    a("v_mov_b32 v31, 0")
    a("s_mov_b64 exec, 1")
    a.vmem(f"buffer_store_dword v30, v31, {S4(DBG_)}, s61 offen sc1", "nonce")
    a("s_mov_b64 exec, -1")

def nonce_check(a):
    a.vmwait("poll")
    def chk():
        a(f"v_readfirstlane_b32 s{sT}, v25")
        a(f"s_cmp_lg_u32 s{sT}, 0")
    def iss():
        a("v_mov_b32 v31, 0")
        a(f"buffer_load_dword v25, v31, {S4(DBG_)}, 0 offen sc1")
    spin(a, iss, chk)

def wave_flag(a):
    a(f"s_lshl_b32 s61, s{sGRP}, 4")
    a(f"s_add_u32 s61, s61, s{sRB}")
    a("s_lshl_b32 s61, s61, 2")
    a(f"s_add_u32 s61, s61, s{sQ}")
    a("s_lshl_b32 s61, s61, 7")
    a(f"s_add_u32 s61, s61, {F1_OFF}")
    a(f"v_mov_b32 v30, s{sT}")
    a("v_mov_b32 v31, 0")
    a("s_mov_b64 exec, 1")
    a.vmem(f"buffer_store_dword v30, v31, {S4(WS_)}, s61 offen sc1", "flag")
    a("s_mov_b64 exec, -1")

def spin(a, issue, check_ok, limit=0x40000):
    lp = a.label("Lspin"); ok = a.label("Lok")
    check_ok()
    a(f"s_cbranch_scc1 {ok}")
    a("s_mov_b32 s63, 0")
    a(f"{lp}:")
    issue()
    a("s_waitcnt vmcnt(0)")
    a("s_add_u32 s63, s63, 1")
    a(f"s_cmp_gt_u32 s63, {limit}")
    a(f"s_cbranch_scc1 {ok}")
    check_ok()
    a(f"s_cbranch_scc0 {lp}")
    a(f"{ok}:")

def az_helper(a, fused):
    srd(a, WA_, 72, D*F2*2)
    rowtile_voffs(a, 4, 5, 10)
    for i in range(3):
        a(f"v_add_u32 v3, {64*i}, v1")
        a("v_mul_u32_u24 v30, 683, v3")
        a("v_lshrrev_b32 v30, 13, v30")
        a("v_mul_u32_u24 v31, 12, v30")
        a("v_sub_u32 v31, v3, v31")
        a("v_lshrrev_b32 v3, 2, v30")
        a("v_and_b32 v3, 2, v3")
        a("v_xor_b32 v31, v3, v31")
        a("v_mul_u32_u24 v30, 2752, v30")
        a(f"v_lshl_add_u32 v{20+i}, v31, 4, v30")
        if i: a(f"v_subrev_u32 v{20+i}, {1024*i}, v{20+i}")
    a(f"s_lshl_b32 s53, s{sRB}, 2")
    a(f"s_add_u32 s53, s53, s{sQ}")
    a("s_lshl_b32 s53, s53, 15")
    a(f"s_mul_i32 s55, s{sGRP}, 6")
    a("s_min_u32 s55, s55, 40")
    a(f"s_mul_i32 s54, s{sQ}, {16*2752}")
    a("s_lshl_b32 s61, s55, 5")
    a("s_add_u32 s54, s54, s61")
    a(f"s_mul_i32 s56, s{sQ}, 3072")
    a(f"s_lshl_b32 s60, s{sQ}, 12")
    def wgroup(kreg_ready, step, dst, add, tag):
        if not kreg_ready:
            a(f"s_add_u32 s61, s{sK0A}, {step}")
            a("s_and_b32 s61, s61, 7")
        a(f"s_mul_i32 s63, s61, {64*2752}")
        a("s_add_u32 s63, s63, s54")
        a(f"s_add_u32 m0, s56, {dst}")
        if add: a(f"s_add_u32 s63, s63, {add}")
        else: a("s_nop 0")
        for i in range(3):
            a.vmem(f"buffer_load_dwordx4 v{20+i}, {S4(WA_)}, s63 offen offset:{1024*i} lds", tag)
    def ga(step):
        x_group_h(a, step, ZSLOT[step % 5], ("A", step))
        wgroup(True, step, ZSLOT[step % 5] + 16384, 1376, ("A", step))
    npro = opt('proZ', 2)
    ga(0)
    nonce_publish(a)
    for st in range(1, npro): ga(st)
    late_srds(a)
    wsp_setup_h(a)
    a("v_lshlrev_b32 v10, 3, v1")
    a(f"s_lshl_b32 s64, s{sRB}, 5")
    a(f"s_add_u32 s64, s64, s{sQ}")
    a("s_lshl_b32 s64, s64, 9")
    a(f"s_add_u32 s64, s64, {WS_ST2}")
    a("s_add_u32 s65, s64, 4096\ns_add_u32 s66, s64, 8192\ns_add_u32 s67, s64, 12288")
    a("v_lshlrev_b32 v11, 4, v1")
    a(f"s_mul_i32 s61, s{sQ}, 6144")
    a(f"s_add_u32 s61, s61, {L_PARK}")
    a("v_add_u32 v11, s61, v11")
    a(f"s_lshl_b32 s61, s{sQ}, 8")
    a(f"s_add_u32 s61, s61, {L_XCH}")
    a("v_lshrrev_b32 v12, 1, v1")
    a("v_lshl_add_u32 v12, v12, 2, s61")
    a("v_lshrrev_b32 v13, 4, v1")
    a("v_lshl_add_u32 v13, v13, 5, s61")
    a("v_lshrrev_b32 v3, 5, v1")
    a("v_mul_u32_u24 v3, 3072, v3")
    a("v_bfe_u32 v30, v1, 4, 1")
    a("v_lshl_add_u32 v3, v30, 9, v3")
    a("v_and_b32 v30, 15, v1")
    a("v_lshl_add_u32 v14, v30, 4, v3")
    a(f"s_lshl_b32 s57, s{sGRP}, 4")
    a(f"s_add_u32 s57, s57, s{sRB}")
    a("s_lshl_b32 s57, s57, 2")
    a(f"s_add_u32 s57, s57, s{sQ}")
    a("s_mul_i32 s57, s57, 6144")
    a(f"s_add_u32 s57, s57, {WS_Z2N}")
    a("v_mov_b32 v16, 0xffff0000")
    a.stamp()
    for s in range(8):
        a.vmwait(("A", s))
        a("s_barrier")
        if s in (0, 1, 4): a.stamp()
        if s == 0:
            for st in range(npro, 5): ga(st)
        elif s <= 3: ga(s + 4)
        else:
            if s == 5:
                a("v_mov_b32 v31, 0")
                a.vmem(f"buffer_load_dword v25, v31, {S4(DBG_)}, 0 offen sc1", "poll")
            for u in (2*(s-4), 2*(s-4)+1): wgroup(False, u, W1SL[u], 0, ("W1", u))
    nonce_check(a)
    a(f"v_mov_b32 v30, s{sT}")
    a(f"v_mov_b32 v31, {L_MISC + 256}")
    a("ds_write_b32 v31, v30")
    a("s_waitcnt lgkmcnt(0)")
    a.stamp()
    a("s_barrier")
    a.vmall()
    a("s_barrier")
    a(f"s_setprio {opt('nprio', 3)}")
    for j in range(6): a(f"ds_read_b128 {V(64+4*j)}, v11 offset:{1024*j}")
    def iss():
        for c in range(8):
            a(f"buffer_load_dwordx2 {V(32+2*c,2)}, v10, {S4(WS_)}, s{64 + (c>>1)} offen offset:{2048*(c&1)} sc1")
    def chk():
        for c in range(8): a(f"v_xor_b32 v{48+c}, s{sT}, v{33+2*c}")
        a("v_or3_b32 v48, v48, v49, v50\nv_or3_b32 v51, v51, v52, v53\nv_or3_b32 v48, v48, v54, v55")
        a("v_or_b32 v48, v48, v51")
        a("v_cmp_ne_u32 vcc, 0, v48")
        a("s_cmp_eq_u64 vcc, 0")
    a("s_waitcnt lgkmcnt(0)")
    for j in range(6):
        for w in range(4):
            a(f"v_lshlrev_b32 v{96+8*j+2*w}, 16, v{64+4*j+w}")
            a(f"v_and_b32 v{96+8*j+2*w+1}, v16, v{64+4*j+w}")
    zcount(a, 62, 58)
    iss(); a("s_waitcnt vmcnt(0)")
    spin(a, iss, chk)
    a.stamp()
    for k in (2, 4, 6): a(f"v_add_f32 v{32+2*k}, v{32+2*k}, v{34+2*k}")
    a("v_add_f32 v32, v32, v34")
    a("v_add_f32 v36, v36, v40")
    a("v_add_f32 v32, v32, v44")
    a("v_add_f32 v32, v32, v36")
    a(f"v_mul_f32 v32, {f2u(1.0/688):#x}, v32")
    a("s_nop 1")
    a("v_mov_b32_dpp v33, v32 quad_perm:[1,0,3,2] row_mask:0xf bank_mask:0xf")
    a("v_fma_f32 v33, -v32, v32, v33")
    a("v_max_f32 v33, 0, v33")
    a(f"v_add_f32 v33, {f2u(1e-5):#x}, v33")
    a("v_rsq_f32 v33, v33")
    a("s_mov_b32 exec_lo, 0x55555555\ns_mov_b32 exec_hi, 0x55555555")
    a("v_mul_f32_e64 v32, -v32, v33")
    a("ds_write_b32 v12, v33")
    a("ds_write_b32 v12, v32 offset:128")
    a("s_mov_b64 exec, -1")
    a("s_waitcnt lgkmcnt(0)")
    for k in range(2): a(f"ds_read_b128 {V(32+4*k)}, v13 offset:{16*k}")
    for k in range(2): a(f"ds_read_b128 {V(40+4*k)}, v13 offset:{128 + 16*k}")
    for j in range(6):
        z = 64 + 4*j; u = 96 + 8*j
        if j == 0: a("s_waitcnt lgkmcnt(0)")
        for w in range(8): a(f"v_fma_f32 v{u+w}, v{u+w}, v{32+w}, v{40+w}")
        for w in range(4): a(f"v_cvt_pk_bf16_f32 v{z+w}, v{u+2*w}, v{u+2*w+1}")
        a(f"s_cmp_gt_u32 s58, {j}")
        a(f"s_cselect_b32 s61, s57, {OOB}")
        a.vmem(f"buffer_store_dwordx4 {V(z)}, v14, {S4(WS_)}, s61 offen offset:{(j>>1)*1024 + (j&1)*256} sc1", "z2n")
    a("s_setprio 0")
    a.stamp()
    a.vmwait("z2n")
    wave_flag(a)
    a.stamp()
    a("s_barrier")
    for v in range(NWS): wsp_group_h(a, v)

def aq_compute(a, fused):
    AQ, AK, AV, HK, HV = 32, 64, 96, 128, 136
    ONES, SUM, GRM, XA = 28, 224, 232, 240
    CWQ = [128, 132, 136, 140, 240, 244]
    ring = list(range(144, 200, 4))
    MC, MPN, MPA, MB = 200, 204, 208, 216
    a(f"s_lshr_b32 s5, s{sQ}, 1")
    a(f"s_and_b32 s46, s{sQ}, 1")
    a("s_lshl_b32 s61, s5, 13")
    rowfrag_addr(a, 10, 11, "s61")
    rowfrag_addr(a, 12, 13, 16384)
    qw_addr(a, 14)
    a("v_add_u32 v14, 18432, v14")
    a("s_lshl_b32 s61, s46, 6")
    a("v_xor_b32 v14, s61, v14")
    a("v_xor_b32 v15, 32, v14")
    a("v_and_b32 v3, 15, v1")
    a("v_lshrrev_b32 v30, 4, v1")
    a("v_lshlrev_b32 v30, 2, v30")
    a("v_sub_u32 v31, v3, v30")
    a(f"v_mov_b32 v224, {NEG:#x}")
    a("v_mov_b32 v225, 0xffff")
    a("v_mov_b32 v226, 0xffff0000")
    for i in range(4):
        a(f"v_subrev_u32 v227, {i}, v31")
        a("v_cmp_gt_u32 vcc, 8, v227")
        a("v_cmp_gt_i32 s[62:63], -8, v227")
        a("s_nop 0")
        a(f"v_cndmask_b32_e64 v{MC+i}, v224, 0, vcc")
        a(f"v_cndmask_b32_e64 v{228+i}, 0, v{225 + (i&1)}, vcc")
        a(f"v_cndmask_b32_e64 v{MPN+i}, v224, 0, s[62:63]")
    a(f"v_or_b32 v{MB}, v228, v229")
    a(f"v_or_b32 v{MB+1}, v230, v231")
    a("s_lshl_b32 s61, s5, 8")
    a(f"s_add_u32 s61, s61, {L_TAB}")
    a("v_and_b32 v27, 0x30, v1")
    a("v_add_u32 v218, s61, v27")
    a("v_lshl_add_u32 v219, v3, 2, s61")
    a("s_lshl_b32 s61, s46, 7")
    a(f"s_add_u32 s61, s61, {L_CW}")
    a("v_add_u32 v220, s61, v27")
    a("v_lshl_add_u32 v221, v3, 2, s61")
    a("v_lshlrev_b32 v222, 4, v1")
    a("s_lshl_b32 s61, s46, 12")
    a(f"s_add_u32 s61, s61, {L_XCH}")
    a("v_add_u32 v223, s61, v222")
    a(f"s_lshl_b32 s53, s{sRB}, 1")
    a("s_add_u32 s53, s53, s5")
    a("s_lshl_b32 s53, s53, 4")
    a(f"s_add_u32 s53, s53, s{sGRP}")
    a("s_lshl_b32 s53, s53, 1")
    a("s_add_u32 s53, s53, s46")
    a("s_lshl_b32 s53, s53, 11")
    a(f"s_add_u32 s53, s53, {WS_O}")
    a("s_add_u32 s54, s53, 32768")
    a("v_lshrrev_b32 v27, 4, v1")
    a("v_lshlrev_b32 v27, 9, v27")
    a("v_lshl_add_u32 v4, v3, 4, v27")
    AT = 16
    def build(halo, hp):
        fr = {'ones': dict(step=0, reg=ONES, reads=None)}; mf = []
        for s in range(8):
            for kk in range(2):
                for tl in range(4):
                    fr[('x', s, kk, tl)] = dict(step=s, reg=None, reads=[lambda r, kk=kk, tl=tl: f"ds_read_b128 {V(r)}, v{AT+kk} offset:{tl*2048}"])
                fr[('h', s, kk)] = dict(step=s, reg=None, reads=[lambda r, kk=kk: f"ds_read_b128 {V(r)}, v{AT+2+kk}"])
                for m in range(3):
                    for e in range(2):
                        w = ('w', s, kk, m, e)
                        fr[w] = dict(step=s, reg=None, reads=[(lambda r, hh=hh, kk=kk, m=m, e=e: f"ds_read_b64_tr_b16 {V(r+2*hh,2)}, v{AT+4+e} offset:{kk*12288 + m*1024 + hh*512}") for hh in range(2)])
                        for tl in range(4):
                            d = (AQ, AK, AV)[m] + (e*4+tl)*4
                            mf.append((d, w, ('x', s, kk, tl)) if m < 2 else (d, ('x', s, kk, tl), w))
                        if halo and m == 1: mf.append((HK+4*e, w, ('h', s, kk)))
                        if halo and m == 2: mf.append((HV+4*e, ('h', s, kk), w))
                        if not halo: mf.append((CWQ[m*2+e], 'ones', w))
                        if m == 0:
                            x = ('x', s, kk, 2*hp+e)
                            mf.append((SUM+4*e, 'ones', x)); mf.append((GRM+4*e, x, x))
                        if halo and hp == 0 and m == 1:
                            mf.append((XA, 'ones', ('h', s, kk)) if e == 0 else (XA+4, ('h', s, kk), ('h', s, kk)))
        return mf, fr
    def stats_out(halo, hp):
        jobs = [(SUM, GRM, 128*hp), (SUM+4, GRM+4, 128*hp + 64)]
        if halo and hp == 0: jobs.append((XA, XA+4, 512))
        for k, (s_, g_, o) in enumerate(jobs): diag_sel(a, 144+k, g_)
        if not halo:
            for k in range(6): a(f"ds_write_b32 v221, v{CWQ[k]} offset:{256*(k>>1) + 64*(k&1)}")
        for k, (s_, g_, o) in enumerate(jobs): row_finalize(a, s_, 144+k, 0)
        for k, (s_, g_, o) in enumerate(jobs): a(f"v_rsq_f32 v{144+k}, v{144+k}")
        a(f"s_mov_b32 exec_lo, {DIAG_LO:#x}\ns_mov_b32 exec_hi, {DIAG_HI:#x}")
        for k, (s_, g_, o) in enumerate(jobs):
            a(f"ds_write_b32 v219, v{s_} offset:{o}")
            a(f"ds_write_b32 v219, v{144+k} offset:{o + TP}")
        a("s_mov_b64 exec, -1")
    def pre(s):
        for r in range(6): a(f"v_add_u32 v{AT+r}, {QSLOT[s % 3]}, v{10+r}")
    a("v_mov_b32 v26, v30")
    l2_setup(a, 5)
    a("v_mov_b32 v30, v26")
    lr1 = a.label("Lrh1"); lj = a.label("Lqj")
    a("s_cmp_lg_u32 s5, 0")
    a(f"s_cbranch_scc1 {lr1}")
    a("v_lshlrev_b32 v3, 1, v3")
    a("v_sub_u32 v31, v30, v3")
    a(f"s_cmp_eq_u32 s{sRB}, 0")
    a("s_cselect_b32 s61, 1000, 0")
    a("v_subrev_u32 v31, s61, v31")
    for T in range(2):
        for i in range(4):
            if (i ^ T) & 1:
                a(f"v_mov_b32 v{MPA+4*T+i}, v224")
            else:
                a(f"v_cmp_le_i32 vcc, {T + 2 - i}, v31")
                a("s_nop 1")
                a(f"v_cndmask_b32_e64 v{MPA+4*T+i}, v224, 0, vcc")
    n0 = a.nst
    for halo in (True, False):
        if not halo:
            a(f"{lr1}:")
            for i in range(8): a(f"v_mov_b32 v{MPA+i}, v{MPN+(i&3)}")
        lh1 = a.label("Lhp1")
        for r in range(4): a(f"v_mov_b32 v{ONES+r}, 0x3f803f80")
        a("s_cmp_lg_u32 s46, 0")
        a(f"s_cbranch_scc1 {lh1}")
        for hp in range(2):
            if hp: a(f"{lh1}:")
            a.nst = n0
            a.stamp()
            mf, fr = build(halo, hp)
            vm0 = list(a.vm)
            gemm_stream(a, mf, fr, ring, opt('LA', 10), opt('cover', 3), pre, stamps=(0, 1, 4), hooks=l2_hooks(a, 5))
            vm1 = list(a.vm); a.vm = vm0
            a.stamp()
            stats_out(halo, hp)
            a(f"s_branch {lj}")
    a(f"{lj}:")
    a.vm = vm1
    a("s_waitcnt lgkmcnt(0)")
    a("s_barrier")
    for k in range(2): a(f"ds_read_b128 {V(152+4*k)}, v220 offset:{256 + 64*k}")
    for tl in range(4):
        a(f"ds_read_b32 v{162+tl}, v219 offset:{64*tl}")
        a(f"ds_read_b32 v{166+tl}, v219 offset:{64*tl + TP}")
    for e in range(2): a(f"ds_read_b32 v{160+e}, v221 offset:{512 + 64*e}")
    a("s_waitcnt lgkmcnt(2)")
    for tl in range(4):
        a(f"ds_read_b128 {V(172+4*tl)}, v218 offset:{64*tl}")
        a(f"ds_read_b128 {V(10+4*tl)}, v218 offset:{64*tl + TP}")
    for k in range(2): a(f"ds_read_b128 {V(144+4*k)}, v220 offset:{64*k}")
    def corr_t(x, cw, mreg, rreg):
        for p in range(2): a(f"v_pk_fma_f32 {V(x+2*p,2)}, {V(cw+2*p,2)}, {V(mreg&~1,2)}, {V(x+2*p,2)} op_sel:[0,{mreg&1},0] op_sel_hi:[1,{mreg&1},1] neg_lo:[1,0,0] neg_hi:[1,0,0]")
        for p in range(2): a(f"v_pk_mul_f32 {V(x+2*p,2)}, {V(x+2*p,2)}, {V(rreg&~1,2)} op_sel:[0,{rreg&1}] op_sel_hi:[1,{rreg&1}]")
    def corr_c(x, mv, rv, cw):
        for p in range(2): a(f"v_pk_fma_f32 {V(x+2*p,2)}, {V(mv+2*p,2)}, {V(cw&~1,2)}, {V(x+2*p,2)} op_sel:[0,{cw&1},0] op_sel_hi:[1,{cw&1},1] neg_lo:[1,0,0] neg_hi:[1,0,0]")
        for p in range(2): a(f"v_pk_mul_f32 {V(x+2*p,2)}, {V(x+2*p,2)}, {V(rv+2*p,2)}")
    def pack(dst, x):
        for p in range(2): a(f"v_cvt_pk_bf16_f32 v{dst+p}, v{x+2*p}, v{x+2*p+1}")
    KV = 224
    def kp(e, tl): return KV + 8*tl + 2*e
    def vp(e, tl): return KV + 8*tl + 4 + 2*e
    for tl in (2, 3, 0, 1):
        for e in range(2): corr_t(AK + (e*4+tl)*4, 152+4*e, 162+tl, 166+tl)
        for e in range(2): pack(kp(e, tl), AK + (e*4+tl)*4)
    a("s_waitcnt lgkmcnt(0)")
    for tl in (2, 3, 0, 1):
        for e in range(2): corr_c(AV + (e*4+tl)*4, 172+4*tl, 10+4*tl, 160+e)
        for e in range(2): pack(vp(e, tl), AV + (e*4+tl)*4)
        if tl == 3:
            lx = a.label("Lx")
            a("s_cmp_lg_u32 s5, 0")
            a(f"s_cbranch_scc1 {lx}")
            for k in range(4): a(f"ds_write_b128 v223, {V(KV+16+4*k)} offset:{1024*k}")
            a("ds_read_b32 v26, v219 offset:512")
            a(f"ds_read_b32 v27, v219 offset:{512 + TP}")
            a(f"ds_read_b128 {V(188)}, v218 offset:512")
            a(f"ds_read_b128 {V(192)}, v218 offset:{512 + TP}")
            a(f"{lx}:")
    PV = 64
    lh = a.label("Lnh")
    a("s_cmp_lg_u32 s5, 0")
    a(f"s_cbranch_scc1 {lh}")
    a("s_waitcnt lgkmcnt(0)")
    for e in range(2):
        corr_t(HK+4*e, 152+4*e, 26, 27)
        corr_c(HV+4*e, 188, 192, 160+e)
    for e in range(2):
        for T in range(2):
            pack(PV + 8*T + 2*e, HK+4*e)
            pack(PV + 8*T + 4 + 2*e, HV+4*e)
    a(f"{lh}:")
    QP = 96
    for e in range(2):
        for tl in range(4): corr_t(AQ + (e*4+tl)*4, 144+4*e, 162+tl, 166+tl)
    for k in range(8): pack(QP+2*k, AQ+4*k)
    a("s_waitcnt lgkmcnt(0)")
    a("s_barrier")
    lp = a.label("Lp")
    a("s_cmp_eq_u32 s5, 0")
    a(f"s_cbranch_scc1 {lp}")
    for k in range(4): a(f"ds_read_b128 {V(PV+4*k)}, v223 offset:{1024*k}")
    a(f"{lp}:")
    SC, SP = 112, 144
    U = range(8)
    def kprev(u): e, tl = u//4, u%4; return kp(e, tl-2) if tl >= 2 else PV + 8*tl + 2*e
    def vprev(u): e, tl = u//4, u%4; return vp(e, tl-2) if tl >= 2 else PV + 8*tl + 4 + 2*e
    for u in U: a(mfma16(SC+4*u, kp(u//4, u%4), QP+2*u, V(MC)))
    a(f"v_mov_b32 v10, {f2u(0.25*LOG2E):#x}")
    for u in (2, 3, 6, 7): a(mfma16(SP+4*u, kprev(u), QP+2*u, V(MPN)))
    a("s_waitcnt lgkmcnt(0)")
    for u in (0, 1, 4, 5): a(mfma16(SP+4*u, kprev(u), QP+2*u, V(MPA+4*(u&1))))
    MX, TM = 32, 40
    for u in (2, 3, 6, 7, 0, 1, 4, 5):
        for i in range(4): a(f"v_max_f32 v{SC+4*u+i}, v{SC+4*u+i}, v{SP+4*u+i}")
    for u in U: a(f"v_max3_f32 v{MX+u}, v{SC+4*u}, v{SC+4*u+1}, v{SC+4*u+2}")
    for u in U: a(f"v_max_f32 v{MX+u}, v{MX+u}, v{SC+4*u+3}")
    red_g(a, [MX+u for u in U], "v_max_f32", TM)
    for u in range(0, 8, 2): a(f"v_pk_mul_f32 {V(MX+u,2)}, {V(MX+u,2)}, {V(10,2)} op_sel_hi:[1,0]")
    for u in U:
        for p in range(2): a(f"v_pk_fma_f32 {V(SC+4*u+2*p,2)}, {V(SC+4*u+2*p,2)}, {V(10,2)}, {V(MX+(u&~1),2)} op_sel:[0,0,{u&1}] op_sel_hi:[1,0,{u&1}] neg_lo:[0,0,1] neg_hi:[0,0,1]")
    for u in U:
        for i in range(4): a(f"v_exp_f32 v{SC+4*u+i}, v{SC+4*u+i}")
    PC, PP = 144, 160
    for u in U: pack(PP+2*u, SC+4*u)
    for u in U:
        for p in range(2): a(f"v_and_b32 v{PC+2*u+p}, v{MB+p}, v{PP+2*u+p}")
    for u in U:
        for p in range(2): a(f"v_xor_b32 v{PP+2*u+p}, v{PC+2*u+p}, v{PP+2*u+p}")
    OA = 176
    for u in U: a(f"v_pk_add_f32 {V(SC+4*u,2)}, {V(SC+4*u,2)}, {V(SC+4*u+2,2)}")
    for u in U:
        a(mfma16(OA+4*u, vp(u//4, u%4), PC+2*u, "0"))
        a(f"v_add_f32 v{MX+u}, v{SC+4*u}, v{SC+4*u+1}")
    for u in U: a(mfma16(OA+4*u, vprev(u), PP+2*u))
    red_g(a, [MX+u for u in U], "v_add_f32", TM)
    for u in U: a(f"v_rcp_f32 v{MX+u}, v{MX+u}")
    for u in U:
        for p in range(2): a(f"v_pk_mul_f32 {V(OA+4*u+2*p,2)}, {V(OA+4*u+2*p,2)}, {V(MX+(u&~1),2)} op_sel:[0,{u&1}] op_sel_hi:[1,{u&1}]")
    for tl in range(4):
        for e in range(2): pack(112 + 4*tl + 2*e, OA + 4*(e*4+tl))
    for tl in range(4):
        for p in range(2): a(f"v_permlane32_swap_b32 v{112+4*tl+p}, v{112+4*tl+2+p}")
    a.vmwait("b")
    for tl in range(4):
        a.vmem(f"buffer_store_dwordx4 {V(112+4*tl)}, v4, {S4(WS_)}, s{53+(tl>>1)} offen offset:{256*(tl&1)} sc1", "o")
    a.stamp()

def aq_helper(a, fused):
    srd(a, WA_, 66, D*1536*2)
    rowtile_voffs(a, 4, 5, 10)
    a("v_bfe_u32 v3, v1, 4, 1")
    a("v_lshlrev_b32 v3, 1, v3")
    a("v_and_b32 v30, 7, v1")
    a("v_xor_b32 v30, v30, v3")
    a("v_lshrrev_b32 v3, 3, v1")
    a("v_mul_u32_u24 v3, 3072, v3")
    a("v_lshl_add_u32 v6, v30, 4, v3")
    a("v_xor_b32 v30, 4, v30")
    a("v_lshl_add_u32 v7, v30, 4, v3")
    a(f"v_add_u32 v7, {8*3072}, v7")
    a("v_lshrrev_b32 v3, 4, v1")
    a(f"s_lshl_b32 s61, s{sQ}, 1")
    a("v_add_u32 v3, s61, v3")
    a("v_and_b32 v30, 7, v1")
    a("v_xor_b32 v30, v30, v3")
    a("v_and_b32 v30, 7, v30")
    a("v_lshrrev_b32 v3, 3, v1")
    a("v_lshlrev_b32 v3, 10, v3")
    a("v_lshl_add_u32 v20, v30, 4, v3")
    a(f"s_lshl_b32 s53, s{sRB}, 7")
    a("s_sub_u32 s55, s53, 16")
    a("s_max_i32 s55, s55, 0")
    a(f"s_lshl_b32 s61, s{sQ}, 2")
    a("s_add_u32 s55, s55, s61")
    a("s_lshl_b32 s55, s55, 10")
    a(f"s_lshl_b32 s61, s{sQ}, 5")
    a("s_add_u32 s53, s53, s61")
    a("s_lshl_b32 s53, s53, 10")
    a(f"s_mul_i32 s54, s{sQ}, {16*3072}")
    a(f"s_lshl_b32 s61, s{sGRP}, 7")
    a("s_add_u32 s54, s54, s61")
    a(f"s_mul_i32 s56, s{sQ}, 6144")
    a(f"s_lshl_b32 s57, s{sQ}, 9")
    a(f"s_lshl_b32 s60, s{sQ}, 12")
    def ga(step):
        sl = QSLOT[step % 3]; tag = ("A", step)
        x_group_h(a, step, sl, tag)
        a(f"s_mul_i32 s63, s61, {64*3072}")
        a("s_add_u32 s63, s63, s54")
        a(f"s_add_u32 m0, s56, {sl + 18432}")
        a("s_add_u32 s62, s58, s55")
        for m in range(3): a.vmem(f"buffer_load_dwordx4 v6, {S4(WA_)}, s63 offen offset:{1024*m} lds", tag)
        a(f"s_add_u32 m0, s56, {sl + 18432 + 3072}")
        a("s_nop 0")
        for m in range(3): a.vmem(f"buffer_load_dwordx4 v7, {S4(WA_)}, s63 offen offset:{1024*m} lds", tag)
        a(f"s_add_u32 m0, s57, {sl + 16384}")
        a("s_mov_b32 exec_hi, 0")
        a.vmem(f"buffer_load_dwordx4 v20, {S4(X_)}, s62 offen lds", tag)
        a("s_mov_b32 exec_hi, -1")
    ga(0)
    nonce_publish(a)
    ga(1)
    if opt('proQ', 2) == 3: ga(2)
    late_srds(a)
    if fused: wsp_setup_h(a)
    a.stamp()
    for s in range(8):
        a.vmwait(("A", s))
        a("s_barrier")
        if s in (0, 1, 4): a.stamp()
        if (0 if opt('proQ', 2) == 2 else 1) <= s <= 5: ga(s + 2)
        if fused and s == 5:
            a("v_mov_b32 v31, 0")
            a.vmem(f"buffer_load_dword v25, v31, {S4(DBG_)}, 0 offen sc1", "poll")
        if fused and s == 6:
            wsp_group_h(a, 0); wsp_group_h(a, 1)
        if fused and s == 7: wsp_group_h(a, 6)
    a.stamp()
    a("s_barrier")
    if fused:
        for v in (2, 3, 4, 5): wsp_group_h(a, v)
    a("s_barrier")

def flag_store(a, which):
    if which == "F1":
        a(f"s_lshl_b32 s61, s{sRB}, 3")
        a(f"s_add_u32 s61, s61, s{sGRP}")
        off = F1_OFF
    else:
        a(f"s_lshl_b32 s61, s{sRB}, 1")
        a(f"s_add_u32 s61, s61, s{sTYP}")
        a("s_lshl_b32 s61, s61, 3")
        a(f"s_add_u32 s61, s61, s{sGRP}")
        off = F2_OFF
    a("s_lshl_b32 s61, s61, 7")
    a(f"s_add_u32 s61, s61, {off}")
    a(f"s_cmp_eq_u32 s{sQ}, 0")
    a(f"s_cselect_b32 s61, s61, {OOB}")
    a(f"v_mov_b32 v30, s{sT}")
    a("v_mov_b32 v31, 0")
    a("s_mov_b64 exec, 1")
    a.vmem(f"buffer_store_dword v30, v31, {S4(WS_)}, s61 offen sc1", "flag")
    a("s_mov_b64 exec, -1")

def mfma32(d, a, b, c=None):
    c = V(d, 16) if c is None else c
    return f"v_mfma_f32_32x32x16_bf16 {V(d,16)}, {V(a)}, {V(b)}, {c}"

def b_early(a):
    a("v_and_b32 v3, 15, v1")
    a("v_bfe_u32 v31, v1, 4, 1")
    a("v_lshl_add_u32 v3, v3, 1, v31")
    a("v_lshlrev_b32 v3, 1, v3")
    a(f"s_lshl_b32 s61, s{sRB}, 2")
    a(f"s_add_u32 s61, s61, s{sQ}")
    a("s_lshl_b32 s61, s61, 6")
    a(f"s_cmp_eq_u32 s{sKS}, 0")
    a("s_cselect_b32 s61, s61, 4096")
    a.vmem(f"buffer_load_ushort v0, v3, {S4(BSP_)}, s61 offen", "b")

def b_compute(a, fused):
    ACC = 32
    ring = list(range(80, 144, 4))
    Z1 = 144
    a("v_and_b32 v3, 31, v1")
    a("v_lshrrev_b32 v30, 5, v1")
    a("v_bfe_u32 v31, v1, 1, 3")
    a("v_xor_b32 v31, v30, v31")
    a("v_lshlrev_b32 v3, 7, v3")
    a("v_lshl_add_u32 v10, v31, 4, v3")
    a(f"s_lshl_b32 s61, s{sQ}, 12")
    a("v_add_u32 v10, s61, v10")
    for b4 in range(1, 4): a(f"v_xor_b32 v{10+b4}, {32*b4}, v10")
    for b4 in range(4): a(f"v_add_u32 v{14+b4}, 0x10000, v{10+b4}")
    a("v_lshlrev_b32 v19, 4, v1")
    a(f"v_add_u32 v18, {L_Z2}, v19")
    a("v_and_b32 v3, 15, v1")
    a("v_bfe_u32 v31, v1, 4, 1")
    a("v_lshlrev_b32 v20, 9, v31")
    a("v_lshl_add_u32 v20, v30, 8, v20")
    a("v_lshl_add_u32 v20, v3, 4, v20")
    a(f"s_lshl_b32 s57, s{sRB}, 2")
    a(f"s_add_u32 s57, s57, s{sQ}")
    if not fused: b_early(a)
    a(f"s_mul_i32 s55, s{sCG}, 6")
    a("s_min_u32 s55, s55, 40")
    a("s_sub_u32 s58, 40, s55")
    a("s_min_u32 s58, s58, 6")
    a(f"s_cmp_eq_u32 s{sCG}, 7")
    a("s_cselect_b32 s58, 3, s58")
    a("s_mul_i32 s53, s57, 48")
    a("s_add_u32 s53, s53, s55")
    a("s_lshl_b32 s53, s53, 10")
    a(f"s_mul_i32 s61, s{sKS}, {64*48*1024}")
    a("s_add_u32 s54, s53, s61")
    a(f"s_add_u32 s53, s53, {WS_Z1}")
    a(f"s_add_u32 s54, s54, {WS_H}")
    if not fused: a.vmwait("b")
    a("v_lshlrev_b32 v22, 16, v0")
    for r in range(48): a(f"v_mov_b32 v{ACC+r}, v22")
    def z1_load():
        pass
    def z1_piece(j):
        def f():
            if j == 0 and fused:
                a("v_mov_b32 v23, 0")
                a.vmem(f"buffer_load_dword v23, v23, {S4(DBG_)}, 0 offen sc1", "z1")
            if j == 4: a("s_add_u32 s53, s53, 4096")
            a.vmem(f"buffer_load_dwordx4 {V(Z1+4*j)}, v20, {S4(WS_)}, s53 offen offset:{(j%4)*1024} sc1", "z1")
        return f
    extras = []
    zs = opt('z1step', 11)
    for j in range(6): extras.append((zs, z1_piece(j), lambda done: True, 99))
    def preB(st):
        if fused and st == opt('f2step', 3): a.vmall()
    fr = {}; mf = []
    for i in range(16):
        for b4 in range(4):
            fr[('w', i, b4)] = dict(step=i, reg=None, reads=[lambda r, i=i, b4=b4: f"ds_read_b128 {V(r)}, v{10 + b4 + 4*((i%NWS)//4)} offset:{((i%NWS)%4)*16384}"])
            for c in range(3):
                fr[('z', i, b4, c)] = dict(step=i, reg=None, reads=[lambda r, i=i, b4=b4, c=c: f"ds_read_b128 {V(r)}, v18 offset:{(i%4)*12288 + (b4*3+c)*1024}"])
                mf.append((ACC+16*c, ('z', i, b4, c), ('w', i, b4)))
    a.stamp()
    a("s_barrier")
    gemm_stream(a, mf, fr, ring, opt('LAB', 5), opt('coverB', 2), preB,
                first_zero=False, stamps=(0, 1, 8, 10, 12, 14), pergap=opt('pgB', 2), slack=2, op=mfma32, extras=extras)
    assert not extras
    a.stamp()
    a("s_barrier")
    a.vmwait("z1")
    if fused: a(f"v_readfirstlane_b32 s{sT}, v23")
    for j in range(6):
        x = ACC + 8*j; z = Z1 + 4*j; t = 80 + 8*(j&1)
        for k in range(4):
            a(f"v_lshlrev_b32 v{t+2*k}, 16, v{z+k}")
            a(f"v_and_b32 v{t+2*k+1}, 0xffff0000, v{z+k}")
        for k in range(4): a(f"v_pk_mul_f32 {V(x+2*k,2)}, {V(x+2*k,2)}, {V(t+2*k,2)}")
        for k in range(4): a(f"v_cvt_pk_bf16_f32 v{x+k}, v{x+2*k}, v{x+2*k+1}")
        a(f"s_cmp_gt_u32 s58, {j}")
        a(f"s_cselect_b32 s61, s54, {OOB}")
        if j >= 4: a("s_add_u32 s61, s61, 4096")
        a.vmem(f"buffer_store_dwordx4 {V(x)}, v19, {S4(WS_)}, s61 offen offset:{(j%4)*1024} sc1", "h")
    a.stamp()

def cw_setup_h(a):
    a("v_bfe_u32 v3, v1, 4, 1")
    a("v_lshlrev_b32 v3, 2, v3")
    a("v_and_b32 v30, 7, v1")
    a("v_xor_b32 v30, v30, v3")
    a("v_lshrrev_b32 v3, 3, v1")
    a("v_lshlrev_b32 v3, 10, v3")
    a("v_lshl_add_u32 v26, v30, 4, v3")
    for k in range(1, 4): a(f"v_add_u32 v{26+k}, {k*(8192-1024)}, v26")
    a(f"s_lshl_b32 s47, s{sCG}, 7")
    a(f"s_lshl_b32 s61, s{sQ}, 15")
    a("s_add_u32 s47, s47, s61")

def cw_pieces(a, slot):
    R, row0 = (WO_, slot*128) if slot < 4 else (WOUT_, (slot-4)*128)
    out = []
    for k in range(4):
        def f(k=k):
            if k == 0:
                a(f"s_add_u32 m0, s60, {CSLOT[slot]*16384}")
                a(f"s_add_u32 s46, s47, {row0*1024}")
            a.vmem(f"buffer_load_dwordx4 v{26+k}, {S4(R)}, s46 offen offset:{1024*k} lds", ("CW", slot))
        out.append(f)
    return out

CSLOT = [2, 3, 4, 5, 6, 0, 1, 7, 8, 9]
def b_helper(a, fused):
    if not fused:
        late_srds(a)
        wsp_setup_h(a)
        a(f"s_lshl_b32 s60, s{sQ}, 12")
    cw_setup_h(a)
    a("v_lshlrev_b32 v10, 4, v1")
    a(f"s_lshl_b32 s53, s{sCG}, 1")
    a(f"s_add_u32 s53, s53, s{sKS}")
    a(f"s_mul_i32 s53, s53, {16*12288}")
    a(f"s_mul_i32 s54, s{sQ}, 3072")
    a("s_add_u32 s53, s53, s54")
    a(f"s_add_u32 s53, s53, {WS_Z2N}")
    a(f"s_add_u32 s54, s54, {L_Z2}")
    def z2_group(i):
        a(f"s_add_u32 s61, s{sK0B}, {i}")
        a("s_and_b32 s61, s61, 15")
        a("s_mul_i32 s61, s61, 12288")
        a(f"s_add_u32 m0, s54, {(i % 4)*12288}")
        a("s_add_u32 s61, s61, s53")
        for k in range(3): a.vmem(f"buffer_load_dwordx4 v10, {S4(WS_)}, s61 offen offset:{1024*k} sc1 lds", ("Z", i))
    a.stamp()
    if fused:
        a(f"s_lshl_b32 s62, s{sCG}, 1")
        a(f"s_add_u32 s62, s62, s{sKS}")
        a("s_lshl_b32 s62, s62, 12")
        a(f"s_add_u32 s62, s62, {F1_OFF}")
        a("v_and_b32 v31, 31, v1")
        a("v_lshlrev_b32 v31, 7, v31")
        a(f"v_mov_b32 v30, 0")
        def iss(): a(f"buffer_load_dword v30, v31, {S4(WS_)}, s62 offen sc1")
        def chk():
            a(f"v_cmp_ne_u32 vcc, s{sT}, v30")
            a("s_cmp_eq_u64 vcc, 0")
        spin(a, iss, chk)
        a.vm = []
        a.stamp()
    for i in range(3): z2_group(i)
    a("s_barrier")
    wpre = NWS
    a("v_add_u32 v18, 4096, v8")
    a("v_add_u32 v19, 4096, v9")
    def wsp_pieces(v):
        def f(k):
            if k == 0:
                a(f"s_add_u32 s58, s{sK0B}, {v}")
                a("s_and_b32 s58, s58, 15")
                a("s_lshl_b32 s58, s58, 7")
                a("s_add_u32 s58, s58, s59")
            a(f"s_add_u32 m0, s60, {(v % NWS) * 16384 + 2048*(k>>1)}")
            a("s_nop 0")
            a.vmem(f"buffer_load_dwordx4 v{(8, 9, 18, 19)[k]}, {S4(WSP_)}, s58 offen offset:{1024*(k&1)} lds", ("S", v))
        return [(lambda k=k: f(k)) for k in range(4)]
    bg = []
    for v in range(wpre, 16): bg += [(max(0, v - NWS + 1), p, v) for p in wsp_pieces(v)]
    ncw = opt('cwB', 1)
    for k in range(ncw): bg += [(10 + k, p, 99) for p in cw_pieces(a, k)]
    for i in range(16):
        assert all(x[2] > i for x in bg), i
        a.vmwait(("S", i)); a.vmwait(("Z", i))
        if fused and i == opt('z1step', 11): f2_check(a)
        a("s_barrier")
        if i in (0, 1, 8, 10, 12, 14): a.stamp()
        if fused and i == opt('f2step', 3): flag_store(a, "F2")
        if fused and i == opt('z1step', 11) - 3: f2_issue(a)
        if i + 3 < 16: z2_group(i + 3)
        n = opt('pace', 3)
        while n > 0 and bg and bg[0][0] <= i:
            bg.pop(0)[1](); n -= 1
    a.stamp()
    a("s_barrier")
    for e, p, _ in bg: p()
    if opt('cwdelay', 0): a(f"s_sleep {opt('cwdelay', 0)}")
    for k in range(ncw, 4): a.run(cw_pieces(a, k))

def f2_issue(a):
    a(f"s_lshr_b32 s61, s{sRC}, 1")
    a("s_lshl_b32 s61, s61, 4")
    a(f"s_lshl_b32 s62, s{sRB}, 4")
    a(f"s_add_u32 s62, s62, s{sCG}")
    a("s_add_u32 s62, s62, 8")
    a("v_add_u32 v20, s61, v1")
    a("v_mov_b32 v21, s62")
    a("v_cmp_gt_u32 vcc, 8, v1")
    a("s_nop 1")
    a("v_cndmask_b32 v20, v21, v20, vcc")
    a("v_lshlrev_b32 v20, 7, v20")
    a(f"v_add_u32 v20, {F2_OFF}, v20")
    a.vmem(f"buffer_load_dword v21, v20, {S4(WS_)}, 0 offen sc1", "f2")
def f2_check(a):
    a.vmwait("f2")
    def iss(): a(f"buffer_load_dword v21, v20, {S4(WS_)}, 0 offen sc1")
    def chk():
        a(f"v_cmp_ne_u32 vcc, s{sT}, v21")
        a("s_cmp_eq_u64 vcc, 0")
    spin(a, iss, chk)

L_RED = 0
def c_waddr(a, d):
    a("v_lshrrev_b32 v3, 5, v1")
    a("v_bfe_u32 v30, v1, 2, 2")
    a("v_lshl_add_u32 v3, v3, 2, v30")
    a("v_lshlrev_b32 v3, 7, v3")
    a("v_and_b32 v30, 2, v30")
    a("v_bfe_u32 v31, v1, 4, 1")
    a("v_or_b32 v30, v30, v31")
    a("v_lshl_add_u32 v3, v30, 5, v3")
    a("v_and_b32 v30, 3, v1")
    a(f"v_lshl_add_u32 v{d}, v30, 3, v3")
    a(f"v_xor_b32 v{d+1}, 64, v{d}")

def c_stream(a, nblk, fragreg, tagf, areg, blk0, ring, ACC, first_zero, loads=(), off0=0):
    fr = {}; mf = []
    for b in range(nblk):
        fr[('h', b)] = dict(step=0, reg=fragreg(b), reads=None)
        for nn in range(2):
            off = CSLOT[(blk0 + b) // 8] * 16384 + ((blk0 + b) % 8) * 2048 - off0
            fr[('w', b, nn)] = dict(step=0, reg=None, reads=[(lambda r, hh=hh, nn=nn, off=off: f"ds_read_b64_tr_b16 {V(r+2*hh,2)}, v{areg(off >> 16) + nn} offset:{(off & 0xffff) + hh*1024}") for hh in range(2)])
            mf.append((ACC+16*nn, ('w', b, nn), ('h', b)))
    cnt = [0]
    def op(d, x, y, c):
        b = cnt[0] // 2
        if cnt[0] % 2 == 1 and loads: loads.pop(0)()
        cnt[0] += 1
        a.vmwait(tagf(b))
        return mfma32(d, x, y, c)
    gemm_stream(a, mf, fr, ring, opt('LAC', 4), 0, lambda st: None, first_zero=first_zero, pergap=2, slack=2, op=op, skip_first_barrier=True)

def c_final(a):
    a("s_barrier")
    for k in range(2):
        a(f"ds_read_b128 {V(16+8*k)}, v6 offset:{17408*k}")
        a(f"ds_read_b128 {V(20+8*k)}, v6 offset:{17408*k + 16}")
    a.vmwait("x")
    for w in range(4):
        a(f"v_lshlrev_b32 v{32+2*w}, 16, v{8+w}")
        a(f"v_and_b32 v{33+2*w}, 0xffff0000, v{8+w}")
    a("s_waitcnt lgkmcnt(2)")
    for w in range(4): a(f"v_pk_add_f32 {V(32+2*w,2)}, {V(32+2*w,2)}, {V(16+2*w,2)}")
    a("s_waitcnt lgkmcnt(0)")
    for w in range(4): a(f"v_pk_add_f32 {V(32+2*w,2)}, {V(32+2*w,2)}, {V(24+2*w,2)}")
    for w in range(4): a(f"v_cvt_pk_bf16_f32 v{32+w}, v{32+2*w}, v{33+2*w}")
    a.vmem(f"buffer_store_dwordx4 {V(32)}, v7, {S4(OUT_)}, s47 offen {('', 'sc1', 'nt', 'sc0 sc1', 'sc1 nt')[opt('outf', 0)]}", "out")

def c_final_setup(a):
    a("v_lshrrev_b32 v3, 3, v1")
    a(f"s_lshl_b32 s61, s{sW}, 3")
    a("v_add_u32 v3, s61, v3")
    a("v_and_b32 v30, 7, v1")
    a("v_mul_u32_u24 v6, 272, v3")
    a("v_lshl_add_u32 v6, v30, 5, v6")
    a("v_add_u32 v6, 32768, v6")
    a("v_and_b32 v31, 15, v3")
    a("v_lshlrev_b32 v31, 1, v31")
    a("v_bfe_u32 v7, v3, 4, 1")
    a("v_add_u32 v31, v31, v7")
    a("v_and_b32 v7, 32, v3")
    a("v_add_u32 v31, v31, v7")
    a("v_lshlrev_b32 v31, 10, v31")
    a("v_lshl_add_u32 v7, v30, 4, v31")
    a(f"s_lshl_b32 s47, s{sRC}, 9")
    a(f"s_add_u32 s47, s47, s{sCG}")
    a("s_lshl_b32 s47, s47, 7")
    a.vmem(f"buffer_load_dwordx4 {V(8)}, v7, {S4(X_)}, s47 offen", "x")

def c_compute(a, fused):
    ACC, HF = 32, 80
    ring = list(range(64, 80, 4)) + [12, 16, 20]
    a("s_barrier")
    if not fused: late_srds(a)
    a(f"s_and_b32 s53, s{sQ}, 1")
    a(f"s_lshr_b32 s54, s{sQ}, 1")
    c_waddr(a, 4)
    a("v_add_u32 v252, 0x10000, v4\nv_add_u32 v253, 0x10000, v5")
    a("v_add_u32 v254, 0x20000, v4\nv_add_u32 v255, 0x20000, v5")
    a("v_mov_b32 v26, v4\nv_mov_b32 v27, v5")
    a(f"s_lshl_b32 s55, s{sRC}, 1")
    a("s_add_u32 s55, s55, s53")
    a("s_lshl_b32 s56, s54, 6")
    a("s_add_u32 s56, s56, s55")
    a("s_mul_i32 s56, s56, 49152")
    a(f"s_add_u32 s56, s56, {WS_H}")
    a("v_lshlrev_b32 v28, 4, v1")
    a(f"s_lshl_b32 s61, s{sQ}, 13")
    a("s_add_u32 s61, s61, 32768")
    a("v_add_u32 v29, s61, v28")
    if fused:
        a.vmall()
        a("s_lshl_b32 s61, s57, 1")
        a(f"s_add_u32 s61, s61, s{sKS}")
        a("s_lshl_b32 s61, s61, 3")
        a(f"s_add_u32 s61, s61, s{sCG}")
        a("s_lshl_b32 s61, s61, 7")
        a(f"s_add_u32 s61, s61, {F3_OFF}")
        a(f"v_mov_b32 v30, s{sT}")
        a("v_mov_b32 v31, 0")
        a("s_mov_b64 exec, 1")
        a.vmem(f"buffer_store_dword v30, v31, {S4(WS_)}, s61 offen sc1", "flag")
        a("s_mov_b64 exec, -1")
        a.stamp()
    c_final_setup(a)
    a("v_and_b32 v3, 31, v1")
    a("v_mul_u32_u24 v3, 272, v3")
    a("v_lshrrev_b32 v30, 5, v1")
    a("v_lshl_add_u32 v3, v30, 4, v3")
    a("s_mul_i32 s61, s54, 17408")
    a(f"s_mul_i32 s62, s53, {32*272}")
    a("s_add_u32 s61, s61, s62")
    a("s_add_u32 s61, s61, 32768")
    a("v_add_u32 v4, s61, v3")
    a("s_barrier")
    a("s_barrier")
    for k in range(8): a(f"ds_read_b128 {V(ACC+4*k)}, v29 offset:{1024*k}")
    if fused:
        a("s_lshl_b32 s62, s55, 1")
        a("s_add_u32 s62, s62, s54")
        a("s_lshl_b32 s62, s62, 10")
        a(f"s_add_u32 s62, s62, {F3_OFF}")
        a("v_and_b32 v31, 7, v1")
        a("v_lshlrev_b32 v31, 7, v31")
        a("v_mov_b32 v30, 0")
    a("s_waitcnt lgkmcnt(0)")
    a("s_barrier")
    if fused:
        def iss(): a(f"buffer_load_dword v30, v31, {S4(WS_)}, s62 offen sc1")
        def chk():
            a(f"v_cmp_ne_u32 vcc, s{sT}, v30")
            a("s_cmp_eq_u64 vcc, 0")
        spin(a, iss, chk)
        a.vm = []
    a.stamp()
    def hload(b):
        if b and b % 4 == 0: a("s_add_u32 s56, s56, 4096")
        a.vmem(f"buffer_load_dwordx4 {V(HF+4*b)}, v28, {S4(WS_)}, s56 offen offset:{(b%4)*1024} sc1", ("H", b))
    PH = opt('PH', 14)
    for b in range(PH): hload(b)
    c_stream(a, 43, lambda b: HF+4*b, lambda b: ("H", b), lambda k: (26, 252, 254)[k], 32, ring, ACC, False, [(lambda b=b: hload(b)) for b in range(PH, 43)])
    a.stamp()
    a("s_nop 15")
    for nn in range(2):
        for jj in range(4): a(f"ds_write_b128 v4, {V(ACC+16*nn+4*jj)} offset:{128*nn + 32*jj}")
    a("s_waitcnt lgkmcnt(0)")
    c_final(a)

def c_helper(a, fused):
    ACC, OF = 32, 80
    ring = list(range(64, 80, 4)) + [144, 148, 152, 156]
    if not fused:
        late_srds(a)
        a(f"s_lshl_b32 s60, s{sQ}, 12")
        cw_setup_h(a)
    a(f"s_and_b32 s53, s{sQ}, 1")
    a(f"s_lshr_b32 s54, s{sQ}, 1")
    a(f"s_lshl_b32 s55, s{sRC}, 1")
    a("s_add_u32 s55, s55, s53")
    a("s_lshl_b32 s55, s55, 1")
    a("s_add_u32 s55, s55, s54")
    a("s_lshl_b32 s55, s55, 14")
    a(f"s_add_u32 s55, s55, {WS_O}")
    a("v_lshlrev_b32 v12, 4, v1")
    for b in range(16):
        if b and b % 4 == 0: a("s_add_u32 s55, s55, 4096")
        a.vmem(f"buffer_load_dwordx4 {V(OF+4*b)}, v12, {S4(WS_)}, s55 offen offset:{(b%4)*1024} sc1", ("O", b))
    for sl in range(4, 10): a.run(cw_pieces(a, sl))
    c_final_setup(a)
    c_waddr(a, 4)
    a("s_lshl_b32 s61, s54, 15")
    a("s_add_u32 s61, s61, 32768")
    a("v_add_u32 v4, s61, v4\nv_add_u32 v5, s61, v5")
    a(f"s_lshl_b32 s61, s{sQ}, 13")
    a("s_add_u32 s61, s61, 32768")
    a("v_add_u32 v13, s61, v12")
    a.vmwait(("CW", 3))
    a("s_barrier")
    a.stamp()
    c_stream(a, 16, lambda b: OF+4*b, lambda b: ("O", b), lambda k: 4, 0, ring, ACC, True, off0=32768)
    a.stamp()
    a("s_barrier")
    a("s_nop 15")
    for k in range(8): a(f"ds_write_b128 v13, {V(ACC+4*k)} offset:{1024*k}")
    a.vmwait(("CW", 9))
    a("s_waitcnt lgkmcnt(0)")
    a("s_barrier")
    a("s_barrier")
    c_final(a)

def diag_out(a, base):
    if opt('padto', 0):
        l = a.label("Lpad")
        if opt('leak', -1) >= 0:
            a(f"v_readlane_b32 s61, v2, {opt('leak', 0)}")
            a("s_lshr_b32 s61, s61, 4")
            a(f"s_lshl_b32 s62, s{sW}, 10")
            a("s_add_u32 s62, s62, s2")
            a(f"s_cmp_eq_u32 s62, {opt('leakwg', 200)}")
            a("s_cselect_b32 s61, s61, 0")
            a("s_add_u32 s84, s84, s61")
        a(f"{l}:")
        a("s_sleep 1")
        a("s_memrealtime s[86:87]")
        a("s_waitcnt lgkmcnt(0)")
        a(f"s_sub_u32 s86, s86, s{sT if opt('padT', 0) else 84}")
        a(f"s_cmp_lt_i32 s86, {opt('padto', 0)}")
        a(f"s_cbranch_scc1 {l}")
    if opt('skew', 0):
        a(f"s_sub_u32 s61, s84, s{sT}")
        a("s_add_u32 s61, s61, 100000")
        a("v_mov_b32 v4, s61")
        a("v_mov_b32 v5, 8")
        a("s_mov_b64 exec, 1")
        a(f"buffer_atomic_umax v4, v5, {S4(DBG_)}, 0 offen")
        a("s_sub_u32 s61, 200000, s61")
        a("v_mov_b32 v4, s61")
        a(f"buffer_atomic_umax v4, v5, {S4(DBG_)}, 0 offen offset:4")
        a("s_mov_b64 exec, -1")
    if not a.diag: return
    a("v_writelane_b32 v2, s84, 62")
    a("s_memrealtime s[86:87]")
    a("s_waitcnt lgkmcnt(0)")
    a("v_writelane_b32 v2, s86, 63")
    a("s_lshl_b32 s61, s2, 3")
    a(f"s_add_u32 s61, s61, s{sW}")
    a("s_lshl_b32 s61, s61, 8")
    a(f"s_add_u32 s61, s61, {base}")
    a("v_lshlrev_b32 v3, 2, v1")
    a(f"buffer_store_dword v2, v3, {S4(WS_)}, s61 offen")
    if opt('hdbg', -1) >= 0:
        l = a.label("Lhd")
        a(f"s_cmp_lg_u32 s2, {opt('hdbg', 0)}")
        a(f"s_cbranch_scc1 {l}")
        a(f"s_cmp_lg_u32 s{sW}, 0")
        a(f"s_cbranch_scc1 {l}")
        a("s_sub_u32 s86, s86, s84")
        a("v_mov_b32 v4, 0")
        a("v_writelane_b32 v4, s86, 1")
        for k, src in enumerate((0, 1, 3, 4, 5, 6, 7, 10, 11, 17, 18, 19, 20, 22)):
            a(f"v_readlane_b32 s61, v2, {src}")
            a("s_nop 3")
            a(f"v_writelane_b32 v4, s61, {2+k}")
        a("s_mov_b64 exec, 0xfffe")
        a(f"buffer_store_dword v4, v3, {S4(DBG_)}, 0 offen")
        a(f"{l}:")

def simple_kernel(name, diag, idx, comp, helper):
    a = G(diag)
    prologue(a, f"L{name}_end")
    a(f"s_cmp_ge_u32 s{sW}, 4")
    a(f"s_cbranch_scc1 L{name}_h")
    for k, fn in enumerate((comp, helper)):
        if k: a(f"L{name}_h:")
        a.vm = []; a.nst = 0
        fn(a)
        a.vmall(); a.stamp()
        diag_out(a, WS_DBG + idx*0x80000)
        a("s_endpgm")
    a(f"L{name}_end:")
    a("s_endpgm")
    return a.text()

def by_type(fq, fz, lab):
    def f(a):
        a(f"s_cmp_lg_u32 s{sTYP}, 0")
        a(f"s_cbranch_scc1 {lab}_z")
        fq(a, False)
        a.vmall()
        a(f"s_branch {lab}_e")
        n = a.nst
        a(f"{lab}_z:")
        a.vm = []; a.nst = 0
        fz(a, False)
        a(f"{lab}_e:")
        a.nst = max(a.nst, n)
    return f

def multi(diag):
    ka = simple_kernel("A", diag, 0, by_type(aq_compute, az_compute, "LAc"), by_type(aq_helper, az_helper, "LAh"))
    def bc(a): late_srds(a); b_compute(a, False)
    kb = simple_kernel("B", diag, 1, bc, lambda a: b_helper(a, False))
    kc = simple_kernel("C", diag, 2, lambda a: c_compute(a, False), lambda a: c_helper(a, False))
    return [("a_kernel", ka), ("b_kernel", kb), ("c_kernel", kc)]

def fused_kernel(diag):
    a = G(diag)
    prologue(a, "LF_end")
    a(f"s_cmp_ge_u32 s{sW}, 4")
    a("s_cbranch_scc1 LF_h")
    if opt('cpf', 1):
        a("s_getpc_b64 s[62:63]")
        a("LF_pc:")
        a("s_lshr_b32 s61, s2, 3")
        a("s_lshl_b32 s61, s61, 2")
        a(f"s_add_u32 s61, s61, s{sQ}")
        a("s_lshl_b32 s61, s61, 3")
        a("v_add_u32 v3, s61, v1")
        a("v_lshlrev_b32 v3, 7, v3")
        a("v_min_u32 v3, LF_end - LF_pc, v3")
        a(f"s_mov_b32 m0, {L_MISC}")
        a("s_mov_b64 exec, 0xff")
        a("global_load_lds_dword v3, s[62:63]")
        a("s_mov_b64 exec, -1")
    late_srds(a)
    b_early(a)
    a(f"s_cmp_lg_u32 s{sTYP}, 0")
    a("s_cbranch_scc1 LF_cz")
    aq_compute(a, True)
    n = a.nst
    a("s_branch LF_cb")
    a("LF_cz:")
    a.vm = []; a.nst = 0
    az_compute(a, True)
    a("LF_cb:")
    a.vm = []; a.nst = 10
    b_compute(a, True)
    c_compute(a, True)
    a.vmall(); a.stamp()
    diag_out(a, WS_DBG)
    a("s_endpgm")
    a("LF_h:")
    a.vm = []; a.nst = 0
    a(f"s_cmp_lg_u32 s{sTYP}, 0")
    a("s_cbranch_scc1 LF_hz")
    aq_helper(a, True)
    nonce_check(a)
    a("s_branch LF_hb")
    a("LF_hz:")
    a.vm = []; a.nst = 0
    az_helper(a, True)
    a("LF_hb:")
    a.vm = []; a.nst = 10
    b_helper(a, True)
    c_helper(a, True)
    a.vmall(); a.stamp()
    diag_out(a, WS_DBG)
    a("LF_end:")
    a("s_endpgm")
    return [(KNAME, a.text())]

if __name__ == "__main__":
    diag = "diag" in sys.argv
    for x in sys.argv[2:]:
        if "=" in x:
            k, v = x.split("="); OPT[k] = int(v)
    ks = multi(diag) if 'multi' in sys.argv else fused_kernel(diag)
    hdr = open("cdna_kernels/" + KNAME[:-7] + ".s.ref").read().split("; Override")[0]
    txt = file_text([(n, 256, 512, LDS_BYTES) for n, t in ks], [(n, t, 256, 102, 256) for n, t in ks])
    if len(ks) == 1: txt = txt.replace(f"; @launch kernel={KNAME} ", "; @launch ")
    txt = "\n".join(l.strip() if l.startswith("    ") else l for l in txt.split("\n"))
    open(sys.argv[1], "w").write(hdr + txt)
```

```python
import sys, math, struct, os
from asmgen import Asm, KA, KNAME, file_text
from layout import *

OOB = 0x10000000
LOG2E = 1.4426950408889634
def f2u(x): return struct.unpack("<I", struct.pack("<f", x))[0]
C1 = 2.0 * math.sqrt(2.0 / math.pi) * LOG2E
C2 = C1 * 0.044715
NEG = f2u(-1e30)
OPT = {}
F1_OFF, F2_OFF, F3_OFF = WS_FLG, WS_FLG + 512*128, WS_FLG + 768*128
def opt(k, d): return OPT.get(k, d)
def ZOFF(i): return (i % NZS)*12288
def ZOF2(i): return ZOFF(i) % 49152
def NT(k): return 'nt ' if opt('nt' + k, 0) else ''

sW, sQ, sRB, sGRP = 3, 4, 6, 7
X_, WA_, WS_, WSP_, WO_, WOUT_, OUT_, BSP_, DBG_ = 8, 12, 16, 20, 24, 28, 32, 36, 40
sK0A, sTYP = 44, 45
sKS, sCG, sK0B, sT = 48, 50, 51, 52
sRC = 49
def S4(b): return f"s[{b}:{b+3}]"
def V(b, n=4): return f"v[{b}:{b+n-1}]" if n > 1 else f"v{b}"

L_TAB = 156*1024
TP = 640
L_CW  = L_TAB + 2560
L_MISC = L_TAB + 3328
L_XCH = 148*1024
L_PARK = 112*1024
NWS = int(os.environ.get('NWS', 7))
NZS = {7: 4, 6: 5, 5: 6}[NWS]
L_Z2 = 160*1024 - NZS*12288
L_RC = L_TAB + 3584
LDS_BYTES = 160*1024

class G(Asm):
    UID = [0]
    def label(self, base="L"):
        G.UID[0] += 1
        return f"{base}_{G.UID[0]}"
    def __init__(self, diag=False):
        super().__init__()
        self.vm = []; self.diag = diag; self.nst = 0
    def vmem(self, s, tag=None):
        self(s); self.vm.append(tag)
    def has(self, tag): return any(t == tag for t in self.vm)
    def vmwait(self, tag):
        if not self.has(tag): return
        idx = max(i for i, t in enumerate(self.vm) if t == tag)
        n = len(self.vm) - 1 - idx
        n = min(n, 63)
        self(f"s_waitcnt vmcnt({n})")
        self.vm = self.vm[idx+1:]
    def vmall(self):
        self("s_waitcnt vmcnt(0)"); self.vm = []
    def stamp(self):
        if not self.diag: return
        self("s_memtime s[82:83]")
        self("s_waitcnt lgkmcnt(0)")
        self("s_sub_u32 s82, s82, s80")
        self(f"v_writelane_b32 v2, s82, {self.nst}")
        self.nst += 1
    def run(self, fs):
        for f in fs: f() if callable(f) else self(f)

def mfma(d, a, b, c=None):
    c = V(d) if c is None else c
    return f"v_mfma_f32_16x16x32_bf16 {V(d)}, {V(a)}, {V(b)}, {c}"
def mfma16(d, a, b, c=None):
    c = V(d) if c is None else c
    return f"v_mfma_f32_16x16x16_bf16 {V(d)}, {V(a,2)}, {V(b,2)}, {c}"

def gemm_stream(a, mf, frags, ring, LA, cover, pre_barrier, hooks=None, first_zero=True, stamps=(), nobar=0, pergap=1, slack=4, op=None, skip_first_barrier=False, extras=None):
    hooks = hooks or {}
    extra_max = opt('xmax', 1)
    first, last = {}, {}
    for i, (d, x, y) in enumerate(mf):
        for f in (x, y):
            first.setdefault(f, i); last[f] = i
    order = sorted([f for f in first if frags[f].get('reads')], key=lambda f: (frags[f]['step'], first[f]))
    rl = [(f, k) for f in order for k in range(len(frags[f]['reads']))]
    reg = {f: frags[f]['reg'] for f in first if frags[f].get('reg') is not None}
    owner = {r: None for r in ring}
    ptr = 0; cur = (0 if skip_first_barrier else -1); out = []; done = set(f for f in first if not frags[f].get('reads'))
    since = 10**9
    seen = set()
    def issue_one(i, force):
        nonlocal ptr, cur, since, out
        f, k = rl[ptr]
        st = frags[f]['step']
        if st > cur:
            if not force and since < cover: return False
            pre_barrier(st)
            if not (nobar and st > 0):
                if out:
                    a("s_waitcnt lgkmcnt(0)")
                    for g_, _ in out: done.add(g_)
                    out = []
                a("s_barrier")
            cur = st
            if st in stamps: a.stamp()
            if st in hooks: hooks[st]()
        if k == 0 and f not in reg:
            free = [r for r in ring if owner[r] is None or last[owner[r]] < i]
            if not free:
                assert not force, "ring too small"
                return False
            r = min(free, key=lambda r: -1 if owner[r] is None else last[owner[r]])
            reg[f] = r; owner[r] = f
        if len(out) >= 14 and not force: return False
        a(frags[f]['reads'][k](reg[f]))
        out.append((f, k)); ptr += 1; since = 0
        return True
    for i, (d, x, y) in enumerate(mf):
        need = [f for f in (x, y) if f not in done]
        while ptr < len(rl) and any(rl[j][0] in need for j in range(ptr, len(rl)) if first[rl[j][0]] <= i):
            issue_one(i, True)
        n = 0
        while ptr < len(rl) and first[rl[ptr][0]] <= i + LA:
            lim = 12 if i == 0 else (pergap + 1 if first[rl[ptr][0]] <= i + LA - slack else pergap)
            if n >= lim: break
            if not issue_one(i, False): break
            n += 1
        if extras and n <= extra_max and extras[0][0] <= cur and extras[0][2](done):
            extras.pop(0)[1]()
        need = [f for f in (x, y) if f not in done]
        if need:
            idx = max(j for j, (f, k) in enumerate(out) if f in need)
            a(f"s_waitcnt lgkmcnt({len(out) - 1 - idx})")
            for f, k in out[:idx+1]:
                if k == len(frags[f]['reads']) - 1: done.add(f)
            out = out[idx+1:]
        c = None
        if first_zero and d not in seen:
            c = "0"; seen.add(d)
        a((op or mfma)(d, reg[x], reg[y], c))
        since += 1
    assert ptr == len(rl)

def srd(a, d, p, nbytes):
    a(f"s_mov_b32 s{d}, s{p}")
    a(f"s_and_b32 s{d+1}, s{p+1}, 0xffff")
    a(f"s_mov_b32 s{d+2}, {nbytes:#x}")
    a(f"s_mov_b32 s{d+3}, 0x20000")

def prologue(a, endlabel):
    if a.diag:
        a("s_memtime s[80:81]")
    a("s_memrealtime s[84:85]")
    a("s_cmp_ge_u32 s2, 256")
    a(f"s_cbranch_scc1 {endlabel}")
    a("s_load_dwordx16 s[64:79], s[0:1], 0")
    a("s_load_dwordx4 s[88:91], s[0:1], 64")
    a("s_load_dwordx2 s[92:93], s[0:1], 80")
    a("v_lshrrev_b32 v3, 6, v0")
    a("v_and_b32 v1, 63, v0")
    a("v_mov_b32 v2, 0")
    a(f"v_readfirstlane_b32 s{sW}, v3")
    a("s_and_b32 s53, s2, 7")
    a("s_lshr_b32 s54, s2, 3")
    a("s_lshr_b32 s55, s53, 1")
    a("s_and_b32 s56, s54, 3")
    a(f"s_lshr_b32 s{sCG}, s54, 2")
    a(f"s_lshl_b32 s{sRB}, s55, 2")
    a(f"s_add_u32 s{sRB}, s{sRB}, s56")
    a(f"s_and_b32 s{sKS}, s53, 1")
    a(f"s_lshl_b32 s{sRC}, s53, 2")
    a(f"s_add_u32 s{sRC}, s{sRC}, s56")
    a(f"s_lshl_b32 s{sGRP}, s{sKS}, 2")
    a(f"s_and_b32 s58, s{sCG}, 3")
    a(f"s_add_u32 s{sGRP}, s{sGRP}, s58")
    a(f"s_lshr_b32 s{sTYP}, s{sCG}, 2")
    if opt('rotAm', 0) == 0:
        a(f"s_lshl_b32 s{sK0A}, s56, 1")
        a(f"s_add_u32 s{sK0A}, s{sK0A}, s{sCG}")
        a(f"s_add_u32 s{sK0A}, s{sK0A}, s55")
    else:
        a(f"s_lshl_b32 s{sK0A}, s{sKS}, 1")
        a(f"s_add_u32 s{sK0A}, s{sK0A}, s55")
        a(f"s_lshl_b32 s{sK0A}, s{sK0A}, 1")
        if opt('rotAm', 0) == 2:
            a("s_and_b32 s58, s56, 1")
            a(f"s_add_u32 s{sK0A}, s{sK0A}, s58")
    a(f"s_and_b32 s{sK0A}, s{sK0A}, {opt('rotA', 7)}")
    if opt('rotBm', 1) == 0:
        a(f"s_lshl_b32 s{sK0B}, s{sCG}, 1")
    else:
        a(f"s_lshl_b32 s{sK0B}, s{sCG}, 1")
        a(f"s_add_u32 s{sK0B}, s{sK0B}, s{sTYP}")
        a(f"s_lshl_b32 s{sK0B}, s{sK0B}, 1")
    a(f"s_add_u32 s{sK0B}, s{sK0B}, s{sRB}")
    a(f"s_and_b32 s{sK0B}, s{sK0B}, {opt('rotB', 15)}")
    a(f"s_and_b32 s{sQ}, s{sW}, 3")
    a("s_waitcnt lgkmcnt(0)")
    srd(a, X_, 64, S*D*2)
    srd(a, WS_, 92, 268435456)
    srd(a, DBG_, 90, 256)

def late_srds(a):
    srd(a, WSP_, 74, S*S*2)
    srd(a, WO_, 68, D*D*2)
    srd(a, WOUT_, 78, FH*D*2)
    srd(a, OUT_, 88, S*D*2)
    srd(a, BSP_, 76, S*2)

def rowtile_voffs(a, d0, d1, sh, t0=3, t1=30, t2=31):
    a(f"v_lshrrev_b32 v{t0}, 3, v1")
    a(f"v_lshlrev_b32 v{t0}, {sh+1}, v{t0}")
    a(f"v_lshrrev_b32 v{t1}, 4, v1")
    a(f"v_and_b32 v{t2}, 7, v1")
    a(f"v_xor_b32 v{t1}, v{t1}, v{t2}")
    a(f"v_lshl_add_u32 v{d0}, v{t1}, 4, v{t0}")
    a(f"v_xor_b32 v{t1}, 4, v{t1}")
    a(f"v_lshl_add_u32 v{d1}, v{t1}, 4, v{t0}")
    a(f"v_add_u32 v{d1}, {(16 << sh) - 1024}, v{d1}")

def rowfrag_addr(a, d0, d1, srow, t0=3, t1=30, t2=31):
    a(f"v_and_b32 v{t0}, 15, v1")
    a(f"v_lshrrev_b32 v{t1}, 4, v1")
    a(f"v_lshrrev_b32 v{t2}, 1, v{t0}")
    a(f"v_xor_b32 v{t1}, v{t1}, v{t2}")
    a(f"v_lshlrev_b32 v{t0}, 7, v{t0}")
    a(f"v_add_u32 v{t0}, {srow}, v{t0}")
    a(f"v_lshl_add_u32 v{d0}, v{t1}, 4, v{t0}")
    a(f"v_xor_b32 v{t1}, 4, v{t1}")
    a(f"v_lshl_add_u32 v{d1}, v{t1}, 4, v{t0}")

def zw_addr(a, de, do, t0=3, t1=30, t2=31):
    a(f"v_lshrrev_b32 v{t0}, 4, v1")
    a(f"v_bfe_u32 v{t1}, v1, 2, 2")
    a(f"v_lshl_add_u32 v{t1}, v{t0}, 3, v{t1}")
    a(f"v_mul_u32_u24 v{t1}, 192, v{t1}")
    a(f"v_and_b32 v{t2}, 3, v1")
    a(f"v_lshl_add_u32 v{t1}, v{t2}, 3, v{t1}")
    a(f"v_and_b32 v{t0}, 1, v{t0}")
    a(f"v_lshlrev_b32 v{t0}, 5, v{t0}")
    a(f"v_add_u32 v{de}, v{t1}, v{t0}")
    a(f"v_sub_u32 v{do}, v{t1}, v{t0}")

def qw_addr(a, d, t0=3, t1=30, t2=31):
    a(f"v_lshrrev_b32 v{t0}, 4, v1")
    a(f"v_mul_u32_u24 v{t1}, 3072, v{t0}")
    a(f"v_bfe_u32 v{t2}, v1, 2, 2")
    a(f"v_lshl_add_u32 v{t1}, v{t2}, 7, v{t1}")
    a(f"v_and_b32 v{d}, 3, v1")
    a(f"v_lshl_add_u32 v{t1}, v{d}, 3, v{t1}")
    a(f"v_lshrrev_b32 v{t2}, 1, v{t2}")
    a(f"v_and_b32 v{t0}, 1, v{t0}")
    a(f"v_lshl_or_b32 v{t2}, v{t0}, 1, v{t2}")
    a(f"v_lshl_add_u32 v{d}, v{t2}, 5, v{t1}")

ZSLOT = [56*1024, 84*1024, 112*1024, 0, 28*1024]
W1SL = [0, 12288, 28672, 40960, 57344, 69632, 86016, 98304]
QSLOT = [86016, 43008, 0]

def gelu_core(a, xs, ts, A3, A1, RI):
    for k, (x, t) in enumerate(zip(xs, ts)): a(f"v_pk_mul_f32 {V(t,2)}, {V(x,2)}, {V(x,2)}")
    for k, (x, t) in enumerate(zip(xs, ts)): a(f"v_pk_fma_f32 {V(t,2)}, {V(t,2)}, {A3[k][0]}, {A1[k][0]} {A3[k][1]}")
    for k, (x, t) in enumerate(zip(xs, ts)): a(f"v_pk_mul_f32 {V(t,2)}, {V(t,2)}, {V(x,2)}")
    for k, (x, t) in enumerate(zip(xs, ts)):
        a(f"v_exp_f32 v{t}, v{t}"); a(f"v_exp_f32 v{t+1}, v{t+1}")
    for k, (x, t) in enumerate(zip(xs, ts)): a(f"v_pk_fma_f32 {V(t,2)}, {V(t,2)}, {RI[k][0]}, {RI[k][0]} {RI[k][1]}")
    for k, (x, t) in enumerate(zip(xs, ts)):
        a(f"v_rcp_f32 v{t}, v{t}"); a(f"v_rcp_f32 v{t+1}, v{t+1}")
    for k, (x, t) in enumerate(zip(xs, ts)): a(f"v_pk_mul_f32 {V(x,2)}, {V(x,2)}, {V(t,2)}")

def zcount(a, dG, dN):
    a(f"s_mul_i32 s{dG}, s{sGRP}, 6")
    a(f"s_min_u32 s{dG}, s{dG}, 40")
    a(f"s_sub_u32 s{dN}, 40, s{dG}")
    a(f"s_min_u32 s{dN}, s{dN}, 6")
    a(f"s_cmp_eq_u32 s{sGRP}, 7")
    a(f"s_cselect_b32 s{dN}, 3, s{dN}")

def az_compute(a, fused):
    ACC, XR = 32, 128
    ONES, SUM, GRM, CWA = 28, 80, 88, 96
    ring = list(range(80, 96, 4)) + list(range(104, 128, 4))
    a(f"s_lshl_b32 s61, s{sQ}, 12")
    rowfrag_addr(a, 10, 11, "s61")
    zw_addr(a, 12, 13)
    a(f"s_bitcmp1_b32 s{sQ}, 0")
    a("s_cselect_b64 vcc, -1, 0")
    a("v_cndmask_b32 v18, v12, v13, vcc")
    a(f"s_lshl_b32 s61, s{sQ}, 5")
    a(f"s_and_b32 s62, s{sQ}, 1")
    a("s_lshl_b32 s62, s62, 5")
    a("s_add_u32 s62, s62, 128")
    a("v_add_u32 v19, s62, v18")
    a("v_add_u32 v18, s61, v18")
    for r in range(4): a(f"v_mov_b32 v{ONES+r}, 0x3f803f80")
    zcount(a, 55, 58)
    a(f"s_lshl_b32 s61, s{sQ}, 7")
    a(f"s_add_u32 s61, s61, {L_TAB}")
    a("v_and_b32 v3, 0x30, v1")
    a("v_add_u32 v4, s61, v3")
    a(f"v_add_u32 v7, {L_CW + 384}, v3")
    a("v_and_b32 v3, 15, v1")
    a("v_lshl_add_u32 v5, v3, 2, s61")
    a("v_lshlrev_b32 v3, 2, v3")
    a(f"v_add_u32 v6, {L_CW}, v3")
    a("v_lshlrev_b32 v8, 4, v1")
    a("v_lshlrev_b32 v9, 3, v1")
    a(f"s_lshl_b32 s61, s{sQ}, 6")
    a(f"s_and_b32 s62, s{sQ}, 1")
    a("s_lshl_b32 s62, s62, 6")
    a("s_add_u32 s62, s62, 256")
    a("v_add_u32 v22, s61, v6")
    a("v_add_u32 v23, s62, v6")
    a("v_add_u32 v24, s61, v7")
    a("v_add_u32 v25, s62, v7")
    a(f"s_lshl_b32 s57, s{sRB}, 2")
    a(f"s_add_u32 s57, s57, s{sQ}")
    a(f"s_lshl_b32 s53, s{sGRP}, 6")
    a("s_add_u32 s53, s53, s57")
    a("s_mul_i32 s53, s53, 6144")
    a(f"s_add_u32 s53, s53, {WS_Z2N}")
    a("s_mul_i32 s54, s57, 48")
    a("s_add_u32 s54, s54, s55")
    a("s_lshl_b32 s54, s54, 10")
    a(f"s_add_u32 s54, s54, {WS_Z1}")
    a(f"s_lshl_b32 s56, s{sRB}, 3")
    a(f"s_add_u32 s56, s56, s{sGRP}")
    a("s_lshl_b32 s56, s56, 2")
    a(f"s_add_u32 s56, s56, s{sQ}")
    a("s_lshl_b32 s56, s56, 9")
    a(f"s_add_u32 s56, s56, {WS_ST2}")
    def xreg(s, kk, T): return XR + ((s*2 + kk)*2 + T)*4
    def wfrag(step, kk, j):
        return dict(step=step, reg=None, reads=[(lambda r, hh=hh: f"ds_read_b64_tr_b16 {V(r+2*hh,2)}, v{16+(j&1)} offset:{j*32 + kk*6144 + hh*768}") for hh in range(2)])
    def cfrag(step, kk, t):
        return dict(step=step, reg=None, reads=[(lambda r, hh=hh: f"ds_read_b64_tr_b16 {V(r+2*hh,2)}, v{20+t} offset:{kk*6144 + hh*768}") for hh in range(2)])
    fr = {}; mf = []
    for s in range(8):
        for kk in range(2):
            for T in range(2):
                fr[('x', s, kk, T)] = dict(step=s, reg=xreg(s, kk, T), reads=[lambda r, kk=kk, T=T: f"ds_read_b128 {V(r)}, v{14+kk} offset:{T*2048}"])
            for j in range(6):
                fr[('w', s, kk, j)] = wfrag(s, kk, j)
                for T in range(2): mf.append((ACC + (j*2+T)*4, ('x', s, kk, T), ('w', s, kk, j)))
                if j in (2, 5):
                    t = j // 3
                    fr[('c', s, kk, t)] = cfrag(s, kk, t)
                    mf.append((CWA+4*t, 'ones', ('c', s, kk, t)))
    fr['ones'] = dict(step=0, reg=ONES, reads=None)
    def pre1(s):
        for r in range(2): a(f"v_add_u32 v{14+r}, {ZSLOT[s % 5]}, v{10+r}")
        for r in range(2): a(f"v_add_u32 v{16+r}, {ZSLOT[s % 5] + 16384}, v{12+r}")
        for r in range(2): a(f"v_add_u32 v{20+r}, {ZSLOT[s % 5] + 16384}, v{18+r}")
    l2_setup(a, 26, True)
    ln1_publish(a)
    for r in range(2, 4): a(f"v_mov_b32 v{ONES+r}, 0x3f803f80")
    a.stamp()
    gemm_stream(a, mf, fr, ring, opt('LA', 10), opt('cover', 3), pre1, stamps=(0, 1, 4), hooks=l2_hooks(a, 26, True))
    a.stamp()
    a("s_nop 6")
    a(f"ds_write_b32 v22, v{CWA}")
    a(f"ds_write_b32 v23, v{CWA+4}")
    a("s_waitcnt lgkmcnt(0)")
    a("s_barrier")
    for T in range(2):
        for k in range(4): a(f"ds_read_b128 {V(80+16*T+4*k)}, v4 offset:{64*T + TP*k}")
    CWR = [10, 11, 14, 15, 16, 17]
    for j in range(6): a(f"ds_read_b32 v{CWR[j]}, v6 offset:{64*j}")
    a(f"s_mul_i32 s61, s{sQ}, 6144")
    a(f"s_add_u32 s61, s61, {L_PARK}")
    a("v_add_u32 v30, s61, v8")
    a("s_waitcnt lgkmcnt(0)")
    for j in range(6):
        skip = a.label("Lz2skip")
        a(f"s_cmp_gt_u32 s58, {j}")
        a(f"s_cbranch_scc0 {skip}")
        xs = [ACC + (j*2+T)*4 + 2*p for T in range(2) for p in range(2)]
        tb = [80 + 16*T + 2*p for T in range(2) for p in range(2)]
        sel = f"op_sel:[0,{j&1},0] op_sel_hi:[1,{j&1},1]"
        for x, t in zip(xs, tb): a(f"v_pk_fma_f32 {V(x,2)}, {V(t,2)}, {V(CWR[j&~1],2)}, {V(x,2)} {sel} neg_lo:[1,0,0] neg_hi:[1,0,0]")
        gelu_core(a, xs, [20, 22, 26, 28], [(V(t+4,2), "") for t in tb], [(V(t+8,2), "") for t in tb], [(V(t+12,2), "") for t in tb])
        if j == 0:
            for k, x in enumerate(xs): a(f"v_pk_add_f32 {V(112+2*k,2)}, {V(x,2)}, 0 op_sel_hi:[1,0]")
            for k, x in enumerate(xs): a(f"v_pk_mul_f32 {V(120+2*k,2)}, {V(x,2)}, {V(x,2)}")
        else:
            for k, x in enumerate(xs): a(f"v_pk_add_f32 {V(112+2*k,2)}, {V(112+2*k,2)}, {V(x,2)}")
            for k, x in enumerate(xs): a(f"v_pk_fma_f32 {V(120+2*k,2)}, {V(x,2)}, {V(x,2)}, {V(120+2*k,2)}")
        e, o = ACC + j*8, ACC + j*8 + 4
        for i in range(4): a(f"v_cvt_pk_bf16_f32 v{e+i}, v{e+i}, v{o+i}")
        a(f"ds_write_b128 v30, {V(e)} offset:{j*1024}")
        a(f"{skip}:")
    def val(i, T, st): return 112 + 8*st + 4*T + i
    for st in range(2):
        for T in range(2):
            for i in range(2):
                A, B = val(i, T, st), val(i+2, T, st)
                a(f"v_add_f32_dpp v{A}, v{A}, v{A} row_ror:8 row_mask:0xf bank_mask:0x3")
                a(f"v_add_f32_dpp v{A}, v{B}, v{B} row_ror:8 row_mask:0xf bank_mask:0xc")
    a("s_mov_b32 s60, 0x22222222\ns_mov_b32 s61, 0x22222222")
    for st in range(2):
        for T in range(2):
            A, B = val(0, T, st), val(1, T, st)
            a(f"v_add_f32_dpp v{A}, v{A}, v{A} row_half_mirror row_mask:0xf bank_mask:0x5")
            a(f"v_add_f32_dpp v{A}, v{B}, v{B} row_half_mirror row_mask:0xf bank_mask:0xa")
    a("s_mov_b32 s62, 0x44444444\ns_mov_b32 s63, 0x44444444")
    for qp in ("[1,0,3,2]", "[2,3,0,1]"):
        for st in range(2):
            for T in range(2):
                A = val(0, T, st)
                a(f"v_add_f32_dpp v{A}, v{A}, v{A} quad_perm:{qp} row_mask:0xf bank_mask:0xf")
    a(f"v_cndmask_b32 v112, v{val(0,0,0)}, v{val(0,0,1)}, s[60:61]")
    a("s_mov_b32 s60, 0x88888888\ns_mov_b32 s61, 0x88888888")
    a(f"v_cndmask_b32 v112, v112, v{val(0,1,0)}, s[62:63]")
    a(f"v_cndmask_b32 v112, v112, v{val(0,1,1)}, s[60:61]")
    a(f"v_mov_b32 v113, s{sT}")
    a.vmem(f"buffer_store_dwordx2 {V(112,2)}, v9, {S4(WS_)}, s56 offen sc1", "st")
    a.stamp()
    fr = {}; mf = []
    for u in range(8):
        for kk in range(2):
            for T in range(2): fr[('x', u, kk, T)] = dict(step=u, reg=xreg(u, kk, T), reads=None)
            for j in range(6):
                fr[('w', u, kk, j)] = wfrag(u, kk, j)
                for T in range(2): mf.append((ACC + (j*2+T)*4, ('w', u, kk, j), ('x', u, kk, T)))
                if j in (2, 5):
                    t = j // 3
                    fr[('c', u, kk, t)] = cfrag(u, kk, t)
                    mf.append((120+4*t, ('c', u, kk, t), 'ones'))
    fr['ones'] = dict(step=0, reg=ONES, reads=None)
    for r in range(4): a(f"v_mov_b32 v{ONES+r}, 0x3f803f80")
    a("s_waitcnt lgkmcnt(0)")
    def pre2(u):
        for r in range(2): a(f"v_add_u32 v{16+r}, {W1SL[u]}, v{12+r}")
        for r in range(2): a(f"v_add_u32 v{20+r}, {W1SL[u]}, v{18+r}")
    ring2 = list(range(80, 112, 4))
    gemm_stream(a, mf, fr, ring2, opt('LA', 10), opt('cover', 3), pre2, nobar=1)
    a.stamp()
    for T in range(2):
        for k in range(4): a(f"ds_read_b32 v{104+4*k+2*T}, v5 offset:{64*T + TP*k}")
    a("s_mov_b32 exec_lo, 0x00010001\ns_mov_b32 exec_hi, 0x00010001")
    a(f"ds_write_b128 v24, {V(120)}")
    a(f"ds_write_b128 v25, {V(124)}")
    a("s_mov_b64 exec, -1")
    a("s_waitcnt lgkmcnt(0)")
    a.vmall()
    a("s_barrier")
    for j in range(6): a(f"ds_read_b128 {V(80+4*j)}, v7 offset:{64*j}")
    a("s_waitcnt lgkmcnt(0)")
    for j in range(6):
        skip = a.label("Lz1skip")
        a(f"s_cmp_gt_u32 s58, {j}")
        a(f"s_cselect_b32 s61, s54, {OOB}")
        a(f"s_cbranch_scc0 {skip}")
        xs = [ACC + (j*2+T)*4 + 2*p for T in range(2) for p in range(2)]
        for k, x in enumerate(xs): a(f"v_pk_fma_f32 {V(x,2)}, {V(80+4*j+2*(k%2),2)}, {V(104+2*(k//2),2)}, {V(x,2)} op_sel_hi:[1,0,1] neg_lo:[1,0,0] neg_hi:[1,0,0]")
        b = "op_sel_hi:[1,0,0]"
        gelu_core(a, xs, [20, 22, 26, 28], [(V(108+2*(k//2),2), b) for k in range(4)], [(V(112+2*(k//2),2), b) for k in range(4)], [(V(116+2*(k//2),2), b) for k in range(4)])
        e = ACC + j*8
        for k, x in enumerate(xs): a(f"v_cvt_pk_bf16_f32 v{e+k}, v{x}, v{x+1}")
        a("s_nop 1")
        for p in range(2): a(f"v_permlane32_swap_b32 v{e+p}, v{e+2+p}")
        a(f"{skip}:")
        if j >= 4: a("s_add_u32 s61, s61, 4096")
        a.vmem(f"buffer_store_dwordx4 {V(e)}, v8, {S4(WS_)}, s61 offen offset:{(j%4)*1024} sc1", "z1")
    a.stamp()

def red_g(a, regs, op="v_add_f32", tmp=60):
    n = len(regs)
    for sw in ("v_permlane32_swap_b32", "v_permlane16_swap_b32"):
        for k, r in enumerate(regs): a(f"v_mov_b32 v{tmp+k}, v{r}")
        if n < 3: a("s_nop 1")
        for k, r in enumerate(regs): a(f"{sw} v{r}, v{tmp+k}")
        for k, r in enumerate(regs): a(f"{op} v{r}, v{r}, v{tmp+k}")

def wsp_setup_h(a):
    rowtile_voffs(a, 8, 9, 12)
    a(f"s_lshl_b32 s59, s{sRB}, 2")
    a(f"s_add_u32 s59, s59, s{sQ}")
    a("s_lshl_b32 s59, s59, 17")
    a(f"s_lshl_b32 s61, s{sKS}, 11")
    a("s_add_u32 s59, s59, s61")

def wsp_group_h(a, v):
    a(f"s_add_u32 s61, s{sK0B}, {v}")
    a("s_and_b32 s61, s61, 15")
    a("s_lshl_b32 s61, s61, 7")
    a("s_add_u32 s61, s61, s59")
    a(f"s_add_u32 m0, s60, {(v % NWS) * 16384}")
    a("s_add_u32 s62, s61, 4096")
    a.vmem(f"buffer_load_dwordx4 v8, {S4(WSP_)}, s61 offen {NT('s')}lds", ("S", v))
    a.vmem(f"buffer_load_dwordx4 v9, {S4(WSP_)}, s61 offen offset:1024 {NT('s')}lds", ("S", v))
    a(f"s_add_u32 m0, s60, {(v % NWS) * 16384 + 2048}")
    a("s_nop 0")
    a.vmem(f"buffer_load_dwordx4 v8, {S4(WSP_)}, s62 offen {NT('s')}lds", ("S", v))
    a.vmem(f"buffer_load_dwordx4 v9, {S4(WSP_)}, s62 offen offset:1024 {NT('s')}lds", ("S", v))

def l2_setup(a, d, ztype):
    a("v_lshrrev_b32 v31, 4, v1")
    a("v_lshlrev_b32 v31, 12, v31")
    a("v_and_b32 v30, 15, v1")
    a(f"v_lshl_add_u32 v{d}, v30, 7, v31")
    a(f"v_lshlrev_b32 v{d+1}, 7, v1")
    a(f"s_lshl_b32 s68, s{sRB}, 3")
    a(f"s_add_u32 s68, s68, s{sCG}")
    a("s_lshl_b32 s68, s68, 2")
    a(f"s_add_u32 s68, s68, s{sQ}")
    a("s_lshl_b32 s68, s68, 14")
    a(f"s_lshl_b32 s61, s{sKS}, 11")
    a("s_add_u32 s68, s68, s61")
    a("s_lshr_b32 s61, s2, 3")
    a("s_lshl_b32 s61, s61, 2")
    a(f"s_add_u32 s61, s61, s{sQ}")
    a("s_lshl_b32 s69, s61, 12")
    a(f"s_mul_i32 s70, s61, {43*128}")
    a(f"s_mov_b32 m0, {L_MISC}")
    if ztype and opt('l2w1', 0):
        srd(a, WA_, 72, D*F2*2)
        a("v_lshrrev_b32 v31, 1, v1")
        a("v_mul_u32_u24 v31, 2752, v31")
        a("v_and_b32 v30, 1, v1")
        a("v_mul_u32_u24 v30, 188, v30")
        a("v_add_u32 v3, v30, v31")
        a(f"s_and_b32 s71, s{sRB}, 3")
        a("s_lshl_b32 s71, s71, 2")
        a(f"s_add_u32 s71, s71, s{sQ}")
        a(f"s_mul_i32 s71, s71, {32*2752}")
        a("s_lshl_b32 s61, s55, 5")
        a("s_add_u32 s71, s71, s61")
        if opt('l2w1', 0) == 1:
            a.vmem(f"buffer_load_dword v3, {S4(WA_)}, s71 offen lds", "pf")
def l2_hooks(a, d, ztype):
    hk = {}
    def add(st, f):
        hk.setdefault(st, []).append(f)
    def lanes(k, n, tot):
        lo, hi = k*tot//n, (k+1)*tot//n
        m = ((1 << hi) - 1) ^ ((1 << lo) - 1)
        a(f"s_mov_b32 exec_lo, {m & 0xffffffff:#x}\ns_mov_b32 exec_hi, {m >> 32:#x}")
    if ztype and opt('l2w1', 0) == 2:
        add(0, lambda: a.vmem(f"buffer_load_dword v3, {S4(WA_)}, s71 offen lds", "pf"))
    if opt('l2pf', 0):
        nt = 'nt' if opt('l2nt', 0) else ''
        s0 = opt('l2s0', 1); n = opt('l2n', 2)
        for k in range(n):
            def h(k=k):
                lanes(k, n, 64)
                a.vmem(f"buffer_load_dword v{d}, {S4(WSP_)}, s68 offen {nt} lds", "pf")
                a("s_mov_b64 exec, -1")
            add(s0 + k, h)
    if opt('l2cw', -1) >= 0:
        def h2():
            a("s_mov_b32 exec_hi, 0")
            a.vmem(f"buffer_load_dword v{d+1}, {S4(WO_)}, s69 offen lds", "pf")
            a("s_mov_b32 exec_hi, 0x7ff")
            a.vmem(f"buffer_load_dword v{d+1}, {S4(WOUT_)}, s70 offen lds", "pf")
            a("s_mov_b32 exec_hi, -1")
        add(opt('l2cw', 0), h2)
    return {st: (lambda fs=fs: a.run(fs)) for st, fs in hk.items()}

def q_prefetch(a, k):
    if not opt('qpf', 1): return
    if k < 2:
        a("v_lshrrev_b32 v31, 4, v1")
        a("v_lshlrev_b32 v31, 12, v31")
        a("v_and_b32 v30, 15, v1")
        a("v_lshl_add_u32 v30, v30, 7, v31")
        a(f"s_lshl_b32 s61, s{sRB}, 2")
        a(f"s_add_u32 s61, s61, s{sCG}")
        a("s_lshl_b32 s61, s61, 2")
        a(f"s_add_u32 s61, s61, s{sQ}")
        a("s_lshl_b32 s61, s61, 15")
        a(f"s_lshl_b32 s62, s{sKS}, 11")
        a("s_add_u32 s61, s61, s62")
        a(f"s_mov_b32 m0, {L_MISC}")
        a(f"s_add_u32 s61, s61, {16384*k}")
        for o in range(0, 128, opt('sec', 128)):
            a.vmem(f"buffer_load_dword v30, {S4(WSP_)}, s61 offen offset:{o} {NT('p')}lds", "pf")
        return
    a("s_lshr_b32 s61, s2, 3")
    a("s_lshl_b32 s61, s61, 2")
    a(f"s_add_u32 s61, s61, s{sQ}")
    a("v_lshlrev_b32 v31, 7, v1")
    a(f"s_mov_b32 m0, {L_MISC}")
    if k == 2:
        a("s_lshl_b32 s62, s61, 13")
        for o in range(0, 128, opt('sec', 128)): a.vmem(f"buffer_load_dword v31, {S4(WO_)}, s62 offen offset:{o} lds", "pf")
    else:
        a(f"s_mul_i32 s63, s61, {86*128}")
        a(f"s_add_u32 s63, s63, {43*128*(k-3)}")
        a("s_mov_b32 exec_hi, 0x7ff")
        for o in range(0, 128, opt('sec', 128)): a.vmem(f"buffer_load_dword v31, {S4(WOUT_)}, s63 offen offset:{o} lds", "pf")
        a("s_mov_b32 exec_hi, -1")

def q_spread_setup(a):
    a("v_lshrrev_b32 v31, 4, v1")
    a("v_lshlrev_b32 v31, 12, v31")
    a("v_and_b32 v30, 15, v1")
    a("v_lshl_add_u32 v12, v30, 7, v31")
    a(f"s_lshl_b32 s64, s{sRB}, 2")
    a(f"s_add_u32 s64, s64, s{sCG}")
    a("s_lshl_b32 s64, s64, 2")
    a(f"s_add_u32 s64, s64, s{sQ}")
    a("s_lshl_b32 s64, s64, 15")
    a(f"s_lshl_b32 s62, s{sKS}, 11")
    a("s_add_u32 s64, s64, s62")
    a("s_add_u32 s67, s64, 16384")
    a("s_lshr_b32 s61, s2, 3")
    a("s_lshl_b32 s61, s61, 2")
    a(f"s_add_u32 s61, s61, s{sQ}")
    a("v_lshlrev_b32 v13, 7, v1")
    a("s_lshl_b32 s65, s61, 13")
    a(f"s_mul_i32 s66, s61, {86*128}")
    a("s_add_u32 s68, s66, 8192")
    a("v_lshlrev_b32 v14, 10, v1")
    a("s_and_b32 s61, s61, 15")
    a("s_lshl_b32 s71, s61, 15")
    a(f"s_add_u32 s61, s{sCG}, 4")
    a("s_lshl_b32 s61, s61, 7")
    a("s_add_u32 s71, s71, s61")
    a("s_lshl_b32 s61, s2, 2")
    a(f"s_add_u32 s61, s61, s{sQ}")
    a("s_lshl_b32 s73, s61, 10")
    a(f"s_mul_i32 s74, s61, {11*128}")
def q_spread(a, k, n, which, frac=None):
    items = {'s': [(WSP_, 12, 64, 64), (WSP_, 12, 67, 64)], 'c': [(WO_, 13, 65, 64), (WOUT_, 13, 66, 64), (WOUT_, 13, 68, 22)],
             'o': [(WO_, 14, 71, 32)], 'u': [(WOUT_, 13, 66, 64), (WOUT_, 13, 68, 22)],
             'm': [(WO_, 13, 73, 8), (WOUT_, 13, 74, 11)]}[which]
    tot = sum(x[3] for x in items)
    lo, hi = k*tot//n, (k+1)*tot//n
    if frac: lo, hi = frac
    a(f"s_mov_b32 m0, {L_MISC}")
    base = 0
    for R, v, so, cnt in items:
        l, h = max(lo - base, 0), min(hi - base, cnt)
        if h > l:
            m = ((1 << h) - 1) ^ ((1 << l) - 1)
            a(f"s_mov_b32 exec_lo, {m & 0xffffffff:#x}\ns_mov_b32 exec_hi, {m >> 32:#x}")
            a.vmem(f"buffer_load_dword v{v}, {S4(R)}, s{so} offen {'nt ' if opt('ntp' + which, 1 if which == 's' else 0) else ''}lds", "pf")
        base += cnt
    a("s_mov_b64 exec, -1")

def z_slice_touch(a):
    a("s_lshr_b32 s61, s2, 3")
    a("s_and_b32 s61, s61, 3")
    a("s_lshl_b32 s61, s61, 2")
    a(f"s_add_u32 s61, s61, s{sQ}")
    a(f"s_add_u32 s63, s{sCG}, 4")
    a("s_lshl_b32 s63, s63, 7")
    a("s_lshl_b32 s62, s61, 15")
    a("s_add_u32 s62, s62, s63")
    a(f"s_mul_i32 s61, s61, {43*1024}")
    a("s_add_u32 s63, s63, s61")
    a("v_lshlrev_b32 v31, 10, v1")
    a(f"s_mov_b32 m0, {L_MISC}")
    a("s_mov_b32 exec_hi, 0")
    a.vmem(f"buffer_load_dword v31, {S4(WO_)}, s62 offen lds", "pf")
    a("s_mov_b32 exec_hi, 0x7ff")
    a.vmem(f"buffer_load_dword v31, {S4(WOUT_)}, s63 offen lds", "pf")
    a("s_mov_b32 exec_hi, -1")

def x_group_h(a, step, sl, tag):
    a(f"s_add_u32 s61, s{sK0A}, {step}")
    a("s_and_b32 s61, s61, 7")
    a("s_lshl_b32 s58, s61, 7")
    a("s_add_u32 s62, s58, s53")
    a(f"s_add_u32 m0, s60, {sl}")
    a("s_add_u32 s63, s62, 1024")
    a.vmem(f"buffer_load_dwordx4 v4, {S4(X_)}, s62 offen {NT('x')}lds", tag)
    a.vmem(f"buffer_load_dwordx4 v5, {S4(X_)}, s62 offen offset:1024 {NT('x')}lds", tag)
    a(f"s_add_u32 m0, s60, {sl + 2048}")
    a("s_nop 0")
    a.vmem(f"buffer_load_dwordx4 v4, {S4(X_)}, s63 offen {NT('x')}lds", tag)
    a.vmem(f"buffer_load_dwordx4 v5, {S4(X_)}, s63 offen offset:1024 {NT('x')}lds", tag)

def dots_x(a, fr, acc_s, acc_q, ones):
    for i in range(4):
        a(f"v_dot2_f32_bf16 v{acc_s}, v{fr+i}, v{ones}, v{acc_s}")
        a(f"v_dot2_f32_bf16 v{acc_q}, v{fr+i}, v{fr+i}, v{acc_q}")

def diag_sel(a, dst, gram):
    a("s_mov_b32 s62, 0x22222222\ns_mov_b32 s63, 0x22222222")
    a(f"v_cndmask_b32 v{dst}, v{gram}, v{gram+1}, s[62:63]")
    a("s_mov_b32 s62, 0x44444444\ns_mov_b32 s63, 0x44444444")
    a(f"v_cndmask_b32 v{dst}, v{dst}, v{gram+2}, s[62:63]")
    a("s_mov_b32 s62, 0x88888888\ns_mov_b32 s63, 0x88888888")
    a(f"v_cndmask_b32 v{dst}, v{dst}, v{gram+3}, s[62:63]")
DIAG_LO, DIAG_HI = 0x00f0000f, 0xf0000f00

def row_finalize(a, s_, q_, t):
    a(f"v_mul_f32 v{s_}, {f2u(1.0/512):#x}, v{s_}")
    a(f"v_mul_f32 v{q_}, {f2u(1.0/512):#x}, v{q_}")
    a(f"v_fma_f32 v{q_}, -v{s_}, v{s_}, v{q_}")
    a(f"v_max_f32 v{q_}, 0, v{q_}")
    a(f"v_add_f32 v{q_}, {f2u(1e-5):#x}, v{q_}")

def nonce_publish(a):
    l = a.label("Lnn")
    a(f"s_or_b32 s61, s2, s{sW}")
    a("s_cmp_lg_u32 s61, 0")
    a(f"s_cbranch_scc1 {l}")
    a("s_or_b32 s62, s84, 1")
    a("v_mov_b32 v30, s62")
    a("v_lshlrev_b32 v31, 6, v1")
    a("s_mov_b64 exec, 15")
    a(f"buffer_store_dword v30, v31, {S4(DBG_)}, 0 offen sc1")
    a("s_mov_b64 exec, -1")
    a(f"{l}:")

def nonce_check(a):
    a.vmwait("poll")
    def chk():
        a(f"v_readfirstlane_b32 s{sT}, v25")
        a(f"s_cmp_lg_u32 s{sT}, 0")
    def iss():
        a("v_mov_b32 v31, 0")
        a(f"buffer_load_dword v25, v31, {S4(DBG_)}, 0 offen sc1")
    spin(a, iss, chk)

def wave_flag(a):
    a(f"s_lshl_b32 s61, s{sGRP}, 4")
    a(f"s_add_u32 s61, s61, s{sRB}")
    a("s_lshl_b32 s61, s61, 2")
    a(f"s_add_u32 s61, s61, s{sQ}")
    a("s_lshl_b32 s61, s61, 7")
    a(f"s_add_u32 s61, s61, {F1_OFF}")
    a(f"v_mov_b32 v30, s{sT}")
    a("v_mov_b32 v31, 0")
    a("s_mov_b64 exec, 1")
    a.vmem(f"buffer_store_dword v30, v31, {S4(WS_)}, s61 offen sc1", "flag")
    a("s_mov_b64 exec, -1")

def spin(a, issue, check_ok, limit=0x8000):
    lp = a.label("Lspin"); ok = a.label("Lok")
    check_ok()
    a(f"s_cbranch_scc1 {ok}")
    a("s_mov_b32 s63, 0")
    a(f"{lp}:")
    issue()
    a("s_waitcnt vmcnt(0)")
    a("s_add_u32 s63, s63, 1")
    a(f"s_cmp_gt_u32 s63, {limit}")
    a(f"s_cbranch_scc1 {ok}")
    check_ok()
    a(f"s_cbranch_scc0 {lp}")
    a(f"{ok}:")

def az_helper(a, fused):
    srd(a, WA_, 72, D*F2*2)
    rowtile_voffs(a, 4, 5, 10)
    for i in range(3):
        a(f"v_add_u32 v3, {64*i}, v1")
        a("v_mul_u32_u24 v30, 683, v3")
        a("v_lshrrev_b32 v30, 13, v30")
        a("v_mul_u32_u24 v31, 12, v30")
        a("v_sub_u32 v31, v3, v31")
        a("v_lshrrev_b32 v3, 2, v30")
        a("v_and_b32 v3, 2, v3")
        a("v_xor_b32 v31, v3, v31")
        a("v_mul_u32_u24 v30, 2752, v30")
        a(f"v_lshl_add_u32 v{20+i}, v31, 4, v30")
        if i: a(f"v_subrev_u32 v{20+i}, {1024*i}, v{20+i}")
    a(f"s_lshl_b32 s53, s{sRB}, 2")
    a(f"s_add_u32 s53, s53, s{sQ}")
    a("s_lshl_b32 s53, s53, 15")
    a(f"s_mul_i32 s55, s{sGRP}, 6")
    a("s_min_u32 s55, s55, 40")
    a(f"s_mul_i32 s54, s{sQ}, {16*2752}")
    a("s_lshl_b32 s61, s55, 5")
    a("s_add_u32 s54, s54, s61")
    a(f"s_mul_i32 s56, s{sQ}, 3072")
    a(f"s_lshl_b32 s60, s{sQ}, 12")
    def wgroup(kreg_ready, step, dst, add, tag):
        if not kreg_ready:
            a(f"s_add_u32 s61, s{sK0A}, {step}")
            a("s_and_b32 s61, s61, 7")
        a(f"s_mul_i32 s63, s61, {64*2752}")
        a("s_add_u32 s63, s63, s54")
        a(f"s_add_u32 m0, s56, {dst}")
        if add: a(f"s_add_u32 s63, s63, {add}")
        else: a("s_nop 0")
        for i in range(3):
            a.vmem(f"buffer_load_dwordx4 v{20+i}, {S4(WA_)}, s63 offen offset:{1024*i} {NT('w')}lds", tag)
    def ga(step):
        x_group_h(a, step, ZSLOT[step % 5], ("A", step))
        wgroup(True, step, ZSLOT[step % 5] + 16384, 1376, ("A", step))
    npro = opt('proZ', 2)
    ga(0)
    for st in range(1, npro): ga(st)
    late_srds(a)
    wsp_setup_h(a)
    a("v_lshlrev_b32 v10, 3, v1")
    a(f"s_lshl_b32 s64, s{sRB}, 5")
    a(f"s_add_u32 s64, s64, s{sQ}")
    a("s_lshl_b32 s64, s64, 9")
    a(f"s_add_u32 s64, s64, {WS_ST2}")
    a("s_add_u32 s65, s64, 4096\ns_add_u32 s66, s64, 8192\ns_add_u32 s67, s64, 12288")
    a("v_lshlrev_b32 v11, 4, v1")
    a(f"s_mul_i32 s61, s{sQ}, 6144")
    a(f"s_add_u32 s61, s61, {L_PARK}")
    a("v_add_u32 v11, s61, v11")
    a(f"s_lshl_b32 s61, s{sQ}, 8")
    a(f"s_add_u32 s61, s61, {L_XCH}")
    a("v_lshrrev_b32 v12, 1, v1")
    a("v_lshl_add_u32 v12, v12, 2, s61")
    a("v_lshrrev_b32 v13, 4, v1")
    a("v_lshl_add_u32 v13, v13, 5, s61")
    a("v_lshrrev_b32 v3, 5, v1")
    a("v_mul_u32_u24 v3, 3072, v3")
    a("v_bfe_u32 v30, v1, 4, 1")
    a("v_lshl_add_u32 v3, v30, 9, v3")
    a("v_and_b32 v30, 15, v1")
    a("v_lshl_add_u32 v14, v30, 4, v3")
    a(f"s_lshl_b32 s57, s{sGRP}, 4")
    a(f"s_add_u32 s57, s57, s{sRB}")
    a("s_lshl_b32 s57, s57, 2")
    a(f"s_add_u32 s57, s57, s{sQ}")
    a("s_mul_i32 s57, s57, 6144")
    a(f"s_add_u32 s57, s57, {WS_Z2N}")
    a("v_mov_b32 v16, 0xffff0000")
    a.stamp()
    for s in range(8):
        a.vmwait(("A", s))
        a("s_barrier")
        if s in (0, 1, 4): a.stamp()
        if s == 0:
            a(f"s_load_dword s{sT}, s[90:91], 128")
            for st in range(npro, 5): ga(st)
            get_nonce(a, -1)
        elif s <= 3: ga(s + 4)
        else:
            if s == opt('st1z', 4): ln1_fetch_issue(a, False)
            for u in (2*(s-4), 2*(s-4)+1): wgroup(False, u, W1SL[u], 0, ("W1", u))
    ln1_fetch_finish(a, False)
    a.stamp()
    a("s_barrier")
    if opt('zcw', 1) == 1: cw_load(a, 0, 38)
    a.vmwait(("W1", 7))
    a("s_barrier")
    a(f"s_setprio {opt('nprio', 3)}")
    for j in range(6): a(f"ds_read_b128 {V(56+8*j+4)}, v11 offset:{1024*j}")
    def iss():
        for c in range(8):
            a(f"buffer_load_dwordx2 {V(32+2*c,2)}, v10, {S4(WS_)}, s{64 + (c>>1)} offen offset:{2048*(c&1)} sc1")
    def chk():
        for c in range(8): a(f"v_xor_b32 v{48+c}, s{sT}, v{33+2*c}")
        a("v_or3_b32 v48, v48, v49, v50\nv_or3_b32 v51, v51, v52, v53\nv_or3_b32 v48, v48, v54, v55")
        a("v_or_b32 v48, v48, v51")
        a("v_cmp_ne_u32 vcc, 0, v48")
        a("s_cmp_eq_u64 vcc, 0")
    a("s_waitcnt lgkmcnt(0)")
    for j in range(6):
        for w in range(4):
            u = 56 + 8*j
            if w < 3:
                a(f"v_lshlrev_b32 v{u+2*w}, 16, v{u+4+w}")
                a(f"v_and_b32 v{u+2*w+1}, v16, v{u+4+w}")
            else:
                a(f"v_lshlrev_b32 v{u+6}, 16, v{u+7}")
                a(f"v_and_b32 v{u+7}, v16, v{u+7}")
    zcount(a, 62, 58)
    iss(); a("s_waitcnt vmcnt(0)")
    spin(a, iss, chk)
    a.stamp()
    for k in (2, 4, 6): a(f"v_add_f32 v{32+2*k}, v{32+2*k}, v{34+2*k}")
    a("v_add_f32 v32, v32, v34")
    a("v_add_f32 v36, v36, v40")
    a("v_add_f32 v32, v32, v44")
    a("v_add_f32 v32, v32, v36")
    a(f"v_mul_f32 v32, {f2u(1.0/688):#x}, v32")
    a("s_nop 1")
    a("v_mov_b32_dpp v33, v32 quad_perm:[1,0,3,2] row_mask:0xf bank_mask:0xf")
    a("v_fma_f32 v33, -v32, v32, v33")
    a("v_max_f32 v33, 0, v33")
    a(f"v_add_f32 v33, {f2u(1e-5):#x}, v33")
    a("v_rsq_f32 v33, v33")
    a("s_mov_b32 exec_lo, 0x55555555\ns_mov_b32 exec_hi, 0x55555555")
    a("v_mul_f32_e64 v32, -v32, v33")
    a("ds_write_b32 v12, v33")
    a("ds_write_b32 v12, v32 offset:128")
    a("s_mov_b64 exec, -1")
    a("s_waitcnt lgkmcnt(0)")
    for k in range(2): a(f"ds_read_b128 {V(32+4*k)}, v13 offset:{16*k}")
    for k in range(2): a(f"ds_read_b128 {V(40+4*k)}, v13 offset:{128 + 16*k}")
    for j in range(6):
        u = 56 + 8*j; z = u
        if j == 0: a("s_waitcnt lgkmcnt(0)")
        for w in range(8): a(f"v_fma_f32 v{u+w}, v{u+w}, v{32+w}, v{40+w}")
        for w in range(4): a(f"v_cvt_pk_bf16_f32 v{z+w}, v{u+2*w}, v{u+2*w+1}")
        a(f"s_cmp_gt_u32 s58, {j}")
        a(f"s_cselect_b32 s61, s57, {OOB}")
        a.vmem(f"buffer_store_dwordx4 {V(z)}, v14, {S4(WS_)}, s61 offen offset:{(j>>1)*1024 + (j&1)*256} sc1", "z2n")
    a("s_setprio 0")
    a.stamp()
    a.vmwait("z2n")
    wave_flag(a)
    a.stamp()
    a("s_barrier")
    for v in range(opt('wp', 3)): wsp_group_h(a, v)
    a("s_mov_b32 s72, 1")
    if opt('zcw', 1) == 0: cw_load(a, 0, 38)

def aq_compute(a, fused):
    AQ, AK, AV, HK, HV = 32, 64, 96, 128, 136
    ONES, SUM, GRM, XA = 28, 224, 232, 240
    CWQ = [240, 128, 132, 136, 140, 244]
    ring = list(range(144, 200, 4))
    MC, MPN, MPA, MB = 200, 204, 208, 216
    a(f"s_lshr_b32 s5, s{sQ}, 1")
    a(f"s_and_b32 s46, s{sQ}, 1")
    a("s_lshl_b32 s61, s5, 13")
    rowfrag_addr(a, 10, 11, "s61")
    rowfrag_addr(a, 12, 13, 16384)
    qw_addr(a, 14)
    a("v_add_u32 v14, 18432, v14")
    a("s_lshl_b32 s61, s46, 6")
    a("v_xor_b32 v14, s61, v14")
    a("v_xor_b32 v15, 32, v14")
    a("v_and_b32 v3, 15, v1")
    a("v_lshrrev_b32 v30, 4, v1")
    a("v_lshlrev_b32 v30, 2, v30")
    a("v_sub_u32 v31, v3, v30")
    a(f"v_mov_b32 v224, {NEG:#x}")
    a("v_mov_b32 v225, 0xffff")
    a("v_mov_b32 v226, 0xffff0000")
    for i in range(4):
        a(f"v_subrev_u32 v227, {i}, v31")
        a("v_cmp_gt_u32 vcc, 8, v227")
        a("v_cmp_gt_i32 s[62:63], -8, v227")
        a("s_nop 0")
        a(f"v_cndmask_b32_e64 v{MC+i}, v224, 0, vcc")
        a(f"v_cndmask_b32_e64 v{228+i}, 0, v{225 + (i&1)}, vcc")
        a(f"v_cndmask_b32_e64 v{MPN+i}, v224, 0, s[62:63]")
    a(f"v_or_b32 v{MB}, v228, v229")
    a(f"v_or_b32 v{MB+1}, v230, v231")
    a("s_lshl_b32 s61, s5, 8")
    a(f"s_add_u32 s61, s61, {L_TAB}")
    a("v_and_b32 v27, 0x30, v1")
    a("v_add_u32 v218, s61, v27")
    a("v_lshl_add_u32 v219, v3, 2, s61")
    a("s_lshl_b32 s61, s46, 7")
    a(f"s_add_u32 s61, s61, {L_CW}")
    a("v_add_u32 v220, s61, v27")
    a("v_lshl_add_u32 v221, v3, 2, s61")
    a("v_lshlrev_b32 v222, 4, v1")
    a("s_lshl_b32 s61, s46, 12")
    a(f"s_add_u32 s61, s61, {L_XCH}")
    a("v_add_u32 v223, s61, v222")
    a(f"s_lshl_b32 s53, s{sRB}, 1")
    a("s_add_u32 s53, s53, s5")
    a("s_lshl_b32 s53, s53, 4")
    a(f"s_add_u32 s53, s53, s{sGRP}")
    a("s_lshl_b32 s53, s53, 1")
    a("s_add_u32 s53, s53, s46")
    a("s_lshl_b32 s53, s53, 11")
    a(f"s_add_u32 s53, s53, {WS_O}")
    a("s_add_u32 s54, s53, 32768")
    a("v_lshrrev_b32 v27, 4, v1")
    a("v_lshlrev_b32 v27, 9, v27")
    a("v_lshl_add_u32 v4, v3, 4, v27")
    AT = 16
    def build(halo, hp):
        fr = {'ones': dict(step=0, reg=ONES, reads=None)}; mf = []
        for s in range(8):
            for kk in range(2):
                for tl in range(4):
                    fr[('x', s, kk, tl)] = dict(step=s, reg=None, reads=[lambda r, kk=kk, tl=tl: f"ds_read_b128 {V(r)}, v{AT+kk} offset:{tl*2048}"])
                fr[('h', s, kk)] = dict(step=s, reg=None, reads=[lambda r, kk=kk: f"ds_read_b128 {V(r)}, v{AT+2+kk}"])
                for m in range(3):
                    for e in range(2):
                        w = ('w', s, kk, m, e)
                        fr[w] = dict(step=s, reg=None, reads=[(lambda r, hh=hh, kk=kk, m=m, e=e: f"ds_read_b64_tr_b16 {V(r+2*hh,2)}, v{AT+4+e} offset:{kk*12288 + m*1024 + hh*512}") for hh in range(2)])
                        for tl in range(4):
                            d = (AQ, AK, AV)[m] + (e*4+tl)*4
                            mf.append((d, w, ('x', s, kk, tl)) if m < 2 else (d, ('x', s, kk, tl), w))
                        if halo and m == 1: mf.append((HK+4*e, w, ('h', s, kk)))
                        if halo and m == 2: mf.append((HV+4*e, ('h', s, kk), w))
                        if halo == (m*2+e == 0): mf.append((CWQ[m*2+e], 'ones', w))
        return mf, fr
    def stats_out(halo):
        a("s_nop 6")
        for k in ([0] if halo else range(1, 6)): a(f"ds_write_b32 v221, v{CWQ[k]} offset:{256*(k>>1) + 64*(k&1)}")
    def pre(s):
        for r in range(6): a(f"v_add_u32 v{AT+r}, {QSLOT[s % 3]}, v{10+r}")
    a("v_mov_b32 v26, v30")
    a('v_mov_b32 v27, v3'); l2_setup(a, 5, False)
    a("v_mov_b32 v27, v3")
    ln1_publish(a)
    a("v_mov_b32 v3, v27")
    a("v_mov_b32 v30, v26")
    lr1 = a.label("Lrh1"); lj = a.label("Lqj")
    a("s_cmp_lg_u32 s5, 0")
    a(f"s_cbranch_scc1 {lr1}")
    a("v_lshlrev_b32 v3, 1, v3")
    a("v_sub_u32 v31, v30, v3")
    a(f"s_cmp_eq_u32 s{sRB}, 0")
    a("s_cselect_b32 s61, 1000, 0")
    a("v_subrev_u32 v31, s61, v31")
    for T in range(2):
        for i in range(4):
            if (i ^ T) & 1:
                a(f"v_mov_b32 v{MPA+4*T+i}, v224")
            else:
                a(f"v_cmp_le_i32 vcc, {T + 2 - i}, v31")
                a("s_nop 1")
                a(f"v_cndmask_b32_e64 v{MPA+4*T+i}, v224, 0, vcc")
    n0 = a.nst
    for halo in (True, False):
        if not halo:
            a(f"{lr1}:")
            for i in range(8): a(f"v_mov_b32 v{MPA+i}, v{MPN+(i&3)}")
        for r in range(4): a(f"v_mov_b32 v{ONES+r}, 0x3f803f80")
        a.nst = n0
        a.stamp()
        mf, fr = build(halo, 0)
        vm0 = list(a.vm)
        gemm_stream(a, mf, fr, ring, opt('LA', 10), opt('cover', 3), pre, stamps=(0, 1, 4), hooks=l2_hooks(a, 5, False))
        vm1 = list(a.vm); a.vm = vm0
        a.stamp()
        stats_out(halo)
        if halo: a(f"s_branch {lj}")
    a(f"{lj}:")
    a.vm = vm1
    a("s_waitcnt lgkmcnt(0)")
    a("s_barrier")
    for k in range(2): a(f"ds_read_b128 {V(152+4*k)}, v220 offset:{256 + 64*k}")
    for tl in range(4):
        a(f"ds_read_b32 v{162+tl}, v219 offset:{64*tl}")
        a(f"ds_read_b32 v{166+tl}, v219 offset:{64*tl + TP}")
    for e in range(2): a(f"ds_read_b32 v{160+e}, v221 offset:{512 + 64*e}")
    a("s_waitcnt lgkmcnt(2)")
    for tl in range(4):
        a(f"ds_read_b128 {V(172+4*tl)}, v218 offset:{64*tl}")
        a(f"ds_read_b128 {V(10+4*tl)}, v218 offset:{64*tl + TP}")
    for k in range(2): a(f"ds_read_b128 {V(144+4*k)}, v220 offset:{64*k}")
    def corr_t(x, cw, mreg, rreg):
        for p in range(2): a(f"v_pk_fma_f32 {V(x+2*p,2)}, {V(cw+2*p,2)}, {V(mreg&~1,2)}, {V(x+2*p,2)} op_sel:[0,{mreg&1},0] op_sel_hi:[1,{mreg&1},1] neg_lo:[1,0,0] neg_hi:[1,0,0]")
        for p in range(2): a(f"v_pk_mul_f32 {V(x+2*p,2)}, {V(x+2*p,2)}, {V(rreg&~1,2)} op_sel:[0,{rreg&1}] op_sel_hi:[1,{rreg&1}]")
    def corr_c(x, mv, rv, cw):
        for p in range(2): a(f"v_pk_fma_f32 {V(x+2*p,2)}, {V(mv+2*p,2)}, {V(cw&~1,2)}, {V(x+2*p,2)} op_sel:[0,{cw&1},0] op_sel_hi:[1,{cw&1},1] neg_lo:[1,0,0] neg_hi:[1,0,0]")
        for p in range(2): a(f"v_pk_mul_f32 {V(x+2*p,2)}, {V(x+2*p,2)}, {V(rv+2*p,2)}")
    def pack(dst, x):
        for p in range(2): a(f"v_cvt_pk_bf16_f32 v{dst+p}, v{x+2*p}, v{x+2*p+1}")
    KV = 224
    def kp(e, tl): return KV + 8*tl + 2*e
    def vp(e, tl): return KV + 8*tl + 4 + 2*e
    for tl in (2, 3, 0, 1):
        for e in range(2): corr_t(AK + (e*4+tl)*4, 152+4*e, 162+tl, 166+tl)
        for e in range(2): pack(kp(e, tl), AK + (e*4+tl)*4)
    a("s_waitcnt lgkmcnt(0)")
    for tl in (2, 3, 0, 1):
        for e in range(2): corr_c(AV + (e*4+tl)*4, 172+4*tl, 10+4*tl, 160+e)
        for e in range(2): pack(vp(e, tl), AV + (e*4+tl)*4)
        if tl == 3:
            lx = a.label("Lx")
            a("s_cmp_lg_u32 s5, 0")
            a(f"s_cbranch_scc1 {lx}")
            for k in range(4): a(f"ds_write_b128 v223, {V(KV+16+4*k)} offset:{1024*k}")
            a("ds_read_b32 v26, v219 offset:512")
            a(f"ds_read_b32 v27, v219 offset:{512 + TP}")
            a(f"ds_read_b128 {V(188)}, v218 offset:512")
            a(f"ds_read_b128 {V(192)}, v218 offset:{512 + TP}")
            a(f"{lx}:")
    PV = 64
    lh = a.label("Lnh")
    a("s_cmp_lg_u32 s5, 0")
    a(f"s_cbranch_scc1 {lh}")
    a("s_waitcnt lgkmcnt(0)")
    for e in range(2):
        corr_t(HK+4*e, 152+4*e, 26, 27)
        corr_c(HV+4*e, 188, 192, 160+e)
    for e in range(2):
        for T in range(2):
            pack(PV + 8*T + 2*e, HK+4*e)
            pack(PV + 8*T + 4 + 2*e, HV+4*e)
    a(f"{lh}:")
    QP = 96
    for e in range(2):
        for tl in range(4): corr_t(AQ + (e*4+tl)*4, 144+4*e, 162+tl, 166+tl)
    for k in range(8): pack(QP+2*k, AQ+4*k)
    a("s_waitcnt lgkmcnt(0)")
    a("s_barrier")
    lp = a.label("Lp")
    a("s_cmp_eq_u32 s5, 0")
    a(f"s_cbranch_scc1 {lp}")
    for k in range(4): a(f"ds_read_b128 {V(PV+4*k)}, v223 offset:{1024*k}")
    a(f"{lp}:")
    SC, SP = 112, 144
    U = range(8)
    def kprev(u): e, tl = u//4, u%4; return kp(e, tl-2) if tl >= 2 else PV + 8*tl + 2*e
    def vprev(u): e, tl = u//4, u%4; return vp(e, tl-2) if tl >= 2 else PV + 8*tl + 4 + 2*e
    for u in U: a(mfma16(SC+4*u, kp(u//4, u%4), QP+2*u, V(MC)))
    a(f"v_mov_b32 v10, {f2u(0.25*LOG2E):#x}")
    for u in (2, 3, 6, 7): a(mfma16(SP+4*u, kprev(u), QP+2*u, V(MPN)))
    a("s_waitcnt lgkmcnt(0)")
    for u in (0, 1, 4, 5): a(mfma16(SP+4*u, kprev(u), QP+2*u, V(MPA+4*(u&1))))
    MX, TM = 32, 40
    for u in (2, 3, 6, 7, 0, 1, 4, 5):
        for i in range(4): a(f"v_max_f32 v{SC+4*u+i}, v{SC+4*u+i}, v{SP+4*u+i}")
    for u in U: a(f"v_max3_f32 v{MX+u}, v{SC+4*u}, v{SC+4*u+1}, v{SC+4*u+2}")
    for u in U: a(f"v_max_f32 v{MX+u}, v{MX+u}, v{SC+4*u+3}")
    red_g(a, [MX+u for u in U], "v_max_f32", TM)
    for u in range(0, 8, 2): a(f"v_pk_mul_f32 {V(MX+u,2)}, {V(MX+u,2)}, {V(10,2)} op_sel_hi:[1,0]")
    for u in U:
        for p in range(2): a(f"v_pk_fma_f32 {V(SC+4*u+2*p,2)}, {V(SC+4*u+2*p,2)}, {V(10,2)}, {V(MX+(u&~1),2)} op_sel:[0,0,{u&1}] op_sel_hi:[1,0,{u&1}] neg_lo:[0,0,1] neg_hi:[0,0,1]")
    for u in U:
        for i in range(4): a(f"v_exp_f32 v{SC+4*u+i}, v{SC+4*u+i}")
    PC, PP = 144, 160
    for u in U: pack(PP+2*u, SC+4*u)
    for u in U:
        for p in range(2): a(f"v_and_b32 v{PC+2*u+p}, v{MB+p}, v{PP+2*u+p}")
    for u in U:
        for p in range(2): a(f"v_xor_b32 v{PP+2*u+p}, v{PC+2*u+p}, v{PP+2*u+p}")
    OA = 176
    for u in U: a(f"v_pk_add_f32 {V(SC+4*u,2)}, {V(SC+4*u,2)}, {V(SC+4*u+2,2)}")
    for u in U:
        a(mfma16(OA+4*u, vp(u//4, u%4), PC+2*u, "0"))
        a(f"v_add_f32 v{MX+u}, v{SC+4*u}, v{SC+4*u+1}")
    for u in U: a(mfma16(OA+4*u, vprev(u), PP+2*u))
    red_g(a, [MX+u for u in U], "v_add_f32", TM)
    for u in U: a(f"v_rcp_f32 v{MX+u}, v{MX+u}")
    for u in U:
        for p in range(2): a(f"v_pk_mul_f32 {V(OA+4*u+2*p,2)}, {V(OA+4*u+2*p,2)}, {V(MX+(u&~1),2)} op_sel:[0,{u&1}] op_sel_hi:[1,{u&1}]")
    for tl in range(4):
        for e in range(2): pack(112 + 4*tl + 2*e, OA + 4*(e*4+tl))
    for tl in range(4):
        for p in range(2): a(f"v_permlane32_swap_b32 v{112+4*tl+p}, v{112+4*tl+2+p}")
    a.vmwait("b")
    for tl in range(4):
        a.vmem(f"buffer_store_dwordx4 {V(112+4*tl)}, v4, {S4(WS_)}, s{53+(tl>>1)} offen offset:{256*(tl&1)} sc1", "o")
    a.stamp()

def aq_helper(a, fused):
    early = opt('qearly', 1); c6, c7, c8 = opt('c6', 8), opt('c7', 22), opt('c8', 30)
    PFS = [int(c, 16) for c in str(opt('pfs', 55234))]
    srd(a, WA_, 66, D*1536*2)
    rowtile_voffs(a, 4, 5, 10)
    a("v_bfe_u32 v3, v1, 4, 1")
    a("v_lshlrev_b32 v3, 1, v3")
    a("v_and_b32 v30, 7, v1")
    a("v_xor_b32 v30, v30, v3")
    a("v_lshrrev_b32 v3, 3, v1")
    a("v_mul_u32_u24 v3, 3072, v3")
    a("v_lshl_add_u32 v6, v30, 4, v3")
    a("v_xor_b32 v30, 4, v30")
    a("v_lshl_add_u32 v7, v30, 4, v3")
    a(f"v_add_u32 v7, {8*3072}, v7")
    a("v_lshrrev_b32 v3, 4, v1")
    a(f"s_lshl_b32 s61, s{sQ}, 1")
    a("v_add_u32 v3, s61, v3")
    a("v_and_b32 v30, 7, v1")
    a("v_xor_b32 v30, v30, v3")
    a("v_and_b32 v30, 7, v30")
    a("v_lshrrev_b32 v3, 3, v1")
    a("v_lshlrev_b32 v3, 10, v3")
    a("v_lshl_add_u32 v20, v30, 4, v3")
    a(f"s_lshl_b32 s53, s{sRB}, 7")
    a("s_sub_u32 s55, s53, 16")
    a("s_max_i32 s55, s55, 0")
    a(f"s_lshl_b32 s61, s{sQ}, 2")
    a("s_add_u32 s55, s55, s61")
    a("s_lshl_b32 s55, s55, 10")
    a(f"s_lshl_b32 s61, s{sQ}, 5")
    a("s_add_u32 s53, s53, s61")
    a("s_lshl_b32 s53, s53, 10")
    a(f"s_mul_i32 s54, s{sQ}, {16*3072}")
    a(f"s_lshl_b32 s61, s{sGRP}, 7")
    a("s_add_u32 s54, s54, s61")
    a(f"s_mul_i32 s56, s{sQ}, 6144")
    a(f"s_lshl_b32 s57, s{sQ}, 9")
    a(f"s_lshl_b32 s60, s{sQ}, 12")
    def ga(step):
        sl = QSLOT[step % 3]; tag = ("A", step)
        x_group_h(a, step, sl, tag)
        a(f"s_mul_i32 s63, s61, {64*3072}")
        a("s_add_u32 s63, s63, s54")
        a(f"s_add_u32 m0, s56, {sl + 18432}")
        a("s_add_u32 s62, s58, s55")
        for m in range(3): a.vmem(f"buffer_load_dwordx4 v6, {S4(WA_)}, s63 offen offset:{1024*m} {NT('w')}lds", tag)
        a(f"s_add_u32 m0, s56, {sl + 18432 + 3072}")
        a("s_nop 0")
        for m in range(3): a.vmem(f"buffer_load_dwordx4 v7, {S4(WA_)}, s63 offen offset:{1024*m} {NT('w')}lds", tag)
        a(f"s_add_u32 m0, s57, {sl + 16384}")
        a("s_mov_b32 exec_hi, 0")
        a.vmem(f"buffer_load_dwordx4 v20, {S4(X_)}, s62 offen {NT('x')}lds", tag)
        a("s_mov_b32 exec_hi, -1")
    ga(0)
    ga(1)
    if opt('proQ', 2) == 3: ga(2)
    late_srds(a)
    if fused: wsp_setup_h(a)
    q_spread_setup(a)
    a.stamp()
    for s in range(8):
        a.vmwait(("A", s))
        a("s_barrier")
        if s in (0, 1, 4): a.stamp()
        if s == 0: a(f"s_load_dword s{sT}, s[90:91], 128")
        if (0 if opt('proQ', 2) == 2 else 1) <= s <= 5: ga(s + 2)
        if s == 0: get_nonce(a, -1)
        if s == opt('st1q', 5): ln1_fetch_issue(a, True)
        if s == 7: ln1_fetch_finish(a, True)
        if s == opt('mt', 0): q_spread(a, 0, 1, 'm')
        s0 = opt('sp0', 5)
        if s0 <= s < 6: q_spread(a, s - s0, 6 - s0, 's')
        if s == opt('qcw', 9): cw_load(a, 0, 16)
    a.stamp()
    a("s_barrier")
    wt = opt('wtab', 0)
    if opt('qcw', 9) == 8: cw_load(a, 0, 16)
    for v in range(wt): wsp_group_h(a, v)
    a("s_barrier")
    for v in range(wt, NWS): wsp_group_h(a, v)
    if opt('qcw', 9) == 9: cw_load(a, 0, 16)
    a("s_mov_b32 s72, 0")

def flag_store(a, which):
    if which == "F1":
        a(f"s_lshl_b32 s61, s{sRB}, 3")
        a(f"s_add_u32 s61, s61, s{sGRP}")
        off = F1_OFF
    else:
        a(f"s_lshl_b32 s61, s{sRB}, 1")
        a(f"s_add_u32 s61, s61, s{sTYP}")
        a("s_lshl_b32 s61, s61, 3")
        a(f"s_add_u32 s61, s61, s{sGRP}")
        off = F2_OFF
    a("s_lshl_b32 s61, s61, 7")
    a(f"s_add_u32 s61, s61, {off}")
    a(f"s_cmp_eq_u32 s{sQ}, 0")
    a(f"s_cselect_b32 s61, s61, {OOB}")
    a(f"v_mov_b32 v30, s{sT}")
    a("v_mov_b32 v31, 0")
    a("s_mov_b64 exec, 1")
    a.vmem(f"buffer_store_dword v30, v31, {S4(WS_)}, s61 offen sc1", "flag")
    a("s_mov_b64 exec, -1")

def mfma32(d, a, b, c=None):
    c = V(d, 16) if c is None else c
    return f"v_mfma_f32_32x32x16_bf16 {V(d,16)}, {V(a)}, {V(b)}, {c}"

def get_nonce(a, line):
    if line >= 0: a(f"s_load_dword s{sT}, s[90:91], {64*line}")
    a("s_waitcnt lgkmcnt(0)")
    first = [True]
    def chk():
        if not first[0]: a(f"v_readfirstlane_b32 s{sT}, v30")
        first[0] = False
        a(f"s_cmp_lg_u32 s{sT}, 0")
    def iss():
        a("s_sleep 2")
        a("v_mov_b32 v31, 0")
        a(f"buffer_load_dword v30, v31, {S4(DBG_)}, 0 offen sc1")
    spin(a, iss, chk)

def ln1_issue(a):
    a(f"s_lshl_b32 s61, s{sRB}, 1")
    a(f"s_add_u32 s61, s61, s{sTYP}")
    a("s_lshl_b32 s61, s61, 3")
    a(f"s_add_u32 s61, s61, s{sGRP}")
    a("s_lshl_b32 s61, s61, 2")
    a(f"s_add_u32 s47, s61, s{sQ}")
    a("s_lshl_b32 s61, s47, 11")
    a("v_lshrrev_b32 v3, 5, v1")
    a("v_lshlrev_b32 v3, 10, v3")
    a("v_and_b32 v30, 31, v1")
    a("v_lshl_add_u32 v3, v30, 4, v3")
    a.vmem(f"buffer_load_dwordx4 {V(40)}, v3, {S4(X_)}, s61 offen", "ln1")
    a.vmem(f"buffer_load_dwordx4 {V(44)}, v3, {S4(X_)}, s61 offen offset:512", "ln1")
def ln1_publish(a):
    a("v_mov_b32 v48, 0x3f803f80")
    a("v_mov_b32 v32, 0\nv_mov_b32 v33, 0\nv_mov_b32 v34, 0\nv_mov_b32 v35, 0")
    a("s_lshl_b32 s47, s47, 5")
    a(f"s_add_u32 s47, s47, {WS_ST1}")
    a("v_lshrrev_b32 v3, 1, v1")
    a.vmwait("ln1")
    for i in range(8):
        a(f"v_dot2_f32_bf16 v{32+(i&1)}, v{40+i}, v48, v{32+(i&1)}")
        a(f"v_dot2_f32_bf16 v{34+(i&1)}, v{40+i}, v{40+i}, v{34+(i&1)}")
    a("s_nop 2")
    a("v_add_f32 v32, v32, v33")
    a("v_add_f32 v34, v34, v35")
    for r in (8, 4, 2, 1):
        a("s_nop 0")
        a(f"v_add_f32_dpp v32, v32, v32 row_ror:{r} row_mask:0xf bank_mask:0xf")
        a(f"v_add_f32_dpp v34, v34, v34 row_ror:{r} row_mask:0xf bank_mask:0xf")
    a("v_mov_b32 v33, v32\nv_mov_b32 v35, v34")
    a("s_nop 1")
    a("v_permlane16_swap_b32 v32, v33\nv_permlane16_swap_b32 v34, v35")
    a("v_add_f32 v32, v32, v33\nv_add_f32 v34, v34, v35")
    row_finalize(a, 32, 34, 0)
    get_nonce(a, 1)
    a(f"v_mov_b32 v33, s{sT}\nv_mov_b32 v35, s{sT}")
    a("s_mov_b32 exec_lo, 1\ns_mov_b32 exec_hi, 1")
    a.vmem(f"buffer_store_dwordx4 {V(32)}, v3, {S4(WS_)}, s47 offen sc1", "ln1s")
    a("s_mov_b64 exec, -1")

def ln1_fetch_issue(a, halo):
    a(f"s_lshl_b32 s69, s{sRB}, 2")
    a(f"s_add_u32 s69, s69, s{sQ}")
    a("s_lshl_b32 s69, s69, 9")
    a(f"s_add_u32 s69, s69, {WS_ST1}")
    a(f"s_lshl_b32 s70, s{sRB}, 11")
    a("s_sub_u32 s70, s70, 256")
    a("s_max_i32 s70, s70, 0")
    a(f"s_add_u32 s70, s70, {WS_ST1}")
    a("v_lshlrev_b32 v36, 3, v1")
    a("v_and_b32 v37, 0xff, v36")
    a.vmem(f"buffer_load_dwordx2 {V(32,2)}, v36, {S4(WS_)}, s69 offen sc1", "st1")
    if halo: a.vmem(f"buffer_load_dwordx2 {V(34,2)}, v37, {S4(WS_)}, s70 offen sc1", "st1")
def ln1_fetch_finish(a, halo):
    a.vmwait("st1")
    def iss():
        a(f"buffer_load_dwordx2 {V(32,2)}, v36, {S4(WS_)}, s69 offen sc1")
        if halo: a(f"buffer_load_dwordx2 {V(34,2)}, v37, {S4(WS_)}, s70 offen sc1")
    def chk():
        a(f"v_cmp_ne_u32 vcc, s{sT}, v33")
        if halo:
            a(f"v_cmp_ne_u32 s[61:62], s{sT}, v35".replace("s[61:62]", "s[72:73]"))
            a("s_nop 0")
            a("s_or_b64 vcc, vcc, s[72:73]")
        a("s_cmp_eq_u64 vcc, 0")
    spin(a, iss, chk)
    a("v_bfe_u32 v38, v1, 1, 1")
    a("v_lshrrev_b32 v39, 2, v1")
    a("v_lshl_add_u32 v38, v38, 4, v39")
    a(f"s_lshl_b32 s61, s{sQ}, 7")
    a(f"s_add_u32 s61, s61, {L_TAB}")
    a("v_lshl_add_u32 v38, v38, 2, s61")
    a("v_mov_b32_dpp v33, v32 quad_perm:[1,0,3,2] row_mask:0xf bank_mask:0xf")
    if halo:
        a("v_mov_b32_dpp v35, v34 quad_perm:[1,0,3,2] row_mask:0xf bank_mask:0xf")
        a("v_lshlrev_b32 v39, 1, v1")
        a("v_and_b32 v39, 0x3c, v39")
        a(f"v_add_u32 v39, {L_TAB + 512}, v39")
        a("v_rsq_f32 v33, v33\nv_rsq_f32 v35, v35")
        a("s_mov_b32 exec_lo, 0x55555555\ns_mov_b32 exec_hi, 0x55555555")
        a(f"ds_write_b32 v38, v32\nds_write_b32 v38, v33 offset:{TP}")
        a(f"ds_write_b32 v39, v34\nds_write_b32 v39, v35 offset:{TP}")
    else:
        a("v_rsq_f32 v34, v33")
        a("v_sqrt_f32 v33, v33")
        a("v_mul_f32 v35, v34, v34")
        a("v_mul_f32 v35, v35, v34")
        a(f"v_mul_f32 v35, {f2u(-C2):#x}, v35")
        a(f"v_mul_f32 v34, {f2u(-C1):#x}, v34")
        a("s_mov_b32 exec_lo, 0x55555555\ns_mov_b32 exec_hi, 0x55555555")
        for k, r in enumerate((32, 35, 34, 33)): a(f"ds_write_b32 v38, v{r} offset:{TP*k}")
    a("s_mov_b64 exec, -1")
    a("s_waitcnt lgkmcnt(0)")

def b_early(a):
    a("v_and_b32 v3, 15, v1")
    a("v_bfe_u32 v31, v1, 4, 1")
    a("v_lshl_add_u32 v3, v3, 1, v31")
    a("v_lshlrev_b32 v3, 1, v3")
    a(f"s_lshl_b32 s61, s{sRB}, 2")
    a(f"s_add_u32 s61, s61, s{sQ}")
    a("s_lshl_b32 s61, s61, 6")
    a(f"s_cmp_eq_u32 s{sKS}, 0")
    a("s_cselect_b32 s61, s61, 4096")
    a.vmem(f"buffer_load_ushort v0, v3, {S4(BSP_)}, s61 offen", "b")

def b_compute(a, fused):
    ACC = 32
    ring = list(range(80, 144, 4))
    Z1 = 144
    OF = 168
    a("v_and_b32 v3, 31, v1")
    a("v_lshrrev_b32 v30, 5, v1")
    a("v_bfe_u32 v31, v1, 1, 3")
    a("v_xor_b32 v31, v30, v31")
    a("v_lshlrev_b32 v3, 7, v3")
    a("v_lshl_add_u32 v10, v31, 4, v3")
    a(f"s_lshl_b32 s61, s{sQ}, 12")
    a("v_add_u32 v10, s61, v10")
    for b4 in range(1, 4): a(f"v_xor_b32 v{10+b4}, {32*b4}, v10")
    for b4 in range(4): a(f"v_add_u32 v{14+b4}, 0x10000, v{10+b4}")
    a("v_lshlrev_b32 v19, 4, v1")
    a(f"v_add_u32 v18, {L_Z2}, v19")
    a(f"v_add_u32 v21, {L_Z2 + 49152}, v19")
    a("v_and_b32 v3, 15, v1")
    a("v_bfe_u32 v31, v1, 4, 1")
    a("v_lshlrev_b32 v20, 9, v31")
    a("v_lshl_add_u32 v20, v30, 8, v20")
    a("v_lshl_add_u32 v20, v3, 4, v20")
    a(f"s_lshl_b32 s57, s{sRB}, 2")
    a(f"s_add_u32 s57, s57, s{sQ}")
    if not fused: b_early(a)
    a(f"s_mul_i32 s55, s{sCG}, 6")
    a("s_min_u32 s55, s55, 40")
    a("s_sub_u32 s58, 40, s55")
    a("s_min_u32 s58, s58, 6")
    a(f"s_cmp_eq_u32 s{sCG}, 7")
    a("s_cselect_b32 s58, 3, s58")
    a("s_mul_i32 s53, s57, 48")
    a("s_add_u32 s53, s53, s55")
    a("s_lshl_b32 s53, s53, 10")
    a(f"s_mul_i32 s61, s{sKS}, {64*48*1024}")
    a("s_add_u32 s54, s53, s61")
    a(f"s_add_u32 s53, s53, {WS_Z1}")
    a(f"s_add_u32 s54, s54, {WS_H}")
    if not fused: a.vmwait("b")
    a("v_lshlrev_b32 v22, 16, v0")
    for r in range(48): a(f"v_mov_b32 v{ACC+r}, v22")
    def z1_load():
        pass
    def z1_piece(j):
        def f():
            if j == 4: a("s_add_u32 s53, s53, 4096")
            a.vmem(f"buffer_load_dwordx4 {V(Z1+4*j)}, v20, {S4(WS_)}, s53 offen offset:{(j%4)*1024} sc1", "z1")
        return f
    extras = []
    zs = opt('z1step', 12)
    for j in range(6): extras.append((zs, z1_piece(j), lambda done: True, 99))
    a(f"s_lshl_b32 s56, s{sRC}, 1")
    a(f"s_and_b32 s61, s{sQ}, 1")
    a("s_add_u32 s56, s56, s61")
    a("s_lshl_b32 s56, s56, 1")
    a(f"s_lshr_b32 s61, s{sQ}, 1")
    a("s_add_u32 s56, s56, s61")
    a("s_lshl_b32 s56, s56, 14")
    a(f"s_add_u32 s56, s56, {WS_O}")
    def o_piece(b):
        def f():
            if b and b % 4 == 0: a("s_add_u32 s56, s56, 4096")
            a.vmem(f"buffer_load_dwordx4 {V(OF+4*b)}, v19, {S4(WS_)}, s56 offen offset:{(b%4)*1024} sc1", "o")
        return f
    for b in range(16): extras.append((opt('ostep', 13) + b//6, o_piece(b), lambda done: True, 99))
    def preB(st):
        if fused and st == opt('f2step', 2): a.vmall()
    fr = {}; mf = []
    for i in range(16):
        for b4 in range(4):
            fr[('w', i, b4)] = dict(step=i, reg=None, reads=[lambda r, i=i, b4=b4: f"ds_read_b128 {V(r)}, v{10 + b4 + 4*((i%NWS)//4)} offset:{((i%NWS)%4)*16384}"])
            for c in range(3):
                fr[('z', i, b4, c)] = dict(step=i, reg=None, reads=[lambda r, i=i, b4=b4, c=c: f"ds_read_b128 {V(r)}, v{18 if ZOFF(i) < 49152 else 21} offset:{ZOF2(i) + (b4*3+c)*1024}"])
                mf.append((ACC+16*c, ('z', i, b4, c), ('w', i, b4)))
    a.stamp()
    a("s_barrier")
    gemm_stream(a, mf, fr, ring, opt('LAB', 5), opt('coverB', 2), preB,
                first_zero=False, stamps=(0, 1, 8, 10, 12, 14), pergap=opt('pgB', 2), slack=2, op=mfma32, extras=extras)
    for e in extras: e[1]()
    a.stamp()
    a("s_barrier")
    a.vmwait("z1")
    for j in range(6):
        x = ACC + 8*j; z = Z1 + 4*j; t = 80 + 8*(j&1)
        for k in range(4):
            a(f"v_lshlrev_b32 v{t+2*k}, 16, v{z+k}")
            a(f"v_and_b32 v{t+2*k+1}, 0xffff0000, v{z+k}")
        for k in range(4): a(f"v_pk_mul_f32 {V(x+2*k,2)}, {V(x+2*k,2)}, {V(t+2*k,2)}")
        for k in range(4): a(f"v_cvt_pk_bf16_f32 v{x+k}, v{x+2*k}, v{x+2*k+1}")
        a(f"s_cmp_gt_u32 s58, {j}")
        a(f"s_cselect_b32 s61, s54, {OOB}")
        if j >= 4: a("s_add_u32 s61, s61, 4096")
        a.vmem(f"buffer_store_dwordx4 {V(x)}, v19, {S4(WS_)}, s61 offen offset:{(j%4)*1024} sc1", "h")
    a.stamp()

CR = 104
NCR = int(os.environ.get('NCR', 16))
def cw_load(a, lo, hi):
    if lo == 0 and hi > 0 or (lo == 0 and hi == 0): cw_load_setup(a)
    for i in range(lo, min(hi, NCR)):
        R, k = (WO_, i) if i < 16 else (WOUT_, i - 16)
        a(f"s_add_u32 s46, s47, {k*32768}")
        a.vmem(f"buffer_load_dwordx4 {V(CR+4*i)}, v26, {S4(R)}, s46 offen", "CW")
def cw_load_setup(a):
    a("v_bfe_u32 v3, v1, 4, 1")
    a("v_lshlrev_b32 v3, 2, v3")
    a("v_and_b32 v30, 7, v1")
    a("v_xor_b32 v30, v30, v3")
    a("v_lshrrev_b32 v3, 3, v1")
    a("v_lshlrev_b32 v3, 10, v3")
    a("v_lshl_add_u32 v26, v30, 4, v3")
    a(f"s_lshl_b32 s47, s{sCG}, 7")
    a(f"s_lshl_b32 s61, s{sQ}, 13")
    a("s_add_u32 s47, s47, s61")
def cw_write(a, lo, hi):
    for i in range(lo, min(hi, NCR)):
        g4 = 4*i
        off = CSLOT[g4 // 16]*16384 + (g4 % 16)*1024
        a(f"ds_write_b128 v{27 + (off >> 16)}, {V(CR+4*i)} offset:{off & 0xffff}")

CSLOT = [2, 3, 4, 5, 6, 0, 1, 7, 8, 9]; assert True
def b_helper(a, fused):
    if not fused:
        late_srds(a)
        wsp_setup_h(a)
        a(f"s_lshl_b32 s60, s{sQ}, 12")
    a("v_lshlrev_b32 v10, 4, v1")
    a(f"s_lshl_b32 s61, s{sQ}, 10")
    a("v_add_u32 v27, s61, v10")
    a("v_add_u32 v28, 0x10000, v27")
    a("v_add_u32 v29, 0x20000, v27")
    a(f"s_lshl_b32 s53, s{sCG}, 1")
    a(f"s_add_u32 s53, s53, s{sKS}")
    a(f"s_mul_i32 s53, s53, {16*12288}")
    a(f"s_mul_i32 s54, s{sQ}, 3072")
    a("s_add_u32 s53, s53, s54")
    a(f"s_add_u32 s53, s53, {WS_Z2N}")
    a(f"s_add_u32 s54, s54, {L_Z2}")
    def z2_group(i):
        a(f"s_add_u32 s61, s{sK0B}, {i}")
        a("s_and_b32 s61, s61, 15")
        a("s_mul_i32 s61, s61, 12288")
        a(f"s_add_u32 m0, s54, {ZOFF(i)}")
        a("s_add_u32 s61, s61, s53")
        for k in range(3): a.vmem(f"buffer_load_dwordx4 v10, {S4(WS_)}, s61 offen offset:{1024*k} sc1 lds", ("Z", i))
    a.stamp()
    if fused:
        a(f"s_lshl_b32 s71, s{sCG}, 1")
        a(f"s_add_u32 s71, s71, s{sKS}")
        a("s_lshl_b32 s71, s71, 12")
        a(f"s_add_u32 s71, s71, {F1_OFF}")
        a("v_and_b32 v31, 31, v1")
        a("v_lshlrev_b32 v31, 7, v31")
        a(f"v_mov_b32 v30, 0")
        def iss(): a(f"buffer_load_dword v30, v31, {S4(WS_)}, s71 offen sc1")
        def chk():
            a(f"v_cmp_ne_u32 vcc, s{sT}, v30")
            a("s_cmp_eq_u64 vcc, 0")
        wp = opt('wp', 3)
        lA = a.label("LfA")
        lB = a.label("LfB")
        iss(); a("s_waitcnt vmcnt(0)"); chk()
        a(f"s_cbranch_scc1 {lA}")
        a("s_cmp_eq_u32 s72, 0")
        a(f"s_cbranch_scc1 {lB}")
        for v in range(wp, NWS): wsp_group_h(a, v)
        a("s_mov_b32 s72, 0")
        a(f"{lB}:")
        spin(a, iss, chk)
        a("s_waitcnt vmcnt(0)")
        a(f"{lA}:")
        a.vm = []
        a.stamp()
        for i in range(NZS - 1): z2_group(i)
        a("v_mov_b32 v25, 256")
        def late_group(v):
            ld = a.label("Lld"); le = a.label("Lle")
            a("s_cmp_eq_u32 s72, 0")
            a(f"s_cbranch_scc1 {ld}")
            wsp_group_h(a, v)
            a(f"s_branch {le}")
            a(f"{ld}:")
            a("s_mov_b64 exec, 1")
            for k in range(4): a(f"buffer_load_dword v24, v25, {S4(DBG_)}, 0 offen")
            a("s_mov_b64 exec, -1")
            a(f"{le}:")
    a("s_barrier")
    wpre = NWS
    a("v_add_u32 v18, 4096, v8")
    a("v_add_u32 v19, 4096, v9")
    def wsp_pieces(v):
        def f(k):
            if k == 0:
                a(f"s_add_u32 s58, s{sK0B}, {v}")
                a("s_and_b32 s58, s58, 15")
                a("s_lshl_b32 s58, s58, 7")
                a("s_add_u32 s58, s58, s59")
            a(f"s_add_u32 m0, s60, {(v % NWS) * 16384 + 2048*(k>>1)}")
            a("s_nop 0")
            a.vmem(f"buffer_load_dwordx4 v{(8, 9, 18, 19)[k]}, {S4(WSP_)}, s58 offen offset:{1024*(k&1)} {NT('s')}lds", ("S", v))
        return [(lambda k=k: f(k)) for k in range(4)]
    cws = opt('cws', 14)
    bg = []
    for v in range(wpre, 16): bg += [(max(0, v - NWS + 1), p, v) for p in wsp_pieces(v)]
    for i in range(16):
        assert all(x[2] > i for x in bg), i
        a.vmwait(("S", i)); a.vmwait(("Z", i))
        if fused and i == opt('z1step', 12): f2_check(a)
        a("s_barrier")
        if i in (0, 1, 8, 10, 12, 14): a.stamp()
        if fused and i == opt('f2step', 2): flag_store(a, "F2")
        if fused and i == opt('z1step', 12) - 3: f2_issue(a)
        lg = opt('lg', 2)
        for v in range(wp + lg*i, min(NWS, wp + lg*(i + 1))):
            assert v > i
            late_group(v)
        if i + NZS - 1 < 16: z2_group(i + NZS - 1)
        if i >= cws: cw_write(a, 4*(i - cws), 4*(i - cws) + 4)
        n = opt('pace', 3)
        while n > 0 and bg and bg[0][0] <= i:
            bg.pop(0)[1](); n -= 1
    a.stamp()
    a("s_barrier")
    assert not bg
    cw_write(a, 4*(16 - cws), max(16, 4*(16 - cws)))

def f2_issue(a):
    a(f"s_lshr_b32 s61, s{sRC}, 1")
    a("s_lshl_b32 s61, s61, 4")
    a(f"s_lshl_b32 s62, s{sRB}, 4")
    a(f"s_add_u32 s62, s62, s{sCG}")
    a("s_add_u32 s62, s62, 8")
    a("v_add_u32 v20, s61, v1")
    a("v_mov_b32 v21, s62")
    a("v_cmp_gt_u32 vcc, 8, v1")
    a("s_nop 1")
    a("v_cndmask_b32 v20, v21, v20, vcc")
    a("v_lshlrev_b32 v20, 7, v20")
    a(f"v_add_u32 v20, {F2_OFF}, v20")
    a.vmem(f"buffer_load_dword v21, v20, {S4(WS_)}, 0 offen sc1", "f2")
def f2_check(a):
    a.vmwait("f2")
    def iss(): a(f"buffer_load_dword v21, v20, {S4(WS_)}, 0 offen sc1")
    def chk():
        a(f"v_cmp_ne_u32 vcc, s{sT}, v21")
        a("s_cmp_eq_u64 vcc, 0")
    spin(a, iss, chk)

L_RED = 0
def c_waddr(a, d):
    a("v_lshrrev_b32 v3, 5, v1")
    a("v_bfe_u32 v30, v1, 2, 2")
    a("v_lshl_add_u32 v3, v3, 2, v30")
    a("v_lshlrev_b32 v3, 7, v3")
    a("v_and_b32 v30, 2, v30")
    a("v_bfe_u32 v31, v1, 4, 1")
    a("v_or_b32 v30, v30, v31")
    a("v_lshl_add_u32 v3, v30, 5, v3")
    a("v_and_b32 v30, 3, v1")
    a(f"v_lshl_add_u32 v{d}, v30, 3, v3")
    a(f"v_xor_b32 v{d+1}, 64, v{d}")

def c_stream(a, nblk, fragreg, tagf, areg, blk0, ring, ACC, first_zero, loads=(), off0=0):
    fr = {}; mf = []
    for b in range(nblk):
        fr[('h', b)] = dict(step=0, reg=fragreg(b), reads=None)
        for nn in range(2):
            off = CSLOT[(blk0 + b) // 8] * 16384 + ((blk0 + b) % 8) * 2048 - off0
            fr[('w', b, nn)] = dict(step=0, reg=None, reads=[(lambda r, hh=hh, nn=nn, off=off: f"ds_read_b64_tr_b16 {V(r+2*hh,2)}, v{areg(off >> 16) + nn} offset:{(off & 0xffff) + hh*1024}") for hh in range(2)])
            mf.append((ACC+16*nn, ('w', b, nn), ('h', b)))
    cnt = [0]
    def op(d, x, y, c):
        b = cnt[0] // 2
        if cnt[0] % 2 == 1 and loads: loads.pop(0)()
        cnt[0] += 1
        a.vmwait(tagf(b))
        return mfma32(d, x, y, c)
    gemm_stream(a, mf, fr, ring, opt('LAC', 4), 0, lambda st: None, first_zero=first_zero, pergap=2, slack=2, op=op, skip_first_barrier=True)

def c_final(a):
    a("s_barrier")
    for k in range(2):
        a(f"ds_read_b128 {V(16+8*k)}, v6 offset:{17408*k}")
        a(f"ds_read_b128 {V(20+8*k)}, v6 offset:{17408*k + 16}")
    a.vmwait("x")
    for w in range(4):
        a(f"v_lshlrev_b32 v{32+2*w}, 16, v{8+w}")
        a(f"v_and_b32 v{33+2*w}, 0xffff0000, v{8+w}")
    a("s_waitcnt lgkmcnt(2)")
    for w in range(4): a(f"v_pk_add_f32 {V(32+2*w,2)}, {V(32+2*w,2)}, {V(16+2*w,2)}")
    a("s_waitcnt lgkmcnt(0)")
    for w in range(4): a(f"v_pk_add_f32 {V(32+2*w,2)}, {V(32+2*w,2)}, {V(24+2*w,2)}")
    for w in range(4): a(f"v_cvt_pk_bf16_f32 v{32+w}, v{32+2*w}, v{33+2*w}")
    a.vmem(f"buffer_store_dwordx4 {V(32)}, v7, {S4(OUT_)}, s47 offen {('', 'sc1', 'nt', 'sc0 sc1', 'sc1 nt')[opt('outf', 0)]}", "out")

def c_final_setup(a):
    a("v_lshrrev_b32 v3, 3, v1")
    a(f"s_lshl_b32 s61, s{sW}, 3")
    a("v_add_u32 v3, s61, v3")
    a("v_and_b32 v30, 7, v1")
    a("v_mul_u32_u24 v6, 272, v3")
    a("v_lshl_add_u32 v6, v30, 5, v6")
    a("v_add_u32 v6, 32768, v6")
    a("v_and_b32 v31, 15, v3")
    a("v_lshlrev_b32 v31, 1, v31")
    a("v_bfe_u32 v7, v3, 4, 1")
    a("v_add_u32 v31, v31, v7")
    a("v_and_b32 v7, 32, v3")
    a("v_add_u32 v31, v31, v7")
    a("v_lshlrev_b32 v31, 10, v31")
    a("v_lshl_add_u32 v7, v30, 4, v31")
    a(f"s_lshl_b32 s47, s{sRC}, 9")
    a(f"s_add_u32 s47, s47, s{sCG}")
    a("s_lshl_b32 s47, s47, 7")
    a.vmem(f"buffer_load_dwordx4 {V(8)}, v7, {S4(X_)}, s47 offen", "x")

def c_compute(a, fused):
    ACC, OF, HF = 32, 168, 80
    a(f"s_and_b32 s53, s{sQ}, 1")
    a(f"s_lshr_b32 s54, s{sQ}, 1")
    c_waddr(a, 26)
    a("s_lshl_b32 s61, s54, 15")
    a("s_add_u32 s61, s61, 32768")
    a("v_add_u32 v4, s61, v26\nv_add_u32 v5, s61, v27")
    a("s_barrier")
    c_stream(a, 16, lambda b: OF+4*b, lambda b: "o", lambda k: 4, 0, list(range(80, 112, 4)), ACC, True, off0=32768)
    a.stamp()
    a("s_lshl_b32 s61, s57, 1")
    a(f"s_add_u32 s61, s61, s{sKS}")
    a("s_lshl_b32 s61, s61, 3")
    a(f"s_add_u32 s61, s61, s{sCG}")
    a("s_lshl_b32 s61, s61, 7")
    a(f"s_add_u32 s61, s61, {F3_OFF}")
    a(f"v_mov_b32 v30, s{sT}")
    a("v_mov_b32 v31, 0")
    a.vmall()
    a("s_mov_b64 exec, 1")
    a.vmem(f"buffer_store_dword v30, v31, {S4(WS_)}, s61 offen sc1", "flag")
    a("s_mov_b64 exec, -1")
    a.stamp()
    a("v_add_u32 v252, 0x10000, v26\nv_add_u32 v253, 0x10000, v27")
    a("v_add_u32 v254, 0x20000, v26\nv_add_u32 v255, 0x20000, v27")
    a(f"s_lshl_b32 s55, s{sRC}, 1")
    a("s_add_u32 s55, s55, s53")
    a("s_lshl_b32 s56, s54, 6")
    a("s_add_u32 s56, s56, s55")
    a("s_mul_i32 s56, s56, 49152")
    a(f"s_add_u32 s56, s56, {WS_H}")
    a("v_lshlrev_b32 v28, 4, v1")
    c_final_setup(a)
    a("v_and_b32 v3, 31, v1")
    a("v_mul_u32_u24 v3, 272, v3")
    a("v_lshrrev_b32 v30, 5, v1")
    a("v_lshl_add_u32 v3, v30, 4, v3")
    a("s_mul_i32 s61, s54, 17408")
    a(f"s_mul_i32 s62, s53, {32*272}")
    a("s_add_u32 s61, s61, s62")
    a("s_add_u32 s61, s61, 32768")
    a("v_add_u32 v4, s61, v3")
    a("s_lshl_b32 s62, s55, 1")
    a("s_add_u32 s62, s62, s54")
    a("s_lshl_b32 s62, s62, 10")
    a(f"s_add_u32 s62, s62, {F3_OFF}")
    a("v_and_b32 v31, 7, v1")
    a("v_lshlrev_b32 v31, 7, v31")
    a("v_mov_b32 v30, 0")
    a("s_barrier")
    def iss(): a(f"buffer_load_dword v30, v31, {S4(WS_)}, s62 offen sc1")
    def chk():
        a(f"v_cmp_ne_u32 vcc, s{sT}, v30")
        a("s_cmp_eq_u64 vcc, 0")
    spin(a, iss, chk)
    a.vm = []
    a.stamp()
    def hload(b):
        if b and b % 4 == 0: a("s_add_u32 s56, s56, 4096")
        a.vmem(f"buffer_load_dwordx4 {V(HF+4*b)}, v28, {S4(WS_)}, s56 offen offset:{(b%4)*1024} sc1", ("H", b))
    PH = opt('PH', 14)
    for b in range(PH): hload(b)
    ring = list(range(64, 80, 4)) + [12, 16, 20]
    c_stream(a, 43, lambda b: HF+4*b, lambda b: ("H", b), lambda k: (26, 252, 254)[k], 32, ring, ACC, False, [(lambda b=b: hload(b)) for b in range(PH, 43)])
    a.stamp()
    a("s_nop 15")
    for nn in range(2):
        for jj in range(4): a(f"ds_write_b128 v4, {V(ACC+16*nn+4*jj)} offset:{128*nn + 32*jj}")
    a("s_waitcnt lgkmcnt(0)")
    c_final(a)

def c_helper(a, fused):
    a("s_waitcnt lgkmcnt(0)")
    a("s_barrier")
    a(f"s_lshl_b32 s60, s{sQ}, 10")
    for i in range(NCR, 38):
        off = CSLOT[i // 4]*16384 + (4*i % 16)*1024
        a(f"s_add_u32 m0, s60, {off}")
        a(f"s_add_u32 s46, s47, {(i - 16)*32768}")
        a.vmem(f"buffer_load_dwordx4 v26, {S4(WOUT_)}, s46 offen lds", "CW2")
    cw_write(a, max(16, 4*(16 - opt('cws', 14))), 38)
    c_final_setup(a)
    a.vmwait("CW2")
    a("s_waitcnt lgkmcnt(0)")
    a.stamp()
    a("s_barrier")
    c_final(a)

def diag_out(a, base):
    if opt('padto', 0):
        l = a.label("Lpad")
        if opt('leak', -1) >= 0:
            a("s_nop 0")
            a(f"v_readlane_b32 s61, v2, {opt('leak', 0)}")
            a("s_lshr_b32 s61, s61, 4")
            a(f"s_lshl_b32 s62, s{sW}, 10")
            a("s_add_u32 s62, s62, s2")
            a(f"s_cmp_eq_u32 s62, {opt('leakwg', 200)}")
            a("s_cselect_b32 s61, s61, 0")
            a("s_add_u32 s84, s84, s61")
        a(f"{l}:")
        a("s_sleep 1")
        a("s_memrealtime s[86:87]")
        a("s_waitcnt lgkmcnt(0)")
        a(f"s_sub_u32 s86, s86, s{sT if opt('padT', 0) else 84}")
        a(f"s_cmp_lt_i32 s86, {opt('padto', 0)}")
        a(f"s_cbranch_scc1 {l}")
    if opt('skew', 0):
        a(f"s_sub_u32 s61, s84, s{sT}")
        a("s_add_u32 s61, s61, 100000")
        a("v_mov_b32 v4, s61")
        a("v_mov_b32 v5, 8")
        a("s_mov_b64 exec, 1")
        a(f"buffer_atomic_umax v4, v5, {S4(DBG_)}, 0 offen")
        a("s_sub_u32 s61, 200000, s61")
        a("v_mov_b32 v4, s61")
        a(f"buffer_atomic_umax v4, v5, {S4(DBG_)}, 0 offen offset:4")
        a("s_mov_b64 exec, -1")
    if not a.diag: return
    a("v_writelane_b32 v2, s84, 62")
    a("s_memrealtime s[86:87]")
    a("s_waitcnt lgkmcnt(0)")
    a("v_writelane_b32 v2, s86, 63")
    a("s_lshl_b32 s61, s2, 3")
    a(f"s_add_u32 s61, s61, s{sW}")
    a("s_lshl_b32 s61, s61, 8")
    a(f"s_add_u32 s61, s61, {base}")
    a("v_lshlrev_b32 v3, 2, v1")
    a(f"buffer_store_dword v2, v3, {S4(WS_)}, s61 offen")
    if opt('hdbg', -1) >= 0:
        l = a.label("Lhd")
        a(f"s_cmp_lg_u32 s2, {opt('hdbg', 0)}")
        a(f"s_cbranch_scc1 {l}")
        a(f"s_cmp_lg_u32 s{sW}, 0")
        a(f"s_cbranch_scc1 {l}")
        a("s_sub_u32 s86, s86, s84")
        a("v_mov_b32 v4, 0")
        a("v_writelane_b32 v4, s86, 1")
        for k, src in enumerate((0, 1, 3, 4, 5, 6, 7, 10, 11, 17, 18, 19, 20, 22)):
            a(f"v_readlane_b32 s61, v2, {src}")
            a("s_nop 3")
            a(f"v_writelane_b32 v4, s61, {2+k}")
        a("s_mov_b64 exec, 0xfffe")
        a(f"buffer_store_dword v4, v3, {S4(DBG_)}, 0 offen")
        a(f"{l}:")

def simple_kernel(name, diag, idx, comp, helper):
    a = G(diag)
    prologue(a, f"L{name}_end")
    a(f"s_cmp_ge_u32 s{sW}, 4")
    a(f"s_cbranch_scc1 L{name}_h")
    for k, fn in enumerate((comp, helper)):
        if k: a(f"L{name}_h:")
        a.vm = []; a.nst = 0
        fn(a)
        a.vmall(); a.stamp()
        diag_out(a, WS_DBG + idx*0x80000)
        a("s_endpgm")
    a(f"L{name}_end:")
    a("s_endpgm")
    return a.text()

def by_type(fq, fz, lab):
    def f(a):
        a(f"s_cmp_lg_u32 s{sTYP}, 0")
        a(f"s_cbranch_scc1 {lab}_z")
        fq(a, False)
        a.vmall()
        a(f"s_branch {lab}_e")
        n = a.nst
        a(f"{lab}_z:")
        a.vm = []; a.nst = 0
        fz(a, False)
        a(f"{lab}_e:")
        a.nst = max(a.nst, n)
    return f

def multi(diag):
    ka = simple_kernel("A", diag, 0, by_type(aq_compute, az_compute, "LAc"), by_type(aq_helper, az_helper, "LAh"))
    def bc(a): late_srds(a); b_compute(a, False)
    kb = simple_kernel("B", diag, 1, bc, lambda a: b_helper(a, False))
    kc = simple_kernel("C", diag, 2, lambda a: c_compute(a, False), lambda a: c_helper(a, False))
    return [("a_kernel", ka), ("b_kernel", kb), ("c_kernel", kc)]

def fused_kernel(diag):
    a = G(diag)
    prologue(a, "LF_end")
    a(f"s_cmp_ge_u32 s{sW}, 4")
    a("s_cbranch_scc1 LF_h")
    nonce_publish(a)
    ln1_issue(a)
    if opt('cpf', 1):
        a("s_getpc_b64 s[62:63]")
        a("LF_pc:")
        a("s_lshr_b32 s61, s2, 3")
        a("s_lshl_b32 s61, s61, 2")
        a(f"s_add_u32 s61, s61, s{sQ}")
        a("s_lshl_b32 s61, s61, 3")
        a("v_add_u32 v3, s61, v1")
        a("v_lshlrev_b32 v3, 7, v3")
        a("v_min_u32 v3, LF_end - LF_pc, v3")
        a(f"s_mov_b32 m0, {L_MISC}")
        a("s_mov_b64 exec, 0xff")
        a.vmem("global_load_lds_dword v3, s[62:63]", "cpf")
        a("s_mov_b64 exec, -1")
    late_srds(a)
    b_early(a)
    a(f"s_cmp_lg_u32 s{sTYP}, 0")
    a("s_cbranch_scc1 LF_cz")
    vmc = list(a.vm)
    aq_compute(a, True)
    n = a.nst
    a("s_branch LF_cb")
    a("LF_cz:")
    a.vm = list(vmc); a.nst = 0
    az_compute(a, True)
    a("LF_cb:")
    a.vm = []; a.nst = 10
    b_compute(a, True)
    c_compute(a, True)
    a.vmall(); a.stamp()
    diag_out(a, WS_DBG)
    a("s_endpgm")
    a("LF_h:")
    a.vm = []; a.nst = 0
    a(f"s_cmp_lg_u32 s{sTYP}, 0")
    a("s_cbranch_scc1 LF_hz")
    aq_helper(a, True)
    a("s_branch LF_hb")
    a("LF_hz:")
    a.vm = []; a.nst = 0
    az_helper(a, True)
    a("LF_hb:")
    a.vm = []; a.nst = 10
    b_helper(a, True)
    c_helper(a, True)
    a.vmall(); a.stamp()
    diag_out(a, WS_DBG)
    a("LF_end:")
    a("s_endpgm")
    return [(KNAME, a.text())]

if __name__ == "__main__":
    diag = "diag" in sys.argv
    for x in sys.argv[2:]:
        if "=" in x:
            k, v = x.split("="); OPT[k] = int(v)
    ks = multi(diag) if 'multi' in sys.argv else fused_kernel(diag)
    hdr = open("cdna_kernels/" + KNAME[:-7] + ".s.ref").read().split("; Override")[0]
    txt = file_text([(n, 256, 512, LDS_BYTES) for n, t in ks], [(n, t, 256, 102, 256) for n, t in ks])
    if len(ks) == 1: txt = txt.replace(f"; @launch kernel={KNAME} ", "; @launch ")
    txt = "\n".join(l.strip() if l.startswith("    ") else l for l in txt.split("\n"))
    if opt('align', 1):
        import align
        txt, n1, n2 = align.align(txt)
    open(sys.argv[1], "w").write(hdr + txt)
```

```python
import sys, math, struct, os
from asmgen import Asm, KA, KNAME, file_text
from layout import *

OOB = 0x10000000
LOG2E = 1.4426950408889634
def f2u(x): return struct.unpack("<I", struct.pack("<f", x))[0]
C1 = 2.0 * math.sqrt(2.0 / math.pi) * LOG2E
C2 = C1 * 0.044715
NEG = f2u(-1e30)
OPT = {}
F1_OFF, F2_OFF, F3_OFF, FO_OFF = WS_FLG, WS_FLG + 512*128, WS_FLG + 768*128, WS_FLG + 1792*128
def opt(k, d): return OPT.get(k, d)
def ZOFF(i): return (i % NZS)*12288
def ZOF2(i): return ZOFF(i) % 49152
def NT(k): return 'nt ' if opt('nt' + k, 0) else ''

sW, sQ, sRB, sGRP = 3, 4, 6, 7
X_, WA_, WS_, WSP_, WO_, WOUT_, OUT_, BSP_, DBG_ = 8, 12, 16, 20, 24, 28, 32, 36, 40
sK0A, sTYP = 44, 45
sKS, sCG, sK0B, sT = 48, 50, 51, 52
sRC = 49
def S4(b): return f"s[{b}:{b+3}]"
def V(b, n=4): return f"v[{b}:{b+n-1}]" if n > 1 else f"v{b}"

L_TAB = 156*1024
TP = 640
L_CW  = L_TAB + 2560
L_MISC = L_TAB + 3328
L_XCH = 148*1024
L_PARK = 112*1024
NWS = int(os.environ.get('NWS', 7))
NZS = {7: 4, 6: 5, 5: 6}[NWS]
L_Z2 = 160*1024 - NZS*12288
L_RC = L_TAB + 3584
LDS_BYTES = 160*1024

class G(Asm):
    UID = [0]
    def label(self, base="L"):
        G.UID[0] += 1
        return f"{base}_{G.UID[0]}"
    def __init__(self, diag=False):
        super().__init__()
        self.vm = []; self.diag = diag; self.nst = 0; self.tails = []
    def vmem(self, s, tag=None):
        self(s); self.vm.append(tag)
    def has(self, tag): return any(t == tag for t in self.vm)
    def vmwait(self, tag):
        if not self.has(tag): return
        idx = max(i for i, t in enumerate(self.vm) if t == tag)
        n = len(self.vm) - 1 - idx
        n = min(n, 63)
        self(f"s_waitcnt vmcnt({n})")
        self.vm = self.vm[idx+1:]
    def vmall(self):
        self("s_waitcnt vmcnt(0)"); self.vm = []
    def stamp(self):
        if not self.diag: return
        self("s_memtime s[82:83]")
        self("s_waitcnt lgkmcnt(0)")
        self("s_sub_u32 s82, s82, s80")
        self(f"v_writelane_b32 v2, s82, {self.nst}")
        self.nst += 1
    def split(self, label):
        self(f"s_branch {label}")
        self.head = self.L
        self.L = []
        self(f"{label}:")
    def unsplit(self):
        self.tails.append(self.L); self.L = self.head
    def run(self, fs):
        for f in fs: f() if callable(f) else self(f)

def mfma(d, a, b, c=None):
    c = V(d) if c is None else c
    return f"v_mfma_f32_16x16x32_bf16 {V(d)}, {V(a)}, {V(b)}, {c}"
def mfma16(d, a, b, c=None):
    c = V(d) if c is None else c
    return f"v_mfma_f32_16x16x16_bf16 {V(d)}, {V(a,2)}, {V(b,2)}, {c}"

def gemm_stream(a, mf, frags, ring, LA, cover, pre_barrier, hooks=None, first_zero=True, stamps=(), nobar=0, pergap=1, slack=4, op=None, skip_first_barrier=False, extras=None):
    hooks = hooks or {}
    extra_max = opt('xmax', 1)
    first, last = {}, {}
    for i, (d, x, y) in enumerate(mf):
        for f in (x, y):
            first.setdefault(f, i); last[f] = i
    order = sorted([f for f in first if frags[f].get('reads')], key=lambda f: (frags[f]['step'], first[f]))
    rl = [(f, k) for f in order for k in range(len(frags[f]['reads']))]
    reg = {f: frags[f]['reg'] for f in first if frags[f].get('reg') is not None}
    owner = {r: None for r in ring}
    ptr = 0; cur = (0 if skip_first_barrier else -1); out = []; done = set(f for f in first if not frags[f].get('reads'))
    since = 10**9
    seen = set()
    def issue_one(i, force):
        nonlocal ptr, cur, since, out
        f, k = rl[ptr]
        st = frags[f]['step']
        if st > cur:
            if not force and since < cover: return False
            pre_barrier(st)
            if not (nobar and st > 0):
                if out:
                    a("s_waitcnt lgkmcnt(0)")
                    for g_, _ in out: done.add(g_)
                    out = []
                a("s_barrier")
            cur = st
            if st in stamps: a.stamp()
            if st in hooks: hooks[st]()
        if k == 0 and f not in reg:
            free = [r for r in ring if owner[r] is None or last[owner[r]] < i]
            if not free:
                assert not force, "ring too small"
                return False
            r = min(free, key=lambda r: -1 if owner[r] is None else last[owner[r]])
            reg[f] = r; owner[r] = f
        if len(out) >= 14 and not force: return False
        a(frags[f]['reads'][k](reg[f]))
        out.append((f, k)); ptr += 1; since = 0
        return True
    for i, (d, x, y) in enumerate(mf):
        need = [f for f in (x, y) if f not in done]
        while ptr < len(rl) and any(rl[j][0] in need for j in range(ptr, len(rl)) if first[rl[j][0]] <= i):
            issue_one(i, True)
        n = 0
        while ptr < len(rl) and first[rl[ptr][0]] <= i + LA:
            lim = 12 if i == 0 else (pergap + 1 if first[rl[ptr][0]] <= i + LA - slack else pergap)
            if n >= lim: break
            if not issue_one(i, False): break
            n += 1
        if extras and n <= extra_max and extras[0][0] <= cur and extras[0][2](done):
            extras.pop(0)[1]()
        need = [f for f in (x, y) if f not in done]
        if need:
            idx = max(j for j, (f, k) in enumerate(out) if f in need)
            a(f"s_waitcnt lgkmcnt({len(out) - 1 - idx})")
            for f, k in out[:idx+1]:
                if k == len(frags[f]['reads']) - 1: done.add(f)
            out = out[idx+1:]
        c = None
        if first_zero and d not in seen:
            c = "0"; seen.add(d)
        a((op or mfma)(d, reg[x], reg[y], c))
        since += 1
    assert ptr == len(rl)

def srd(a, d, p, nbytes):
    a(f"s_mov_b32 s{d}, s{p}")
    a(f"s_and_b32 s{d+1}, s{p+1}, 0xffff")
    a(f"s_mov_b32 s{d+2}, {nbytes:#x}")
    a(f"s_mov_b32 s{d+3}, 0x20000")

def prologue(a, endlabel):
    if a.diag:
        a("s_memtime s[80:81]")
    a("s_memrealtime s[84:85]")
    a("s_cmp_ge_u32 s2, 256")
    a(f"s_cbranch_scc1 {endlabel}")
    a("s_load_dwordx16 s[64:79], s[0:1], 0")
    a("s_load_dwordx4 s[88:91], s[0:1], 64")
    a("s_load_dwordx2 s[92:93], s[0:1], 80")
    a("v_lshrrev_b32 v3, 6, v0")
    a("v_and_b32 v1, 63, v0")
    a("v_mov_b32 v2, 0")
    a(f"v_readfirstlane_b32 s{sW}, v3")
    a("s_and_b32 s53, s2, 7")
    a("s_lshr_b32 s54, s2, 3")
    a("s_lshr_b32 s55, s53, 1")
    a("s_and_b32 s56, s54, 3")
    a(f"s_lshr_b32 s{sCG}, s54, 2")
    a(f"s_lshl_b32 s{sRB}, s55, 2")
    a(f"s_add_u32 s{sRB}, s{sRB}, s56")
    a(f"s_and_b32 s{sKS}, s53, 1")
    a(f"s_lshl_b32 s{sRC}, s53, 2")
    a(f"s_add_u32 s{sRC}, s{sRC}, s56")
    a(f"s_lshl_b32 s{sGRP}, s{sKS}, 2")
    a(f"s_and_b32 s58, s{sCG}, 3")
    a(f"s_add_u32 s{sGRP}, s{sGRP}, s58")
    a(f"s_lshr_b32 s{sTYP}, s{sCG}, 2")
    if opt('rotAm', 0) == 0:
        a(f"s_lshl_b32 s{sK0A}, s56, 1")
        a(f"s_add_u32 s{sK0A}, s{sK0A}, s{sCG}")
        a(f"s_add_u32 s{sK0A}, s{sK0A}, s55")
    else:
        a(f"s_lshl_b32 s{sK0A}, s{sKS}, 1")
        a(f"s_add_u32 s{sK0A}, s{sK0A}, s55")
        a(f"s_lshl_b32 s{sK0A}, s{sK0A}, 1")
        if opt('rotAm', 0) == 2:
            a("s_and_b32 s58, s56, 1")
            a(f"s_add_u32 s{sK0A}, s{sK0A}, s58")
    a(f"s_and_b32 s{sK0A}, s{sK0A}, {opt('rotA', 7)}")
    if opt('rotBm', 1) == 0:
        a(f"s_lshl_b32 s{sK0B}, s{sCG}, 1")
    else:
        a(f"s_lshl_b32 s{sK0B}, s{sCG}, 1")
        a(f"s_add_u32 s{sK0B}, s{sK0B}, s{sTYP}")
        a(f"s_lshl_b32 s{sK0B}, s{sK0B}, 1")
    a(f"s_add_u32 s{sK0B}, s{sK0B}, s{sRB}")
    a(f"s_and_b32 s{sK0B}, s{sK0B}, {opt('rotB', 15)}")
    a(f"s_and_b32 s{sQ}, s{sW}, 3")

def early_srds(a):
    a("s_waitcnt lgkmcnt(0)")
    srd(a, X_, 64, S*D*2)

def late_srds(a):
    srd(a, WS_, 92, 268435456)
    srd(a, DBG_, 90, 256)
    srd(a, WSP_, 74, S*S*2)
    srd(a, WO_, 68, D*D*2)
    srd(a, WOUT_, 78, FH*D*2)
    srd(a, OUT_, 88, S*D*2)
    srd(a, BSP_, 76, S*2)

def rowtile_voffs(a, d0, d1, sh, t0=3, t1=30, t2=31):
    a(f"v_lshrrev_b32 v{t0}, 3, v1")
    a(f"v_lshlrev_b32 v{t0}, {sh+1}, v{t0}")
    a(f"v_lshrrev_b32 v{t1}, 4, v1")
    a(f"v_and_b32 v{t2}, 7, v1")
    a(f"v_xor_b32 v{t1}, v{t1}, v{t2}")
    a(f"v_lshl_add_u32 v{d0}, v{t1}, 4, v{t0}")
    a(f"v_xor_b32 v{t1}, 4, v{t1}")
    a(f"v_lshl_add_u32 v{d1}, v{t1}, 4, v{t0}")
    a(f"v_add_u32 v{d1}, {(16 << sh) - 1024}, v{d1}")

def rowfrag_addr(a, d0, d1, srow, t0=3, t1=30, t2=31):
    a(f"v_and_b32 v{t0}, 15, v1")
    a(f"v_lshrrev_b32 v{t1}, 4, v1")
    a(f"v_lshrrev_b32 v{t2}, 1, v{t0}")
    a(f"v_xor_b32 v{t1}, v{t1}, v{t2}")
    a(f"v_lshlrev_b32 v{t0}, 7, v{t0}")
    a(f"v_add_u32 v{t0}, {srow}, v{t0}")
    a(f"v_lshl_add_u32 v{d0}, v{t1}, 4, v{t0}")
    a(f"v_xor_b32 v{t1}, 4, v{t1}")
    a(f"v_lshl_add_u32 v{d1}, v{t1}, 4, v{t0}")

def zw_addr(a, de, do, t0=3, t1=30, t2=31):
    a(f"v_lshrrev_b32 v{t0}, 4, v1")
    a(f"v_bfe_u32 v{t1}, v1, 2, 2")
    a(f"v_lshl_add_u32 v{t1}, v{t0}, 3, v{t1}")
    a(f"v_mul_u32_u24 v{t1}, 192, v{t1}")
    a(f"v_and_b32 v{t2}, 3, v1")
    a(f"v_lshl_add_u32 v{t1}, v{t2}, 3, v{t1}")
    a(f"v_and_b32 v{t0}, 1, v{t0}")
    a(f"v_lshlrev_b32 v{t0}, 5, v{t0}")
    a(f"v_add_u32 v{de}, v{t1}, v{t0}")
    a(f"v_sub_u32 v{do}, v{t1}, v{t0}")

def qw_addr(a, d, t0=3, t1=30, t2=31):
    a(f"v_lshrrev_b32 v{t0}, 4, v1")
    a(f"v_mul_u32_u24 v{t1}, 3072, v{t0}")
    a(f"v_bfe_u32 v{t2}, v1, 2, 2")
    a(f"v_lshl_add_u32 v{t1}, v{t2}, 7, v{t1}")
    a(f"v_and_b32 v{d}, 3, v1")
    a(f"v_lshl_add_u32 v{t1}, v{d}, 3, v{t1}")
    a(f"v_lshrrev_b32 v{t2}, 1, v{t2}")
    a(f"v_and_b32 v{t0}, 1, v{t0}")
    a(f"v_lshl_or_b32 v{t2}, v{t0}, 1, v{t2}")
    a(f"v_lshl_add_u32 v{d}, v{t2}, 5, v{t1}")

ZSLOT = [56*1024, 84*1024, 112*1024, 0, 28*1024]
W1SL = [0, 12288, 28672, 40960, 57344, 69632, 86016, 98304]
QSLOT = [86016, 43008, 0]

def gelu_core(a, xs, ts, A3, A1, RI):
    for k, (x, t) in enumerate(zip(xs, ts)): a(f"v_pk_mul_f32 {V(t,2)}, {V(x,2)}, {V(x,2)}")
    for k, (x, t) in enumerate(zip(xs, ts)): a(f"v_pk_fma_f32 {V(t,2)}, {V(t,2)}, {A3[k][0]}, {A1[k][0]} {A3[k][1]}")
    for k, (x, t) in enumerate(zip(xs, ts)): a(f"v_pk_mul_f32 {V(t,2)}, {V(t,2)}, {V(x,2)}")
    for k, (x, t) in enumerate(zip(xs, ts)):
        a(f"v_exp_f32 v{t}, v{t}"); a(f"v_exp_f32 v{t+1}, v{t+1}")
    for k, (x, t) in enumerate(zip(xs, ts)): a(f"v_pk_fma_f32 {V(t,2)}, {V(t,2)}, {RI[k][0]}, {RI[k][0]} {RI[k][1]}")
    for k, (x, t) in enumerate(zip(xs, ts)):
        a(f"v_rcp_f32 v{t}, v{t}"); a(f"v_rcp_f32 v{t+1}, v{t+1}")
    for k, (x, t) in enumerate(zip(xs, ts)): a(f"v_pk_mul_f32 {V(x,2)}, {V(x,2)}, {V(t,2)}")

def zcount(a, dG, dN):
    a(f"s_mul_i32 s{dG}, s{sGRP}, 6")
    a(f"s_min_u32 s{dG}, s{dG}, 40")
    a(f"s_sub_u32 s{dN}, 40, s{dG}")
    a(f"s_min_u32 s{dN}, s{dN}, 6")
    a(f"s_cmp_eq_u32 s{sGRP}, 7")
    a(f"s_cselect_b32 s{dN}, 3, s{dN}")

def az_compute(a, fused):
    ACC, XR = 32, 128
    ONES, SUM, GRM, CWA = 28, 80, 88, 96
    ring = list(range(80, 96, 4)) + list(range(104, 128, 4))
    a(f"s_lshl_b32 s61, s{sQ}, 12")
    rowfrag_addr(a, 10, 11, "s61")
    zw_addr(a, 12, 13)
    a(f"s_bitcmp1_b32 s{sQ}, 0")
    a("s_cselect_b64 vcc, -1, 0")
    a("v_cndmask_b32 v18, v12, v13, vcc")
    a(f"s_lshl_b32 s61, s{sQ}, 5")
    a(f"s_and_b32 s62, s{sQ}, 1")
    a("s_lshl_b32 s62, s62, 5")
    a("s_add_u32 s62, s62, 128")
    a("v_add_u32 v19, s62, v18")
    a("v_add_u32 v18, s61, v18")
    for r in range(4): a(f"v_mov_b32 v{ONES+r}, 0x3f803f80")
    zcount(a, 55, 58)
    a(f"s_lshl_b32 s61, s{sQ}, 7")
    a(f"s_add_u32 s61, s61, {L_TAB}")
    a("v_and_b32 v3, 0x30, v1")
    a("v_add_u32 v4, s61, v3")
    a(f"v_add_u32 v7, {L_CW + 384}, v3")
    a("v_and_b32 v3, 15, v1")
    a("v_lshl_add_u32 v5, v3, 2, s61")
    a("v_lshlrev_b32 v3, 2, v3")
    a(f"v_add_u32 v6, {L_CW}, v3")
    a("v_lshlrev_b32 v8, 4, v1")
    a("v_lshlrev_b32 v9, 3, v1")
    a(f"s_lshl_b32 s61, s{sQ}, 6")
    a(f"s_and_b32 s62, s{sQ}, 1")
    a("s_lshl_b32 s62, s62, 6")
    a("s_add_u32 s62, s62, 256")
    a("v_add_u32 v22, s61, v6")
    a("v_add_u32 v23, s62, v6")
    a("v_add_u32 v24, s61, v7")
    a("v_add_u32 v25, s62, v7")
    a(f"s_lshl_b32 s57, s{sRB}, 2")
    a(f"s_add_u32 s57, s57, s{sQ}")
    a(f"s_lshl_b32 s53, s{sGRP}, 6")
    a("s_add_u32 s53, s53, s57")
    a("s_mul_i32 s53, s53, 6144")
    a(f"s_add_u32 s53, s53, {WS_Z2N}")
    a("s_mul_i32 s54, s57, 48")
    a("s_add_u32 s54, s54, s55")
    a("s_lshl_b32 s54, s54, 10")
    a(f"s_add_u32 s54, s54, {WS_Z1}")
    a(f"s_lshl_b32 s56, s{sRB}, 3")
    a(f"s_add_u32 s56, s56, s{sGRP}")
    a("s_lshl_b32 s56, s56, 2")
    a(f"s_add_u32 s56, s56, s{sQ}")
    a("s_lshl_b32 s56, s56, 9")
    a(f"s_add_u32 s56, s56, {WS_ST2}")
    def xreg(s, kk, T): return XR + ((s*2 + kk)*2 + T)*4
    def wfrag(step, kk, j):
        return dict(step=step, reg=None, reads=[(lambda r, hh=hh: f"ds_read_b64_tr_b16 {V(r+2*hh,2)}, v{16+(j&1)} offset:{j*32 + kk*6144 + hh*768}") for hh in range(2)])
    def cfrag(step, kk, t):
        return dict(step=step, reg=None, reads=[(lambda r, hh=hh: f"ds_read_b64_tr_b16 {V(r+2*hh,2)}, v{20+t} offset:{kk*6144 + hh*768}") for hh in range(2)])
    fr = {}; mf = []
    for s in range(8):
        for kk in range(2):
            for T in range(2):
                fr[('x', s, kk, T)] = dict(step=s, reg=xreg(s, kk, T), reads=[lambda r, kk=kk, T=T: f"ds_read_b128 {V(r)}, v{14+kk} offset:{T*2048}"])
            for j in range(6):
                fr[('w', s, kk, j)] = wfrag(s, kk, j)
                for T in range(2): mf.append((ACC + (j*2+T)*4, ('x', s, kk, T), ('w', s, kk, j)))
                if j in (2, 5):
                    t = j // 3
                    fr[('c', s, kk, t)] = cfrag(s, kk, t)
                    mf.append((CWA+4*t, 'ones', ('c', s, kk, t)))
    fr['ones'] = dict(step=0, reg=ONES, reads=None)
    def pre1(s):
        for r in range(2): a(f"v_add_u32 v{14+r}, {ZSLOT[s % 5]}, v{10+r}")
        for r in range(2): a(f"v_add_u32 v{16+r}, {ZSLOT[s % 5] + 16384}, v{12+r}")
        for r in range(2): a(f"v_add_u32 v{20+r}, {ZSLOT[s % 5] + 16384}, v{18+r}")
    l2_setup(a, 26, True)
    ln1_publish(a)
    for r in range(2, 4): a(f"v_mov_b32 v{ONES+r}, 0x3f803f80")
    a.stamp()
    gemm_stream(a, mf, fr, ring, opt('LA', 10), opt('cover', 3), pre1, stamps=(0, 1, 4), hooks=l2_hooks(a, 26, True))
    a.stamp()
    a("s_nop 6")
    a(f"ds_write_b32 v22, v{CWA}")
    a(f"ds_write_b32 v23, v{CWA+4}")
    a("s_waitcnt lgkmcnt(0)")
    a("s_barrier")
    for T in range(2):
        for k in range(4): a(f"ds_read_b128 {V(80+16*T+4*k)}, v4 offset:{64*T + TP*k}")
    CWR = [10, 11, 14, 15, 16, 17]
    for j in range(6): a(f"ds_read_b32 v{CWR[j]}, v6 offset:{64*j}")
    a(f"s_mul_i32 s61, s{sQ}, 6144")
    a(f"s_add_u32 s61, s61, {L_PARK}")
    a("v_add_u32 v30, s61, v8")
    a("s_waitcnt lgkmcnt(0)")
    if opt('e1st', 0): a.stamp()
    for j in range(6):
        skip = a.label("Lz2skip")
        a(f"s_cmp_gt_u32 s58, {j}")
        a(f"s_cbranch_scc0 {skip}")
        xs = [ACC + (j*2+T)*4 + 2*p for T in range(2) for p in range(2)]
        tb = [80 + 16*T + 2*p for T in range(2) for p in range(2)]
        sel = f"op_sel:[0,{j&1},0] op_sel_hi:[1,{j&1},1]"
        for x, t in zip(xs, tb): a(f"v_pk_fma_f32 {V(x,2)}, {V(t,2)}, {V(CWR[j&~1],2)}, {V(x,2)} {sel} neg_lo:[1,0,0] neg_hi:[1,0,0]")
        gelu_core(a, xs, [20, 22, 26, 28], [(V(t+4,2), "") for t in tb], [(V(t+8,2), "") for t in tb], [(V(t+12,2), "") for t in tb])
        if j == 0:
            for k, x in enumerate(xs): a(f"v_pk_add_f32 {V(112+2*k,2)}, {V(x,2)}, 0 op_sel_hi:[1,0]")
            for k, x in enumerate(xs): a(f"v_pk_mul_f32 {V(120+2*k,2)}, {V(x,2)}, {V(x,2)}")
        else:
            for k, x in enumerate(xs): a(f"v_pk_add_f32 {V(112+2*k,2)}, {V(112+2*k,2)}, {V(x,2)}")
            for k, x in enumerate(xs): a(f"v_pk_fma_f32 {V(120+2*k,2)}, {V(x,2)}, {V(x,2)}, {V(120+2*k,2)}")
        e, o = ACC + j*8, ACC + j*8 + 4
        for i in range(4): a(f"v_cvt_pk_bf16_f32 v{e+i}, v{e+i}, v{o+i}")
        a(f"ds_write_b128 v30, {V(e)} offset:{j*1024}")
        a(f"{skip}:")
    if opt('e1st', 0): a.stamp()
    def val(i, T, st): return 112 + 8*st + 4*T + i
    for st in range(2):
        for T in range(2):
            for i in range(2):
                A, B = val(i, T, st), val(i+2, T, st)
                a(f"v_add_f32_dpp v{A}, v{A}, v{A} row_ror:8 row_mask:0xf bank_mask:0x3")
                a(f"v_add_f32_dpp v{A}, v{B}, v{B} row_ror:8 row_mask:0xf bank_mask:0xc")
    a("s_mov_b32 s60, 0x22222222\ns_mov_b32 s61, 0x22222222")
    for st in range(2):
        for T in range(2):
            A, B = val(0, T, st), val(1, T, st)
            a(f"v_add_f32_dpp v{A}, v{A}, v{A} row_half_mirror row_mask:0xf bank_mask:0x5")
            a(f"v_add_f32_dpp v{A}, v{B}, v{B} row_half_mirror row_mask:0xf bank_mask:0xa")
    a("s_mov_b32 s62, 0x44444444\ns_mov_b32 s63, 0x44444444")
    for qp in ("[1,0,3,2]", "[2,3,0,1]"):
        for st in range(2):
            for T in range(2):
                A = val(0, T, st)
                a(f"v_add_f32_dpp v{A}, v{A}, v{A} quad_perm:{qp} row_mask:0xf bank_mask:0xf")
    a(f"v_cndmask_b32 v112, v{val(0,0,0)}, v{val(0,0,1)}, s[60:61]")
    a("s_mov_b32 s60, 0x88888888\ns_mov_b32 s61, 0x88888888")
    a(f"v_cndmask_b32 v112, v112, v{val(0,1,0)}, s[62:63]")
    a(f"v_cndmask_b32 v112, v112, v{val(0,1,1)}, s[60:61]")
    a(f"v_mov_b32 v113, s{sT}")
    a.vmem(f"buffer_store_dwordx2 {V(112,2)}, v9, {S4(WS_)}, s56 offen sc1", "st")
    a.stamp()
    fr = {}; mf = []
    for u in range(8):
        for kk in range(2):
            for T in range(2): fr[('x', u, kk, T)] = dict(step=u, reg=xreg(u, kk, T), reads=None)
            for j in range(6):
                fr[('w', u, kk, j)] = wfrag(u, kk, j)
                for T in range(2): mf.append((ACC + (j*2+T)*4, ('w', u, kk, j), ('x', u, kk, T)))
                if j in (2, 5):
                    t = j // 3
                    fr[('c', u, kk, t)] = cfrag(u, kk, t)
                    mf.append((120+4*t, ('c', u, kk, t), 'ones'))
    fr['ones'] = dict(step=0, reg=ONES, reads=None)
    for r in range(4): a(f"v_mov_b32 v{ONES+r}, 0x3f803f80")
    a("s_waitcnt lgkmcnt(0)")
    def pre2(u):
        for r in range(2): a(f"v_add_u32 v{16+r}, {W1SL[u]}, v{12+r}")
        for r in range(2): a(f"v_add_u32 v{20+r}, {W1SL[u]}, v{18+r}")
    ring2 = list(range(80, 112, 4))
    gemm_stream(a, mf, fr, ring2, opt('LA', 10), opt('cover', 3), pre2, nobar=1)
    a.stamp()
    for T in range(2):
        for k in range(4): a(f"ds_read_b32 v{104+4*k+2*T}, v5 offset:{64*T + TP*k}")
    a("s_mov_b32 exec_lo, 0x00010001\ns_mov_b32 exec_hi, 0x00010001")
    a(f"ds_write_b128 v24, {V(120)}")
    a(f"ds_write_b128 v25, {V(124)}")
    a("s_mov_b64 exec, -1")
    a("s_waitcnt lgkmcnt(0)")
    a.vmall()
    a("s_barrier")
    for j in range(6): a(f"ds_read_b128 {V(80+4*j)}, v7 offset:{64*j}")
    a("s_waitcnt lgkmcnt(0)")
    for j in range(6):
        skip = a.label("Lz1skip")
        a(f"s_cmp_gt_u32 s58, {j}")
        a(f"s_cselect_b32 s61, s54, {OOB}")
        a(f"s_cbranch_scc0 {skip}")
        xs = [ACC + (j*2+T)*4 + 2*p for T in range(2) for p in range(2)]
        for k, x in enumerate(xs): a(f"v_pk_fma_f32 {V(x,2)}, {V(80+4*j+2*(k%2),2)}, {V(104+2*(k//2),2)}, {V(x,2)} op_sel_hi:[1,0,1] neg_lo:[1,0,0] neg_hi:[1,0,0]")
        b = "op_sel_hi:[1,0,0]"
        gelu_core(a, xs, [20, 22, 26, 28], [(V(108+2*(k//2),2), b) for k in range(4)], [(V(112+2*(k//2),2), b) for k in range(4)], [(V(116+2*(k//2),2), b) for k in range(4)])
        e = ACC + j*8
        for k, x in enumerate(xs): a(f"v_cvt_pk_bf16_f32 v{e+k}, v{x}, v{x+1}")
        a("s_nop 1")
        for p in range(2): a(f"v_permlane32_swap_b32 v{e+p}, v{e+2+p}")
        a(f"{skip}:")
        if j >= 4: a("s_add_u32 s61, s61, 4096")
        a.vmem(f"buffer_store_dwordx4 {V(e)}, v8, {S4(WS_)}, s61 offen offset:{(j%4)*1024} sc1", "z1")
    a.stamp()

def red_g(a, regs, op="v_add_f32", tmp=60):
    n = len(regs)
    for sw in ("v_permlane32_swap_b32", "v_permlane16_swap_b32"):
        for k, r in enumerate(regs): a(f"v_mov_b32 v{tmp+k}, v{r}")
        if n < 3: a("s_nop 1")
        for k, r in enumerate(regs): a(f"{sw} v{r}, v{tmp+k}")
        for k, r in enumerate(regs): a(f"{op} v{r}, v{r}, v{tmp+k}")

def wsp_setup_h(a):
    rowtile_voffs(a, 8, 9, 12)
    a(f"s_lshl_b32 s59, s{sRB}, 2")
    a(f"s_add_u32 s59, s59, s{sQ}")
    a("s_lshl_b32 s59, s59, 17")
    a(f"s_lshl_b32 s61, s{sKS}, 11")
    a("s_add_u32 s59, s59, s61")

def wsp_group_h(a, v):
    a(f"s_add_u32 s61, s{sK0B}, {v}")
    a("s_and_b32 s61, s61, 15")
    a("s_lshl_b32 s61, s61, 7")
    a("s_add_u32 s61, s61, s59")
    a(f"s_add_u32 m0, s60, {(v % NWS) * 16384}")
    a("s_add_u32 s62, s61, 4096")
    a.vmem(f"buffer_load_dwordx4 v8, {S4(WSP_)}, s61 offen {NT('s')}lds", ("S", v))
    a.vmem(f"buffer_load_dwordx4 v9, {S4(WSP_)}, s61 offen offset:1024 {NT('s')}lds", ("S", v))
    a(f"s_add_u32 m0, s60, {(v % NWS) * 16384 + 2048}")
    a("s_nop 0")
    a.vmem(f"buffer_load_dwordx4 v8, {S4(WSP_)}, s62 offen {NT('s')}lds", ("S", v))
    a.vmem(f"buffer_load_dwordx4 v9, {S4(WSP_)}, s62 offen offset:1024 {NT('s')}lds", ("S", v))

def l2_setup(a, d, ztype):
    a("v_lshrrev_b32 v31, 4, v1")
    a("v_lshlrev_b32 v31, 12, v31")
    a("v_and_b32 v30, 15, v1")
    a(f"v_lshl_add_u32 v{d}, v30, 7, v31")
    a(f"v_lshlrev_b32 v{d+1}, 7, v1")
    a(f"s_lshl_b32 s68, s{sRB}, 3")
    a(f"s_add_u32 s68, s68, s{sCG}")
    a("s_lshl_b32 s68, s68, 2")
    a(f"s_add_u32 s68, s68, s{sQ}")
    a("s_lshl_b32 s68, s68, 14")
    a(f"s_lshl_b32 s61, s{sKS}, 11")
    a("s_add_u32 s68, s68, s61")
    a("s_lshr_b32 s61, s2, 3")
    a("s_lshl_b32 s61, s61, 2")
    a(f"s_add_u32 s61, s61, s{sQ}")
    a("s_lshl_b32 s69, s61, 12")
    a(f"s_mul_i32 s70, s61, {43*128}")
    a(f"s_mov_b32 m0, {L_MISC}")
    if ztype and opt('l2w1', 0):
        srd(a, WA_, 72, D*F2*2)
        a("v_lshrrev_b32 v31, 1, v1")
        a("v_mul_u32_u24 v31, 2752, v31")
        a("v_and_b32 v30, 1, v1")
        a("v_mul_u32_u24 v30, 188, v30")
        a("v_add_u32 v3, v30, v31")
        a(f"s_and_b32 s71, s{sRB}, 3")
        a("s_lshl_b32 s71, s71, 2")
        a(f"s_add_u32 s71, s71, s{sQ}")
        a(f"s_mul_i32 s71, s71, {32*2752}")
        a("s_lshl_b32 s61, s55, 5")
        a("s_add_u32 s71, s71, s61")
        if opt('l2w1', 0) == 1:
            a.vmem(f"buffer_load_dword v3, {S4(WA_)}, s71 offen lds", "pf")
def l2_hooks(a, d, ztype):
    hk = {}
    def add(st, f):
        hk.setdefault(st, []).append(f)
    def lanes(k, n, tot):
        lo, hi = k*tot//n, (k+1)*tot//n
        m = ((1 << hi) - 1) ^ ((1 << lo) - 1)
        a(f"s_mov_b32 exec_lo, {m & 0xffffffff:#x}\ns_mov_b32 exec_hi, {m >> 32:#x}")
    if ztype and opt('l2w1', 0) == 2:
        add(0, lambda: a.vmem(f"buffer_load_dword v3, {S4(WA_)}, s71 offen lds", "pf"))
    if opt('l2pf', 0):
        nt = 'nt' if opt('l2nt', 0) else ''
        s0 = opt('l2s0', 1); n = opt('l2n', 2)
        for k in range(n):
            def h(k=k):
                lanes(k, n, 64)
                a.vmem(f"buffer_load_dword v{d}, {S4(WSP_)}, s68 offen {nt} lds", "pf")
                a("s_mov_b64 exec, -1")
            add(s0 + k, h)
    if opt('l2cw', -1) >= 0:
        def h2():
            a("s_mov_b32 exec_hi, 0")
            a.vmem(f"buffer_load_dword v{d+1}, {S4(WO_)}, s69 offen lds", "pf")
            a("s_mov_b32 exec_hi, 0x7ff")
            a.vmem(f"buffer_load_dword v{d+1}, {S4(WOUT_)}, s70 offen lds", "pf")
            a("s_mov_b32 exec_hi, -1")
        add(opt('l2cw', 0), h2)
    return {st: (lambda fs=fs: a.run(fs)) for st, fs in hk.items()}

def q_prefetch(a, k):
    if not opt('qpf', 1): return
    if k < 2:
        a("v_lshrrev_b32 v31, 4, v1")
        a("v_lshlrev_b32 v31, 12, v31")
        a("v_and_b32 v30, 15, v1")
        a("v_lshl_add_u32 v30, v30, 7, v31")
        a(f"s_lshl_b32 s61, s{sRB}, 2")
        a(f"s_add_u32 s61, s61, s{sCG}")
        a("s_lshl_b32 s61, s61, 2")
        a(f"s_add_u32 s61, s61, s{sQ}")
        a("s_lshl_b32 s61, s61, 15")
        a(f"s_lshl_b32 s62, s{sKS}, 11")
        a("s_add_u32 s61, s61, s62")
        a(f"s_mov_b32 m0, {L_MISC}")
        a(f"s_add_u32 s61, s61, {16384*k}")
        for o in range(0, 128, opt('sec', 128)):
            a.vmem(f"buffer_load_dword v30, {S4(WSP_)}, s61 offen offset:{o} {NT('p')}lds", "pf")
        return
    a("s_lshr_b32 s61, s2, 3")
    a("s_lshl_b32 s61, s61, 2")
    a(f"s_add_u32 s61, s61, s{sQ}")
    a("v_lshlrev_b32 v31, 7, v1")
    a(f"s_mov_b32 m0, {L_MISC}")
    if k == 2:
        a("s_lshl_b32 s62, s61, 13")
        for o in range(0, 128, opt('sec', 128)): a.vmem(f"buffer_load_dword v31, {S4(WO_)}, s62 offen offset:{o} lds", "pf")
    else:
        a(f"s_mul_i32 s63, s61, {86*128}")
        a(f"s_add_u32 s63, s63, {43*128*(k-3)}")
        a("s_mov_b32 exec_hi, 0x7ff")
        for o in range(0, 128, opt('sec', 128)): a.vmem(f"buffer_load_dword v31, {S4(WOUT_)}, s63 offen offset:{o} lds", "pf")
        a("s_mov_b32 exec_hi, -1")

def q_spread_setup(a):
    a("v_lshrrev_b32 v31, 4, v1")
    a("v_lshlrev_b32 v31, 12, v31")
    a("v_and_b32 v30, 15, v1")
    a("v_lshl_add_u32 v12, v30, 7, v31")
    a(f"s_lshl_b32 s64, s{sRB}, 2")
    a(f"s_add_u32 s64, s64, s{sCG}")
    a("s_lshl_b32 s64, s64, 2")
    a(f"s_add_u32 s64, s64, s{sQ}")
    a("s_lshl_b32 s64, s64, 15")
    a(f"s_lshl_b32 s62, s{sKS}, 11")
    a("s_add_u32 s64, s64, s62")
    a("s_add_u32 s67, s64, 16384")
    a("s_lshr_b32 s61, s2, 3")
    a("s_lshl_b32 s61, s61, 2")
    a(f"s_add_u32 s61, s61, s{sQ}")
    a("v_lshlrev_b32 v13, 7, v1")
    a("s_lshl_b32 s65, s61, 13")
    a(f"s_mul_i32 s66, s61, {86*128}")
    a("s_add_u32 s68, s66, 8192")
    a("v_lshlrev_b32 v14, 10, v1")
    a("s_and_b32 s61, s61, 15")
    a("s_lshl_b32 s71, s61, 15")
    a(f"s_add_u32 s61, s{sCG}, 4")
    a("s_lshl_b32 s61, s61, 7")
    a("s_add_u32 s71, s71, s61")
    a("s_lshl_b32 s61, s2, 2")
    a(f"s_add_u32 s61, s61, s{sQ}")
    a("s_lshl_b32 s73, s61, 10")
    a(f"s_mul_i32 s74, s61, {11*128}")
def q_spread(a, k, n, which, frac=None):
    items = {'s': [(WSP_, 12, 64, 64), (WSP_, 12, 67, 64)], 'c': [(WO_, 13, 65, 64), (WOUT_, 13, 66, 64), (WOUT_, 13, 68, 22)],
             'o': [(WO_, 14, 71, 32)], 'u': [(WOUT_, 13, 66, 64), (WOUT_, 13, 68, 22)],
             'm': [(WO_, 13, 73, 8), (WOUT_, 13, 74, 11)]}[which]
    tot = sum(x[3] for x in items)
    lo, hi = k*tot//n, (k+1)*tot//n
    if frac: lo, hi = frac
    a(f"s_mov_b32 m0, {L_MISC}")
    base = 0
    for R, v, so, cnt in items:
        l, h = max(lo - base, 0), min(hi - base, cnt)
        if h > l:
            m = ((1 << h) - 1) ^ ((1 << l) - 1)
            a(f"s_mov_b32 exec_lo, {m & 0xffffffff:#x}\ns_mov_b32 exec_hi, {m >> 32:#x}")
            a.vmem(f"buffer_load_dword v{v}, {S4(R)}, s{so} offen {'nt ' if opt('ntp' + which, 1 if which == 's' else 0) else ''}lds", "pf")
        base += cnt
    a("s_mov_b64 exec, -1")

def z_slice_touch(a):
    a("s_lshr_b32 s61, s2, 3")
    a("s_and_b32 s61, s61, 3")
    a("s_lshl_b32 s61, s61, 2")
    a(f"s_add_u32 s61, s61, s{sQ}")
    a(f"s_add_u32 s63, s{sCG}, 4")
    a("s_lshl_b32 s63, s63, 7")
    a("s_lshl_b32 s62, s61, 15")
    a("s_add_u32 s62, s62, s63")
    a(f"s_mul_i32 s61, s61, {43*1024}")
    a("s_add_u32 s63, s63, s61")
    a("v_lshlrev_b32 v31, 10, v1")
    a(f"s_mov_b32 m0, {L_MISC}")
    a("s_mov_b32 exec_hi, 0")
    a.vmem(f"buffer_load_dword v31, {S4(WO_)}, s62 offen lds", "pf")
    a("s_mov_b32 exec_hi, 0x7ff")
    a.vmem(f"buffer_load_dword v31, {S4(WOUT_)}, s63 offen lds", "pf")
    a("s_mov_b32 exec_hi, -1")

def x_group_h(a, step, sl, tag):
    a(f"s_add_u32 s61, s{sK0A}, {step}")
    a("s_and_b32 s61, s61, 7")
    a("s_lshl_b32 s58, s61, 7")
    a("s_add_u32 s62, s58, s53")
    a(f"s_add_u32 m0, s60, {sl}")
    a("s_add_u32 s63, s62, 1024")
    a.vmem(f"buffer_load_dwordx4 v4, {S4(X_)}, s62 offen {NT('x')}lds", tag)
    a.vmem(f"buffer_load_dwordx4 v5, {S4(X_)}, s62 offen offset:1024 {NT('x')}lds", tag)
    a(f"s_add_u32 m0, s60, {sl + 2048}")
    a("s_nop 0")
    a.vmem(f"buffer_load_dwordx4 v4, {S4(X_)}, s63 offen {NT('x')}lds", tag)
    a.vmem(f"buffer_load_dwordx4 v5, {S4(X_)}, s63 offen offset:1024 {NT('x')}lds", tag)

def dots_x(a, fr, acc_s, acc_q, ones):
    for i in range(4):
        a(f"v_dot2_f32_bf16 v{acc_s}, v{fr+i}, v{ones}, v{acc_s}")
        a(f"v_dot2_f32_bf16 v{acc_q}, v{fr+i}, v{fr+i}, v{acc_q}")

def diag_sel(a, dst, gram):
    a("s_mov_b32 s62, 0x22222222\ns_mov_b32 s63, 0x22222222")
    a(f"v_cndmask_b32 v{dst}, v{gram}, v{gram+1}, s[62:63]")
    a("s_mov_b32 s62, 0x44444444\ns_mov_b32 s63, 0x44444444")
    a(f"v_cndmask_b32 v{dst}, v{dst}, v{gram+2}, s[62:63]")
    a("s_mov_b32 s62, 0x88888888\ns_mov_b32 s63, 0x88888888")
    a(f"v_cndmask_b32 v{dst}, v{dst}, v{gram+3}, s[62:63]")
DIAG_LO, DIAG_HI = 0x00f0000f, 0xf0000f00

def row_finalize(a, s_, q_, t):
    a(f"v_mul_f32 v{s_}, {f2u(1.0/512):#x}, v{s_}")
    a(f"v_mul_f32 v{q_}, {f2u(1.0/512):#x}, v{q_}")
    a(f"v_fma_f32 v{q_}, -v{s_}, v{s_}, v{q_}")
    a(f"v_max_f32 v{q_}, 0, v{q_}")
    a(f"v_add_f32 v{q_}, {f2u(1e-5):#x}, v{q_}")

def nonce_publish(a):
    l = a.label("Lnn")
    a(f"s_or_b32 s61, s2, s{sW}")
    a("s_cmp_lg_u32 s61, 0")
    a(f"s_cbranch_scc1 {l}")
    a("s_or_b32 s62, s84, 1")
    a("v_mov_b32 v30, s62")
    a("v_lshlrev_b32 v31, 6, v1")
    a("s_mov_b64 exec, 15")
    a(f"buffer_store_dword v30, v31, {S4(DBG_)}, 0 offen sc1")
    a("s_mov_b64 exec, -1")
    a(f"{l}:")

def nonce_check(a):
    a.vmwait("poll")
    def chk():
        a(f"v_readfirstlane_b32 s{sT}, v25")
        a(f"s_cmp_lg_u32 s{sT}, 0")
    def iss():
        a("v_mov_b32 v31, 0")
        a(f"buffer_load_dword v25, v31, {S4(DBG_)}, 0 offen sc1")
    spin(a, iss, chk)

def wave_flag(a):
    a(f"s_lshl_b32 s61, s{sGRP}, 4")
    a(f"s_add_u32 s61, s61, s{sRB}")
    a("s_lshl_b32 s61, s61, 2")
    a(f"s_add_u32 s61, s61, s{sQ}")
    a("s_lshl_b32 s61, s61, 7")
    a(f"s_add_u32 s61, s61, {F1_OFF}")
    a(f"v_mov_b32 v30, s{sT}")
    a("v_mov_b32 v31, 0")
    a("s_mov_b64 exec, 1")
    a.vmem(f"buffer_store_dword v30, v31, {S4(WS_)}, s61 offen sc1", "flag")
    a("s_mov_b64 exec, -1")

def spin(a, issue, check_ok, limit=0x8000):
    lp = a.label("Lspin"); ok = a.label("Lok")
    check_ok()
    a(f"s_cbranch_scc1 {ok}")
    a("s_mov_b32 s63, 0")
    a(f"{lp}:")
    issue()
    a("s_waitcnt vmcnt(0)")
    a("s_add_u32 s63, s63, 1")
    a(f"s_cmp_gt_u32 s63, {limit}")
    a(f"s_cbranch_scc1 {ok}")
    check_ok()
    a(f"s_cbranch_scc0 {lp}")
    a(f"{ok}:")

def az_helper(a, fused):
    rowtile_voffs(a, 4, 5, 10)
    for i in range(3):
        a(f"v_add_u32 v3, {64*i}, v1")
        a("v_mul_u32_u24 v30, 683, v3")
        a("v_lshrrev_b32 v30, 13, v30")
        a("v_mul_u32_u24 v31, 12, v30")
        a("v_sub_u32 v31, v3, v31")
        a("v_lshrrev_b32 v3, 2, v30")
        a("v_and_b32 v3, 2, v3")
        a("v_xor_b32 v31, v3, v31")
        a("v_mul_u32_u24 v30, 2752, v30")
        a(f"v_lshl_add_u32 v{20+i}, v31, 4, v30")
        if i: a(f"v_subrev_u32 v{20+i}, {1024*i}, v{20+i}")
    a(f"s_lshl_b32 s53, s{sRB}, 2")
    a(f"s_add_u32 s53, s53, s{sQ}")
    a("s_lshl_b32 s53, s53, 15")
    a(f"s_mul_i32 s55, s{sGRP}, 6")
    a("s_min_u32 s55, s55, 40")
    a(f"s_mul_i32 s54, s{sQ}, {16*2752}")
    a("s_lshl_b32 s61, s55, 5")
    a("s_add_u32 s54, s54, s61")
    a(f"s_mul_i32 s56, s{sQ}, 3072")
    a(f"s_lshl_b32 s60, s{sQ}, 12")
    def wgroup(kreg_ready, step, dst, add, tag):
        if not kreg_ready:
            a(f"s_add_u32 s61, s{sK0A}, {step}")
            a("s_and_b32 s61, s61, 7")
        a(f"s_mul_i32 s63, s61, {64*2752}")
        a("s_add_u32 s63, s63, s54")
        a(f"s_add_u32 m0, s56, {dst}")
        if add: a(f"s_add_u32 s63, s63, {add}")
        else: a("s_nop 0")
        for i in range(3):
            a.vmem(f"buffer_load_dwordx4 v{20+i}, {S4(WA_)}, s63 offen offset:{1024*i} {NT('w')}lds", tag)
    def ga(step):
        x_group_h(a, step, ZSLOT[step % 5], ("A", step))
        wgroup(True, step, ZSLOT[step % 5] + 16384, 1376, ("A", step))
    npro = opt('proZ', 2)
    early_srds(a)
    srd(a, WA_, 72, D*F2*2)
    ga(0)
    for st in range(1, npro): ga(st)
    a.split("LF_hz1")
    late_srds(a)
    wsp_setup_h(a)
    a("v_lshlrev_b32 v10, 3, v1")
    a(f"s_lshl_b32 s64, s{sRB}, 5")
    a(f"s_add_u32 s64, s64, s{sQ}")
    a("s_lshl_b32 s64, s64, 9")
    a(f"s_add_u32 s64, s64, {WS_ST2}")
    a("s_add_u32 s65, s64, 4096\ns_add_u32 s66, s64, 8192\ns_add_u32 s67, s64, 12288")
    a("v_lshlrev_b32 v11, 4, v1")
    a(f"s_mul_i32 s61, s{sQ}, 6144")
    a(f"s_add_u32 s61, s61, {L_PARK}")
    a("v_add_u32 v11, s61, v11")
    a(f"s_lshl_b32 s61, s{sQ}, 8")
    a(f"s_add_u32 s61, s61, {L_XCH}")
    a("v_lshrrev_b32 v12, 1, v1")
    a("v_lshl_add_u32 v12, v12, 2, s61")
    a("v_lshrrev_b32 v13, 4, v1")
    a("v_lshl_add_u32 v13, v13, 5, s61")
    a("v_lshrrev_b32 v3, 5, v1")
    a("v_mul_u32_u24 v3, 3072, v3")
    a("v_bfe_u32 v30, v1, 4, 1")
    a("v_lshl_add_u32 v3, v30, 9, v3")
    a("v_and_b32 v30, 15, v1")
    a("v_lshl_add_u32 v14, v30, 4, v3")
    a(f"s_lshl_b32 s57, s{sGRP}, 4")
    a(f"s_add_u32 s57, s57, s{sRB}")
    a("s_lshl_b32 s57, s57, 2")
    a(f"s_add_u32 s57, s57, s{sQ}")
    a("s_mul_i32 s57, s57, 6144")
    a(f"s_add_u32 s57, s57, {WS_Z2N}")
    a("v_mov_b32 v16, 0xffff0000")
    a.stamp()
    for s in range(8):
        a.vmwait(("A", s))
        a("s_barrier")
        if s in (0, 1, 4): a.stamp()
        if s == 0:
            a(f"s_load_dword s{sT}, s[90:91], 128")
            for st in range(npro, 5): ga(st)
            get_nonce(a, -1)
        elif s <= 3: ga(s + 4)
        else:
            if s == opt('st1z', 4): ln1_fetch_issue(a, False)
            if s == 7: ln1_fetch_finish(a, False)
            if s < 7:
                for u in (2*(s-4), 2*(s-4)+1): wgroup(False, u, W1SL[u], 0, ("W1", u))
    a.stamp()
    a("s_barrier")
    for u in (6, 7): wgroup(False, u, W1SL[u], 0, ("W1", u))
    if opt('zcw', 1) == 1: cw_load(a, 0, 38)
    a.vmwait(("W1", 7))
    a("s_barrier")
    a(f"s_setprio {opt('nprio', 3)}")
    for j in range(6): a(f"ds_read_b128 {V(56+8*j+4)}, v11 offset:{1024*j}")
    def iss():
        for c in range(8):
            a(f"buffer_load_dwordx2 {V(32+2*c,2)}, v10, {S4(WS_)}, s{64 + (c>>1)} offen offset:{2048*(c&1)} sc1")
    def chk():
        for c in range(8): a(f"v_xor_b32 v{48+c}, s{sT}, v{33+2*c}")
        a("v_or3_b32 v48, v48, v49, v50\nv_or3_b32 v51, v51, v52, v53\nv_or3_b32 v48, v48, v54, v55")
        a("v_or_b32 v48, v48, v51")
        a("v_cmp_ne_u32 vcc, 0, v48")
        a("s_cmp_eq_u64 vcc, 0")
    a("s_waitcnt lgkmcnt(0)")
    for j in range(6):
        for w in range(4):
            u = 56 + 8*j
            if w < 3:
                a(f"v_lshlrev_b32 v{u+2*w}, 16, v{u+4+w}")
                a(f"v_and_b32 v{u+2*w+1}, v16, v{u+4+w}")
            else:
                a(f"v_lshlrev_b32 v{u+6}, 16, v{u+7}")
                a(f"v_and_b32 v{u+7}, v16, v{u+7}")
    zcount(a, 62, 58)
    if opt('stdelay', 8): a(f"s_sleep {opt('stdelay', 8)}")
    iss(); a("s_waitcnt vmcnt(0)")
    spin(a, iss, chk)
    a.stamp()
    for k in (2, 4, 6): a(f"v_add_f32 v{32+2*k}, v{32+2*k}, v{34+2*k}")
    a("v_add_f32 v32, v32, v34")
    a("v_add_f32 v36, v36, v40")
    a("v_add_f32 v32, v32, v44")
    a("v_add_f32 v32, v32, v36")
    a(f"v_mul_f32 v32, {f2u(1.0/688):#x}, v32")
    a("s_nop 1")
    a("v_mov_b32_dpp v33, v32 quad_perm:[1,0,3,2] row_mask:0xf bank_mask:0xf")
    a("v_fma_f32 v33, -v32, v32, v33")
    a("v_max_f32 v33, 0, v33")
    a(f"v_add_f32 v33, {f2u(1e-5):#x}, v33")
    a("v_rsq_f32 v33, v33")
    a("s_mov_b32 exec_lo, 0x55555555\ns_mov_b32 exec_hi, 0x55555555")
    a("v_mul_f32_e64 v32, -v32, v33")
    a("ds_write_b32 v12, v33")
    a("ds_write_b32 v12, v32 offset:128")
    a("s_mov_b64 exec, -1")
    a("s_waitcnt lgkmcnt(0)")
    for k in range(2): a(f"ds_read_b128 {V(32+4*k)}, v13 offset:{16*k}")
    for k in range(2): a(f"ds_read_b128 {V(40+4*k)}, v13 offset:{128 + 16*k}")
    for j in range(6):
        u = 56 + 8*j; z = u
        if j == 0: a("s_waitcnt lgkmcnt(0)")
        for w in range(8): a(f"v_fma_f32 v{u+w}, v{u+w}, v{32+w}, v{40+w}")
        for w in range(4): a(f"v_cvt_pk_bf16_f32 v{z+w}, v{u+2*w}, v{u+2*w+1}")
        a(f"s_cmp_gt_u32 s58, {j}")
        a(f"s_cselect_b32 s61, s57, {OOB}")
        a.vmem(f"buffer_store_dwordx4 {V(z)}, v14, {S4(WS_)}, s61 offen offset:{(j>>1)*1024 + (j&1)*256} sc1", "z2n")
    a("s_setprio 0")
    a.stamp()
    a.vmwait("z2n")
    wave_flag(a)
    a.stamp()
    a("s_barrier")
    for v in range(opt('wp', 3)): wsp_group_h(a, v)
    a("s_mov_b32 s72, 1")
    if opt('zcw', 1) == 0: cw_load(a, 0, 38)

def aq_compute(a, fused):
    AQ, AK, AV, HK, HV = 32, 64, 96, 128, 136
    ONES, SUM, GRM, XA = 28, 224, 232, 240
    CWQ = [240, 128, 132, 136, 140, 244]
    ring = list(range(144, 200, 4))
    MC, MPN, MPA, MB = 200, 204, 208, 216
    a(f"s_lshr_b32 s5, s{sQ}, 1")
    a(f"s_and_b32 s46, s{sQ}, 1")
    a("s_lshl_b32 s61, s5, 13")
    rowfrag_addr(a, 10, 11, "s61")
    rowfrag_addr(a, 12, 13, 16384)
    qw_addr(a, 14)
    a("v_add_u32 v14, 18432, v14")
    a("s_lshl_b32 s61, s46, 6")
    a("v_xor_b32 v14, s61, v14")
    a("v_xor_b32 v15, 32, v14")
    a("v_and_b32 v3, 15, v1")
    a("v_lshrrev_b32 v30, 4, v1")
    a("v_lshlrev_b32 v30, 2, v30")
    a("v_sub_u32 v31, v3, v30")
    a(f"v_mov_b32 v224, {NEG:#x}")
    a("v_mov_b32 v225, 0xffff")
    a("v_mov_b32 v226, 0xffff0000")
    for i in range(4):
        a(f"v_subrev_u32 v227, {i}, v31")
        a("v_cmp_gt_u32 vcc, 8, v227")
        a("v_cmp_gt_i32 s[62:63], -8, v227")
        a("s_nop 0")
        a(f"v_cndmask_b32_e64 v{MC+i}, v224, 0, vcc")
        a(f"v_cndmask_b32_e64 v{228+i}, 0, v{225 + (i&1)}, vcc")
        a(f"v_cndmask_b32_e64 v{MPN+i}, v224, 0, s[62:63]")
    a(f"v_or_b32 v{MB}, v228, v229")
    a(f"v_or_b32 v{MB+1}, v230, v231")
    a("s_lshl_b32 s61, s5, 8")
    a(f"s_add_u32 s61, s61, {L_TAB}")
    a("v_and_b32 v27, 0x30, v1")
    a("v_add_u32 v218, s61, v27")
    a("v_lshl_add_u32 v219, v3, 2, s61")
    a("s_lshl_b32 s61, s46, 7")
    a(f"s_add_u32 s61, s61, {L_CW}")
    a("v_add_u32 v220, s61, v27")
    a("v_lshl_add_u32 v221, v3, 2, s61")
    a("v_lshlrev_b32 v222, 4, v1")
    a("s_lshl_b32 s61, s46, 12")
    a(f"s_add_u32 s61, s61, {L_XCH}")
    a("v_add_u32 v223, s61, v222")
    a(f"s_lshl_b32 s53, s{sRB}, 1")
    a("s_add_u32 s53, s53, s5")
    a("s_lshl_b32 s53, s53, 4")
    a(f"s_add_u32 s53, s53, s{sGRP}")
    a("s_lshl_b32 s53, s53, 1")
    a("s_add_u32 s53, s53, s46")
    a("s_lshl_b32 s53, s53, 11")
    a(f"s_add_u32 s53, s53, {WS_O}")
    a("s_add_u32 s54, s53, 32768")
    a("v_lshrrev_b32 v27, 4, v1")
    a("v_lshlrev_b32 v27, 9, v27")
    a("v_lshl_add_u32 v4, v3, 4, v27")
    AT = 16
    def build(halo, hp):
        fr = {'ones': dict(step=0, reg=ONES, reads=None)}; mf = []
        for s in range(8):
            for kk in range(2):
                for tl in range(4):
                    fr[('x', s, kk, tl)] = dict(step=s, reg=None, reads=[lambda r, kk=kk, tl=tl: f"ds_read_b128 {V(r)}, v{AT+kk} offset:{tl*2048}"])
                fr[('h', s, kk)] = dict(step=s, reg=None, reads=[lambda r, kk=kk: f"ds_read_b128 {V(r)}, v{AT+2+kk}"])
                for m in range(3):
                    for e in range(2):
                        w = ('w', s, kk, m, e)
                        fr[w] = dict(step=s, reg=None, reads=[(lambda r, hh=hh, kk=kk, m=m, e=e: f"ds_read_b64_tr_b16 {V(r+2*hh,2)}, v{AT+4+e} offset:{kk*12288 + m*1024 + hh*512}") for hh in range(2)])
                        for tl in range(4):
                            d = (AQ, AK, AV)[m] + (e*4+tl)*4
                            mf.append((d, w, ('x', s, kk, tl)) if m < 2 else (d, ('x', s, kk, tl), w))
                        if halo and m == 1: mf.append((HK+4*e, w, ('h', s, kk)))
                        if halo and m == 2: mf.append((HV+4*e, ('h', s, kk), w))
                        if halo == (m*2+e == 0): mf.append((CWQ[m*2+e], 'ones', w))
        return mf, fr
    def stats_out(halo):
        a("s_nop 6")
        for k in ([0] if halo else range(1, 6)): a(f"ds_write_b32 v221, v{CWQ[k]} offset:{256*(k>>1) + 64*(k&1)}")
    def pre(s):
        for r in range(6): a(f"v_add_u32 v{AT+r}, {QSLOT[s % 3]}, v{10+r}")
    a("v_mov_b32 v26, v30")
    a('v_mov_b32 v27, v3'); l2_setup(a, 5, False)
    a("v_mov_b32 v27, v3")
    ln1_publish(a)
    a("v_mov_b32 v3, v27")
    a("v_mov_b32 v30, v26")
    lr1 = a.label("Lrh1"); lj = a.label("Lqj")
    a("s_cmp_lg_u32 s5, 0")
    a(f"s_cbranch_scc1 {lr1}")
    a("v_lshlrev_b32 v3, 1, v3")
    a("v_sub_u32 v31, v30, v3")
    a(f"s_cmp_eq_u32 s{sRB}, 0")
    a("s_cselect_b32 s61, 1000, 0")
    a("v_subrev_u32 v31, s61, v31")
    for T in range(2):
        for i in range(4):
            if (i ^ T) & 1:
                a(f"v_mov_b32 v{MPA+4*T+i}, v224")
            else:
                a(f"v_cmp_le_i32 vcc, {T + 2 - i}, v31")
                a("s_nop 1")
                a(f"v_cndmask_b32_e64 v{MPA+4*T+i}, v224, 0, vcc")
    n0 = a.nst
    for halo in (True, False):
        if not halo:
            a(f"{lr1}:")
            for i in range(8): a(f"v_mov_b32 v{MPA+i}, v{MPN+(i&3)}")
        for r in range(4): a(f"v_mov_b32 v{ONES+r}, 0x3f803f80")
        a.nst = n0
        a.stamp()
        mf, fr = build(halo, 0)
        vm0 = list(a.vm)
        gemm_stream(a, mf, fr, ring, opt('LA', 10), opt('cover', 3), pre, stamps=(0, 1, 4), hooks=l2_hooks(a, 5, False))
        vm1 = list(a.vm); a.vm = vm0
        a.stamp()
        stats_out(halo)
        if halo: a(f"s_branch {lj}")
    a(f"{lj}:")
    a.vm = vm1
    a("s_waitcnt lgkmcnt(0)")
    a("s_barrier")
    for k in range(2): a(f"ds_read_b128 {V(152+4*k)}, v220 offset:{256 + 64*k}")
    for tl in range(4):
        a(f"ds_read_b32 v{162+tl}, v219 offset:{64*tl}")
        a(f"ds_read_b32 v{166+tl}, v219 offset:{64*tl + TP}")
    for e in range(2): a(f"ds_read_b32 v{160+e}, v221 offset:{512 + 64*e}")
    a("s_waitcnt lgkmcnt(2)")
    for tl in range(4):
        a(f"ds_read_b128 {V(172+4*tl)}, v218 offset:{64*tl}")
        a(f"ds_read_b128 {V(10+4*tl)}, v218 offset:{64*tl + TP}")
    for k in range(2): a(f"ds_read_b128 {V(144+4*k)}, v220 offset:{64*k}")
    def corr_t(x, cw, mreg, rreg):
        for p in range(2): a(f"v_pk_fma_f32 {V(x+2*p,2)}, {V(cw+2*p,2)}, {V(mreg&~1,2)}, {V(x+2*p,2)} op_sel:[0,{mreg&1},0] op_sel_hi:[1,{mreg&1},1] neg_lo:[1,0,0] neg_hi:[1,0,0]")
        for p in range(2): a(f"v_pk_mul_f32 {V(x+2*p,2)}, {V(x+2*p,2)}, {V(rreg&~1,2)} op_sel:[0,{rreg&1}] op_sel_hi:[1,{rreg&1}]")
    def corr_c(x, mv, rv, cw):
        for p in range(2): a(f"v_pk_fma_f32 {V(x+2*p,2)}, {V(mv+2*p,2)}, {V(cw&~1,2)}, {V(x+2*p,2)} op_sel:[0,{cw&1},0] op_sel_hi:[1,{cw&1},1] neg_lo:[1,0,0] neg_hi:[1,0,0]")
        for p in range(2): a(f"v_pk_mul_f32 {V(x+2*p,2)}, {V(x+2*p,2)}, {V(rv+2*p,2)}")
    def pack(dst, x):
        for p in range(2): a(f"v_cvt_pk_bf16_f32 v{dst+p}, v{x+2*p}, v{x+2*p+1}")
    KV = 224
    def kp(e, tl): return KV + 8*tl + 2*e
    def vp(e, tl): return KV + 8*tl + 4 + 2*e
    for tl in (2, 3, 0, 1):
        for e in range(2): corr_t(AK + (e*4+tl)*4, 152+4*e, 162+tl, 166+tl)
        for e in range(2): pack(kp(e, tl), AK + (e*4+tl)*4)
    a("s_waitcnt lgkmcnt(0)")
    for tl in (2, 3, 0, 1):
        for e in range(2): corr_c(AV + (e*4+tl)*4, 172+4*tl, 10+4*tl, 160+e)
        for e in range(2): pack(vp(e, tl), AV + (e*4+tl)*4)
        if tl == 3:
            lx = a.label("Lx")
            a("s_cmp_lg_u32 s5, 0")
            a(f"s_cbranch_scc1 {lx}")
            for k in range(4): a(f"ds_write_b128 v223, {V(KV+16+4*k)} offset:{1024*k}")
            a("ds_read_b32 v26, v219 offset:512")
            a(f"ds_read_b32 v27, v219 offset:{512 + TP}")
            a(f"ds_read_b128 {V(188)}, v218 offset:512")
            a(f"ds_read_b128 {V(192)}, v218 offset:{512 + TP}")
            a(f"{lx}:")
    PV = 64
    lh = a.label("Lnh")
    a("s_cmp_lg_u32 s5, 0")
    a(f"s_cbranch_scc1 {lh}")
    a("s_waitcnt lgkmcnt(0)")
    for e in range(2):
        corr_t(HK+4*e, 152+4*e, 26, 27)
        corr_c(HV+4*e, 188, 192, 160+e)
    for e in range(2):
        for T in range(2):
            pack(PV + 8*T + 2*e, HK+4*e)
            pack(PV + 8*T + 4 + 2*e, HV+4*e)
    a(f"{lh}:")
    QP = 96
    for e in range(2):
        for tl in range(4):
            x = AQ + (e*4+tl)*4; m_ = 162 + tl
            for p in range(2): a(f"v_pk_fma_f32 {V(x+2*p,2)}, {V(144+4*e+2*p,2)}, {V(m_&~1,2)}, {V(x+2*p,2)} op_sel:[0,{m_&1},0] op_sel_hi:[1,{m_&1},1] neg_lo:[1,0,0] neg_hi:[1,0,0]")
    for k in range(8): pack(QP+2*k, AQ+4*k)
    for tl in range(4): a(f"v_mul_f32 v{10+tl}, {f2u(0.25*LOG2E):#x}, v{166+tl}")
    for r in range(2): a(f"v_mov_b32 v{14+r}, 0x3f803f80")
    a("s_waitcnt lgkmcnt(0)")
    a("s_barrier")
    lp = a.label("Lp")
    a("s_cmp_eq_u32 s5, 0")
    a(f"s_cbranch_scc1 {lp}")
    for k in range(4): a(f"ds_read_b128 {V(PV+4*k)}, v223 offset:{1024*k}")
    a(f"{lp}:")
    SC, SP = 112, 144
    U = range(8)
    def kprev(u): e, tl = u//4, u%4; return kp(e, tl-2) if tl >= 2 else PV + 8*tl + 2*e
    def vprev(u): e, tl = u//4, u%4; return vp(e, tl-2) if tl >= 2 else PV + 8*tl + 4 + 2*e
    for u in U: a(mfma16(SC+4*u, kp(u//4, u%4), QP+2*u, V(MC)))
    for u in (2, 3, 6, 7): a(mfma16(SP+4*u, kprev(u), QP+2*u, V(MPN)))
    a("s_waitcnt lgkmcnt(0)")
    for u in (0, 1, 4, 5): a(mfma16(SP+4*u, kprev(u), QP+2*u, V(MPA+4*(u&1))))
    MX, TM = 32, 40
    for u in (2, 3, 6, 7, 0, 1, 4, 5):
        for i in range(4): a(f"v_max_f32 v{SC+4*u+i}, v{SC+4*u+i}, v{SP+4*u+i}")
    for u in U: a(f"v_max3_f32 v{MX+u}, v{SC+4*u}, v{SC+4*u+1}, v{SC+4*u+2}")
    for u in U: a(f"v_max_f32 v{MX+u}, v{MX+u}, v{SC+4*u+3}")
    a("s_nop 0")
    for b in (0, 4):
        a(f"v_permlane32_swap_b32 v{MX+b}, v{MX+b+1}")
        a(f"v_permlane32_swap_b32 v{MX+b+2}, v{MX+b+3}")
    for b in (0, 4):
        a(f"v_max_f32 v{MX+b}, v{MX+b}, v{MX+b+1}")
        a(f"v_max_f32 v{MX+b+2}, v{MX+b+2}, v{MX+b+3}")
    a("s_nop 0")
    for b in (0, 4): a(f"v_permlane16_swap_b32 v{MX+b}, v{MX+b+2}")
    for b in (0, 4): a(f"v_max_f32 v{MX+b}, v{MX+b}, v{MX+b+2}")
    for b in (0, 4): a(f"v_mov_b32 v{MX+b+2}, v{MX+b}")
    a("s_nop 1")
    for b in (0, 4): a(f"v_permlane16_swap_b32 v{MX+b}, v{MX+b+2}")
    for b in (0, 4):
        a(f"v_mov_b32 v{MX+b+1}, v{MX+b}")
        a(f"v_mov_b32 v{MX+b+3}, v{MX+b+2}")
    a("s_nop 0")
    for b in (0, 4):
        a(f"v_permlane32_swap_b32 v{MX+b}, v{MX+b+1}")
        a(f"v_permlane32_swap_b32 v{MX+b+2}, v{MX+b+3}")
    for u in range(0, 8, 2): a(f"v_pk_mul_f32 {V(MX+u,2)}, {V(MX+u,2)}, {V(10+(u&3),2)}")
    for u in U:
        c_ = 10 + (u & 3)
        for p in range(2): a(f"v_pk_fma_f32 {V(SC+4*u+2*p,2)}, {V(SC+4*u+2*p,2)}, {V(c_&~1,2)}, {V(MX+(u&~1),2)} op_sel:[0,{c_&1},{u&1}] op_sel_hi:[1,{c_&1},{u&1}] neg_lo:[0,0,1] neg_hi:[0,0,1]")
    for u in U:
        for i in range(4): a(f"v_exp_f32 v{SC+4*u+i}, v{SC+4*u+i}")
    PC, PP = 144, 160
    for u in U: pack(PP+2*u, SC+4*u)
    OA = 176
    for u in U:
        a(mfma16(SC+4*u, 14, PP+2*u, "0"))
        for p in range(2): a(f"v_and_b32 v{PC+2*u+p}, v{MB+p}, v{PP+2*u+p}")
    for u in U:
        for p in range(2): a(f"v_xor_b32 v{PP+2*u+p}, v{PC+2*u+p}, v{PP+2*u+p}")
        a(mfma16(OA+4*u, vp(u//4, u%4), PC+2*u, "0"))
    for u in U:
        a(mfma16(OA+4*u, vprev(u), PP+2*u))
        a(f"v_rcp_f32 v{MX+u}, v{SC+4*u}")
    a("s_nop 1")
    for u in U:
        for p in range(2): a(f"v_pk_mul_f32 {V(OA+4*u+2*p,2)}, {V(OA+4*u+2*p,2)}, {V(MX+(u&~1),2)} op_sel:[0,{u&1}] op_sel_hi:[1,{u&1}]")
    for tl in range(4):
        for e in range(2): pack(112 + 4*tl + 2*e, OA + 4*(e*4+tl))
    for tl in range(4):
        for p in range(2): a(f"v_permlane32_swap_b32 v{112+4*tl+p}, v{112+4*tl+2+p}")
    a.vmwait("b")
    for tl in range(4):
        a.vmem(f"buffer_store_dwordx4 {V(112+4*tl)}, v4, {S4(WS_)}, s{53+(tl>>1)} offen offset:{256*(tl&1)} sc1", "o")
    a(f"s_lshl_b32 s61, s{sRB}, 3")
    a(f"s_add_u32 s61, s61, s{sGRP}")
    a("s_lshl_b32 s61, s61, 2")
    a(f"s_add_u32 s61, s61, s{sQ}")
    a("s_lshl_b32 s61, s61, 7")
    a(f"s_add_u32 s75, s61, {FO_OFF}")
    a.stamp()

def aq_helper(a, fused):
    early = opt('qearly', 1); c6, c7, c8 = opt('c6', 8), opt('c7', 22), opt('c8', 30)
    PFS = [int(c, 16) for c in str(opt('pfs', 55234))]
    rowtile_voffs(a, 4, 5, 10)
    a("v_bfe_u32 v3, v1, 4, 1")
    a("v_lshlrev_b32 v3, 1, v3")
    a("v_and_b32 v30, 7, v1")
    a("v_xor_b32 v30, v30, v3")
    a("v_lshrrev_b32 v3, 3, v1")
    a("v_mul_u32_u24 v3, 3072, v3")
    a("v_lshl_add_u32 v6, v30, 4, v3")
    a("v_xor_b32 v30, 4, v30")
    a("v_lshl_add_u32 v7, v30, 4, v3")
    a(f"v_add_u32 v7, {8*3072}, v7")
    a("v_lshrrev_b32 v3, 4, v1")
    a(f"s_lshl_b32 s61, s{sQ}, 1")
    a("v_add_u32 v3, s61, v3")
    a("v_and_b32 v30, 7, v1")
    a("v_xor_b32 v30, v30, v3")
    a("v_and_b32 v30, 7, v30")
    a("v_lshrrev_b32 v3, 3, v1")
    a("v_lshlrev_b32 v3, 10, v3")
    a("v_lshl_add_u32 v20, v30, 4, v3")
    a(f"s_lshl_b32 s53, s{sRB}, 7")
    a("s_sub_u32 s55, s53, 16")
    a("s_max_i32 s55, s55, 0")
    a(f"s_lshl_b32 s61, s{sQ}, 2")
    a("s_add_u32 s55, s55, s61")
    a("s_lshl_b32 s55, s55, 10")
    a(f"s_lshl_b32 s61, s{sQ}, 5")
    a("s_add_u32 s53, s53, s61")
    a("s_lshl_b32 s53, s53, 10")
    a(f"s_mul_i32 s54, s{sQ}, {16*3072}")
    a(f"s_lshl_b32 s61, s{sGRP}, 7")
    a("s_add_u32 s54, s54, s61")
    a(f"s_mul_i32 s56, s{sQ}, 6144")
    a(f"s_lshl_b32 s57, s{sQ}, 9")
    a(f"s_lshl_b32 s60, s{sQ}, 12")
    def ga(step):
        sl = QSLOT[step % 3]; tag = ("A", step)
        x_group_h(a, step, sl, tag)
        a(f"s_mul_i32 s63, s61, {64*3072}")
        a("s_add_u32 s63, s63, s54")
        a(f"s_add_u32 m0, s56, {sl + 18432}")
        a("s_add_u32 s62, s58, s55")
        for m in range(3): a.vmem(f"buffer_load_dwordx4 v6, {S4(WA_)}, s63 offen offset:{1024*m} {NT('w')}lds", tag)
        a(f"s_add_u32 m0, s56, {sl + 18432 + 3072}")
        a("s_nop 0")
        for m in range(3): a.vmem(f"buffer_load_dwordx4 v7, {S4(WA_)}, s63 offen offset:{1024*m} {NT('w')}lds", tag)
        a(f"s_add_u32 m0, s57, {sl + 16384}")
        a("s_mov_b32 exec_hi, 0")
        a.vmem(f"buffer_load_dwordx4 v20, {S4(X_)}, s62 offen {NT('x')}lds", tag)
        a("s_mov_b32 exec_hi, -1")
    early_srds(a)
    srd(a, WA_, 66, D*1536*2)
    ga(0)
    ga(1)
    if opt('proQ', 2) == 3: ga(2)
    a.split("LF_hq1")
    late_srds(a)
    if fused: wsp_setup_h(a)
    q_spread_setup(a)
    a.stamp()
    for s in range(8):
        a.vmwait(("A", s))
        a("s_barrier")
        if s in (0, 1, 4): a.stamp()
        if s == 0: a(f"s_load_dword s{sT}, s[90:91], 128")
        if (0 if opt('proQ', 2) == 2 else 1) <= s <= 5: ga(s + 2)
        if s == 0: get_nonce(a, -1)
        if s == opt('st1q', 5): ln1_fetch_issue(a, True)
        if s == 7: ln1_fetch_finish(a, True)
        if s == opt('mt', 0): q_spread(a, 0, 1, 'm')
        s0 = opt('sp0', 5)
        if s0 <= s < 6: q_spread(a, s - s0, 6 - s0, 's')
        if s == opt('qcw', 9): cw_load(a, 0, 16)
    a.stamp()
    a("s_barrier")
    wt = opt('wtab', 0)
    if opt('qcw', 9) == 8: cw_load(a, 0, 16)
    for v in range(wt): wsp_group_h(a, v)
    a("s_barrier")
    for v in range(wt, NWS): wsp_group_h(a, v)
    if opt('qcw', 9) == 9: cw_load(a, 0, 16)
    a("s_mov_b32 s72, 0")

def flag_store(a, which):
    if which == "F1":
        a(f"s_lshl_b32 s61, s{sRB}, 3")
        a(f"s_add_u32 s61, s61, s{sGRP}")
        off = F1_OFF
    else:
        a(f"s_lshl_b32 s61, s{sRB}, 1")
        a(f"s_add_u32 s61, s61, s{sTYP}")
        a("s_lshl_b32 s61, s61, 3")
        a(f"s_add_u32 s61, s61, s{sGRP}")
        off = F2_OFF
    a("s_lshl_b32 s61, s61, 7")
    a(f"s_add_u32 s61, s61, {off}")
    a(f"s_cmp_eq_u32 s{sQ}, 0")
    a(f"s_cselect_b32 s61, s61, {OOB}")
    a(f"v_mov_b32 v30, s{sT}")
    a("v_mov_b32 v31, 0")
    a("s_mov_b64 exec, 1")
    a.vmem(f"buffer_store_dword v30, v31, {S4(WS_)}, s61 offen sc1", "flag")
    a("s_mov_b64 exec, -1")

def mfma32(d, a, b, c=None):
    c = V(d, 16) if c is None else c
    return f"v_mfma_f32_32x32x16_bf16 {V(d,16)}, {V(a)}, {V(b)}, {c}"

def get_nonce(a, line):
    if line >= 0: a(f"s_load_dword s{sT}, s[90:91], {64*line}")
    a("s_waitcnt lgkmcnt(0)")
    first = [True]
    def chk():
        if not first[0]: a(f"v_readfirstlane_b32 s{sT}, v30")
        first[0] = False
        a(f"s_cmp_lg_u32 s{sT}, 0")
    def iss():
        a("s_sleep 2")
        a("v_mov_b32 v31, 0")
        a(f"buffer_load_dword v30, v31, {S4(DBG_)}, 0 offen sc1")
    spin(a, iss, chk)

def ln1_issue(a):
    a(f"s_lshl_b32 s61, s{sRB}, 1")
    a(f"s_add_u32 s61, s61, s{sTYP}")
    a("s_lshl_b32 s61, s61, 3")
    a(f"s_add_u32 s61, s61, s{sGRP}")
    a("s_lshl_b32 s61, s61, 2")
    a(f"s_add_u32 s47, s61, s{sQ}")
    a("s_lshl_b32 s61, s47, 11")
    a("v_lshrrev_b32 v3, 5, v1")
    a("v_lshlrev_b32 v3, 10, v3")
    a("v_and_b32 v30, 31, v1")
    a("v_lshl_add_u32 v3, v30, 4, v3")
    a.vmem(f"buffer_load_dwordx4 {V(40)}, v3, {S4(X_)}, s61 offen", "ln1")
    a.vmem(f"buffer_load_dwordx4 {V(44)}, v3, {S4(X_)}, s61 offen offset:512", "ln1")
def ln1_publish(a):
    a("v_mov_b32 v48, 0x3f803f80")
    a("v_mov_b32 v32, 0\nv_mov_b32 v33, 0\nv_mov_b32 v34, 0\nv_mov_b32 v35, 0")
    a("s_lshl_b32 s47, s47, 5")
    a(f"s_add_u32 s47, s47, {WS_ST1}")
    a("v_lshrrev_b32 v3, 1, v1")
    a.vmwait("ln1")
    for i in range(8):
        a(f"v_dot2_f32_bf16 v{32+(i&1)}, v{40+i}, v48, v{32+(i&1)}")
        a(f"v_dot2_f32_bf16 v{34+(i&1)}, v{40+i}, v{40+i}, v{34+(i&1)}")
    a("s_nop 2")
    a("v_add_f32 v32, v32, v33")
    a("v_add_f32 v34, v34, v35")
    for r in (8, 4, 2, 1):
        a("s_nop 0")
        a(f"v_add_f32_dpp v32, v32, v32 row_ror:{r} row_mask:0xf bank_mask:0xf")
        a(f"v_add_f32_dpp v34, v34, v34 row_ror:{r} row_mask:0xf bank_mask:0xf")
    a("v_mov_b32 v33, v32\nv_mov_b32 v35, v34")
    a("s_nop 1")
    a("v_permlane16_swap_b32 v32, v33\nv_permlane16_swap_b32 v34, v35")
    a("v_add_f32 v32, v32, v33\nv_add_f32 v34, v34, v35")
    row_finalize(a, 32, 34, 0)
    get_nonce(a, 1)
    a(f"v_mov_b32 v33, s{sT}\nv_mov_b32 v35, s{sT}")
    a("s_mov_b32 exec_lo, 1\ns_mov_b32 exec_hi, 1")
    a.vmem(f"buffer_store_dwordx4 {V(32)}, v3, {S4(WS_)}, s47 offen sc1", "ln1s")
    a("s_mov_b64 exec, -1")

def ln1_fetch_issue(a, halo):
    a(f"s_lshl_b32 s69, s{sRB}, 2")
    a(f"s_add_u32 s69, s69, s{sQ}")
    a("s_lshl_b32 s69, s69, 9")
    a(f"s_add_u32 s69, s69, {WS_ST1}")
    a(f"s_lshl_b32 s70, s{sRB}, 11")
    a("s_sub_u32 s70, s70, 256")
    a("s_max_i32 s70, s70, 0")
    a(f"s_add_u32 s70, s70, {WS_ST1}")
    a("v_lshlrev_b32 v36, 3, v1")
    a("v_and_b32 v37, 0xff, v36")
    a.vmem(f"buffer_load_dwordx2 {V(32,2)}, v36, {S4(WS_)}, s69 offen sc1", "st1")
    if halo: a.vmem(f"buffer_load_dwordx2 {V(34,2)}, v37, {S4(WS_)}, s70 offen sc1", "st1")
def ln1_fetch_finish(a, halo):
    a.vmwait("st1")
    def iss():
        a(f"buffer_load_dwordx2 {V(32,2)}, v36, {S4(WS_)}, s69 offen sc1")
        if halo: a(f"buffer_load_dwordx2 {V(34,2)}, v37, {S4(WS_)}, s70 offen sc1")
    def chk():
        a(f"v_cmp_ne_u32 vcc, s{sT}, v33")
        if halo:
            a(f"v_cmp_ne_u32 s[61:62], s{sT}, v35".replace("s[61:62]", "s[72:73]"))
            a("s_nop 0")
            a("s_or_b64 vcc, vcc, s[72:73]")
        a("s_cmp_eq_u64 vcc, 0")
    spin(a, iss, chk)
    a("v_bfe_u32 v38, v1, 1, 1")
    a("v_lshrrev_b32 v39, 2, v1")
    a("v_lshl_add_u32 v38, v38, 4, v39")
    a(f"s_lshl_b32 s61, s{sQ}, 7")
    a(f"s_add_u32 s61, s61, {L_TAB}")
    a("v_lshl_add_u32 v38, v38, 2, s61")
    a("v_mov_b32_dpp v33, v32 quad_perm:[1,0,3,2] row_mask:0xf bank_mask:0xf")
    if halo:
        a("v_mov_b32_dpp v35, v34 quad_perm:[1,0,3,2] row_mask:0xf bank_mask:0xf")
        a("v_lshlrev_b32 v39, 1, v1")
        a("v_and_b32 v39, 0x3c, v39")
        a(f"v_add_u32 v39, {L_TAB + 512}, v39")
        a("v_rsq_f32 v33, v33\nv_rsq_f32 v35, v35")
        a("s_mov_b32 exec_lo, 0x55555555\ns_mov_b32 exec_hi, 0x55555555")
        a(f"ds_write_b32 v38, v32\nds_write_b32 v38, v33 offset:{TP}")
        a(f"ds_write_b32 v39, v34\nds_write_b32 v39, v35 offset:{TP}")
    else:
        a("v_rsq_f32 v34, v33")
        a("v_sqrt_f32 v33, v33")
        a("v_mul_f32 v35, v34, v34")
        a("v_mul_f32 v35, v35, v34")
        a(f"v_mul_f32 v35, {f2u(-C2):#x}, v35")
        a(f"v_mul_f32 v34, {f2u(-C1):#x}, v34")
        a("s_mov_b32 exec_lo, 0x55555555\ns_mov_b32 exec_hi, 0x55555555")
        for k, r in enumerate((32, 35, 34, 33)): a(f"ds_write_b32 v38, v{r} offset:{TP*k}")
    a("s_mov_b64 exec, -1")
    a("s_waitcnt lgkmcnt(0)")

def b_early(a):
    a("v_and_b32 v3, 15, v1")
    a("v_bfe_u32 v31, v1, 4, 1")
    a("v_lshl_add_u32 v3, v3, 1, v31")
    a("v_lshlrev_b32 v3, 1, v3")
    a(f"s_lshl_b32 s61, s{sRB}, 2")
    a(f"s_add_u32 s61, s61, s{sQ}")
    a("s_lshl_b32 s61, s61, 6")
    a(f"s_cmp_eq_u32 s{sKS}, 0")
    a("s_cselect_b32 s61, s61, 4096")
    a.vmem(f"buffer_load_ushort v0, v3, {S4(BSP_)}, s61 offen", "b")

def b_compute(a, fused):
    ACC = 32
    ring = list(range(80, 144, 4))
    Z1 = 144
    OF = 168
    a("v_and_b32 v3, 31, v1")
    a("v_lshrrev_b32 v30, 5, v1")
    a("v_bfe_u32 v31, v1, 1, 3")
    a("v_xor_b32 v31, v30, v31")
    a("v_lshlrev_b32 v3, 7, v3")
    a("v_lshl_add_u32 v10, v31, 4, v3")
    a(f"s_lshl_b32 s61, s{sQ}, 12")
    a("v_add_u32 v10, s61, v10")
    for b4 in range(1, 4): a(f"v_xor_b32 v{10+b4}, {32*b4}, v10")
    for b4 in range(4): a(f"v_add_u32 v{14+b4}, 0x10000, v{10+b4}")
    a("v_lshlrev_b32 v19, 4, v1")
    a(f"v_add_u32 v18, {L_Z2}, v19")
    a(f"v_add_u32 v21, {L_Z2 + 49152}, v19")
    a("v_and_b32 v3, 15, v1")
    a("v_bfe_u32 v31, v1, 4, 1")
    a("v_lshlrev_b32 v20, 9, v31")
    a("v_lshl_add_u32 v20, v30, 8, v20")
    a("v_lshl_add_u32 v20, v3, 4, v20")
    a(f"s_lshl_b32 s57, s{sRB}, 2")
    a(f"s_add_u32 s57, s57, s{sQ}")
    if not fused: b_early(a)
    a(f"s_mul_i32 s55, s{sCG}, 6")
    a("s_min_u32 s55, s55, 40")
    a("s_sub_u32 s58, 40, s55")
    a("s_min_u32 s58, s58, 6")
    a(f"s_cmp_eq_u32 s{sCG}, 7")
    a("s_cselect_b32 s58, 3, s58")
    a("s_mul_i32 s53, s57, 48")
    a("s_add_u32 s53, s53, s55")
    a("s_lshl_b32 s53, s53, 10")
    a(f"s_mul_i32 s61, s{sKS}, {64*48*1024}")
    a("s_add_u32 s54, s53, s61")
    a(f"s_add_u32 s53, s53, {WS_Z1}")
    a(f"s_add_u32 s54, s54, {WS_H}")
    if not fused: a.vmwait("b")
    a("v_lshlrev_b32 v22, 16, v0")
    for r in range(48): a(f"v_mov_b32 v{ACC+r}, v22")
    def z1_load():
        pass
    def z1_piece(j):
        def f():
            if j == 4: a("s_add_u32 s53, s53, 4096")
            a.vmem(f"buffer_load_dwordx4 {V(Z1+4*j)}, v20, {S4(WS_)}, s53 offen offset:{(j%4)*1024} sc1", "z1")
        return f
    extras = []
    zs = opt('z1step', 13)
    for j in range(6): extras.append((zs, z1_piece(j), lambda done: True, 99))
    a(f"s_lshl_b32 s56, s{sRC}, 1")
    a(f"s_and_b32 s61, s{sQ}, 1")
    a("s_add_u32 s56, s56, s61")
    a("s_lshl_b32 s56, s56, 1")
    a(f"s_lshr_b32 s61, s{sQ}, 1")
    a("s_add_u32 s56, s56, s61")
    a("s_lshl_b32 s56, s56, 14")
    a(f"s_add_u32 s56, s56, {WS_O}")
    def o_piece(b):
        def f():
            if b and b % 4 == 0: a("s_add_u32 s56, s56, 4096")
            a.vmem(f"buffer_load_dwordx4 {V(OF+4*b)}, v19, {S4(WS_)}, s56 offen offset:{(b%4)*1024} sc1", ("o", b))
        return f
    a.o_piece = o_piece
    def preB(st):
        if fused and st == opt('f2step', 2):
            a(f"v_mov_b32 v30, s{sT}")
            a("v_mov_b32 v31, 0")
            a.vmall()
            a("s_mov_b64 exec, 1")
            a.vmem(f"buffer_store_dword v30, v31, {S4(WS_)}, s75 offen sc1", "flag")
            a("s_mov_b64 exec, -1")
    fr = {}; mf = []
    for i in range(16):
        for b4 in range(4):
            fr[('w', i, b4)] = dict(step=i, reg=None, reads=[lambda r, i=i, b4=b4: f"ds_read_b128 {V(r)}, v{10 + b4 + 4*((i%NWS)//4)} offset:{((i%NWS)%4)*16384}"])
            for c in range(3):
                fr[('z', i, b4, c)] = dict(step=i, reg=None, reads=[lambda r, i=i, b4=b4, c=c: f"ds_read_b128 {V(r)}, v{18 if ZOFF(i) < 49152 else 21} offset:{ZOF2(i) + (b4*3+c)*1024}"])
                mf.append((ACC+16*c, ('z', i, b4, c), ('w', i, b4)))
    a.stamp()
    a("s_barrier")
    gemm_stream(a, mf, fr, ring, opt('LAB', 5), opt('coverB', 2), preB,
                first_zero=False, stamps=(0, 1, 8, 10, 12, 14), pergap=opt('pgB', 2), slack=2, op=mfma32, extras=extras)
    for e in extras: e[1]()
    a.stamp()
    a("s_barrier")
    a.vmwait("z1")
    for j in range(6):
        x = ACC + 8*j; z = Z1 + 4*j; t = 80 + 8*(j&1)
        for k in range(4):
            a(f"v_lshlrev_b32 v{t+2*k}, 16, v{z+k}")
            a(f"v_and_b32 v{t+2*k+1}, 0xffff0000, v{z+k}")
        for k in range(4): a(f"v_pk_mul_f32 {V(x+2*k,2)}, {V(x+2*k,2)}, {V(t+2*k,2)}")
        for k in range(4): a(f"v_cvt_pk_bf16_f32 v{x+k}, v{x+2*k}, v{x+2*k+1}")
        a(f"s_cmp_gt_u32 s58, {j}")
        a(f"s_cselect_b32 s61, s54, {OOB}")
        if j >= 4: a("s_add_u32 s61, s61, 4096")
        a.vmem(f"buffer_store_dwordx4 {V(x)}, v19, {S4(WS_)}, s61 offen offset:{(j%4)*1024} sc1", "h")
    a.stamp()

CR = 104
NCR = int(os.environ.get('NCR', 16))
def cw_load(a, lo, hi):
    if lo == 0 and hi > 0 or (lo == 0 and hi == 0): cw_load_setup(a)
    for i in range(lo, min(hi, NCR)):
        R, k = (WO_, i) if i < 16 else (WOUT_, i - 16)
        a(f"s_add_u32 s46, s47, {k*32768}")
        a.vmem(f"buffer_load_dwordx4 {V(CR+4*i)}, v26, {S4(R)}, s46 offen", "CW")
def cw_load_setup(a):
    a("v_bfe_u32 v3, v1, 4, 1")
    a("v_lshlrev_b32 v3, 2, v3")
    a("v_and_b32 v30, 7, v1")
    a("v_xor_b32 v30, v30, v3")
    a("v_lshrrev_b32 v3, 3, v1")
    a("v_lshlrev_b32 v3, 10, v3")
    a("v_lshl_add_u32 v26, v30, 4, v3")
    a(f"s_lshl_b32 s47, s{sCG}, 7")
    a(f"s_lshl_b32 s61, s{sQ}, 13")
    a("s_add_u32 s47, s47, s61")
def cw_write(a, lo, hi):
    for i in range(lo, min(hi, NCR)):
        g4 = 4*i
        off = CSLOT[g4 // 16]*16384 + (g4 % 16)*1024
        a(f"ds_write_b128 v{27 + (off >> 16)}, {V(CR+4*i)} offset:{off & 0xffff}")

CSLOT = [2, 3, 4, 5, 6, 0, 1, 7, 8, 9]; assert True
def b_helper(a, fused):
    if not fused:
        late_srds(a)
        wsp_setup_h(a)
        a(f"s_lshl_b32 s60, s{sQ}, 12")
    a("v_lshlrev_b32 v10, 4, v1")
    a(f"s_lshl_b32 s61, s{sQ}, 10")
    a("v_add_u32 v27, s61, v10")
    a("v_add_u32 v28, 0x10000, v27")
    a("v_add_u32 v29, 0x20000, v27")
    a(f"s_lshl_b32 s53, s{sCG}, 1")
    a(f"s_add_u32 s53, s53, s{sKS}")
    a(f"s_mul_i32 s53, s53, {16*12288}")
    a(f"s_mul_i32 s54, s{sQ}, 3072")
    a("s_add_u32 s53, s53, s54")
    a(f"s_add_u32 s53, s53, {WS_Z2N}")
    a(f"s_add_u32 s54, s54, {L_Z2}")
    def z2_group(i):
        a(f"s_add_u32 s61, s{sK0B}, {i}")
        a("s_and_b32 s61, s61, 15")
        a("s_mul_i32 s61, s61, 12288")
        a(f"s_add_u32 m0, s54, {ZOFF(i)}")
        a("s_add_u32 s61, s61, s53")
        for k in range(3): a.vmem(f"buffer_load_dwordx4 v10, {S4(WS_)}, s61 offen offset:{1024*k} sc1 lds", ("Z", i))
    a.stamp()
    if fused:
        a(f"s_lshl_b32 s71, s{sCG}, 1")
        a(f"s_add_u32 s71, s71, s{sKS}")
        a("s_lshl_b32 s71, s71, 12")
        a(f"s_add_u32 s71, s71, {F1_OFF}")
        a("v_and_b32 v31, 31, v1")
        a("v_lshlrev_b32 v31, 7, v31")
        a(f"v_mov_b32 v30, 0")
        def iss(): a(f"buffer_load_dword v30, v31, {S4(WS_)}, s71 offen sc1")
        def chk():
            a(f"v_cmp_ne_u32 vcc, s{sT}, v30")
            a("s_cmp_eq_u64 vcc, 0")
        wp = opt('wp', 3)
        lA = a.label("LfA")
        lB = a.label("LfB")
        iss(); a("s_waitcnt vmcnt(0)"); chk()
        a(f"s_cbranch_scc1 {lA}")
        a("s_cmp_eq_u32 s72, 0")
        a(f"s_cbranch_scc1 {lB}")
        for v in range(wp, NWS): wsp_group_h(a, v)
        a("s_mov_b32 s72, 0")
        a(f"{lB}:")
        spin(a, iss, chk)
        a("s_waitcnt vmcnt(0)")
        a(f"{lA}:")
        a.vm = []
        a.stamp()
        for i in range(NZS - 1): z2_group(i)
        a("v_mov_b32 v25, 256")
        def late_group(v):
            ld = a.label("Lld"); le = a.label("Lle")
            a("s_cmp_eq_u32 s72, 0")
            a(f"s_cbranch_scc1 {ld}")
            wsp_group_h(a, v)
            a(f"s_branch {le}")
            a(f"{ld}:")
            a("s_mov_b64 exec, 1")
            for k in range(4): a(f"buffer_load_dword v24, v25, {S4(DBG_)}, 0 offen")
            a("s_mov_b64 exec, -1")
            a(f"{le}:")
    a("s_barrier")
    wpre = NWS
    a("v_add_u32 v18, 4096, v8")
    a("v_add_u32 v19, 4096, v9")
    def wsp_pieces(v):
        def f(k):
            if k == 0:
                a(f"s_add_u32 s58, s{sK0B}, {v}")
                a("s_and_b32 s58, s58, 15")
                a("s_lshl_b32 s58, s58, 7")
                a("s_add_u32 s58, s58, s59")
            a(f"s_add_u32 m0, s60, {(v % NWS) * 16384 + 2048*(k>>1)}")
            a("s_nop 0")
            a.vmem(f"buffer_load_dwordx4 v{(8, 9, 18, 19)[k]}, {S4(WSP_)}, s58 offen offset:{1024*(k&1)} {NT('s')}lds", ("S", v))
        return [(lambda k=k: f(k)) for k in range(4)]
    cws = opt('cws', 14)
    bg = []
    for v in range(wpre, 16): bg += [(max(0, v - NWS + 1), p, v) for p in wsp_pieces(v)]
    for i in range(16):
        assert all(x[2] > i for x in bg), i
        a.vmwait(("S", i)); a.vmwait(("Z", i))
        if fused and i == opt('z1step', 13): f2_check(a)
        a("s_barrier")
        if i in (0, 1, 8, 10, 12, 14): a.stamp()
        if fused and i == opt('f2step', 2): flag_store(a, "F2")
        if fused and i == opt('z1step', 13) - 3: f2_issue(a)
        lg = opt('lg', 2)
        for v in range(wp + lg*i, min(NWS, wp + lg*(i + 1))):
            assert v > i
            late_group(v)
        if i + NZS - 1 < 16: z2_group(i + NZS - 1)
        if i >= cws: cw_write(a, 4*(i - cws), 4*(i - cws) + 4)
        n = opt('pace', 3)
        while n > 0 and bg and bg[0][0] <= i:
            bg.pop(0)[1](); n -= 1
    a.stamp()
    a("s_barrier")
    assert not bg
    cw_write(a, 4*(16 - cws), max(16, 4*(16 - cws)))

def f2_issue(a):
    a(f"s_lshl_b32 s62, s{sRB}, 4")
    a(f"s_add_u32 s62, s62, s{sCG}")
    a("s_add_u32 s62, s62, 8")
    a("s_lshl_b32 s62, s62, 7")
    a(f"s_add_u32 s62, s62, {F2_OFF}")
    a(f"s_lshr_b32 s61, s{sRC}, 1")
    a("s_lshl_b32 s61, s61, 12")
    a(f"s_add_u32 s61, s61, {FO_OFF}")
    a("v_lshlrev_b32 v20, 7, v1")
    a("v_add_u32 v20, s61, v20")
    a("v_mov_b32 v21, s62")
    a("v_cmp_lt_u32 vcc, 31, v1")
    a("s_nop 1")
    a("v_cndmask_b32 v20, v20, v21, vcc")
    a.vmem(f"buffer_load_dword v21, v20, {S4(WS_)}, 0 offen sc1", "f2")
def f2_check(a):
    a.vmwait("f2")
    def iss(): a(f"buffer_load_dword v21, v20, {S4(WS_)}, 0 offen sc1")
    def chk():
        a(f"v_cmp_ne_u32 vcc, s{sT}, v21")
        a("s_cmp_eq_u64 vcc, 0")
    spin(a, iss, chk)

L_RED = 0
def c_waddr(a, d):
    a("v_lshrrev_b32 v3, 5, v1")
    a("v_bfe_u32 v30, v1, 2, 2")
    a("v_lshl_add_u32 v3, v3, 2, v30")
    a("v_lshlrev_b32 v3, 7, v3")
    a("v_and_b32 v30, 2, v30")
    a("v_bfe_u32 v31, v1, 4, 1")
    a("v_or_b32 v30, v30, v31")
    a("v_lshl_add_u32 v3, v30, 5, v3")
    a("v_and_b32 v30, 3, v1")
    a(f"v_lshl_add_u32 v{d}, v30, 3, v3")
    a(f"v_xor_b32 v{d+1}, 64, v{d}")

def c_stream(a, nblk, fragreg, tagf, areg, blk0, ring, ACC, first_zero, loads=(), off0=0):
    fr = {}; mf = []
    for b in range(nblk):
        fr[('h', b)] = dict(step=0, reg=fragreg(b), reads=None)
        for nn in range(2):
            off = CSLOT[(blk0 + b) // 8] * 16384 + ((blk0 + b) % 8) * 2048 - off0
            fr[('w', b, nn)] = dict(step=0, reg=None, reads=[(lambda r, hh=hh, nn=nn, off=off: f"ds_read_b64_tr_b16 {V(r+2*hh,2)}, v{areg(off >> 16) + nn} offset:{(off & 0xffff) + hh*1024}") for hh in range(2)])
            mf.append((ACC+16*nn, ('w', b, nn), ('h', b)))
    cnt = [0]
    def op(d, x, y, c):
        b = cnt[0] // 2
        if cnt[0] % 2 == 1 and loads: loads.pop(0)()
        cnt[0] += 1
        a.vmwait(tagf(b))
        return mfma32(d, x, y, c)
    gemm_stream(a, mf, fr, ring, opt('LAC', 4), 0, lambda st: None, first_zero=first_zero, pergap=2, slack=2, op=op, skip_first_barrier=True)

def c_final(a):
    a("s_barrier")
    for k in range(2):
        a(f"ds_read_b128 {V(16+8*k)}, v6 offset:{17408*k}")
        a(f"ds_read_b128 {V(20+8*k)}, v6 offset:{17408*k + 16}")
    a.vmwait("x")
    for w in range(4):
        a(f"v_lshlrev_b32 v{32+2*w}, 16, v{8+w}")
        a(f"v_and_b32 v{33+2*w}, 0xffff0000, v{8+w}")
    a("s_waitcnt lgkmcnt(2)")
    for w in range(4): a(f"v_pk_add_f32 {V(32+2*w,2)}, {V(32+2*w,2)}, {V(16+2*w,2)}")
    a("s_waitcnt lgkmcnt(0)")
    for w in range(4): a(f"v_pk_add_f32 {V(32+2*w,2)}, {V(32+2*w,2)}, {V(24+2*w,2)}")
    for w in range(4): a(f"v_cvt_pk_bf16_f32 v{32+w}, v{32+2*w}, v{33+2*w}")
    a.vmem(f"buffer_store_dwordx4 {V(32)}, v7, {S4(OUT_)}, s47 offen {('', 'sc1', 'nt', 'sc0 sc1', 'sc1 nt')[opt('outf', 0)]}", "out")

def c_final_setup(a):
    a("v_lshrrev_b32 v3, 3, v1")
    a(f"s_lshl_b32 s61, s{sW}, 3")
    a("v_add_u32 v3, s61, v3")
    a("v_and_b32 v30, 7, v1")
    a("v_mul_u32_u24 v6, 272, v3")
    a("v_lshl_add_u32 v6, v30, 5, v6")
    a("v_add_u32 v6, 32768, v6")
    a("v_and_b32 v31, 15, v3")
    a("v_lshlrev_b32 v31, 1, v31")
    a("v_bfe_u32 v7, v3, 4, 1")
    a("v_add_u32 v31, v31, v7")
    a("v_and_b32 v7, 32, v3")
    a("v_add_u32 v31, v31, v7")
    a("v_lshlrev_b32 v31, 10, v31")
    a("v_lshl_add_u32 v7, v30, 4, v31")
    a(f"s_lshl_b32 s47, s{sRC}, 9")
    a(f"s_add_u32 s47, s47, s{sCG}")
    a("s_lshl_b32 s47, s47, 7")
    a.vmem(f"buffer_load_dwordx4 {V(8)}, v7, {S4(X_)}, s47 offen", "x")

def c_compute(a, fused):
    ACC, OF, HF = 32, 168, 80
    for b in range(16): a.o_piece(b)()
    a(f"s_and_b32 s53, s{sQ}, 1")
    a(f"s_lshr_b32 s54, s{sQ}, 1")
    c_waddr(a, 26)
    a("s_lshl_b32 s61, s54, 15")
    a("s_add_u32 s61, s61, 32768")
    a("v_add_u32 v4, s61, v26\nv_add_u32 v5, s61, v27")
    a("s_barrier")
    a("s_lshl_b32 s61, s57, 1")
    a(f"s_add_u32 s61, s61, s{sKS}")
    a("s_lshl_b32 s61, s61, 3")
    a(f"s_add_u32 s61, s61, s{sCG}")
    a("s_lshl_b32 s61, s61, 7")
    a(f"s_add_u32 s61, s61, {F3_OFF}")
    a(f"v_mov_b32 v30, s{sT}")
    a("v_mov_b32 v31, 0")
    a.vmwait("h")
    a("s_mov_b64 exec, 1")
    a.vmem(f"buffer_store_dword v30, v31, {S4(WS_)}, s61 offen sc1", "flag")
    a("s_mov_b64 exec, -1")
    a.stamp()
    c_stream(a, 16, lambda b: OF+4*b, lambda b: ("o", b), lambda k: 4, 0, list(range(80, 112, 4)), ACC, True, off0=32768)
    a.stamp()
    a("v_add_u32 v252, 0x10000, v26\nv_add_u32 v253, 0x10000, v27")
    a("v_add_u32 v254, 0x20000, v26\nv_add_u32 v255, 0x20000, v27")
    a(f"s_lshl_b32 s55, s{sRC}, 1")
    a("s_add_u32 s55, s55, s53")
    a("s_lshl_b32 s56, s54, 6")
    a("s_add_u32 s56, s56, s55")
    a("s_mul_i32 s56, s56, 49152")
    a(f"s_add_u32 s56, s56, {WS_H}")
    a("v_lshlrev_b32 v28, 4, v1")
    c_final_setup(a)
    a("v_and_b32 v3, 31, v1")
    a("v_mul_u32_u24 v3, 272, v3")
    a("v_lshrrev_b32 v30, 5, v1")
    a("v_lshl_add_u32 v3, v30, 4, v3")
    a("s_mul_i32 s61, s54, 17408")
    a(f"s_mul_i32 s62, s53, {32*272}")
    a("s_add_u32 s61, s61, s62")
    a("s_add_u32 s61, s61, 32768")
    a("v_add_u32 v4, s61, v3")
    a("s_lshl_b32 s62, s55, 1")
    a("s_add_u32 s62, s62, s54")
    a("s_lshl_b32 s62, s62, 10")
    a(f"s_add_u32 s62, s62, {F3_OFF}")
    a("v_and_b32 v31, 7, v1")
    a("v_lshlrev_b32 v31, 7, v31")
    a("v_mov_b32 v30, 0")
    a("s_barrier")
    def iss(): a(f"buffer_load_dword v30, v31, {S4(WS_)}, s62 offen sc1")
    def chk():
        a(f"v_cmp_ne_u32 vcc, s{sT}, v30")
        a("s_cmp_eq_u64 vcc, 0")
    spin(a, iss, chk)
    a.vm = []
    a.stamp()
    def hload(b):
        if b and b % 4 == 0: a("s_add_u32 s56, s56, 4096")
        a.vmem(f"buffer_load_dwordx4 {V(HF+4*b)}, v28, {S4(WS_)}, s56 offen offset:{(b%4)*1024} sc1", ("H", b))
    PH = opt('PH', 14)
    for b in range(PH): hload(b)
    ring = list(range(64, 80, 4)) + [12, 16, 20]
    c_stream(a, 43, lambda b: HF+4*b, lambda b: ("H", b), lambda k: (26, 252, 254)[k], 32, ring, ACC, False, [(lambda b=b: hload(b)) for b in range(PH, 43)])
    a.stamp()
    a("s_nop 15")
    for nn in range(2):
        for jj in range(4): a(f"ds_write_b128 v4, {V(ACC+16*nn+4*jj)} offset:{128*nn + 32*jj}")
    a("s_waitcnt lgkmcnt(0)")
    c_final(a)

def c_helper(a, fused):
    a("s_waitcnt lgkmcnt(0)")
    a("s_barrier")
    a(f"s_lshl_b32 s60, s{sQ}, 10")
    for i in range(NCR, 38):
        off = CSLOT[i // 4]*16384 + (4*i % 16)*1024
        a(f"s_add_u32 m0, s60, {off}")
        a(f"s_add_u32 s46, s47, {(i - 16)*32768}")
        a.vmem(f"buffer_load_dwordx4 v26, {S4(WOUT_)}, s46 offen lds", "CW2")
    cw_write(a, max(16, 4*(16 - opt('cws', 14))), 38)
    c_final_setup(a)
    a.vmwait("CW2")
    a("s_waitcnt lgkmcnt(0)")
    a.stamp()
    a("s_barrier")
    c_final(a)

def diag_out(a, base):
    if opt('padto', 0):
        l = a.label("Lpad")
        if opt('leak', -1) >= 0:
            a("s_nop 0")
            a(f"v_readlane_b32 s61, v2, {opt('leak', 0)}")
            a("s_lshr_b32 s61, s61, 4")
            a(f"s_lshl_b32 s62, s{sW}, 10")
            a("s_add_u32 s62, s62, s2")
            a(f"s_cmp_eq_u32 s62, {opt('leakwg', 200)}")
            a("s_cselect_b32 s61, s61, 0")
            a("s_add_u32 s84, s84, s61")
        a(f"{l}:")
        a("s_sleep 1")
        a("s_memrealtime s[86:87]")
        a("s_waitcnt lgkmcnt(0)")
        a(f"s_sub_u32 s86, s86, s{sT if opt('padT', 0) else 84}")
        a(f"s_cmp_lt_i32 s86, {opt('padto', 0)}")
        a(f"s_cbranch_scc1 {l}")
    if opt('skew', 0):
        a(f"s_sub_u32 s61, s84, s{sT}")
        a("s_add_u32 s61, s61, 100000")
        a("v_mov_b32 v4, s61")
        a("v_mov_b32 v5, 8")
        a("s_mov_b64 exec, 1")
        a(f"buffer_atomic_umax v4, v5, {S4(DBG_)}, 0 offen")
        a("s_sub_u32 s61, 200000, s61")
        a("v_mov_b32 v4, s61")
        a(f"buffer_atomic_umax v4, v5, {S4(DBG_)}, 0 offen offset:4")
        a("s_mov_b64 exec, -1")
    if not a.diag: return
    a("v_writelane_b32 v2, s84, 62")
    a("s_memrealtime s[86:87]")
    a("s_waitcnt lgkmcnt(0)")
    a("v_writelane_b32 v2, s86, 63")
    a("s_lshl_b32 s61, s2, 3")
    a(f"s_add_u32 s61, s61, s{sW}")
    a("s_lshl_b32 s61, s61, 8")
    a(f"s_add_u32 s61, s61, {base}")
    a("v_lshlrev_b32 v3, 2, v1")
    a(f"buffer_store_dword v2, v3, {S4(WS_)}, s61 offen")
    if opt('hdbg', -1) >= 0:
        l = a.label("Lhd")
        a(f"s_cmp_lg_u32 s2, {opt('hdbg', 0)}")
        a(f"s_cbranch_scc1 {l}")
        a(f"s_cmp_lg_u32 s{sW}, 0")
        a(f"s_cbranch_scc1 {l}")
        a("s_sub_u32 s86, s86, s84")
        a("v_mov_b32 v4, 0")
        a("v_writelane_b32 v4, s86, 1")
        for k, src in enumerate((0, 1, 3, 4, 5, 6, 7, 10, 11, 17, 18, 19, 20, 22)):
            a(f"v_readlane_b32 s61, v2, {src}")
            a("s_nop 3")
            a(f"v_writelane_b32 v4, s61, {2+k}")
        a("s_mov_b64 exec, 0xfffe")
        a(f"buffer_store_dword v4, v3, {S4(DBG_)}, 0 offen")
        a(f"{l}:")

def simple_kernel(name, diag, idx, comp, helper):
    a = G(diag)
    prologue(a, f"L{name}_end")
    a(f"s_cmp_ge_u32 s{sW}, 4")
    a(f"s_cbranch_scc1 L{name}_h")
    for k, fn in enumerate((comp, helper)):
        if k: a(f"L{name}_h:")
        a.vm = []; a.nst = 0
        fn(a)
        a.vmall(); a.stamp()
        diag_out(a, WS_DBG + idx*0x80000)
        a("s_endpgm")
    a(f"L{name}_end:")
    a("s_endpgm")
    return a.text()

def by_type(fq, fz, lab):
    def f(a):
        a(f"s_cmp_lg_u32 s{sTYP}, 0")
        a(f"s_cbranch_scc1 {lab}_z")
        fq(a, False)
        a.vmall()
        a(f"s_branch {lab}_e")
        n = a.nst
        a(f"{lab}_z:")
        a.vm = []; a.nst = 0
        fz(a, False)
        a(f"{lab}_e:")
        a.nst = max(a.nst, n)
    return f

def multi(diag):
    ka = simple_kernel("A", diag, 0, by_type(aq_compute, az_compute, "LAc"), by_type(aq_helper, az_helper, "LAh"))
    def bc(a): late_srds(a); b_compute(a, False)
    kb = simple_kernel("B", diag, 1, bc, lambda a: b_helper(a, False))
    kc = simple_kernel("C", diag, 2, lambda a: c_compute(a, False), lambda a: c_helper(a, False))
    return [("a_kernel", ka), ("b_kernel", kb), ("c_kernel", kc)]

def fused_kernel(diag):
    a = G(diag)
    prologue(a, "LF_end")
    a(f"s_cmp_lt_u32 s{sW}, 4")
    a("s_cbranch_scc1 LF_c")
    a(f"s_cmp_lg_u32 s{sTYP}, 0")
    a("s_cbranch_scc1 LF_hz")
    aq_helper(a, True)
    a("s_branch LF_hb")
    a.unsplit()
    a("LF_hz:")
    a.vm = []; a.nst = 0
    az_helper(a, True)
    a("LF_hb:")
    a.vm = []; a.nst = 10
    b_helper(a, True)
    c_helper(a, True)
    a.vmall(); a.stamp()
    diag_out(a, WS_DBG)
    a("s_endpgm")
    a.unsplit()
    a("LF_c:")
    a.vm = []; a.nst = 0
    early_srds(a)
    late_srds(a)
    nonce_publish(a)
    ln1_issue(a)
    if opt('cpf', 1):
        a("s_getpc_b64 s[62:63]")
        a("LF_pc:")
        a("s_lshr_b32 s61, s2, 3")
        a("s_lshl_b32 s61, s61, 2")
        a(f"s_add_u32 s61, s61, s{sQ}")
        a("s_lshl_b32 s61, s61, 3")
        a("v_add_u32 v3, s61, v1")
        a("v_lshlrev_b32 v3, 7, v3")
        a("v_min_u32 v3, LF_end - LF_pc, v3")
        a(f"s_mov_b32 m0, {L_MISC}")
        a("s_mov_b64 exec, 0xff")
        a.vmem("global_load_lds_dword v3, s[62:63]", "cpf")
        a("s_mov_b64 exec, -1")
    b_early(a)
    a(f"s_cmp_lg_u32 s{sTYP}, 0")
    a("s_cbranch_scc1 LF_cz")
    vmc = list(a.vm)
    aq_compute(a, True)
    a("s_branch LF_cb")
    a("LF_cz:")
    a.vm = list(vmc); a.nst = 0
    az_compute(a, True)
    a(f"s_mov_b32 s75, {OOB}")
    a("LF_cb:")
    a.vm = []; a.nst = 10
    b_compute(a, True)
    c_compute(a, True)
    a.vmall(); a.stamp()
    diag_out(a, WS_DBG)
    a("s_endpgm")
    for t in a.tails: a.L += t
    a("LF_end:")
    a("s_endpgm")
    return [(KNAME, a.text())]

if __name__ == "__main__":
    diag = "diag" in sys.argv
    for x in sys.argv[2:]:
        if "=" in x:
            k, v = x.split("="); OPT[k] = int(v)
    ks = multi(diag) if 'multi' in sys.argv else fused_kernel(diag)
    hdr = open("cdna_kernels/" + KNAME[:-7] + ".s.ref").read().split("; Override")[0]
    txt = file_text([(n, 256, 512, LDS_BYTES) for n, t in ks], [(n, t, 256, 102, 256) for n, t in ks])
    if len(ks) == 1: txt = txt.replace(f"; @launch kernel={KNAME} ", "; @launch ")
    txt = "\n".join(l.strip() if l.startswith("    ") else l for l in txt.split("\n"))
    if opt('align', 1):
        import align
        txt, n1, n2 = align.align(txt)
    open(sys.argv[1], "w").write(hdr + txt)
```

```python
import sys, math, struct, os
from asmgen import Asm, KA, KNAME, file_text
from layout import *

OOB = 0x10000000
LOG2E = 1.4426950408889634
def f2u(x): return struct.unpack("<I", struct.pack("<f", x))[0]
C1 = 2.0 * math.sqrt(2.0 / math.pi) * LOG2E
C2 = C1 * 0.044715
NEG = f2u(-1e30)
OPT = {}
F1_OFF, F2_OFF, F3_OFF, FO_OFF = WS_FLG, WS_FLG + 512*128, WS_FLG + 768*128, WS_FLG + 1792*128
def opt(k, d): return OPT.get(k, d)
def ZOFF(i): return (i % NZS)*12288
def ZOF2(i): return ZOFF(i) % 49152
def NT(k): return 'nt ' if opt('nt' + k, 0) else ''

sW, sQ, sRB, sGRP = 3, 4, 6, 7
X_, WA_, WS_, WSP_, WO_, WOUT_, OUT_, BSP_, DBG_ = 8, 12, 16, 20, 24, 28, 32, 36, 40
sK0A, sTYP = 44, 45
sKS, sCG, sK0B, sT = 48, 50, 51, 52
sRC = 49
def S4(b): return f"s[{b}:{b+3}]"
def V(b, n=4): return f"v[{b}:{b+n-1}]" if n > 1 else f"v{b}"

L_TAB = 156*1024
TP = 640
L_CW  = L_TAB + 2560
L_MISC = L_TAB + 3328
L_XCH = 148*1024
L_PARK = 112*1024
NWS = int(os.environ.get('NWS', 7))
NZS = {7: 4, 6: 5, 5: 6}[NWS]
L_Z2 = 160*1024 - NZS*12288
L_RC = L_TAB + 3584
LDS_BYTES = 160*1024

class G(Asm):
    UID = [0]
    def label(self, base="L"):
        G.UID[0] += 1
        return f"{base}_{G.UID[0]}"
    def __init__(self, diag=False):
        super().__init__()
        self.vm = []; self.diag = diag; self.nst = 0; self.tails = []
    def vmem(self, s, tag=None):
        self(s); self.vm.append(tag)
    def has(self, tag): return any(t == tag for t in self.vm)
    def vmwait(self, tag):
        if not self.has(tag): return
        idx = max(i for i, t in enumerate(self.vm) if t == tag)
        n = len(self.vm) - 1 - idx
        n = min(n, 63)
        self(f"s_waitcnt vmcnt({n})")
        self.vm = self.vm[idx+1:]
    def vmall(self):
        self("s_waitcnt vmcnt(0)"); self.vm = []
    def stamp(self):
        if not self.diag: return
        self("s_memtime s[82:83]")
        self("s_waitcnt lgkmcnt(0)")
        self("s_sub_u32 s82, s82, s80")
        self(f"v_writelane_b32 v2, s82, {self.nst}")
        self.nst += 1
    def split(self, label):
        self(f"s_branch {label}")
        self.head = self.L
        self.L = []
        self(f"{label}:")
    def unsplit(self):
        self.tails.append(self.L); self.L = self.head
    def run(self, fs):
        for f in fs: f() if callable(f) else self(f)

def mfma(d, a, b, c=None):
    c = V(d) if c is None else c
    return f"v_mfma_f32_16x16x32_bf16 {V(d)}, {V(a)}, {V(b)}, {c}"
def mfma16(d, a, b, c=None):
    c = V(d) if c is None else c
    return f"v_mfma_f32_16x16x16_bf16 {V(d)}, {V(a,2)}, {V(b,2)}, {c}"

def gemm_stream(a, mf, frags, ring, LA, cover, pre_barrier, hooks=None, first_zero=True, stamps=(), nobar=0, pergap=1, slack=4, op=None, skip_first_barrier=False, extras=None):
    hooks = hooks or {}
    extra_max = opt('xmax', 1)
    first, last = {}, {}
    for i, (d, x, y) in enumerate(mf):
        for f in (x, y):
            first.setdefault(f, i); last[f] = i
    order = sorted([f for f in first if frags[f].get('reads')], key=lambda f: (frags[f]['step'], first[f]))
    rl = [(f, k) for f in order for k in range(len(frags[f]['reads']))]
    reg = {f: frags[f]['reg'] for f in first if frags[f].get('reg') is not None}
    owner = {r: None for r in ring}
    ptr = 0; cur = (0 if skip_first_barrier else -1); out = []; done = set(f for f in first if not frags[f].get('reads'))
    since = 10**9
    seen = set()
    def issue_one(i, force):
        nonlocal ptr, cur, since, out
        f, k = rl[ptr]
        st = frags[f]['step']
        if st > cur:
            if not force and since < cover: return False
            pre_barrier(st)
            if not (nobar and st > 0):
                if out:
                    a("s_waitcnt lgkmcnt(0)")
                    for g_, _ in out: done.add(g_)
                    out = []
                a("s_barrier")
            cur = st
            if st in stamps: a.stamp()
            if st in hooks: hooks[st]()
        if k == 0 and f not in reg:
            free = [r for r in ring if owner[r] is None or last[owner[r]] < i]
            if not free:
                assert not force, "ring too small"
                return False
            r = min(free, key=lambda r: -1 if owner[r] is None else last[owner[r]])
            reg[f] = r; owner[r] = f
        if len(out) >= 14 and not force: return False
        a(frags[f]['reads'][k](reg[f]))
        out.append((f, k)); ptr += 1; since = 0
        return True
    for i, (d, x, y) in enumerate(mf):
        need = [f for f in (x, y) if f not in done]
        while ptr < len(rl) and any(rl[j][0] in need for j in range(ptr, len(rl)) if first[rl[j][0]] <= i):
            issue_one(i, True)
        n = 0
        while ptr < len(rl) and first[rl[ptr][0]] <= i + LA:
            lim = 12 if i == 0 else (pergap + 1 if first[rl[ptr][0]] <= i + LA - slack else pergap)
            if n >= lim: break
            if not issue_one(i, False): break
            n += 1
        if extras and n <= extra_max and extras[0][0] <= cur and extras[0][2](done):
            extras.pop(0)[1]()
        need = [f for f in (x, y) if f not in done]
        if need:
            idx = max(j for j, (f, k) in enumerate(out) if f in need)
            a(f"s_waitcnt lgkmcnt({len(out) - 1 - idx})")
            for f, k in out[:idx+1]:
                if k == len(frags[f]['reads']) - 1: done.add(f)
            out = out[idx+1:]
        c = None
        if first_zero and d not in seen:
            c = "0"; seen.add(d)
        a((op or mfma)(d, reg[x], reg[y], c))
        since += 1
    assert ptr == len(rl)

def srd(a, d, p, nbytes):
    a(f"s_mov_b32 s{d}, s{p}")
    a(f"s_and_b32 s{d+1}, s{p+1}, 0xffff")
    a(f"s_mov_b32 s{d+2}, {nbytes:#x}")
    a(f"s_mov_b32 s{d+3}, 0x20000")

def prologue(a, endlabel):
    if a.diag:
        a("s_memtime s[80:81]")
    a("s_memrealtime s[84:85]")
    a("s_cmp_ge_u32 s2, 256")
    a(f"s_cbranch_scc1 {endlabel}")
    a("s_load_dwordx16 s[64:79], s[0:1], 0")
    a("s_load_dwordx4 s[88:91], s[0:1], 64")
    a("s_load_dwordx2 s[92:93], s[0:1], 80")
    if opt('cpf', 1):
        a("s_getpc_b64 s[62:63]")
        a("LF_pc:")
        a("s_lshr_b32 s61, s2, 3")
        a("s_mul_i32 s61, s61, ((LF_end - LF_pc) >> 12) + 1")
        a("v_add_u32 v3, s61, v0")
        a("v_lshlrev_b32 v3, 7, v3")
        a("v_min_u32 v3, LF_end - LF_pc, v3")
        a(f"s_mov_b32 m0, {L_MISC}")
        a("v_cmp_gt_u32 vcc, ((LF_end - LF_pc) >> 12) + 1, v0")
        a("s_and_saveexec_b64 s[60:61], vcc")
        a("s_cbranch_execz LF_npf")
        a("global_load_lds_dword v3, s[62:63]")
        a("LF_npf:")
        a("s_mov_b64 exec, -1")
    a("v_lshrrev_b32 v3, 6, v0")
    a("v_and_b32 v1, 63, v0")
    a("v_mov_b32 v2, 0")
    a(f"v_readfirstlane_b32 s{sW}, v3")
    a("s_and_b32 s53, s2, 7")
    a("s_lshr_b32 s54, s2, 3")
    a("s_lshr_b32 s55, s53, 1")
    a("s_and_b32 s56, s54, 3")
    a(f"s_lshr_b32 s{sCG}, s54, 2")
    a(f"s_lshl_b32 s{sRB}, s55, 2")
    a(f"s_add_u32 s{sRB}, s{sRB}, s56")
    a(f"s_and_b32 s{sKS}, s53, 1")
    a(f"s_lshl_b32 s{sRC}, s53, 2")
    a(f"s_add_u32 s{sRC}, s{sRC}, s56")
    a(f"s_lshl_b32 s{sGRP}, s{sKS}, 2")
    a(f"s_and_b32 s58, s{sCG}, 3")
    a(f"s_add_u32 s{sGRP}, s{sGRP}, s58")
    a(f"s_lshr_b32 s{sTYP}, s{sCG}, 2")
    if opt('rotAm', 0) == 0:
        a(f"s_lshl_b32 s{sK0A}, s56, 1")
        a(f"s_add_u32 s{sK0A}, s{sK0A}, s{sCG}")
        a(f"s_add_u32 s{sK0A}, s{sK0A}, s55")
    else:
        a(f"s_lshl_b32 s{sK0A}, s{sKS}, 1")
        a(f"s_add_u32 s{sK0A}, s{sK0A}, s55")
        a(f"s_lshl_b32 s{sK0A}, s{sK0A}, 1")
        if opt('rotAm', 0) == 2:
            a("s_and_b32 s58, s56, 1")
            a(f"s_add_u32 s{sK0A}, s{sK0A}, s58")
    a(f"s_and_b32 s{sK0A}, s{sK0A}, {opt('rotA', 7)}")
    if opt('rotBm', 1) == 0:
        a(f"s_lshl_b32 s{sK0B}, s{sCG}, 1")
    else:
        a(f"s_lshl_b32 s{sK0B}, s{sCG}, 1")
        a(f"s_add_u32 s{sK0B}, s{sK0B}, s{sTYP}")
        a(f"s_lshl_b32 s{sK0B}, s{sK0B}, 1")
    a(f"s_add_u32 s{sK0B}, s{sK0B}, s{sRB}")
    a(f"s_and_b32 s{sK0B}, s{sK0B}, {opt('rotB', 15)}")
    a(f"s_and_b32 s{sQ}, s{sW}, 3")

def early_srds(a):
    if opt('sst', 0): a.stamp()
    a("s_waitcnt lgkmcnt(0)")
    srd(a, X_, 64, S*D*2)

def late_srds(a):
    srd(a, WS_, 92, 268435456)
    srd(a, DBG_, 90, 256)
    srd(a, WSP_, 74, S*S*2)
    srd(a, WO_, 68, D*D*2)
    srd(a, WOUT_, 78, FH*D*2)
    srd(a, OUT_, 88, S*D*2)
    srd(a, BSP_, 76, S*2)

def rowtile_voffs(a, d0, d1, sh, t0=3, t1=30, t2=31):
    a(f"v_lshrrev_b32 v{t0}, 3, v1")
    a(f"v_lshlrev_b32 v{t0}, {sh+1}, v{t0}")
    a(f"v_lshrrev_b32 v{t1}, 4, v1")
    a(f"v_and_b32 v{t2}, 7, v1")
    a(f"v_xor_b32 v{t1}, v{t1}, v{t2}")
    a(f"v_lshl_add_u32 v{d0}, v{t1}, 4, v{t0}")
    a(f"v_xor_b32 v{t1}, 4, v{t1}")
    a(f"v_lshl_add_u32 v{d1}, v{t1}, 4, v{t0}")
    a(f"v_add_u32 v{d1}, {(16 << sh) - 1024}, v{d1}")

def rowfrag_addr(a, d0, d1, srow, t0=3, t1=30, t2=31):
    a(f"v_and_b32 v{t0}, 15, v1")
    a(f"v_lshrrev_b32 v{t1}, 4, v1")
    a(f"v_lshrrev_b32 v{t2}, 1, v{t0}")
    a(f"v_xor_b32 v{t1}, v{t1}, v{t2}")
    a(f"v_lshlrev_b32 v{t0}, 7, v{t0}")
    a(f"v_add_u32 v{t0}, {srow}, v{t0}")
    a(f"v_lshl_add_u32 v{d0}, v{t1}, 4, v{t0}")
    a(f"v_xor_b32 v{t1}, 4, v{t1}")
    a(f"v_lshl_add_u32 v{d1}, v{t1}, 4, v{t0}")

def zw_addr(a, de, do, t0=3, t1=30, t2=31):
    a(f"v_lshrrev_b32 v{t0}, 4, v1")
    a(f"v_bfe_u32 v{t1}, v1, 2, 2")
    a(f"v_lshl_add_u32 v{t1}, v{t0}, 3, v{t1}")
    a(f"v_mul_u32_u24 v{t1}, 192, v{t1}")
    a(f"v_and_b32 v{t2}, 3, v1")
    a(f"v_lshl_add_u32 v{t1}, v{t2}, 3, v{t1}")
    a(f"v_and_b32 v{t0}, 1, v{t0}")
    a(f"v_lshlrev_b32 v{t0}, 5, v{t0}")
    a(f"v_add_u32 v{de}, v{t1}, v{t0}")
    a(f"v_sub_u32 v{do}, v{t1}, v{t0}")

def qw_addr(a, d, t0=3, t1=30, t2=31):
    a(f"v_lshrrev_b32 v{t0}, 4, v1")
    a(f"v_mul_u32_u24 v{t1}, 3072, v{t0}")
    a(f"v_bfe_u32 v{t2}, v1, 2, 2")
    a(f"v_lshl_add_u32 v{t1}, v{t2}, 7, v{t1}")
    a(f"v_and_b32 v{d}, 3, v1")
    a(f"v_lshl_add_u32 v{t1}, v{d}, 3, v{t1}")
    a(f"v_lshrrev_b32 v{t2}, 1, v{t2}")
    a(f"v_and_b32 v{t0}, 1, v{t0}")
    a(f"v_lshl_or_b32 v{t2}, v{t0}, 1, v{t2}")
    a(f"v_lshl_add_u32 v{d}, v{t2}, 5, v{t1}")

ZSLOT = [56*1024, 84*1024, 112*1024, 0, 28*1024]
W1SL = [0, 12288, 28672, 40960, 57344, 69632, 86016, 98304]
QSLOT = [86016, 43008, 0]

def gelu_core(a, xs, ts, A3, A1, RI):
    for k, (x, t) in enumerate(zip(xs, ts)): a(f"v_pk_mul_f32 {V(t,2)}, {V(x,2)}, {V(x,2)}")
    for k, (x, t) in enumerate(zip(xs, ts)): a(f"v_pk_fma_f32 {V(t,2)}, {V(t,2)}, {A3[k][0]}, {A1[k][0]} {A3[k][1]}")
    for k, (x, t) in enumerate(zip(xs, ts)): a(f"v_pk_mul_f32 {V(t,2)}, {V(t,2)}, {V(x,2)}")
    for k, (x, t) in enumerate(zip(xs, ts)):
        a(f"v_exp_f32 v{t}, v{t}"); a(f"v_exp_f32 v{t+1}, v{t+1}")
    for k, (x, t) in enumerate(zip(xs, ts)): a(f"v_pk_fma_f32 {V(t,2)}, {V(t,2)}, {RI[k][0]}, {RI[k][0]} {RI[k][1]}")
    for k, (x, t) in enumerate(zip(xs, ts)):
        a(f"v_rcp_f32 v{t}, v{t}"); a(f"v_rcp_f32 v{t+1}, v{t+1}")
    for k, (x, t) in enumerate(zip(xs, ts)): a(f"v_pk_mul_f32 {V(x,2)}, {V(x,2)}, {V(t,2)}")

def zcount(a, dG, dN):
    a(f"s_mul_i32 s{dG}, s{sGRP}, 6")
    a(f"s_min_u32 s{dG}, s{dG}, 40")
    a(f"s_sub_u32 s{dN}, 40, s{dG}")
    a(f"s_min_u32 s{dN}, s{dN}, 6")
    a(f"s_cmp_eq_u32 s{sGRP}, 7")
    a(f"s_cselect_b32 s{dN}, 3, s{dN}")

def az_compute(a, fused):
    ACC, XR = 32, 128
    ONES, SUM, GRM, CWA = 28, 80, 88, 96
    ring = list(range(80, 96, 4)) + list(range(104, 128, 4))
    a(f"s_lshl_b32 s61, s{sQ}, 12")
    rowfrag_addr(a, 10, 11, "s61")
    zw_addr(a, 12, 13)
    a(f"s_bitcmp1_b32 s{sQ}, 0")
    a("s_cselect_b64 vcc, -1, 0")
    a("v_cndmask_b32 v18, v12, v13, vcc")
    a(f"s_lshl_b32 s61, s{sQ}, 5")
    a(f"s_and_b32 s62, s{sQ}, 1")
    a("s_lshl_b32 s62, s62, 5")
    a("s_add_u32 s62, s62, 128")
    a("v_add_u32 v19, s62, v18")
    a("v_add_u32 v18, s61, v18")
    for r in range(4): a(f"v_mov_b32 v{ONES+r}, 0x3f803f80")
    zcount(a, 55, 58)
    a(f"s_lshl_b32 s61, s{sQ}, 7")
    a(f"s_add_u32 s61, s61, {L_TAB}")
    a("v_and_b32 v3, 0x30, v1")
    a("v_add_u32 v4, s61, v3")
    a(f"v_add_u32 v7, {L_CW + 384}, v3")
    a("v_and_b32 v3, 15, v1")
    a("v_lshl_add_u32 v5, v3, 2, s61")
    a("v_lshlrev_b32 v3, 2, v3")
    a(f"v_add_u32 v6, {L_CW}, v3")
    a("v_lshlrev_b32 v8, 4, v1")
    a("v_lshlrev_b32 v9, 3, v1")
    a(f"s_lshl_b32 s61, s{sQ}, 6")
    a(f"s_and_b32 s62, s{sQ}, 1")
    a("s_lshl_b32 s62, s62, 6")
    a("s_add_u32 s62, s62, 256")
    a("v_add_u32 v22, s61, v6")
    a("v_add_u32 v23, s62, v6")
    a("v_add_u32 v24, s61, v7")
    a("v_add_u32 v25, s62, v7")
    a(f"s_lshl_b32 s57, s{sRB}, 2")
    a(f"s_add_u32 s57, s57, s{sQ}")
    a(f"s_lshl_b32 s53, s{sGRP}, 6")
    a("s_add_u32 s53, s53, s57")
    a("s_mul_i32 s53, s53, 6144")
    a(f"s_add_u32 s53, s53, {WS_Z2N}")
    a("s_mul_i32 s54, s57, 48")
    a("s_add_u32 s54, s54, s55")
    a("s_lshl_b32 s54, s54, 10")
    a(f"s_add_u32 s54, s54, {WS_Z1}")
    a(f"s_lshl_b32 s56, s{sRB}, 3")
    a(f"s_add_u32 s56, s56, s{sGRP}")
    a("s_lshl_b32 s56, s56, 2")
    a(f"s_add_u32 s56, s56, s{sQ}")
    a("s_lshl_b32 s56, s56, 9")
    a(f"s_add_u32 s56, s56, {WS_ST2}")
    def xreg(s, kk, T): return XR + ((s*2 + kk)*2 + T)*4
    def wfrag(step, kk, j):
        return dict(step=step, reg=None, reads=[(lambda r, hh=hh: f"ds_read_b64_tr_b16 {V(r+2*hh,2)}, v{16+(j&1)} offset:{j*32 + kk*6144 + hh*768}") for hh in range(2)])
    def cfrag(step, kk, t):
        return dict(step=step, reg=None, reads=[(lambda r, hh=hh: f"ds_read_b64_tr_b16 {V(r+2*hh,2)}, v{20+t} offset:{kk*6144 + hh*768}") for hh in range(2)])
    fr = {}; mf = []
    for s in range(8):
        for kk in range(2):
            for T in range(2):
                fr[('x', s, kk, T)] = dict(step=s, reg=xreg(s, kk, T), reads=[lambda r, kk=kk, T=T: f"ds_read_b128 {V(r)}, v{14+kk} offset:{T*2048}"])
            for j in range(6):
                fr[('w', s, kk, j)] = wfrag(s, kk, j)
                for T in range(2): mf.append((ACC + (j*2+T)*4, ('x', s, kk, T), ('w', s, kk, j)))
                if j in (2, 5):
                    t = j // 3
                    fr[('c', s, kk, t)] = cfrag(s, kk, t)
                    mf.append((CWA+4*t, 'ones', ('c', s, kk, t)))
    fr['ones'] = dict(step=0, reg=ONES, reads=None)
    def pre1(s):
        for r in range(2): a(f"v_add_u32 v{14+r}, {ZSLOT[s % 5]}, v{10+r}")
        for r in range(2): a(f"v_add_u32 v{16+r}, {ZSLOT[s % 5] + 16384}, v{12+r}")
        for r in range(2): a(f"v_add_u32 v{20+r}, {ZSLOT[s % 5] + 16384}, v{18+r}")
    l2_setup(a, 26, True)
    ln1_publish(a)
    for r in range(2, 4): a(f"v_mov_b32 v{ONES+r}, 0x3f803f80")
    a.stamp()
    gemm_stream(a, mf, fr, ring, opt('LA', 10), opt('cover', 3), pre1, stamps=(0, 1, 4), hooks=l2_hooks(a, 26, True))
    a.stamp()
    a("s_nop 6")
    a(f"ds_write_b32 v22, v{CWA}")
    a(f"ds_write_b32 v23, v{CWA+4}")
    a("s_waitcnt lgkmcnt(0)")
    a("s_barrier")
    for T in range(2):
        for k in range(4): a(f"ds_read_b128 {V(80+16*T+4*k)}, v4 offset:{64*T + TP*k}")
    CWR = [10, 11, 14, 15, 16, 17]
    for j in range(6): a(f"ds_read_b32 v{CWR[j]}, v6 offset:{64*j}")
    a(f"s_mul_i32 s61, s{sQ}, 6144")
    a(f"s_add_u32 s61, s61, {L_PARK}")
    a("v_add_u32 v30, s61, v8")
    a("s_waitcnt lgkmcnt(0)")
    if opt('e1st', 0): a.stamp()
    for j in range(6):
        skip = a.label("Lz2skip")
        a(f"s_cmp_gt_u32 s58, {j}")
        a(f"s_cbranch_scc0 {skip}")
        xs = [ACC + (j*2+T)*4 + 2*p for T in range(2) for p in range(2)]
        tb = [80 + 16*T + 2*p for T in range(2) for p in range(2)]
        sel = f"op_sel:[0,{j&1},0] op_sel_hi:[1,{j&1},1]"
        for x, t in zip(xs, tb): a(f"v_pk_fma_f32 {V(x,2)}, {V(t,2)}, {V(CWR[j&~1],2)}, {V(x,2)} {sel} neg_lo:[1,0,0] neg_hi:[1,0,0]")
        gelu_core(a, xs, [20, 22, 26, 28], [(V(t+4,2), "") for t in tb], [(V(t+8,2), "") for t in tb], [(V(t+12,2), "") for t in tb])
        if j == 0:
            for k, x in enumerate(xs): a(f"v_pk_add_f32 {V(112+2*k,2)}, {V(x,2)}, 0 op_sel_hi:[1,0]")
            for k, x in enumerate(xs): a(f"v_pk_mul_f32 {V(120+2*k,2)}, {V(x,2)}, {V(x,2)}")
        else:
            for k, x in enumerate(xs): a(f"v_pk_add_f32 {V(112+2*k,2)}, {V(112+2*k,2)}, {V(x,2)}")
            for k, x in enumerate(xs): a(f"v_pk_fma_f32 {V(120+2*k,2)}, {V(x,2)}, {V(x,2)}, {V(120+2*k,2)}")
        e, o = ACC + j*8, ACC + j*8 + 4
        for i in range(4): a(f"v_cvt_pk_bf16_f32 v{e+i}, v{e+i}, v{o+i}")
        a(f"ds_write_b128 v30, {V(e)} offset:{j*1024}")
        a(f"{skip}:")
    if opt('e1st', 0): a.stamp()
    def val(i, T, st): return 112 + 8*st + 4*T + i
    for st in range(2):
        for T in range(2):
            for i in range(2):
                A, B = val(i, T, st), val(i+2, T, st)
                a(f"v_add_f32_dpp v{A}, v{A}, v{A} row_ror:8 row_mask:0xf bank_mask:0x3")
                a(f"v_add_f32_dpp v{A}, v{B}, v{B} row_ror:8 row_mask:0xf bank_mask:0xc")
    a("s_mov_b32 s60, 0x22222222\ns_mov_b32 s61, 0x22222222")
    for st in range(2):
        for T in range(2):
            A, B = val(0, T, st), val(1, T, st)
            a(f"v_add_f32_dpp v{A}, v{A}, v{A} row_half_mirror row_mask:0xf bank_mask:0x5")
            a(f"v_add_f32_dpp v{A}, v{B}, v{B} row_half_mirror row_mask:0xf bank_mask:0xa")
    a("s_mov_b32 s62, 0x44444444\ns_mov_b32 s63, 0x44444444")
    for qp in ("[1,0,3,2]", "[2,3,0,1]"):
        for st in range(2):
            for T in range(2):
                A = val(0, T, st)
                a(f"v_add_f32_dpp v{A}, v{A}, v{A} quad_perm:{qp} row_mask:0xf bank_mask:0xf")
    a(f"v_cndmask_b32 v112, v{val(0,0,0)}, v{val(0,0,1)}, s[60:61]")
    a("s_mov_b32 s60, 0x88888888\ns_mov_b32 s61, 0x88888888")
    a(f"v_cndmask_b32 v112, v112, v{val(0,1,0)}, s[62:63]")
    a(f"v_cndmask_b32 v112, v112, v{val(0,1,1)}, s[60:61]")
    a(f"v_mov_b32 v113, s{sT}")
    a.vmem(f"buffer_store_dwordx2 {V(112,2)}, v9, {S4(WS_)}, s56 offen sc1", "st")
    a.stamp()
    fr = {}; mf = []
    for u in range(8):
        for kk in range(2):
            for T in range(2): fr[('x', u, kk, T)] = dict(step=u, reg=xreg(u, kk, T), reads=None)
            for j in range(6):
                fr[('w', u, kk, j)] = wfrag(u, kk, j)
                for T in range(2): mf.append((ACC + (j*2+T)*4, ('w', u, kk, j), ('x', u, kk, T)))
                if j in (2, 5):
                    t = j // 3
                    fr[('c', u, kk, t)] = cfrag(u, kk, t)
                    mf.append((120+4*t, ('c', u, kk, t), 'ones'))
    fr['ones'] = dict(step=0, reg=ONES, reads=None)
    for r in range(4): a(f"v_mov_b32 v{ONES+r}, 0x3f803f80")
    a("s_waitcnt lgkmcnt(0)")
    def pre2(u):
        for r in range(2): a(f"v_add_u32 v{16+r}, {W1SL[u]}, v{12+r}")
        for r in range(2): a(f"v_add_u32 v{20+r}, {W1SL[u]}, v{18+r}")
    ring2 = list(range(80, 112, 4))
    gemm_stream(a, mf, fr, ring2, opt('LA', 10), opt('cover', 3), pre2, nobar=1)
    a.stamp()
    for T in range(2):
        for k in range(4): a(f"ds_read_b32 v{104+4*k+2*T}, v5 offset:{64*T + TP*k}")
    a("s_mov_b32 exec_lo, 0x00010001\ns_mov_b32 exec_hi, 0x00010001")
    a(f"ds_write_b128 v24, {V(120)}")
    a(f"ds_write_b128 v25, {V(124)}")
    a("s_mov_b64 exec, -1")
    a("s_waitcnt lgkmcnt(0)")
    a.vmall()
    a("s_barrier")
    for j in range(6): a(f"ds_read_b128 {V(80+4*j)}, v7 offset:{64*j}")
    a("s_waitcnt lgkmcnt(0)")
    for j in range(6):
        skip = a.label("Lz1skip")
        a(f"s_cmp_gt_u32 s58, {j}")
        a(f"s_cselect_b32 s61, s54, {OOB}")
        a(f"s_cbranch_scc0 {skip}")
        xs = [ACC + (j*2+T)*4 + 2*p for T in range(2) for p in range(2)]
        for k, x in enumerate(xs): a(f"v_pk_fma_f32 {V(x,2)}, {V(80+4*j+2*(k%2),2)}, {V(104+2*(k//2),2)}, {V(x,2)} op_sel_hi:[1,0,1] neg_lo:[1,0,0] neg_hi:[1,0,0]")
        b = "op_sel_hi:[1,0,0]"
        gelu_core(a, xs, [20, 22, 26, 28], [(V(108+2*(k//2),2), b) for k in range(4)], [(V(112+2*(k//2),2), b) for k in range(4)], [(V(116+2*(k//2),2), b) for k in range(4)])
        e = ACC + j*8
        for k, x in enumerate(xs): a(f"v_cvt_pk_bf16_f32 v{e+k}, v{x}, v{x+1}")
        a("s_nop 1")
        for p in range(2): a(f"v_permlane32_swap_b32 v{e+p}, v{e+2+p}")
        a(f"{skip}:")
        if j >= 4: a("s_add_u32 s61, s61, 4096")
        a.vmem(f"buffer_store_dwordx4 {V(e)}, v8, {S4(WS_)}, s61 offen offset:{(j%4)*1024} sc1", "z1")
    a.stamp()

def red_g(a, regs, op="v_add_f32", tmp=60):
    n = len(regs)
    for sw in ("v_permlane32_swap_b32", "v_permlane16_swap_b32"):
        for k, r in enumerate(regs): a(f"v_mov_b32 v{tmp+k}, v{r}")
        if n < 3: a("s_nop 1")
        for k, r in enumerate(regs): a(f"{sw} v{r}, v{tmp+k}")
        for k, r in enumerate(regs): a(f"{op} v{r}, v{r}, v{tmp+k}")

def wsp_setup_h(a):
    rowtile_voffs(a, 8, 9, 12)
    a(f"s_lshl_b32 s59, s{sRB}, 2")
    a(f"s_add_u32 s59, s59, s{sQ}")
    a("s_lshl_b32 s59, s59, 17")
    a(f"s_lshl_b32 s61, s{sKS}, 11")
    a("s_add_u32 s59, s59, s61")

def wsp_group_h(a, v):
    a(f"s_add_u32 s61, s{sK0B}, {v}")
    a("s_and_b32 s61, s61, 15")
    a("s_lshl_b32 s61, s61, 7")
    a("s_add_u32 s61, s61, s59")
    a(f"s_add_u32 m0, s60, {(v % NWS) * 16384}")
    a("s_add_u32 s62, s61, 4096")
    a.vmem(f"buffer_load_dwordx4 v8, {S4(WSP_)}, s61 offen {NT('s')}lds", ("S", v))
    a.vmem(f"buffer_load_dwordx4 v9, {S4(WSP_)}, s61 offen offset:1024 {NT('s')}lds", ("S", v))
    a(f"s_add_u32 m0, s60, {(v % NWS) * 16384 + 2048}")
    a("s_nop 0")
    a.vmem(f"buffer_load_dwordx4 v8, {S4(WSP_)}, s62 offen {NT('s')}lds", ("S", v))
    a.vmem(f"buffer_load_dwordx4 v9, {S4(WSP_)}, s62 offen offset:1024 {NT('s')}lds", ("S", v))

def l2_setup(a, d, ztype):
    a("v_lshrrev_b32 v31, 4, v1")
    a("v_lshlrev_b32 v31, 12, v31")
    a("v_and_b32 v30, 15, v1")
    a(f"v_lshl_add_u32 v{d}, v30, 7, v31")
    a(f"v_lshlrev_b32 v{d+1}, 7, v1")
    a(f"s_lshl_b32 s68, s{sRB}, 3")
    a(f"s_add_u32 s68, s68, s{sCG}")
    a("s_lshl_b32 s68, s68, 2")
    a(f"s_add_u32 s68, s68, s{sQ}")
    a("s_lshl_b32 s68, s68, 14")
    a(f"s_lshl_b32 s61, s{sKS}, 11")
    a("s_add_u32 s68, s68, s61")
    a("s_lshr_b32 s61, s2, 3")
    a("s_lshl_b32 s61, s61, 2")
    a(f"s_add_u32 s61, s61, s{sQ}")
    a("s_lshl_b32 s69, s61, 12")
    a(f"s_mul_i32 s70, s61, {43*128}")
    a(f"s_mov_b32 m0, {L_MISC}")
    if ztype and opt('l2w1', 0):
        srd(a, WA_, 72, D*F2*2)
        a("v_lshrrev_b32 v31, 1, v1")
        a("v_mul_u32_u24 v31, 2752, v31")
        a("v_and_b32 v30, 1, v1")
        a("v_mul_u32_u24 v30, 188, v30")
        a("v_add_u32 v3, v30, v31")
        a(f"s_and_b32 s71, s{sRB}, 3")
        a("s_lshl_b32 s71, s71, 2")
        a(f"s_add_u32 s71, s71, s{sQ}")
        a(f"s_mul_i32 s71, s71, {32*2752}")
        a("s_lshl_b32 s61, s55, 5")
        a("s_add_u32 s71, s71, s61")
        if opt('l2w1', 0) == 1:
            a.vmem(f"buffer_load_dword v3, {S4(WA_)}, s71 offen lds", "pf")
def l2_hooks(a, d, ztype):
    hk = {}
    def add(st, f):
        hk.setdefault(st, []).append(f)
    def lanes(k, n, tot):
        lo, hi = k*tot//n, (k+1)*tot//n
        m = ((1 << hi) - 1) ^ ((1 << lo) - 1)
        a(f"s_mov_b32 exec_lo, {m & 0xffffffff:#x}\ns_mov_b32 exec_hi, {m >> 32:#x}")
    if ztype and opt('l2w1', 0) == 2:
        add(0, lambda: a.vmem(f"buffer_load_dword v3, {S4(WA_)}, s71 offen lds", "pf"))
    if opt('l2pf', 0):
        nt = 'nt' if opt('l2nt', 0) else ''
        s0 = opt('l2s0', 1); n = opt('l2n', 2)
        for k in range(n):
            def h(k=k):
                lanes(k, n, 64)
                a.vmem(f"buffer_load_dword v{d}, {S4(WSP_)}, s68 offen {nt} lds", "pf")
                a("s_mov_b64 exec, -1")
            add(s0 + k, h)
    if opt('l2cw', -1) >= 0:
        def h2():
            a("s_mov_b32 exec_hi, 0")
            a.vmem(f"buffer_load_dword v{d+1}, {S4(WO_)}, s69 offen lds", "pf")
            a("s_mov_b32 exec_hi, 0x7ff")
            a.vmem(f"buffer_load_dword v{d+1}, {S4(WOUT_)}, s70 offen lds", "pf")
            a("s_mov_b32 exec_hi, -1")
        add(opt('l2cw', 0), h2)
    return {st: (lambda fs=fs: a.run(fs)) for st, fs in hk.items()}

def q_prefetch(a, k):
    if not opt('qpf', 1): return
    if k < 2:
        a("v_lshrrev_b32 v31, 4, v1")
        a("v_lshlrev_b32 v31, 12, v31")
        a("v_and_b32 v30, 15, v1")
        a("v_lshl_add_u32 v30, v30, 7, v31")
        a(f"s_lshl_b32 s61, s{sRB}, 2")
        a(f"s_add_u32 s61, s61, s{sCG}")
        a("s_lshl_b32 s61, s61, 2")
        a(f"s_add_u32 s61, s61, s{sQ}")
        a("s_lshl_b32 s61, s61, 15")
        a(f"s_lshl_b32 s62, s{sKS}, 11")
        a("s_add_u32 s61, s61, s62")
        a(f"s_mov_b32 m0, {L_MISC}")
        a(f"s_add_u32 s61, s61, {16384*k}")
        for o in range(0, 128, opt('sec', 128)):
            a.vmem(f"buffer_load_dword v30, {S4(WSP_)}, s61 offen offset:{o} {NT('p')}lds", "pf")
        return
    a("s_lshr_b32 s61, s2, 3")
    a("s_lshl_b32 s61, s61, 2")
    a(f"s_add_u32 s61, s61, s{sQ}")
    a("v_lshlrev_b32 v31, 7, v1")
    a(f"s_mov_b32 m0, {L_MISC}")
    if k == 2:
        a("s_lshl_b32 s62, s61, 13")
        for o in range(0, 128, opt('sec', 128)): a.vmem(f"buffer_load_dword v31, {S4(WO_)}, s62 offen offset:{o} lds", "pf")
    else:
        a(f"s_mul_i32 s63, s61, {86*128}")
        a(f"s_add_u32 s63, s63, {43*128*(k-3)}")
        a("s_mov_b32 exec_hi, 0x7ff")
        for o in range(0, 128, opt('sec', 128)): a.vmem(f"buffer_load_dword v31, {S4(WOUT_)}, s63 offen offset:{o} lds", "pf")
        a("s_mov_b32 exec_hi, -1")

def q_spread_setup(a):
    a("v_lshrrev_b32 v31, 4, v1")
    a("v_lshlrev_b32 v31, 12, v31")
    a("v_and_b32 v30, 15, v1")
    a("v_lshl_add_u32 v12, v30, 7, v31")
    a(f"s_lshl_b32 s64, s{sRB}, 2")
    a(f"s_add_u32 s64, s64, s{sCG}")
    a("s_lshl_b32 s64, s64, 2")
    a(f"s_add_u32 s64, s64, s{sQ}")
    a("s_lshl_b32 s64, s64, 15")
    a(f"s_lshl_b32 s62, s{sKS}, 11")
    a("s_add_u32 s64, s64, s62")
    a("s_add_u32 s67, s64, 16384")
    a("s_lshr_b32 s61, s2, 3")
    a("s_lshl_b32 s61, s61, 2")
    a(f"s_add_u32 s61, s61, s{sQ}")
    a("v_lshlrev_b32 v13, 7, v1")
    a("s_lshl_b32 s65, s61, 13")
    a(f"s_mul_i32 s66, s61, {86*128}")
    a("s_add_u32 s68, s66, 8192")
    a("v_lshlrev_b32 v14, 10, v1")
    a("s_and_b32 s61, s61, 15")
    a("s_lshl_b32 s71, s61, 15")
    a(f"s_add_u32 s61, s{sCG}, 4")
    a("s_lshl_b32 s61, s61, 7")
    a("s_add_u32 s71, s71, s61")
    a("s_lshl_b32 s61, s2, 2")
    a(f"s_add_u32 s61, s61, s{sQ}")
    a("s_lshl_b32 s73, s61, 10")
    a(f"s_mul_i32 s74, s61, {11*128}")
def q_spread(a, k, n, which, frac=None):
    items = {'s': [(WSP_, 12, 64, 64), (WSP_, 12, 67, 64)], 'c': [(WO_, 13, 65, 64), (WOUT_, 13, 66, 64), (WOUT_, 13, 68, 22)],
             'o': [(WO_, 14, 71, 32)], 'u': [(WOUT_, 13, 66, 64), (WOUT_, 13, 68, 22)],
             'm': [(WO_, 13, 73, 8), (WOUT_, 13, 74, 11)]}[which]
    tot = sum(x[3] for x in items)
    lo, hi = k*tot//n, (k+1)*tot//n
    if frac: lo, hi = frac
    a(f"s_mov_b32 m0, {L_MISC}")
    base = 0
    for R, v, so, cnt in items:
        l, h = max(lo - base, 0), min(hi - base, cnt)
        if h > l:
            m = ((1 << h) - 1) ^ ((1 << l) - 1)
            a(f"s_mov_b32 exec_lo, {m & 0xffffffff:#x}\ns_mov_b32 exec_hi, {m >> 32:#x}")
            a.vmem(f"buffer_load_dword v{v}, {S4(R)}, s{so} offen {'nt ' if opt('ntp' + which, 1 if which == 's' else 0) else ''}lds", "pf")
        base += cnt
    a("s_mov_b64 exec, -1")

def z_slice_touch(a):
    a("s_lshr_b32 s61, s2, 3")
    a("s_and_b32 s61, s61, 3")
    a("s_lshl_b32 s61, s61, 2")
    a(f"s_add_u32 s61, s61, s{sQ}")
    a(f"s_add_u32 s63, s{sCG}, 4")
    a("s_lshl_b32 s63, s63, 7")
    a("s_lshl_b32 s62, s61, 15")
    a("s_add_u32 s62, s62, s63")
    a(f"s_mul_i32 s61, s61, {43*1024}")
    a("s_add_u32 s63, s63, s61")
    a("v_lshlrev_b32 v31, 10, v1")
    a(f"s_mov_b32 m0, {L_MISC}")
    a("s_mov_b32 exec_hi, 0")
    a.vmem(f"buffer_load_dword v31, {S4(WO_)}, s62 offen lds", "pf")
    a("s_mov_b32 exec_hi, 0x7ff")
    a.vmem(f"buffer_load_dword v31, {S4(WOUT_)}, s63 offen lds", "pf")
    a("s_mov_b32 exec_hi, -1")

def x_group_h(a, step, sl, tag):
    a(f"s_add_u32 s61, s{sK0A}, {step}")
    a("s_and_b32 s61, s61, 7")
    a("s_lshl_b32 s58, s61, 7")
    a("s_add_u32 s62, s58, s53")
    a(f"s_add_u32 m0, s60, {sl}")
    a("s_add_u32 s63, s62, 1024")
    a.vmem(f"buffer_load_dwordx4 v4, {S4(X_)}, s62 offen {NT('x')}lds", tag)
    a.vmem(f"buffer_load_dwordx4 v5, {S4(X_)}, s62 offen offset:1024 {NT('x')}lds", tag)
    a(f"s_add_u32 m0, s60, {sl + 2048}")
    a("s_nop 0")
    a.vmem(f"buffer_load_dwordx4 v4, {S4(X_)}, s63 offen {NT('x')}lds", tag)
    a.vmem(f"buffer_load_dwordx4 v5, {S4(X_)}, s63 offen offset:1024 {NT('x')}lds", tag)

def dots_x(a, fr, acc_s, acc_q, ones):
    for i in range(4):
        a(f"v_dot2_f32_bf16 v{acc_s}, v{fr+i}, v{ones}, v{acc_s}")
        a(f"v_dot2_f32_bf16 v{acc_q}, v{fr+i}, v{fr+i}, v{acc_q}")

def diag_sel(a, dst, gram):
    a("s_mov_b32 s62, 0x22222222\ns_mov_b32 s63, 0x22222222")
    a(f"v_cndmask_b32 v{dst}, v{gram}, v{gram+1}, s[62:63]")
    a("s_mov_b32 s62, 0x44444444\ns_mov_b32 s63, 0x44444444")
    a(f"v_cndmask_b32 v{dst}, v{dst}, v{gram+2}, s[62:63]")
    a("s_mov_b32 s62, 0x88888888\ns_mov_b32 s63, 0x88888888")
    a(f"v_cndmask_b32 v{dst}, v{dst}, v{gram+3}, s[62:63]")
DIAG_LO, DIAG_HI = 0x00f0000f, 0xf0000f00

def row_finalize(a, s_, q_, t):
    a(f"v_mul_f32 v{s_}, {f2u(1.0/512):#x}, v{s_}")
    a(f"v_mul_f32 v{q_}, {f2u(1.0/512):#x}, v{q_}")
    a(f"v_fma_f32 v{q_}, -v{s_}, v{s_}, v{q_}")
    a(f"v_max_f32 v{q_}, 0, v{q_}")
    a(f"v_add_f32 v{q_}, {f2u(1e-5):#x}, v{q_}")

def nonce_publish(a):
    l = a.label("Lnn")
    a(f"s_or_b32 s61, s2, s{sW}")
    a("s_cmp_lg_u32 s61, 0")
    a(f"s_cbranch_scc1 {l}")
    a("s_or_b32 s62, s84, 1")
    a("v_mov_b32 v30, s62")
    a("v_lshlrev_b32 v31, 6, v1")
    a("s_mov_b64 exec, 15")
    a(f"buffer_store_dword v30, v31, {S4(DBG_)}, 0 offen sc1")
    a("s_mov_b64 exec, -1")
    a(f"{l}:")

def nonce_check(a):
    a.vmwait("poll")
    def chk():
        a(f"v_readfirstlane_b32 s{sT}, v25")
        a(f"s_cmp_lg_u32 s{sT}, 0")
    def iss():
        a("v_mov_b32 v31, 0")
        a(f"buffer_load_dword v25, v31, {S4(DBG_)}, 0 offen sc1")
    spin(a, iss, chk)

def wave_flag(a):
    a(f"s_lshl_b32 s61, s{sGRP}, 4")
    a(f"s_add_u32 s61, s61, s{sRB}")
    a("s_lshl_b32 s61, s61, 2")
    a(f"s_add_u32 s61, s61, s{sQ}")
    a("s_lshl_b32 s61, s61, 7")
    a(f"s_add_u32 s61, s61, {F1_OFF}")
    a(f"v_mov_b32 v30, s{sT}")
    a("v_mov_b32 v31, 0")
    a("s_mov_b64 exec, 1")
    a.vmem(f"buffer_store_dword v30, v31, {S4(WS_)}, s61 offen sc1", "flag")
    a("s_mov_b64 exec, -1")

def spin(a, issue, check_ok, limit=0x8000):
    lp = a.label("Lspin"); ok = a.label("Lok")
    check_ok()
    a(f"s_cbranch_scc1 {ok}")
    a("s_mov_b32 s63, 0")
    a(f"{lp}:")
    issue()
    a("s_waitcnt vmcnt(0)")
    a("s_add_u32 s63, s63, 1")
    a(f"s_cmp_gt_u32 s63, {limit}")
    a(f"s_cbranch_scc1 {ok}")
    check_ok()
    a(f"s_cbranch_scc0 {lp}")
    a(f"{ok}:")

def az_helper(a, fused):
    rowtile_voffs(a, 4, 5, 10)
    for i in range(3):
        a(f"v_add_u32 v3, {64*i}, v1")
        a("v_mul_u32_u24 v30, 683, v3")
        a("v_lshrrev_b32 v30, 13, v30")
        a("v_mul_u32_u24 v31, 12, v30")
        a("v_sub_u32 v31, v3, v31")
        a("v_lshrrev_b32 v3, 2, v30")
        a("v_and_b32 v3, 2, v3")
        a("v_xor_b32 v31, v3, v31")
        a("v_mul_u32_u24 v30, 2752, v30")
        a(f"v_lshl_add_u32 v{20+i}, v31, 4, v30")
        if i: a(f"v_subrev_u32 v{20+i}, {1024*i}, v{20+i}")
    a(f"s_lshl_b32 s53, s{sRB}, 2")
    a(f"s_add_u32 s53, s53, s{sQ}")
    a("s_lshl_b32 s53, s53, 15")
    a(f"s_mul_i32 s55, s{sGRP}, 6")
    a("s_min_u32 s55, s55, 40")
    a(f"s_mul_i32 s54, s{sQ}, {16*2752}")
    a("s_lshl_b32 s61, s55, 5")
    a("s_add_u32 s54, s54, s61")
    a(f"s_mul_i32 s56, s{sQ}, 3072")
    a(f"s_lshl_b32 s60, s{sQ}, 12")
    def wgroup(kreg_ready, step, dst, add, tag):
        if not kreg_ready:
            a(f"s_add_u32 s61, s{sK0A}, {step}")
            a("s_and_b32 s61, s61, 7")
        a(f"s_mul_i32 s63, s61, {64*2752}")
        a("s_add_u32 s63, s63, s54")
        a(f"s_add_u32 m0, s56, {dst}")
        if add: a(f"s_add_u32 s63, s63, {add}")
        else: a("s_nop 0")
        for i in range(3):
            a.vmem(f"buffer_load_dwordx4 v{20+i}, {S4(WA_)}, s63 offen offset:{1024*i} {NT('w')}lds", tag)
    def ga(step):
        x_group_h(a, step, ZSLOT[step % 5], ("A", step))
        wgroup(True, step, ZSLOT[step % 5] + 16384, 1376, ("A", step))
    npro = opt('proZ', 2)
    early_srds(a)
    srd(a, WA_, 72, D*F2*2)
    ga(0)
    for st in range(1, npro): ga(st)
    if opt('sst', 0): a.stamp()
    a.split("LF_hz1")
    if opt('sst', 0): a.stamp()
    late_srds(a)
    wsp_setup_h(a)
    a("v_lshlrev_b32 v10, 3, v1")
    a(f"s_lshl_b32 s64, s{sRB}, 5")
    a(f"s_add_u32 s64, s64, s{sQ}")
    a("s_lshl_b32 s64, s64, 9")
    a(f"s_add_u32 s64, s64, {WS_ST2}")
    a("s_add_u32 s65, s64, 4096\ns_add_u32 s66, s64, 8192\ns_add_u32 s67, s64, 12288")
    a("v_lshlrev_b32 v11, 4, v1")
    a(f"s_mul_i32 s61, s{sQ}, 6144")
    a(f"s_add_u32 s61, s61, {L_PARK}")
    a("v_add_u32 v11, s61, v11")
    a(f"s_lshl_b32 s61, s{sQ}, 8")
    a(f"s_add_u32 s61, s61, {L_XCH}")
    a("v_lshrrev_b32 v12, 1, v1")
    a("v_lshl_add_u32 v12, v12, 2, s61")
    a("v_lshrrev_b32 v13, 4, v1")
    a("v_lshl_add_u32 v13, v13, 5, s61")
    a("v_lshrrev_b32 v3, 5, v1")
    a("v_mul_u32_u24 v3, 3072, v3")
    a("v_bfe_u32 v30, v1, 4, 1")
    a("v_lshl_add_u32 v3, v30, 9, v3")
    a("v_and_b32 v30, 15, v1")
    a("v_lshl_add_u32 v14, v30, 4, v3")
    a(f"s_lshl_b32 s57, s{sGRP}, 4")
    a(f"s_add_u32 s57, s57, s{sRB}")
    a("s_lshl_b32 s57, s57, 2")
    a(f"s_add_u32 s57, s57, s{sQ}")
    a("s_mul_i32 s57, s57, 6144")
    a(f"s_add_u32 s57, s57, {WS_Z2N}")
    a("v_mov_b32 v16, 0xffff0000")
    a.stamp()
    for s in range(8):
        a.vmwait(("A", s))
        a("s_barrier")
        if s in (0, 1, 4): a.stamp()
        if s == 0:
            a(f"s_load_dword s{sT}, s[90:91], 128")
            for st in range(npro, 5): ga(st)
            get_nonce(a, -1)
        elif s <= 3: ga(s + 4)
        else:
            if s == opt('st1z', 4): ln1_fetch_issue(a, False)
            if s == 7: ln1_fetch_finish(a, False)
            if s < 7:
                for u in (2*(s-4), 2*(s-4)+1): wgroup(False, u, W1SL[u], 0, ("W1", u))
    a.stamp()
    a("s_barrier")
    for u in (6, 7): wgroup(False, u, W1SL[u], 0, ("W1", u))
    if opt('zcw', 1) == 1: cw_load(a, 0, 38)
    a.vmwait(("W1", 7))
    a("s_barrier")
    a(f"s_setprio {opt('nprio', 3)}")
    for j in range(6): a(f"ds_read_b128 {V(56+8*j+4)}, v11 offset:{1024*j}")
    def iss():
        for c in range(8):
            a(f"buffer_load_dwordx2 {V(32+2*c,2)}, v10, {S4(WS_)}, s{64 + (c>>1)} offen offset:{2048*(c&1)} sc1")
    def chk():
        for c in range(8): a(f"v_xor_b32 v{48+c}, s{sT}, v{33+2*c}")
        a("v_or3_b32 v48, v48, v49, v50\nv_or3_b32 v51, v51, v52, v53\nv_or3_b32 v48, v48, v54, v55")
        a("v_or_b32 v48, v48, v51")
        a("v_cmp_ne_u32 vcc, 0, v48")
        a("s_cmp_eq_u64 vcc, 0")
    a("s_waitcnt lgkmcnt(0)")
    for j in range(6):
        for w in range(4):
            u = 56 + 8*j
            if w < 3:
                a(f"v_lshlrev_b32 v{u+2*w}, 16, v{u+4+w}")
                a(f"v_and_b32 v{u+2*w+1}, v16, v{u+4+w}")
            else:
                a(f"v_lshlrev_b32 v{u+6}, 16, v{u+7}")
                a(f"v_and_b32 v{u+7}, v16, v{u+7}")
    zcount(a, 62, 58)
    if opt('stdelay', 8): a(f"s_sleep {opt('stdelay', 8)}")
    iss(); a("s_waitcnt vmcnt(0)")
    spin(a, iss, chk)
    a.stamp()
    for k in (2, 4, 6): a(f"v_add_f32 v{32+2*k}, v{32+2*k}, v{34+2*k}")
    a("v_add_f32 v32, v32, v34")
    a("v_add_f32 v36, v36, v40")
    a("v_add_f32 v32, v32, v44")
    a("v_add_f32 v32, v32, v36")
    a(f"v_mul_f32 v32, {f2u(1.0/688):#x}, v32")
    a("s_nop 1")
    a("v_mov_b32_dpp v33, v32 quad_perm:[1,0,3,2] row_mask:0xf bank_mask:0xf")
    a("v_fma_f32 v33, -v32, v32, v33")
    a("v_max_f32 v33, 0, v33")
    a(f"v_add_f32 v33, {f2u(1e-5):#x}, v33")
    a("v_rsq_f32 v33, v33")
    a("s_mov_b32 exec_lo, 0x55555555\ns_mov_b32 exec_hi, 0x55555555")
    a("v_mul_f32_e64 v32, -v32, v33")
    a("ds_write_b32 v12, v33")
    a("ds_write_b32 v12, v32 offset:128")
    a("s_mov_b64 exec, -1")
    a("s_waitcnt lgkmcnt(0)")
    for k in range(2): a(f"ds_read_b128 {V(32+4*k)}, v13 offset:{16*k}")
    for k in range(2): a(f"ds_read_b128 {V(40+4*k)}, v13 offset:{128 + 16*k}")
    for j in range(6):
        u = 56 + 8*j; z = u
        if j == 0: a("s_waitcnt lgkmcnt(0)")
        for w in range(8): a(f"v_fma_f32 v{u+w}, v{u+w}, v{32+w}, v{40+w}")
        for w in range(4): a(f"v_cvt_pk_bf16_f32 v{z+w}, v{u+2*w}, v{u+2*w+1}")
        a(f"s_cmp_gt_u32 s58, {j}")
        a(f"s_cselect_b32 s61, s57, {OOB}")
        a.vmem(f"buffer_store_dwordx4 {V(z)}, v14, {S4(WS_)}, s61 offen offset:{(j>>1)*1024 + (j&1)*256} sc1", "z2n")
    a("s_setprio 0")
    a.stamp()
    a.vmwait("z2n")
    wave_flag(a)
    a.stamp()
    a("s_barrier")
    for v in range(opt('wp', 3)): wsp_group_h(a, v)
    a("s_mov_b32 s72, 1")
    if opt('zcw', 1) == 0: cw_load(a, 0, 38)

def aq_compute(a, fused):
    AQ, AK, AV, HK, HV = 32, 64, 96, 128, 136
    ONES, SUM, GRM, XA = 28, 224, 232, 240
    CWQ = [240, 128, 132, 136, 140, 244]
    ring = list(range(144, 200, 4))
    MC, MPN, MPA, MB = 200, 204, 208, 216
    a(f"s_lshr_b32 s5, s{sQ}, 1")
    a(f"s_and_b32 s46, s{sQ}, 1")
    a("s_lshl_b32 s61, s5, 13")
    rowfrag_addr(a, 10, 11, "s61")
    rowfrag_addr(a, 12, 13, 16384)
    qw_addr(a, 14)
    a("v_add_u32 v14, 18432, v14")
    a("s_lshl_b32 s61, s46, 6")
    a("v_xor_b32 v14, s61, v14")
    a("v_xor_b32 v15, 32, v14")
    a("v_and_b32 v3, 15, v1")
    a("v_lshrrev_b32 v30, 4, v1")
    a("v_lshlrev_b32 v30, 2, v30")
    a("v_sub_u32 v31, v3, v30")
    a(f"v_mov_b32 v224, {NEG:#x}")
    a("v_mov_b32 v225, 0xffff")
    a("v_mov_b32 v226, 0xffff0000")
    for i in range(4):
        a(f"v_subrev_u32 v227, {i}, v31")
        a("v_cmp_gt_u32 vcc, 8, v227")
        a("v_cmp_gt_i32 s[62:63], -8, v227")
        a("s_nop 0")
        a(f"v_cndmask_b32_e64 v{MC+i}, v224, 0, vcc")
        a(f"v_cndmask_b32_e64 v{228+i}, 0, v{225 + (i&1)}, vcc")
        a(f"v_cndmask_b32_e64 v{MPN+i}, v224, 0, s[62:63]")
    a(f"v_or_b32 v{MB}, v228, v229")
    a(f"v_or_b32 v{MB+1}, v230, v231")
    a("s_lshl_b32 s61, s5, 8")
    a(f"s_add_u32 s61, s61, {L_TAB}")
    a("v_and_b32 v27, 0x30, v1")
    a("v_add_u32 v218, s61, v27")
    a("v_lshl_add_u32 v219, v3, 2, s61")
    a("s_lshl_b32 s61, s46, 7")
    a(f"s_add_u32 s61, s61, {L_CW}")
    a("v_add_u32 v220, s61, v27")
    a("v_lshl_add_u32 v221, v3, 2, s61")
    a("v_lshlrev_b32 v222, 4, v1")
    a("s_lshl_b32 s61, s46, 12")
    a(f"s_add_u32 s61, s61, {L_XCH}")
    a("v_add_u32 v223, s61, v222")
    a(f"s_lshl_b32 s53, s{sRB}, 1")
    a("s_add_u32 s53, s53, s5")
    a("s_lshl_b32 s53, s53, 4")
    a(f"s_add_u32 s53, s53, s{sGRP}")
    a("s_lshl_b32 s53, s53, 1")
    a("s_add_u32 s53, s53, s46")
    a("s_lshl_b32 s53, s53, 11")
    a(f"s_add_u32 s53, s53, {WS_O}")
    a("s_add_u32 s54, s53, 32768")
    a("v_lshrrev_b32 v27, 4, v1")
    a("v_lshlrev_b32 v27, 9, v27")
    a("v_lshl_add_u32 v4, v3, 4, v27")
    AT = 16
    def build(halo, hp):
        fr = {'ones': dict(step=0, reg=ONES, reads=None)}; mf = []
        for s in range(8):
            for kk in range(2):
                for tl in range(4):
                    fr[('x', s, kk, tl)] = dict(step=s, reg=None, reads=[lambda r, kk=kk, tl=tl: f"ds_read_b128 {V(r)}, v{AT+kk} offset:{tl*2048}"])
                fr[('h', s, kk)] = dict(step=s, reg=None, reads=[lambda r, kk=kk: f"ds_read_b128 {V(r)}, v{AT+2+kk}"])
                for m in range(3):
                    for e in range(2):
                        w = ('w', s, kk, m, e)
                        fr[w] = dict(step=s, reg=None, reads=[(lambda r, hh=hh, kk=kk, m=m, e=e: f"ds_read_b64_tr_b16 {V(r+2*hh,2)}, v{AT+4+e} offset:{kk*12288 + m*1024 + hh*512}") for hh in range(2)])
                        for tl in range(4):
                            d = (AQ, AK, AV)[m] + (e*4+tl)*4
                            mf.append((d, w, ('x', s, kk, tl)) if m < 2 else (d, ('x', s, kk, tl), w))
                        if halo and m == 1: mf.append((HK+4*e, w, ('h', s, kk)))
                        if halo and m == 2: mf.append((HV+4*e, ('h', s, kk), w))
                        if halo == (m*2+e == 0): mf.append((CWQ[m*2+e], 'ones', w))
        return mf, fr
    def stats_out(halo):
        a("s_nop 6")
        for k in ([0] if halo else range(1, 6)): a(f"ds_write_b32 v221, v{CWQ[k]} offset:{256*(k>>1) + 64*(k&1)}")
    def pre(s):
        for r in range(6): a(f"v_add_u32 v{AT+r}, {QSLOT[s % 3]}, v{10+r}")
    a("v_mov_b32 v26, v30")
    a('v_mov_b32 v27, v3'); l2_setup(a, 5, False)
    a("v_mov_b32 v27, v3")
    ln1_publish(a)
    a("v_mov_b32 v3, v27")
    a("v_mov_b32 v30, v26")
    lr1 = a.label("Lrh1"); lj = a.label("Lqj")
    a("s_cmp_lg_u32 s5, 0")
    a(f"s_cbranch_scc1 {lr1}")
    a("v_lshlrev_b32 v3, 1, v3")
    a("v_sub_u32 v31, v30, v3")
    a(f"s_cmp_eq_u32 s{sRB}, 0")
    a("s_cselect_b32 s61, 1000, 0")
    a("v_subrev_u32 v31, s61, v31")
    for T in range(2):
        for i in range(4):
            if (i ^ T) & 1:
                a(f"v_mov_b32 v{MPA+4*T+i}, v224")
            else:
                a(f"v_cmp_le_i32 vcc, {T + 2 - i}, v31")
                a("s_nop 1")
                a(f"v_cndmask_b32_e64 v{MPA+4*T+i}, v224, 0, vcc")
    n0 = a.nst
    for halo in (True, False):
        if not halo:
            a(f"{lr1}:")
            for i in range(8): a(f"v_mov_b32 v{MPA+i}, v{MPN+(i&3)}")
        for r in range(4): a(f"v_mov_b32 v{ONES+r}, 0x3f803f80")
        a.nst = n0
        a.stamp()
        mf, fr = build(halo, 0)
        vm0 = list(a.vm)
        gemm_stream(a, mf, fr, ring, opt('LA', 10), opt('cover', 3), pre, stamps=(0, 1, 4), hooks=l2_hooks(a, 5, False))
        vm1 = list(a.vm); a.vm = vm0
        a.stamp()
        stats_out(halo)
        if halo: a(f"s_branch {lj}")
    a(f"{lj}:")
    a.vm = vm1
    a("s_waitcnt lgkmcnt(0)")
    a("s_barrier")
    for k in range(2): a(f"ds_read_b128 {V(152+4*k)}, v220 offset:{256 + 64*k}")
    for tl in range(4):
        a(f"ds_read_b32 v{162+tl}, v219 offset:{64*tl}")
        a(f"ds_read_b32 v{166+tl}, v219 offset:{64*tl + TP}")
    for e in range(2): a(f"ds_read_b32 v{160+e}, v221 offset:{512 + 64*e}")
    a("s_waitcnt lgkmcnt(2)")
    for tl in range(4):
        a(f"ds_read_b128 {V(172+4*tl)}, v218 offset:{64*tl}")
        a(f"ds_read_b128 {V(10+4*tl)}, v218 offset:{64*tl + TP}")
    for k in range(2): a(f"ds_read_b128 {V(144+4*k)}, v220 offset:{64*k}")
    def corr_t(x, cw, mreg, rreg):
        for p in range(2): a(f"v_pk_fma_f32 {V(x+2*p,2)}, {V(cw+2*p,2)}, {V(mreg&~1,2)}, {V(x+2*p,2)} op_sel:[0,{mreg&1},0] op_sel_hi:[1,{mreg&1},1] neg_lo:[1,0,0] neg_hi:[1,0,0]")
        for p in range(2): a(f"v_pk_mul_f32 {V(x+2*p,2)}, {V(x+2*p,2)}, {V(rreg&~1,2)} op_sel:[0,{rreg&1}] op_sel_hi:[1,{rreg&1}]")
    def corr_c(x, mv, rv, cw):
        for p in range(2): a(f"v_pk_fma_f32 {V(x+2*p,2)}, {V(mv+2*p,2)}, {V(cw&~1,2)}, {V(x+2*p,2)} op_sel:[0,{cw&1},0] op_sel_hi:[1,{cw&1},1] neg_lo:[1,0,0] neg_hi:[1,0,0]")
        for p in range(2): a(f"v_pk_mul_f32 {V(x+2*p,2)}, {V(x+2*p,2)}, {V(rv+2*p,2)}")
    def pack(dst, x):
        for p in range(2): a(f"v_cvt_pk_bf16_f32 v{dst+p}, v{x+2*p}, v{x+2*p+1}")
    KV = 224
    def kp(e, tl): return KV + 8*tl + 2*e
    def vp(e, tl): return KV + 8*tl + 4 + 2*e
    for tl in (2, 3, 0, 1):
        for e in range(2): corr_t(AK + (e*4+tl)*4, 152+4*e, 162+tl, 166+tl)
        for e in range(2): pack(kp(e, tl), AK + (e*4+tl)*4)
    a("s_waitcnt lgkmcnt(0)")
    for tl in (2, 3, 0, 1):
        for e in range(2): corr_c(AV + (e*4+tl)*4, 172+4*tl, 10+4*tl, 160+e)
        for e in range(2): pack(vp(e, tl), AV + (e*4+tl)*4)
        if tl == 3:
            lx = a.label("Lx")
            a("s_cmp_lg_u32 s5, 0")
            a(f"s_cbranch_scc1 {lx}")
            for k in range(4): a(f"ds_write_b128 v223, {V(KV+16+4*k)} offset:{1024*k}")
            a("ds_read_b32 v26, v219 offset:512")
            a(f"ds_read_b32 v27, v219 offset:{512 + TP}")
            a(f"ds_read_b128 {V(188)}, v218 offset:512")
            a(f"ds_read_b128 {V(192)}, v218 offset:{512 + TP}")
            a(f"{lx}:")
    PV = 64
    lh = a.label("Lnh")
    a("s_cmp_lg_u32 s5, 0")
    a(f"s_cbranch_scc1 {lh}")
    a("s_waitcnt lgkmcnt(0)")
    for e in range(2):
        corr_t(HK+4*e, 152+4*e, 26, 27)
        corr_c(HV+4*e, 188, 192, 160+e)
    for e in range(2):
        for T in range(2):
            pack(PV + 8*T + 2*e, HK+4*e)
            pack(PV + 8*T + 4 + 2*e, HV+4*e)
    a(f"{lh}:")
    QP = 96
    for e in range(2):
        for tl in range(4):
            x = AQ + (e*4+tl)*4; m_ = 162 + tl
            for p in range(2): a(f"v_pk_fma_f32 {V(x+2*p,2)}, {V(144+4*e+2*p,2)}, {V(m_&~1,2)}, {V(x+2*p,2)} op_sel:[0,{m_&1},0] op_sel_hi:[1,{m_&1},1] neg_lo:[1,0,0] neg_hi:[1,0,0]")
    for k in range(8): pack(QP+2*k, AQ+4*k)
    for tl in range(4): a(f"v_mul_f32 v{10+tl}, {f2u(0.25*LOG2E):#x}, v{166+tl}")
    for r in range(2): a(f"v_mov_b32 v{14+r}, 0x3f803f80")
    a("s_waitcnt lgkmcnt(0)")
    a("s_barrier")
    lp = a.label("Lp")
    a("s_cmp_eq_u32 s5, 0")
    a(f"s_cbranch_scc1 {lp}")
    for k in range(4): a(f"ds_read_b128 {V(PV+4*k)}, v223 offset:{1024*k}")
    a(f"{lp}:")
    SC, SP = 112, 144
    U = range(8)
    def kprev(u): e, tl = u//4, u%4; return kp(e, tl-2) if tl >= 2 else PV + 8*tl + 2*e
    def vprev(u): e, tl = u//4, u%4; return vp(e, tl-2) if tl >= 2 else PV + 8*tl + 4 + 2*e
    for u in U: a(mfma16(SC+4*u, kp(u//4, u%4), QP+2*u, V(MC)))
    for u in (2, 3, 6, 7): a(mfma16(SP+4*u, kprev(u), QP+2*u, V(MPN)))
    a("s_waitcnt lgkmcnt(0)")
    for u in (0, 1, 4, 5): a(mfma16(SP+4*u, kprev(u), QP+2*u, V(MPA+4*(u&1))))
    MX, TM = 32, 40
    for u in (2, 3, 6, 7, 0, 1, 4, 5):
        for i in range(4): a(f"v_max_f32 v{SC+4*u+i}, v{SC+4*u+i}, v{SP+4*u+i}")
    for u in U: a(f"v_max3_f32 v{MX+u}, v{SC+4*u}, v{SC+4*u+1}, v{SC+4*u+2}")
    for u in U: a(f"v_max_f32 v{MX+u}, v{MX+u}, v{SC+4*u+3}")
    a("s_nop 0")
    for b in (0, 4):
        a(f"v_permlane32_swap_b32 v{MX+b}, v{MX+b+1}")
        a(f"v_permlane32_swap_b32 v{MX+b+2}, v{MX+b+3}")
    for b in (0, 4):
        a(f"v_max_f32 v{MX+b}, v{MX+b}, v{MX+b+1}")
        a(f"v_max_f32 v{MX+b+2}, v{MX+b+2}, v{MX+b+3}")
    a("s_nop 0")
    for b in (0, 4): a(f"v_permlane16_swap_b32 v{MX+b}, v{MX+b+2}")
    for b in (0, 4): a(f"v_max_f32 v{MX+b}, v{MX+b}, v{MX+b+2}")
    for b in (0, 4): a(f"v_mov_b32 v{MX+b+2}, v{MX+b}")
    a("s_nop 1")
    for b in (0, 4): a(f"v_permlane16_swap_b32 v{MX+b}, v{MX+b+2}")
    for b in (0, 4):
        a(f"v_mov_b32 v{MX+b+1}, v{MX+b}")
        a(f"v_mov_b32 v{MX+b+3}, v{MX+b+2}")
    a("s_nop 0")
    for b in (0, 4):
        a(f"v_permlane32_swap_b32 v{MX+b}, v{MX+b+1}")
        a(f"v_permlane32_swap_b32 v{MX+b+2}, v{MX+b+3}")
    for u in range(0, 8, 2): a(f"v_pk_mul_f32 {V(MX+u,2)}, {V(MX+u,2)}, {V(10+(u&3),2)}")
    for u in U:
        c_ = 10 + (u & 3)
        for p in range(2): a(f"v_pk_fma_f32 {V(SC+4*u+2*p,2)}, {V(SC+4*u+2*p,2)}, {V(c_&~1,2)}, {V(MX+(u&~1),2)} op_sel:[0,{c_&1},{u&1}] op_sel_hi:[1,{c_&1},{u&1}] neg_lo:[0,0,1] neg_hi:[0,0,1]")
    for u in U:
        for i in range(4): a(f"v_exp_f32 v{SC+4*u+i}, v{SC+4*u+i}")
    PC, PP = 144, 160
    for u in U: pack(PP+2*u, SC+4*u)
    OA = 176
    for u in U:
        a(mfma16(SC+4*u, 14, PP+2*u, "0"))
        for p in range(2): a(f"v_and_b32 v{PC+2*u+p}, v{MB+p}, v{PP+2*u+p}")
    for u in U:
        for p in range(2): a(f"v_xor_b32 v{PP+2*u+p}, v{PC+2*u+p}, v{PP+2*u+p}")
        a(mfma16(OA+4*u, vp(u//4, u%4), PC+2*u, "0"))
    for u in U:
        a(mfma16(OA+4*u, vprev(u), PP+2*u))
        a(f"v_rcp_f32 v{MX+u}, v{SC+4*u}")
    a("s_nop 1")
    for u in U:
        for p in range(2): a(f"v_pk_mul_f32 {V(OA+4*u+2*p,2)}, {V(OA+4*u+2*p,2)}, {V(MX+(u&~1),2)} op_sel:[0,{u&1}] op_sel_hi:[1,{u&1}]")
    for tl in range(4):
        for e in range(2): pack(112 + 4*tl + 2*e, OA + 4*(e*4+tl))
    for tl in range(4):
        for p in range(2): a(f"v_permlane32_swap_b32 v{112+4*tl+p}, v{112+4*tl+2+p}")
    a.vmwait("b")
    for tl in range(4):
        a.vmem(f"buffer_store_dwordx4 {V(112+4*tl)}, v4, {S4(WS_)}, s{53+(tl>>1)} offen offset:{256*(tl&1)} sc1", "o")
    a(f"s_lshl_b32 s61, s{sRB}, 3")
    a(f"s_add_u32 s61, s61, s{sGRP}")
    a("s_lshl_b32 s61, s61, 2")
    a(f"s_add_u32 s61, s61, s{sQ}")
    a("s_lshl_b32 s61, s61, 7")
    a(f"s_add_u32 s75, s61, {FO_OFF}")
    a.stamp()

def aq_helper(a, fused):
    early = opt('qearly', 1); c6, c7, c8 = opt('c6', 8), opt('c7', 22), opt('c8', 30)
    PFS = [int(c, 16) for c in str(opt('pfs', 55234))]
    rowtile_voffs(a, 4, 5, 10)
    a("v_bfe_u32 v3, v1, 4, 1")
    a("v_lshlrev_b32 v3, 1, v3")
    a("v_and_b32 v30, 7, v1")
    a("v_xor_b32 v30, v30, v3")
    a("v_lshrrev_b32 v3, 3, v1")
    a("v_mul_u32_u24 v3, 3072, v3")
    a("v_lshl_add_u32 v6, v30, 4, v3")
    a("v_xor_b32 v30, 4, v30")
    a("v_lshl_add_u32 v7, v30, 4, v3")
    a(f"v_add_u32 v7, {8*3072}, v7")
    a("v_lshrrev_b32 v3, 4, v1")
    a(f"s_lshl_b32 s61, s{sQ}, 1")
    a("v_add_u32 v3, s61, v3")
    a("v_and_b32 v30, 7, v1")
    a("v_xor_b32 v30, v30, v3")
    a("v_and_b32 v30, 7, v30")
    a("v_lshrrev_b32 v3, 3, v1")
    a("v_lshlrev_b32 v3, 10, v3")
    a("v_lshl_add_u32 v20, v30, 4, v3")
    a(f"s_lshl_b32 s53, s{sRB}, 7")
    a("s_sub_u32 s55, s53, 16")
    a("s_max_i32 s55, s55, 0")
    a(f"s_lshl_b32 s61, s{sQ}, 2")
    a("s_add_u32 s55, s55, s61")
    a("s_lshl_b32 s55, s55, 10")
    a(f"s_lshl_b32 s61, s{sQ}, 5")
    a("s_add_u32 s53, s53, s61")
    a("s_lshl_b32 s53, s53, 10")
    a(f"s_mul_i32 s54, s{sQ}, {16*3072}")
    a(f"s_lshl_b32 s61, s{sGRP}, 7")
    a("s_add_u32 s54, s54, s61")
    a(f"s_mul_i32 s56, s{sQ}, 6144")
    a(f"s_lshl_b32 s57, s{sQ}, 9")
    a(f"s_lshl_b32 s60, s{sQ}, 12")
    def ga(step):
        sl = QSLOT[step % 3]; tag = ("A", step)
        x_group_h(a, step, sl, tag)
        a(f"s_mul_i32 s63, s61, {64*3072}")
        a("s_add_u32 s63, s63, s54")
        a(f"s_add_u32 m0, s56, {sl + 18432}")
        a("s_add_u32 s62, s58, s55")
        for m in range(3): a.vmem(f"buffer_load_dwordx4 v6, {S4(WA_)}, s63 offen offset:{1024*m} {NT('w')}lds", tag)
        a(f"s_add_u32 m0, s56, {sl + 18432 + 3072}")
        a("s_nop 0")
        for m in range(3): a.vmem(f"buffer_load_dwordx4 v7, {S4(WA_)}, s63 offen offset:{1024*m} {NT('w')}lds", tag)
        a(f"s_add_u32 m0, s57, {sl + 16384}")
        a("s_mov_b32 exec_hi, 0")
        a.vmem(f"buffer_load_dwordx4 v20, {S4(X_)}, s62 offen {NT('x')}lds", tag)
        a("s_mov_b32 exec_hi, -1")
    early_srds(a)
    srd(a, WA_, 66, D*1536*2)
    ga(0)
    ga(1)
    if opt('proQ', 2) == 3: ga(2)
    if opt('sst', 0): a.stamp()
    a.split("LF_hq1")
    if opt('sst', 0): a.stamp()
    late_srds(a)
    if fused: wsp_setup_h(a)
    q_spread_setup(a)
    a.stamp()
    for s in range(8):
        a.vmwait(("A", s))
        a("s_barrier")
        if s in (0, 1, 4): a.stamp()
        if s == 0: a(f"s_load_dword s{sT}, s[90:91], 128")
        if (0 if opt('proQ', 2) == 2 else 1) <= s <= 5: ga(s + 2)
        if s == 0: get_nonce(a, -1)
        if s == opt('st1q', 5): ln1_fetch_issue(a, True)
        if s == 7: ln1_fetch_finish(a, True)
        if s == opt('mt', 0): q_spread(a, 0, 1, 'm')
        s0 = opt('sp0', 5)
        if s0 <= s < 6: q_spread(a, s - s0, 6 - s0, 's')
        if s == opt('qcw', 9): cw_load(a, 0, 16)
    a.stamp()
    a("s_barrier")
    wt = opt('wtab', 0)
    if opt('qcw', 9) == 8: cw_load(a, 0, 16)
    for v in range(wt): wsp_group_h(a, v)
    a("s_barrier")
    for v in range(wt, NWS): wsp_group_h(a, v)
    if opt('qcw', 9) == 9: cw_load(a, 0, 16)
    a("s_mov_b32 s72, 0")

def flag_store(a, which):
    if which == "F1":
        a(f"s_lshl_b32 s61, s{sRB}, 3")
        a(f"s_add_u32 s61, s61, s{sGRP}")
        off = F1_OFF
    else:
        a(f"s_lshl_b32 s61, s{sRB}, 1")
        a(f"s_add_u32 s61, s61, s{sTYP}")
        a("s_lshl_b32 s61, s61, 3")
        a(f"s_add_u32 s61, s61, s{sGRP}")
        off = F2_OFF
    a("s_lshl_b32 s61, s61, 7")
    a(f"s_add_u32 s61, s61, {off}")
    a(f"s_cmp_eq_u32 s{sQ}, 0")
    a(f"s_cselect_b32 s61, s61, {OOB}")
    a(f"v_mov_b32 v30, s{sT}")
    a("v_mov_b32 v31, 0")
    a("s_mov_b64 exec, 1")
    a.vmem(f"buffer_store_dword v30, v31, {S4(WS_)}, s61 offen sc1", "flag")
    a("s_mov_b64 exec, -1")

def mfma32(d, a, b, c=None):
    c = V(d, 16) if c is None else c
    return f"v_mfma_f32_32x32x16_bf16 {V(d,16)}, {V(a)}, {V(b)}, {c}"

def get_nonce(a, line):
    if line >= 0: a(f"s_load_dword s{sT}, s[90:91], {64*line}")
    a("s_waitcnt lgkmcnt(0)")
    first = [True]
    def chk():
        if not first[0]: a(f"v_readfirstlane_b32 s{sT}, v30")
        first[0] = False
        a(f"s_cmp_lg_u32 s{sT}, 0")
    def iss():
        a("s_sleep 2")
        a("v_mov_b32 v31, 0")
        a(f"buffer_load_dword v30, v31, {S4(DBG_)}, 0 offen sc1")
    spin(a, iss, chk)

def ln1_issue(a):
    a(f"s_lshl_b32 s61, s{sRB}, 1")
    a(f"s_add_u32 s61, s61, s{sTYP}")
    a("s_lshl_b32 s61, s61, 3")
    a(f"s_add_u32 s61, s61, s{sGRP}")
    a("s_lshl_b32 s61, s61, 2")
    a(f"s_add_u32 s47, s61, s{sQ}")
    a("s_lshl_b32 s61, s47, 11")
    a("v_lshrrev_b32 v3, 5, v1")
    a("v_lshlrev_b32 v3, 10, v3")
    a("v_and_b32 v30, 31, v1")
    a("v_lshl_add_u32 v3, v30, 4, v3")
    a.vmem(f"buffer_load_dwordx4 {V(40)}, v3, {S4(X_)}, s61 offen", "ln1")
    a.vmem(f"buffer_load_dwordx4 {V(44)}, v3, {S4(X_)}, s61 offen offset:512", "ln1")
def ln1_publish(a):
    a("v_mov_b32 v48, 0x3f803f80")
    a("v_mov_b32 v32, 0\nv_mov_b32 v33, 0\nv_mov_b32 v34, 0\nv_mov_b32 v35, 0")
    a("s_lshl_b32 s47, s47, 5")
    a(f"s_add_u32 s47, s47, {WS_ST1}")
    a("v_lshrrev_b32 v3, 1, v1")
    a.vmwait("ln1")
    for i in range(8):
        a(f"v_dot2_f32_bf16 v{32+(i&1)}, v{40+i}, v48, v{32+(i&1)}")
        a(f"v_dot2_f32_bf16 v{34+(i&1)}, v{40+i}, v{40+i}, v{34+(i&1)}")
    a("s_nop 2")
    a("v_add_f32 v32, v32, v33")
    a("v_add_f32 v34, v34, v35")
    for r in (8, 4, 2, 1):
        a("s_nop 0")
        a(f"v_add_f32_dpp v32, v32, v32 row_ror:{r} row_mask:0xf bank_mask:0xf")
        a(f"v_add_f32_dpp v34, v34, v34 row_ror:{r} row_mask:0xf bank_mask:0xf")
    a("v_mov_b32 v33, v32\nv_mov_b32 v35, v34")
    a("s_nop 1")
    a("v_permlane16_swap_b32 v32, v33\nv_permlane16_swap_b32 v34, v35")
    a("v_add_f32 v32, v32, v33\nv_add_f32 v34, v34, v35")
    row_finalize(a, 32, 34, 0)
    get_nonce(a, 1)
    a(f"v_mov_b32 v33, s{sT}\nv_mov_b32 v35, s{sT}")
    a("s_mov_b32 exec_lo, 1\ns_mov_b32 exec_hi, 1")
    a.vmem(f"buffer_store_dwordx4 {V(32)}, v3, {S4(WS_)}, s47 offen sc1", "ln1s")
    a("s_mov_b64 exec, -1")

def ln1_fetch_issue(a, halo):
    a(f"s_lshl_b32 s69, s{sRB}, 2")
    a(f"s_add_u32 s69, s69, s{sQ}")
    a("s_lshl_b32 s69, s69, 9")
    a(f"s_add_u32 s69, s69, {WS_ST1}")
    a(f"s_lshl_b32 s70, s{sRB}, 11")
    a("s_sub_u32 s70, s70, 256")
    a("s_max_i32 s70, s70, 0")
    a(f"s_add_u32 s70, s70, {WS_ST1}")
    a("v_lshlrev_b32 v36, 3, v1")
    a("v_and_b32 v37, 0xff, v36")
    a.vmem(f"buffer_load_dwordx2 {V(32,2)}, v36, {S4(WS_)}, s69 offen sc1", "st1")
    if halo: a.vmem(f"buffer_load_dwordx2 {V(34,2)}, v37, {S4(WS_)}, s70 offen sc1", "st1")
def ln1_fetch_finish(a, halo):
    a.vmwait("st1")
    def iss():
        a(f"buffer_load_dwordx2 {V(32,2)}, v36, {S4(WS_)}, s69 offen sc1")
        if halo: a(f"buffer_load_dwordx2 {V(34,2)}, v37, {S4(WS_)}, s70 offen sc1")
    def chk():
        a(f"v_cmp_ne_u32 vcc, s{sT}, v33")
        if halo:
            a(f"v_cmp_ne_u32 s[61:62], s{sT}, v35".replace("s[61:62]", "s[72:73]"))
            a("s_nop 0")
            a("s_or_b64 vcc, vcc, s[72:73]")
        a("s_cmp_eq_u64 vcc, 0")
    spin(a, iss, chk)
    a("v_bfe_u32 v38, v1, 1, 1")
    a("v_lshrrev_b32 v39, 2, v1")
    a("v_lshl_add_u32 v38, v38, 4, v39")
    a(f"s_lshl_b32 s61, s{sQ}, 7")
    a(f"s_add_u32 s61, s61, {L_TAB}")
    a("v_lshl_add_u32 v38, v38, 2, s61")
    a("v_mov_b32_dpp v33, v32 quad_perm:[1,0,3,2] row_mask:0xf bank_mask:0xf")
    if halo:
        a("v_mov_b32_dpp v35, v34 quad_perm:[1,0,3,2] row_mask:0xf bank_mask:0xf")
        a("v_lshlrev_b32 v39, 1, v1")
        a("v_and_b32 v39, 0x3c, v39")
        a(f"v_add_u32 v39, {L_TAB + 512}, v39")
        a("v_rsq_f32 v33, v33\nv_rsq_f32 v35, v35")
        a("s_mov_b32 exec_lo, 0x55555555\ns_mov_b32 exec_hi, 0x55555555")
        a(f"ds_write_b32 v38, v32\nds_write_b32 v38, v33 offset:{TP}")
        a(f"ds_write_b32 v39, v34\nds_write_b32 v39, v35 offset:{TP}")
    else:
        a("v_rsq_f32 v34, v33")
        a("v_sqrt_f32 v33, v33")
        a("v_mul_f32 v35, v34, v34")
        a("v_mul_f32 v35, v35, v34")
        a(f"v_mul_f32 v35, {f2u(-C2):#x}, v35")
        a(f"v_mul_f32 v34, {f2u(-C1):#x}, v34")
        a("s_mov_b32 exec_lo, 0x55555555\ns_mov_b32 exec_hi, 0x55555555")
        for k, r in enumerate((32, 35, 34, 33)): a(f"ds_write_b32 v38, v{r} offset:{TP*k}")
    a("s_mov_b64 exec, -1")
    a("s_waitcnt lgkmcnt(0)")

def b_early(a):
    a("v_and_b32 v3, 15, v1")
    a("v_bfe_u32 v31, v1, 4, 1")
    a("v_lshl_add_u32 v3, v3, 1, v31")
    a("v_lshlrev_b32 v3, 1, v3")
    a(f"s_lshl_b32 s61, s{sRB}, 2")
    a(f"s_add_u32 s61, s61, s{sQ}")
    a("s_lshl_b32 s61, s61, 6")
    a(f"s_cmp_eq_u32 s{sKS}, 0")
    a("s_cselect_b32 s61, s61, 4096")
    a.vmem(f"buffer_load_ushort v0, v3, {S4(BSP_)}, s61 offen", "b")

def b_compute(a, fused):
    ACC = 32
    ring = list(range(80, 144, 4))
    Z1 = 144
    OF = 168
    a("v_and_b32 v3, 31, v1")
    a("v_lshrrev_b32 v30, 5, v1")
    a("v_bfe_u32 v31, v1, 1, 3")
    a("v_xor_b32 v31, v30, v31")
    a("v_lshlrev_b32 v3, 7, v3")
    a("v_lshl_add_u32 v10, v31, 4, v3")
    a(f"s_lshl_b32 s61, s{sQ}, 12")
    a("v_add_u32 v10, s61, v10")
    for b4 in range(1, 4): a(f"v_xor_b32 v{10+b4}, {32*b4}, v10")
    for b4 in range(4): a(f"v_add_u32 v{14+b4}, 0x10000, v{10+b4}")
    a("v_lshlrev_b32 v19, 4, v1")
    a(f"v_add_u32 v18, {L_Z2}, v19")
    a(f"v_add_u32 v21, {L_Z2 + 49152}, v19")
    a("v_and_b32 v3, 15, v1")
    a("v_bfe_u32 v31, v1, 4, 1")
    a("v_lshlrev_b32 v20, 9, v31")
    a("v_lshl_add_u32 v20, v30, 8, v20")
    a("v_lshl_add_u32 v20, v3, 4, v20")
    a(f"s_lshl_b32 s57, s{sRB}, 2")
    a(f"s_add_u32 s57, s57, s{sQ}")
    if not fused: b_early(a)
    a(f"s_mul_i32 s55, s{sCG}, 6")
    a("s_min_u32 s55, s55, 40")
    a("s_sub_u32 s58, 40, s55")
    a("s_min_u32 s58, s58, 6")
    a(f"s_cmp_eq_u32 s{sCG}, 7")
    a("s_cselect_b32 s58, 3, s58")
    a("s_mul_i32 s53, s57, 48")
    a("s_add_u32 s53, s53, s55")
    a("s_lshl_b32 s53, s53, 10")
    a(f"s_mul_i32 s61, s{sKS}, {64*48*1024}")
    a("s_add_u32 s54, s53, s61")
    a(f"s_add_u32 s53, s53, {WS_Z1}")
    a(f"s_add_u32 s54, s54, {WS_H}")
    if not fused: a.vmwait("b")
    a("v_lshlrev_b32 v22, 16, v0")
    for r in range(48): a(f"v_mov_b32 v{ACC+r}, v22")
    def z1_load():
        pass
    def z1_piece(j):
        def f():
            if j == 4: a("s_add_u32 s53, s53, 4096")
            a.vmem(f"buffer_load_dwordx4 {V(Z1+4*j)}, v20, {S4(WS_)}, s53 offen offset:{(j%4)*1024} sc1", "z1")
        return f
    extras = []
    zs = opt('z1step', 13)
    for j in range(6): extras.append((zs, z1_piece(j), lambda done: True, 99))
    a(f"s_lshl_b32 s56, s{sRC}, 1")
    a(f"s_and_b32 s61, s{sQ}, 1")
    a("s_add_u32 s56, s56, s61")
    a("s_lshl_b32 s56, s56, 1")
    a(f"s_lshr_b32 s61, s{sQ}, 1")
    a("s_add_u32 s56, s56, s61")
    a("s_lshl_b32 s56, s56, 14")
    a(f"s_add_u32 s56, s56, {WS_O}")
    def o_piece(b):
        def f():
            if b and b % 4 == 0: a("s_add_u32 s56, s56, 4096")
            a.vmem(f"buffer_load_dwordx4 {V(OF+4*b)}, v19, {S4(WS_)}, s56 offen offset:{(b%4)*1024} sc1", ("o", b))
        return f
    a.o_piece = o_piece
    def preB(st):
        if fused and st == opt('f2step', 2):
            a(f"v_mov_b32 v30, s{sT}")
            a("v_mov_b32 v31, 0")
            a.vmall()
            a("s_mov_b64 exec, 1")
            a.vmem(f"buffer_store_dword v30, v31, {S4(WS_)}, s75 offen sc1", "flag")
            a("s_mov_b64 exec, -1")
    fr = {}; mf = []
    for i in range(16):
        for b4 in range(4):
            fr[('w', i, b4)] = dict(step=i, reg=None, reads=[lambda r, i=i, b4=b4: f"ds_read_b128 {V(r)}, v{10 + b4 + 4*((i%NWS)//4)} offset:{((i%NWS)%4)*16384}"])
            for c in range(3):
                fr[('z', i, b4, c)] = dict(step=i, reg=None, reads=[lambda r, i=i, b4=b4, c=c: f"ds_read_b128 {V(r)}, v{18 if ZOFF(i) < 49152 else 21} offset:{ZOF2(i) + (b4*3+c)*1024}"])
                mf.append((ACC+16*c, ('z', i, b4, c), ('w', i, b4)))
    a.stamp()
    a("s_barrier")
    gemm_stream(a, mf, fr, ring, opt('LAB', 5), opt('coverB', 2), preB,
                first_zero=False, stamps=(0, 1, 8, 10, 12, 14), pergap=opt('pgB', 2), slack=2, op=mfma32, extras=extras)
    for e in extras: e[1]()
    a.stamp()
    a("s_barrier")
    a.vmwait("z1")
    for j in range(6):
        x = ACC + 8*j; z = Z1 + 4*j; t = 80 + 8*(j&1)
        for k in range(4):
            a(f"v_lshlrev_b32 v{t+2*k}, 16, v{z+k}")
            a(f"v_and_b32 v{t+2*k+1}, 0xffff0000, v{z+k}")
        for k in range(4): a(f"v_pk_mul_f32 {V(x+2*k,2)}, {V(x+2*k,2)}, {V(t+2*k,2)}")
        for k in range(4): a(f"v_cvt_pk_bf16_f32 v{x+k}, v{x+2*k}, v{x+2*k+1}")
        a(f"s_cmp_gt_u32 s58, {j}")
        a(f"s_cselect_b32 s61, s54, {OOB}")
        if j >= 4: a("s_add_u32 s61, s61, 4096")
        a.vmem(f"buffer_store_dwordx4 {V(x)}, v19, {S4(WS_)}, s61 offen offset:{(j%4)*1024} sc1", "h")
    a.stamp()

CR = 104
NCR = int(os.environ.get('NCR', 16))
def cw_load(a, lo, hi):
    if lo == 0 and hi > 0 or (lo == 0 and hi == 0): cw_load_setup(a)
    for i in range(lo, min(hi, NCR)):
        R, k = (WO_, i) if i < 16 else (WOUT_, i - 16)
        a(f"s_add_u32 s46, s47, {k*32768}")
        a.vmem(f"buffer_load_dwordx4 {V(CR+4*i)}, v26, {S4(R)}, s46 offen", "CW")
def cw_load_setup(a):
    a("v_bfe_u32 v3, v1, 4, 1")
    a("v_lshlrev_b32 v3, 2, v3")
    a("v_and_b32 v30, 7, v1")
    a("v_xor_b32 v30, v30, v3")
    a("v_lshrrev_b32 v3, 3, v1")
    a("v_lshlrev_b32 v3, 10, v3")
    a("v_lshl_add_u32 v26, v30, 4, v3")
    a(f"s_lshl_b32 s47, s{sCG}, 7")
    a(f"s_lshl_b32 s61, s{sQ}, 13")
    a("s_add_u32 s47, s47, s61")
def cw_write(a, lo, hi):
    for i in range(lo, min(hi, NCR)):
        g4 = 4*i
        off = CSLOT[g4 // 16]*16384 + (g4 % 16)*1024
        a(f"ds_write_b128 v{27 + (off >> 16)}, {V(CR+4*i)} offset:{off & 0xffff}")

CSLOT = [2, 3, 4, 5, 6, 0, 1, 7, 8, 9]; assert True
def b_helper(a, fused):
    if not fused:
        late_srds(a)
        wsp_setup_h(a)
        a(f"s_lshl_b32 s60, s{sQ}, 12")
    a("v_lshlrev_b32 v10, 4, v1")
    a(f"s_lshl_b32 s61, s{sQ}, 10")
    a("v_add_u32 v27, s61, v10")
    a("v_add_u32 v28, 0x10000, v27")
    a("v_add_u32 v29, 0x20000, v27")
    a(f"s_lshl_b32 s53, s{sCG}, 1")
    a(f"s_add_u32 s53, s53, s{sKS}")
    a(f"s_mul_i32 s53, s53, {16*12288}")
    a(f"s_mul_i32 s54, s{sQ}, 3072")
    a("s_add_u32 s53, s53, s54")
    a(f"s_add_u32 s53, s53, {WS_Z2N}")
    a(f"s_add_u32 s54, s54, {L_Z2}")
    def z2_group(i):
        a(f"s_add_u32 s61, s{sK0B}, {i}")
        a("s_and_b32 s61, s61, 15")
        a("s_mul_i32 s61, s61, 12288")
        a(f"s_add_u32 m0, s54, {ZOFF(i)}")
        a("s_add_u32 s61, s61, s53")
        for k in range(3): a.vmem(f"buffer_load_dwordx4 v10, {S4(WS_)}, s61 offen offset:{1024*k} sc1 lds", ("Z", i))
    a.stamp()
    if fused:
        a(f"s_lshl_b32 s71, s{sCG}, 1")
        a(f"s_add_u32 s71, s71, s{sKS}")
        a("s_lshl_b32 s71, s71, 12")
        a(f"s_add_u32 s71, s71, {F1_OFF}")
        a("v_and_b32 v31, 31, v1")
        a("v_lshlrev_b32 v31, 7, v31")
        a(f"v_mov_b32 v30, 0")
        def iss(): a(f"buffer_load_dword v30, v31, {S4(WS_)}, s71 offen sc1")
        def chk():
            a(f"v_cmp_ne_u32 vcc, s{sT}, v30")
            a("s_cmp_eq_u64 vcc, 0")
        wp = opt('wp', 3)
        lA = a.label("LfA")
        lB = a.label("LfB")
        iss(); a("s_waitcnt vmcnt(0)"); chk()
        a(f"s_cbranch_scc1 {lA}")
        a("s_cmp_eq_u32 s72, 0")
        a(f"s_cbranch_scc1 {lB}")
        for v in range(wp, NWS): wsp_group_h(a, v)
        a("s_mov_b32 s72, 0")
        a(f"{lB}:")
        spin(a, iss, chk)
        a("s_waitcnt vmcnt(0)")
        a(f"{lA}:")
        a.vm = []
        a.stamp()
        for i in range(NZS - 1): z2_group(i)
        a("v_mov_b32 v25, 256")
        def late_group(v):
            ld = a.label("Lld"); le = a.label("Lle")
            a("s_cmp_eq_u32 s72, 0")
            a(f"s_cbranch_scc1 {ld}")
            wsp_group_h(a, v)
            a(f"s_branch {le}")
            a(f"{ld}:")
            a("s_mov_b64 exec, 1")
            for k in range(4): a(f"buffer_load_dword v24, v25, {S4(DBG_)}, 0 offen")
            a("s_mov_b64 exec, -1")
            a(f"{le}:")
    a("s_barrier")
    wpre = NWS
    a("v_add_u32 v18, 4096, v8")
    a("v_add_u32 v19, 4096, v9")
    def wsp_pieces(v):
        def f(k):
            if k == 0:
                a(f"s_add_u32 s58, s{sK0B}, {v}")
                a("s_and_b32 s58, s58, 15")
                a("s_lshl_b32 s58, s58, 7")
                a("s_add_u32 s58, s58, s59")
            a(f"s_add_u32 m0, s60, {(v % NWS) * 16384 + 2048*(k>>1)}")
            a("s_nop 0")
            a.vmem(f"buffer_load_dwordx4 v{(8, 9, 18, 19)[k]}, {S4(WSP_)}, s58 offen offset:{1024*(k&1)} {NT('s')}lds", ("S", v))
        return [(lambda k=k: f(k)) for k in range(4)]
    cws = opt('cws', 14)
    bg = []
    for v in range(wpre, 16): bg += [(max(0, v - NWS + 1), p, v) for p in wsp_pieces(v)]
    for i in range(16):
        assert all(x[2] > i for x in bg), i
        a.vmwait(("S", i)); a.vmwait(("Z", i))
        if fused and i == opt('z1step', 13): f2_check(a)
        a("s_barrier")
        if i in (0, 1, 8, 10, 12, 14): a.stamp()
        if fused and i == opt('f2step', 2): flag_store(a, "F2")
        if fused and i == opt('z1step', 13) - 3: f2_issue(a)
        lg = opt('lg', 2)
        for v in range(wp + lg*i, min(NWS, wp + lg*(i + 1))):
            assert v > i
            late_group(v)
        if i + NZS - 1 < 16: z2_group(i + NZS - 1)
        if i >= cws: cw_write(a, 4*(i - cws), 4*(i - cws) + 4)
        n = opt('pace', 3)
        while n > 0 and bg and bg[0][0] <= i:
            bg.pop(0)[1](); n -= 1
    a.stamp()
    a("s_barrier")
    assert not bg
    cw_write(a, 4*(16 - cws), max(16, 4*(16 - cws)))

def f2_issue(a):
    a(f"s_lshl_b32 s62, s{sRB}, 4")
    a(f"s_add_u32 s62, s62, s{sCG}")
    a("s_add_u32 s62, s62, 8")
    a("s_lshl_b32 s62, s62, 7")
    a(f"s_add_u32 s62, s62, {F2_OFF}")
    a(f"s_lshr_b32 s61, s{sRC}, 1")
    a("s_lshl_b32 s61, s61, 12")
    a(f"s_add_u32 s61, s61, {FO_OFF}")
    a("v_lshlrev_b32 v20, 7, v1")
    a("v_add_u32 v20, s61, v20")
    a("v_mov_b32 v21, s62")
    a("v_cmp_lt_u32 vcc, 31, v1")
    a("s_nop 1")
    a("v_cndmask_b32 v20, v20, v21, vcc")
    a.vmem(f"buffer_load_dword v21, v20, {S4(WS_)}, 0 offen sc1", "f2")
def f2_check(a):
    a.vmwait("f2")
    def iss(): a(f"buffer_load_dword v21, v20, {S4(WS_)}, 0 offen sc1")
    def chk():
        a(f"v_cmp_ne_u32 vcc, s{sT}, v21")
        a("s_cmp_eq_u64 vcc, 0")
    spin(a, iss, chk)

L_RED = 0
def c_waddr(a, d):
    a("v_lshrrev_b32 v3, 5, v1")
    a("v_bfe_u32 v30, v1, 2, 2")
    a("v_lshl_add_u32 v3, v3, 2, v30")
    a("v_lshlrev_b32 v3, 7, v3")
    a("v_and_b32 v30, 2, v30")
    a("v_bfe_u32 v31, v1, 4, 1")
    a("v_or_b32 v30, v30, v31")
    a("v_lshl_add_u32 v3, v30, 5, v3")
    a("v_and_b32 v30, 3, v1")
    a(f"v_lshl_add_u32 v{d}, v30, 3, v3")
    a(f"v_xor_b32 v{d+1}, 64, v{d}")

def c_stream(a, nblk, fragreg, tagf, areg, blk0, ring, ACC, first_zero, loads=(), off0=0):
    fr = {}; mf = []
    for b in range(nblk):
        fr[('h', b)] = dict(step=0, reg=fragreg(b), reads=None)
        for nn in range(2):
            off = CSLOT[(blk0 + b) // 8] * 16384 + ((blk0 + b) % 8) * 2048 - off0
            fr[('w', b, nn)] = dict(step=0, reg=None, reads=[(lambda r, hh=hh, nn=nn, off=off: f"ds_read_b64_tr_b16 {V(r+2*hh,2)}, v{areg(off >> 16) + nn} offset:{(off & 0xffff) + hh*1024}") for hh in range(2)])
            mf.append((ACC+16*nn, ('w', b, nn), ('h', b)))
    cnt = [0]
    def op(d, x, y, c):
        b = cnt[0] // 2
        if cnt[0] % 2 == 1 and loads: loads.pop(0)()
        cnt[0] += 1
        a.vmwait(tagf(b))
        return mfma32(d, x, y, c)
    gemm_stream(a, mf, fr, ring, opt('LAC', 4), 0, lambda st: None, first_zero=first_zero, pergap=2, slack=2, op=op, skip_first_barrier=True)

def c_final(a):
    a("s_barrier")
    for k in range(2):
        a(f"ds_read_b128 {V(16+8*k)}, v6 offset:{17408*k}")
        a(f"ds_read_b128 {V(20+8*k)}, v6 offset:{17408*k + 16}")
    a.vmwait("x")
    for w in range(4):
        a(f"v_lshlrev_b32 v{32+2*w}, 16, v{8+w}")
        a(f"v_and_b32 v{33+2*w}, 0xffff0000, v{8+w}")
    a("s_waitcnt lgkmcnt(2)")
    for w in range(4): a(f"v_pk_add_f32 {V(32+2*w,2)}, {V(32+2*w,2)}, {V(16+2*w,2)}")
    a("s_waitcnt lgkmcnt(0)")
    for w in range(4): a(f"v_pk_add_f32 {V(32+2*w,2)}, {V(32+2*w,2)}, {V(24+2*w,2)}")
    for w in range(4): a(f"v_cvt_pk_bf16_f32 v{32+w}, v{32+2*w}, v{33+2*w}")
    a.vmem(f"buffer_store_dwordx4 {V(32)}, v7, {S4(OUT_)}, s47 offen {('', 'sc1', 'nt', 'sc0 sc1', 'sc1 nt')[opt('outf', 0)]}", "out")

def c_final_setup(a):
    a("v_lshrrev_b32 v3, 3, v1")
    a(f"s_lshl_b32 s61, s{sW}, 3")
    a("v_add_u32 v3, s61, v3")
    a("v_and_b32 v30, 7, v1")
    a("v_mul_u32_u24 v6, 272, v3")
    a("v_lshl_add_u32 v6, v30, 5, v6")
    a("v_add_u32 v6, 32768, v6")
    a("v_and_b32 v31, 15, v3")
    a("v_lshlrev_b32 v31, 1, v31")
    a("v_bfe_u32 v7, v3, 4, 1")
    a("v_add_u32 v31, v31, v7")
    a("v_and_b32 v7, 32, v3")
    a("v_add_u32 v31, v31, v7")
    a("v_lshlrev_b32 v31, 10, v31")
    a("v_lshl_add_u32 v7, v30, 4, v31")
    a(f"s_lshl_b32 s47, s{sRC}, 9")
    a(f"s_add_u32 s47, s47, s{sCG}")
    a("s_lshl_b32 s47, s47, 7")
    a.vmem(f"buffer_load_dwordx4 {V(8)}, v7, {S4(X_)}, s47 offen", "x")

def c_compute(a, fused):
    ACC, OF, HF = 32, 168, 80
    for b in range(16): a.o_piece(b)()
    a(f"s_and_b32 s53, s{sQ}, 1")
    a(f"s_lshr_b32 s54, s{sQ}, 1")
    c_waddr(a, 26)
    a("s_lshl_b32 s61, s54, 15")
    a("s_add_u32 s61, s61, 32768")
    a("v_add_u32 v4, s61, v26\nv_add_u32 v5, s61, v27")
    a("s_barrier")
    a("s_lshl_b32 s61, s57, 1")
    a(f"s_add_u32 s61, s61, s{sKS}")
    a("s_lshl_b32 s61, s61, 3")
    a(f"s_add_u32 s61, s61, s{sCG}")
    a("s_lshl_b32 s61, s61, 7")
    a(f"s_add_u32 s61, s61, {F3_OFF}")
    a(f"v_mov_b32 v30, s{sT}")
    a("v_mov_b32 v31, 0")
    a.vmwait("h")
    a("s_mov_b64 exec, 1")
    a.vmem(f"buffer_store_dword v30, v31, {S4(WS_)}, s61 offen sc1", "flag")
    a("s_mov_b64 exec, -1")
    a.stamp()
    c_stream(a, 16, lambda b: OF+4*b, lambda b: ("o", b), lambda k: 4, 0, list(range(80, 112, 4)), ACC, True, off0=32768)
    a.stamp()
    a("v_add_u32 v252, 0x10000, v26\nv_add_u32 v253, 0x10000, v27")
    a("v_add_u32 v254, 0x20000, v26\nv_add_u32 v255, 0x20000, v27")
    a(f"s_lshl_b32 s55, s{sRC}, 1")
    a("s_add_u32 s55, s55, s53")
    a("s_lshl_b32 s56, s54, 6")
    a("s_add_u32 s56, s56, s55")
    a("s_mul_i32 s56, s56, 49152")
    a(f"s_add_u32 s56, s56, {WS_H}")
    a("v_lshlrev_b32 v28, 4, v1")
    c_final_setup(a)
    a("v_and_b32 v3, 31, v1")
    a("v_mul_u32_u24 v3, 272, v3")
    a("v_lshrrev_b32 v30, 5, v1")
    a("v_lshl_add_u32 v3, v30, 4, v3")
    a("s_mul_i32 s61, s54, 17408")
    a(f"s_mul_i32 s62, s53, {32*272}")
    a("s_add_u32 s61, s61, s62")
    a("s_add_u32 s61, s61, 32768")
    a("v_add_u32 v4, s61, v3")
    a("s_lshl_b32 s62, s55, 1")
    a("s_add_u32 s62, s62, s54")
    a("s_lshl_b32 s62, s62, 10")
    a(f"s_add_u32 s62, s62, {F3_OFF}")
    a("v_and_b32 v31, 7, v1")
    a("v_lshlrev_b32 v31, 7, v31")
    a("v_mov_b32 v30, 0")
    a("s_barrier")
    def iss(): a(f"buffer_load_dword v30, v31, {S4(WS_)}, s62 offen sc1")
    def chk():
        a(f"v_cmp_ne_u32 vcc, s{sT}, v30")
        a("s_cmp_eq_u64 vcc, 0")
    spin(a, iss, chk)
    a.vm = []
    a.stamp()
    def hload(b):
        if b and b % 4 == 0: a("s_add_u32 s56, s56, 4096")
        a.vmem(f"buffer_load_dwordx4 {V(HF+4*b)}, v28, {S4(WS_)}, s56 offen offset:{(b%4)*1024} sc1", ("H", b))
    PH = opt('PH', 14)
    for b in range(PH): hload(b)
    ring = list(range(64, 80, 4)) + [12, 16, 20]
    c_stream(a, 43, lambda b: HF+4*b, lambda b: ("H", b), lambda k: (26, 252, 254)[k], 32, ring, ACC, False, [(lambda b=b: hload(b)) for b in range(PH, 43)])
    a.stamp()
    a("s_nop 15")
    for nn in range(2):
        for jj in range(4): a(f"ds_write_b128 v4, {V(ACC+16*nn+4*jj)} offset:{128*nn + 32*jj}")
    a("s_waitcnt lgkmcnt(0)")
    c_final(a)

def c_helper(a, fused):
    a("s_waitcnt lgkmcnt(0)")
    a("s_barrier")
    a(f"s_lshl_b32 s60, s{sQ}, 10")
    for i in range(NCR, 38):
        off = CSLOT[i // 4]*16384 + (4*i % 16)*1024
        a(f"s_add_u32 m0, s60, {off}")
        a(f"s_add_u32 s46, s47, {(i - 16)*32768}")
        a.vmem(f"buffer_load_dwordx4 v26, {S4(WOUT_)}, s46 offen lds", "CW2")
    cw_write(a, max(16, 4*(16 - opt('cws', 14))), 38)
    c_final_setup(a)
    a.vmwait("CW2")
    a("s_waitcnt lgkmcnt(0)")
    a.stamp()
    a("s_barrier")
    c_final(a)

def diag_out(a, base):
    if opt('padto', 0):
        l = a.label("Lpad")
        if opt('leak', -1) >= 0:
            a("s_nop 0")
            a(f"v_readlane_b32 s61, v2, {opt('leak', 0)}")
            a("s_lshr_b32 s61, s61, 4")
            a(f"s_lshl_b32 s62, s{sW}, 10")
            a("s_add_u32 s62, s62, s2")
            a(f"s_cmp_eq_u32 s62, {opt('leakwg', 200)}")
            a("s_cselect_b32 s61, s61, 0")
            a("s_add_u32 s84, s84, s61")
        a(f"{l}:")
        a("s_sleep 1")
        a("s_memrealtime s[86:87]")
        a("s_waitcnt lgkmcnt(0)")
        a(f"s_sub_u32 s86, s86, s{sT if opt('padT', 0) else 84}")
        a(f"s_cmp_lt_i32 s86, {opt('padto', 0)}")
        a(f"s_cbranch_scc1 {l}")
    if opt('skew', 0):
        a(f"s_sub_u32 s61, s84, s{sT}")
        a("s_add_u32 s61, s61, 100000")
        a("v_mov_b32 v4, s61")
        a("v_mov_b32 v5, 8")
        a("s_mov_b64 exec, 1")
        a(f"buffer_atomic_umax v4, v5, {S4(DBG_)}, 0 offen")
        a("s_sub_u32 s61, 200000, s61")
        a("v_mov_b32 v4, s61")
        a(f"buffer_atomic_umax v4, v5, {S4(DBG_)}, 0 offen offset:4")
        a("s_mov_b64 exec, -1")
    if not a.diag: return
    a("v_writelane_b32 v2, s84, 62")
    a("s_memrealtime s[86:87]")
    a("s_waitcnt lgkmcnt(0)")
    a("v_writelane_b32 v2, s86, 63")
    a("s_lshl_b32 s61, s2, 3")
    a(f"s_add_u32 s61, s61, s{sW}")
    a("s_lshl_b32 s61, s61, 8")
    a(f"s_add_u32 s61, s61, {base}")
    a("v_lshlrev_b32 v3, 2, v1")
    a(f"buffer_store_dword v2, v3, {S4(WS_)}, s61 offen")
    if opt('hdbg', -1) >= 0:
        l = a.label("Lhd")
        a(f"s_cmp_lg_u32 s2, {opt('hdbg', 0)}")
        a(f"s_cbranch_scc1 {l}")
        a(f"s_cmp_lg_u32 s{sW}, 0")
        a(f"s_cbranch_scc1 {l}")
        a("s_sub_u32 s86, s86, s84")
        a("v_mov_b32 v4, 0")
        a("v_writelane_b32 v4, s86, 1")
        for k, src in enumerate((0, 1, 3, 4, 5, 6, 7, 10, 11, 17, 18, 19, 20, 22)):
            a(f"v_readlane_b32 s61, v2, {src}")
            a("s_nop 3")
            a(f"v_writelane_b32 v4, s61, {2+k}")
        a("s_mov_b64 exec, 0xfffe")
        a(f"buffer_store_dword v4, v3, {S4(DBG_)}, 0 offen")
        a(f"{l}:")

def simple_kernel(name, diag, idx, comp, helper):
    a = G(diag)
    prologue(a, f"L{name}_end")
    a(f"s_cmp_ge_u32 s{sW}, 4")
    a(f"s_cbranch_scc1 L{name}_h")
    for k, fn in enumerate((comp, helper)):
        if k: a(f"L{name}_h:")
        a.vm = []; a.nst = 0
        fn(a)
        a.vmall(); a.stamp()
        diag_out(a, WS_DBG + idx*0x80000)
        a("s_endpgm")
    a(f"L{name}_end:")
    a("s_endpgm")
    return a.text()

def by_type(fq, fz, lab):
    def f(a):
        a(f"s_cmp_lg_u32 s{sTYP}, 0")
        a(f"s_cbranch_scc1 {lab}_z")
        fq(a, False)
        a.vmall()
        a(f"s_branch {lab}_e")
        n = a.nst
        a(f"{lab}_z:")
        a.vm = []; a.nst = 0
        fz(a, False)
        a(f"{lab}_e:")
        a.nst = max(a.nst, n)
    return f

def multi(diag):
    ka = simple_kernel("A", diag, 0, by_type(aq_compute, az_compute, "LAc"), by_type(aq_helper, az_helper, "LAh"))
    def bc(a): late_srds(a); b_compute(a, False)
    kb = simple_kernel("B", diag, 1, bc, lambda a: b_helper(a, False))
    kc = simple_kernel("C", diag, 2, lambda a: c_compute(a, False), lambda a: c_helper(a, False))
    return [("a_kernel", ka), ("b_kernel", kb), ("c_kernel", kc)]

def fused_kernel(diag):
    a = G(diag)
    prologue(a, "LF_end")
    a(f"s_cmp_lt_u32 s{sW}, 4")
    a("s_cbranch_scc1 LF_c")
    a(f"s_cmp_lg_u32 s{sTYP}, 0")
    a("s_cbranch_scc1 LF_hz")
    aq_helper(a, True)
    a("s_branch LF_hb")
    a.unsplit()
    a("LF_hz:")
    a.vm = []; a.nst = 0
    az_helper(a, True)
    a("LF_hb:")
    a.vm = []; a.nst = 10
    b_helper(a, True)
    c_helper(a, True)
    a.vmall(); a.stamp()
    diag_out(a, WS_DBG)
    a("s_endpgm")
    a.unsplit()
    a("LF_c:")
    a.vm = []; a.nst = 0
    early_srds(a)
    late_srds(a)
    nonce_publish(a)
    ln1_issue(a)
    b_early(a)
    a(f"s_cmp_lg_u32 s{sTYP}, 0")
    a("s_cbranch_scc1 LF_cz")
    vmc = list(a.vm)
    aq_compute(a, True)
    a("s_branch LF_cb")
    a("LF_cz:")
    a.vm = list(vmc); a.nst = 0
    az_compute(a, True)
    a(f"s_mov_b32 s75, {OOB}")
    a("LF_cb:")
    a.vm = []; a.nst = 10
    b_compute(a, True)
    c_compute(a, True)
    a.vmall(); a.stamp()
    diag_out(a, WS_DBG)
    a("s_endpgm")
    for t in a.tails: a.L += t
    a("LF_end:")
    a("s_endpgm")
    return [(KNAME, a.text())]

if __name__ == "__main__":
    diag = "diag" in sys.argv
    for x in sys.argv[2:]:
        if "=" in x:
            k, v = x.split("="); OPT[k] = int(v)
    ks = multi(diag) if 'multi' in sys.argv else fused_kernel(diag)
    hdr = open("cdna_kernels/" + KNAME[:-7] + ".s.ref").read().split("; Override")[0]
    txt = file_text([(n, 256, 512, LDS_BYTES) for n, t in ks], [(n, t, 256, 102, 256) for n, t in ks])
    if len(ks) == 1: txt = txt.replace(f"; @launch kernel={KNAME} ", "; @launch ")
    txt = "\n".join(l.strip() if l.startswith("    ") else l for l in txt.split("\n"))
    if opt('align', 1):
        import align
        txt, n1, n2 = align.align(txt)
    open(sys.argv[1], "w").write(hdr + txt)
```

```python
import sys, math, struct, os
from asmgen import Asm, KA, KNAME, file_text
from layout import *

OOB = 0x10000000
LOG2E = 1.4426950408889634
def f2u(x): return struct.unpack("<I", struct.pack("<f", x))[0]
C1 = 2.0 * math.sqrt(2.0 / math.pi) * LOG2E
C2 = C1 * 0.044715
NEG = f2u(-1e30)
OPT = {}
F1_OFF, F2_OFF, F3_OFF, FO_OFF = WS_FLG, WS_FLG + 512*128, WS_FLG + 768*128, WS_FLG + 1792*128
def opt(k, d): return OPT.get(k, d)
def ZOFF(i): return (i % NZS)*12288
def ZOF2(i): return ZOFF(i) % 49152
def NT(k): return 'nt ' if opt('nt' + k, 0) else ''

sW, sQ, sRB, sGRP = 3, 4, 6, 7
X_, WA_, WS_, WSP_, WO_, WOUT_, OUT_, BSP_, DBG_ = 8, 12, 16, 20, 24, 28, 32, 36, 40
sK0A, sTYP = 44, 45
sKS, sCG, sK0B, sT = 48, 50, 51, 52
sRC = 49
def S4(b): return f"s[{b}:{b+3}]"
def V(b, n=4): return f"v[{b}:{b+n-1}]" if n > 1 else f"v{b}"

L_TAB = 156*1024
TP = 640
L_CW  = L_TAB + 2560
L_MISC = L_TAB + 3328
L_XCH = 148*1024
L_PARK = 112*1024
NWS = int(os.environ.get('NWS', 7))
NZS = {7: 4, 6: 5, 5: 6}[NWS]
L_Z2 = 160*1024 - NZS*12288
L_RC = L_TAB + 3584
LDS_BYTES = 160*1024

class G(Asm):
    UID = [0]
    def label(self, base="L"):
        G.UID[0] += 1
        return f"{base}_{G.UID[0]}"
    def __init__(self, diag=False):
        super().__init__()
        self.vm = []; self.diag = diag; self.nst = 0; self.tails = []
    def vmem(self, s, tag=None):
        self(s); self.vm.append(tag)
    def has(self, tag): return any(t == tag for t in self.vm)
    def vmwait(self, tag):
        if not self.has(tag): return
        idx = max(i for i, t in enumerate(self.vm) if t == tag)
        n = len(self.vm) - 1 - idx
        n = min(n, 63)
        self(f"s_waitcnt vmcnt({n})")
        self.vm = self.vm[idx+1:]
    def vmall(self):
        self("s_waitcnt vmcnt(0)"); self.vm = []
    def stamp(self):
        if not self.diag: return
        self("s_memtime s[82:83]")
        self("s_waitcnt lgkmcnt(0)")
        self("s_sub_u32 s82, s82, s80")
        self(f"v_writelane_b32 v2, s82, {self.nst}")
        self.nst += 1
    def split(self, label):
        self(f"s_branch {label}")
        self.head = self.L
        self.L = []
        self(f"{label}:")
    def unsplit(self):
        self.tails.append(self.L); self.L = self.head
    def run(self, fs):
        for f in fs: f() if callable(f) else self(f)

def mfma(d, a, b, c=None):
    c = V(d) if c is None else c
    return f"v_mfma_f32_16x16x32_bf16 {V(d)}, {V(a)}, {V(b)}, {c}"
def mfma16(d, a, b, c=None):
    c = V(d) if c is None else c
    return f"v_mfma_f32_16x16x16_bf16 {V(d)}, {V(a,2)}, {V(b,2)}, {c}"

def gemm_stream(a, mf, frags, ring, LA, cover, pre_barrier, hooks=None, first_zero=True, stamps=(), nobar=0, pergap=1, slack=4, op=None, skip_first_barrier=False, extras=None):
    hooks = hooks or {}
    extra_max = opt('xmax', 1)
    first, last = {}, {}
    for i, (d, x, y) in enumerate(mf):
        for f in (x, y):
            first.setdefault(f, i); last[f] = i
    order = sorted([f for f in first if frags[f].get('reads')], key=lambda f: (frags[f]['step'], first[f]))
    rl = [(f, k) for f in order for k in range(len(frags[f]['reads']))]
    reg = {f: frags[f]['reg'] for f in first if frags[f].get('reg') is not None}
    owner = {r: None for r in ring}
    ptr = 0; cur = (0 if skip_first_barrier else -1); out = []; done = set(f for f in first if not frags[f].get('reads'))
    since = 10**9
    seen = set()
    def issue_one(i, force):
        nonlocal ptr, cur, since, out
        f, k = rl[ptr]
        st = frags[f]['step']
        if st > cur:
            if not force and since < cover: return False
            pre_barrier(st)
            if not (nobar and st > 0):
                if out:
                    a("s_waitcnt lgkmcnt(0)")
                    for g_, _ in out: done.add(g_)
                    out = []
                a("s_barrier")
            cur = st
            if st in stamps: a.stamp()
            if st in hooks: hooks[st]()
        if k == 0 and f not in reg:
            free = [r for r in ring if owner[r] is None or last[owner[r]] < i]
            if not free:
                assert not force, "ring too small"
                return False
            r = min(free, key=lambda r: -1 if owner[r] is None else last[owner[r]])
            reg[f] = r; owner[r] = f
        if len(out) >= 14 and not force: return False
        a(frags[f]['reads'][k](reg[f]))
        out.append((f, k)); ptr += 1; since = 0
        return True
    for i, (d, x, y) in enumerate(mf):
        need = [f for f in (x, y) if f not in done]
        while ptr < len(rl) and any(rl[j][0] in need for j in range(ptr, len(rl)) if first[rl[j][0]] <= i):
            issue_one(i, True)
        n = 0
        while ptr < len(rl) and first[rl[ptr][0]] <= i + LA:
            lim = 12 if i == 0 else (pergap + 1 if first[rl[ptr][0]] <= i + LA - slack else pergap)
            if n >= lim: break
            if not issue_one(i, False): break
            n += 1
        if extras and n <= extra_max and extras[0][0] <= cur and extras[0][2](done):
            extras.pop(0)[1]()
        need = [f for f in (x, y) if f not in done]
        if need:
            idx = max(j for j, (f, k) in enumerate(out) if f in need)
            a(f"s_waitcnt lgkmcnt({len(out) - 1 - idx})")
            for f, k in out[:idx+1]:
                if k == len(frags[f]['reads']) - 1: done.add(f)
            out = out[idx+1:]
        c = None
        if first_zero and d not in seen:
            c = "0" if first_zero is True else first_zero; seen.add(d)
        a((op or mfma)(d, reg[x], reg[y], c))
        since += 1
    assert ptr == len(rl)

def srd(a, d, p, nbytes):
    a(f"s_mov_b32 s{d}, s{p}")
    a(f"s_and_b32 s{d+1}, s{p+1}, 0xffff")
    a(f"s_mov_b32 s{d+2}, {nbytes:#x}")
    a(f"s_mov_b32 s{d+3}, 0x20000")

def prologue(a, endlabel):
    if a.diag:
        a("s_memtime s[80:81]")
    a("s_memrealtime s[84:85]")
    a("s_cmp_ge_u32 s2, 256")
    a(f"s_cbranch_scc1 {endlabel}")
    a("s_load_dwordx16 s[64:79], s[0:1], 0")
    a("s_load_dwordx4 s[88:91], s[0:1], 64")
    a("s_load_dwordx2 s[92:93], s[0:1], 80")
    if opt('cpf', 1):
        a("s_getpc_b64 s[62:63]")
        a("LF_pc:")
        a("s_lshr_b32 s61, s2, 3")
        a("s_mul_i32 s61, s61, ((LF_end - LF_pc) >> 12) + 1")
        a("v_add_u32 v3, s61, v0")
        a("v_lshlrev_b32 v3, 7, v3")
        a("v_min_u32 v3, LF_end - LF_pc, v3")
        a(f"s_mov_b32 m0, {L_MISC}")
        a("v_cmp_gt_u32 vcc, ((LF_end - LF_pc) >> 12) + 1, v0")
        a("s_and_saveexec_b64 s[60:61], vcc")
        a("s_cbranch_execz LF_npf")
        a("global_load_lds_dword v3, s[62:63]")
        a("LF_npf:")
        a("s_mov_b64 exec, -1")
    a("v_lshrrev_b32 v3, 6, v0")
    a("v_and_b32 v1, 63, v0")
    a("v_mov_b32 v2, 0")
    a(f"v_readfirstlane_b32 s{sW}, v3")
    a("s_and_b32 s53, s2, 7")
    a("s_lshr_b32 s54, s2, 3")
    a("s_lshr_b32 s55, s53, 1")
    a("s_and_b32 s56, s54, 3")
    a(f"s_lshr_b32 s{sCG}, s54, 2")
    a(f"s_lshl_b32 s{sRB}, s55, 2")
    a(f"s_add_u32 s{sRB}, s{sRB}, s56")
    a(f"s_and_b32 s{sKS}, s53, 1")
    a(f"s_lshl_b32 s{sRC}, s53, 2")
    a(f"s_add_u32 s{sRC}, s{sRC}, s56")
    a(f"s_lshl_b32 s{sGRP}, s{sKS}, 2")
    a(f"s_and_b32 s58, s{sCG}, 3")
    a(f"s_add_u32 s{sGRP}, s{sGRP}, s58")
    a(f"s_lshr_b32 s{sTYP}, s{sCG}, 2")
    if opt('zfirst', 1): a(f"s_xor_b32 s{sTYP}, s{sTYP}, 1")
    if opt('rotAm', 3) == 0:
        a(f"s_lshl_b32 s{sK0A}, s56, 1")
        a(f"s_add_u32 s{sK0A}, s{sK0A}, s{sCG}")
        a(f"s_add_u32 s{sK0A}, s{sK0A}, s55")
    elif opt('rotAm', 3) == 3:
        a(f"s_and_b32 s{sK0A}, s{sCG}, 6")
        a(f"s_add_u32 s{sK0A}, s{sK0A}, s{sKS}")
        a("s_lshl_b32 s58, s55, 1")
        a(f"s_add_u32 s{sK0A}, s{sK0A}, s58")
        a("s_lshr_b32 s58, s56, 1")
        a(f"s_add_u32 s{sK0A}, s{sK0A}, s58")
    elif opt('rotAm', 3) == 4:
        a(f"s_add_u32 s{sK0A}, s{sCG}, s56")
        a(f"s_and_b32 s{sK0A}, s{sK0A}, 1")
        a(f"s_lshl_b32 s{sK0A}, s{sK0A}, 2")
        a(f"s_add_u32 s{sK0A}, s{sK0A}, s55")
        a(f"s_lshl_b32 s58, s{sKS}, 1")
        a(f"s_add_u32 s{sK0A}, s{sK0A}, s58")
    else:
        a(f"s_lshl_b32 s{sK0A}, s{sKS}, 1")
        a(f"s_add_u32 s{sK0A}, s{sK0A}, s55")
        a(f"s_lshl_b32 s{sK0A}, s{sK0A}, 1")
        if opt('rotAm', 3) == 2:
            a("s_and_b32 s58, s56, 1")
            a(f"s_add_u32 s{sK0A}, s{sK0A}, s58")
    a(f"s_and_b32 s{sK0A}, s{sK0A}, {opt('rotA', 7)}")
    if opt('rotBm', 1) == 0:
        a(f"s_lshl_b32 s{sK0B}, s{sCG}, 1")
    else:
        a(f"s_lshl_b32 s{sK0B}, s{sCG}, 1")
        a(f"s_add_u32 s{sK0B}, s{sK0B}, s{sTYP}")
        a(f"s_lshl_b32 s{sK0B}, s{sK0B}, 1")
    if opt('rotBm', 1) <= 1: a(f"s_add_u32 s{sK0B}, s{sK0B}, s{sRB}")
    if opt('rotBm', 1) == 3: a(f"s_add_u32 s{sK0B}, s{sK0B}, s55")
    if opt('rotBm', 1) == 4:
        a("s_lshl_b32 s58, s55, 2")
        a(f"s_add_u32 s{sK0B}, s{sK0B}, s58")
    a(f"s_and_b32 s{sK0B}, s{sK0B}, {opt('rotB', 15)}")
    a(f"s_and_b32 s{sQ}, s{sW}, 3")

def early_srds(a):
    if opt('sst', 0): a.stamp()
    a("s_waitcnt lgkmcnt(0)")
    srd(a, X_, 64, S*D*2)

def late_srds(a):
    srd(a, WS_, 92, 268435456)
    srd(a, DBG_, 90, 256)
    srd(a, WSP_, 74, S*S*2)
    srd(a, WO_, 68, D*D*2)
    srd(a, WOUT_, 78, FH*D*2)
    srd(a, OUT_, 88, S*D*2)
    srd(a, BSP_, 76, S*2)

def rowtile_voffs(a, d0, d1, sh, t0=3, t1=30, t2=31):
    a(f"v_lshrrev_b32 v{t0}, 3, v1")
    a(f"v_lshlrev_b32 v{t0}, {sh+1}, v{t0}")
    a(f"v_lshrrev_b32 v{t1}, 4, v1")
    a(f"v_and_b32 v{t2}, 7, v1")
    a(f"v_xor_b32 v{t1}, v{t1}, v{t2}")
    a(f"v_lshl_add_u32 v{d0}, v{t1}, 4, v{t0}")
    a(f"v_xor_b32 v{t1}, 4, v{t1}")
    a(f"v_lshl_add_u32 v{d1}, v{t1}, 4, v{t0}")
    a(f"v_add_u32 v{d1}, {(16 << sh) - 1024}, v{d1}")

def rowfrag_addr(a, d0, d1, srow, t0=3, t1=30, t2=31):
    a(f"v_and_b32 v{t0}, 15, v1")
    a(f"v_lshrrev_b32 v{t1}, 4, v1")
    a(f"v_lshrrev_b32 v{t2}, 1, v{t0}")
    a(f"v_xor_b32 v{t1}, v{t1}, v{t2}")
    a(f"v_lshlrev_b32 v{t0}, 7, v{t0}")
    a(f"v_add_u32 v{t0}, {srow}, v{t0}")
    a(f"v_lshl_add_u32 v{d0}, v{t1}, 4, v{t0}")
    a(f"v_xor_b32 v{t1}, 4, v{t1}")
    a(f"v_lshl_add_u32 v{d1}, v{t1}, 4, v{t0}")

def zw_addr(a, de, do, t0=3, t1=30, t2=31):
    a(f"v_lshrrev_b32 v{t0}, 4, v1")
    a(f"v_bfe_u32 v{t1}, v1, 2, 2")
    a(f"v_lshl_add_u32 v{t1}, v{t0}, 3, v{t1}")
    a(f"v_mul_u32_u24 v{t1}, 192, v{t1}")
    a(f"v_and_b32 v{t2}, 3, v1")
    a(f"v_lshl_add_u32 v{t1}, v{t2}, 3, v{t1}")
    a(f"v_and_b32 v{t0}, 1, v{t0}")
    a(f"v_lshlrev_b32 v{t0}, 5, v{t0}")
    a(f"v_add_u32 v{de}, v{t1}, v{t0}")
    a(f"v_sub_u32 v{do}, v{t1}, v{t0}")

def qw_addr(a, d, t0=3, t1=30, t2=31):
    a(f"v_lshrrev_b32 v{t0}, 4, v1")
    a(f"v_mul_u32_u24 v{t1}, 3072, v{t0}")
    a(f"v_bfe_u32 v{t2}, v1, 2, 2")
    a(f"v_lshl_add_u32 v{t1}, v{t2}, 7, v{t1}")
    a(f"v_and_b32 v{d}, 3, v1")
    a(f"v_lshl_add_u32 v{t1}, v{d}, 3, v{t1}")
    a(f"v_lshrrev_b32 v{t2}, 1, v{t2}")
    a(f"v_and_b32 v{t0}, 1, v{t0}")
    a(f"v_lshl_or_b32 v{t2}, v{t0}, 1, v{t2}")
    a(f"v_lshl_add_u32 v{d}, v{t2}, 5, v{t1}")

ZSLOT = [56*1024, 84*1024, 112*1024, 0, 28*1024]
W1SL = [0, 12288, 28672, 40960, 57344, 69632, 86016, 98304]
QSLOT = [86016, 43008, 0]

def gelu_core(a, xs, ts, A3, A1, RI):
    for k, (x, t) in enumerate(zip(xs, ts)): a(f"v_pk_mul_f32 {V(t,2)}, {V(x,2)}, {V(x,2)}")
    for k, (x, t) in enumerate(zip(xs, ts)): a(f"v_pk_fma_f32 {V(t,2)}, {V(t,2)}, {A3[k][0]}, {A1[k][0]} {A3[k][1]}")
    for k, (x, t) in enumerate(zip(xs, ts)): a(f"v_pk_mul_f32 {V(t,2)}, {V(t,2)}, {V(x,2)}")
    for k, (x, t) in enumerate(zip(xs, ts)):
        a(f"v_exp_f32 v{t}, v{t}"); a(f"v_exp_f32 v{t+1}, v{t+1}")
    for k, (x, t) in enumerate(zip(xs, ts)): a(f"v_pk_fma_f32 {V(t,2)}, {V(t,2)}, {RI[k][0]}, {RI[k][0]} {RI[k][1]}")
    for k, (x, t) in enumerate(zip(xs, ts)):
        a(f"v_rcp_f32 v{t}, v{t}"); a(f"v_rcp_f32 v{t+1}, v{t+1}")
    for k, (x, t) in enumerate(zip(xs, ts)): a(f"v_pk_mul_f32 {V(x,2)}, {V(x,2)}, {V(t,2)}")

def zcount(a, dG, dN):
    a(f"s_mul_i32 s{dG}, s{sGRP}, 6")
    a(f"s_min_u32 s{dG}, s{dG}, 40")
    a(f"s_sub_u32 s{dN}, 40, s{dG}")
    a(f"s_min_u32 s{dN}, s{dN}, 6")
    a(f"s_cmp_eq_u32 s{sGRP}, 7")
    a(f"s_cselect_b32 s{dN}, 3, s{dN}")

def az_compute(a, fused):
    ACC, XR = 32, 128
    ONES, SUM, GRM, CWA = 28, 80, 88, 96
    ring = list(range(80, 96, 4)) + list(range(104, 128, 4))
    a(f"s_lshl_b32 s61, s{sQ}, 12")
    rowfrag_addr(a, 10, 11, "s61")
    zw_addr(a, 12, 13)
    a(f"s_bitcmp1_b32 s{sQ}, 0")
    a("s_cselect_b64 vcc, -1, 0")
    a("v_cndmask_b32 v18, v12, v13, vcc")
    a(f"s_lshl_b32 s61, s{sQ}, 5")
    a(f"s_and_b32 s62, s{sQ}, 1")
    a("s_lshl_b32 s62, s62, 5")
    a("s_add_u32 s62, s62, 128")
    a("v_add_u32 v19, s62, v18")
    a("v_add_u32 v18, s61, v18")
    for r in range(4): a(f"v_mov_b32 v{ONES+r}, 0x3f803f80")
    zcount(a, 55, 58)
    a(f"s_lshl_b32 s61, s{sQ}, 7")
    a(f"s_add_u32 s61, s61, {L_TAB}")
    a("v_and_b32 v3, 0x30, v1")
    a("v_add_u32 v4, s61, v3")
    a(f"v_add_u32 v7, {L_CW + 384}, v3")
    a("v_and_b32 v3, 15, v1")
    a("v_lshl_add_u32 v5, v3, 2, s61")
    a("v_lshlrev_b32 v3, 2, v3")
    a(f"v_add_u32 v6, {L_CW}, v3")
    a("v_lshlrev_b32 v8, 4, v1")
    a("v_lshlrev_b32 v9, 3, v1")
    a(f"s_lshl_b32 s61, s{sQ}, 6")
    a(f"s_and_b32 s62, s{sQ}, 1")
    a("s_lshl_b32 s62, s62, 6")
    a("s_add_u32 s62, s62, 256")
    a("v_add_u32 v22, s61, v6")
    a("v_add_u32 v23, s62, v6")
    a("v_add_u32 v24, s61, v7")
    a("v_add_u32 v25, s62, v7")
    a(f"s_lshl_b32 s57, s{sRB}, 2")
    a(f"s_add_u32 s57, s57, s{sQ}")
    a(f"s_lshl_b32 s53, s{sGRP}, 6")
    a("s_add_u32 s53, s53, s57")
    a("s_mul_i32 s53, s53, 6144")
    a(f"s_add_u32 s53, s53, {WS_Z2N}")
    a("s_mul_i32 s54, s57, 48")
    a("s_add_u32 s54, s54, s55")
    a("s_lshl_b32 s54, s54, 10")
    a(f"s_add_u32 s54, s54, {WS_Z1}")
    a(f"s_lshl_b32 s56, s{sRB}, 3")
    a(f"s_add_u32 s56, s56, s{sGRP}")
    a("s_lshl_b32 s56, s56, 2")
    a(f"s_add_u32 s56, s56, s{sQ}")
    a("s_lshl_b32 s56, s56, 9")
    a(f"s_add_u32 s56, s56, {WS_ST2}")
    def xreg(s, kk, T): return XR + ((s*2 + kk)*2 + T)*4
    def wfrag(step, kk, j):
        return dict(step=step, reg=None, reads=[(lambda r, hh=hh: f"ds_read_b64_tr_b16 {V(r+2*hh,2)}, v{16+(j&1)} offset:{j*32 + kk*6144 + hh*768}") for hh in range(2)])
    def cfrag(step, kk, t):
        return dict(step=step, reg=None, reads=[(lambda r, hh=hh: f"ds_read_b64_tr_b16 {V(r+2*hh,2)}, v{20+t} offset:{kk*6144 + hh*768}") for hh in range(2)])
    fr = {}; mf = []
    for s in range(8):
        for kk in range(2):
            for T in range(2):
                fr[('x', s, kk, T)] = dict(step=s, reg=xreg(s, kk, T), reads=[lambda r, kk=kk, T=T: f"ds_read_b128 {V(r)}, v{14+kk} offset:{T*2048}"])
            for j in range(6):
                fr[('w', s, kk, j)] = wfrag(s, kk, j)
                for T in range(2): mf.append((ACC + (j*2+T)*4, ('x', s, kk, T), ('w', s, kk, j)))
                if j in (2, 5):
                    t = j // 3
                    fr[('c', s, kk, t)] = cfrag(s, kk, t)
                    mf.append((CWA+4*t, 'ones', ('c', s, kk, t)))
    fr['ones'] = dict(step=0, reg=ONES, reads=None)
    def pre1(s):
        for r in range(2): a(f"v_add_u32 v{14+r}, {ZSLOT[s % 5]}, v{10+r}")
        for r in range(2): a(f"v_add_u32 v{16+r}, {ZSLOT[s % 5] + 16384}, v{12+r}")
        for r in range(2): a(f"v_add_u32 v{20+r}, {ZSLOT[s % 5] + 16384}, v{18+r}")
    l2_setup(a, 26, True)
    ln1_publish(a)
    for r in range(2, 4): a(f"v_mov_b32 v{ONES+r}, 0x3f803f80")
    a.stamp()
    gemm_stream(a, mf, fr, ring, opt('LA', 10), opt('cover', 3), pre1, stamps=(0, 1, 4), hooks=l2_hooks(a, 26, True))
    a.stamp()
    a("s_nop 6")
    a(f"ds_write_b32 v22, v{CWA}")
    a(f"ds_write_b32 v23, v{CWA+4}")
    a("s_waitcnt lgkmcnt(0)")
    a("s_barrier")
    for T in range(2):
        for k in range(4): a(f"ds_read_b128 {V(80+16*T+4*k)}, v4 offset:{64*T + TP*k}")
    CWR = [10, 11, 14, 15, 16, 17]
    for j in range(6): a(f"ds_read_b32 v{CWR[j]}, v6 offset:{64*j}")
    a(f"s_mul_i32 s61, s{sQ}, 6144")
    a(f"s_add_u32 s61, s61, {L_PARK}")
    a("v_add_u32 v30, s61, v8")
    a("s_waitcnt lgkmcnt(0)")
    if opt('e1st', 0): a.stamp()
    for j in range(6):
        skip = a.label("Lz2skip")
        a(f"s_cmp_gt_u32 s58, {j}")
        a(f"s_cbranch_scc0 {skip}")
        xs = [ACC + (j*2+T)*4 + 2*p for T in range(2) for p in range(2)]
        tb = [80 + 16*T + 2*p for T in range(2) for p in range(2)]
        sel = f"op_sel:[0,{j&1},0] op_sel_hi:[1,{j&1},1]"
        for x, t in zip(xs, tb): a(f"v_pk_fma_f32 {V(x,2)}, {V(t,2)}, {V(CWR[j&~1],2)}, {V(x,2)} {sel} neg_lo:[1,0,0] neg_hi:[1,0,0]")
        gelu_core(a, xs, [20, 22, 26, 28], [(V(t+4,2), "") for t in tb], [(V(t+8,2), "") for t in tb], [(V(t+12,2), "") for t in tb])
        if j == 0:
            for k, x in enumerate(xs): a(f"v_pk_add_f32 {V(112+2*k,2)}, {V(x,2)}, 0 op_sel_hi:[1,0]")
            for k, x in enumerate(xs): a(f"v_pk_mul_f32 {V(120+2*k,2)}, {V(x,2)}, {V(x,2)}")
        else:
            for k, x in enumerate(xs): a(f"v_pk_add_f32 {V(112+2*k,2)}, {V(112+2*k,2)}, {V(x,2)}")
            for k, x in enumerate(xs): a(f"v_pk_fma_f32 {V(120+2*k,2)}, {V(x,2)}, {V(x,2)}, {V(120+2*k,2)}")
        e, o = ACC + j*8, ACC + j*8 + 4
        for i in range(4): a(f"v_cvt_pk_bf16_f32 v{e+i}, v{e+i}, v{o+i}")
        a(f"ds_write_b128 v30, {V(e)} offset:{j*1024}")
        a(f"{skip}:")
    if opt('e1st', 0): a.stamp()
    def val(i, T, st): return 112 + 8*st + 4*T + i
    for st in range(2):
        for T in range(2):
            for i in range(2):
                A, B = val(i, T, st), val(i+2, T, st)
                a(f"v_add_f32_dpp v{A}, v{A}, v{A} row_ror:8 row_mask:0xf bank_mask:0x3")
                a(f"v_add_f32_dpp v{A}, v{B}, v{B} row_ror:8 row_mask:0xf bank_mask:0xc")
    a("s_mov_b32 s60, 0x22222222\ns_mov_b32 s61, 0x22222222")
    for st in range(2):
        for T in range(2):
            A, B = val(0, T, st), val(1, T, st)
            a(f"v_add_f32_dpp v{A}, v{A}, v{A} row_half_mirror row_mask:0xf bank_mask:0x5")
            a(f"v_add_f32_dpp v{A}, v{B}, v{B} row_half_mirror row_mask:0xf bank_mask:0xa")
    a("s_mov_b32 s62, 0x44444444\ns_mov_b32 s63, 0x44444444")
    for qp in ("[1,0,3,2]", "[2,3,0,1]"):
        for st in range(2):
            for T in range(2):
                A = val(0, T, st)
                a(f"v_add_f32_dpp v{A}, v{A}, v{A} quad_perm:{qp} row_mask:0xf bank_mask:0xf")
    a(f"v_cndmask_b32 v112, v{val(0,0,0)}, v{val(0,0,1)}, s[60:61]")
    a("s_mov_b32 s60, 0x88888888\ns_mov_b32 s61, 0x88888888")
    a(f"v_cndmask_b32 v112, v112, v{val(0,1,0)}, s[62:63]")
    a(f"v_cndmask_b32 v112, v112, v{val(0,1,1)}, s[60:61]")
    a(f"v_mov_b32 v113, s{sT}")
    a.vmem(f"buffer_store_dwordx2 {V(112,2)}, v9, {S4(WS_)}, s56 offen sc1", "st")
    a.stamp()
    fr = {}; mf = []
    for u in range(8):
        for kk in range(2):
            for T in range(2): fr[('x', u, kk, T)] = dict(step=u, reg=xreg(u, kk, T), reads=None)
            for j in range(6):
                fr[('w', u, kk, j)] = wfrag(u, kk, j)
                for T in range(2): mf.append((ACC + (j*2+T)*4, ('w', u, kk, j), ('x', u, kk, T)))
                if j in (2, 5):
                    t = j // 3
                    fr[('c', u, kk, t)] = cfrag(u, kk, t)
                    mf.append((120+4*t, ('c', u, kk, t), 'ones'))
    fr['ones'] = dict(step=0, reg=ONES, reads=None)
    for r in range(4): a(f"v_mov_b32 v{ONES+r}, 0x3f803f80")
    a("s_waitcnt lgkmcnt(0)")
    def pre2(u):
        for r in range(2): a(f"v_add_u32 v{16+r}, {W1SL[u]}, v{12+r}")
        for r in range(2): a(f"v_add_u32 v{20+r}, {W1SL[u]}, v{18+r}")
    ring2 = list(range(80, 112, 4))
    gemm_stream(a, mf, fr, ring2, opt('LA2', 10), opt('cover', 3), pre2, nobar=1, slack=opt('sl2', 4))
    a.stamp()
    for T in range(2):
        for k in range(4): a(f"ds_read_b32 v{104+4*k+2*T}, v5 offset:{64*T + TP*k}")
    a("s_mov_b32 exec_lo, 0x00010001\ns_mov_b32 exec_hi, 0x00010001")
    a(f"ds_write_b128 v24, {V(120)}")
    a(f"ds_write_b128 v25, {V(124)}")
    a("s_mov_b64 exec, -1")
    a("s_waitcnt lgkmcnt(0)")
    a.vmall()
    a("s_barrier")
    for j in range(6): a(f"ds_read_b128 {V(80+4*j)}, v7 offset:{64*j}")
    a("s_waitcnt lgkmcnt(0)")
    for j in range(6):
        skip = a.label("Lz1skip")
        a(f"s_cmp_gt_u32 s58, {j}")
        a(f"s_cselect_b32 s61, s54, {OOB}")
        a(f"s_cbranch_scc0 {skip}")
        xs = [ACC + (j*2+T)*4 + 2*p for T in range(2) for p in range(2)]
        for k, x in enumerate(xs): a(f"v_pk_fma_f32 {V(x,2)}, {V(80+4*j+2*(k%2),2)}, {V(104+2*(k//2),2)}, {V(x,2)} op_sel_hi:[1,0,1] neg_lo:[1,0,0] neg_hi:[1,0,0]")
        b = "op_sel_hi:[1,0,0]"
        gelu_core(a, xs, [20, 22, 26, 28], [(V(108+2*(k//2),2), b) for k in range(4)], [(V(112+2*(k//2),2), b) for k in range(4)], [(V(116+2*(k//2),2), b) for k in range(4)])
        e = ACC + j*8
        for k, x in enumerate(xs): a(f"v_cvt_pk_bf16_f32 v{e+k}, v{x}, v{x+1}")
        a("s_nop 1")
        for p in range(2): a(f"v_permlane32_swap_b32 v{e+p}, v{e+2+p}")
        a(f"{skip}:")
        if j >= 4: a("s_add_u32 s61, s61, 4096")
        a.vmem(f"buffer_store_dwordx4 {V(e)}, v8, {S4(WS_)}, s61 offen offset:{(j%4)*1024} sc1", "z1")
    a.stamp()

def red_g(a, regs, op="v_add_f32", tmp=60):
    n = len(regs)
    for sw in ("v_permlane32_swap_b32", "v_permlane16_swap_b32"):
        for k, r in enumerate(regs): a(f"v_mov_b32 v{tmp+k}, v{r}")
        if n < 3: a("s_nop 1")
        for k, r in enumerate(regs): a(f"{sw} v{r}, v{tmp+k}")
        for k, r in enumerate(regs): a(f"{op} v{r}, v{r}, v{tmp+k}")

def wsp_setup_h(a):
    rowtile_voffs(a, 8, 9, 12)
    a(f"s_lshl_b32 s59, s{sRB}, 2")
    a(f"s_add_u32 s59, s59, s{sQ}")
    a("s_lshl_b32 s59, s59, 17")
    a(f"s_lshl_b32 s61, s{sKS}, 11")
    a("s_add_u32 s59, s59, s61")

def wsp_group_h(a, v):
    a(f"s_add_u32 s61, s{sK0B}, {v}")
    a("s_and_b32 s61, s61, 15")
    a("s_lshl_b32 s61, s61, 7")
    a("s_add_u32 s61, s61, s59")
    a(f"s_add_u32 m0, s60, {(v % NWS) * 16384}")
    a("s_add_u32 s62, s61, 4096")
    a.vmem(f"buffer_load_dwordx4 v8, {S4(WSP_)}, s61 offen {NT('s')}lds", ("S", v))
    a.vmem(f"buffer_load_dwordx4 v9, {S4(WSP_)}, s61 offen offset:1024 {NT('s')}lds", ("S", v))
    a(f"s_add_u32 m0, s60, {(v % NWS) * 16384 + 2048}")
    a("s_nop 0")
    a.vmem(f"buffer_load_dwordx4 v8, {S4(WSP_)}, s62 offen {NT('s')}lds", ("S", v))
    a.vmem(f"buffer_load_dwordx4 v9, {S4(WSP_)}, s62 offen offset:1024 {NT('s')}lds", ("S", v))

def l2_setup(a, d, ztype):
    a("v_lshrrev_b32 v31, 4, v1")
    a("v_lshlrev_b32 v31, 12, v31")
    a("v_and_b32 v30, 15, v1")
    a(f"v_lshl_add_u32 v{d}, v30, 7, v31")
    a(f"v_lshlrev_b32 v{d+1}, 7, v1")
    a(f"s_lshl_b32 s68, s{sRB}, 3")
    a(f"s_add_u32 s68, s68, s{sCG}")
    a("s_lshl_b32 s68, s68, 2")
    a(f"s_add_u32 s68, s68, s{sQ}")
    a("s_lshl_b32 s68, s68, 14")
    a(f"s_lshl_b32 s61, s{sKS}, 11")
    a("s_add_u32 s68, s68, s61")
    a("s_lshr_b32 s61, s2, 3")
    a("s_lshl_b32 s61, s61, 2")
    a(f"s_add_u32 s61, s61, s{sQ}")
    a("s_lshl_b32 s69, s61, 12")
    a(f"s_mul_i32 s70, s61, {43*128}")
    a(f"s_mov_b32 m0, {L_MISC}")
    if ztype and opt('l2w1', 0):
        srd(a, WA_, 72, D*F2*2)
        a("v_lshrrev_b32 v31, 1, v1")
        a("v_mul_u32_u24 v31, 2752, v31")
        a("v_and_b32 v30, 1, v1")
        a("v_mul_u32_u24 v30, 188, v30")
        a("v_add_u32 v3, v30, v31")
        a(f"s_and_b32 s71, s{sRB}, 3")
        a("s_lshl_b32 s71, s71, 2")
        a(f"s_add_u32 s71, s71, s{sQ}")
        a(f"s_mul_i32 s71, s71, {32*2752}")
        a("s_lshl_b32 s61, s55, 5")
        a("s_add_u32 s71, s71, s61")
        if opt('l2w1', 0) == 1:
            a.vmem(f"buffer_load_dword v3, {S4(WA_)}, s71 offen lds", "pf")
def l2_hooks(a, d, ztype):
    hk = {}
    def add(st, f):
        hk.setdefault(st, []).append(f)
    def lanes(k, n, tot):
        lo, hi = k*tot//n, (k+1)*tot//n
        m = ((1 << hi) - 1) ^ ((1 << lo) - 1)
        a(f"s_mov_b32 exec_lo, {m & 0xffffffff:#x}\ns_mov_b32 exec_hi, {m >> 32:#x}")
    if ztype and opt('l2w1', 0) == 2:
        add(0, lambda: a.vmem(f"buffer_load_dword v3, {S4(WA_)}, s71 offen lds", "pf"))
    if opt('l2pf', 0):
        nt = 'nt' if opt('l2nt', 0) else ''
        s0 = opt('l2s0', 1); n = opt('l2n', 2)
        for k in range(n):
            def h(k=k):
                lanes(k, n, 64)
                a.vmem(f"buffer_load_dword v{d}, {S4(WSP_)}, s68 offen {nt} lds", "pf")
                a("s_mov_b64 exec, -1")
            add(s0 + k, h)
    if opt('l2cw', -1) >= 0:
        def h2():
            a("s_mov_b32 exec_hi, 0")
            a.vmem(f"buffer_load_dword v{d+1}, {S4(WO_)}, s69 offen lds", "pf")
            a("s_mov_b32 exec_hi, 0x7ff")
            a.vmem(f"buffer_load_dword v{d+1}, {S4(WOUT_)}, s70 offen lds", "pf")
            a("s_mov_b32 exec_hi, -1")
        add(opt('l2cw', 0), h2)
    return {st: (lambda fs=fs: a.run(fs)) for st, fs in hk.items()}

def q_prefetch(a, k):
    if not opt('qpf', 1): return
    if k < 2:
        a("v_lshrrev_b32 v31, 4, v1")
        a("v_lshlrev_b32 v31, 12, v31")
        a("v_and_b32 v30, 15, v1")
        a("v_lshl_add_u32 v30, v30, 7, v31")
        a(f"s_lshl_b32 s61, s{sRB}, 2")
        a(f"s_add_u32 s61, s61, s{sCG}")
        a("s_lshl_b32 s61, s61, 2")
        a(f"s_add_u32 s61, s61, s{sQ}")
        a("s_lshl_b32 s61, s61, 15")
        a(f"s_lshl_b32 s62, s{sKS}, 11")
        a("s_add_u32 s61, s61, s62")
        a(f"s_mov_b32 m0, {L_MISC}")
        a(f"s_add_u32 s61, s61, {16384*k}")
        for o in range(0, 128, opt('sec', 128)):
            a.vmem(f"buffer_load_dword v30, {S4(WSP_)}, s61 offen offset:{o} {NT('p')}lds", "pf")
        return
    a("s_lshr_b32 s61, s2, 3")
    a("s_lshl_b32 s61, s61, 2")
    a(f"s_add_u32 s61, s61, s{sQ}")
    a("v_lshlrev_b32 v31, 7, v1")
    a(f"s_mov_b32 m0, {L_MISC}")
    if k == 2:
        a("s_lshl_b32 s62, s61, 13")
        for o in range(0, 128, opt('sec', 128)): a.vmem(f"buffer_load_dword v31, {S4(WO_)}, s62 offen offset:{o} lds", "pf")
    else:
        a(f"s_mul_i32 s63, s61, {86*128}")
        a(f"s_add_u32 s63, s63, {43*128*(k-3)}")
        a("s_mov_b32 exec_hi, 0x7ff")
        for o in range(0, 128, opt('sec', 128)): a.vmem(f"buffer_load_dword v31, {S4(WOUT_)}, s63 offen offset:{o} lds", "pf")
        a("s_mov_b32 exec_hi, -1")

def q_spread_setup(a):
    a("v_lshrrev_b32 v31, 4, v1")
    a("v_lshlrev_b32 v31, 12, v31")
    a("v_and_b32 v30, 15, v1")
    a("v_lshl_add_u32 v12, v30, 7, v31")
    a(f"s_lshl_b32 s64, s{sRB}, 2")
    a(f"s_add_u32 s62, s{sCG}, {opt('trot', 0)}")
    a("s_and_b32 s62, s62, 3")
    a("s_add_u32 s64, s64, s62")
    a("s_lshl_b32 s64, s64, 2")
    a(f"s_add_u32 s64, s64, s{sQ}")
    a("s_lshl_b32 s64, s64, 15")
    a(f"s_lshl_b32 s62, s{sKS}, 11")
    a("s_add_u32 s64, s64, s62")
    a("s_add_u32 s67, s64, 16384")
    a("s_lshr_b32 s61, s2, 3")
    a("s_lshl_b32 s61, s61, 2")
    a(f"s_add_u32 s61, s61, s{sQ}")
    a("v_lshlrev_b32 v13, 7, v1")
    a("s_lshl_b32 s65, s61, 13")
    a(f"s_mul_i32 s66, s61, {86*128}")
    a("s_add_u32 s68, s66, 8192")
    a("v_lshlrev_b32 v14, 10, v1")
    a("s_and_b32 s61, s61, 15")
    a("s_lshl_b32 s71, s61, 15")
    a(f"s_add_u32 s61, s{sCG}, 4")
    a("s_lshl_b32 s61, s61, 7")
    a("s_add_u32 s71, s71, s61")
    a(f"s_add_u32 s61, s2, {opt('mrot', 0)}")
    a("s_and_b32 s61, s61, 127")
    a("s_lshl_b32 s61, s61, 2")
    a(f"s_add_u32 s61, s61, s{sQ}")
    a("s_lshl_b32 s73, s61, 10")
    a(f"s_mul_i32 s74, s61, {11*128}")
def q_spread(a, k, n, which, frac=None, nt=None):
    items = {'s': [(WSP_, 12, 64, 64), (WSP_, 12, 67, 64)], 'c': [(WO_, 13, 65, 64), (WOUT_, 13, 66, 64), (WOUT_, 13, 68, 22)],
             'o': [(WO_, 14, 71, 32)], 'u': [(WOUT_, 13, 66, 64), (WOUT_, 13, 68, 22)],
             'm': [(WO_, 13, 73, 8), (WOUT_, 13, 74, 11)]}[which]
    tot = sum(x[3] for x in items)
    lo, hi = k*tot//n, (k+1)*tot//n
    if frac: lo, hi = frac
    a(f"s_mov_b32 m0, {L_MISC}")
    base = 0
    for R, v, so, cnt in items:
        l, h = max(lo - base, 0), min(hi - base, cnt)
        if h > l:
            m = ((1 << h) - 1) ^ ((1 << l) - 1)
            a(f"s_mov_b32 exec_lo, {m & 0xffffffff:#x}\ns_mov_b32 exec_hi, {m >> 32:#x}")
            a.vmem(f"buffer_load_dword v{v}, {S4(R)}, s{so} offen {'nt ' if (opt('ntp' + which, 1 if which == 's' else 0) if nt is None else nt) else ''}lds", "pf")
        base += cnt
    a("s_mov_b64 exec, -1")

def z_slice_touch(a):
    a("s_lshr_b32 s61, s2, 3")
    a("s_and_b32 s61, s61, 3")
    a("s_lshl_b32 s61, s61, 2")
    a(f"s_add_u32 s61, s61, s{sQ}")
    a(f"s_add_u32 s63, s{sCG}, 4")
    a("s_lshl_b32 s63, s63, 7")
    a("s_lshl_b32 s62, s61, 15")
    a("s_add_u32 s62, s62, s63")
    a(f"s_mul_i32 s61, s61, {43*1024}")
    a("s_add_u32 s63, s63, s61")
    a("v_lshlrev_b32 v31, 10, v1")
    a(f"s_mov_b32 m0, {L_MISC}")
    a("s_mov_b32 exec_hi, 0")
    a.vmem(f"buffer_load_dword v31, {S4(WO_)}, s62 offen lds", "pf")
    a("s_mov_b32 exec_hi, 0x7ff")
    a.vmem(f"buffer_load_dword v31, {S4(WOUT_)}, s63 offen lds", "pf")
    a("s_mov_b32 exec_hi, -1")

def x_group_h(a, step, sl, tag):
    a(f"s_add_u32 s61, s{sK0A}, {step}")
    a("s_and_b32 s61, s61, 7")
    a("s_lshl_b32 s58, s61, 7")
    a("s_add_u32 s62, s58, s53")
    a(f"s_add_u32 m0, s60, {sl}")
    a("s_add_u32 s63, s62, 1024")
    a.vmem(f"buffer_load_dwordx4 v4, {S4(X_)}, s62 offen {NT('x')}lds", tag)
    a.vmem(f"buffer_load_dwordx4 v5, {S4(X_)}, s62 offen offset:1024 {NT('x')}lds", tag)
    a(f"s_add_u32 m0, s60, {sl + 2048}")
    a("s_nop 0")
    a.vmem(f"buffer_load_dwordx4 v4, {S4(X_)}, s63 offen {NT('x')}lds", tag)
    a.vmem(f"buffer_load_dwordx4 v5, {S4(X_)}, s63 offen offset:1024 {NT('x')}lds", tag)

def dots_x(a, fr, acc_s, acc_q, ones):
    for i in range(4):
        a(f"v_dot2_f32_bf16 v{acc_s}, v{fr+i}, v{ones}, v{acc_s}")
        a(f"v_dot2_f32_bf16 v{acc_q}, v{fr+i}, v{fr+i}, v{acc_q}")

def diag_sel(a, dst, gram):
    a("s_mov_b32 s62, 0x22222222\ns_mov_b32 s63, 0x22222222")
    a(f"v_cndmask_b32 v{dst}, v{gram}, v{gram+1}, s[62:63]")
    a("s_mov_b32 s62, 0x44444444\ns_mov_b32 s63, 0x44444444")
    a(f"v_cndmask_b32 v{dst}, v{dst}, v{gram+2}, s[62:63]")
    a("s_mov_b32 s62, 0x88888888\ns_mov_b32 s63, 0x88888888")
    a(f"v_cndmask_b32 v{dst}, v{dst}, v{gram+3}, s[62:63]")
DIAG_LO, DIAG_HI = 0x00f0000f, 0xf0000f00

def row_finalize(a, s_, q_, t):
    a(f"v_mul_f32 v{s_}, {f2u(1.0/512):#x}, v{s_}")
    a(f"v_mul_f32 v{q_}, {f2u(1.0/512):#x}, v{q_}")
    a(f"v_fma_f32 v{q_}, -v{s_}, v{s_}, v{q_}")
    a(f"v_max_f32 v{q_}, 0, v{q_}")
    a(f"v_add_f32 v{q_}, {f2u(1e-5):#x}, v{q_}")

def nonce_publish(a):
    l = a.label("Lnn")
    a(f"s_or_b32 s61, s2, s{sW}")
    a("s_cmp_lg_u32 s61, 0")
    a(f"s_cbranch_scc1 {l}")
    a("s_or_b32 s62, s84, 1")
    a("v_mov_b32 v30, s62")
    a("v_lshlrev_b32 v31, 6, v1")
    a("s_mov_b64 exec, 15")
    a(f"buffer_store_dword v30, v31, {S4(DBG_)}, 0 offen sc1")
    a("s_mov_b64 exec, -1")
    a(f"{l}:")

def nonce_check(a):
    a.vmwait("poll")
    def chk():
        a(f"v_readfirstlane_b32 s{sT}, v25")
        a(f"s_cmp_lg_u32 s{sT}, 0")
    def iss():
        a("v_mov_b32 v31, 0")
        a(f"buffer_load_dword v25, v31, {S4(DBG_)}, 0 offen sc1")
    spin(a, iss, chk)

def wave_flag(a):
    a(f"s_lshl_b32 s61, s{sGRP}, 4")
    a(f"s_add_u32 s61, s61, s{sRB}")
    a("s_lshl_b32 s61, s61, 2")
    a(f"s_add_u32 s61, s61, s{sQ}")
    a("s_lshl_b32 s61, s61, 7")
    a(f"s_add_u32 s61, s61, {F1_OFF}")
    a(f"v_mov_b32 v30, s{sT}")
    a("v_mov_b32 v31, 0")
    a("s_mov_b64 exec, 1")
    a.vmem(f"buffer_store_dword v30, v31, {S4(WS_)}, s61 offen sc1", "flag")
    a("s_mov_b64 exec, -1")

def spin(a, issue, check_ok, limit=0x8000):
    lp = a.label("Lspin"); ok = a.label("Lok")
    check_ok()
    a(f"s_cbranch_scc1 {ok}")
    a("s_mov_b32 s63, 0")
    a(f"{lp}:")
    issue()
    a("s_waitcnt vmcnt(0)")
    a("s_add_u32 s63, s63, 1")
    a(f"s_cmp_gt_u32 s63, {limit}")
    a(f"s_cbranch_scc1 {ok}")
    check_ok()
    a(f"s_cbranch_scc0 {lp}")
    a(f"{ok}:")

def az_helper(a, fused):
    rowtile_voffs(a, 4, 5, 10)
    for i in range(3):
        a(f"v_add_u32 v3, {64*i}, v1")
        a("v_mul_u32_u24 v30, 683, v3")
        a("v_lshrrev_b32 v30, 13, v30")
        a("v_mul_u32_u24 v31, 12, v30")
        a("v_sub_u32 v31, v3, v31")
        a("v_lshrrev_b32 v3, 2, v30")
        a("v_and_b32 v3, 2, v3")
        a("v_xor_b32 v31, v3, v31")
        a("v_mul_u32_u24 v30, 2752, v30")
        a(f"v_lshl_add_u32 v{20+i}, v31, 4, v30")
        if i: a(f"v_subrev_u32 v{20+i}, {1024*i}, v{20+i}")
    a(f"s_lshl_b32 s53, s{sRB}, 2")
    a(f"s_add_u32 s53, s53, s{sQ}")
    a("s_lshl_b32 s53, s53, 15")
    a(f"s_mul_i32 s55, s{sGRP}, 6")
    a("s_min_u32 s55, s55, 40")
    a(f"s_mul_i32 s54, s{sQ}, {16*2752}")
    a("s_lshl_b32 s61, s55, 5")
    a("s_add_u32 s54, s54, s61")
    a(f"s_mul_i32 s56, s{sQ}, 3072")
    a(f"s_lshl_b32 s60, s{sQ}, 12")
    def wgroup(kreg_ready, step, dst, add, tag):
        if not kreg_ready:
            a(f"s_add_u32 s61, s{sK0A}, {step}")
            a("s_and_b32 s61, s61, 7")
        a(f"s_mul_i32 s63, s61, {64*2752}")
        a("s_add_u32 s63, s63, s54")
        a(f"s_add_u32 m0, s56, {dst}")
        if add: a(f"s_add_u32 s63, s63, {add}")
        else: a("s_nop 0")
        for i in range(3):
            a.vmem(f"buffer_load_dwordx4 v{20+i}, {S4(WA_)}, s63 offen offset:{1024*i} {NT('w')}lds", tag)
    def ga(step):
        x_group_h(a, step, ZSLOT[step % 5], ("A", step))
        wgroup(True, step, ZSLOT[step % 5] + 16384, 1376, ("A", step))
    npro = opt('proZ', 2)
    early_srds(a)
    srd(a, WA_, 72, D*F2*2)
    ga(0)
    for st in range(1, npro): ga(st)
    if opt('sst', 0): a.stamp()
    a.split("LF_hz1")
    if opt('sst', 0): a.stamp()
    late_srds(a)
    wsp_setup_h(a)
    a("v_lshlrev_b32 v10, 3, v1")
    a(f"s_lshl_b32 s64, s{sRB}, 5")
    a(f"s_add_u32 s64, s64, s{sQ}")
    a("s_lshl_b32 s64, s64, 9")
    a(f"s_add_u32 s64, s64, {WS_ST2}")
    a("s_add_u32 s65, s64, 4096\ns_add_u32 s66, s64, 8192\ns_add_u32 s67, s64, 12288")
    a("v_lshlrev_b32 v11, 4, v1")
    a(f"s_mul_i32 s61, s{sQ}, 6144")
    a(f"s_add_u32 s61, s61, {L_PARK}")
    a("v_add_u32 v11, s61, v11")
    a(f"s_lshl_b32 s61, s{sQ}, 8")
    a(f"s_add_u32 s61, s61, {L_XCH}")
    a("v_lshrrev_b32 v12, 1, v1")
    a("v_lshl_add_u32 v12, v12, 2, s61")
    a("v_lshrrev_b32 v13, 4, v1")
    a("v_lshl_add_u32 v13, v13, 5, s61")
    a("v_lshrrev_b32 v3, 5, v1")
    a("v_mul_u32_u24 v3, 3072, v3")
    a("v_bfe_u32 v30, v1, 4, 1")
    a("v_lshl_add_u32 v3, v30, 9, v3")
    a("v_and_b32 v30, 15, v1")
    a("v_lshl_add_u32 v14, v30, 4, v3")
    a(f"s_lshl_b32 s57, s{sGRP}, 4")
    a(f"s_add_u32 s57, s57, s{sRB}")
    a("s_lshl_b32 s57, s57, 2")
    a(f"s_add_u32 s57, s57, s{sQ}")
    a("s_mul_i32 s57, s57, 6144")
    a(f"s_add_u32 s57, s57, {WS_Z2N}")
    a("v_mov_b32 v16, 0xffff0000")
    a.stamp()
    nw1 = 0
    for s in range(8):
        a.vmwait(("A", s))
        a("s_barrier")
        if s in (0, 1, 4): a.stamp()
        if s == 0: a(f"s_load_dword s{sT}, s[90:91], 128")
        if s + npro < 8: ga(s + npro)
        if s == 0: get_nonce(a, -1)
        if s == opt('st1z', 5): ln1_fetch_issue(a, False)
        if s == 7: ln1_fetch_finish(a, False)
        if s + npro >= 8:
            for u in (nw1, nw1 + 1): wgroup(False, u, W1SL[u], 0, ("W1", u))
            nw1 += 2
    a.stamp()
    a("s_barrier")
    for u in range(nw1, 8): wgroup(False, u, W1SL[u], 0, ("W1", u))
    if opt('zcw', 1) == 1: cw_load(a, 0, 38)
    a.vmwait(("W1", 7))
    a("s_barrier")
    a(f"s_setprio {opt('nprio', 3)}")
    for j in range(6): a(f"ds_read_b128 {V(56+8*j+4)}, v11 offset:{1024*j}")
    def iss():
        for c in range(8):
            a(f"buffer_load_dwordx2 {V(32+2*c,2)}, v10, {S4(WS_)}, s{64 + (c>>1)} offen offset:{2048*(c&1)} sc1")
    def chk():
        for c in range(8): a(f"v_xor_b32 v{48+c}, s{sT}, v{33+2*c}")
        a("v_or3_b32 v48, v48, v49, v50\nv_or3_b32 v51, v51, v52, v53\nv_or3_b32 v48, v48, v54, v55")
        a("v_or_b32 v48, v48, v51")
        a("v_cmp_ne_u32 vcc, 0, v48")
        a("s_cmp_eq_u64 vcc, 0")
    a("s_waitcnt lgkmcnt(0)")
    for j in range(6):
        for w in range(4):
            u = 56 + 8*j
            if w < 3:
                a(f"v_lshlrev_b32 v{u+2*w}, 16, v{u+4+w}")
                a(f"v_and_b32 v{u+2*w+1}, v16, v{u+4+w}")
            else:
                a(f"v_lshlrev_b32 v{u+6}, 16, v{u+7}")
                a(f"v_and_b32 v{u+7}, v16, v{u+7}")
    zcount(a, 62, 58)
    if opt('stdelay', 8): a(f"s_sleep {opt('stdelay', 8)}")
    iss(); a("s_waitcnt vmcnt(0)")
    spin(a, iss, chk)
    a.stamp()
    for k in (2, 4, 6): a(f"v_add_f32 v{32+2*k}, v{32+2*k}, v{34+2*k}")
    a("v_add_f32 v32, v32, v34")
    a("v_add_f32 v36, v36, v40")
    a("v_add_f32 v32, v32, v44")
    a("v_add_f32 v32, v32, v36")
    a(f"v_mul_f32 v32, {f2u(1.0/688):#x}, v32")
    a("s_nop 1")
    a("v_mov_b32_dpp v33, v32 quad_perm:[1,0,3,2] row_mask:0xf bank_mask:0xf")
    a("v_fma_f32 v33, -v32, v32, v33")
    a("v_max_f32 v33, 0, v33")
    a(f"v_add_f32 v33, {f2u(1e-5):#x}, v33")
    a("v_rsq_f32 v33, v33")
    a("s_nop 0")
    a("v_mul_f32_e64 v48, -v32, v33")
    a("v_mov_b32 v49, v33")
    a("s_nop 0")
    for w in range(8): a(f"v_mov_b32_dpp v{40+w}, v48 row_newbcast:{2*w} row_mask:0xf bank_mask:0xf")
    for w in range(8): a(f"v_mov_b32_dpp v{32+w}, v49 row_newbcast:{2*w} row_mask:0xf bank_mask:0xf")
    for j in range(6):
        u = 56 + 8*j; z = u
        for w in range(8): a(f"v_fma_f32 v{u+w}, v{u+w}, v{32+w}, v{40+w}")
        for w in range(4): a(f"v_cvt_pk_bf16_f32 v{z+w}, v{u+2*w}, v{u+2*w+1}")
        a(f"s_cmp_gt_u32 s58, {j}")
        a(f"s_cselect_b32 s61, s57, {OOB}")
        a.vmem(f"buffer_store_dwordx4 {V(z)}, v14, {S4(WS_)}, s61 offen offset:{(j>>1)*1024 + (j&1)*256} sc1", "z2n")
    a("s_setprio 0")
    a.stamp()
    a.vmwait("z2n")
    wave_flag(a)
    a.stamp()
    a("s_waitcnt lgkmcnt(0)")
    a("s_barrier")
    for v in range(opt('wp', 2)): wsp_group_h(a, v)
    a(f"s_mov_b32 s72, {opt('wp', 2)}")
    if opt('zcw', 1) == 0: cw_load(a, 0, 38)

def aq_compute(a, fused):
    AQ, AK, AV, HK, HV = 32, 64, 96, 128, 136
    ONES, SUM, GRM, XA = 28, 224, 232, 240
    CWQ = [240, 128, 132, 136, 140, 244]
    ring = list(range(144, 200, 4))
    MC, MPN, MPA, MB = 200, 204, 208, 216
    a(f"s_lshr_b32 s5, s{sQ}, 1")
    a(f"s_and_b32 s46, s{sQ}, 1")
    a("s_lshl_b32 s61, s5, 13")
    rowfrag_addr(a, 10, 11, "s61")
    rowfrag_addr(a, 12, 13, 16384)
    qw_addr(a, 14)
    a("v_add_u32 v14, 18432, v14")
    a("s_lshl_b32 s61, s46, 6")
    a("v_xor_b32 v14, s61, v14")
    a("v_xor_b32 v15, 32, v14")
    a("v_and_b32 v3, 15, v1")
    a("v_lshrrev_b32 v30, 4, v1")
    a("v_lshlrev_b32 v30, 2, v30")
    a("v_sub_u32 v31, v3, v30")
    a(f"v_mov_b32 v224, {NEG:#x}")
    a("v_mov_b32 v225, 0xffff")
    a("v_mov_b32 v226, 0xffff0000")
    for i in range(4):
        a(f"v_subrev_u32 v227, {i}, v31")
        a("v_cmp_gt_u32 vcc, 8, v227")
        a("v_cmp_gt_i32 s[62:63], -8, v227")
        a("s_nop 0")
        a(f"v_cndmask_b32_e64 v{MC+i}, v224, 0, vcc")
        a(f"v_cndmask_b32_e64 v{228+i}, 0, v{225 + (i&1)}, vcc")
        a(f"v_cndmask_b32_e64 v{MPN+i}, v224, 0, s[62:63]")
    a(f"v_or_b32 v{MB}, v228, v229")
    a(f"v_or_b32 v{MB+1}, v230, v231")
    a("s_lshl_b32 s61, s5, 8")
    a(f"s_add_u32 s61, s61, {L_TAB}")
    a("v_and_b32 v27, 0x30, v1")
    a("v_add_u32 v218, s61, v27")
    a("v_lshl_add_u32 v219, v3, 2, s61")
    a("s_lshl_b32 s61, s46, 7")
    a(f"s_add_u32 s61, s61, {L_CW}")
    a("v_add_u32 v220, s61, v27")
    a("v_lshl_add_u32 v221, v3, 2, s61")
    a("v_lshlrev_b32 v222, 4, v1")
    a("s_lshl_b32 s61, s46, 12")
    a(f"s_add_u32 s61, s61, {L_XCH}")
    a("v_add_u32 v223, s61, v222")
    a(f"s_lshl_b32 s53, s{sRB}, 1")
    a("s_add_u32 s53, s53, s5")
    a("s_lshl_b32 s53, s53, 4")
    a(f"s_add_u32 s53, s53, s{sGRP}")
    a("s_lshl_b32 s53, s53, 1")
    a("s_add_u32 s53, s53, s46")
    a("s_lshl_b32 s53, s53, 11")
    a(f"s_add_u32 s53, s53, {WS_O}")
    a("s_add_u32 s54, s53, 32768")
    a("v_lshrrev_b32 v27, 4, v1")
    a("v_lshlrev_b32 v27, 9, v27")
    a("v_lshl_add_u32 v4, v3, 4, v27")
    AT = 16
    def build(halo, hp):
        fr = {'ones': dict(step=0, reg=ONES, reads=None)}; mf = []
        for s in range(8):
            for kk in range(2):
                for tl in range(4):
                    fr[('x', s, kk, tl)] = dict(step=s, reg=None, reads=[lambda r, kk=kk, tl=tl: f"ds_read_b128 {V(r)}, v{AT+kk} offset:{tl*2048}"])
                fr[('h', s, kk)] = dict(step=s, reg=None, reads=[lambda r, kk=kk: f"ds_read_b128 {V(r)}, v{AT+2+kk}"])
                for m in range(3):
                    for e in range(2):
                        w = ('w', s, kk, m, e)
                        fr[w] = dict(step=s, reg=None, reads=[(lambda r, hh=hh, kk=kk, m=m, e=e: f"ds_read_b64_tr_b16 {V(r+2*hh,2)}, v{AT+4+e} offset:{kk*12288 + m*1024 + hh*512}") for hh in range(2)])
                        for tl in range(4):
                            d = (AQ, AK, AV)[m] + (e*4+tl)*4
                            mf.append((d, w, ('x', s, kk, tl)) if m < 2 else (d, ('x', s, kk, tl), w))
                        if halo and m == 1: mf.append((HK+4*e, w, ('h', s, kk)))
                        if halo and m == 2: mf.append((HV+4*e, ('h', s, kk), w))
                        if halo == (m*2+e == 0): mf.append((CWQ[m*2+e], 'ones', w))
        return mf, fr
    def stats_out(halo):
        a("s_nop 6")
        for k in ([0] if halo else range(1, 6)): a(f"ds_write_b32 v221, v{CWQ[k]} offset:{256*(k>>1) + 64*(k&1)}")
    def pre(s):
        for r in range(6): a(f"v_add_u32 v{AT+r}, {QSLOT[s % 3]}, v{10+r}")
    a("v_mov_b32 v26, v30")
    a('v_mov_b32 v27, v3'); l2_setup(a, 5, False)
    a("v_mov_b32 v27, v3")
    ln1_publish(a)
    a("v_mov_b32 v3, v27")
    a("v_mov_b32 v30, v26")
    lr1 = a.label("Lrh1"); lj = a.label("Lqj")
    a("s_cmp_lg_u32 s5, 0")
    a(f"s_cbranch_scc1 {lr1}")
    a("v_lshlrev_b32 v3, 1, v3")
    a("v_sub_u32 v31, v30, v3")
    a(f"s_cmp_eq_u32 s{sRB}, 0")
    a("s_cselect_b32 s61, 1000, 0")
    a("v_subrev_u32 v31, s61, v31")
    for T in range(2):
        for i in range(4):
            if (i ^ T) & 1:
                a(f"v_mov_b32 v{MPA+4*T+i}, v224")
            else:
                a(f"v_cmp_le_i32 vcc, {T + 2 - i}, v31")
                a("s_nop 1")
                a(f"v_cndmask_b32_e64 v{MPA+4*T+i}, v224, 0, vcc")
    n0 = a.nst
    for halo in (True, False):
        if not halo:
            a(f"{lr1}:")
            for i in range(8): a(f"v_mov_b32 v{MPA+i}, v{MPN+(i&3)}")
        for r in range(4): a(f"v_mov_b32 v{ONES+r}, 0x3f803f80")
        a.nst = n0
        a.stamp()
        mf, fr = build(halo, 0)
        vm0 = list(a.vm)
        gemm_stream(a, mf, fr, ring, opt('LA', 10), opt('cover', 3), pre, stamps=(0, 1, 4), hooks=l2_hooks(a, 5, False))
        vm1 = list(a.vm); a.vm = vm0
        a.stamp()
        stats_out(halo)
        if halo: a(f"s_branch {lj}")
    a(f"{lj}:")
    a.vm = vm1
    a("s_waitcnt lgkmcnt(0)")
    a("s_barrier")
    for k in range(2): a(f"ds_read_b128 {V(152+4*k)}, v220 offset:{256 + 64*k}")
    for tl in range(4):
        a(f"ds_read_b32 v{162+tl}, v219 offset:{64*tl}")
        a(f"ds_read_b32 v{166+tl}, v219 offset:{64*tl + TP}")
    for e in range(2): a(f"ds_read_b32 v{160+e}, v221 offset:{512 + 64*e}")
    a("s_waitcnt lgkmcnt(2)")
    for tl in range(4):
        a(f"ds_read_b128 {V(172+4*tl)}, v218 offset:{64*tl}")
        a(f"ds_read_b128 {V(10+4*tl)}, v218 offset:{64*tl + TP}")
    for k in range(2): a(f"ds_read_b128 {V(144+4*k)}, v220 offset:{64*k}")
    def corr_t(x, cw, mreg, rreg):
        for p in range(2): a(f"v_pk_fma_f32 {V(x+2*p,2)}, {V(cw+2*p,2)}, {V(mreg&~1,2)}, {V(x+2*p,2)} op_sel:[0,{mreg&1},0] op_sel_hi:[1,{mreg&1},1] neg_lo:[1,0,0] neg_hi:[1,0,0]")
        for p in range(2): a(f"v_pk_mul_f32 {V(x+2*p,2)}, {V(x+2*p,2)}, {V(rreg&~1,2)} op_sel:[0,{rreg&1}] op_sel_hi:[1,{rreg&1}]")
    def corr_c(x, mv, rv, cw):
        for p in range(2): a(f"v_pk_fma_f32 {V(x+2*p,2)}, {V(mv+2*p,2)}, {V(cw&~1,2)}, {V(x+2*p,2)} op_sel:[0,{cw&1},0] op_sel_hi:[1,{cw&1},1] neg_lo:[1,0,0] neg_hi:[1,0,0]")
        for p in range(2): a(f"v_pk_mul_f32 {V(x+2*p,2)}, {V(x+2*p,2)}, {V(rv+2*p,2)}")
    def pack(dst, x):
        for p in range(2): a(f"v_cvt_pk_bf16_f32 v{dst+p}, v{x+2*p}, v{x+2*p+1}")
    KV = 224
    def kp(e, tl): return KV + 8*tl + 2*e
    def vp(e, tl): return KV + 8*tl + 4 + 2*e
    for tl in (2, 3, 0, 1):
        for e in range(2): corr_t(AK + (e*4+tl)*4, 152+4*e, 162+tl, 166+tl)
        for e in range(2): pack(kp(e, tl), AK + (e*4+tl)*4)
    a("s_waitcnt lgkmcnt(0)")
    for tl in (2, 3, 0, 1):
        for e in range(2): corr_c(AV + (e*4+tl)*4, 172+4*tl, 10+4*tl, 160+e)
        for e in range(2): pack(vp(e, tl), AV + (e*4+tl)*4)
        if tl == 3:
            lx = a.label("Lx")
            a("s_cmp_lg_u32 s5, 0")
            a(f"s_cbranch_scc1 {lx}")
            for k in range(4): a(f"ds_write_b128 v223, {V(KV+16+4*k)} offset:{1024*k}")
            a("ds_read_b32 v26, v219 offset:512")
            a(f"ds_read_b32 v27, v219 offset:{512 + TP}")
            a(f"ds_read_b128 {V(188)}, v218 offset:512")
            a(f"ds_read_b128 {V(192)}, v218 offset:{512 + TP}")
            a(f"{lx}:")
    PV = 64
    lh = a.label("Lnh")
    a("s_cmp_lg_u32 s5, 0")
    a(f"s_cbranch_scc1 {lh}")
    a("s_waitcnt lgkmcnt(0)")
    for e in range(2):
        corr_t(HK+4*e, 152+4*e, 26, 27)
        corr_c(HV+4*e, 188, 192, 160+e)
    for e in range(2):
        for T in range(2):
            pack(PV + 8*T + 2*e, HK+4*e)
            pack(PV + 8*T + 4 + 2*e, HV+4*e)
    a(f"{lh}:")
    QP = 96
    for e in range(2):
        for tl in range(4):
            x = AQ + (e*4+tl)*4; m_ = 162 + tl
            for p in range(2): a(f"v_pk_fma_f32 {V(x+2*p,2)}, {V(144+4*e+2*p,2)}, {V(m_&~1,2)}, {V(x+2*p,2)} op_sel:[0,{m_&1},0] op_sel_hi:[1,{m_&1},1] neg_lo:[1,0,0] neg_hi:[1,0,0]")
    for k in range(8): pack(QP+2*k, AQ+4*k)
    for tl in range(4): a(f"v_mul_f32 v{10+tl}, {f2u(0.25*LOG2E):#x}, v{166+tl}")
    for r in range(2): a(f"v_mov_b32 v{14+r}, 0x3f803f80")
    a("s_waitcnt lgkmcnt(0)")
    a("s_barrier")
    lp = a.label("Lp")
    a("s_cmp_eq_u32 s5, 0")
    a(f"s_cbranch_scc1 {lp}")
    for k in range(4): a(f"ds_read_b128 {V(PV+4*k)}, v223 offset:{1024*k}")
    a(f"{lp}:")
    SC, SP = 112, 144
    U = range(8)
    def kprev(u): e, tl = u//4, u%4; return kp(e, tl-2) if tl >= 2 else PV + 8*tl + 2*e
    def vprev(u): e, tl = u//4, u%4; return vp(e, tl-2) if tl >= 2 else PV + 8*tl + 4 + 2*e
    for u in U: a(mfma16(SC+4*u, kp(u//4, u%4), QP+2*u, V(MC)))
    for u in (2, 3, 6, 7): a(mfma16(SP+4*u, kprev(u), QP+2*u, V(MPN)))
    a("s_waitcnt lgkmcnt(0)")
    for u in (0, 1, 4, 5): a(mfma16(SP+4*u, kprev(u), QP+2*u, V(MPA+4*(u&1))))
    MX, TM = 32, 40
    for u in (2, 3, 6, 7, 0, 1, 4, 5):
        for i in range(4): a(f"v_max_f32 v{SC+4*u+i}, v{SC+4*u+i}, v{SP+4*u+i}")
    for u in U: a(f"v_max3_f32 v{MX+u}, v{SC+4*u}, v{SC+4*u+1}, v{SC+4*u+2}")
    for u in U: a(f"v_max_f32 v{MX+u}, v{MX+u}, v{SC+4*u+3}")
    a("s_nop 0")
    for b in (0, 4):
        a(f"v_permlane32_swap_b32 v{MX+b}, v{MX+b+1}")
        a(f"v_permlane32_swap_b32 v{MX+b+2}, v{MX+b+3}")
    for b in (0, 4):
        a(f"v_max_f32 v{MX+b}, v{MX+b}, v{MX+b+1}")
        a(f"v_max_f32 v{MX+b+2}, v{MX+b+2}, v{MX+b+3}")
    a("s_nop 0")
    for b in (0, 4): a(f"v_permlane16_swap_b32 v{MX+b}, v{MX+b+2}")
    for b in (0, 4): a(f"v_max_f32 v{MX+b}, v{MX+b}, v{MX+b+2}")
    for b in (0, 4): a(f"v_mov_b32 v{MX+b+2}, v{MX+b}")
    a("s_nop 1")
    for b in (0, 4): a(f"v_permlane16_swap_b32 v{MX+b}, v{MX+b+2}")
    for b in (0, 4):
        a(f"v_mov_b32 v{MX+b+1}, v{MX+b}")
        a(f"v_mov_b32 v{MX+b+3}, v{MX+b+2}")
    a("s_nop 0")
    for b in (0, 4):
        a(f"v_permlane32_swap_b32 v{MX+b}, v{MX+b+1}")
        a(f"v_permlane32_swap_b32 v{MX+b+2}, v{MX+b+3}")
    for u in range(0, 8, 2): a(f"v_pk_mul_f32 {V(MX+u,2)}, {V(MX+u,2)}, {V(10+(u&3),2)}")
    for u in U:
        c_ = 10 + (u & 3)
        for p in range(2): a(f"v_pk_fma_f32 {V(SC+4*u+2*p,2)}, {V(SC+4*u+2*p,2)}, {V(c_&~1,2)}, {V(MX+(u&~1),2)} op_sel:[0,{c_&1},{u&1}] op_sel_hi:[1,{c_&1},{u&1}] neg_lo:[0,0,1] neg_hi:[0,0,1]")
    for u in U:
        for i in range(4): a(f"v_exp_f32 v{SC+4*u+i}, v{SC+4*u+i}")
    PC, PP = 144, 160
    for u in U: pack(PP+2*u, SC+4*u)
    OA = 176
    for u in U:
        a(mfma16(SC+4*u, 14, PP+2*u, "0"))
        for p in range(2): a(f"v_and_b32 v{PC+2*u+p}, v{MB+p}, v{PP+2*u+p}")
    for u in U:
        for p in range(2): a(f"v_xor_b32 v{PP+2*u+p}, v{PC+2*u+p}, v{PP+2*u+p}")
        a(mfma16(OA+4*u, vp(u//4, u%4), PC+2*u, "0"))
    for u in U:
        a(mfma16(OA+4*u, vprev(u), PP+2*u))
        a(f"v_rcp_f32 v{MX+u}, v{SC+4*u}")
    a("s_nop 1")
    for u in U:
        for p in range(2): a(f"v_pk_mul_f32 {V(OA+4*u+2*p,2)}, {V(OA+4*u+2*p,2)}, {V(MX+(u&~1),2)} op_sel:[0,{u&1}] op_sel_hi:[1,{u&1}]")
    for tl in range(4):
        for e in range(2): pack(112 + 4*tl + 2*e, OA + 4*(e*4+tl))
    for tl in range(4):
        for p in range(2): a(f"v_permlane32_swap_b32 v{112+4*tl+p}, v{112+4*tl+2+p}")
    a.vmwait("b")
    for tl in range(4):
        a.vmem(f"buffer_store_dwordx4 {V(112+4*tl)}, v4, {S4(WS_)}, s{53+(tl>>1)} offen offset:{256*(tl&1)} sc1", "o")
    a(f"s_lshl_b32 s61, s{sRB}, 3")
    a(f"s_add_u32 s61, s61, s{sGRP}")
    a("s_lshl_b32 s61, s61, 2")
    a(f"s_add_u32 s61, s61, s{sQ}")
    a("s_lshl_b32 s61, s61, 7")
    a(f"s_add_u32 s75, s61, {FO_OFF}")
    a.stamp()

def aq_helper(a, fused):
    early = opt('qearly', 1); c6, c7, c8 = opt('c6', 8), opt('c7', 22), opt('c8', 30)
    PFS = [int(c, 16) for c in str(opt('pfs', 55234))]
    rowtile_voffs(a, 4, 5, 10)
    a("v_bfe_u32 v3, v1, 4, 1")
    a("v_lshlrev_b32 v3, 1, v3")
    a("v_and_b32 v30, 7, v1")
    a("v_xor_b32 v30, v30, v3")
    a("v_lshrrev_b32 v3, 3, v1")
    a("v_mul_u32_u24 v3, 3072, v3")
    a("v_lshl_add_u32 v6, v30, 4, v3")
    a("v_xor_b32 v30, 4, v30")
    a("v_lshl_add_u32 v7, v30, 4, v3")
    a(f"v_add_u32 v7, {8*3072}, v7")
    a("v_lshrrev_b32 v3, 4, v1")
    a(f"s_lshl_b32 s61, s{sQ}, 1")
    a("v_add_u32 v3, s61, v3")
    a("v_and_b32 v30, 7, v1")
    a("v_xor_b32 v30, v30, v3")
    a("v_and_b32 v30, 7, v30")
    a("v_lshrrev_b32 v3, 3, v1")
    a("v_lshlrev_b32 v3, 10, v3")
    a("v_lshl_add_u32 v20, v30, 4, v3")
    a(f"s_lshl_b32 s53, s{sRB}, 7")
    a("s_sub_u32 s55, s53, 16")
    a("s_max_i32 s55, s55, 0")
    a(f"s_lshl_b32 s61, s{sQ}, 2")
    a("s_add_u32 s55, s55, s61")
    a("s_lshl_b32 s55, s55, 10")
    a(f"s_lshl_b32 s61, s{sQ}, 5")
    a("s_add_u32 s53, s53, s61")
    a("s_lshl_b32 s53, s53, 10")
    a(f"s_mul_i32 s54, s{sQ}, {16*3072}")
    a(f"s_lshl_b32 s61, s{sGRP}, 7")
    a("s_add_u32 s54, s54, s61")
    a(f"s_mul_i32 s56, s{sQ}, 6144")
    a(f"s_lshl_b32 s57, s{sQ}, 9")
    a(f"s_lshl_b32 s60, s{sQ}, 12")
    def ga(step):
        sl = QSLOT[step % 3]; tag = ("A", step)
        x_group_h(a, step, sl, tag)
        a(f"s_mul_i32 s63, s61, {64*3072}")
        a("s_add_u32 s63, s63, s54")
        a(f"s_add_u32 m0, s56, {sl + 18432}")
        a("s_add_u32 s62, s58, s55")
        for m in range(3): a.vmem(f"buffer_load_dwordx4 v6, {S4(WA_)}, s63 offen offset:{1024*m} {NT('w')}lds", tag)
        a(f"s_add_u32 m0, s56, {sl + 18432 + 3072}")
        a("s_nop 0")
        for m in range(3): a.vmem(f"buffer_load_dwordx4 v7, {S4(WA_)}, s63 offen offset:{1024*m} {NT('w')}lds", tag)
        a(f"s_add_u32 m0, s57, {sl + 16384}")
        a("s_mov_b32 exec_hi, 0")
        a.vmem(f"buffer_load_dwordx4 v20, {S4(X_)}, s62 offen {NT('x')}lds", tag)
        a("s_mov_b32 exec_hi, -1")
    early_srds(a)
    srd(a, WA_, 66, D*1536*2)
    ga(0)
    ga(1)
    if opt('proQ', 2) == 3: ga(2)
    if opt('sst', 0): a.stamp()
    a.split("LF_hq1")
    if opt('sst', 0): a.stamp()
    late_srds(a)
    if fused: wsp_setup_h(a)
    q_spread_setup(a)
    a.stamp()
    for s in range(8):
        a.vmwait(("A", s))
        a("s_barrier")
        if s in (0, 1, 4): a.stamp()
        if s == 0: a(f"s_load_dword s{sT}, s[90:91], 128")
        if (0 if opt('proQ', 2) == 2 else 1) <= s <= 5: ga(s + 2)
        if s == 0: get_nonce(a, -1)
        if s == opt('st1q', 5): ln1_fetch_issue(a, True)
        if s == 7: ln1_fetch_finish(a, True)
        if s == opt('mt', 0): q_spread(a, 0, 1, 'm')
        s0 = opt('sp0', 3)
        if s0 <= s < 6: q_spread(a, s - s0, 6 - s0, 's')
        if s == opt('retouch', 6): q_spread(a, 0, 1, 's', nt=0)
        if s == opt('qcw', 9): cw_load(a, 0, 16)
        if s == 7:
            for v in (0, 1, 6)[:opt('w7', 3)]: wsp_group_h(a, v)
    a.stamp()
    a("s_barrier")
    wt = opt('wtab', 4)
    if opt('qcw', 9) == 8: cw_load(a, 0, 16)
    rest = [v for v in range(NWS) if v not in (0, 1, 6)[:opt('w7', 3)]]
    for v in rest[:wt]: wsp_group_h(a, v)
    a("s_barrier")
    for v in rest[wt:]: wsp_group_h(a, v)
    if opt('qcw', 9) == 9: cw_load(a, 0, 16)
    a(f"s_mov_b32 s72, {NWS}")

def flag_store(a, which):
    if which == "F1":
        a(f"s_lshl_b32 s61, s{sRB}, 3")
        a(f"s_add_u32 s61, s61, s{sGRP}")
        off = F1_OFF
    else:
        a(f"s_lshl_b32 s61, s{sRB}, 1")
        a(f"s_add_u32 s61, s61, s{sTYP}")
        a("s_lshl_b32 s61, s61, 3")
        a(f"s_add_u32 s61, s61, s{sGRP}")
        off = F2_OFF
    a("s_lshl_b32 s61, s61, 7")
    a(f"s_add_u32 s61, s61, {off}")
    a(f"s_cmp_eq_u32 s{sQ}, 0")
    a(f"s_cselect_b32 s61, s61, {OOB}")
    a(f"v_mov_b32 v30, s{sT}")
    a("v_mov_b32 v31, 0")
    a("s_mov_b64 exec, 1")
    a.vmem(f"buffer_store_dword v30, v31, {S4(WS_)}, s61 offen sc1", "flag")
    a("s_mov_b64 exec, -1")

def mfma32(d, a, b, c=None):
    c = V(d, 16) if c is None else c
    return f"v_mfma_f32_32x32x16_bf16 {V(d,16)}, {V(a)}, {V(b)}, {c}"

def get_nonce(a, line):
    if line >= 0: a(f"s_load_dword s{sT}, s[90:91], {64*line}")
    a("s_waitcnt lgkmcnt(0)")
    first = [True]
    def chk():
        if not first[0]: a(f"v_readfirstlane_b32 s{sT}, v30")
        first[0] = False
        a(f"s_cmp_lg_u32 s{sT}, 0")
    def iss():
        a("s_sleep 2")
        a("v_mov_b32 v31, 0")
        a(f"buffer_load_dword v30, v31, {S4(DBG_)}, 0 offen sc1")
    spin(a, iss, chk)

def ln1_issue(a):
    a(f"s_lshl_b32 s61, s{sRB}, 1")
    a(f"s_add_u32 s61, s61, s{sTYP}")
    a("s_lshl_b32 s61, s61, 3")
    a(f"s_add_u32 s61, s61, s{sGRP}")
    a("s_lshl_b32 s61, s61, 2")
    a(f"s_add_u32 s47, s61, s{sQ}")
    a("s_lshl_b32 s61, s47, 11")
    a("v_lshrrev_b32 v3, 5, v1")
    a("v_lshlrev_b32 v3, 10, v3")
    a("v_and_b32 v30, 31, v1")
    a("v_lshl_add_u32 v3, v30, 4, v3")
    a.vmem(f"buffer_load_dwordx4 {V(40)}, v3, {S4(X_)}, s61 offen", "ln1")
    a.vmem(f"buffer_load_dwordx4 {V(44)}, v3, {S4(X_)}, s61 offen offset:512", "ln1")
def ln1_publish(a):
    a("v_mov_b32 v48, 0x3f803f80")
    a("v_mov_b32 v32, 0\nv_mov_b32 v33, 0\nv_mov_b32 v34, 0\nv_mov_b32 v35, 0")
    a("s_lshl_b32 s47, s47, 5")
    a(f"s_add_u32 s47, s47, {WS_ST1}")
    a("v_lshrrev_b32 v3, 1, v1")
    a.vmwait("ln1")
    for i in range(8):
        a(f"v_dot2_f32_bf16 v{32+(i&1)}, v{40+i}, v48, v{32+(i&1)}")
        a(f"v_dot2_f32_bf16 v{34+(i&1)}, v{40+i}, v{40+i}, v{34+(i&1)}")
    a("s_nop 2")
    a("v_add_f32 v32, v32, v33")
    a("v_add_f32 v34, v34, v35")
    for r in (8, 4, 2, 1):
        a("s_nop 0")
        a(f"v_add_f32_dpp v32, v32, v32 row_ror:{r} row_mask:0xf bank_mask:0xf")
        a(f"v_add_f32_dpp v34, v34, v34 row_ror:{r} row_mask:0xf bank_mask:0xf")
    a("v_mov_b32 v33, v32\nv_mov_b32 v35, v34")
    a("s_nop 1")
    a("v_permlane16_swap_b32 v32, v33\nv_permlane16_swap_b32 v34, v35")
    a("v_add_f32 v32, v32, v33\nv_add_f32 v34, v34, v35")
    row_finalize(a, 32, 34, 0)
    get_nonce(a, 1)
    a(f"v_mov_b32 v33, s{sT}\nv_mov_b32 v35, s{sT}")
    a("s_mov_b32 exec_lo, 1\ns_mov_b32 exec_hi, 1")
    a.vmem(f"buffer_store_dwordx4 {V(32)}, v3, {S4(WS_)}, s47 offen sc1", "ln1s")
    a("s_mov_b64 exec, -1")

def ln1_fetch_issue(a, halo):
    a(f"s_lshl_b32 s69, s{sRB}, 2")
    a(f"s_add_u32 s69, s69, s{sQ}")
    a("s_lshl_b32 s69, s69, 9")
    a(f"s_add_u32 s69, s69, {WS_ST1}")
    a(f"s_lshl_b32 s70, s{sRB}, 11")
    a("s_sub_u32 s70, s70, 256")
    a("s_max_i32 s70, s70, 0")
    a(f"s_add_u32 s70, s70, {WS_ST1}")
    a("v_lshlrev_b32 v36, 3, v1")
    a("v_and_b32 v37, 0xff, v36")
    a.vmem(f"buffer_load_dwordx2 {V(32,2)}, v36, {S4(WS_)}, s69 offen sc1", "st1")
    if halo: a.vmem(f"buffer_load_dwordx2 {V(34,2)}, v37, {S4(WS_)}, s70 offen sc1", "st1")
def ln1_fetch_finish(a, halo):
    a.vmwait("st1")
    def iss():
        a(f"buffer_load_dwordx2 {V(32,2)}, v36, {S4(WS_)}, s69 offen sc1")
        if halo: a(f"buffer_load_dwordx2 {V(34,2)}, v37, {S4(WS_)}, s70 offen sc1")
    def chk():
        a(f"v_cmp_ne_u32 vcc, s{sT}, v33")
        if halo:
            a(f"v_cmp_ne_u32 s[61:62], s{sT}, v35".replace("s[61:62]", "s[72:73]"))
            a("s_nop 0")
            a("s_or_b64 vcc, vcc, s[72:73]")
        a("s_cmp_eq_u64 vcc, 0")
    spin(a, iss, chk)
    a("v_bfe_u32 v38, v1, 1, 1")
    a("v_lshrrev_b32 v39, 2, v1")
    a("v_lshl_add_u32 v38, v38, 4, v39")
    a(f"s_lshl_b32 s61, s{sQ}, 7")
    a(f"s_add_u32 s61, s61, {L_TAB}")
    a("v_lshl_add_u32 v38, v38, 2, s61")
    a("v_mov_b32_dpp v33, v32 quad_perm:[1,0,3,2] row_mask:0xf bank_mask:0xf")
    if halo:
        a("v_mov_b32_dpp v35, v34 quad_perm:[1,0,3,2] row_mask:0xf bank_mask:0xf")
        a("v_lshlrev_b32 v39, 1, v1")
        a("v_and_b32 v39, 0x3c, v39")
        a(f"v_add_u32 v39, {L_TAB + 512}, v39")
        a("v_rsq_f32 v33, v33\nv_rsq_f32 v35, v35")
        a("s_mov_b32 exec_lo, 0x55555555\ns_mov_b32 exec_hi, 0x55555555")
        a(f"ds_write_b32 v38, v32\nds_write_b32 v38, v33 offset:{TP}")
        a(f"ds_write_b32 v39, v34\nds_write_b32 v39, v35 offset:{TP}")
    else:
        a("v_rsq_f32 v34, v33")
        a("v_sqrt_f32 v33, v33")
        a("v_mul_f32 v35, v34, v34")
        a("v_mul_f32 v35, v35, v34")
        a(f"v_mul_f32 v35, {f2u(-C2):#x}, v35")
        a(f"v_mul_f32 v34, {f2u(-C1):#x}, v34")
        a("s_mov_b32 exec_lo, 0x55555555\ns_mov_b32 exec_hi, 0x55555555")
        for k, r in enumerate((32, 35, 34, 33)): a(f"ds_write_b32 v38, v{r} offset:{TP*k}")
    a("s_mov_b64 exec, -1")
    a("s_waitcnt lgkmcnt(0)")

def b_early(a):
    a("v_and_b32 v3, 15, v1")
    a("v_bfe_u32 v31, v1, 4, 1")
    a("v_lshl_add_u32 v3, v3, 1, v31")
    a("v_lshlrev_b32 v3, 1, v3")
    a(f"s_lshl_b32 s61, s{sRB}, 2")
    a(f"s_add_u32 s61, s61, s{sQ}")
    a("s_lshl_b32 s61, s61, 6")
    a(f"s_cmp_eq_u32 s{sKS}, 0")
    a("s_cselect_b32 s61, s61, 4096")
    a.vmem(f"buffer_load_ushort v0, v3, {S4(BSP_)}, s61 offen", "b")

def b_compute(a, fused):
    ACC = 32
    ring = list(range(80, 144, 4))
    Z1 = 144
    OF = 168
    a("v_and_b32 v3, 31, v1")
    a("v_lshrrev_b32 v30, 5, v1")
    a("v_bfe_u32 v31, v1, 1, 3")
    a("v_xor_b32 v31, v30, v31")
    a("v_lshlrev_b32 v3, 7, v3")
    a("v_lshl_add_u32 v10, v31, 4, v3")
    a(f"s_lshl_b32 s61, s{sQ}, 12")
    a("v_add_u32 v10, s61, v10")
    for b4 in range(1, 4): a(f"v_xor_b32 v{10+b4}, {32*b4}, v10")
    for b4 in range(4): a(f"v_add_u32 v{14+b4}, 0x10000, v{10+b4}")
    a("v_lshlrev_b32 v19, 4, v1")
    a(f"v_add_u32 v18, {L_Z2}, v19")
    a(f"v_add_u32 v21, {L_Z2 + 49152}, v19")
    a("v_and_b32 v3, 15, v1")
    a("v_bfe_u32 v31, v1, 4, 1")
    a("v_lshlrev_b32 v20, 9, v31")
    a("v_lshl_add_u32 v20, v30, 8, v20")
    a("v_lshl_add_u32 v20, v3, 4, v20")
    a(f"s_lshl_b32 s57, s{sRB}, 2")
    a(f"s_add_u32 s57, s57, s{sQ}")
    if not fused: b_early(a)
    a(f"s_mul_i32 s55, s{sCG}, 6")
    a("s_min_u32 s55, s55, 40")
    a("s_sub_u32 s58, 40, s55")
    a("s_min_u32 s58, s58, 6")
    a(f"s_cmp_eq_u32 s{sCG}, 7")
    a("s_cselect_b32 s58, 3, s58")
    a("s_mul_i32 s53, s57, 48")
    a("s_add_u32 s53, s53, s55")
    a("s_lshl_b32 s53, s53, 10")
    a(f"s_mul_i32 s61, s{sKS}, {64*48*1024}")
    a("s_add_u32 s54, s53, s61")
    a(f"s_add_u32 s53, s53, {WS_Z1}")
    a(f"s_add_u32 s54, s54, {WS_H}")
    a("s_add_u32 s59, s54, 4096")
    a(f"s_mov_b32 s60, {OOB}")
    if not fused: a.vmwait("b")
    a("v_lshlrev_b32 v22, 16, v0")
    for r in range(16): a(f"v_mov_b32 v{232+r}, v22")
    def z1_load():
        pass
    def z1_piece(j):
        def f():
            if j == 4: a("s_add_u32 s53, s53, 4096")
            a.vmem(f"buffer_load_dwordx4 {V(Z1+4*j)}, v20, {S4(WS_)}, s53 offen offset:{(j%4)*1024} sc1", "z1")
        return f
    extras = []
    zs = opt('z1step', 13)
    for j in range(6): extras.append((zs, z1_piece(j), lambda done: True, 99))
    a(f"s_lshl_b32 s56, s{sRC}, 1")
    a(f"s_and_b32 s61, s{sQ}, 1")
    a("s_add_u32 s56, s56, s61")
    a("s_lshl_b32 s56, s56, 1")
    a(f"s_lshr_b32 s61, s{sQ}, 1")
    a("s_add_u32 s56, s56, s61")
    a("s_lshl_b32 s56, s56, 14")
    a(f"s_add_u32 s56, s56, {WS_O}")
    def o_piece(b):
        def f():
            if b and b % 4 == 0: a("s_add_u32 s56, s56, 4096")
            a.vmem(f"buffer_load_dwordx4 {V(OF+4*b)}, v19, {S4(WS_)}, s56 offen offset:{(b%4)*1024} sc1", ("o", b))
        return f
    a.o_piece = o_piece
    def preB(st):
        if fused and st == opt('f2step', 2):
            a(f"v_mov_b32 v30, s{sT}")
            a("v_mov_b32 v31, 0")
            a.vmall()
            a("s_mov_b64 exec, 1")
            a.vmem(f"buffer_store_dword v30, v31, {S4(WS_)}, s75 offen sc1", "flag")
            a("s_mov_b64 exec, -1")
    fr = {}; mf = []
    for i in range(16):
        for b4 in range(4):
            fr[('w', i, b4)] = dict(step=i, reg=None, reads=[lambda r, i=i, b4=b4: f"ds_read_b128 {V(r)}, v{10 + b4 + 4*((i%NWS)//4)} offset:{((i%NWS)%4)*16384}"])
            for c in range(3):
                fr[('z', i, b4, c)] = dict(step=i, reg=None, reads=[lambda r, i=i, b4=b4, c=c: f"ds_read_b128 {V(r)}, v{18 if ZOFF(i) < 49152 else 21} offset:{ZOF2(i) + (b4*3+c)*1024}"])
                mf.append((ACC+16*c, ('z', i, b4, c), ('w', i, b4)))
    a.stamp()
    a("s_barrier")
    gemm_stream(a, mf, fr, ring, opt('LAB', 5), opt('coverB', 2), preB,
                first_zero=V(232, 16), stamps=(0, 1, 8, 10, 12, 14), pergap=opt('pgB', 2), slack=2, op=mfma32, extras=extras)
    for e in extras: e[1]()
    a.stamp()
    a("s_barrier")
    a.vmwait("z1")
    a("v_mov_b32 v23, 0xffff0000")
    for j in range(6):
        x = ACC + 8*j; z = Z1 + 4*j; t = 80 + 8*(j&1)
        for k in range(4):
            a(f"v_lshlrev_b32 v{t+2*k}, 16, v{z+k}")
            a(f"v_and_b32 v{t+2*k+1}, v23, v{z+k}")
        a(f"s_cmp_gt_u32 s58, {j}")
        a(f"s_cselect_b32 s61, s{54 if j < 4 else 59}, s60")
        for k in range(4): a(f"v_pk_mul_f32 {V(x+2*k,2)}, {V(x+2*k,2)}, {V(t+2*k,2)}")
        for k in range(4): a(f"v_cvt_pk_bf16_f32 v{x+k}, v{x+2*k}, v{x+2*k+1}")
        a.vmem(f"buffer_store_dwordx4 {V(x)}, v19, {S4(WS_)}, s61 offen offset:{(j%4)*1024} sc1", "h")
    a.stamp()

CR = 104
NCR = int(os.environ.get('NCR', 16))
def cw_load(a, lo, hi):
    if lo == 0 and hi > 0 or (lo == 0 and hi == 0): cw_load_setup(a)
    for i in range(lo, min(hi, NCR)):
        R, k = (WO_, i) if i < 16 else (WOUT_, i - 16)
        a(f"s_add_u32 s46, s47, {k*32768}")
        a.vmem(f"buffer_load_dwordx4 {V(CR+4*i)}, v26, {S4(R)}, s46 offen", "CW")
def cw_load_setup(a):
    a("v_bfe_u32 v3, v1, 4, 1")
    a("v_lshlrev_b32 v3, 2, v3")
    a("v_and_b32 v30, 7, v1")
    a("v_xor_b32 v30, v30, v3")
    a("v_lshrrev_b32 v3, 3, v1")
    a("v_lshlrev_b32 v3, 10, v3")
    a("v_lshl_add_u32 v26, v30, 4, v3")
    a(f"s_lshl_b32 s47, s{sCG}, 7")
    a(f"s_lshl_b32 s61, s{sQ}, 13")
    a("s_add_u32 s47, s47, s61")
def cw_write(a, lo, hi):
    for i in range(lo, min(hi, NCR)):
        g4 = 4*i
        off = CSLOT[g4 // 16]*16384 + (g4 % 16)*1024
        a(f"ds_write_b128 v{27 + (off >> 16)}, {V(CR+4*i)} offset:{off & 0xffff}")

CSLOT = [2, 3, 4, 5, 6, 0, 1, 7, 8, 9]; assert True
def b_helper(a, fused):
    if not fused:
        late_srds(a)
        wsp_setup_h(a)
        a(f"s_lshl_b32 s60, s{sQ}, 12")
    a("v_lshlrev_b32 v10, 4, v1")
    a(f"s_lshl_b32 s61, s{sQ}, 10")
    a("v_add_u32 v27, s61, v10")
    a("v_add_u32 v28, 0x10000, v27")
    a("v_add_u32 v29, 0x20000, v27")
    a(f"s_lshl_b32 s53, s{sCG}, 1")
    a(f"s_add_u32 s53, s53, s{sKS}")
    a(f"s_mul_i32 s53, s53, {16*12288}")
    a(f"s_mul_i32 s54, s{sQ}, 3072")
    a("s_add_u32 s53, s53, s54")
    a(f"s_add_u32 s53, s53, {WS_Z2N}")
    a(f"s_add_u32 s54, s54, {L_Z2}")
    def z2_group(i):
        a(f"s_add_u32 s61, s{sK0B}, {i}")
        a("s_and_b32 s61, s61, 15")
        a("s_mul_i32 s61, s61, 12288")
        a(f"s_add_u32 m0, s54, {ZOFF(i)}")
        a("s_add_u32 s61, s61, s53")
        for k in range(3): a.vmem(f"buffer_load_dwordx4 v10, {S4(WS_)}, s61 offen offset:{1024*k} sc1 lds", ("Z", i))
    a.stamp()
    if fused:
        a(f"s_lshl_b32 s71, s{sCG}, 1")
        a(f"s_add_u32 s71, s71, s{sKS}")
        a("s_lshl_b32 s71, s71, 12")
        a(f"s_add_u32 s71, s71, {F1_OFF}")
        a("v_and_b32 v31, 31, v1")
        a("v_lshlrev_b32 v31, 7, v31")
        a(f"v_mov_b32 v30, 0")
        def iss(): a(f"buffer_load_dword v30, v31, {S4(WS_)}, s71 offen sc1")
        def chk():
            a(f"v_cmp_ne_u32 vcc, s{sT}, v30")
            a("s_cmp_eq_u64 vcc, 0")
        wp = opt('wp', 2)
        lA = a.label("LfA")
        lB = a.label("LfB")
        iss(); a("s_waitcnt vmcnt(0)")
        a(f"s_cmp_ge_u32 s72, {NWS}")
        a(f"s_cbranch_scc1 {lB}")
        for v in range(wp, NWS):
            chk()
            a(f"s_cbranch_scc1 {lA}")
            wsp_group_h(a, v)
            a(f"s_mov_b32 s72, {v + 1}")
            iss(); a("s_waitcnt vmcnt(0)")
        a(f"{lB}:")
        spin(a, iss, chk)
        a("s_waitcnt vmcnt(0)")
        a(f"{lA}:")
        a.vm = []
        a.stamp()
        for i in range(NZS - 1): z2_group(i)
        a("v_mov_b32 v25, 256")
        def late_group(v):
            ld = a.label("Lld"); le = a.label("Lle")
            a(f"s_cmp_gt_u32 s72, {v}")
            a(f"s_cbranch_scc1 {ld}")
            wsp_group_h(a, v)
            a(f"s_branch {le}")
            a(f"{ld}:")
            a("s_mov_b64 exec, 1")
            for k in range(4): a(f"buffer_load_dword v24, v25, {S4(DBG_)}, 0 offen")
            a("s_mov_b64 exec, -1")
            a(f"{le}:")
    a("s_barrier")
    wpre = NWS
    a("v_add_u32 v18, 4096, v8")
    a("v_add_u32 v19, 4096, v9")
    def wsp_pieces(v):
        def f(k):
            if k == 0:
                a(f"s_add_u32 s58, s{sK0B}, {v}")
                a("s_and_b32 s58, s58, 15")
                a("s_lshl_b32 s58, s58, 7")
                a("s_add_u32 s58, s58, s59")
            a(f"s_add_u32 m0, s60, {(v % NWS) * 16384 + 2048*(k>>1)}")
            a("s_nop 0")
            a.vmem(f"buffer_load_dwordx4 v{(8, 9, 18, 19)[k]}, {S4(WSP_)}, s58 offen offset:{1024*(k&1)} {NT('s')}lds", ("S", v))
        return [(lambda k=k: f(k)) for k in range(4)]
    cws = opt('cws', 14)
    bg = []
    for v in range(wpre, 16): bg += [(max(0, v - NWS + 1), p, v) for p in wsp_pieces(v)]
    for i in range(16):
        assert all(x[2] > i for x in bg), i
        a.vmwait(("S", i)); a.vmwait(("Z", i))
        if fused and i == opt('z1step', 13): f2_check(a)
        a("s_barrier")
        if i in (0, 1, 8, 10, 12, 14): a.stamp()
        if fused and i == opt('f2step', 2): flag_store(a, "F2")
        if fused and i == opt('z1step', 13) - 3: f2_issue(a)
        lg = opt('lg', 2)
        for v in range(wp + lg*i, min(NWS, wp + lg*(i + 1))):
            assert v > i
            late_group(v)
        if i + NZS - 1 < 16: z2_group(i + NZS - 1)
        if i >= cws: cw_write(a, 4*(i - cws), 4*(i - cws) + 4)
        n = opt('pace', 3)
        while n > 0 and bg and bg[0][0] <= i:
            bg.pop(0)[1](); n -= 1
    a.stamp()
    a("s_barrier")
    assert not bg
    cw_write(a, 4*(16 - cws), max(16, 4*(16 - cws)))

def f2_issue(a):
    a(f"s_lshl_b32 s62, s{sRB}, 4")
    a(f"s_add_u32 s62, s62, s{sCG}")
    a("s_add_u32 s62, s62, 8")
    a("s_lshl_b32 s62, s62, 7")
    a(f"s_add_u32 s62, s62, {F2_OFF}")
    a(f"s_lshr_b32 s61, s{sRC}, 1")
    a("s_lshl_b32 s61, s61, 12")
    a(f"s_add_u32 s61, s61, {FO_OFF}")
    a("v_lshlrev_b32 v20, 7, v1")
    a("v_add_u32 v20, s61, v20")
    a("v_mov_b32 v21, s62")
    a("v_cmp_lt_u32 vcc, 31, v1")
    a("s_nop 1")
    a("v_cndmask_b32 v20, v20, v21, vcc")
    a.vmem(f"buffer_load_dword v21, v20, {S4(WS_)}, 0 offen sc1", "f2")
def f2_check(a):
    a.vmwait("f2")
    def iss(): a(f"buffer_load_dword v21, v20, {S4(WS_)}, 0 offen sc1")
    def chk():
        a(f"v_cmp_ne_u32 vcc, s{sT}, v21")
        a("s_cmp_eq_u64 vcc, 0")
    spin(a, iss, chk)

L_RED = 0
def c_waddr(a, d):
    a("v_lshrrev_b32 v3, 5, v1")
    a("v_bfe_u32 v30, v1, 2, 2")
    a("v_lshl_add_u32 v3, v3, 2, v30")
    a("v_lshlrev_b32 v3, 7, v3")
    a("v_and_b32 v30, 2, v30")
    a("v_bfe_u32 v31, v1, 4, 1")
    a("v_or_b32 v30, v30, v31")
    a("v_lshl_add_u32 v3, v30, 5, v3")
    a("v_and_b32 v30, 3, v1")
    a(f"v_lshl_add_u32 v{d}, v30, 3, v3")
    a(f"v_xor_b32 v{d+1}, 64, v{d}")

def c_stream(a, nblk, fragreg, tagf, areg, blk0, ring, ACC, first_zero, loads=(), off0=0):
    fr = {}; mf = []
    for b in range(nblk):
        fr[('h', b)] = dict(step=0, reg=fragreg(b), reads=None)
        for nn in range(2):
            off = CSLOT[(blk0 + b) // 8] * 16384 + ((blk0 + b) % 8) * 2048 - off0
            fr[('w', b, nn)] = dict(step=0, reg=None, reads=[(lambda r, hh=hh, nn=nn, off=off: f"ds_read_b64_tr_b16 {V(r+2*hh,2)}, v{areg(off >> 16) + nn} offset:{(off & 0xffff) + hh*1024}") for hh in range(2)])
            mf.append((ACC+16*nn, ('w', b, nn), ('h', b)))
    cnt = [0]
    def op(d, x, y, c):
        b = cnt[0] // 2
        if cnt[0] % 2 == 1 and loads: loads.pop(0)()
        cnt[0] += 1
        a.vmwait(tagf(b))
        return mfma32(d, x, y, c)
    gemm_stream(a, mf, fr, ring, opt('LAC', 4), 0, lambda st: None, first_zero=first_zero, pergap=2, slack=2, op=op, skip_first_barrier=True)

def c_final(a):
    a.vmwait("x")
    for w in range(4):
        a(f"v_lshlrev_b32 v{64+2*w}, 16, v{8+w}")
        a(f"v_and_b32 v{65+2*w}, 0xffff0000, v{8+w}")
    a("s_waitcnt lgkmcnt(0)")
    a("s_barrier")
    for k in range(2):
        a(f"ds_read_b128 {V(16+8*k)}, v6 offset:{17408*k}")
        a(f"ds_read_b128 {V(20+8*k)}, v6 offset:{17408*k + 16}")
    a("s_waitcnt lgkmcnt(2)")
    for w in range(4): a(f"v_pk_add_f32 {V(64+2*w,2)}, {V(64+2*w,2)}, {V(16+2*w,2)}")
    a("s_waitcnt lgkmcnt(0)")
    for w in range(4): a(f"v_pk_add_f32 {V(64+2*w,2)}, {V(64+2*w,2)}, {V(24+2*w,2)}")
    for w in range(4): a(f"v_cvt_pk_bf16_f32 v{32+w}, v{64+2*w}, v{65+2*w}")
    a.vmem(f"buffer_store_dwordx4 {V(32)}, v7, {S4(OUT_)}, s47 offen {('', 'sc1', 'nt', 'sc0 sc1', 'sc1 nt')[opt('outf', 0)]}", "out")

def c_final_setup(a):
    a("v_lshrrev_b32 v3, 3, v1")
    a(f"s_lshl_b32 s61, s{sW}, 3")
    a("v_add_u32 v3, s61, v3")
    a("v_and_b32 v30, 7, v1")
    a("v_mul_u32_u24 v6, 272, v3")
    a("v_lshl_add_u32 v6, v30, 5, v6")
    a("v_add_u32 v6, 32768, v6")
    a("v_and_b32 v31, 15, v3")
    a("v_lshlrev_b32 v31, 1, v31")
    a("v_bfe_u32 v7, v3, 4, 1")
    a("v_add_u32 v31, v31, v7")
    a("v_and_b32 v7, 32, v3")
    a("v_add_u32 v31, v31, v7")
    a("v_lshlrev_b32 v31, 10, v31")
    a("v_lshl_add_u32 v7, v30, 4, v31")
    a(f"s_lshl_b32 s47, s{sRC}, 9")
    a(f"s_add_u32 s47, s47, s{sCG}")
    a("s_lshl_b32 s47, s47, 7")
    a.vmem(f"buffer_load_dwordx4 {V(8)}, v7, {S4(X_)}, s47 offen", "x")

def c_compute(a, fused):
    ACC, OF, HF = 32, 168, 80
    for b in range(16): a.o_piece(b)()
    a(f"s_and_b32 s53, s{sQ}, 1")
    a(f"s_lshr_b32 s54, s{sQ}, 1")
    c_waddr(a, 26)
    a("s_lshl_b32 s61, s54, 15")
    a("s_add_u32 s61, s61, 32768")
    a("v_add_u32 v4, s61, v26\nv_add_u32 v5, s61, v27")
    a("s_barrier")
    a("s_lshl_b32 s61, s57, 1")
    a(f"s_add_u32 s61, s61, s{sKS}")
    a("s_lshl_b32 s61, s61, 3")
    a(f"s_add_u32 s61, s61, s{sCG}")
    a("s_lshl_b32 s61, s61, 7")
    a(f"s_add_u32 s61, s61, {F3_OFF}")
    a(f"v_mov_b32 v30, s{sT}")
    a("v_mov_b32 v31, 0")
    a.vmwait("h")
    a("s_mov_b64 exec, 1")
    a.vmem(f"buffer_store_dword v30, v31, {S4(WS_)}, s61 offen sc1", "flag")
    a("s_mov_b64 exec, -1")
    a.stamp()
    c_stream(a, 16, lambda b: OF+4*b, lambda b: ("o", b), lambda k: 4, 0, list(range(80, 112, 4)), ACC, True, off0=32768)
    a.stamp()
    a("v_add_u32 v252, 0x10000, v26\nv_add_u32 v253, 0x10000, v27")
    a("v_add_u32 v254, 0x20000, v26\nv_add_u32 v255, 0x20000, v27")
    a(f"s_lshl_b32 s55, s{sRC}, 1")
    a("s_add_u32 s55, s55, s53")
    a("s_lshl_b32 s56, s54, 6")
    a("s_add_u32 s56, s56, s55")
    a("s_mul_i32 s56, s56, 49152")
    a(f"s_add_u32 s56, s56, {WS_H}")
    a("v_lshlrev_b32 v28, 4, v1")
    c_final_setup(a)
    a("v_and_b32 v3, 31, v1")
    a("v_mul_u32_u24 v3, 272, v3")
    a("v_lshrrev_b32 v30, 5, v1")
    a("v_lshl_add_u32 v3, v30, 4, v3")
    a("s_mul_i32 s61, s54, 17408")
    a(f"s_mul_i32 s62, s53, {32*272}")
    a("s_add_u32 s61, s61, s62")
    a("s_add_u32 s61, s61, 32768")
    a("v_add_u32 v4, s61, v3")
    a("s_lshl_b32 s62, s55, 1")
    a("s_add_u32 s62, s62, s54")
    a("s_lshl_b32 s62, s62, 10")
    a(f"s_add_u32 s62, s62, {F3_OFF}")
    a("v_and_b32 v31, 7, v1")
    a("v_lshlrev_b32 v31, 7, v31")
    a("v_mov_b32 v30, 0")
    a("s_barrier")
    def iss(): a(f"buffer_load_dword v30, v31, {S4(WS_)}, s62 offen sc1")
    def chk():
        a(f"v_cmp_ne_u32 vcc, s{sT}, v30")
        a("s_cmp_eq_u64 vcc, 0")
    spin(a, iss, chk)
    a.vm = []
    a.stamp()
    def hload(b):
        if b and b % 4 == 0: a("s_add_u32 s56, s56, 4096")
        a.vmem(f"buffer_load_dwordx4 {V(HF+4*b)}, v28, {S4(WS_)}, s56 offen offset:{(b%4)*1024} sc1", ("H", b))
    PH = opt('PH', 14)
    for b in range(PH): hload(b)
    ring = list(range(64, 80, 4)) + [12, 16, 20]
    c_stream(a, 43, lambda b: HF+4*b, lambda b: ("H", b), lambda k: (26, 252, 254)[k], 32, ring, ACC, False, [(lambda b=b: hload(b)) for b in range(PH, 43)])
    a.stamp()
    a("s_nop 10")
    for nn in range(2):
        for jj in range(4): a(f"ds_write_b128 v4, {V(ACC+16*nn+4*jj)} offset:{128*nn + 32*jj}")
    c_final(a)

def c_helper(a, fused):
    a("s_waitcnt lgkmcnt(0)")
    a("s_barrier")
    a(f"s_lshl_b32 s60, s{sQ}, 10")
    for i in range(NCR, 38):
        off = CSLOT[i // 4]*16384 + (4*i % 16)*1024
        a(f"s_add_u32 m0, s60, {off}")
        a(f"s_add_u32 s46, s47, {(i - 16)*32768}")
        a.vmem(f"buffer_load_dwordx4 v26, {S4(WOUT_)}, s46 offen lds", "CW2")
    cw_write(a, max(16, 4*(16 - opt('cws', 14))), 38)
    c_final_setup(a)
    a.vmwait("CW2")
    a("s_waitcnt lgkmcnt(0)")
    a.stamp()
    a("s_barrier")
    c_final(a)

def diag_out(a, base):
    if opt('padto', 0):
        l = a.label("Lpad")
        if opt('leak', -1) >= 0:
            a("s_nop 0")
            a(f"v_readlane_b32 s61, v2, {opt('leak', 0)}")
            a("s_lshr_b32 s61, s61, 4")
            a(f"s_lshl_b32 s62, s{sW}, 10")
            a("s_add_u32 s62, s62, s2")
            a(f"s_cmp_eq_u32 s62, {opt('leakwg', 200)}")
            a("s_cselect_b32 s61, s61, 0")
            a("s_add_u32 s84, s84, s61")
        a(f"{l}:")
        a("s_sleep 1")
        a("s_memrealtime s[86:87]")
        a("s_waitcnt lgkmcnt(0)")
        a(f"s_sub_u32 s86, s86, s{sT if opt('padT', 0) else 84}")
        a(f"s_cmp_lt_i32 s86, {opt('padto', 0)}")
        a(f"s_cbranch_scc1 {l}")
    if opt('skew', 0):
        a(f"s_sub_u32 s61, s84, s{sT}")
        a("s_add_u32 s61, s61, 100000")
        a("v_mov_b32 v4, s61")
        a("v_mov_b32 v5, 8")
        a("s_mov_b64 exec, 1")
        a(f"buffer_atomic_umax v4, v5, {S4(DBG_)}, 0 offen")
        a("s_sub_u32 s61, 200000, s61")
        a("v_mov_b32 v4, s61")
        a(f"buffer_atomic_umax v4, v5, {S4(DBG_)}, 0 offen offset:4")
        a("s_mov_b64 exec, -1")
    if not a.diag: return
    a("v_writelane_b32 v2, s84, 62")
    a("s_memrealtime s[86:87]")
    a("s_waitcnt lgkmcnt(0)")
    a("v_writelane_b32 v2, s86, 63")
    a("s_lshl_b32 s61, s2, 3")
    a(f"s_add_u32 s61, s61, s{sW}")
    a("s_lshl_b32 s61, s61, 8")
    a(f"s_add_u32 s61, s61, {base}")
    a("v_lshlrev_b32 v3, 2, v1")
    a(f"buffer_store_dword v2, v3, {S4(WS_)}, s61 offen")
    if opt('hdbg', -1) >= 0:
        l = a.label("Lhd")
        a(f"s_cmp_lg_u32 s2, {opt('hdbg', 0)}")
        a(f"s_cbranch_scc1 {l}")
        a(f"s_cmp_lg_u32 s{sW}, 0")
        a(f"s_cbranch_scc1 {l}")
        a("s_sub_u32 s86, s86, s84")
        a("v_mov_b32 v4, 0")
        a("v_writelane_b32 v4, s86, 1")
        for k, src in enumerate((0, 1, 3, 4, 5, 6, 7, 10, 11, 17, 18, 19, 20, 22)):
            a(f"v_readlane_b32 s61, v2, {src}")
            a("s_nop 3")
            a(f"v_writelane_b32 v4, s61, {2+k}")
        a("s_mov_b64 exec, 0xfffe")
        a(f"buffer_store_dword v4, v3, {S4(DBG_)}, 0 offen")
        a(f"{l}:")

def simple_kernel(name, diag, idx, comp, helper):
    a = G(diag)
    prologue(a, f"L{name}_end")
    a(f"s_cmp_ge_u32 s{sW}, 4")
    a(f"s_cbranch_scc1 L{name}_h")
    for k, fn in enumerate((comp, helper)):
        if k: a(f"L{name}_h:")
        a.vm = []; a.nst = 0
        fn(a)
        a.vmall(); a.stamp()
        diag_out(a, WS_DBG + idx*0x80000)
        a("s_endpgm")
    a(f"L{name}_end:")
    a("s_endpgm")
    return a.text()

def by_type(fq, fz, lab):
    def f(a):
        a(f"s_cmp_lg_u32 s{sTYP}, 0")
        a(f"s_cbranch_scc1 {lab}_z")
        fq(a, False)
        a.vmall()
        a(f"s_branch {lab}_e")
        n = a.nst
        a(f"{lab}_z:")
        a.vm = []; a.nst = 0
        fz(a, False)
        a(f"{lab}_e:")
        a.nst = max(a.nst, n)
    return f

def multi(diag):
    ka = simple_kernel("A", diag, 0, by_type(aq_compute, az_compute, "LAc"), by_type(aq_helper, az_helper, "LAh"))
    def bc(a): late_srds(a); b_compute(a, False)
    kb = simple_kernel("B", diag, 1, bc, lambda a: b_helper(a, False))
    kc = simple_kernel("C", diag, 2, lambda a: c_compute(a, False), lambda a: c_helper(a, False))
    return [("a_kernel", ka), ("b_kernel", kb), ("c_kernel", kc)]

def fused_kernel(diag):
    a = G(diag)
    prologue(a, "LF_end")
    a(f"s_cmp_lt_u32 s{sW}, 4")
    a("s_cbranch_scc1 LF_c")
    a(f"s_cmp_lg_u32 s{sTYP}, 0")
    a("s_cbranch_scc1 LF_hz")
    aq_helper(a, True)
    a("s_branch LF_hb")
    a.unsplit()
    a("LF_hz:")
    a.vm = []; a.nst = 0
    az_helper(a, True)
    a("LF_hb:")
    a.vm = []; a.nst = 10
    b_helper(a, True)
    c_helper(a, True)
    if diag: a.vmall(); a.stamp()
    diag_out(a, WS_DBG)
    a("s_endpgm")
    a.unsplit()
    a("LF_c:")
    a.vm = []; a.nst = 0
    early_srds(a)
    late_srds(a)
    nonce_publish(a)
    ln1_issue(a)
    b_early(a)
    if opt('tlb', 0):
        l = a.label("Ltlb")
        a(f"s_cmp_lg_u32 s{sQ}, 1")
        a(f"s_cbranch_scc1 {l}")
        a("v_lshlrev_b32 v3, 20, v1")
        a("s_lshl_b32 s61, s2, 7")
        a(f"s_mov_b32 m0, {L_MISC}")
        a("s_mov_b64 exec, 0x3fffff")
        a(f"buffer_load_dword v3, {S4(WS_)}, s61 offen lds")
        a("s_mov_b64 exec, 0xff")
        a(f"buffer_load_dword v3, {S4(WSP_)}, s61 offen lds")
        a("s_mov_b64 exec, 3")
        a(f"buffer_load_dword v3, {S4(OUT_)}, s61 offen lds")
        a("s_mov_b64 exec, 1")
        a(f"buffer_load_dword v3, {S4(WO_)}, s61 offen lds")
        a(f"buffer_load_dword v3, {S4(WOUT_)}, s61 offen lds")
        a("s_mov_b64 exec, -1")
        a(f"{l}:")
    a(f"s_cmp_lg_u32 s{sTYP}, 0")
    a("s_cbranch_scc1 LF_cz")
    vmc = list(a.vm)
    aq_compute(a, True)
    a("s_branch LF_cb")
    a("LF_cz:")
    a.vm = list(vmc); a.nst = 0
    az_compute(a, True)
    a(f"s_mov_b32 s75, {OOB}")
    a("LF_cb:")
    a.vm = []; a.nst = 10
    b_compute(a, True)
    c_compute(a, True)
    if diag: a.vmall(); a.stamp()
    diag_out(a, WS_DBG)
    a("s_endpgm")
    for t in a.tails: a.L += t
    a("LF_end:")
    a("s_endpgm")
    return [(KNAME, a.text())]

if __name__ == "__main__":
    diag = "diag" in sys.argv
    for x in sys.argv[2:]:
        if "=" in x:
            k, v = x.split("="); OPT[k] = int(v)
    ks = multi(diag) if 'multi' in sys.argv else fused_kernel(diag)
    hdr = open("cdna_kernels/" + KNAME[:-7] + ".s.ref").read().split("; Override")[0]
    txt = file_text([(n, 256, 512, LDS_BYTES) for n, t in ks], [(n, t, 256, 102, 256) for n, t in ks])
    if len(ks) == 1: txt = txt.replace(f"; @launch kernel={KNAME} ", "; @launch ")
    txt = "\n".join(l.strip() if l.startswith("    ") else l for l in txt.split("\n"))
    if opt('align', 1):
        import align
        txt, n1, n2 = align.align(txt)
    open(sys.argv[1], "w").write(hdr + txt)
```

```python
import sys, math, struct, os
from asmgen import Asm, KA, KNAME, file_text
from layout import *

OOB = 0x10000000
LOG2E = 1.4426950408889634
def f2u(x): return struct.unpack("<I", struct.pack("<f", x))[0]
C1 = 2.0 * math.sqrt(2.0 / math.pi) * LOG2E
C2 = C1 * 0.044715
NEG = f2u(-1e30)
OPT = {}
F1_OFF, F2_OFF, F3_OFF, FO_OFF = WS_FLG, WS_FLG + 512*128, WS_FLG + 768*128, WS_FLG + 1792*128
def opt(k, d): return OPT.get(k, d)
def ZOFF(i): return (i % NZS)*12288
def ZOF2(i): return ZOFF(i) % 49152
def NT(k): return 'nt ' if opt('nt' + k, 0) else ''

sW, sQ, sRB, sGRP = 3, 4, 6, 7
X_, WA_, WS_, WSP_, WO_, WOUT_, OUT_, BSP_, DBG_ = 8, 12, 16, 20, 24, 28, 32, 36, 40
sK0A, sTYP = 44, 45
sKS, sCG, sK0B, sT = 48, 50, 51, 52
sRC = 49
def S4(b): return f"s[{b}:{b+3}]"
def V(b, n=4): return f"v[{b}:{b+n-1}]" if n > 1 else f"v{b}"

L_TAB = 156*1024
TP = 640
L_CW  = L_TAB + 2560
L_MISC = L_TAB + 3328
L_XCH = 148*1024
L_PARK = 112*1024
NWS = int(os.environ.get('NWS', 7))
NZS = {7: 4, 6: 5, 5: 6}[NWS]
L_Z2 = 160*1024 - NZS*12288
L_RC = L_TAB + 3584
LDS_BYTES = 160*1024

class G(Asm):
    UID = [0]
    def label(self, base="L"):
        G.UID[0] += 1
        return f"{base}_{G.UID[0]}"
    def __init__(self, diag=False):
        super().__init__()
        self.vm = []; self.diag = diag; self.nst = 0; self.tails = []
    def vmem(self, s, tag=None):
        self(s); self.vm.append(tag)
    def has(self, tag): return any(t == tag for t in self.vm)
    def vmwait(self, tag):
        if not self.has(tag): return
        idx = max(i for i, t in enumerate(self.vm) if t == tag)
        n = len(self.vm) - 1 - idx
        n = min(n, 63)
        self(f"s_waitcnt vmcnt({n})")
        self.vm = self.vm[idx+1:]
    def vmall(self):
        self("s_waitcnt vmcnt(0)"); self.vm = []
    def stamp(self):
        if not self.diag: return
        self("s_memtime s[82:83]")
        self("s_waitcnt lgkmcnt(0)")
        self("s_sub_u32 s82, s82, s80")
        self(f"v_writelane_b32 v2, s82, {self.nst}")
        self.nst += 1
    def split(self, label):
        self(f"s_branch {label}")
        self.head = self.L
        self.L = []
        self(f"{label}:")
    def unsplit(self):
        self.tails.append(self.L); self.L = self.head
    def run(self, fs):
        for f in fs: f() if callable(f) else self(f)

def mfma(d, a, b, c=None):
    c = V(d) if c is None else c
    return f"v_mfma_f32_16x16x32_bf16 {V(d)}, {V(a)}, {V(b)}, {c}"
def mfma16(d, a, b, c=None):
    c = V(d) if c is None else c
    return f"v_mfma_f32_16x16x16_bf16 {V(d)}, {V(a,2)}, {V(b,2)}, {c}"

def gemm_stream(a, mf, frags, ring, LA, cover, pre_barrier, hooks=None, first_zero=True, stamps=(), nobar=0, pergap=1, slack=4, op=None, skip_first_barrier=False, extras=None):
    hooks = hooks or {}
    extra_max = opt('xmax', 1)
    first, last = {}, {}
    for i, (d, x, y) in enumerate(mf):
        for f in (x, y):
            first.setdefault(f, i); last[f] = i
    order = sorted([f for f in first if frags[f].get('reads')], key=lambda f: (frags[f]['step'], first[f]))
    rl = [(f, k) for f in order for k in range(len(frags[f]['reads']))]
    reg = {f: frags[f]['reg'] for f in first if frags[f].get('reg') is not None}
    owner = {r: None for r in ring}
    ptr = 0; cur = (0 if skip_first_barrier else -1); out = []; done = set(f for f in first if not frags[f].get('reads'))
    since = 10**9
    seen = set()
    def issue_one(i, force):
        nonlocal ptr, cur, since, out
        f, k = rl[ptr]
        st = frags[f]['step']
        if st > cur:
            if not force and since < cover: return False
            pre_barrier(st)
            if not (nobar and st > 0):
                if out:
                    a("s_waitcnt lgkmcnt(0)")
                    for g_, _ in out: done.add(g_)
                    out = []
                a("s_barrier")
            cur = st
            if st in stamps: a.stamp()
            if st in hooks: hooks[st]()
        if k == 0 and f not in reg:
            free = [r for r in ring if owner[r] is None or last[owner[r]] < i]
            if not free:
                assert not force, "ring too small"
                return False
            r = min(free, key=lambda r: -1 if owner[r] is None else last[owner[r]])
            reg[f] = r; owner[r] = f
        if len(out) >= 14 and not force: return False
        a(frags[f]['reads'][k](reg[f]))
        out.append((f, k)); ptr += 1; since = 0
        return True
    for i, (d, x, y) in enumerate(mf):
        need = [f for f in (x, y) if f not in done]
        while ptr < len(rl) and any(rl[j][0] in need for j in range(ptr, len(rl)) if first[rl[j][0]] <= i):
            issue_one(i, True)
        n = 0
        while ptr < len(rl) and first[rl[ptr][0]] <= i + LA:
            lim = 12 if i == 0 else (pergap + 1 if first[rl[ptr][0]] <= i + LA - slack else pergap)
            if n >= lim: break
            if not issue_one(i, False): break
            n += 1
        if extras and n <= extra_max and extras[0][0] <= cur and extras[0][2](done):
            extras.pop(0)[1]()
        need = [f for f in (x, y) if f not in done]
        if need:
            idx = max(j for j, (f, k) in enumerate(out) if f in need)
            a(f"s_waitcnt lgkmcnt({len(out) - 1 - idx})")
            for f, k in out[:idx+1]:
                if k == len(frags[f]['reads']) - 1: done.add(f)
            out = out[idx+1:]
        c = None
        if first_zero and d not in seen:
            c = "0" if first_zero is True else first_zero; seen.add(d)
        a((op or mfma)(d, reg[x], reg[y], c))
        since += 1
    assert ptr == len(rl)

def srd(a, d, p, nbytes):
    a(f"s_mov_b32 s{d}, s{p}")
    a(f"s_and_b32 s{d+1}, s{p+1}, 0xffff")
    a(f"s_mov_b32 s{d+2}, {nbytes:#x}")
    a(f"s_mov_b32 s{d+3}, 0x20000")

def prologue(a, endlabel):
    if a.diag:
        a("s_memtime s[80:81]")
    a("s_memrealtime s[84:85]")
    a("s_cmp_ge_u32 s2, 256")
    a(f"s_cbranch_scc1 {endlabel}")
    a("s_load_dwordx16 s[64:79], s[0:1], 0")
    a("s_load_dwordx4 s[88:91], s[0:1], 64")
    a("s_load_dwordx2 s[92:93], s[0:1], 80")
    if opt('cpf', 1):
        a("s_getpc_b64 s[62:63]")
        a("LF_pc:")
        a("s_lshr_b32 s61, s2, 3")
        a("s_mul_i32 s61, s61, ((LF_end - LF_pc) >> 12) + 1")
        a("v_add_u32 v3, s61, v0")
        a("v_lshlrev_b32 v3, 7, v3")
        a("v_min_u32 v3, LF_end - LF_pc, v3")
        a(f"s_mov_b32 m0, {L_MISC}")
        a("v_cmp_gt_u32 vcc, ((LF_end - LF_pc) >> 12) + 1, v0")
        a("s_and_saveexec_b64 s[60:61], vcc")
        a("s_cbranch_execz LF_npf")
        a("global_load_lds_dword v3, s[62:63]")
        a("LF_npf:")
        a("s_mov_b64 exec, -1")
    a("v_lshrrev_b32 v3, 6, v0")
    a("v_and_b32 v1, 63, v0")
    a("v_mov_b32 v2, 0")
    a(f"v_readfirstlane_b32 s{sW}, v3")
    a("s_and_b32 s53, s2, 7")
    a("s_lshr_b32 s54, s2, 3")
    a("s_lshr_b32 s55, s53, 1")
    a("s_and_b32 s56, s54, 3")
    a(f"s_lshr_b32 s{sCG}, s54, 2")
    a(f"s_lshl_b32 s{sRB}, s55, 2")
    a(f"s_add_u32 s{sRB}, s{sRB}, s56")
    a(f"s_and_b32 s{sKS}, s53, 1")
    a(f"s_lshl_b32 s{sRC}, s53, 2")
    a(f"s_add_u32 s{sRC}, s{sRC}, s56")
    a(f"s_lshl_b32 s{sGRP}, s{sKS}, 2")
    a(f"s_and_b32 s58, s{sCG}, 3")
    a(f"s_add_u32 s{sGRP}, s{sGRP}, s58")
    a(f"s_lshr_b32 s{sTYP}, s{sCG}, 2")
    if opt('zfirst', 1): a(f"s_xor_b32 s{sTYP}, s{sTYP}, 1")
    if opt('rotAm', 3) == 0:
        a(f"s_lshl_b32 s{sK0A}, s56, 1")
        a(f"s_add_u32 s{sK0A}, s{sK0A}, s{sCG}")
        a(f"s_add_u32 s{sK0A}, s{sK0A}, s55")
    elif opt('rotAm', 3) == 3:
        a(f"s_and_b32 s{sK0A}, s{sCG}, 6")
        a(f"s_add_u32 s{sK0A}, s{sK0A}, s{sKS}")
        a("s_lshl_b32 s58, s55, 1")
        a(f"s_add_u32 s{sK0A}, s{sK0A}, s58")
        a("s_lshr_b32 s58, s56, 1")
        a(f"s_add_u32 s{sK0A}, s{sK0A}, s58")
    elif opt('rotAm', 3) == 4:
        a(f"s_add_u32 s{sK0A}, s{sCG}, s56")
        a(f"s_and_b32 s{sK0A}, s{sK0A}, 1")
        a(f"s_lshl_b32 s{sK0A}, s{sK0A}, 2")
        a(f"s_add_u32 s{sK0A}, s{sK0A}, s55")
        a(f"s_lshl_b32 s58, s{sKS}, 1")
        a(f"s_add_u32 s{sK0A}, s{sK0A}, s58")
    else:
        a(f"s_lshl_b32 s{sK0A}, s{sKS}, 1")
        a(f"s_add_u32 s{sK0A}, s{sK0A}, s55")
        a(f"s_lshl_b32 s{sK0A}, s{sK0A}, 1")
        if opt('rotAm', 3) == 2:
            a("s_and_b32 s58, s56, 1")
            a(f"s_add_u32 s{sK0A}, s{sK0A}, s58")
    a(f"s_and_b32 s{sK0A}, s{sK0A}, {opt('rotA', 7)}")
    if opt('mixcg', 0):
        a("s_and_b32 s58, s56, 1")
        a("s_lshl_b32 s58, s58, 2")
        a(f"s_xor_b32 s{sCG}, s{sCG}, s58")
    if opt('rotBm', 1) == 0:
        a(f"s_lshl_b32 s{sK0B}, s{sCG}, 1")
    else:
        a(f"s_lshl_b32 s{sK0B}, s{sCG}, 1")
        if opt('k0typ', 1): a(f"s_add_u32 s{sK0B}, s{sK0B}, s{sTYP}")
        a(f"s_lshl_b32 s{sK0B}, s{sK0B}, 1")
    if opt('rotBm', 1) <= 1: a(f"s_add_u32 s{sK0B}, s{sK0B}, s{sRB}")
    if opt('rotBm', 1) == 3: a(f"s_add_u32 s{sK0B}, s{sK0B}, s55")
    if opt('rotBm', 1) == 4:
        a("s_lshl_b32 s58, s55, 2")
        a(f"s_add_u32 s{sK0B}, s{sK0B}, s58")
    a(f"s_and_b32 s{sK0B}, s{sK0B}, {opt('rotB', 15)}")
    a(f"s_and_b32 s{sQ}, s{sW}, 3")

def early_srds(a):
    if opt('sst', 0): a.stamp()
    a("s_waitcnt lgkmcnt(0)")
    srd(a, X_, 64, S*D*2)

def late_srds(a):
    srd(a, WS_, 92, 268435456)
    srd(a, DBG_, 90, 256)
    srd(a, WSP_, 74, S*S*2)
    srd(a, WO_, 68, D*D*2)
    srd(a, WOUT_, 78, FH*D*2)
    srd(a, OUT_, 88, S*D*2)
    srd(a, BSP_, 76, S*2)

def rowtile_voffs(a, d0, d1, sh, t0=3, t1=30, t2=31):
    a(f"v_lshrrev_b32 v{t0}, 3, v1")
    a(f"v_lshlrev_b32 v{t0}, {sh+1}, v{t0}")
    a(f"v_lshrrev_b32 v{t1}, 4, v1")
    a(f"v_and_b32 v{t2}, 7, v1")
    a(f"v_xor_b32 v{t1}, v{t1}, v{t2}")
    a(f"v_lshl_add_u32 v{d0}, v{t1}, 4, v{t0}")
    a(f"v_xor_b32 v{t1}, 4, v{t1}")
    a(f"v_lshl_add_u32 v{d1}, v{t1}, 4, v{t0}")
    a(f"v_add_u32 v{d1}, {(16 << sh) - 1024}, v{d1}")

def rowfrag_addr(a, d0, d1, srow, t0=3, t1=30, t2=31):
    a(f"v_and_b32 v{t0}, 15, v1")
    a(f"v_lshrrev_b32 v{t1}, 4, v1")
    a(f"v_lshrrev_b32 v{t2}, 1, v{t0}")
    a(f"v_xor_b32 v{t1}, v{t1}, v{t2}")
    a(f"v_lshlrev_b32 v{t0}, 7, v{t0}")
    a(f"v_add_u32 v{t0}, {srow}, v{t0}")
    a(f"v_lshl_add_u32 v{d0}, v{t1}, 4, v{t0}")
    a(f"v_xor_b32 v{t1}, 4, v{t1}")
    a(f"v_lshl_add_u32 v{d1}, v{t1}, 4, v{t0}")

def zw_addr(a, de, do, t0=3, t1=30, t2=31):
    a(f"v_lshrrev_b32 v{t0}, 4, v1")
    a(f"v_bfe_u32 v{t1}, v1, 2, 2")
    a(f"v_lshl_add_u32 v{t1}, v{t0}, 3, v{t1}")
    a(f"v_mul_u32_u24 v{t1}, 192, v{t1}")
    a(f"v_and_b32 v{t2}, 3, v1")
    a(f"v_lshl_add_u32 v{t1}, v{t2}, 3, v{t1}")
    a(f"v_and_b32 v{t0}, 1, v{t0}")
    a(f"v_lshlrev_b32 v{t0}, 5, v{t0}")
    a(f"v_add_u32 v{de}, v{t1}, v{t0}")
    a(f"v_sub_u32 v{do}, v{t1}, v{t0}")

def qw_addr(a, d, t0=3, t1=30, t2=31):
    a(f"v_lshrrev_b32 v{t0}, 4, v1")
    a(f"v_mul_u32_u24 v{t1}, 3072, v{t0}")
    a(f"v_bfe_u32 v{t2}, v1, 2, 2")
    a(f"v_lshl_add_u32 v{t1}, v{t2}, 7, v{t1}")
    a(f"v_and_b32 v{d}, 3, v1")
    a(f"v_lshl_add_u32 v{t1}, v{d}, 3, v{t1}")
    a(f"v_lshrrev_b32 v{t2}, 1, v{t2}")
    a(f"v_and_b32 v{t0}, 1, v{t0}")
    a(f"v_lshl_or_b32 v{t2}, v{t0}, 1, v{t2}")
    a(f"v_lshl_add_u32 v{d}, v{t2}, 5, v{t1}")

ZSLOT = [0, 28*1024, 56*1024]
W1SL = [86016 + 12288*u for u in range(6)] + [61440, 73728]
QSLOT = [86016, 43008, 0]

def gelu_core(a, xs, ts, A3, A1, RI):
    for k, (x, t) in enumerate(zip(xs, ts)): a(f"v_pk_mul_f32 {V(t,2)}, {V(x,2)}, {V(x,2)}")
    for k, (x, t) in enumerate(zip(xs, ts)): a(f"v_pk_fma_f32 {V(t,2)}, {V(t,2)}, {A3[k][0]}, {A1[k][0]} {A3[k][1]}")
    for k, (x, t) in enumerate(zip(xs, ts)): a(f"v_pk_mul_f32 {V(t,2)}, {V(t,2)}, {V(x,2)}")
    for k, (x, t) in enumerate(zip(xs, ts)):
        a(f"v_exp_f32 v{t}, v{t}"); a(f"v_exp_f32 v{t+1}, v{t+1}")
    for k, (x, t) in enumerate(zip(xs, ts)): a(f"v_pk_fma_f32 {V(t,2)}, {V(t,2)}, {RI[k][0]}, {RI[k][0]} {RI[k][1]}")
    for k, (x, t) in enumerate(zip(xs, ts)):
        a(f"v_rcp_f32 v{t}, v{t}"); a(f"v_rcp_f32 v{t+1}, v{t+1}")
    for k, (x, t) in enumerate(zip(xs, ts)): a(f"v_pk_mul_f32 {V(x,2)}, {V(x,2)}, {V(t,2)}")

def zcount(a, dG, dN):
    a(f"s_mul_i32 s{dG}, s{sGRP}, 6")
    a(f"s_min_u32 s{dG}, s{dG}, 40")
    a(f"s_sub_u32 s{dN}, 40, s{dG}")
    a(f"s_min_u32 s{dN}, s{dN}, 6")
    a(f"s_cmp_eq_u32 s{sGRP}, 7")
    a(f"s_cselect_b32 s{dN}, 3, s{dN}")

def az_compute(a, fused):
    ACC, XR = 32, 128
    ONES, SUM, GRM, CWA = 28, 80, 88, 96
    ring = list(range(80, 96, 4)) + list(range(104, 128, 4))
    a(f"s_lshl_b32 s61, s{sQ}, 12")
    rowfrag_addr(a, 10, 11, "s61")
    zw_addr(a, 12, 13)
    a(f"s_bitcmp1_b32 s{sQ}, 0")
    a("s_cselect_b64 vcc, -1, 0")
    a("v_cndmask_b32 v18, v12, v13, vcc")
    a(f"s_lshl_b32 s61, s{sQ}, 5")
    a(f"s_and_b32 s62, s{sQ}, 1")
    a("s_lshl_b32 s62, s62, 5")
    a("s_add_u32 s62, s62, 128")
    a("v_add_u32 v19, s62, v18")
    a("v_add_u32 v18, s61, v18")
    for r in range(4): a(f"v_mov_b32 v{ONES+r}, 0x3f803f80")
    zcount(a, 55, 58)
    a(f"s_lshl_b32 s61, s{sQ}, 7")
    a(f"s_add_u32 s61, s61, {L_TAB}")
    a("v_and_b32 v3, 0x30, v1")
    a("v_add_u32 v4, s61, v3")
    a(f"v_add_u32 v7, {L_CW + 384}, v3")
    a("v_and_b32 v3, 15, v1")
    a("v_lshl_add_u32 v5, v3, 2, s61")
    a("v_lshlrev_b32 v3, 2, v3")
    a(f"v_add_u32 v6, {L_CW}, v3")
    a("v_lshlrev_b32 v8, 4, v1")
    a("v_lshlrev_b32 v9, 3, v1")
    a(f"s_lshl_b32 s61, s{sQ}, 6")
    a(f"s_and_b32 s62, s{sQ}, 1")
    a("s_lshl_b32 s62, s62, 6")
    a("s_add_u32 s62, s62, 256")
    a("v_add_u32 v22, s61, v6")
    a("v_add_u32 v23, s62, v6")
    a("v_add_u32 v24, s61, v7")
    a("v_add_u32 v25, s62, v7")
    a(f"s_lshl_b32 s57, s{sRB}, 2")
    a(f"s_add_u32 s57, s57, s{sQ}")
    a(f"s_lshl_b32 s53, s{sGRP}, 6")
    a("s_add_u32 s53, s53, s57")
    a("s_mul_i32 s53, s53, 6144")
    a(f"s_add_u32 s53, s53, {WS_Z2N}")
    a("s_mul_i32 s54, s57, 48")
    a("s_add_u32 s54, s54, s55")
    a("s_lshl_b32 s54, s54, 10")
    a(f"s_add_u32 s54, s54, {WS_Z1}")
    a(f"s_lshl_b32 s56, s{sRB}, 3")
    a(f"s_add_u32 s56, s56, s{sGRP}")
    a("s_lshl_b32 s56, s56, 2")
    a(f"s_add_u32 s56, s56, s{sQ}")
    a("s_lshl_b32 s56, s56, 9")
    a(f"s_add_u32 s56, s56, {WS_ST2}")
    def xreg(s, kk, T): return XR + ((s*2 + kk)*2 + T)*4
    def wfrag(step, kk, j):
        return dict(step=step, reg=None, reads=[(lambda r, hh=hh: f"ds_read_b64_tr_b16 {V(r+2*hh,2)}, v{16+(j&1)} offset:{j*32 + kk*6144 + hh*768}") for hh in range(2)])
    def cfrag(step, kk, t):
        return dict(step=step, reg=None, reads=[(lambda r, hh=hh: f"ds_read_b64_tr_b16 {V(r+2*hh,2)}, v{20+t} offset:{kk*6144 + hh*768}") for hh in range(2)])
    fr = {}; mf = []
    for s in range(8):
        for kk in range(2):
            for T in range(2):
                fr[('x', s, kk, T)] = dict(step=s, reg=xreg(s, kk, T), reads=[lambda r, kk=kk, T=T: f"ds_read_b128 {V(r)}, v{14+kk} offset:{T*2048}"])
            for j in range(6):
                fr[('w', s, kk, j)] = wfrag(s, kk, j)
                for T in range(2): mf.append((ACC + (j*2+T)*4, ('x', s, kk, T), ('w', s, kk, j)))
                if j in (2, 5):
                    t = j // 3
                    fr[('c', s, kk, t)] = cfrag(s, kk, t)
                    mf.append((CWA+4*t, 'ones', ('c', s, kk, t)))
    fr['ones'] = dict(step=0, reg=ONES, reads=None)
    def pre1(s):
        for r in range(2): a(f"v_add_u32 v{14+r}, {ZSLOT[s % 3]}, v{10+r}")
        for r in range(2): a(f"v_add_u32 v{16+r}, {ZSLOT[s % 3] + 16384}, v{12+r}")
        for r in range(2): a(f"v_add_u32 v{20+r}, {ZSLOT[s % 3] + 16384}, v{18+r}")
    l2_setup(a, 26, True)
    ln1_publish(a)
    for r in range(2, 4): a(f"v_mov_b32 v{ONES+r}, 0x3f803f80")
    a.stamp()
    gemm_stream(a, mf, fr, ring, opt('LA', 10), opt('cover', 3), pre1, stamps=(0, 1, 4), hooks=l2_hooks(a, 26, True))
    a.stamp()
    a("s_nop 6")
    a(f"ds_write_b32 v22, v{CWA}")
    a(f"ds_write_b32 v23, v{CWA+4}")
    a("s_waitcnt lgkmcnt(0)")
    a("s_barrier")
    for T in range(2):
        for k in range(4): a(f"ds_read_b128 {V(80+16*T+4*k)}, v4 offset:{64*T + TP*k}")
    CWR = [10, 11, 14, 15, 16, 17]
    for j in range(6): a(f"ds_read_b32 v{CWR[j]}, v6 offset:{64*j}")
    a(f"s_lshl_b32 s61, s{sQ}, 12")
    a("v_add_u32 v30, s61, v8")
    a("s_waitcnt lgkmcnt(0)")
    if opt('e1st', 0): a.stamp()
    for j in range(6):
        skip = a.label("Lz2skip")
        a(f"s_cmp_gt_u32 s58, {j}")
        a(f"s_cbranch_scc0 {skip}")
        xs = [ACC + (j*2+T)*4 + 2*p for T in range(2) for p in range(2)]
        tb = [80 + 16*T + 2*p for T in range(2) for p in range(2)]
        sel = f"op_sel:[0,{j&1},0] op_sel_hi:[1,{j&1},1]"
        for x, t in zip(xs, tb): a(f"v_pk_fma_f32 {V(x,2)}, {V(t,2)}, {V(CWR[j&~1],2)}, {V(x,2)} {sel} neg_lo:[1,0,0] neg_hi:[1,0,0]")
        gelu_core(a, xs, [20, 22, 26, 28], [(V(t+4,2), "") for t in tb], [(V(t+8,2), "") for t in tb], [(V(t+12,2), "") for t in tb])
        if j == 0:
            for k, x in enumerate(xs): a(f"v_pk_add_f32 {V(112+2*k,2)}, {V(x,2)}, 0 op_sel_hi:[1,0]")
            for k, x in enumerate(xs): a(f"v_pk_mul_f32 {V(120+2*k,2)}, {V(x,2)}, {V(x,2)}")
        else:
            for k, x in enumerate(xs): a(f"v_pk_add_f32 {V(112+2*k,2)}, {V(112+2*k,2)}, {V(x,2)}")
            for k, x in enumerate(xs): a(f"v_pk_fma_f32 {V(120+2*k,2)}, {V(x,2)}, {V(x,2)}, {V(120+2*k,2)}")
        e, o = ACC + j*8, ACC + j*8 + 4
        for i in range(4): a(f"v_cvt_pk_bf16_f32 v{e+i}, v{e+i}, v{o+i}")
        a(f"ds_write_b128 v30, {V(e)} offset:{(j>>2)*16384 + (j&3)*1024}")
        a(f"{skip}:")
    if opt('e1st', 0): a.stamp()
    def val(i, T, st): return 112 + 8*st + 4*T + i
    for st in range(2):
        for T in range(2):
            for i in range(2):
                A, B = val(i, T, st), val(i+2, T, st)
                a(f"v_add_f32_dpp v{A}, v{A}, v{A} row_ror:8 row_mask:0xf bank_mask:0x3")
                a(f"v_add_f32_dpp v{A}, v{B}, v{B} row_ror:8 row_mask:0xf bank_mask:0xc")
    a("s_mov_b32 s60, 0x22222222\ns_mov_b32 s61, 0x22222222")
    for st in range(2):
        for T in range(2):
            A, B = val(0, T, st), val(1, T, st)
            a(f"v_add_f32_dpp v{A}, v{A}, v{A} row_half_mirror row_mask:0xf bank_mask:0x5")
            a(f"v_add_f32_dpp v{A}, v{B}, v{B} row_half_mirror row_mask:0xf bank_mask:0xa")
    a("s_mov_b32 s62, 0x44444444\ns_mov_b32 s63, 0x44444444")
    for qp in ("[1,0,3,2]", "[2,3,0,1]"):
        for st in range(2):
            for T in range(2):
                A = val(0, T, st)
                a(f"v_add_f32_dpp v{A}, v{A}, v{A} quad_perm:{qp} row_mask:0xf bank_mask:0xf")
    a(f"v_cndmask_b32 v112, v{val(0,0,0)}, v{val(0,0,1)}, s[60:61]")
    a("s_mov_b32 s60, 0x88888888\ns_mov_b32 s61, 0x88888888")
    a(f"v_cndmask_b32 v112, v112, v{val(0,1,0)}, s[62:63]")
    a(f"v_cndmask_b32 v112, v112, v{val(0,1,1)}, s[60:61]")
    a(f"v_mov_b32 v113, s{sT}")
    a.vmem(f"buffer_store_dwordx2 {V(112,2)}, v9, {S4(WS_)}, s56 offen sc1", "st")
    a.stamp()
    fr = {}; mf = []
    for u in range(8):
        for kk in range(2):
            for T in range(2): fr[('x', u, kk, T)] = dict(step=u, reg=xreg(u, kk, T), reads=None)
            for j in range(6):
                fr[('w', u, kk, j)] = wfrag(u, kk, j)
                for T in range(2): mf.append((ACC + (j*2+T)*4, ('w', u, kk, j), ('x', u, kk, T)))
                if j in (2, 5):
                    t = j // 3
                    fr[('c', u, kk, t)] = cfrag(u, kk, t)
                    mf.append((120+4*t, ('c', u, kk, t), 'ones'))
    fr['ones'] = dict(step=0, reg=ONES, reads=None)
    for r in range(4): a(f"v_mov_b32 v{ONES+r}, 0x3f803f80")
    a("s_waitcnt lgkmcnt(0)")
    def pre2(u):
        for r in range(2): a(f"v_add_u32 v{16+r}, {W1SL[u]}, v{12+r}")
        for r in range(2): a(f"v_add_u32 v{20+r}, {W1SL[u]}, v{18+r}")
    ring2 = list(range(80, 112, 4))
    gemm_stream(a, mf, fr, ring2, opt('LA2', 10), opt('cover', 3), pre2, nobar=1, slack=opt('sl2', 4))
    a.stamp()
    for T in range(2):
        for k in range(4): a(f"ds_read_b32 v{104+4*k+2*T}, v5 offset:{64*T + TP*k}")
    a("s_mov_b32 exec_lo, 0x00010001\ns_mov_b32 exec_hi, 0x00010001")
    a(f"ds_write_b128 v24, {V(120)}")
    a(f"ds_write_b128 v25, {V(124)}")
    a("s_mov_b64 exec, -1")
    a("s_waitcnt lgkmcnt(0)")
    a.vmall()
    a("s_barrier")
    for j in range(6): a(f"ds_read_b128 {V(80+4*j)}, v7 offset:{64*j}")
    a("s_waitcnt lgkmcnt(0)")
    for j in range(6):
        skip = a.label("Lz1skip")
        a(f"s_cmp_gt_u32 s58, {j}")
        a(f"s_cselect_b32 s{64+j}, s54, {OOB}")
        a(f"s_cbranch_scc0 {skip}")
        xs = [ACC + (j*2+T)*4 + 2*p for T in range(2) for p in range(2)]
        for k, x in enumerate(xs): a(f"v_pk_fma_f32 {V(x,2)}, {V(80+4*j+2*(k%2),2)}, {V(104+2*(k//2),2)}, {V(x,2)} op_sel_hi:[1,0,1] neg_lo:[1,0,0] neg_hi:[1,0,0]")
        b = "op_sel_hi:[1,0,0]"
        gelu_core(a, xs, [20, 22, 26, 28], [(V(108+2*(k//2),2), b) for k in range(4)], [(V(112+2*(k//2),2), b) for k in range(4)], [(V(116+2*(k//2),2), b) for k in range(4)])
        e = ACC + j*8
        for k, x in enumerate(xs): a(f"v_cvt_pk_bf16_f32 v{e+k}, v{x}, v{x+1}")
        a("s_nop 1")
        for p in range(2): a(f"v_permlane32_swap_b32 v{e+p}, v{e+2+p}")
        a(f"{skip}:")
        if j >= 4: a(f"s_add_u32 s{64+j}, s{64+j}, 4096")
        if not opt('defer', 0): a.vmem(f"buffer_store_dwordx4 {V(e)}, v8, {S4(WS_)}, s{64+j} offen offset:{(j%4)*1024} sc1", "z1")
    a.stamp()

def red_g(a, regs, op="v_add_f32", tmp=60):
    n = len(regs)
    for sw in ("v_permlane32_swap_b32", "v_permlane16_swap_b32"):
        for k, r in enumerate(regs): a(f"v_mov_b32 v{tmp+k}, v{r}")
        if n < 3: a("s_nop 1")
        for k, r in enumerate(regs): a(f"{sw} v{r}, v{tmp+k}")
        for k, r in enumerate(regs): a(f"{op} v{r}, v{r}, v{tmp+k}")

def wsp_setup_h(a):
    rowtile_voffs(a, 8, 9, 12)
    a(f"s_lshl_b32 s59, s{sRB}, 2")
    a(f"s_add_u32 s59, s59, s{sQ}")
    a("s_lshl_b32 s59, s59, 17")
    a(f"s_lshl_b32 s61, s{sKS}, 11")
    a("s_add_u32 s59, s59, s61")

def wsp_group_h(a, v):
    a(f"s_add_u32 s61, s{sK0B}, {v}")
    a("s_and_b32 s61, s61, 15")
    a("s_lshl_b32 s61, s61, 7")
    a("s_add_u32 s61, s61, s59")
    a(f"s_add_u32 m0, s60, {(v % NWS) * 16384}")
    a("s_add_u32 s62, s61, 4096")
    a.vmem(f"buffer_load_dwordx4 v8, {S4(WSP_)}, s61 offen {NT('s')}lds", ("S", v))
    a.vmem(f"buffer_load_dwordx4 v9, {S4(WSP_)}, s61 offen offset:1024 {NT('s')}lds", ("S", v))
    a(f"s_add_u32 m0, s60, {(v % NWS) * 16384 + 2048}")
    a("s_nop 0")
    a.vmem(f"buffer_load_dwordx4 v8, {S4(WSP_)}, s62 offen {NT('s')}lds", ("S", v))
    a.vmem(f"buffer_load_dwordx4 v9, {S4(WSP_)}, s62 offen offset:1024 {NT('s')}lds", ("S", v))

def l2_setup(a, d, ztype):
    a("v_lshrrev_b32 v31, 4, v1")
    a("v_lshlrev_b32 v31, 12, v31")
    a("v_and_b32 v30, 15, v1")
    a(f"v_lshl_add_u32 v{d}, v30, 7, v31")
    a(f"v_lshlrev_b32 v{d+1}, 7, v1")
    a(f"s_lshl_b32 s68, s{sRB}, 3")
    a(f"s_add_u32 s68, s68, s{sCG}")
    a("s_lshl_b32 s68, s68, 2")
    a(f"s_add_u32 s68, s68, s{sQ}")
    a("s_lshl_b32 s68, s68, 14")
    a(f"s_lshl_b32 s61, s{sKS}, 11")
    a("s_add_u32 s68, s68, s61")
    a("s_lshr_b32 s61, s2, 3")
    a("s_lshl_b32 s61, s61, 2")
    a(f"s_add_u32 s61, s61, s{sQ}")
    a("s_lshl_b32 s69, s61, 12")
    a(f"s_mul_i32 s70, s61, {43*128}")
    a(f"s_mov_b32 m0, {L_MISC}")
    if ztype and opt('l2w1', 0):
        srd(a, WA_, 72, D*F2*2)
        a("v_lshrrev_b32 v31, 1, v1")
        a("v_mul_u32_u24 v31, 2752, v31")
        a("v_and_b32 v30, 1, v1")
        a("v_mul_u32_u24 v30, 188, v30")
        a("v_add_u32 v3, v30, v31")
        a(f"s_and_b32 s71, s{sRB}, 3")
        a("s_lshl_b32 s71, s71, 2")
        a(f"s_add_u32 s71, s71, s{sQ}")
        a(f"s_mul_i32 s71, s71, {32*2752}")
        a("s_lshl_b32 s61, s55, 5")
        a("s_add_u32 s71, s71, s61")
        if opt('l2w1', 0) == 1:
            a.vmem(f"buffer_load_dword v3, {S4(WA_)}, s71 offen lds", "pf")
def l2_hooks(a, d, ztype):
    hk = {}
    def add(st, f):
        hk.setdefault(st, []).append(f)
    def lanes(k, n, tot):
        lo, hi = k*tot//n, (k+1)*tot//n
        m = ((1 << hi) - 1) ^ ((1 << lo) - 1)
        a(f"s_mov_b32 exec_lo, {m & 0xffffffff:#x}\ns_mov_b32 exec_hi, {m >> 32:#x}")
    if ztype and opt('l2w1', 0) == 2:
        add(0, lambda: a.vmem(f"buffer_load_dword v3, {S4(WA_)}, s71 offen lds", "pf"))
    if opt('l2pf', 0):
        nt = 'nt' if opt('l2nt', 0) else ''
        s0 = opt('l2s0', 1); n = opt('l2n', 2)
        for k in range(n):
            def h(k=k):
                lanes(k, n, 64)
                a.vmem(f"buffer_load_dword v{d}, {S4(WSP_)}, s68 offen {nt} lds", "pf")
                a("s_mov_b64 exec, -1")
            add(s0 + k, h)
    if opt('l2cw', -1) >= 0:
        def h2():
            a("s_mov_b32 exec_hi, 0")
            a.vmem(f"buffer_load_dword v{d+1}, {S4(WO_)}, s69 offen lds", "pf")
            a("s_mov_b32 exec_hi, 0x7ff")
            a.vmem(f"buffer_load_dword v{d+1}, {S4(WOUT_)}, s70 offen lds", "pf")
            a("s_mov_b32 exec_hi, -1")
        add(opt('l2cw', 0), h2)
    return {st: (lambda fs=fs: a.run(fs)) for st, fs in hk.items()}

def q_prefetch(a, k):
    if not opt('qpf', 1): return
    if k < 2:
        a("v_lshrrev_b32 v31, 4, v1")
        a("v_lshlrev_b32 v31, 12, v31")
        a("v_and_b32 v30, 15, v1")
        a("v_lshl_add_u32 v30, v30, 7, v31")
        a(f"s_lshl_b32 s61, s{sRB}, 2")
        a(f"s_add_u32 s61, s61, s{sCG}")
        a("s_lshl_b32 s61, s61, 2")
        a(f"s_add_u32 s61, s61, s{sQ}")
        a("s_lshl_b32 s61, s61, 15")
        a(f"s_lshl_b32 s62, s{sKS}, 11")
        a("s_add_u32 s61, s61, s62")
        a(f"s_mov_b32 m0, {L_MISC}")
        a(f"s_add_u32 s61, s61, {16384*k}")
        for o in range(0, 128, opt('sec', 128)):
            a.vmem(f"buffer_load_dword v30, {S4(WSP_)}, s61 offen offset:{o} {NT('p')}lds", "pf")
        return
    a("s_lshr_b32 s61, s2, 3")
    a("s_lshl_b32 s61, s61, 2")
    a(f"s_add_u32 s61, s61, s{sQ}")
    a("v_lshlrev_b32 v31, 7, v1")
    a(f"s_mov_b32 m0, {L_MISC}")
    if k == 2:
        a("s_lshl_b32 s62, s61, 13")
        for o in range(0, 128, opt('sec', 128)): a.vmem(f"buffer_load_dword v31, {S4(WO_)}, s62 offen offset:{o} lds", "pf")
    else:
        a(f"s_mul_i32 s63, s61, {86*128}")
        a(f"s_add_u32 s63, s63, {43*128*(k-3)}")
        a("s_mov_b32 exec_hi, 0x7ff")
        for o in range(0, 128, opt('sec', 128)): a.vmem(f"buffer_load_dword v31, {S4(WOUT_)}, s63 offen offset:{o} lds", "pf")
        a("s_mov_b32 exec_hi, -1")

def q_spread_setup(a):
    a("v_lshrrev_b32 v31, 4, v1")
    a("v_lshlrev_b32 v31, 12, v31")
    a("v_and_b32 v30, 15, v1")
    a("v_lshl_add_u32 v12, v30, 7, v31")
    a(f"s_lshl_b32 s64, s{sRB}, 2")
    a(f"s_add_u32 s62, s{sCG}, {opt('trot', 0)}")
    a("s_and_b32 s62, s62, 3")
    a("s_add_u32 s64, s64, s62")
    a("s_lshl_b32 s64, s64, 2")
    a(f"s_add_u32 s64, s64, s{sQ}")
    a("s_lshl_b32 s64, s64, 15")
    a(f"s_lshl_b32 s62, s{sKS}, 11")
    a("s_add_u32 s64, s64, s62")
    a("s_add_u32 s67, s64, 16384")
    a("s_lshr_b32 s61, s2, 3")
    a("s_lshl_b32 s61, s61, 2")
    a(f"s_add_u32 s61, s61, s{sQ}")
    a("v_lshlrev_b32 v13, 7, v1")
    a("s_lshl_b32 s65, s61, 13")
    a(f"s_mul_i32 s66, s61, {86*128}")
    a("s_add_u32 s68, s66, 8192")
    a("v_lshlrev_b32 v14, 10, v1")
    a("s_and_b32 s61, s61, 15")
    a("s_lshl_b32 s71, s61, 15")
    a(f"s_add_u32 s61, s{sCG}, 4")
    a("s_lshl_b32 s61, s61, 7")
    a("s_add_u32 s71, s71, s61")
    a(f"s_add_u32 s61, s2, {opt('mrot', 0)}")
    a("s_and_b32 s61, s61, 127")
    a("s_lshl_b32 s61, s61, 2")
    a(f"s_add_u32 s61, s61, s{sQ}")
    a("s_lshl_b32 s73, s61, 10")
    a(f"s_mul_i32 s74, s61, {11*128}")
    a(f"s_mul_i32 s77, s61, {5*128}")
    a(f"s_add_u32 s77, s77, {WS_FLG}")
    a("s_lshl_b32 s78, s61, 9")
    a(f"s_add_u32 s78, s78, {WS_ST2}")
    a(f"s_mul_i32 s79, s61, {48*128}")
    a(f"s_add_u32 s79, s79, {WS_Z2N}")
    a(f"s_mul_i32 s94, s61, {96*128}")
    a(f"s_add_u32 s94, s94, {WS_H}")
    a("s_add_u32 s95, s94, 8192")
def q_spread(a, k, n, which, frac=None, nt=None):
    items = {'s': [(WSP_, 12, 64, 64), (WSP_, 12, 67, 64)], 'c': [(WO_, 13, 65, 64), (WOUT_, 13, 66, 64), (WOUT_, 13, 68, 22)],
             'o': [(WO_, 14, 71, 32)], 'u': [(WOUT_, 13, 66, 64), (WOUT_, 13, 68, 22)],
             'm': [(WO_, 13, 73, 8), (WOUT_, 13, 74, 11)],
             'f': [(WS_, 13, 77, 5), (WS_, 13, 78, 4)], 'z': [(WS_, 13, 79, 48)], 'h': [(WS_, 13, 94, 64), (WS_, 13, 95, 32)]}[which]
    tot = sum(x[3] for x in items)
    lo, hi = k*tot//n, (k+1)*tot//n
    if frac: lo, hi = frac
    a(f"s_mov_b32 m0, {L_MISC}")
    base = 0
    for R, v, so, cnt in items:
        l, h = max(lo - base, 0), min(hi - base, cnt)
        if h > l:
            m = ((1 << h) - 1) ^ ((1 << l) - 1)
            a(f"s_mov_b32 exec_lo, {m & 0xffffffff:#x}\ns_mov_b32 exec_hi, {m >> 32:#x}")
            a.vmem(f"buffer_load_dword v{v}, {S4(R)}, s{so} offen {'nt ' if (opt('ntp' + which, 1 if which == 's' else 0) if nt is None else nt) else ''}lds", "pf")
        base += cnt
    a("s_mov_b64 exec, -1")

def z_slice_touch(a):
    a("s_lshr_b32 s61, s2, 3")
    a("s_and_b32 s61, s61, 3")
    a("s_lshl_b32 s61, s61, 2")
    a(f"s_add_u32 s61, s61, s{sQ}")
    a(f"s_add_u32 s63, s{sCG}, 4")
    a("s_lshl_b32 s63, s63, 7")
    a("s_lshl_b32 s62, s61, 15")
    a("s_add_u32 s62, s62, s63")
    a(f"s_mul_i32 s61, s61, {43*1024}")
    a("s_add_u32 s63, s63, s61")
    a("v_lshlrev_b32 v31, 10, v1")
    a(f"s_mov_b32 m0, {L_MISC}")
    a("s_mov_b32 exec_hi, 0")
    a.vmem(f"buffer_load_dword v31, {S4(WO_)}, s62 offen lds", "pf")
    a("s_mov_b32 exec_hi, 0x7ff")
    a.vmem(f"buffer_load_dword v31, {S4(WOUT_)}, s63 offen lds", "pf")
    a("s_mov_b32 exec_hi, -1")

def x_group_h(a, step, sl, tag):
    a(f"s_add_u32 s61, s{sK0A}, {step}")
    a("s_and_b32 s61, s61, 7")
    a("s_lshl_b32 s58, s61, 7")
    a("s_add_u32 s62, s58, s53")
    a(f"s_add_u32 m0, s60, {sl}")
    a("s_add_u32 s63, s62, 1024")
    a.vmem(f"buffer_load_dwordx4 v4, {S4(X_)}, s62 offen {NT('x')}lds", tag)
    a.vmem(f"buffer_load_dwordx4 v5, {S4(X_)}, s62 offen offset:1024 {NT('x')}lds", tag)
    a(f"s_add_u32 m0, s60, {sl + 2048}")
    a("s_nop 0")
    a.vmem(f"buffer_load_dwordx4 v4, {S4(X_)}, s63 offen {NT('x')}lds", tag)
    a.vmem(f"buffer_load_dwordx4 v5, {S4(X_)}, s63 offen offset:1024 {NT('x')}lds", tag)

def dots_x(a, fr, acc_s, acc_q, ones):
    for i in range(4):
        a(f"v_dot2_f32_bf16 v{acc_s}, v{fr+i}, v{ones}, v{acc_s}")
        a(f"v_dot2_f32_bf16 v{acc_q}, v{fr+i}, v{fr+i}, v{acc_q}")

def diag_sel(a, dst, gram):
    a("s_mov_b32 s62, 0x22222222\ns_mov_b32 s63, 0x22222222")
    a(f"v_cndmask_b32 v{dst}, v{gram}, v{gram+1}, s[62:63]")
    a("s_mov_b32 s62, 0x44444444\ns_mov_b32 s63, 0x44444444")
    a(f"v_cndmask_b32 v{dst}, v{dst}, v{gram+2}, s[62:63]")
    a("s_mov_b32 s62, 0x88888888\ns_mov_b32 s63, 0x88888888")
    a(f"v_cndmask_b32 v{dst}, v{dst}, v{gram+3}, s[62:63]")
DIAG_LO, DIAG_HI = 0x00f0000f, 0xf0000f00

def row_finalize(a, s_, q_, t):
    a(f"v_mul_f32 v{s_}, {f2u(1.0/512):#x}, v{s_}")
    a(f"v_mul_f32 v{q_}, {f2u(1.0/512):#x}, v{q_}")
    a(f"v_fma_f32 v{q_}, -v{s_}, v{s_}, v{q_}")
    a(f"v_max_f32 v{q_}, 0, v{q_}")
    a(f"v_add_f32 v{q_}, {f2u(1e-5):#x}, v{q_}")

def nonce_publish(a):
    l = a.label("Lnn")
    a(f"s_or_b32 s61, s2, s{sW}")
    a("s_cmp_lg_u32 s61, 0")
    a(f"s_cbranch_scc1 {l}")
    a("s_or_b32 s62, s84, 1")
    a("v_mov_b32 v30, s62")
    a("v_lshlrev_b32 v31, 6, v1")
    a("s_mov_b64 exec, 15")
    a(f"buffer_store_dword v30, v31, {S4(DBG_)}, 0 offen sc1")
    a("s_mov_b64 exec, -1")
    a(f"{l}:")

def nonce_check(a):
    a.vmwait("poll")
    def chk():
        a(f"v_readfirstlane_b32 s{sT}, v25")
        a(f"s_cmp_lg_u32 s{sT}, 0")
    def iss():
        a("v_mov_b32 v31, 0")
        a(f"buffer_load_dword v25, v31, {S4(DBG_)}, 0 offen sc1")
    spin(a, iss, chk)

def wave_flag(a):
    a(f"s_lshl_b32 s61, s{sGRP}, 4")
    a(f"s_add_u32 s61, s61, s{sRB}")
    a("s_lshl_b32 s61, s61, 2")
    a(f"s_add_u32 s61, s61, s{sQ}")
    a("s_lshl_b32 s61, s61, 7")
    a(f"s_add_u32 s61, s61, {F1_OFF}")
    a(f"v_mov_b32 v30, s{sT}")
    a("v_mov_b32 v31, 0")
    a("s_mov_b64 exec, 1")
    a.vmem(f"buffer_store_dword v30, v31, {S4(WS_)}, s61 offen sc1", "flag")
    a("s_mov_b64 exec, -1")

def spin(a, issue, check_ok, limit=0x8000):
    lp = a.label("Lspin"); ok = a.label("Lok")
    check_ok()
    a(f"s_cbranch_scc1 {ok}")
    a("s_mov_b32 s63, 0")
    a(f"{lp}:")
    issue()
    a("s_waitcnt vmcnt(0)")
    a("s_add_u32 s63, s63, 1")
    a(f"s_cmp_gt_u32 s63, {limit}")
    a(f"s_cbranch_scc1 {ok}")
    check_ok()
    a(f"s_cbranch_scc0 {lp}")
    a(f"{ok}:")

def az_helper(a, fused):
    rowtile_voffs(a, 4, 5, 10)
    for i in range(3):
        a(f"v_add_u32 v3, {64*i}, v1")
        a("v_mul_u32_u24 v30, 683, v3")
        a("v_lshrrev_b32 v30, 13, v30")
        a("v_mul_u32_u24 v31, 12, v30")
        a("v_sub_u32 v31, v3, v31")
        a("v_lshrrev_b32 v3, 2, v30")
        a("v_and_b32 v3, 2, v3")
        a("v_xor_b32 v31, v3, v31")
        a("v_mul_u32_u24 v30, 2752, v30")
        a(f"v_lshl_add_u32 v{20+i}, v31, 4, v30")
        if i: a(f"v_subrev_u32 v{20+i}, {1024*i}, v{20+i}")
    a(f"s_lshl_b32 s53, s{sRB}, 2")
    a(f"s_add_u32 s53, s53, s{sQ}")
    a("s_lshl_b32 s53, s53, 15")
    a(f"s_mul_i32 s55, s{sGRP}, 6")
    a("s_min_u32 s55, s55, 40")
    a(f"s_mul_i32 s54, s{sQ}, {16*2752}")
    a("s_lshl_b32 s61, s55, 5")
    a("s_add_u32 s54, s54, s61")
    a(f"s_mul_i32 s56, s{sQ}, 3072")
    a(f"s_lshl_b32 s60, s{sQ}, 12")
    def wgroup(kreg_ready, step, dst, add, tag):
        if not kreg_ready:
            a(f"s_add_u32 s61, s{sK0A}, {step}")
            a("s_and_b32 s61, s61, 7")
        a(f"s_mul_i32 s63, s61, {64*2752}")
        a("s_add_u32 s63, s63, s54")
        a(f"s_add_u32 m0, s56, {dst}")
        if add: a(f"s_add_u32 s63, s63, {add}")
        else: a("s_nop 0")
        for i in range(3):
            a.vmem(f"buffer_load_dwordx4 v{20+i}, {S4(WA_)}, s63 offen offset:{1024*i} {NT('w')}lds", tag)
    def ga(step):
        x_group_h(a, step, ZSLOT[step % 3], ("A", step))
        wgroup(True, step, ZSLOT[step % 3] + 16384, 1376, ("A", step))
    npro = opt('proZ', 2)
    early_srds(a)
    srd(a, WA_, 72, D*F2*2)
    ga(0)
    for st in range(1, npro): ga(st)
    if opt('sst', 0): a.stamp()
    a.split("LF_hz1")
    if opt('sst', 0): a.stamp()
    late_srds(a)
    wsp_setup_h(a)
    a("v_lshlrev_b32 v10, 3, v1")
    a(f"s_lshl_b32 s64, s{sRB}, 5")
    a(f"s_add_u32 s64, s64, s{sQ}")
    a("s_lshl_b32 s64, s64, 9")
    a(f"s_add_u32 s64, s64, {WS_ST2}")
    a("s_add_u32 s65, s64, 4096\ns_add_u32 s66, s64, 8192\ns_add_u32 s67, s64, 12288")
    a("v_lshlrev_b32 v11, 4, v1")
    a("v_add_u32 v11, s60, v11")
    a(f"s_lshl_b32 s61, s{sQ}, 8")
    a(f"s_add_u32 s61, s61, {L_XCH}")
    a("v_lshrrev_b32 v12, 1, v1")
    a("v_lshl_add_u32 v12, v12, 2, s61")
    a("v_lshrrev_b32 v13, 4, v1")
    a("v_lshl_add_u32 v13, v13, 5, s61")
    a("v_lshrrev_b32 v3, 5, v1")
    a("v_mul_u32_u24 v3, 3072, v3")
    a("v_bfe_u32 v30, v1, 4, 1")
    a("v_lshl_add_u32 v3, v30, 9, v3")
    a("v_and_b32 v30, 15, v1")
    a("v_lshl_add_u32 v14, v30, 4, v3")
    a(f"s_lshl_b32 s57, s{sGRP}, 4")
    a(f"s_add_u32 s57, s57, s{sRB}")
    a("s_lshl_b32 s57, s57, 2")
    a(f"s_add_u32 s57, s57, s{sQ}")
    a("s_mul_i32 s57, s57, 6144")
    a(f"s_add_u32 s57, s57, {WS_Z2N}")
    a("v_mov_b32 v16, 0xffff0000")
    a.stamp()
    nw1 = 0
    for s in range(8):
        a.vmwait(("A", s))
        a("s_barrier")
        if s in (0, 1, 4): a.stamp()
        if s == 0: a(f"s_load_dword s{sT}, s[90:91], 128")
        if s + npro < 8: ga(s + npro)
        if s == 0: get_nonce(a, -1)
        if s == opt('st1z', 5): ln1_fetch_issue(a, False)
        if s == 7: ln1_fetch_finish(a, False)
        if s + npro >= 8:
            for u in (nw1, nw1 + 1): wgroup(False, u, W1SL[u], 0, ("W1", u))
            nw1 += 2
    a.stamp()
    a("s_barrier")
    for u in range(nw1, 8): wgroup(False, u, W1SL[u], 0, ("W1", u))
    if opt('zcw', 1) == 1: cw_load(a, 0, 38)
    a.vmwait(("W1", 7))
    a("s_barrier")
    a(f"s_setprio {opt('nprio', 3)}")
    for j in range(6): a(f"ds_read_b128 {V(56+8*j+4)}, v11 offset:{(j>>2)*16384 + (j&3)*1024}")
    def iss():
        for c in range(8):
            a(f"buffer_load_dwordx2 {V(32+2*c,2)}, v10, {S4(WS_)}, s{64 + (c>>1)} offen offset:{2048*(c&1)} sc1")
    def chk():
        for c in range(8): a(f"v_xor_b32 v{48+c}, s{sT}, v{33+2*c}")
        a("v_or3_b32 v48, v48, v49, v50\nv_or3_b32 v51, v51, v52, v53\nv_or3_b32 v48, v48, v54, v55")
        a("v_or_b32 v48, v48, v51")
        a("v_cmp_ne_u32 vcc, 0, v48")
        a("s_cmp_eq_u64 vcc, 0")
    a("s_waitcnt lgkmcnt(0)")
    for j in range(6):
        for w in range(4):
            u = 56 + 8*j
            if w < 3:
                a(f"v_lshlrev_b32 v{u+2*w}, 16, v{u+4+w}")
                a(f"v_and_b32 v{u+2*w+1}, v16, v{u+4+w}")
            else:
                a(f"v_lshlrev_b32 v{u+6}, 16, v{u+7}")
                a(f"v_and_b32 v{u+7}, v16, v{u+7}")
    zcount(a, 62, 58)
    if opt('stdelay', 8): a(f"s_sleep {opt('stdelay', 8)}")
    iss(); a("s_waitcnt vmcnt(0)")
    spin(a, iss, chk)
    a.stamp()
    for k in (2, 4, 6): a(f"v_add_f32 v{32+2*k}, v{32+2*k}, v{34+2*k}")
    a("v_add_f32 v32, v32, v34")
    a("v_add_f32 v36, v36, v40")
    a("v_add_f32 v32, v32, v44")
    a("v_add_f32 v32, v32, v36")
    a(f"v_mul_f32 v32, {f2u(1.0/688):#x}, v32")
    a("s_nop 1")
    a("v_mov_b32_dpp v33, v32 quad_perm:[1,0,3,2] row_mask:0xf bank_mask:0xf")
    a("v_fma_f32 v33, -v32, v32, v33")
    a("v_max_f32 v33, 0, v33")
    a(f"v_add_f32 v33, {f2u(1e-5):#x}, v33")
    a("v_rsq_f32 v33, v33")
    a("s_nop 0")
    a("v_mul_f32_e64 v48, -v32, v33")
    a("v_mov_b32 v49, v33")
    a("s_nop 0")
    for w in range(8): a(f"v_mov_b32_dpp v{40+w}, v48 row_newbcast:{2*w} row_mask:0xf bank_mask:0xf")
    for w in range(8): a(f"v_mov_b32_dpp v{32+w}, v49 row_newbcast:{2*w} row_mask:0xf bank_mask:0xf")
    for j in range(6):
        u = 56 + 8*j; z = u
        for w in range(8): a(f"v_fma_f32 v{u+w}, v{u+w}, v{32+w}, v{40+w}")
        for w in range(4): a(f"v_cvt_pk_bf16_f32 v{z+w}, v{u+2*w}, v{u+2*w+1}")
        a(f"s_cmp_gt_u32 s58, {j}")
        a(f"s_cselect_b32 s61, s57, {OOB}")
        a.vmem(f"buffer_store_dwordx4 {V(z)}, v14, {S4(WS_)}, s61 offen offset:{(j>>1)*1024 + (j&1)*256} sc1", "z2n")
    a("s_setprio 0")
    a.stamp()
    a.vmwait("z2n")
    wave_flag(a)
    a.stamp()
    for v in range(3): wsp_group_h(a, v)
    a("s_barrier")
    for v in range(3, opt('wp', 4)): wsp_group_h(a, v)
    a(f"s_mov_b32 s72, {opt('wp', 4)}")
    if opt('zcw', 1) == 0: cw_load(a, 0, 38)

def aq_compute(a, fused):
    AQ, AK, AV, HK, HV = 32, 64, 96, 128, 136
    ONES, SUM, GRM, XA = 28, 224, 232, 240
    CWQ = [240, 128, 132, 136, 140, 244]
    ring = list(range(144, 200, 4))
    MC, MPN, MPA, MB = 200, 204, 208, 216
    a(f"s_lshr_b32 s5, s{sQ}, 1")
    a(f"s_and_b32 s46, s{sQ}, 1")
    a("s_lshl_b32 s61, s5, 13")
    rowfrag_addr(a, 10, 11, "s61")
    rowfrag_addr(a, 12, 13, 16384)
    qw_addr(a, 14)
    a("v_add_u32 v14, 18432, v14")
    a("s_lshl_b32 s61, s46, 6")
    a("v_xor_b32 v14, s61, v14")
    a("v_xor_b32 v15, 32, v14")
    a("v_and_b32 v3, 15, v1")
    a("v_lshrrev_b32 v30, 4, v1")
    a("v_lshlrev_b32 v30, 2, v30")
    a("v_sub_u32 v31, v3, v30")
    a(f"v_mov_b32 v224, {NEG:#x}")
    a("v_mov_b32 v225, 0xffff")
    a("v_mov_b32 v226, 0xffff0000")
    for i in range(4):
        a(f"v_subrev_u32 v227, {i}, v31")
        a("v_cmp_gt_u32 vcc, 8, v227")
        a("v_cmp_gt_i32 s[62:63], -8, v227")
        a("s_nop 0")
        a(f"v_cndmask_b32_e64 v{MC+i}, v224, 0, vcc")
        a(f"v_cndmask_b32_e64 v{228+i}, 0, v{225 + (i&1)}, vcc")
        a(f"v_cndmask_b32_e64 v{MPN+i}, v224, 0, s[62:63]")
    a(f"v_or_b32 v{MB}, v228, v229")
    a(f"v_or_b32 v{MB+1}, v230, v231")
    a("s_lshl_b32 s61, s5, 8")
    a(f"s_add_u32 s61, s61, {L_TAB}")
    a("v_and_b32 v27, 0x30, v1")
    a("v_add_u32 v218, s61, v27")
    a("v_lshl_add_u32 v219, v3, 2, s61")
    a("s_lshl_b32 s61, s46, 7")
    a(f"s_add_u32 s61, s61, {L_CW}")
    a("v_add_u32 v220, s61, v27")
    a("v_lshl_add_u32 v221, v3, 2, s61")
    a("v_lshlrev_b32 v222, 4, v1")
    a("s_lshl_b32 s61, s46, 12")
    a(f"s_add_u32 s61, s61, {L_XCH}")
    a("v_add_u32 v223, s61, v222")
    a(f"s_lshl_b32 s53, s{sRB}, 1")
    a("s_add_u32 s53, s53, s5")
    a("s_lshl_b32 s53, s53, 4")
    a(f"s_add_u32 s53, s53, s{sGRP}")
    a("s_lshl_b32 s53, s53, 1")
    a("s_add_u32 s53, s53, s46")
    a("s_lshl_b32 s53, s53, 11")
    a(f"s_add_u32 s53, s53, {WS_O}")
    a("s_add_u32 s54, s53, 32768")
    a("v_lshrrev_b32 v27, 4, v1")
    a("v_lshlrev_b32 v27, 9, v27")
    a("v_lshl_add_u32 v4, v3, 4, v27")
    a(f"s_lshl_b32 s61, s{sQ}, 2")
    a(f"s_add_u32 s61, s61, {L_FLG}")
    a("v_mov_b32 v7, s61")
    a("v_xor_b32 v8, 8, v7")
    a("s_lshl_b32 s61, s46, 2")
    a(f"s_add_u32 s61, s61, {L_FLG + 16}")
    a("v_mov_b32 v9, s61")
    a("v_mov_b32 v27, 0")
    a("ds_write_b32 v7, v27")
    a("ds_write_b32 v9, v27")
    AT = 16
    def build(halo, hp):
        fr = {'ones': dict(step=0, reg=ONES, reads=None)}; mf = []
        for s in range(8):
            for kk in range(2):
                for tl in range(4):
                    fr[('x', s, kk, tl)] = dict(step=s, reg=None, reads=[lambda r, kk=kk, tl=tl: f"ds_read_b128 {V(r)}, v{AT+kk} offset:{tl*2048}"])
                fr[('h', s, kk)] = dict(step=s, reg=None, reads=[lambda r, kk=kk: f"ds_read_b128 {V(r)}, v{AT+2+kk}"])
                for m in range(3):
                    for e in range(2):
                        w = ('w', s, kk, m, e)
                        fr[w] = dict(step=s, reg=None, reads=[(lambda r, hh=hh, kk=kk, m=m, e=e: f"ds_read_b64_tr_b16 {V(r+2*hh,2)}, v{AT+4+e} offset:{kk*12288 + m*1024 + hh*512}") for hh in range(2)])
                        for tl in range(4):
                            d = (AQ, AK, AV)[m] + (e*4+tl)*4
                            mf.append((d, w, ('x', s, kk, tl)) if m < 2 else (d, ('x', s, kk, tl), w))
                        if halo and m == 1: mf.append((HK+4*e, w, ('h', s, kk)))
                        if halo and m == 2: mf.append((HV+4*e, ('h', s, kk), w))
                        if halo == (m*2+e == 0): mf.append((CWQ[m*2+e], 'ones', w))
        return mf, fr
    def stats_out(halo):
        a("s_nop 6")
        for k in ([0] if halo else range(1, 6)): a(f"ds_write_b32 v221, v{CWQ[k]} offset:{256*(k>>1) + 64*(k&1)}")
    def pre(s):
        for r in range(6): a(f"v_add_u32 v{AT+r}, {QSLOT[s % 3]}, v{10+r}")
        if s == 0: a("s_waitcnt lgkmcnt(0)")
    a("v_mov_b32 v26, v30")
    a('v_mov_b32 v27, v3'); l2_setup(a, 5, False)
    a("v_mov_b32 v27, v3")
    ln1_publish(a)
    a("v_mov_b32 v3, v27")
    a("v_mov_b32 v30, v26")
    lr1 = a.label("Lrh1"); lj = a.label("Lqj")
    a("s_cmp_lg_u32 s5, 0")
    a(f"s_cbranch_scc1 {lr1}")
    a("v_lshlrev_b32 v3, 1, v3")
    a("v_sub_u32 v31, v30, v3")
    a(f"s_cmp_eq_u32 s{sRB}, 0")
    a("s_cselect_b32 s61, 1000, 0")
    a("v_subrev_u32 v31, s61, v31")
    for T in range(2):
        for i in range(4):
            if (i ^ T) & 1:
                a(f"v_mov_b32 v{MPA+4*T+i}, v224")
            else:
                a(f"v_cmp_le_i32 vcc, {T + 2 - i}, v31")
                a("s_nop 1")
                a(f"v_cndmask_b32_e64 v{MPA+4*T+i}, v224, 0, vcc")
    n0 = a.nst
    for halo in (True, False):
        if not halo:
            a(f"{lr1}:")
            for i in range(8): a(f"v_mov_b32 v{MPA+i}, v{MPN+(i&3)}")
        for r in range(4): a(f"v_mov_b32 v{ONES+r}, 0x3f803f80")
        a.nst = n0
        a.stamp()
        mf, fr = build(halo, 0)
        vm0 = list(a.vm)
        gemm_stream(a, mf, fr, ring, opt('LA', 10), opt('cover', 3), pre, stamps=(0, 1, 4), hooks=l2_hooks(a, 5, False))
        vm1 = list(a.vm); a.vm = vm0
        a.stamp()
        stats_out(halo)
        if halo: a(f"s_branch {lj}")
    a(f"{lj}:")
    a.vm = vm1
    a("v_mov_b32 v26, 1")
    a("s_waitcnt lgkmcnt(0)")
    a("ds_write_b32 v7, v26")
    lds_wait(a, 8, 1, 27)
    for k in range(2): a(f"ds_read_b128 {V(152+4*k)}, v220 offset:{256 + 64*k}")
    for tl in range(4):
        a(f"ds_read_b32 v{162+tl}, v219 offset:{64*tl}")
        a(f"ds_read_b32 v{166+tl}, v219 offset:{64*tl + TP}")
    for e in range(2): a(f"ds_read_b32 v{160+e}, v221 offset:{512 + 64*e}")
    a("s_waitcnt lgkmcnt(2)")
    for tl in range(4):
        a(f"ds_read_b128 {V(172+4*tl)}, v218 offset:{64*tl}")
        a(f"ds_read_b128 {V(10+4*tl)}, v218 offset:{64*tl + TP}")
    for k in range(2): a(f"ds_read_b128 {V(144+4*k)}, v220 offset:{64*k}")
    def corr_t(x, cw, mreg, rreg):
        for p in range(2): a(f"v_pk_fma_f32 {V(x+2*p,2)}, {V(cw+2*p,2)}, {V(mreg&~1,2)}, {V(x+2*p,2)} op_sel:[0,{mreg&1},0] op_sel_hi:[1,{mreg&1},1] neg_lo:[1,0,0] neg_hi:[1,0,0]")
        for p in range(2): a(f"v_pk_mul_f32 {V(x+2*p,2)}, {V(x+2*p,2)}, {V(rreg&~1,2)} op_sel:[0,{rreg&1}] op_sel_hi:[1,{rreg&1}]")
    def corr_c(x, mv, rv, cw):
        for p in range(2): a(f"v_pk_fma_f32 {V(x+2*p,2)}, {V(mv+2*p,2)}, {V(cw&~1,2)}, {V(x+2*p,2)} op_sel:[0,{cw&1},0] op_sel_hi:[1,{cw&1},1] neg_lo:[1,0,0] neg_hi:[1,0,0]")
        for p in range(2): a(f"v_pk_mul_f32 {V(x+2*p,2)}, {V(x+2*p,2)}, {V(rv+2*p,2)}")
    def pack(dst, x):
        for p in range(2): a(f"v_cvt_pk_bf16_f32 v{dst+p}, v{x+2*p}, v{x+2*p+1}")
    KV = 224
    def kp(e, tl): return KV + 8*tl + 2*e
    def vp(e, tl): return KV + 8*tl + 4 + 2*e
    for tl in (2, 3, 0, 1):
        for e in range(2): corr_t(AK + (e*4+tl)*4, 152+4*e, 162+tl, 166+tl)
        for e in range(2): pack(kp(e, tl), AK + (e*4+tl)*4)
    a("s_waitcnt lgkmcnt(0)")
    for tl in (2, 3, 0, 1):
        for e in range(2): corr_c(AV + (e*4+tl)*4, 172+4*tl, 10+4*tl, 160+e)
        for e in range(2): pack(vp(e, tl), AV + (e*4+tl)*4)
        if tl == 3:
            lx = a.label("Lx")
            a("s_cmp_lg_u32 s5, 0")
            a(f"s_cbranch_scc1 {lx}")
            for k in range(4): a(f"ds_write_b128 v223, {V(KV+16+4*k)} offset:{1024*k}")
            a("ds_write_b32 v9, v26")
            a("ds_read_b32 v26, v219 offset:512")
            a(f"ds_read_b32 v27, v219 offset:{512 + TP}")
            a(f"ds_read_b128 {V(188)}, v218 offset:512")
            a(f"ds_read_b128 {V(192)}, v218 offset:{512 + TP}")
            a(f"{lx}:")
    PV = 64
    lh = a.label("Lnh")
    a("s_cmp_lg_u32 s5, 0")
    a(f"s_cbranch_scc1 {lh}")
    a("s_waitcnt lgkmcnt(0)")
    for e in range(2):
        corr_t(HK+4*e, 152+4*e, 26, 27)
        corr_c(HV+4*e, 188, 192, 160+e)
    for e in range(2):
        for T in range(2):
            pack(PV + 8*T + 2*e, HK+4*e)
            pack(PV + 8*T + 4 + 2*e, HV+4*e)
    a(f"{lh}:")
    QP = 96
    for e in range(2):
        for tl in range(4):
            x = AQ + (e*4+tl)*4; m_ = 162 + tl
            for p in range(2): a(f"v_pk_fma_f32 {V(x+2*p,2)}, {V(144+4*e+2*p,2)}, {V(m_&~1,2)}, {V(x+2*p,2)} op_sel:[0,{m_&1},0] op_sel_hi:[1,{m_&1},1] neg_lo:[1,0,0] neg_hi:[1,0,0]")
    for k in range(8): pack(QP+2*k, AQ+4*k)
    for tl in range(4): a(f"v_mul_f32 v{10+tl}, {f2u(0.25*LOG2E):#x}, v{166+tl}")
    for r in range(2): a(f"v_mov_b32 v{14+r}, 0x3f803f80")
    lp = a.label("Lp")
    a("s_cmp_eq_u32 s5, 0")
    a(f"s_cbranch_scc1 {lp}")
    lds_wait(a, 9, 1, 27)
    for k in range(4): a(f"ds_read_b128 {V(PV+4*k)}, v223 offset:{1024*k}")
    a(f"{lp}:")
    SC, SP = 112, 144
    U = range(8)
    def kprev(u): e, tl = u//4, u%4; return kp(e, tl-2) if tl >= 2 else PV + 8*tl + 2*e
    def vprev(u): e, tl = u//4, u%4; return vp(e, tl-2) if tl >= 2 else PV + 8*tl + 4 + 2*e
    for u in U: a(mfma16(SC+4*u, kp(u//4, u%4), QP+2*u, V(MC)))
    for u in (2, 3, 6, 7): a(mfma16(SP+4*u, kprev(u), QP+2*u, V(MPN)))
    a("s_waitcnt lgkmcnt(0)")
    for u in (0, 1, 4, 5): a(mfma16(SP+4*u, kprev(u), QP+2*u, V(MPA+4*(u&1))))
    MX, TM = 32, 40
    for u in (2, 3, 6, 7, 0, 1, 4, 5):
        for i in range(4): a(f"v_max_f32 v{SC+4*u+i}, v{SC+4*u+i}, v{SP+4*u+i}")
    for u in U: a(f"v_max3_f32 v{MX+u}, v{SC+4*u}, v{SC+4*u+1}, v{SC+4*u+2}")
    for u in U: a(f"v_max_f32 v{MX+u}, v{MX+u}, v{SC+4*u+3}")
    a("s_nop 0")
    for b in (0, 4):
        a(f"v_permlane32_swap_b32 v{MX+b}, v{MX+b+1}")
        a(f"v_permlane32_swap_b32 v{MX+b+2}, v{MX+b+3}")
    for b in (0, 4):
        a(f"v_max_f32 v{MX+b}, v{MX+b}, v{MX+b+1}")
        a(f"v_max_f32 v{MX+b+2}, v{MX+b+2}, v{MX+b+3}")
    a("s_nop 0")
    for b in (0, 4): a(f"v_permlane16_swap_b32 v{MX+b}, v{MX+b+2}")
    for b in (0, 4): a(f"v_max_f32 v{MX+b}, v{MX+b}, v{MX+b+2}")
    for b in (0, 4): a(f"v_mov_b32 v{MX+b+2}, v{MX+b}")
    a("s_nop 1")
    for b in (0, 4): a(f"v_permlane16_swap_b32 v{MX+b}, v{MX+b+2}")
    for b in (0, 4):
        a(f"v_mov_b32 v{MX+b+1}, v{MX+b}")
        a(f"v_mov_b32 v{MX+b+3}, v{MX+b+2}")
    a("s_nop 0")
    for b in (0, 4):
        a(f"v_permlane32_swap_b32 v{MX+b}, v{MX+b+1}")
        a(f"v_permlane32_swap_b32 v{MX+b+2}, v{MX+b+3}")
    for u in range(0, 8, 2): a(f"v_pk_mul_f32 {V(MX+u,2)}, {V(MX+u,2)}, {V(10+(u&3),2)}")
    for u in U:
        c_ = 10 + (u & 3)
        for p in range(2): a(f"v_pk_fma_f32 {V(SC+4*u+2*p,2)}, {V(SC+4*u+2*p,2)}, {V(c_&~1,2)}, {V(MX+(u&~1),2)} op_sel:[0,{c_&1},{u&1}] op_sel_hi:[1,{c_&1},{u&1}] neg_lo:[0,0,1] neg_hi:[0,0,1]")
    for u in U:
        for i in range(4): a(f"v_exp_f32 v{SC+4*u+i}, v{SC+4*u+i}")
    PC, PP = 144, 160
    for u in U: pack(PP+2*u, SC+4*u)
    OA = 176
    for u in U:
        a(mfma16(SC+4*u, 14, PP+2*u, "0"))
        for p in range(2): a(f"v_and_b32 v{PC+2*u+p}, v{MB+p}, v{PP+2*u+p}")
    for u in U:
        for p in range(2): a(f"v_xor_b32 v{PP+2*u+p}, v{PC+2*u+p}, v{PP+2*u+p}")
        a(mfma16(OA+4*u, vp(u//4, u%4), PC+2*u, "0"))
    for u in U:
        a(mfma16(OA+4*u, vprev(u), PP+2*u))
        a(f"v_rcp_f32 v{MX+u}, v{SC+4*u}")
    a("s_nop 1")
    for u in U:
        for p in range(2): a(f"v_pk_mul_f32 {V(OA+4*u+2*p,2)}, {V(OA+4*u+2*p,2)}, {V(MX+(u&~1),2)} op_sel:[0,{u&1}] op_sel_hi:[1,{u&1}]")
    for tl in range(4):
        for e in range(2): pack(112 + 4*tl + 2*e, OA + 4*(e*4+tl))
    for tl in range(4):
        for p in range(2): a(f"v_permlane32_swap_b32 v{112+4*tl+p}, v{112+4*tl+2+p}")
    a.vmwait("b")
    a("s_mov_b32 s64, s53\ns_mov_b32 s65, s54")
    for tl in range(4):
        if not opt('defer', 0): a.vmem(f"buffer_store_dwordx4 {V(112+4*tl)}, v4, {S4(WS_)}, s{53+(tl>>1)} offen offset:{256*(tl&1)} sc1", "o")
    a(f"s_lshl_b32 s61, s{sRB}, 3")
    a(f"s_add_u32 s61, s61, s{sGRP}")
    a("s_lshl_b32 s61, s61, 2")
    a(f"s_add_u32 s61, s61, s{sQ}")
    a("s_lshl_b32 s61, s61, 7")
    a(f"s_add_u32 s75, s61, {FO_OFF}")
    a.stamp()

def aq_helper(a, fused):
    early = opt('qearly', 1); c6, c7, c8 = opt('c6', 8), opt('c7', 22), opt('c8', 30)
    PFS = [int(c, 16) for c in str(opt('pfs', 55234))]
    rowtile_voffs(a, 4, 5, 10)
    a("v_bfe_u32 v3, v1, 4, 1")
    a("v_lshlrev_b32 v3, 1, v3")
    a("v_and_b32 v30, 7, v1")
    a("v_xor_b32 v30, v30, v3")
    a("v_lshrrev_b32 v3, 3, v1")
    a("v_mul_u32_u24 v3, 3072, v3")
    a("v_lshl_add_u32 v6, v30, 4, v3")
    a("v_xor_b32 v30, 4, v30")
    a("v_lshl_add_u32 v7, v30, 4, v3")
    a(f"v_add_u32 v7, {8*3072}, v7")
    a("v_lshrrev_b32 v3, 4, v1")
    a(f"s_lshl_b32 s61, s{sQ}, 1")
    a("v_add_u32 v3, s61, v3")
    a("v_and_b32 v30, 7, v1")
    a("v_xor_b32 v30, v30, v3")
    a("v_and_b32 v30, 7, v30")
    a("v_lshrrev_b32 v3, 3, v1")
    a("v_lshlrev_b32 v3, 10, v3")
    a("v_lshl_add_u32 v20, v30, 4, v3")
    a(f"s_lshl_b32 s53, s{sRB}, 7")
    a("s_sub_u32 s55, s53, 16")
    a("s_max_i32 s55, s55, 0")
    a(f"s_lshl_b32 s61, s{sQ}, 2")
    a("s_add_u32 s55, s55, s61")
    a("s_lshl_b32 s55, s55, 10")
    a(f"s_lshl_b32 s61, s{sQ}, 5")
    a("s_add_u32 s53, s53, s61")
    a("s_lshl_b32 s53, s53, 10")
    a(f"s_mul_i32 s54, s{sQ}, {16*3072}")
    a(f"s_lshl_b32 s61, s{sGRP}, 7")
    a("s_add_u32 s54, s54, s61")
    a(f"s_mul_i32 s56, s{sQ}, 6144")
    a(f"s_lshl_b32 s57, s{sQ}, 9")
    a(f"s_lshl_b32 s60, s{sQ}, 12")
    def ga(step):
        sl = QSLOT[step % 3]; tag = ("A", step)
        x_group_h(a, step, sl, tag)
        a(f"s_mul_i32 s63, s61, {64*3072}")
        a("s_add_u32 s63, s63, s54")
        a(f"s_add_u32 m0, s56, {sl + 18432}")
        a("s_add_u32 s62, s58, s55")
        for m in range(3): a.vmem(f"buffer_load_dwordx4 v6, {S4(WA_)}, s63 offen offset:{1024*m} {NT('w')}lds", tag)
        a(f"s_add_u32 m0, s56, {sl + 18432 + 3072}")
        a("s_nop 0")
        for m in range(3): a.vmem(f"buffer_load_dwordx4 v7, {S4(WA_)}, s63 offen offset:{1024*m} {NT('w')}lds", tag)
        a(f"s_add_u32 m0, s57, {sl + 16384}")
        a("s_mov_b32 exec_hi, 0")
        a.vmem(f"buffer_load_dwordx4 v20, {S4(X_)}, s62 offen {NT('x')}lds", tag)
        a("s_mov_b32 exec_hi, -1")
    early_srds(a)
    srd(a, WA_, 66, D*1536*2)
    ga(0)
    ga(1)
    if opt('proQ', 2) == 3: ga(2)
    if opt('sst', 0): a.stamp()
    a.split("LF_hq1")
    if opt('sst', 0): a.stamp()
    late_srds(a)
    if fused: wsp_setup_h(a)
    q_spread_setup(a)
    a.stamp()
    for s in range(8):
        a.vmwait(("A", s))
        a("s_barrier")
        if s in (0, 1, 4): a.stamp()
        if s == 0: a(f"s_load_dword s{sT}, s[90:91], 128")
        if (0 if opt('proQ', 2) == 2 else 1) <= s <= 5: ga(s + 2)
        if s == 0: get_nonce(a, -1)
        if s == opt('st1q', 3): ln1_fetch_issue(a, True)
        if s == 6: ln1_fetch_finish(a, True)
        if s == opt('mt', 0): q_spread(a, 0, 1, 'm')
        if s == opt('ft', 0): q_spread(a, 0, 1, 'f')
        if s == opt('zt', 99): q_spread(a, 0, 1, 'z')
        if s == opt('ht', 99): q_spread(a, 0, 1, 'h')
        s0 = opt('sp0', 3)
        if s0 <= s < 6: q_spread(a, s - s0, 6 - s0, 's')
        if s == opt('retouch', 6): q_spread(a, 0, 1, 's', nt=0)
        if s == opt('qcw', 9): cw_load(a, 0, 16)
        if s == 7:
            for v in (0, 1, 6)[:opt('w7', 3)]: wsp_group_h(a, v)
    a.stamp()
    if opt('qcw', 9) == 8: cw_load(a, 0, 16)
    a(f"v_mov_b32 v30, {L_FLG}")
    lds_wait(a, 30, 4, 32)
    for v in [v for v in range(NWS) if v not in (0, 1, 6)[:opt('w7', 3)]]: wsp_group_h(a, v)
    if opt('qcw', 9) == 9: cw_load(a, 0, 16)
    a(f"s_mov_b32 s72, {NWS}")

def flag_store(a, which):
    if which == "F1":
        a(f"s_lshl_b32 s61, s{sRB}, 3")
        a(f"s_add_u32 s61, s61, s{sGRP}")
        off = F1_OFF
    else:
        a(f"s_lshl_b32 s61, s{sRB}, 1")
        a(f"s_add_u32 s61, s61, s{sTYP}")
        a("s_lshl_b32 s61, s61, 3")
        a(f"s_add_u32 s61, s61, s{sGRP}")
        off = F2_OFF
    a("s_lshl_b32 s61, s61, 7")
    a(f"s_add_u32 s61, s61, {off}")
    a(f"s_cmp_eq_u32 s{sQ}, 0")
    a(f"s_cselect_b32 s61, s61, {OOB}")
    a(f"v_mov_b32 v30, s{sT}")
    a("v_mov_b32 v31, 0")
    a("s_mov_b64 exec, 1")
    a.vmem(f"buffer_store_dword v30, v31, {S4(WS_)}, s61 offen sc1", "flag")
    a("s_mov_b64 exec, -1")

def mfma32(d, a, b, c=None):
    c = V(d, 16) if c is None else c
    return f"v_mfma_f32_32x32x16_bf16 {V(d,16)}, {V(a)}, {V(b)}, {c}"

def get_nonce(a, line):
    if line >= 0: a(f"s_load_dword s{sT}, s[90:91], {64*line}")
    a("s_waitcnt lgkmcnt(0)")
    first = [True]
    def chk():
        if not first[0]: a(f"v_readfirstlane_b32 s{sT}, v30")
        first[0] = False
        a(f"s_cmp_lg_u32 s{sT}, 0")
    def iss():
        a("s_sleep 2")
        a("v_mov_b32 v31, 0")
        a(f"buffer_load_dword v30, v31, {S4(DBG_)}, 0 offen sc1")
    spin(a, iss, chk)

L_FLG = L_MISC + 256
def lds_wait(a, areg, n, t):
    lp = a.label("Llw"); ok = a.label("Llk")
    a("s_mov_b32 s63, 0")
    a(f"{lp}:")
    a(f"ds_read_b32 v{t}, v{areg}" if n == 1 else f"ds_read_b128 {V(t)}, v{areg}")
    a("s_add_u32 s63, s63, 1")
    a("s_waitcnt lgkmcnt(0)")
    if n > 1:
        a(f"v_and_b32 v{t}, v{t}, v{t+1}\nv_and_b32 v{t+2}, v{t+2}, v{t+3}\nv_and_b32 v{t}, v{t}, v{t+2}")
    a(f"v_cmp_ne_u32 vcc, 0, v{t}")
    a(f"s_cbranch_vccnz {ok}")
    a("s_cmp_lt_u32 s63, 0x100000")
    a(f"s_cbranch_scc1 {lp}")
    a(f"{ok}:")

def ln1_issue(a):
    a(f"s_lshl_b32 s61, s{sRB}, 1")
    a(f"s_add_u32 s61, s61, s{sTYP}")
    a("s_lshl_b32 s61, s61, 3")
    a(f"s_add_u32 s61, s61, s{sGRP}")
    a("s_lshl_b32 s61, s61, 2")
    a(f"s_add_u32 s47, s61, s{sQ}")
    a("s_lshl_b32 s61, s47, 11")
    a("v_lshrrev_b32 v3, 5, v1")
    a("v_lshlrev_b32 v3, 10, v3")
    a("v_and_b32 v30, 31, v1")
    a("v_lshl_add_u32 v3, v30, 4, v3")
    a.vmem(f"buffer_load_dwordx4 {V(40)}, v3, {S4(X_)}, s61 offen", "ln1")
    a.vmem(f"buffer_load_dwordx4 {V(44)}, v3, {S4(X_)}, s61 offen offset:512", "ln1")
def ln1_publish(a):
    a("v_mov_b32 v48, 0x3f803f80")
    a("v_mov_b32 v32, 0\nv_mov_b32 v33, 0\nv_mov_b32 v34, 0\nv_mov_b32 v35, 0")
    a("s_lshl_b32 s47, s47, 5")
    a(f"s_add_u32 s47, s47, {WS_ST1}")
    a("v_lshrrev_b32 v3, 1, v1")
    a.vmwait("ln1")
    for i in range(8):
        a(f"v_dot2_f32_bf16 v{32+(i&1)}, v{40+i}, v48, v{32+(i&1)}")
        a(f"v_dot2_f32_bf16 v{34+(i&1)}, v{40+i}, v{40+i}, v{34+(i&1)}")
    a("s_nop 2")
    a("v_add_f32 v32, v32, v33")
    a("v_add_f32 v34, v34, v35")
    for r in (8, 4, 2, 1):
        a("s_nop 0")
        a(f"v_add_f32_dpp v32, v32, v32 row_ror:{r} row_mask:0xf bank_mask:0xf")
        a(f"v_add_f32_dpp v34, v34, v34 row_ror:{r} row_mask:0xf bank_mask:0xf")
    a("v_mov_b32 v33, v32\nv_mov_b32 v35, v34")
    a("s_nop 1")
    a("v_permlane16_swap_b32 v32, v33\nv_permlane16_swap_b32 v34, v35")
    a("v_add_f32 v32, v32, v33\nv_add_f32 v34, v34, v35")
    row_finalize(a, 32, 34, 0)
    get_nonce(a, 1)
    a(f"v_mov_b32 v33, s{sT}\nv_mov_b32 v35, s{sT}")
    a("s_mov_b32 exec_lo, 1\ns_mov_b32 exec_hi, 1")
    a.vmem(f"buffer_store_dwordx4 {V(32)}, v3, {S4(WS_)}, s47 offen sc1", "ln1s")
    a("s_mov_b64 exec, -1")

def ln1_fetch_issue(a, halo):
    a(f"s_lshl_b32 s69, s{sRB}, 2")
    a(f"s_add_u32 s69, s69, s{sQ}")
    a("s_lshl_b32 s69, s69, 9")
    a(f"s_add_u32 s69, s69, {WS_ST1}")
    a(f"s_lshl_b32 s70, s{sRB}, 11")
    a("s_sub_u32 s70, s70, 256")
    a("s_max_i32 s70, s70, 0")
    a(f"s_add_u32 s70, s70, {WS_ST1}")
    a("v_lshlrev_b32 v36, 3, v1")
    a("v_and_b32 v37, 0xff, v36")
    a.vmem(f"buffer_load_dwordx2 {V(32,2)}, v36, {S4(WS_)}, s69 offen sc1", "st1")
    if halo: a.vmem(f"buffer_load_dwordx2 {V(34,2)}, v37, {S4(WS_)}, s70 offen sc1", "st1")
def ln1_fetch_finish(a, halo):
    a.vmwait("st1")
    def iss():
        a(f"buffer_load_dwordx2 {V(32,2)}, v36, {S4(WS_)}, s69 offen sc1")
        if halo: a(f"buffer_load_dwordx2 {V(34,2)}, v37, {S4(WS_)}, s70 offen sc1")
    def chk():
        a(f"v_cmp_ne_u32 vcc, s{sT}, v33")
        if halo:
            a(f"v_cmp_ne_u32 s[61:62], s{sT}, v35".replace("s[61:62]", "s[72:73]"))
            a("s_nop 0")
            a("s_or_b64 vcc, vcc, s[72:73]")
        a("s_cmp_eq_u64 vcc, 0")
    spin(a, iss, chk)
    a("v_bfe_u32 v38, v1, 1, 1")
    a("v_lshrrev_b32 v39, 2, v1")
    a("v_lshl_add_u32 v38, v38, 4, v39")
    a(f"s_lshl_b32 s61, s{sQ}, 7")
    a(f"s_add_u32 s61, s61, {L_TAB}")
    a("v_lshl_add_u32 v38, v38, 2, s61")
    a("v_mov_b32_dpp v33, v32 quad_perm:[1,0,3,2] row_mask:0xf bank_mask:0xf")
    if halo:
        a("v_mov_b32_dpp v35, v34 quad_perm:[1,0,3,2] row_mask:0xf bank_mask:0xf")
        a("v_lshlrev_b32 v39, 1, v1")
        a("v_and_b32 v39, 0x3c, v39")
        a(f"v_add_u32 v39, {L_TAB + 512}, v39")
        a("v_rsq_f32 v33, v33\nv_rsq_f32 v35, v35")
        a("s_mov_b32 exec_lo, 0x55555555\ns_mov_b32 exec_hi, 0x55555555")
        a(f"ds_write_b32 v38, v32\nds_write_b32 v38, v33 offset:{TP}")
        a(f"ds_write_b32 v39, v34\nds_write_b32 v39, v35 offset:{TP}")
    else:
        a("v_rsq_f32 v34, v33")
        a("v_sqrt_f32 v33, v33")
        a("v_mul_f32 v35, v34, v34")
        a("v_mul_f32 v35, v35, v34")
        a(f"v_mul_f32 v35, {f2u(-C2):#x}, v35")
        a(f"v_mul_f32 v34, {f2u(-C1):#x}, v34")
        a("s_mov_b32 exec_lo, 0x55555555\ns_mov_b32 exec_hi, 0x55555555")
        for k, r in enumerate((32, 35, 34, 33)): a(f"ds_write_b32 v38, v{r} offset:{TP*k}")
    a("s_mov_b64 exec, -1")
    a("s_waitcnt lgkmcnt(0)")

def b_early(a):
    a("v_and_b32 v3, 15, v1")
    a("v_bfe_u32 v31, v1, 4, 1")
    a("v_lshl_add_u32 v3, v3, 1, v31")
    a("v_lshlrev_b32 v3, 1, v3")
    a(f"s_lshl_b32 s61, s{sRB}, 2")
    a(f"s_add_u32 s61, s61, s{sQ}")
    a("s_lshl_b32 s61, s61, 6")
    a(f"s_cmp_eq_u32 s{sKS}, 0")
    a("s_cselect_b32 s61, s61, 4096")
    a.vmem(f"buffer_load_ushort v0, v3, {S4(BSP_)}, s61 offen", "b")

def b_compute(a, fused):
    ACC = 32
    ring = list(range(80, 144, 4))
    Z1 = 144
    OF = 168
    a("v_and_b32 v3, 31, v1")
    a("v_lshrrev_b32 v30, 5, v1")
    a("v_bfe_u32 v31, v1, 1, 3")
    a("v_xor_b32 v31, v30, v31")
    a("v_lshlrev_b32 v3, 7, v3")
    a("v_lshl_add_u32 v10, v31, 4, v3")
    a(f"s_lshl_b32 s61, s{sQ}, 12")
    a("v_add_u32 v10, s61, v10")
    for b4 in range(1, 4): a(f"v_xor_b32 v{10+b4}, {32*b4}, v10")
    for b4 in range(4): a(f"v_add_u32 v{14+b4}, 0x10000, v{10+b4}")
    a("v_lshlrev_b32 v19, 4, v1")
    a(f"v_add_u32 v18, {L_Z2}, v19")
    a(f"v_add_u32 v21, {L_Z2 + 49152}, v19")
    a("v_and_b32 v3, 15, v1")
    a("v_bfe_u32 v31, v1, 4, 1")
    a("v_lshlrev_b32 v20, 9, v31")
    a("v_lshl_add_u32 v20, v30, 8, v20")
    a("v_lshl_add_u32 v20, v3, 4, v20")
    a(f"s_lshl_b32 s57, s{sRB}, 2")
    a(f"s_add_u32 s57, s57, s{sQ}")
    if not fused: b_early(a)
    a(f"s_mul_i32 s55, s{sCG}, 6")
    a("s_min_u32 s55, s55, 40")
    a("s_sub_u32 s58, 40, s55")
    a("s_min_u32 s58, s58, 6")
    a(f"s_cmp_eq_u32 s{sCG}, 7")
    a("s_cselect_b32 s58, 3, s58")
    a("s_mul_i32 s53, s57, 48")
    a("s_add_u32 s53, s53, s55")
    a("s_lshl_b32 s53, s53, 10")
    a(f"s_mul_i32 s61, s{sKS}, {64*48*1024}")
    a("s_add_u32 s54, s53, s61")
    a(f"s_add_u32 s53, s53, {WS_Z1}")
    a(f"s_add_u32 s54, s54, {WS_H}")
    a("s_add_u32 s59, s54, 4096")
    a(f"s_mov_b32 s60, {OOB}")
    if not fused: a.vmwait("b")
    a("v_lshlrev_b32 v22, 16, v0")
    for r in range(16): a(f"v_mov_b32 v{232+r}, v22")
    def z1_load():
        pass
    def z1_piece(j):
        def f():
            if j == 4: a("s_add_u32 s53, s53, 4096")
            if j >= 3:
                a(f"s_cmp_gt_u32 s58, {j}")
                a("s_cselect_b32 s53, s53, s60")
            a.vmem(f"buffer_load_dwordx4 {V(Z1+4*j)}, v20, {S4(WS_)}, s53 offen offset:{(j%4)*1024} sc1", "z1")
        return f
    extras = []
    zs = opt('z1step', 13)
    for j in range(6): extras.append((zs, z1_piece(j), lambda done: True, 99))
    a(f"s_lshl_b32 s56, s{sRC}, 1")
    a(f"s_and_b32 s61, s{sQ}, 1")
    a("s_add_u32 s56, s56, s61")
    a("s_lshl_b32 s56, s56, 1")
    a(f"s_lshr_b32 s61, s{sQ}, 1")
    a("s_add_u32 s56, s56, s61")
    a("s_lshl_b32 s56, s56, 14")
    a(f"s_add_u32 s56, s56, {WS_O}")
    def o_piece(b):
        def f():
            if b and b % 4 == 0: a("s_add_u32 s56, s56, 4096")
            a.vmem(f"buffer_load_dwordx4 {V(OF+4*b)}, v19, {S4(WS_)}, s56 offen offset:{(b%4)*1024} sc1", ("o", b))
        return f
    a.o_piece = o_piece
    def preB(st):
        if fused and st == opt('f2step', 2):
            a(f"v_mov_b32 v30, s{sT}")
            a("v_mov_b32 v31, 0")
            a.vmall()
            a("s_mov_b64 exec, 1")
            a.vmem(f"buffer_store_dword v30, v31, {S4(WS_)}, s75 offen sc1", "flag")
            a("s_mov_b64 exec, -1")
    fr = {}; mf = []
    for i in range(16):
        for b4 in range(4):
            fr[('w', i, b4)] = dict(step=i, reg=None, reads=[lambda r, i=i, b4=b4: f"ds_read_b128 {V(r)}, v{10 + b4 + 4*((i%NWS)//4)} offset:{((i%NWS)%4)*16384}"])
            for c in range(3):
                fr[('z', i, b4, c)] = dict(step=i, reg=None, reads=[lambda r, i=i, b4=b4, c=c: f"ds_read_b128 {V(r)}, v{18 if ZOFF(i) < 49152 else 21} offset:{ZOF2(i) + (b4*3+c)*1024}"])
                mf.append((ACC+16*c, ('z', i, b4, c), ('w', i, b4)))
    a.stamp()
    a("s_barrier")
    if opt('defer', 0):
        lz = a.label("Ldz"); le = a.label("Lde")
        a(f"s_cmp_lg_u32 s{sTYP}, 0")
        a(f"s_cbranch_scc1 {lz}")
        for tl in range(4): a(f"buffer_store_dwordx4 {V(112+4*tl)}, v4, {S4(WS_)}, s{64+(tl>>1)} offen offset:{256*(tl&1)} sc1")
        a(f"s_branch {le}")
        a(f"{lz}:")
        for j in range(6): a(f"buffer_store_dwordx4 {V(32+8*j)}, v19, {S4(WS_)}, s{64+j} offen offset:{(j%4)*1024} sc1")
        a(f"{le}:")
    gemm_stream(a, mf, fr, ring, opt('LAB', 5), opt('coverB', 2), preB,
                first_zero=V(232, 16), stamps=(0, 1, 8, 10, 12, 14), pergap=opt('pgB', 2), slack=2, op=mfma32, extras=extras)
    for e in extras: e[1]()
    a.stamp()
    a("s_barrier")
    a.vmwait("z1")
    a("v_mov_b32 v23, 0xffff0000")
    for j in range(6):
        x = ACC + 8*j; z = Z1 + 4*j; t = 80 + 8*(j&1)
        for k in range(4):
            a(f"v_lshlrev_b32 v{t+2*k}, 16, v{z+k}")
            a(f"v_and_b32 v{t+2*k+1}, v23, v{z+k}")
        a(f"s_cmp_gt_u32 s58, {j}")
        a(f"s_cselect_b32 s61, s{54 if j < 4 else 59}, s60")
        for k in range(4): a(f"v_pk_mul_f32 {V(x+2*k,2)}, {V(x+2*k,2)}, {V(t+2*k,2)}")
        for k in range(4): a(f"v_cvt_pk_bf16_f32 v{x+k}, v{x+2*k}, v{x+2*k+1}")
        a.vmem(f"buffer_store_dwordx4 {V(x)}, v19, {S4(WS_)}, s61 offen offset:{(j%4)*1024} sc1", "h")
    a.stamp()

CR = 104
NCR = int(os.environ.get('NCR', 16))
def cw_load(a, lo, hi):
    if NCR == 0: return
    if lo == 0: cw_load_setup(a)
    for i in range(lo, min(hi, NCR)):
        R, k = (WO_, i) if i < 16 else (WOUT_, i - 16)
        a(f"s_add_u32 s46, s47, {k*32768}")
        a.vmem(f"buffer_load_dwordx4 {V(CR+4*i)}, v26, {S4(R)}, s46 offen", "CW")
def cw_load_setup(a):
    a("v_bfe_u32 v3, v1, 4, 1")
    a("v_lshlrev_b32 v3, 2, v3")
    a("v_and_b32 v30, 7, v1")
    a("v_xor_b32 v30, v30, v3")
    a("v_lshrrev_b32 v3, 3, v1")
    a("v_lshlrev_b32 v3, 10, v3")
    a("v_lshl_add_u32 v26, v30, 4, v3")
    a(f"s_lshl_b32 s47, s{sCG}, 7")
    a(f"s_lshl_b32 s61, s{sQ}, 13")
    a("s_add_u32 s47, s47, s61")
def cw_dma(a, lo, hi):
    for i in range(max(lo, NCR), hi):
        off = CSLOT[i // 4]*16384 + (4*i % 16)*1024
        R, k = (WO_, i) if i < 16 else (WOUT_, i - 16)
        a(f"s_add_u32 m0, s76, {off}")
        a(f"s_add_u32 s46, s47, {k*32768}")
        a.vmem(f"buffer_load_dwordx4 v26, {S4(R)}, s46 offen lds", "WO" if i < 16 else "CW2")
def cw_write(a, lo, hi):
    for i in range(lo, min(hi, NCR)):
        g4 = 4*i
        off = CSLOT[g4 // 16]*16384 + (g4 % 16)*1024
        a(f"ds_write_b128 v{27 + (off >> 16)}, {V(CR+4*i)} offset:{off & 0xffff}")

CSLOT = [2, 3, 4, 5, 6, 0, 1, 7, 8, 9]; assert True
def b_helper(a, fused):
    if not fused:
        late_srds(a)
        wsp_setup_h(a)
        a(f"s_lshl_b32 s60, s{sQ}, 12")
    a("v_lshlrev_b32 v10, 4, v1")
    a(f"s_lshl_b32 s61, s{sQ}, 10")
    a("v_add_u32 v27, s61, v10")
    a("v_add_u32 v28, 0x10000, v27")
    a("v_add_u32 v29, 0x20000, v27")
    a(f"s_lshl_b32 s53, s{sCG}, 1")
    a(f"s_add_u32 s53, s53, s{sKS}")
    a(f"s_mul_i32 s53, s53, {16*12288}")
    a(f"s_mul_i32 s54, s{sQ}, 3072")
    a("s_add_u32 s53, s53, s54")
    a(f"s_add_u32 s53, s53, {WS_Z2N}")
    a(f"s_add_u32 s54, s54, {L_Z2}")
    a(f"s_cmp_ge_u32 s{sCG}, 6")
    a(f"s_cselect_b32 s61, {OOB}, 0")
    a("v_add_u32 v15, s61, v10")
    a(f"s_cmp_eq_u32 s{sCG}, 7")
    a("s_cselect_b32 s61, 24, 0")
    a("v_and_b32 v14, 16, v1")
    a("v_lshlrev_b32 v14, s61, v14")
    a("v_and_b32 v14, 0x10000000, v14")
    a("v_add_u32 v14, v14, v10")
    def z2_group(i):
        a(f"s_add_u32 s61, s{sK0B}, {i}")
        a("s_and_b32 s61, s61, 15")
        a("s_mul_i32 s61, s61, 12288")
        a(f"s_add_u32 m0, s54, {ZOFF(i)}")
        a("s_add_u32 s61, s61, s53")
        for k in range(3): a.vmem(f"buffer_load_dwordx4 v{(10, 14, 15)[k]}, {S4(WS_)}, s61 offen offset:{1024*k} sc1 lds", ("Z", i))
    a.stamp()
    if fused:
        a(f"s_lshl_b32 s71, s{sCG}, 1")
        a(f"s_add_u32 s71, s71, s{sKS}")
        a("s_lshl_b32 s71, s71, 12")
        a(f"s_add_u32 s71, s71, {F1_OFF}")
        a("v_and_b32 v31, 31, v1")
        a("v_lshlrev_b32 v31, 7, v31")
        a(f"v_mov_b32 v30, 0")
        def iss(): a(f"buffer_load_dword v30, v31, {S4(WS_)}, s71 offen sc1")
        def chk():
            a(f"v_cmp_ne_u32 vcc, s{sT}, v30")
            a("s_cmp_eq_u64 vcc, 0")
        wp = opt('wp', 4)
        lA = a.label("LfA")
        lB = a.label("LfB")
        iss(); a("s_waitcnt vmcnt(0)")
        a(f"s_cmp_ge_u32 s72, {NWS}")
        a(f"s_cbranch_scc1 {lB}")
        for v in range(wp, NWS):
            chk()
            a(f"s_cbranch_scc1 {lA}")
            wsp_group_h(a, v)
            a(f"s_mov_b32 s72, {v + 1}")
            iss(); a("s_waitcnt vmcnt(0)")
        a(f"{lB}:")
        spin(a, iss, chk)
        a("s_waitcnt vmcnt(0)")
        a(f"{lA}:")
        a.vm = []
        a.stamp()
        for i in range(NZS - 1): z2_group(i)
        a("v_mov_b32 v25, 256")
        def late_group(v):
            ld = a.label("Lld"); le = a.label("Lle")
            a(f"s_cmp_gt_u32 s72, {v}")
            a(f"s_cbranch_scc1 {ld}")
            wsp_group_h(a, v)
            a(f"s_branch {le}")
            a(f"{ld}:")
            a("s_mov_b64 exec, 1")
            for k in range(4): a(f"buffer_load_dword v24, v25, {S4(DBG_)}, 0 offen")
            a("s_mov_b64 exec, -1")
            a(f"{le}:")
    a("s_barrier")
    wpre = NWS
    a("v_add_u32 v18, 4096, v8")
    a("v_add_u32 v19, 4096, v9")
    def wsp_pieces(v):
        def f(k):
            if k == 0:
                a(f"s_add_u32 s58, s{sK0B}, {v}")
                a("s_and_b32 s58, s58, 15")
                a("s_lshl_b32 s58, s58, 7")
                a("s_add_u32 s58, s58, s59")
            a(f"s_add_u32 m0, s60, {(v % NWS) * 16384 + 2048*(k>>1)}")
            a("s_nop 0")
            a.vmem(f"buffer_load_dwordx4 v{(8, 9, 18, 19)[k]}, {S4(WSP_)}, s58 offen offset:{1024*(k&1)} {NT('s')}lds", ("S", v))
        return [(lambda k=k: f(k)) for k in range(4)]
    cws = opt('cws', 14)
    a(f"s_lshl_b32 s76, s{sQ}, 10")
    if NCR == 0: cw_load_setup(a)
    bg = []
    for v in range(wpre, 16): bg += [(max(0, v - NWS + 1), p, v) for p in wsp_pieces(v)]
    for i in range(16):
        assert all(x[2] > i for x in bg), i
        a.vmwait(("S", i)); a.vmwait(("Z", i))
        if fused and i == opt('z1step', 13): f2_check(a)
        a("s_barrier")
        if i in (0, 1, 8, 10, 12, 14): a.stamp()
        if fused and i == opt('f2step', 2): flag_store(a, "F2")
        if fused and i == opt('z1step', 13) - 3: f2_issue(a)
        lg = opt('lg', 2)
        for v in range(wp + lg*i, min(NWS, wp + lg*(i + 1))):
            assert v > i
            late_group(v)
        if i + NZS - 1 < 16: z2_group(i + NZS - 1)
        if i >= cws: cw_write(a, 4*(i - cws), 4*(i - cws) + 4); cw_dma(a, 4*(i - cws), 4*(i - cws) + 4)
        n = opt('pace', 3)
        while n > 0 and bg and bg[0][0] <= i:
            bg.pop(0)[1](); n -= 1
    a.stamp()
    a("s_barrier")
    assert not bg
    cw_write(a, 4*(16 - cws), max(16, 4*(16 - cws)))
    cw_dma(a, 4*(16 - cws), 16)

def f2_issue(a):
    a(f"s_lshl_b32 s62, s{sRB}, 4")
    a(f"s_add_u32 s62, s62, s{sCG}")
    a("s_add_u32 s62, s62, 8")
    a("s_lshl_b32 s62, s62, 7")
    a(f"s_add_u32 s62, s62, {F2_OFF}")
    a(f"s_lshr_b32 s61, s{sRC}, 1")
    a("s_lshl_b32 s61, s61, 12")
    a(f"s_add_u32 s61, s61, {FO_OFF}")
    a("v_lshlrev_b32 v20, 7, v1")
    a("v_add_u32 v20, s61, v20")
    a("v_mov_b32 v21, s62")
    a("v_cmp_lt_u32 vcc, 31, v1")
    a("s_nop 1")
    a("v_cndmask_b32 v20, v20, v21, vcc")
    a.vmem(f"buffer_load_dword v21, v20, {S4(WS_)}, 0 offen sc1", "f2")
def f2_check(a):
    a.vmwait("f2")
    def iss(): a(f"buffer_load_dword v21, v20, {S4(WS_)}, 0 offen sc1")
    def chk():
        a(f"v_cmp_ne_u32 vcc, s{sT}, v21")
        a("s_cmp_eq_u64 vcc, 0")
    spin(a, iss, chk)

L_RED = 0
def c_waddr(a, d):
    a("v_lshrrev_b32 v3, 5, v1")
    a("v_bfe_u32 v30, v1, 2, 2")
    a("v_lshl_add_u32 v3, v3, 2, v30")
    a("v_lshlrev_b32 v3, 7, v3")
    a("v_and_b32 v30, 2, v30")
    a("v_bfe_u32 v31, v1, 4, 1")
    a("v_or_b32 v30, v30, v31")
    a("v_lshl_add_u32 v3, v30, 5, v3")
    a("v_and_b32 v30, 3, v1")
    a(f"v_lshl_add_u32 v{d}, v30, 3, v3")
    a(f"v_xor_b32 v{d+1}, 64, v{d}")

def c_stream(a, nblk, fragreg, tagf, areg, blk0, ring, ACC, first_zero, loads=(), off0=0):
    fr = {}; mf = []
    for b in range(nblk):
        fr[('h', b)] = dict(step=0, reg=fragreg(b), reads=None)
        for nn in range(2):
            off = CSLOT[(blk0 + b) // 8] * 16384 + ((blk0 + b) % 8) * 2048 - off0
            fr[('w', b, nn)] = dict(step=0, reg=None, reads=[(lambda r, hh=hh, nn=nn, off=off: f"ds_read_b64_tr_b16 {V(r+2*hh,2)}, v{areg(off >> 16) + nn} offset:{(off & 0xffff) + hh*1024}") for hh in range(2)])
            mf.append((ACC+16*nn, ('w', b, nn), ('h', b)))
    cnt = [0]
    def op(d, x, y, c):
        b = cnt[0] // 2
        if cnt[0] % 2 == 1 and loads: loads.pop(0)()
        cnt[0] += 1
        a.vmwait(tagf(b))
        return mfma32(d, x, y, c)
    gemm_stream(a, mf, fr, ring, opt('LAC', 4), 0, lambda st: None, first_zero=first_zero, pergap=2, slack=2, op=op, skip_first_barrier=True)

def c_final(a):
    a.vmwait("x")
    for w in range(4):
        a(f"v_lshlrev_b32 v{64+2*w}, 16, v{8+w}")
        a(f"v_and_b32 v{65+2*w}, 0xffff0000, v{8+w}")
    a("s_waitcnt lgkmcnt(0)")
    a("s_barrier")
    for k in range(2):
        a(f"ds_read_b128 {V(16+8*k)}, v6 offset:{17408*k}")
        a(f"ds_read_b128 {V(20+8*k)}, v6 offset:{17408*k + 16}")
    a("s_waitcnt lgkmcnt(2)")
    for w in range(4): a(f"v_pk_add_f32 {V(64+2*w,2)}, {V(64+2*w,2)}, {V(16+2*w,2)}")
    a("s_waitcnt lgkmcnt(0)")
    for w in range(4): a(f"v_pk_add_f32 {V(64+2*w,2)}, {V(64+2*w,2)}, {V(24+2*w,2)}")
    for w in range(4): a(f"v_cvt_pk_bf16_f32 v{32+w}, v{64+2*w}, v{65+2*w}")
    a.vmem(f"buffer_store_dwordx4 {V(32)}, v7, {S4(OUT_)}, s47 offen {('', 'sc1', 'nt', 'sc0 sc1', 'sc1 nt')[opt('outf', 0)]}", "out")

def c_final_setup(a):
    a("v_lshrrev_b32 v3, 3, v1")
    a(f"s_lshl_b32 s61, s{sW}, 3")
    a("v_add_u32 v3, s61, v3")
    a("v_and_b32 v30, 7, v1")
    a("v_mul_u32_u24 v6, 272, v3")
    a("v_lshl_add_u32 v6, v30, 5, v6")
    a("v_add_u32 v6, 32768, v6")
    a("v_and_b32 v31, 15, v3")
    a("v_lshlrev_b32 v31, 1, v31")
    a("v_bfe_u32 v7, v3, 4, 1")
    a("v_add_u32 v31, v31, v7")
    a("v_and_b32 v7, 32, v3")
    a("v_add_u32 v31, v31, v7")
    a("v_lshlrev_b32 v31, 10, v31")
    a("v_lshl_add_u32 v7, v30, 4, v31")
    a(f"s_lshl_b32 s47, s{sRC}, 9")
    a(f"s_add_u32 s47, s47, s{sCG}")
    a("s_lshl_b32 s47, s47, 7")
    a.vmem(f"buffer_load_dwordx4 {V(8)}, v7, {S4(X_)}, s47 offen", "x")

def c_compute(a, fused):
    ACC, OF, HF = 32, 168, 80
    for b in range(16): a.o_piece(b)()
    a(f"s_and_b32 s53, s{sQ}, 1")
    a(f"s_lshr_b32 s54, s{sQ}, 1")
    c_waddr(a, 26)
    a("s_lshl_b32 s61, s54, 15")
    a("s_add_u32 s61, s61, 32768")
    a("v_add_u32 v4, s61, v26\nv_add_u32 v5, s61, v27")
    a("s_barrier")
    a("s_lshl_b32 s61, s57, 1")
    a(f"s_add_u32 s61, s61, s{sKS}")
    a("s_lshl_b32 s61, s61, 3")
    a(f"s_add_u32 s61, s61, s{sCG}")
    a("s_lshl_b32 s61, s61, 7")
    a(f"s_add_u32 s61, s61, {F3_OFF}")
    a(f"v_mov_b32 v30, s{sT}")
    a("v_mov_b32 v31, 0")
    a.vmwait("h")
    a("s_mov_b64 exec, 1")
    a.vmem(f"buffer_store_dword v30, v31, {S4(WS_)}, s61 offen sc1", "flag")
    a("s_mov_b64 exec, -1")
    a.stamp()
    c_stream(a, 16, lambda b: OF+4*b, lambda b: ("o", b), lambda k: 4, 0, list(range(80, 112, 4)), ACC, True, off0=32768)
    a.stamp()
    a("v_add_u32 v252, 0x10000, v26\nv_add_u32 v253, 0x10000, v27")
    a("v_add_u32 v254, 0x20000, v26\nv_add_u32 v255, 0x20000, v27")
    a(f"s_lshl_b32 s55, s{sRC}, 1")
    a("s_add_u32 s55, s55, s53")
    a("s_lshl_b32 s56, s54, 6")
    a("s_add_u32 s56, s56, s55")
    a("s_mul_i32 s56, s56, 49152")
    a(f"s_add_u32 s56, s56, {WS_H}")
    a("v_lshlrev_b32 v28, 4, v1")
    c_final_setup(a)
    a("v_and_b32 v3, 31, v1")
    a("v_mul_u32_u24 v3, 272, v3")
    a("v_lshrrev_b32 v30, 5, v1")
    a("v_lshl_add_u32 v3, v30, 4, v3")
    a("s_mul_i32 s61, s54, 17408")
    a(f"s_mul_i32 s62, s53, {32*272}")
    a("s_add_u32 s61, s61, s62")
    a("s_add_u32 s61, s61, 32768")
    a("v_add_u32 v4, s61, v3")
    a("s_lshl_b32 s62, s55, 1")
    a("s_add_u32 s62, s62, s54")
    a("s_lshl_b32 s62, s62, 10")
    a(f"s_add_u32 s62, s62, {F3_OFF}")
    a("v_and_b32 v31, 7, v1")
    a("v_lshlrev_b32 v31, 7, v31")
    a("v_mov_b32 v30, 0")
    a("s_barrier")
    def iss(): a(f"buffer_load_dword v30, v31, {S4(WS_)}, s62 offen sc1")
    def chk():
        a(f"v_cmp_ne_u32 vcc, s{sT}, v30")
        a("s_cmp_eq_u64 vcc, 0")
    spin(a, iss, chk)
    a.vm = []
    a.stamp()
    def hload(b):
        if b and b % 4 == 0: a("s_add_u32 s56, s56, 4096")
        a.vmem(f"buffer_load_dwordx4 {V(HF+4*b)}, v28, {S4(WS_)}, s56 offen offset:{(b%4)*1024} sc1", ("H", b))
    PH = opt('PH', 14)
    for b in range(PH): hload(b)
    ring = list(range(64, 80, 4)) + [12, 16, 20]
    c_stream(a, 43, lambda b: HF+4*b, lambda b: ("H", b), lambda k: (26, 252, 254)[k], 32, ring, ACC, False, [(lambda b=b: hload(b)) for b in range(PH, 43)])
    a.stamp()
    a("s_nop 10")
    for nn in range(2):
        for jj in range(4): a(f"ds_write_b128 v4, {V(ACC+16*nn+4*jj)} offset:{128*nn + 32*jj}")
    c_final(a)

def c_helper(a, fused):
    a.vmwait("WO")
    a("s_waitcnt lgkmcnt(0)")
    a("s_barrier")
    cw_dma(a, max(16, 4*(16 - opt('cws', 14))), 38)
    cw_write(a, max(16, 4*(16 - opt('cws', 14))), 38)
    c_final_setup(a)
    a.vmwait("CW2")
    a("s_waitcnt lgkmcnt(0)")
    a.stamp()
    a("s_barrier")
    c_final(a)

def diag_out(a, base):
    if opt('padto', 0):
        l = a.label("Lpad")
        if opt('leak', -1) >= 0:
            a("s_nop 0")
            a(f"v_readlane_b32 s61, v2, {opt('leak', 0)}")
            a("s_lshr_b32 s61, s61, 4")
            a(f"s_lshl_b32 s62, s{sW}, 10")
            a("s_add_u32 s62, s62, s2")
            a(f"s_cmp_eq_u32 s62, {opt('leakwg', 200)}")
            a("s_cselect_b32 s61, s61, 0")
            a("s_add_u32 s84, s84, s61")
        a(f"{l}:")
        a("s_sleep 1")
        a("s_memrealtime s[86:87]")
        a("s_waitcnt lgkmcnt(0)")
        a(f"s_sub_u32 s86, s86, s{sT if opt('padT', 0) else 84}")
        a(f"s_cmp_lt_i32 s86, {opt('padto', 0)}")
        a(f"s_cbranch_scc1 {l}")
    if opt('skew', 0):
        a(f"s_sub_u32 s61, s84, s{sT}")
        a("s_add_u32 s61, s61, 100000")
        a("v_mov_b32 v4, s61")
        a("v_mov_b32 v5, 8")
        a("s_mov_b64 exec, 1")
        a(f"buffer_atomic_umax v4, v5, {S4(DBG_)}, 0 offen")
        a("s_sub_u32 s61, 200000, s61")
        a("v_mov_b32 v4, s61")
        a(f"buffer_atomic_umax v4, v5, {S4(DBG_)}, 0 offen offset:4")
        a("s_mov_b64 exec, -1")
    if not a.diag: return
    a("v_writelane_b32 v2, s84, 62")
    a("s_memrealtime s[86:87]")
    a("s_waitcnt lgkmcnt(0)")
    a("v_writelane_b32 v2, s86, 63")
    a("s_lshl_b32 s61, s2, 3")
    a(f"s_add_u32 s61, s61, s{sW}")
    a("s_lshl_b32 s61, s61, 8")
    a(f"s_add_u32 s61, s61, {base}")
    a("v_lshlrev_b32 v3, 2, v1")
    a(f"buffer_store_dword v2, v3, {S4(WS_)}, s61 offen")
    if opt('hdbg', -1) >= 0:
        l = a.label("Lhd")
        a(f"s_cmp_lg_u32 s2, {opt('hdbg', 0)}")
        a(f"s_cbranch_scc1 {l}")
        a(f"s_cmp_lg_u32 s{sW}, 0")
        a(f"s_cbranch_scc1 {l}")
        a("s_sub_u32 s86, s86, s84")
        a("v_mov_b32 v4, 0")
        a("v_writelane_b32 v4, s86, 1")
        for k, src in enumerate((0, 1, 3, 4, 5, 6, 7, 10, 11, 17, 18, 19, 20, 22)):
            a(f"v_readlane_b32 s61, v2, {src}")
            a("s_nop 3")
            a(f"v_writelane_b32 v4, s61, {2+k}")
        a("s_mov_b64 exec, 0xfffe")
        a(f"buffer_store_dword v4, v3, {S4(DBG_)}, 0 offen")
        a(f"{l}:")

def simple_kernel(name, diag, idx, comp, helper):
    a = G(diag)
    prologue(a, f"L{name}_end")
    a(f"s_cmp_ge_u32 s{sW}, 4")
    a(f"s_cbranch_scc1 L{name}_h")
    for k, fn in enumerate((comp, helper)):
        if k: a(f"L{name}_h:")
        a.vm = []; a.nst = 0
        fn(a)
        a.vmall(); a.stamp()
        diag_out(a, WS_DBG + idx*0x80000)
        a("s_endpgm")
    a(f"L{name}_end:")
    a("s_endpgm")
    return a.text()

def by_type(fq, fz, lab):
    def f(a):
        a(f"s_cmp_lg_u32 s{sTYP}, 0")
        a(f"s_cbranch_scc1 {lab}_z")
        fq(a, False)
        a.vmall()
        a(f"s_branch {lab}_e")
        n = a.nst
        a(f"{lab}_z:")
        a.vm = []; a.nst = 0
        fz(a, False)
        a(f"{lab}_e:")
        a.nst = max(a.nst, n)
    return f

def multi(diag):
    ka = simple_kernel("A", diag, 0, by_type(aq_compute, az_compute, "LAc"), by_type(aq_helper, az_helper, "LAh"))
    def bc(a): late_srds(a); b_compute(a, False)
    kb = simple_kernel("B", diag, 1, bc, lambda a: b_helper(a, False))
    kc = simple_kernel("C", diag, 2, lambda a: c_compute(a, False), lambda a: c_helper(a, False))
    return [("a_kernel", ka), ("b_kernel", kb), ("c_kernel", kc)]

def fused_kernel(diag):
    a = G(diag)
    prologue(a, "LF_end")
    a(f"s_cmp_lt_u32 s{sW}, 4")
    a("s_cbranch_scc1 LF_c")
    a(f"s_cmp_lg_u32 s{sTYP}, 0")
    a("s_cbranch_scc1 LF_hz")
    aq_helper(a, True)
    a("s_branch LF_hb")
    a.unsplit()
    a("LF_hz:")
    a.vm = []; a.nst = 0
    az_helper(a, True)
    a("LF_hb:")
    a.vm = []; a.nst = 10
    b_helper(a, True)
    c_helper(a, True)
    if diag: a.vmall(); a.stamp()
    diag_out(a, WS_DBG)
    a("s_endpgm")
    a.unsplit()
    a("LF_c:")
    a.vm = []; a.nst = 0
    early_srds(a)
    late_srds(a)
    nonce_publish(a)
    ln1_issue(a)
    b_early(a)
    if opt('tlb', 0):
        l = a.label("Ltlb")
        a(f"s_cmp_lg_u32 s{sQ}, 1")
        a(f"s_cbranch_scc1 {l}")
        a("v_lshlrev_b32 v3, 20, v1")
        a("s_lshl_b32 s61, s2, 7")
        a(f"s_mov_b32 m0, {L_MISC}")
        a("s_mov_b64 exec, 0x3fffff")
        a(f"buffer_load_dword v3, {S4(WS_)}, s61 offen lds")
        a("s_mov_b64 exec, 0xff")
        a(f"buffer_load_dword v3, {S4(WSP_)}, s61 offen lds")
        a("s_mov_b64 exec, 3")
        a(f"buffer_load_dword v3, {S4(OUT_)}, s61 offen lds")
        a("s_mov_b64 exec, 1")
        a(f"buffer_load_dword v3, {S4(WO_)}, s61 offen lds")
        a(f"buffer_load_dword v3, {S4(WOUT_)}, s61 offen lds")
        a("s_mov_b64 exec, -1")
        a(f"{l}:")
    a(f"s_cmp_lg_u32 s{sTYP}, 0")
    a("s_cbranch_scc1 LF_cz")
    vmc = list(a.vm)
    aq_compute(a, True)
    a("s_branch LF_cb")
    a("LF_cz:")
    a.vm = list(vmc); a.nst = 0
    az_compute(a, True)
    a(f"s_mov_b32 s75, {OOB}")
    a("LF_cb:")
    a.vm = []; a.nst = 10
    b_compute(a, True)
    c_compute(a, True)
    if diag: a.vmall(); a.stamp()
    diag_out(a, WS_DBG)
    a("s_endpgm")
    for t in a.tails: a.L += t
    a("LF_end:")
    a("s_endpgm")
    return [(KNAME, a.text())]

if __name__ == "__main__":
    diag = "diag" in sys.argv
    for x in sys.argv[2:]:
        if "=" in x:
            k, v = x.split("="); OPT[k] = int(v)
    ks = multi(diag) if 'multi' in sys.argv else fused_kernel(diag)
    hdr = open("cdna_kernels/" + KNAME[:-7] + ".s.ref").read().split("; Override")[0]
    txt = file_text([(n, 256, 512, LDS_BYTES) for n, t in ks], [(n, t, 256, 102, 256) for n, t in ks])
    if len(ks) == 1: txt = txt.replace(f"; @launch kernel={KNAME} ", "; @launch ")
    txt = "\n".join(l.strip() if l.startswith("    ") else l for l in txt.split("\n"))
    if opt('align', 1):
        import align
        txt, n1, n2 = align.align(txt)
    open(sys.argv[1], "w").write(hdr + txt)
```

```python
import sys, math, struct, os
from asmgen import Asm, KA, KNAME, file_text
from layout import *

OOB = 0x10000000
LOG2E = 1.4426950408889634
def f2u(x): return struct.unpack("<I", struct.pack("<f", x))[0]
C1 = 2.0 * math.sqrt(2.0 / math.pi) * LOG2E
C2 = C1 * 0.044715
NEG = f2u(-1e30)
OPT = {}
F1_OFF, F2_OFF, F3_OFF, FO_OFF = WS_FLG, WS_FLG + 512*128, WS_FLG + 768*128, WS_FLG + 1792*128
def opt(k, d): return OPT.get(k, d)
def ZOFF(i): return (i % NZS)*12288
def ZOF2(i): return ZOFF(i) % 49152
def NT(k): return 'nt ' if opt('nt' + k, 0) else ''

sW, sQ, sRB, sGRP = 3, 4, 6, 7
X_, WA_, WS_, WSP_, WO_, WOUT_, OUT_, BSP_, DBG_ = 8, 12, 16, 20, 24, 28, 32, 36, 40
sK0A, sTYP = 44, 45
sKS, sCG, sK0B, sT = 48, 50, 51, 52
sRC = 49
def S4(b): return f"s[{b}:{b+3}]"
def V(b, n=4): return f"v[{b}:{b+n-1}]" if n > 1 else f"v{b}"

L_TAB = 156*1024
TP = 640
L_CW  = L_TAB + 2560
L_MISC = L_TAB + 3328
L_XCH = 148*1024
L_PARK = 112*1024
NWS = int(os.environ.get('NWS', 7))
NZS = {7: 4, 6: 5, 5: 6}[NWS]
L_Z2 = 160*1024 - NZS*12288
L_RC = L_TAB + 3584
L_FLG = L_MISC + 256
LDS_BYTES = 160*1024

class G(Asm):
    UID = [0]
    def label(self, base="L"):
        G.UID[0] += 1
        return f"{base}_{G.UID[0]}"
    def __init__(self, diag=False):
        super().__init__()
        self.vm = []; self.diag = diag; self.nst = 0; self.tails = []
    def vmem(self, s, tag=None):
        self(s); self.vm.append(tag)
    def has(self, tag): return any(t == tag for t in self.vm)
    def vmwait(self, tag):
        if not self.has(tag): return
        idx = max(i for i, t in enumerate(self.vm) if t == tag)
        n = len(self.vm) - 1 - idx
        n = min(n, 63)
        self(f"s_waitcnt vmcnt({n})")
        self.vm = self.vm[idx+1:]
    def vmall(self):
        self("s_waitcnt vmcnt(0)"); self.vm = []
    def stamp(self):
        if not self.diag: return
        self("s_memtime s[82:83]")
        self("s_waitcnt lgkmcnt(0)")
        self("s_sub_u32 s82, s82, s80")
        self(f"v_writelane_b32 v2, s82, {self.nst}")
        self.nst += 1
    def split(self, label):
        self(f"s_branch {label}")
        self.head = self.L
        self.L = []
        self(f"{label}:")
    def unsplit(self):
        self.tails.append(self.L); self.L = self.head
    def run(self, fs):
        for f in fs: f() if callable(f) else self(f)

def mfma(d, a, b, c=None):
    c = V(d) if c is None else c
    return f"v_mfma_f32_16x16x32_bf16 {V(d)}, {V(a)}, {V(b)}, {c}"
def mfma16(d, a, b, c=None):
    c = V(d) if c is None else c
    return f"v_mfma_f32_16x16x16_bf16 {V(d)}, {V(a,2)}, {V(b,2)}, {c}"

def gemm_stream(a, mf, frags, ring, LA, cover, pre_barrier, hooks=None, first_zero=True, stamps=(), nobar=0, pergap=1, slack=4, op=None, skip_first_barrier=False, extras=None):
    hooks = hooks or {}
    extra_max = opt('xmax', 1)
    first, last = {}, {}
    for i, (d, x, y) in enumerate(mf):
        for f in (x, y):
            first.setdefault(f, i); last[f] = i
    order = sorted([f for f in first if frags[f].get('reads')], key=lambda f: (frags[f]['step'], first[f]))
    rl = [(f, k) for f in order for k in range(len(frags[f]['reads']))]
    reg = {f: frags[f]['reg'] for f in first if frags[f].get('reg') is not None}
    owner = {r: None for r in ring}
    ptr = 0; cur = (0 if skip_first_barrier else -1); out = []; done = set(f for f in first if not frags[f].get('reads'))
    since = 10**9
    seen = set()
    def issue_one(i, force):
        nonlocal ptr, cur, since, out
        f, k = rl[ptr]
        st = frags[f]['step']
        if st > cur:
            if not force and since < cover: return False
            pre_barrier(st)
            if not (nobar and st > 0):
                if out:
                    a("s_waitcnt lgkmcnt(0)")
                    for g_, _ in out: done.add(g_)
                    out = []
                a("s_barrier")
            cur = st
            if st in stamps: a.stamp()
            if st in hooks: hooks[st]()
        if k == 0 and f not in reg:
            free = [r for r in ring if owner[r] is None or last[owner[r]] < i]
            if not free:
                assert not force, "ring too small"
                return False
            r = min(free, key=lambda r: -1 if owner[r] is None else last[owner[r]])
            reg[f] = r; owner[r] = f
        if len(out) >= 14 and not force: return False
        a(frags[f]['reads'][k](reg[f]))
        out.append((f, k)); ptr += 1; since = 0
        return True
    for i, (d, x, y) in enumerate(mf):
        need = [f for f in (x, y) if f not in done]
        while ptr < len(rl) and any(rl[j][0] in need for j in range(ptr, len(rl)) if first[rl[j][0]] <= i):
            issue_one(i, True)
        n = 0
        while ptr < len(rl) and first[rl[ptr][0]] <= i + LA:
            lim = 12 if i == 0 else (pergap + 1 if first[rl[ptr][0]] <= i + LA - slack else pergap)
            if n >= lim: break
            if not issue_one(i, False): break
            n += 1
        if extras and (n <= extra_max or len(mf) < 100) and extras[0][0] <= cur and extras[0][2](done):
            extras.pop(0)[1]()
        need = [f for f in (x, y) if f not in done]
        if need:
            idx = max(j for j, (f, k) in enumerate(out) if f in need)
            a(f"s_waitcnt lgkmcnt({len(out) - 1 - idx})")
            for f, k in out[:idx+1]:
                if k == len(frags[f]['reads']) - 1: done.add(f)
            out = out[idx+1:]
        c = None
        if first_zero and d not in seen:
            c = "0" if first_zero is True else first_zero; seen.add(d)
        a((op or mfma)(d, reg[x], reg[y], c))
        since += 1
    assert ptr == len(rl)

def srd(a, d, p, nbytes):
    a(f"s_mov_b32 s{d}, s{p}")
    a(f"s_and_b32 s{d+1}, s{p+1}, 0xffff")
    a(f"s_mov_b32 s{d+2}, {nbytes:#x}")
    a(f"s_mov_b32 s{d+3}, 0x20000")

def prologue(a, endlabel):
    if a.diag:
        a("s_memtime s[80:81]")
    a("s_memrealtime s[84:85]")
    a("s_cmp_ge_u32 s2, 256")
    a(f"s_cbranch_scc1 {endlabel}")
    a("s_load_dwordx16 s[64:79], s[0:1], 0")
    a("s_load_dwordx4 s[88:91], s[0:1], 64")
    a("s_load_dwordx2 s[92:93], s[0:1], 80")
    if opt('cpf', 1):
        a("s_getpc_b64 s[62:63]")
        a("LF_pc:")
        a("s_lshr_b32 s61, s2, 3")
        a("s_mul_i32 s61, s61, ((LF_end - LF_pc) >> 12) + 1")
        a("v_add_u32 v3, s61, v0")
        a("v_lshlrev_b32 v3, 7, v3")
        a("v_min_u32 v3, LF_end - LF_pc, v3")
        a(f"s_mov_b32 m0, {L_MISC}")
        a("v_cmp_gt_u32 vcc, ((LF_end - LF_pc) >> 12) + 1, v0")
        a("s_and_saveexec_b64 s[60:61], vcc")
        a("s_cbranch_execz LF_npf")
        a("global_load_lds_dword v3, s[62:63]")
        a("LF_npf:")
        a("s_mov_b64 exec, -1")
    a("v_lshrrev_b32 v3, 6, v0")
    a("v_and_b32 v1, 63, v0")
    a("v_mov_b32 v2, 0")
    a(f"v_readfirstlane_b32 s{sW}, v3")
    a("s_and_b32 s53, s2, 7")
    a("s_lshr_b32 s54, s2, 3")
    a("s_lshr_b32 s55, s53, 1")
    a("s_and_b32 s56, s54, 3")
    a(f"s_lshr_b32 s{sCG}, s54, 2")
    a(f"s_lshl_b32 s{sRB}, s55, 2")
    a(f"s_add_u32 s{sRB}, s{sRB}, s56")
    a(f"s_and_b32 s{sKS}, s53, 1")
    a(f"s_lshl_b32 s{sRC}, s53, 2")
    a(f"s_add_u32 s{sRC}, s{sRC}, s56")
    a(f"s_lshl_b32 s{sGRP}, s{sKS}, 2")
    a(f"s_and_b32 s58, s{sCG}, 3")
    a(f"s_add_u32 s{sGRP}, s{sGRP}, s58")
    a(f"s_lshr_b32 s{sTYP}, s{sCG}, 2")
    if opt('zfirst', 1): a(f"s_xor_b32 s{sTYP}, s{sTYP}, 1")
    if opt('rotAm', 0) == 0:
        a(f"s_lshl_b32 s{sK0A}, s56, 1")
        a(f"s_add_u32 s{sK0A}, s{sK0A}, s{sCG}")
        a(f"s_add_u32 s{sK0A}, s{sK0A}, s55")
    elif opt('rotAm', 0) == 3:
        a(f"s_and_b32 s{sK0A}, s{sCG}, 6")
        a(f"s_add_u32 s{sK0A}, s{sK0A}, s{sKS}")
        a("s_lshl_b32 s58, s55, 1")
        a(f"s_add_u32 s{sK0A}, s{sK0A}, s58")
        a("s_lshr_b32 s58, s56, 1")
        a(f"s_add_u32 s{sK0A}, s{sK0A}, s58")
    elif opt('rotAm', 0) == 4:
        a(f"s_add_u32 s{sK0A}, s{sCG}, s56")
        a(f"s_and_b32 s{sK0A}, s{sK0A}, 1")
        a(f"s_lshl_b32 s{sK0A}, s{sK0A}, 2")
        a(f"s_add_u32 s{sK0A}, s{sK0A}, s55")
        a(f"s_lshl_b32 s58, s{sKS}, 1")
        a(f"s_add_u32 s{sK0A}, s{sK0A}, s58")
    else:
        a(f"s_lshl_b32 s{sK0A}, s{sKS}, 1")
        a(f"s_add_u32 s{sK0A}, s{sK0A}, s55")
        a(f"s_lshl_b32 s{sK0A}, s{sK0A}, 1")
        if opt('rotAm', 0) == 2:
            a("s_and_b32 s58, s56, 1")
            a(f"s_add_u32 s{sK0A}, s{sK0A}, s58")
    a(f"s_and_b32 s{sK0A}, s{sK0A}, {opt('rotA', 7)}")
    if opt('mixcg', 0):
        a("s_and_b32 s58, s56, 1")
        a("s_lshl_b32 s58, s58, 2")
        a(f"s_xor_b32 s{sCG}, s{sCG}, s58")
    if opt('rotBm', 1) == 0:
        a(f"s_lshl_b32 s{sK0B}, s{sCG}, 1")
    else:
        a(f"s_lshl_b32 s{sK0B}, s{sCG}, 1")
        if opt('k0typ', 1): a(f"s_add_u32 s{sK0B}, s{sK0B}, s{sTYP}")
        a(f"s_lshl_b32 s{sK0B}, s{sK0B}, 1")
    if opt('rotBm', 1) <= 1: a(f"s_add_u32 s{sK0B}, s{sK0B}, s{sRB}")
    if opt('rotBm', 1) == 3: a(f"s_add_u32 s{sK0B}, s{sK0B}, s55")
    if opt('rotBm', 1) == 4:
        a("s_lshl_b32 s58, s55, 2")
        a(f"s_add_u32 s{sK0B}, s{sK0B}, s58")
    a(f"s_and_b32 s{sK0B}, s{sK0B}, {opt('rotB', 15)}")
    a(f"s_and_b32 s{sQ}, s{sW}, 3")

def early_srds(a):
    if opt('sst', 0): a.stamp()
    a("s_waitcnt lgkmcnt(0)")
    srd(a, X_, 64, S*D*2)

def late_srds(a):
    srd(a, WS_, 92, 268435456)
    srd(a, DBG_, 90, 256)
    srd(a, WSP_, 74, S*S*2)
    srd(a, WO_, 68, D*D*2)
    srd(a, WOUT_, 78, FH*D*2)
    srd(a, OUT_, 88, S*D*2)
    srd(a, BSP_, 76, S*2)

def rowtile_voffs(a, d0, d1, sh, t0=3, t1=30, t2=31):
    a(f"v_lshrrev_b32 v{t0}, 3, v1")
    a(f"v_lshlrev_b32 v{t0}, {sh+1}, v{t0}")
    a(f"v_lshrrev_b32 v{t1}, 4, v1")
    a(f"v_and_b32 v{t2}, 7, v1")
    a(f"v_xor_b32 v{t1}, v{t1}, v{t2}")
    a(f"v_lshl_add_u32 v{d0}, v{t1}, 4, v{t0}")
    a(f"v_xor_b32 v{t1}, 4, v{t1}")
    a(f"v_lshl_add_u32 v{d1}, v{t1}, 4, v{t0}")
    a(f"v_add_u32 v{d1}, {(16 << sh) - 1024}, v{d1}")

def rowfrag_addr(a, d0, d1, srow, t0=3, t1=30, t2=31):
    a(f"v_and_b32 v{t0}, 15, v1")
    a(f"v_lshrrev_b32 v{t1}, 4, v1")
    a(f"v_lshrrev_b32 v{t2}, 1, v{t0}")
    a(f"v_xor_b32 v{t1}, v{t1}, v{t2}")
    a(f"v_lshlrev_b32 v{t0}, 7, v{t0}")
    a(f"v_add_u32 v{t0}, {srow}, v{t0}")
    a(f"v_lshl_add_u32 v{d0}, v{t1}, 4, v{t0}")
    a(f"v_xor_b32 v{t1}, 4, v{t1}")
    a(f"v_lshl_add_u32 v{d1}, v{t1}, 4, v{t0}")

def zw_addr(a, de, do, t0=3, t1=30, t2=31):
    a(f"v_lshrrev_b32 v{t0}, 4, v1")
    a(f"v_bfe_u32 v{t1}, v1, 2, 2")
    a(f"v_lshl_add_u32 v{t1}, v{t0}, 3, v{t1}")
    a(f"v_mul_u32_u24 v{t1}, 192, v{t1}")
    a(f"v_and_b32 v{t2}, 3, v1")
    a(f"v_lshl_add_u32 v{t1}, v{t2}, 3, v{t1}")
    a(f"v_and_b32 v{t0}, 1, v{t0}")
    a(f"v_lshlrev_b32 v{t0}, 5, v{t0}")
    a(f"v_add_u32 v{de}, v{t1}, v{t0}")
    a(f"v_sub_u32 v{do}, v{t1}, v{t0}")

def qw_addr(a, d, t0=3, t1=30, t2=31):
    a(f"v_lshrrev_b32 v{t0}, 4, v1")
    a(f"v_mul_u32_u24 v{t1}, 3072, v{t0}")
    a(f"v_bfe_u32 v{t2}, v1, 2, 2")
    a(f"v_lshl_add_u32 v{t1}, v{t2}, 7, v{t1}")
    a(f"v_and_b32 v{d}, 3, v1")
    a(f"v_lshl_add_u32 v{t1}, v{d}, 3, v{t1}")
    a(f"v_lshrrev_b32 v{t2}, 1, v{t2}")
    a(f"v_and_b32 v{t0}, 1, v{t0}")
    a(f"v_lshl_or_b32 v{t2}, v{t0}, 1, v{t2}")
    a(f"v_lshl_add_u32 v{d}, v{t2}, 5, v{t1}")

ZSLOT = [0, 28*1024, 56*1024]
W1SL = [86016 + 12288*u for u in range(6)] + [61440, 73728]
QSLOT = [86016, 43008, 0]

def gelu_core(a, xs, ts, A3, A1, RI):
    for k, (x, t) in enumerate(zip(xs, ts)): a(f"v_pk_mul_f32 {V(t,2)}, {V(x,2)}, {V(x,2)}")
    for k, (x, t) in enumerate(zip(xs, ts)): a(f"v_pk_fma_f32 {V(t,2)}, {V(t,2)}, {A3[k][0]}, {A1[k][0]} {A3[k][1]}")
    for k, (x, t) in enumerate(zip(xs, ts)): a(f"v_pk_mul_f32 {V(t,2)}, {V(t,2)}, {V(x,2)}")
    for k, (x, t) in enumerate(zip(xs, ts)):
        a(f"v_exp_f32 v{t}, v{t}"); a(f"v_exp_f32 v{t+1}, v{t+1}")
    for k, (x, t) in enumerate(zip(xs, ts)): a(f"v_pk_fma_f32 {V(t,2)}, {V(t,2)}, {RI[k][0]}, {RI[k][0]} {RI[k][1]}")
    for k, (x, t) in enumerate(zip(xs, ts)):
        a(f"v_rcp_f32 v{t}, v{t}"); a(f"v_rcp_f32 v{t+1}, v{t+1}")
    for k, (x, t) in enumerate(zip(xs, ts)): a(f"v_pk_mul_f32 {V(x,2)}, {V(x,2)}, {V(t,2)}")

def zcount(a, dG, dN, g=sGRP):
    a(f"s_mul_i32 s{dG}, s{g}, 6")
    a(f"s_add_u32 s{dN}, s{dG}, 5")
    a(f"s_min_u32 s{dN}, s{dN}, 43")
    a(f"s_sub_u32 s{dG}, s{dG}, 1")
    a(f"s_max_i32 s{dG}, s{dG}, 0")
    a(f"s_sub_u32 s{dN}, s{dN}, s{dG}")

def z1count(a, dG, dN):
    if not opt('z1g', 0): return zcount(a, dG, dN)
    a(f"s_mul_i32 s{dG}, s{sGRP}, 6")
    a(f"s_min_u32 s{dG}, s{dG}, 40")
    a(f"s_sub_u32 s{dN}, 40, s{dG}")
    a(f"s_min_u32 s{dN}, s{dN}, 6")
    a(f"s_cmp_eq_u32 s{sGRP}, 7")
    a(f"s_cselect_b32 s{dN}, 3, s{dN}")

def az_compute(a, fused):
    ACC, XR = 32, 128
    ONES, SUM, GRM, CWA = 28, 80, 88, 96
    ring = list(range(80, 96, 4)) + list(range(104, 128, 4))
    a(f"s_lshl_b32 s61, s{sQ}, 12")
    rowfrag_addr(a, 10, 11, "s61")
    zw_addr(a, 12, 13)
    a(f"s_bitcmp1_b32 s{sQ}, 0")
    a("s_cselect_b64 vcc, -1, 0")
    a("v_cndmask_b32 v18, v12, v13, vcc")
    a(f"s_lshl_b32 s61, s{sQ}, 5")
    a(f"s_and_b32 s62, s{sQ}, 1")
    a("s_lshl_b32 s62, s62, 5")
    a("s_add_u32 s62, s62, 128")
    a("v_add_u32 v19, s62, v18")
    a("v_add_u32 v18, s61, v18")
    for r in range(4): a(f"v_mov_b32 v{ONES+r}, 0x3f803f80")
    zcount(a, 55, 58)
    z1count(a, 55, 59)
    a(f"s_lshl_b32 s61, s{sQ}, 7")
    a(f"s_add_u32 s61, s61, {L_TAB}")
    a("v_and_b32 v3, 0x30, v1")
    a("v_add_u32 v4, s61, v3")
    a(f"v_add_u32 v7, {L_CW + 384}, v3")
    a("v_and_b32 v3, 15, v1")
    a("v_lshl_add_u32 v5, v3, 2, s61")
    a("v_lshlrev_b32 v3, 2, v3")
    a(f"v_add_u32 v6, {L_CW}, v3")
    a("v_lshlrev_b32 v8, 4, v1")
    a("v_lshlrev_b32 v9, 3, v1")
    a(f"s_lshl_b32 s61, s{sQ}, 6")
    a(f"s_and_b32 s62, s{sQ}, 1")
    a("s_lshl_b32 s62, s62, 6")
    a("s_add_u32 s62, s62, 256")
    a("v_add_u32 v22, s61, v6")
    a("v_add_u32 v23, s62, v6")
    a("v_add_u32 v24, s61, v7")
    a("v_add_u32 v25, s62, v7")
    a(f"s_lshl_b32 s57, s{sRB}, 2")
    a(f"s_add_u32 s57, s57, s{sQ}")
    a(f"s_lshl_b32 s53, s{sGRP}, 6")
    a("s_add_u32 s53, s53, s57")
    a("s_mul_i32 s53, s53, 6144")
    a(f"s_add_u32 s53, s53, {WS_Z2N}")
    a("s_mul_i32 s54, s57, 48")
    a("s_add_u32 s54, s54, s55")
    a("s_lshl_b32 s54, s54, 10")
    a(f"s_add_u32 s54, s54, {WS_Z1}")
    a(f"s_lshl_b32 s56, s{sRB}, 3")
    a(f"s_add_u32 s56, s56, s{sGRP}")
    a("s_lshl_b32 s56, s56, 2")
    a(f"s_add_u32 s56, s56, s{sQ}")
    a("s_lshl_b32 s56, s56, 9")
    a(f"s_add_u32 s56, s56, {WS_ST2}")
    def xreg(s, kk, T): return XR + ((s*2 + kk)*2 + T)*4
    def wfrag(step, kk, j):
        return dict(step=step, reg=None, reads=[(lambda r, hh=hh: f"ds_read_b64_tr_b16 {V(r+2*hh,2)}, v{16+(j&1)} offset:{j*32 + kk*6144 + hh*768}") for hh in range(2)])
    def cfrag(step, kk, t):
        return dict(step=step, reg=None, reads=[(lambda r, hh=hh: f"ds_read_b64_tr_b16 {V(r+2*hh,2)}, v{20+t} offset:{kk*6144 + hh*768}") for hh in range(2)])
    fr = {}; mf = []
    for s in range(8):
        for kk in range(2):
            for T in range(2):
                fr[('x', s, kk, T)] = dict(step=s, reg=xreg(s, kk, T), reads=[lambda r, kk=kk, T=T: f"ds_read_b128 {V(r)}, v{14+kk} offset:{T*2048}"])
            for j in range(6):
                fr[('w', s, kk, j)] = wfrag(s, kk, j)
                for T in range(2): mf.append((ACC + (j*2+T)*4, ('x', s, kk, T), ('w', s, kk, j)))
                if j in ((0, 1) if (s, kk) == (7, 1) else (2, 5)):
                    t = j if (s, kk) == (7, 1) else j // 3
                    fr[('c', s, kk, t)] = cfrag(s, kk, t)
                    mf.append((CWA+4*t, 'ones', ('c', s, kk, t)))
    fr['ones'] = dict(step=0, reg=ONES, reads=None)
    def pre1(s):
        for r in range(2): a(f"v_add_u32 v{14+r}, {ZSLOT[s % 3]}, v{10+r}")
        for r in range(2): a(f"v_add_u32 v{16+r}, {ZSLOT[s % 3] + 16384}, v{12+r}")
        for r in range(2): a(f"v_add_u32 v{20+r}, {ZSLOT[s % 3] + 16384}, v{18+r}")
    ln1_publish(a)
    for r in range(2, 4): a(f"v_mov_b32 v{ONES+r}, 0x3f803f80")
    a.stamp()
    a(f"s_lshl_b32 s61, s{sQ}, 2")
    a(f"s_add_u32 s61, s61, {L_FLG}")
    a("v_mov_b32 v26, s61")
    a("v_mov_b32 v27, 0")
    a("ds_write_b32 v26, v27")
    a("v_mov_b32 v27, 1")
    a("s_waitcnt lgkmcnt(0)")
    gemm_stream(a, mf, fr, ring, opt('LA', 10), opt('cover', 3), pre1, stamps=(0, 1, 4))
    a.stamp()
    a(f"ds_write_b32 v22, v{CWA}")
    a(f"ds_write_b32 v23, v{CWA+4}")
    a("ds_write_b32 v26, v27")
    a(f"v_mov_b32 v3, {L_FLG}")
    for T in range(2):
        for k in range(4): a(f"ds_read_b128 {V(80+16*T+4*k)}, v4 offset:{64*T + TP*k}")
    lds_wait(a, 3, 4, 112)
    CWR = [10, 11, 14, 15, 16, 17]
    for j in range(6): a(f"ds_read_b32 v{CWR[j]}, v6 offset:{64*j}")
    a(f"s_lshl_b32 s61, s{sQ}, 12")
    a("v_add_u32 v30, s61, v8")
    a("s_waitcnt lgkmcnt(0)")
    if opt('e1st', 0): a.stamp()
    for j in range(6):
        skip = a.label("Lz2skip")
        a(f"s_cmp_gt_u32 s58, {j}")
        a(f"s_cbranch_scc0 {skip}")
        xs = [ACC + (j*2+T)*4 + 2*p for T in range(2) for p in range(2)]
        tb = [80 + 16*T + 2*p for T in range(2) for p in range(2)]
        sel = f"op_sel:[0,{j&1},0] op_sel_hi:[1,{j&1},1]"
        for x, t in zip(xs, tb): a(f"v_pk_fma_f32 {V(x,2)}, {V(t,2)}, {V(CWR[j&~1],2)}, {V(x,2)} {sel} neg_lo:[1,0,0] neg_hi:[1,0,0]")
        gelu_core(a, xs, [20, 22, 26, 28], [(V(t+4,2), "") for t in tb], [(V(t+8,2), "") for t in tb], [(V(t+12,2), "") for t in tb])
        if j == 0:
            for k, x in enumerate(xs): a(f"v_pk_add_f32 {V(112+2*k,2)}, {V(x,2)}, 0 op_sel_hi:[1,0]")
            for k, x in enumerate(xs): a(f"v_pk_mul_f32 {V(120+2*k,2)}, {V(x,2)}, {V(x,2)}")
        else:
            for k, x in enumerate(xs): a(f"v_pk_add_f32 {V(112+2*k,2)}, {V(112+2*k,2)}, {V(x,2)}")
            for k, x in enumerate(xs): a(f"v_pk_fma_f32 {V(120+2*k,2)}, {V(x,2)}, {V(x,2)}, {V(120+2*k,2)}")
        e, o = ACC + j*8, ACC + j*8 + 4
        for i in range(4): a(f"v_cvt_pk_bf16_f32 v{e+i}, v{e+i}, v{o+i}")
        a(f"ds_write_b128 v30, {V(e)} offset:{(j>>2)*16384 + (j&3)*1024}")
        a(f"{skip}:")
    if opt('e1st', 0): a.stamp()
    def val(i, T, st): return 112 + 8*st + 4*T + i
    for st in range(2):
        for T in range(2):
            for i in range(2):
                A, B = val(i, T, st), val(i+2, T, st)
                a(f"v_add_f32_dpp v{A}, v{A}, v{A} row_ror:8 row_mask:0xf bank_mask:0x3")
                a(f"v_add_f32_dpp v{A}, v{B}, v{B} row_ror:8 row_mask:0xf bank_mask:0xc")
    a("s_mov_b32 s60, 0x22222222\ns_mov_b32 s61, 0x22222222")
    for st in range(2):
        for T in range(2):
            A, B = val(0, T, st), val(1, T, st)
            a(f"v_add_f32_dpp v{A}, v{A}, v{A} row_half_mirror row_mask:0xf bank_mask:0x5")
            a(f"v_add_f32_dpp v{A}, v{B}, v{B} row_half_mirror row_mask:0xf bank_mask:0xa")
    a("s_mov_b32 s62, 0x44444444\ns_mov_b32 s63, 0x44444444")
    for qp in ("[1,0,3,2]", "[2,3,0,1]"):
        for st in range(2):
            for T in range(2):
                A = val(0, T, st)
                a(f"v_add_f32_dpp v{A}, v{A}, v{A} quad_perm:{qp} row_mask:0xf bank_mask:0xf")
    a(f"v_cndmask_b32 v112, v{val(0,0,0)}, v{val(0,0,1)}, s[60:61]")
    a("s_mov_b32 s60, 0x88888888\ns_mov_b32 s61, 0x88888888")
    a(f"v_cndmask_b32 v112, v112, v{val(0,1,0)}, s[62:63]")
    a(f"v_cndmask_b32 v112, v112, v{val(0,1,1)}, s[60:61]")
    a(f"v_mov_b32 v113, s{sT}")
    a.vmem(f"buffer_store_dwordx2 {V(112,2)}, v9, {S4(WS_)}, s56 offen sc1", "st")
    a.stamp()
    fr = {}; mf = []
    for u in range(8):
        for kk in range(2):
            for T in range(2): fr[('x', u, kk, T)] = dict(step=u, reg=xreg(u, kk, T), reads=None)
            for j in range(6):
                fr[('w', u, kk, j)] = wfrag(u, kk, j)
                for T in range(2): mf.append((ACC + (j*2+T)*4, ('w', u, kk, j), ('x', u, kk, T)))
                if j in (2, 5):
                    t = j // 3
                    fr[('c', u, kk, t)] = cfrag(u, kk, t)
                    mf.append((120+4*t, ('c', u, kk, t), 'ones'))
    fr['ones'] = dict(step=0, reg=ONES, reads=None)
    for r in range(4): a(f"v_mov_b32 v{ONES+r}, 0x3f803f80")
    a("s_waitcnt lgkmcnt(0)")
    def pre2(u):
        for r in range(2): a(f"v_add_u32 v{16+r}, {W1SL[u]}, v{12+r}")
        for r in range(2): a(f"v_add_u32 v{20+r}, {W1SL[u]}, v{18+r}")
    ring2 = list(range(80, 112, 4))
    gemm_stream(a, mf, fr, ring2, opt('LA2', 10), opt('cover', 3), pre2, nobar=1, slack=opt('sl2', 4), stamps=((0,) if opt('e1st', 0) else ()))
    a.stamp()
    for T in range(2):
        for k in range(4): a(f"ds_read_b32 v{104+4*k+2*T}, v5 offset:{64*T + TP*k}")
    a("s_mov_b32 exec_lo, 0x00010001\ns_mov_b32 exec_hi, 0x00010001")
    a(f"ds_write_b128 v24, {V(120)}")
    a(f"ds_write_b128 v25, {V(124)}")
    a("s_mov_b64 exec, -1")
    a("s_waitcnt lgkmcnt(0)")
    a.vmall()
    a("s_barrier")
    for j in range(6): a(f"ds_read_b128 {V(80+4*j)}, v7 offset:{64*j}")
    a("s_waitcnt lgkmcnt(0)")
    for j in range(6):
        skip = a.label("Lz1skip")
        a(f"s_cmp_gt_u32 s59, {j}")
        a(f"s_cselect_b32 s{64+j}, s54, {OOB}")
        a(f"s_cbranch_scc0 {skip}")
        xs = [ACC + (j*2+T)*4 + 2*p for T in range(2) for p in range(2)]
        for k, x in enumerate(xs): a(f"v_pk_fma_f32 {V(x,2)}, {V(80+4*j+2*(k%2),2)}, {V(104+2*(k//2),2)}, {V(x,2)} op_sel_hi:[1,0,1] neg_lo:[1,0,0] neg_hi:[1,0,0]")
        b = "op_sel_hi:[1,0,0]"
        gelu_core(a, xs, [20, 22, 26, 28], [(V(108+2*(k//2),2), b) for k in range(4)], [(V(112+2*(k//2),2), b) for k in range(4)], [(V(116+2*(k//2),2), b) for k in range(4)])
        e = ACC + j*8
        for k, x in enumerate(xs): a(f"v_cvt_pk_bf16_f32 v{e+k}, v{x}, v{x+1}")
        a("s_nop 1")
        for p in range(2): a(f"v_permlane32_swap_b32 v{e+p}, v{e+2+p}")
        a(f"{skip}:")
        if j >= 4: a(f"s_add_u32 s{64+j}, s{64+j}, 4096")
        if not opt('defer', 0): a.vmem(f"buffer_store_dwordx4 {V(e)}, v8, {S4(WS_)}, s{64+j} offen offset:{(j%4)*1024} sc1", "z1")
    a.stamp()

def red_g(a, regs, op="v_add_f32", tmp=60):
    n = len(regs)
    for sw in ("v_permlane32_swap_b32", "v_permlane16_swap_b32"):
        for k, r in enumerate(regs): a(f"v_mov_b32 v{tmp+k}, v{r}")
        if n < 3: a("s_nop 1")
        for k, r in enumerate(regs): a(f"{sw} v{r}, v{tmp+k}")
        for k, r in enumerate(regs): a(f"{op} v{r}, v{r}, v{tmp+k}")

def wsp_setup_h(a):
    rowtile_voffs(a, 8, 9, 12)
    a(f"s_lshl_b32 s59, s{sRB}, 2")
    a(f"s_add_u32 s59, s59, s{sQ}")
    a("s_lshl_b32 s59, s59, 17")
    a(f"s_lshl_b32 s61, s{sKS}, 11")
    a("s_add_u32 s59, s59, s61")

def wsp_group_h(a, v):
    a(f"s_add_u32 s61, s{sK0B}, {v}")
    a("s_and_b32 s61, s61, 15")
    a("s_lshl_b32 s61, s61, 7")
    a("s_add_u32 s61, s61, s59")
    a(f"s_add_u32 m0, s60, {(v % NWS) * 16384}")
    a("s_add_u32 s62, s61, 4096")
    a.vmem(f"buffer_load_dwordx4 v8, {S4(WSP_)}, s61 offen {NT('s')}lds", ("S", v))
    a.vmem(f"buffer_load_dwordx4 v9, {S4(WSP_)}, s61 offen offset:1024 {NT('s')}lds", ("S", v))
    a(f"s_add_u32 m0, s60, {(v % NWS) * 16384 + 2048}")
    a("s_nop 0")
    a.vmem(f"buffer_load_dwordx4 v8, {S4(WSP_)}, s62 offen {NT('s')}lds", ("S", v))
    a.vmem(f"buffer_load_dwordx4 v9, {S4(WSP_)}, s62 offen offset:1024 {NT('s')}lds", ("S", v))

def l2_setup(a, d, ztype):
    a("v_lshrrev_b32 v31, 4, v1")
    a("v_lshlrev_b32 v31, 12, v31")
    a("v_and_b32 v30, 15, v1")
    a(f"v_lshl_add_u32 v{d}, v30, 7, v31")
    a(f"v_lshlrev_b32 v{d+1}, 7, v1")
    a(f"s_lshl_b32 s68, s{sRB}, 3")
    a(f"s_add_u32 s68, s68, s{sCG}")
    a("s_lshl_b32 s68, s68, 2")
    a(f"s_add_u32 s68, s68, s{sQ}")
    a("s_lshl_b32 s68, s68, 14")
    a(f"s_lshl_b32 s61, s{sKS}, 11")
    a("s_add_u32 s68, s68, s61")
    a("s_lshr_b32 s61, s2, 3")
    a("s_lshl_b32 s61, s61, 2")
    a(f"s_add_u32 s61, s61, s{sQ}")
    a("s_lshl_b32 s69, s61, 12")
    a(f"s_mul_i32 s70, s61, {43*128}")
    a(f"s_mov_b32 m0, {L_MISC}")
    if ztype and opt('l2w1', 0):
        srd(a, WA_, 72, D*F2*2)
        a("v_lshrrev_b32 v31, 1, v1")
        a("v_mul_u32_u24 v31, 2752, v31")
        a("v_and_b32 v30, 1, v1")
        a("v_mul_u32_u24 v30, 188, v30")
        a("v_add_u32 v3, v30, v31")
        a(f"s_and_b32 s71, s{sRB}, 3")
        a("s_lshl_b32 s71, s71, 2")
        a(f"s_add_u32 s71, s71, s{sQ}")
        a(f"s_mul_i32 s71, s71, {32*2752}")
        a("s_lshl_b32 s61, s55, 5")
        a("s_add_u32 s71, s71, s61")
        if opt('l2w1', 0) == 1:
            a.vmem(f"buffer_load_dword v3, {S4(WA_)}, s71 offen lds", "pf")
def l2_hooks(a, d, ztype):
    hk = {}
    def add(st, f):
        hk.setdefault(st, []).append(f)
    def lanes(k, n, tot):
        lo, hi = k*tot//n, (k+1)*tot//n
        m = ((1 << hi) - 1) ^ ((1 << lo) - 1)
        a(f"s_mov_b32 exec_lo, {m & 0xffffffff:#x}\ns_mov_b32 exec_hi, {m >> 32:#x}")
    if ztype and opt('l2w1', 0) == 2:
        add(0, lambda: a.vmem(f"buffer_load_dword v3, {S4(WA_)}, s71 offen lds", "pf"))
    if opt('l2pf', 0):
        nt = 'nt' if opt('l2nt', 0) else ''
        s0 = opt('l2s0', 1); n = opt('l2n', 2)
        for k in range(n):
            def h(k=k):
                lanes(k, n, 64)
                a.vmem(f"buffer_load_dword v{d}, {S4(WSP_)}, s68 offen {nt} lds", "pf")
                a("s_mov_b64 exec, -1")
            add(s0 + k, h)
    if opt('l2cw', -1) >= 0:
        def h2():
            a("s_mov_b32 exec_hi, 0")
            a.vmem(f"buffer_load_dword v{d+1}, {S4(WO_)}, s69 offen lds", "pf")
            a("s_mov_b32 exec_hi, 0x7ff")
            a.vmem(f"buffer_load_dword v{d+1}, {S4(WOUT_)}, s70 offen lds", "pf")
            a("s_mov_b32 exec_hi, -1")
        add(opt('l2cw', 0), h2)
    return {st: (lambda fs=fs: a.run(fs)) for st, fs in hk.items()}

def q_prefetch(a, k):
    if not opt('qpf', 1): return
    if k < 2:
        a("v_lshrrev_b32 v31, 4, v1")
        a("v_lshlrev_b32 v31, 12, v31")
        a("v_and_b32 v30, 15, v1")
        a("v_lshl_add_u32 v30, v30, 7, v31")
        a(f"s_lshl_b32 s61, s{sRB}, 2")
        a(f"s_add_u32 s61, s61, s{sCG}")
        a("s_lshl_b32 s61, s61, 2")
        a(f"s_add_u32 s61, s61, s{sQ}")
        a("s_lshl_b32 s61, s61, 15")
        a(f"s_lshl_b32 s62, s{sKS}, 11")
        a("s_add_u32 s61, s61, s62")
        a(f"s_mov_b32 m0, {L_MISC}")
        a(f"s_add_u32 s61, s61, {16384*k}")
        for o in range(0, 128, opt('sec', 128)):
            a.vmem(f"buffer_load_dword v30, {S4(WSP_)}, s61 offen offset:{o} {NT('p')}lds", "pf")
        return
    a("s_lshr_b32 s61, s2, 3")
    a("s_lshl_b32 s61, s61, 2")
    a(f"s_add_u32 s61, s61, s{sQ}")
    a("v_lshlrev_b32 v31, 7, v1")
    a(f"s_mov_b32 m0, {L_MISC}")
    if k == 2:
        a("s_lshl_b32 s62, s61, 13")
        for o in range(0, 128, opt('sec', 128)): a.vmem(f"buffer_load_dword v31, {S4(WO_)}, s62 offen offset:{o} lds", "pf")
    else:
        a(f"s_mul_i32 s63, s61, {86*128}")
        a(f"s_add_u32 s63, s63, {43*128*(k-3)}")
        a("s_mov_b32 exec_hi, 0x7ff")
        for o in range(0, 128, opt('sec', 128)): a.vmem(f"buffer_load_dword v31, {S4(WOUT_)}, s63 offen offset:{o} lds", "pf")
        a("s_mov_b32 exec_hi, -1")

def q_spread_setup(a):
    srd(a, 96, 72, D*F2*2)
    a("v_lshrrev_b32 v31, 4, v1")
    a("v_lshlrev_b32 v31, 12, v31")
    a("v_and_b32 v30, 15, v1")
    a("v_lshl_add_u32 v12, v30, 7, v31")
    a(f"s_lshl_b32 s64, s{sRB}, 2")
    a(f"s_add_u32 s62, s{sCG}, {opt('trot', 0)}")
    a("s_and_b32 s62, s62, 3")
    a("s_add_u32 s64, s64, s62")
    a("s_lshl_b32 s64, s64, 2")
    a(f"s_add_u32 s64, s64, s{sQ}")
    a("s_lshl_b32 s64, s64, 15")
    a(f"s_lshl_b32 s62, s{sKS}, 11")
    a("s_add_u32 s64, s64, s62")
    a("s_add_u32 s67, s64, 16384")
    a("s_lshr_b32 s61, s2, 3")
    a("s_lshl_b32 s61, s61, 2")
    a(f"s_add_u32 s61, s61, s{sQ}")
    a("v_lshlrev_b32 v13, 7, v1")
    a("s_lshl_b32 s65, s61, 13")
    a(f"s_mul_i32 s66, s61, {86*128}")
    a("s_add_u32 s68, s66, 8192")
    a("v_lshlrev_b32 v14, 10, v1")
    a("s_and_b32 s61, s61, 15")
    a("s_lshl_b32 s71, s61, 15")
    a(f"s_add_u32 s61, s{sCG}, 4")
    a("s_lshl_b32 s61, s61, 7")
    a("s_add_u32 s71, s71, s61")
    a(f"s_add_u32 s61, s2, {opt('mrot', 0)}")
    a("s_and_b32 s61, s61, 127")
    a("s_lshl_b32 s61, s61, 2")
    a(f"s_add_u32 s61, s61, s{sQ}")
    a("s_lshl_b32 s73, s61, 10")
    a(f"s_mul_i32 s74, s61, {11*128}")
    a("s_mul_i32 s66, s61, 2752")
    a("s_and_b32 s66, s66, 0xffffff80")
    a(f"s_mul_i32 s77, s61, {5*128}")
    a(f"s_add_u32 s77, s77, {WS_FLG}")
    a("s_lshl_b32 s78, s61, 9")
    a(f"s_add_u32 s78, s78, {WS_ST2}")
    a(f"s_mul_i32 s79, s61, {48*128}")
    a(f"s_add_u32 s79, s79, {WS_Z2N}")
    a(f"s_mul_i32 s94, s61, {96*128}")
    a(f"s_add_u32 s94, s94, {WS_H}")
    a("s_add_u32 s95, s94, 8192")
def q_spread(a, k, n, which, frac=None, nt=None):
    items = {'s': [(WSP_, 12, 64, 64), (WSP_, 12, 67, 64)], 'c': [(WO_, 13, 65, 64), (WOUT_, 13, 66, 64), (WOUT_, 13, 68, 22)],
             'o': [(WO_, 14, 71, 32)], 'u': [(WOUT_, 13, 66, 64), (WOUT_, 13, 68, 22)],
             'm': [(WO_, 13, 73, 8), (WOUT_, 13, 74, 11)],
             'w': [(96, 13, 66, 12)],
             'f': [(WS_, 13, 77, 5), (WS_, 13, 78, 4)], 'z': [(WS_, 13, 79, 48)], 'h': [(WS_, 13, 94, 64), (WS_, 13, 95, 32)]}[which]
    tot = sum(x[3] for x in items)
    lo, hi = k*tot//n, (k+1)*tot//n
    if frac: lo, hi = frac
    a(f"s_mov_b32 m0, {L_MISC}")
    base = 0
    for R, v, so, cnt in items:
        l, h = max(lo - base, 0), min(hi - base, cnt)
        if h > l:
            m = ((1 << h) - 1) ^ ((1 << l) - 1)
            a(f"s_mov_b32 exec_lo, {m & 0xffffffff:#x}\ns_mov_b32 exec_hi, {m >> 32:#x}")
            a.vmem(f"buffer_load_dword v{v}, {S4(R)}, s{so} offen {'nt ' if (opt('ntp' + which, 1 if which == 's' else 0) if nt is None else nt) else ''}lds", "pf")
        base += cnt
    a("s_mov_b64 exec, -1")

def z_slice_touch(a):
    a("s_lshr_b32 s61, s2, 3")
    a("s_and_b32 s61, s61, 3")
    a("s_lshl_b32 s61, s61, 2")
    a(f"s_add_u32 s61, s61, s{sQ}")
    a(f"s_add_u32 s63, s{sCG}, 4")
    a("s_lshl_b32 s63, s63, 7")
    a("s_lshl_b32 s62, s61, 15")
    a("s_add_u32 s62, s62, s63")
    a(f"s_mul_i32 s61, s61, {43*1024}")
    a("s_add_u32 s63, s63, s61")
    a("v_lshlrev_b32 v31, 10, v1")
    a(f"s_mov_b32 m0, {L_MISC}")
    a("s_mov_b32 exec_hi, 0")
    a.vmem(f"buffer_load_dword v31, {S4(WO_)}, s62 offen lds", "pf")
    a("s_mov_b32 exec_hi, 0x7ff")
    a.vmem(f"buffer_load_dword v31, {S4(WOUT_)}, s63 offen lds", "pf")
    a("s_mov_b32 exec_hi, -1")

def x_group_h(a, step, sl, tag):
    a(f"s_add_u32 s61, s{sK0A}, {step}")
    a("s_and_b32 s61, s61, 7")
    a("s_lshl_b32 s58, s61, 7")
    a("s_add_u32 s62, s58, s53")
    a(f"s_add_u32 m0, s60, {sl}")
    a("s_add_u32 s63, s62, 1024")
    a.vmem(f"buffer_load_dwordx4 v4, {S4(X_)}, s62 offen {NT('x')}lds", tag)
    a.vmem(f"buffer_load_dwordx4 v5, {S4(X_)}, s62 offen offset:1024 {NT('x')}lds", tag)
    a(f"s_add_u32 m0, s60, {sl + 2048}")
    a("s_nop 0")
    a.vmem(f"buffer_load_dwordx4 v4, {S4(X_)}, s63 offen {NT('x')}lds", tag)
    a.vmem(f"buffer_load_dwordx4 v5, {S4(X_)}, s63 offen offset:1024 {NT('x')}lds", tag)

def dots_x(a, fr, acc_s, acc_q, ones):
    for i in range(4):
        a(f"v_dot2_f32_bf16 v{acc_s}, v{fr+i}, v{ones}, v{acc_s}")
        a(f"v_dot2_f32_bf16 v{acc_q}, v{fr+i}, v{fr+i}, v{acc_q}")

def diag_sel(a, dst, gram):
    a("s_mov_b32 s62, 0x22222222\ns_mov_b32 s63, 0x22222222")
    a(f"v_cndmask_b32 v{dst}, v{gram}, v{gram+1}, s[62:63]")
    a("s_mov_b32 s62, 0x44444444\ns_mov_b32 s63, 0x44444444")
    a(f"v_cndmask_b32 v{dst}, v{dst}, v{gram+2}, s[62:63]")
    a("s_mov_b32 s62, 0x88888888\ns_mov_b32 s63, 0x88888888")
    a(f"v_cndmask_b32 v{dst}, v{dst}, v{gram+3}, s[62:63]")
DIAG_LO, DIAG_HI = 0x00f0000f, 0xf0000f00

def row_finalize(a, s_, q_, t):
    a(f"v_mul_f32 v{s_}, {f2u(1.0/512):#x}, v{s_}")
    a(f"v_mul_f32 v{q_}, {f2u(1.0/512):#x}, v{q_}")
    a(f"v_fma_f32 v{q_}, -v{s_}, v{s_}, v{q_}")
    a(f"v_max_f32 v{q_}, 0, v{q_}")
    a(f"v_add_f32 v{q_}, {f2u(1e-5):#x}, v{q_}")

def nonce_publish(a):
    l = a.label("Lnn")
    a(f"s_or_b32 s61, s2, s{sW}")
    a("s_cmp_lg_u32 s61, 0")
    a(f"s_cbranch_scc1 {l}")
    a("s_or_b32 s62, s84, 1")
    a("v_mov_b32 v30, s62")
    a("v_lshlrev_b32 v31, 6, v1")
    a("s_mov_b64 exec, 15")
    a(f"buffer_store_dword v30, v31, {S4(DBG_)}, 0 offen sc1")
    a("s_mov_b64 exec, -1")
    a(f"{l}:")

def nonce_check(a):
    a.vmwait("poll")
    def chk():
        a(f"v_readfirstlane_b32 s{sT}, v25")
        a(f"s_cmp_lg_u32 s{sT}, 0")
    def iss():
        a("v_mov_b32 v31, 0")
        a(f"buffer_load_dword v25, v31, {S4(DBG_)}, 0 offen sc1")
    spin(a, iss, chk)

def wave_flag(a):
    a(f"s_lshl_b32 s61, s{sGRP}, 4")
    a(f"s_add_u32 s61, s61, s{sRB}")
    a("s_lshl_b32 s61, s61, 2")
    a(f"s_add_u32 s61, s61, s{sQ}")
    a("s_lshl_b32 s61, s61, 7")
    a(f"s_add_u32 s61, s61, {F1_OFF}")
    a(f"v_mov_b32 v30, s{sT}")
    a("v_mov_b32 v31, 0")
    a("s_mov_b64 exec, 1")
    a.vmem(f"buffer_store_dword v30, v31, {S4(WS_)}, s61 offen sc1", "flag")
    a("s_mov_b64 exec, -1")

def spin(a, issue, check_ok, limit=0x8000):
    lp = a.label("Lspin"); ok = a.label("Lok")
    check_ok()
    a(f"s_cbranch_scc1 {ok}")
    a("s_mov_b32 s63, 0")
    a(f"{lp}:")
    issue()
    a("s_waitcnt vmcnt(0)")
    a("s_add_u32 s63, s63, 1")
    a(f"s_cmp_gt_u32 s63, {limit}")
    a(f"s_cbranch_scc1 {ok}")
    check_ok()
    a(f"s_cbranch_scc0 {lp}")
    a(f"{ok}:")

def az_helper(a, fused):
    rowtile_voffs(a, 4, 5, 10)
    zcount(a, 55, 57)
    a("s_lshl_b32 s57, s57, 1")
    for i in range(3):
        a(f"v_add_u32 v3, {64*i}, v1")
        a("v_mul_u32_u24 v30, 683, v3")
        a("v_lshrrev_b32 v30, 13, v30")
        a("v_mul_u32_u24 v31, 12, v30")
        a("v_sub_u32 v31, v3, v31")
        a("v_lshrrev_b32 v3, 2, v30")
        a("v_and_b32 v3, 2, v3")
        a("v_xor_b32 v31, v3, v31")
        a("v_cmp_le_u32 vcc, s57, v31")
        a("v_mul_u32_u24 v30, 2752, v30")
        a(f"v_lshl_add_u32 v{20+i}, v31, 4, v30")
        a("v_cndmask_b32_e64 v3, 0, 1, vcc")
        if i: a(f"v_subrev_u32 v{20+i}, {1024*i}, v{20+i}")
        a(f"v_lshl_add_u32 v{23+i}, v3, 28, v{20+i}")
    a(f"s_lshl_b32 s53, s{sRB}, 2")
    a(f"s_add_u32 s53, s53, s{sQ}")
    a("s_lshl_b32 s53, s53, 15")
    a(f"s_mul_i32 s54, s{sQ}, {16*2752}")
    a("s_lshl_b32 s61, s55, 5")
    a("s_add_u32 s54, s54, s61")
    a("s_add_u32 s54, s54, 1376")
    a(f"s_mul_i32 s56, s{sQ}, 3072")
    a(f"s_lshl_b32 s60, s{sQ}, 12")
    def wgroup(kreg_ready, step, dst, add, tag):
        if not kreg_ready:
            a(f"s_add_u32 s61, s{sK0A}, {step}")
            a("s_and_b32 s61, s61, 7")
        a(f"s_mul_i32 s63, s61, {64*2752}")
        a(f"s_add_u32 m0, s56, {dst}")
        a(f"s_add_u32 s63, s63, s{54 if add else 73}")
        for i in range(3):
            a.vmem(f"buffer_load_dwordx4 v{(23 if add or not opt('z1g', 0) else 20)+i}, {S4(WA_)}, s63 offen offset:{1024*i} {NT('w')}lds", tag)
    def ga(step):
        x_group_h(a, step, ZSLOT[step % 3], ("A", step))
        wgroup(True, step, ZSLOT[step % 3] + 16384, 1376, ("A", step))
    npro = opt('proZ', 2)
    early_srds(a)
    srd(a, WA_, 72, D*F2*2)
    ga(0)
    for st in range(1, npro): ga(st)
    if opt('sst', 0): a.stamp()
    a.split("LF_hz1")
    if opt('sst', 0): a.stamp()
    late_srds(a)
    wsp_setup_h(a)
    z1count(a, 73, 61)
    a("s_lshl_b32 s73, s73, 5")
    a(f"s_mul_i32 s61, s{sQ}, {16*2752}")
    a("s_add_u32 s73, s73, s61")
    a("v_lshlrev_b32 v10, 3, v1")
    a(f"s_lshl_b32 s64, s{sRB}, 5")
    a(f"s_add_u32 s64, s64, s{sQ}")
    a("s_lshl_b32 s64, s64, 9")
    a(f"s_add_u32 s64, s64, {WS_ST2}")
    a("s_add_u32 s65, s64, 4096\ns_add_u32 s66, s64, 8192\ns_add_u32 s67, s64, 12288")
    a("v_lshlrev_b32 v11, 4, v1")
    a("v_add_u32 v11, s60, v11")
    a(f"s_lshl_b32 s61, s{sQ}, 8")
    a(f"s_add_u32 s61, s61, {L_XCH}")
    a("v_lshrrev_b32 v12, 1, v1")
    a("v_lshl_add_u32 v12, v12, 2, s61")
    a("v_lshrrev_b32 v13, 4, v1")
    a("v_lshl_add_u32 v13, v13, 5, s61")
    a("v_lshrrev_b32 v3, 5, v1")
    a("v_mul_u32_u24 v3, 3072, v3")
    a("v_bfe_u32 v30, v1, 4, 1")
    a("v_lshl_add_u32 v3, v30, 9, v3")
    a("v_and_b32 v30, 15, v1")
    a("v_lshl_add_u32 v14, v30, 4, v3")
    a(f"s_lshl_b32 s57, s{sGRP}, 4")
    a(f"s_add_u32 s57, s57, s{sRB}")
    a("s_lshl_b32 s57, s57, 2")
    a(f"s_add_u32 s57, s57, s{sQ}")
    a("s_mul_i32 s57, s57, 6144")
    a(f"s_add_u32 s57, s57, {WS_Z2N}")
    a("v_mov_b32 v16, 0xffff0000")
    a.stamp()
    nw1 = 0
    for s in range(8):
        a.vmwait(("A", s))
        a("s_barrier")
        if s in (0, 1, 4): a.stamp()
        if s == 0: a(f"s_load_dword s{sT}, s[90:91], 128")
        if s + npro < 8: ga(s + npro)
        if s == 0: get_nonce(a, -1)
        if s == opt('st1z', 3): ln1_fetch_issue(a, False)
        if s == 6 and opt('lf', 0) == 0: ln1_fetch_finish(a, False)
        if s + npro >= 8:
            for u in (nw1, nw1 + 1): wgroup(False, u, W1SL[u], 0, ("W1", u))
            nw1 += 2
        if s == 5 and opt('lf', 0) == 1: ln1_fetch_finish(a, False)
    a.stamp()
    for u in range(nw1, 8): wgroup(False, u, W1SL[u], 0, ("W1", u))
    if opt('zcw', 1) == 1: cw_load(a, 0, 38)
    a.vmwait(("W1", 7))
    if opt('zcw', 1) == 2: a.after_a2 = True
    a("s_barrier")
    if opt('zcw', 1) == 2: cw_load(a, 0, 38)
    a(f"s_setprio {opt('nprio', 3)}")
    for j in range(6): a(f"ds_read_b128 {V(56+8*j+4)}, v11 offset:{(j>>2)*16384 + (j&3)*1024}")
    def iss():
        for c in range(8):
            a(f"buffer_load_dwordx2 {V(32+2*c,2)}, v10, {S4(WS_)}, s{64 + (c>>1)} offen offset:{2048*(c&1)} sc1")
    def chk():
        for c in range(8): a(f"v_xor_b32 v{48+c}, s{sT}, v{33+2*c}")
        a("v_or3_b32 v48, v48, v49, v50\nv_or3_b32 v51, v51, v52, v53\nv_or3_b32 v48, v48, v54, v55")
        a("v_or_b32 v48, v48, v51")
        a("v_cmp_ne_u32 vcc, 0, v48")
        a("s_cmp_eq_u64 vcc, 0")
    a("s_waitcnt lgkmcnt(0)")
    for j in range(6):
        for w in range(4):
            u = 56 + 8*j
            if w < 3:
                a(f"v_lshlrev_b32 v{u+2*w}, 16, v{u+4+w}")
                a(f"v_and_b32 v{u+2*w+1}, v16, v{u+4+w}")
            else:
                a(f"v_lshlrev_b32 v{u+6}, 16, v{u+7}")
                a(f"v_and_b32 v{u+7}, v16, v{u+7}")
    zcount(a, 62, 58)
    if opt('stdelay', 8): a(f"s_sleep {opt('stdelay', 8)}")
    iss(); a("s_waitcnt vmcnt(0)")
    spin(a, iss, chk)
    a.stamp()
    for k in (2, 4, 6): a(f"v_add_f32 v{32+2*k}, v{32+2*k}, v{34+2*k}")
    a("v_add_f32 v32, v32, v34")
    a("v_add_f32 v36, v36, v40")
    a("v_add_f32 v32, v32, v44")
    a("v_add_f32 v32, v32, v36")
    a(f"v_mul_f32 v32, {f2u(1.0/688):#x}, v32")
    a("s_nop 1")
    a("v_mov_b32_dpp v33, v32 quad_perm:[1,0,3,2] row_mask:0xf bank_mask:0xf")
    a("v_fma_f32 v33, -v32, v32, v33")
    a("v_max_f32 v33, 0, v33")
    a(f"v_add_f32 v33, {f2u(1e-5):#x}, v33")
    a("v_rsq_f32 v33, v33")
    a("s_nop 0")
    a("v_mul_f32_e64 v48, -v32, v33")
    a("v_mov_b32 v49, v33")
    a("s_nop 0")
    for w in range(8): a(f"v_mov_b32_dpp v{40+w}, v48 row_newbcast:{2*w} row_mask:0xf bank_mask:0xf")
    for w in range(8): a(f"v_mov_b32_dpp v{32+w}, v49 row_newbcast:{2*w} row_mask:0xf bank_mask:0xf")
    for j in range(6):
        u = 56 + 8*j; z = u
        for w in range(8): a(f"v_fma_f32 v{u+w}, v{u+w}, v{32+w}, v{40+w}")
        for w in range(4): a(f"v_cvt_pk_bf16_f32 v{z+w}, v{u+2*w}, v{u+2*w+1}")
        a(f"s_cmp_gt_u32 s58, {j}")
        a(f"s_cselect_b32 s61, s57, {OOB}")
        a.vmem(f"buffer_store_dwordx4 {V(z)}, v14, {S4(WS_)}, s61 offen offset:{(j>>1)*1024 + (j&1)*256} sc1", "z2n")
    a("s_setprio 0")
    a.stamp()
    a.vmwait("z2n")
    wave_flag(a)
    a.stamp()
    for v in range(3): wsp_group_h(a, v)
    a("s_barrier")
    for v in range(3, opt('wp', 4)): wsp_group_h(a, v)
    a(f"s_mov_b32 s72, {opt('wp', 4)}")
    if opt('zcw', 1) == 0: cw_load(a, 0, 38)

def aq_compute(a, fused):
    AQ, AK, AV, HK, HV = 32, 64, 96, 128, 136
    ONES, SUM, GRM, XA = 28, 224, 232, 240
    CWQ = [240, 128, 132, 136, 140, 244]
    ring = list(range(144, 200, 4))
    MC, MPN, MPA, MB = 200, 204, 208, 216
    a(f"s_lshr_b32 s5, s{sQ}, 1")
    a(f"s_and_b32 s46, s{sQ}, 1")
    a("s_lshl_b32 s61, s5, 13")
    rowfrag_addr(a, 10, 11, "s61")
    rowfrag_addr(a, 12, 13, 16384)
    qw_addr(a, 14)
    a("v_add_u32 v14, 18432, v14")
    a("s_lshl_b32 s61, s46, 6")
    a("v_xor_b32 v14, s61, v14")
    a("v_xor_b32 v15, 32, v14")
    a("v_and_b32 v3, 15, v1")
    a("v_lshrrev_b32 v30, 4, v1")
    a("v_lshlrev_b32 v30, 2, v30")
    a("v_sub_u32 v31, v3, v30")
    a(f"v_mov_b32 v224, {NEG:#x}")
    a("v_mov_b32 v225, 0xffff")
    a("v_mov_b32 v226, 0xffff0000")
    for i in range(4):
        a(f"v_subrev_u32 v227, {i}, v31")
        a("v_cmp_gt_u32 vcc, 8, v227")
        a("v_cmp_gt_i32 s[62:63], -8, v227")
        a("s_nop 0")
        a(f"v_cndmask_b32_e64 v{MC+i}, v224, 0, vcc")
        a(f"v_cndmask_b32_e64 v{228+i}, 0, v{225 + (i&1)}, vcc")
        a(f"v_cndmask_b32_e64 v{MPN+i}, v224, 0, s[62:63]")
    a(f"v_or_b32 v{MB}, v228, v229")
    a(f"v_or_b32 v{MB+1}, v230, v231")
    a("s_lshl_b32 s61, s5, 8")
    a(f"s_add_u32 s61, s61, {L_TAB}")
    a("v_and_b32 v27, 0x30, v1")
    a("v_add_u32 v218, s61, v27")
    a("v_lshl_add_u32 v219, v3, 2, s61")
    a("s_lshl_b32 s61, s46, 7")
    a(f"s_add_u32 s61, s61, {L_CW}")
    a("v_add_u32 v220, s61, v27")
    a("v_lshl_add_u32 v221, v3, 2, s61")
    a("v_lshlrev_b32 v222, 4, v1")
    a("s_lshl_b32 s61, s46, 12")
    a(f"s_add_u32 s61, s61, {L_XCH}")
    a("v_add_u32 v223, s61, v222")
    a(f"s_lshl_b32 s53, s{sRB}, 1")
    a("s_add_u32 s53, s53, s5")
    a("s_lshl_b32 s53, s53, 4")
    a(f"s_add_u32 s53, s53, s{sGRP}")
    a("s_lshl_b32 s53, s53, 1")
    a("s_add_u32 s53, s53, s46")
    a("s_lshl_b32 s53, s53, 11")
    a(f"s_add_u32 s53, s53, {WS_O}")
    a("s_add_u32 s54, s53, 32768")
    a("v_lshrrev_b32 v27, 4, v1")
    a("v_lshlrev_b32 v27, 9, v27")
    a("v_lshl_add_u32 v4, v3, 4, v27")
    a(f"s_lshl_b32 s61, s{sQ}, 2")
    a(f"s_add_u32 s61, s61, {L_FLG}")
    a("v_mov_b32 v7, s61")
    a("v_xor_b32 v8, 8, v7")
    a("s_lshl_b32 s61, s46, 2")
    a(f"s_add_u32 s61, s61, {L_FLG + 16}")
    a("v_mov_b32 v9, s61")
    a("v_mov_b32 v27, 0")
    a("ds_write_b32 v7, v27")
    a("ds_write_b32 v9, v27")
    AT = 16
    def build(halo, hp):
        fr = {'ones': dict(step=0, reg=ONES, reads=None)}; mf = []
        for s in range(8):
            for kk in range(2):
                for tl in range(4):
                    fr[('x', s, kk, tl)] = dict(step=s, reg=None, reads=[lambda r, kk=kk, tl=tl: f"ds_read_b128 {V(r)}, v{AT+kk} offset:{tl*2048}"])
                fr[('h', s, kk)] = dict(step=s, reg=None, reads=[lambda r, kk=kk: f"ds_read_b128 {V(r)}, v{AT+2+kk}"])
                for m in range(3):
                    for e in range(2):
                        w = ('w', s, kk, m, e)
                        fr[w] = dict(step=s, reg=None, reads=[(lambda r, hh=hh, kk=kk, m=m, e=e: f"ds_read_b64_tr_b16 {V(r+2*hh,2)}, v{AT+4+e} offset:{kk*12288 + m*1024 + hh*512}") for hh in range(2)])
                        for tl in range(4):
                            d = (AQ, AK, AV)[m] + (e*4+tl)*4
                            mf.append((d, w, ('x', s, kk, tl)) if m < 2 else (d, ('x', s, kk, tl), w))
                        if halo and m == 1: mf.append((HK+4*e, w, ('h', s, kk)))
                        if halo and m == 2: mf.append((HV+4*e, ('h', s, kk), w))
                        if halo == (m*2+e == 0): mf.append((CWQ[m*2+e], 'ones', w))
        return mf, fr
    def stats_out(halo):
        a("s_nop 6")
        for k in ([0] if halo else range(1, 6)): a(f"ds_write_b32 v221, v{CWQ[k]} offset:{256*(k>>1) + 64*(k&1)}")
    def pre(s):
        for r in range(6): a(f"v_add_u32 v{AT+r}, {QSLOT[s % 3]}, v{10+r}")
        if s == 0: a("s_waitcnt lgkmcnt(0)")
    a("v_mov_b32 v26, v30")
    a('v_mov_b32 v27, v3'); l2_setup(a, 5, False)
    a("v_mov_b32 v27, v3")
    ln1_publish(a)
    a("v_mov_b32 v3, v27")
    a("v_mov_b32 v30, v26")
    lr1 = a.label("Lrh1"); lj = a.label("Lqj")
    a("s_cmp_lg_u32 s5, 0")
    a(f"s_cbranch_scc1 {lr1}")
    a("v_lshlrev_b32 v3, 1, v3")
    a("v_sub_u32 v31, v30, v3")
    a(f"s_cmp_eq_u32 s{sRB}, 0")
    a("s_cselect_b32 s61, 1000, 0")
    a("v_subrev_u32 v31, s61, v31")
    for T in range(2):
        for i in range(4):
            if (i ^ T) & 1:
                a(f"v_mov_b32 v{MPA+4*T+i}, v224")
            else:
                a(f"v_cmp_le_i32 vcc, {T + 2 - i}, v31")
                a("s_nop 1")
                a(f"v_cndmask_b32_e64 v{MPA+4*T+i}, v224, 0, vcc")
    n0 = a.nst
    for halo in (True, False):
        if not halo:
            a(f"{lr1}:")
            for i in range(8): a(f"v_mov_b32 v{MPA+i}, v{MPN+(i&3)}")
        for r in range(4): a(f"v_mov_b32 v{ONES+r}, 0x3f803f80")
        a.nst = n0
        a.stamp()
        mf, fr = build(halo, 0)
        vm0 = list(a.vm)
        gemm_stream(a, mf, fr, ring, opt('LA', 10), opt('cover', 3), pre, stamps=(0, 1, 4), hooks=l2_hooks(a, 5, False))
        vm1 = list(a.vm); a.vm = vm0
        a.stamp()
        stats_out(halo)
        if halo: a(f"s_branch {lj}")
    a(f"{lj}:")
    a.vm = vm1
    a("v_mov_b32 v26, 1")
    a("s_waitcnt lgkmcnt(0)")
    a("ds_write_b32 v7, v26")
    lds_wait(a, 8, 1, 27)
    for k in range(2): a(f"ds_read_b128 {V(152+4*k)}, v220 offset:{256 + 64*k}")
    for tl in range(4):
        a(f"ds_read_b32 v{162+tl}, v219 offset:{64*tl}")
        a(f"ds_read_b32 v{166+tl}, v219 offset:{64*tl + TP}")
    for e in range(2): a(f"ds_read_b32 v{160+e}, v221 offset:{512 + 64*e}")
    a("s_waitcnt lgkmcnt(2)")
    for tl in range(4):
        a(f"ds_read_b128 {V(172+4*tl)}, v218 offset:{64*tl}")
        a(f"ds_read_b128 {V(10+4*tl)}, v218 offset:{64*tl + TP}")
    for k in range(2): a(f"ds_read_b128 {V(144+4*k)}, v220 offset:{64*k}")
    def corr_t(x, cw, mreg, rreg):
        for p in range(2): a(f"v_pk_fma_f32 {V(x+2*p,2)}, {V(cw+2*p,2)}, {V(mreg&~1,2)}, {V(x+2*p,2)} op_sel:[0,{mreg&1},0] op_sel_hi:[1,{mreg&1},1] neg_lo:[1,0,0] neg_hi:[1,0,0]")
        for p in range(2): a(f"v_pk_mul_f32 {V(x+2*p,2)}, {V(x+2*p,2)}, {V(rreg&~1,2)} op_sel:[0,{rreg&1}] op_sel_hi:[1,{rreg&1}]")
    def corr_c(x, mv, rv, cw):
        for p in range(2): a(f"v_pk_fma_f32 {V(x+2*p,2)}, {V(mv+2*p,2)}, {V(cw&~1,2)}, {V(x+2*p,2)} op_sel:[0,{cw&1},0] op_sel_hi:[1,{cw&1},1] neg_lo:[1,0,0] neg_hi:[1,0,0]")
        for p in range(2): a(f"v_pk_mul_f32 {V(x+2*p,2)}, {V(x+2*p,2)}, {V(rv+2*p,2)}")
    def pack(dst, x):
        for p in range(2): a(f"v_cvt_pk_bf16_f32 v{dst+p}, v{x+2*p}, v{x+2*p+1}")
    KV = 224
    def kp(e, tl): return KV + 8*tl + 2*e
    def vp(e, tl): return KV + 8*tl + 4 + 2*e
    for tl in (2, 3, 0, 1):
        for e in range(2): corr_t(AK + (e*4+tl)*4, 152+4*e, 162+tl, 166+tl)
        for e in range(2): pack(kp(e, tl), AK + (e*4+tl)*4)
    a("s_waitcnt lgkmcnt(0)")
    for tl in (2, 3, 0, 1):
        for e in range(2): corr_c(AV + (e*4+tl)*4, 172+4*tl, 10+4*tl, 160+e)
        for e in range(2): pack(vp(e, tl), AV + (e*4+tl)*4)
        if tl == 3:
            lx = a.label("Lx")
            a("s_cmp_lg_u32 s5, 0")
            a(f"s_cbranch_scc1 {lx}")
            for k in range(4): a(f"ds_write_b128 v223, {V(KV+16+4*k)} offset:{1024*k}")
            a("ds_write_b32 v9, v26")
            a("ds_read_b32 v26, v219 offset:512")
            a(f"ds_read_b32 v27, v219 offset:{512 + TP}")
            a(f"ds_read_b128 {V(188)}, v218 offset:512")
            a(f"ds_read_b128 {V(192)}, v218 offset:{512 + TP}")
            a(f"{lx}:")
    PV = 64
    lh = a.label("Lnh")
    a("s_cmp_lg_u32 s5, 0")
    a(f"s_cbranch_scc1 {lh}")
    a("s_waitcnt lgkmcnt(0)")
    for e in range(2):
        corr_t(HK+4*e, 152+4*e, 26, 27)
        corr_c(HV+4*e, 188, 192, 160+e)
    for e in range(2):
        for T in range(2):
            pack(PV + 8*T + 2*e, HK+4*e)
            pack(PV + 8*T + 4 + 2*e, HV+4*e)
    a(f"{lh}:")
    QP = 96
    for e in range(2):
        for tl in range(4):
            x = AQ + (e*4+tl)*4; m_ = 162 + tl
            for p in range(2): a(f"v_pk_fma_f32 {V(x+2*p,2)}, {V(144+4*e+2*p,2)}, {V(m_&~1,2)}, {V(x+2*p,2)} op_sel:[0,{m_&1},0] op_sel_hi:[1,{m_&1},1] neg_lo:[1,0,0] neg_hi:[1,0,0]")
    for k in range(8): pack(QP+2*k, AQ+4*k)
    for tl in range(4): a(f"v_mul_f32 v{10+tl}, {f2u(0.25*LOG2E):#x}, v{166+tl}")
    for r in range(2): a(f"v_mov_b32 v{14+r}, 0x3f803f80")
    lp = a.label("Lp")
    a("s_cmp_eq_u32 s5, 0")
    a(f"s_cbranch_scc1 {lp}")
    lds_wait(a, 9, 1, 27)
    for k in range(4): a(f"ds_read_b128 {V(PV+4*k)}, v223 offset:{1024*k}")
    a(f"{lp}:")
    SC, SP = 112, 144
    U = range(8)
    def kprev(u): e, tl = u//4, u%4; return kp(e, tl-2) if tl >= 2 else PV + 8*tl + 2*e
    def vprev(u): e, tl = u//4, u%4; return vp(e, tl-2) if tl >= 2 else PV + 8*tl + 4 + 2*e
    for u in U: a(mfma16(SC+4*u, kp(u//4, u%4), QP+2*u, V(MC)))
    for u in (2, 3, 6, 7): a(mfma16(SP+4*u, kprev(u), QP+2*u, V(MPN)))
    a("s_waitcnt lgkmcnt(0)")
    for u in (0, 1, 4, 5): a(mfma16(SP+4*u, kprev(u), QP+2*u, V(MPA+4*(u&1))))
    MX, TM = 32, 40
    for u in (2, 3, 6, 7, 0, 1, 4, 5):
        for i in range(4): a(f"v_max_f32 v{SC+4*u+i}, v{SC+4*u+i}, v{SP+4*u+i}")
    for u in U: a(f"v_max3_f32 v{MX+u}, v{SC+4*u}, v{SC+4*u+1}, v{SC+4*u+2}")
    for u in U: a(f"v_max_f32 v{MX+u}, v{MX+u}, v{SC+4*u+3}")
    a("s_nop 0")
    for b in (0, 4):
        a(f"v_permlane32_swap_b32 v{MX+b}, v{MX+b+1}")
        a(f"v_permlane32_swap_b32 v{MX+b+2}, v{MX+b+3}")
    for b in (0, 4):
        a(f"v_max_f32 v{MX+b}, v{MX+b}, v{MX+b+1}")
        a(f"v_max_f32 v{MX+b+2}, v{MX+b+2}, v{MX+b+3}")
    a("s_nop 0")
    for b in (0, 4): a(f"v_permlane16_swap_b32 v{MX+b}, v{MX+b+2}")
    for b in (0, 4): a(f"v_max_f32 v{MX+b}, v{MX+b}, v{MX+b+2}")
    for b in (0, 4): a(f"v_mov_b32 v{MX+b+2}, v{MX+b}")
    a("s_nop 1")
    for b in (0, 4): a(f"v_permlane16_swap_b32 v{MX+b}, v{MX+b+2}")
    for b in (0, 4):
        a(f"v_mov_b32 v{MX+b+1}, v{MX+b}")
        a(f"v_mov_b32 v{MX+b+3}, v{MX+b+2}")
    a("s_nop 0")
    for b in (0, 4):
        a(f"v_permlane32_swap_b32 v{MX+b}, v{MX+b+1}")
        a(f"v_permlane32_swap_b32 v{MX+b+2}, v{MX+b+3}")
    for u in range(0, 8, 2): a(f"v_pk_mul_f32 {V(MX+u,2)}, {V(MX+u,2)}, {V(10+(u&3),2)}")
    for u in U:
        c_ = 10 + (u & 3)
        for p in range(2): a(f"v_pk_fma_f32 {V(SC+4*u+2*p,2)}, {V(SC+4*u+2*p,2)}, {V(c_&~1,2)}, {V(MX+(u&~1),2)} op_sel:[0,{c_&1},{u&1}] op_sel_hi:[1,{c_&1},{u&1}] neg_lo:[0,0,1] neg_hi:[0,0,1]")
    for u in U:
        for i in range(4): a(f"v_exp_f32 v{SC+4*u+i}, v{SC+4*u+i}")
    PC, PP = 144, 160
    for u in U: pack(PP+2*u, SC+4*u)
    OA = 176
    for u in U:
        a(mfma16(SC+4*u, 14, PP+2*u, "0"))
        for p in range(2): a(f"v_and_b32 v{PC+2*u+p}, v{MB+p}, v{PP+2*u+p}")
    for u in U:
        for p in range(2): a(f"v_xor_b32 v{PP+2*u+p}, v{PC+2*u+p}, v{PP+2*u+p}")
        a(mfma16(OA+4*u, vp(u//4, u%4), PC+2*u, "0"))
    for u in U:
        a(mfma16(OA+4*u, vprev(u), PP+2*u))
        a(f"v_rcp_f32 v{MX+u}, v{SC+4*u}")
    a("s_nop 1")
    for u in U:
        for p in range(2): a(f"v_pk_mul_f32 {V(OA+4*u+2*p,2)}, {V(OA+4*u+2*p,2)}, {V(MX+(u&~1),2)} op_sel:[0,{u&1}] op_sel_hi:[1,{u&1}]")
    for tl in range(4):
        for e in range(2): pack(112 + 4*tl + 2*e, OA + 4*(e*4+tl))
    for tl in range(4):
        for p in range(2): a(f"v_permlane32_swap_b32 v{112+4*tl+p}, v{112+4*tl+2+p}")
    a.vmwait("b")
    a("s_mov_b32 s64, s53\ns_mov_b32 s65, s54")
    for tl in range(4):
        if not opt('defer', 0): a.vmem(f"buffer_store_dwordx4 {V(112+4*tl)}, v4, {S4(WS_)}, s{53+(tl>>1)} offen offset:{256*(tl&1)} sc1", "o")
    a(f"s_lshl_b32 s61, s{sRB}, 3")
    a(f"s_add_u32 s61, s61, s{sGRP}")
    a("s_lshl_b32 s61, s61, 2")
    a(f"s_add_u32 s61, s61, s{sQ}")
    a("s_lshl_b32 s61, s61, 7")
    a(f"s_add_u32 s75, s61, {FO_OFF}")
    a.stamp()

def aq_helper(a, fused):
    early = opt('qearly', 1); c6, c7, c8 = opt('c6', 8), opt('c7', 22), opt('c8', 30)
    PFS = [int(c, 16) for c in str(opt('pfs', 55234))]
    rowtile_voffs(a, 4, 5, 10)
    a("v_bfe_u32 v3, v1, 4, 1")
    a("v_lshlrev_b32 v3, 1, v3")
    a("v_and_b32 v30, 7, v1")
    a("v_xor_b32 v30, v30, v3")
    a("v_lshrrev_b32 v3, 3, v1")
    a("v_mul_u32_u24 v3, 3072, v3")
    a("v_lshl_add_u32 v6, v30, 4, v3")
    a("v_xor_b32 v30, 4, v30")
    a("v_lshl_add_u32 v7, v30, 4, v3")
    a(f"v_add_u32 v7, {8*3072}, v7")
    a("v_lshrrev_b32 v3, 4, v1")
    a(f"s_lshl_b32 s61, s{sQ}, 1")
    a("v_add_u32 v3, s61, v3")
    a("v_and_b32 v30, 7, v1")
    a("v_xor_b32 v30, v30, v3")
    a("v_and_b32 v30, 7, v30")
    a("v_lshrrev_b32 v3, 3, v1")
    a("v_lshlrev_b32 v3, 10, v3")
    a("v_lshl_add_u32 v20, v30, 4, v3")
    a(f"s_lshl_b32 s53, s{sRB}, 7")
    a("s_sub_u32 s55, s53, 16")
    a("s_max_i32 s55, s55, 0")
    a(f"s_lshl_b32 s61, s{sQ}, 2")
    a("s_add_u32 s55, s55, s61")
    a("s_lshl_b32 s55, s55, 10")
    a(f"s_lshl_b32 s61, s{sQ}, 5")
    a("s_add_u32 s53, s53, s61")
    a("s_lshl_b32 s53, s53, 10")
    a(f"s_mul_i32 s54, s{sQ}, {16*3072}")
    a(f"s_lshl_b32 s61, s{sGRP}, 7")
    a("s_add_u32 s54, s54, s61")
    a(f"s_mul_i32 s56, s{sQ}, 6144")
    a(f"s_lshl_b32 s57, s{sQ}, 9")
    a(f"s_lshl_b32 s60, s{sQ}, 12")
    def ga(step):
        sl = QSLOT[step % 3]; tag = ("A", step)
        x_group_h(a, step, sl, tag)
        a(f"s_mul_i32 s63, s61, {64*3072}")
        a("s_add_u32 s63, s63, s54")
        a(f"s_add_u32 m0, s56, {sl + 18432}")
        a("s_add_u32 s62, s58, s55")
        for m in range(3): a.vmem(f"buffer_load_dwordx4 v6, {S4(WA_)}, s63 offen offset:{1024*m} {NT('w')}lds", tag)
        a(f"s_add_u32 m0, s56, {sl + 18432 + 3072}")
        a("s_nop 0")
        for m in range(3): a.vmem(f"buffer_load_dwordx4 v7, {S4(WA_)}, s63 offen offset:{1024*m} {NT('w')}lds", tag)
        a(f"s_add_u32 m0, s57, {sl + 16384}")
        a("s_mov_b32 exec_hi, 0")
        a.vmem(f"buffer_load_dwordx4 v20, {S4(X_)}, s62 offen {NT('x')}lds", tag)
        a("s_mov_b32 exec_hi, -1")
    early_srds(a)
    srd(a, WA_, 66, D*1536*2)
    ga(0)
    ga(1)
    if opt('proQ', 2) == 3: ga(2)
    if opt('sst', 0): a.stamp()
    a.split("LF_hq1")
    if opt('sst', 0): a.stamp()
    late_srds(a)
    if fused: wsp_setup_h(a)
    q_spread_setup(a)
    a.stamp()
    for s in range(8):
        a.vmwait(("A", s))
        a("s_barrier")
        if s in (0, 1, 4): a.stamp()
        if s == 0: a(f"s_load_dword s{sT}, s[90:91], 128")
        if (0 if opt('proQ', 2) == 2 else 1) <= s <= 5: ga(s + 2)
        if s == 0: get_nonce(a, -1)
        if s == opt('st1q', 3): ln1_fetch_issue(a, True)
        if s == 6: ln1_fetch_finish(a, True)
        if s == opt('mt', 0): q_spread(a, 0, 1, 'm')
        if s == opt('wt1', 0): q_spread(a, 0, 1, 'w')
        if s == opt('ft', 0): q_spread(a, 0, 1, 'f')
        if s == opt('zt', 99): q_spread(a, 0, 1, 'z')
        if s == opt('ht', 99): q_spread(a, 0, 1, 'h')
        s0 = opt('sp0', 3)
        if s0 <= s < 6: q_spread(a, s - s0, 6 - s0, 's')
        if s == opt('retouch', 6): q_spread(a, 0, 1, 's', nt=0)
        if s == opt('qcw', 9): cw_load(a, 0, 16)
        if s == 7:
            for v in (0, 1, 6)[:opt('w7', 3)]: wsp_group_h(a, v)
    a.stamp()
    if opt('qcw', 9) == 8: cw_load(a, 0, 16)
    a(f"v_mov_b32 v30, {L_FLG}")
    lds_wait(a, 30, 4, 32)
    for v in [v for v in range(NWS) if v not in (0, 1, 6)[:opt('w7', 3)]]: wsp_group_h(a, v)
    if opt('qcw', 9) == 9: cw_load(a, 0, 16)
    a(f"s_mov_b32 s72, {NWS}")

def flag_store(a, which):
    if which == "F1":
        a(f"s_lshl_b32 s61, s{sRB}, 3")
        a(f"s_add_u32 s61, s61, s{sGRP}")
        off = F1_OFF
    else:
        a(f"s_lshl_b32 s61, s{sRB}, 1")
        a(f"s_add_u32 s61, s61, s{sTYP}")
        a("s_lshl_b32 s61, s61, 3")
        a(f"s_add_u32 s61, s61, s{sGRP}")
        off = F2_OFF
    a("s_lshl_b32 s61, s61, 7")
    a(f"s_add_u32 s61, s61, {off}")
    a(f"s_cmp_eq_u32 s{sQ}, 0")
    a(f"s_cselect_b32 s61, s61, {OOB}")
    a(f"v_mov_b32 v30, s{sT}")
    a("v_mov_b32 v31, 0")
    a("s_mov_b64 exec, 1")
    a.vmem(f"buffer_store_dword v30, v31, {S4(WS_)}, s61 offen sc1", "flag")
    a("s_mov_b64 exec, -1")

def mfma32(d, a, b, c=None):
    c = V(d, 16) if c is None else c
    return f"v_mfma_f32_32x32x16_bf16 {V(d,16)}, {V(a)}, {V(b)}, {c}"

def get_nonce(a, line):
    if line >= 0: a(f"s_load_dword s{sT}, s[90:91], {64*line}")
    a("s_waitcnt lgkmcnt(0)")
    first = [True]
    def chk():
        if not first[0]: a(f"v_readfirstlane_b32 s{sT}, v30")
        first[0] = False
        a(f"s_cmp_lg_u32 s{sT}, 0")
    def iss():
        a("s_sleep 2")
        a("v_mov_b32 v31, 0")
        a(f"buffer_load_dword v30, v31, {S4(DBG_)}, 0 offen sc1")
    spin(a, iss, chk)

def lds_wait(a, areg, n, t):
    lp = a.label("Llw"); ok = a.label("Llk")
    a("s_mov_b32 s63, 0")
    a(f"{lp}:")
    a(f"ds_read_b32 v{t}, v{areg}" if n == 1 else f"ds_read_b128 {V(t)}, v{areg}")
    a("s_add_u32 s63, s63, 1")
    a("s_waitcnt lgkmcnt(0)")
    if n > 1:
        a(f"v_and_b32 v{t}, v{t}, v{t+1}\nv_and_b32 v{t+2}, v{t+2}, v{t+3}\nv_and_b32 v{t}, v{t}, v{t+2}")
    a(f"v_cmp_ne_u32 vcc, 0, v{t}")
    a(f"s_cbranch_vccnz {ok}")
    a("s_cmp_lt_u32 s63, 0x100000")
    a(f"s_cbranch_scc1 {lp}")
    a(f"{ok}:")

def ln1_issue(a):
    a(f"s_lshl_b32 s61, s{sRB}, 1")
    a(f"s_add_u32 s61, s61, s{sTYP}")
    a("s_lshl_b32 s61, s61, 3")
    a(f"s_add_u32 s61, s61, s{sGRP}")
    a("s_lshl_b32 s61, s61, 2")
    a(f"s_add_u32 s47, s61, s{sQ}")
    a("s_lshl_b32 s61, s47, 11")
    a("v_lshrrev_b32 v3, 5, v1")
    a("v_lshlrev_b32 v3, 10, v3")
    a("v_and_b32 v30, 31, v1")
    a("v_lshl_add_u32 v3, v30, 4, v3")
    a.vmem(f"buffer_load_dwordx4 {V(40)}, v3, {S4(X_)}, s61 offen", "ln1")
    a.vmem(f"buffer_load_dwordx4 {V(44)}, v3, {S4(X_)}, s61 offen offset:512", "ln1")
def ln1_publish(a):
    a("v_mov_b32 v48, 0x3f803f80")
    a("v_mov_b32 v32, 0\nv_mov_b32 v33, 0\nv_mov_b32 v34, 0\nv_mov_b32 v35, 0")
    a("s_lshl_b32 s47, s47, 5")
    a(f"s_add_u32 s47, s47, {WS_ST1}")
    a("v_lshrrev_b32 v3, 1, v1")
    a.vmwait("ln1")
    for i in range(8):
        a(f"v_dot2_f32_bf16 v{32+(i&1)}, v{40+i}, v48, v{32+(i&1)}")
        a(f"v_dot2_f32_bf16 v{34+(i&1)}, v{40+i}, v{40+i}, v{34+(i&1)}")
    a("s_nop 2")
    a("v_add_f32 v32, v32, v33")
    a("v_add_f32 v34, v34, v35")
    for r in (8, 4, 2, 1):
        a("s_nop 0")
        a(f"v_add_f32_dpp v32, v32, v32 row_ror:{r} row_mask:0xf bank_mask:0xf")
        a(f"v_add_f32_dpp v34, v34, v34 row_ror:{r} row_mask:0xf bank_mask:0xf")
    a("v_mov_b32 v33, v32\nv_mov_b32 v35, v34")
    a("s_nop 1")
    a("v_permlane16_swap_b32 v32, v33\nv_permlane16_swap_b32 v34, v35")
    a("v_add_f32 v32, v32, v33\nv_add_f32 v34, v34, v35")
    row_finalize(a, 32, 34, 0)
    get_nonce(a, 1)
    a(f"v_mov_b32 v33, s{sT}\nv_mov_b32 v35, s{sT}")
    a("s_mov_b32 exec_lo, 1\ns_mov_b32 exec_hi, 1")
    a.vmem(f"buffer_store_dwordx4 {V(32)}, v3, {S4(WS_)}, s47 offen sc1", "ln1s")
    a("s_mov_b64 exec, -1")

def ln1_fetch_issue(a, halo):
    a(f"s_lshl_b32 s69, s{sRB}, 2")
    a(f"s_add_u32 s69, s69, s{sQ}")
    a("s_lshl_b32 s69, s69, 9")
    a(f"s_add_u32 s69, s69, {WS_ST1}")
    a(f"s_lshl_b32 s70, s{sRB}, 11")
    a("s_sub_u32 s70, s70, 256")
    a("s_max_i32 s70, s70, 0")
    a(f"s_add_u32 s70, s70, {WS_ST1}")
    a("v_lshlrev_b32 v36, 3, v1")
    a("v_and_b32 v37, 0xff, v36")
    a.vmem(f"buffer_load_dwordx2 {V(32,2)}, v36, {S4(WS_)}, s69 offen sc1", "st1")
    if halo: a.vmem(f"buffer_load_dwordx2 {V(34,2)}, v37, {S4(WS_)}, s70 offen sc1", "st1")
def ln1_fetch_finish(a, halo):
    a.vmwait("st1")
    def iss():
        a(f"buffer_load_dwordx2 {V(32,2)}, v36, {S4(WS_)}, s69 offen sc1")
        if halo: a(f"buffer_load_dwordx2 {V(34,2)}, v37, {S4(WS_)}, s70 offen sc1")
    def chk():
        a(f"v_cmp_ne_u32 vcc, s{sT}, v33")
        if halo:
            a(f"v_cmp_ne_u32 s[61:62], s{sT}, v35".replace("s[61:62]", "s[72:73]"))
            a("s_nop 0")
            a("s_or_b64 vcc, vcc, s[72:73]")
        a("s_cmp_eq_u64 vcc, 0")
    spin(a, iss, chk)
    a("v_bfe_u32 v38, v1, 1, 1")
    a("v_lshrrev_b32 v39, 2, v1")
    a("v_lshl_add_u32 v38, v38, 4, v39")
    a(f"s_lshl_b32 s61, s{sQ}, 7")
    a(f"s_add_u32 s61, s61, {L_TAB}")
    a("v_lshl_add_u32 v38, v38, 2, s61")
    a("v_mov_b32_dpp v33, v32 quad_perm:[1,0,3,2] row_mask:0xf bank_mask:0xf")
    if halo:
        a("v_mov_b32_dpp v35, v34 quad_perm:[1,0,3,2] row_mask:0xf bank_mask:0xf")
        a("v_lshlrev_b32 v39, 1, v1")
        a("v_and_b32 v39, 0x3c, v39")
        a(f"v_add_u32 v39, {L_TAB + 512}, v39")
        a("v_rsq_f32 v33, v33\nv_rsq_f32 v35, v35")
        a("s_mov_b32 exec_lo, 0x55555555\ns_mov_b32 exec_hi, 0x55555555")
        a(f"ds_write_b32 v38, v32\nds_write_b32 v38, v33 offset:{TP}")
        a(f"ds_write_b32 v39, v34\nds_write_b32 v39, v35 offset:{TP}")
    else:
        a("v_rsq_f32 v34, v33")
        a("v_sqrt_f32 v33, v33")
        a("v_mul_f32 v35, v34, v34")
        a("v_mul_f32 v35, v35, v34")
        a(f"v_mul_f32 v35, {f2u(-C2):#x}, v35")
        a(f"v_mul_f32 v34, {f2u(-C1):#x}, v34")
        a("s_mov_b32 exec_lo, 0x55555555\ns_mov_b32 exec_hi, 0x55555555")
        for k, r in enumerate((32, 35, 34, 33)): a(f"ds_write_b32 v38, v{r} offset:{TP*k}")
    a("s_mov_b64 exec, -1")
    a("s_waitcnt lgkmcnt(0)")

def b_early(a):
    a("v_and_b32 v3, 15, v1")
    a("v_bfe_u32 v31, v1, 4, 1")
    a("v_lshl_add_u32 v3, v3, 1, v31")
    a("v_lshlrev_b32 v3, 1, v3")
    a(f"s_lshl_b32 s61, s{sRB}, 2")
    a(f"s_add_u32 s61, s61, s{sQ}")
    a("s_lshl_b32 s61, s61, 6")
    a(f"s_cmp_eq_u32 s{sKS}, 0")
    a("s_cselect_b32 s61, s61, 4096")
    a.vmem(f"buffer_load_ushort v0, v3, {S4(BSP_)}, s61 offen", "b")

def b_compute(a, fused):
    ACC = 32
    ring = list(range(80, 144, 4))
    Z1 = 144
    OF = 168
    a("v_and_b32 v3, 31, v1")
    a("v_lshrrev_b32 v30, 5, v1")
    a("v_bfe_u32 v31, v1, 1, 3")
    a("v_xor_b32 v31, v30, v31")
    a("v_lshlrev_b32 v3, 7, v3")
    a("v_lshl_add_u32 v10, v31, 4, v3")
    a(f"s_lshl_b32 s61, s{sQ}, 12")
    a("v_add_u32 v10, s61, v10")
    for b4 in range(1, 4): a(f"v_xor_b32 v{10+b4}, {32*b4}, v10")
    for b4 in range(4): a(f"v_add_u32 v{14+b4}, 0x10000, v{10+b4}")
    a("v_lshlrev_b32 v19, 4, v1")
    a(f"v_add_u32 v18, {L_Z2}, v19")
    a(f"v_add_u32 v21, {L_Z2 + 49152}, v19")
    a("v_and_b32 v3, 15, v1")
    a("v_bfe_u32 v31, v1, 4, 1")
    a("v_lshlrev_b32 v20, 9, v31")
    a("v_lshl_add_u32 v20, v30, 8, v20")
    a("v_lshl_add_u32 v20, v3, 4, v20")
    a(f"s_lshl_b32 s57, s{sRB}, 2")
    a(f"s_add_u32 s57, s57, s{sQ}")
    if not fused: b_early(a)
    zcount(a, 55, 58, sCG)
    a("s_mul_i32 s53, s57, 48")
    a("s_add_u32 s53, s53, s55")
    a("s_lshl_b32 s53, s53, 10")
    a(f"s_mul_i32 s61, s{sKS}, {64*48*1024}")
    a("s_add_u32 s54, s53, s61")
    a(f"s_add_u32 s53, s53, {WS_Z1}")
    a(f"s_add_u32 s54, s54, {WS_H}")
    a("s_add_u32 s59, s54, 4096")
    a(f"s_mov_b32 s60, {OOB}")
    if not fused: a.vmwait("b")
    a("v_lshlrev_b32 v22, 16, v0")
    for r in range(16): a(f"v_mov_b32 v{232+r}, v22")
    def z1_load():
        pass
    def z1_piece(j):
        def f():
            if j == 4: a("s_add_u32 s53, s53, 4096")
            if j >= 2:
                a(f"s_cmp_gt_u32 s58, {j}")
                a("s_cselect_b32 s53, s53, s60")
            a.vmem(f"buffer_load_dwordx4 {V(Z1+4*j)}, v20, {S4(WS_)}, s53 offen offset:{(j%4)*1024} sc1", "z1")
        return f
    extras = []
    zs = opt('z1step', 13)
    for j in range(6): extras.append((zs, z1_piece(j), lambda done: True, 99))
    a(f"s_lshl_b32 s56, s{sRC}, 1")
    a(f"s_and_b32 s61, s{sQ}, 1")
    a("s_add_u32 s56, s56, s61")
    a("s_lshl_b32 s56, s56, 1")
    a(f"s_lshr_b32 s61, s{sQ}, 1")
    a("s_add_u32 s56, s56, s61")
    a("s_lshl_b32 s56, s56, 14")
    a(f"s_add_u32 s56, s56, {WS_O}")
    def o_piece(b):
        def f():
            if b and b % 4 == 0: a("s_add_u32 s56, s56, 4096")
            a.vmem(f"buffer_load_dwordx4 {V(OF+4*b)}, v19, {S4(WS_)}, s56 offen offset:{(b%4)*1024} sc1", ("o", b))
        return f
    a.o_piece = o_piece
    def preB(st):
        if fused and st == opt('f2step', 2):
            a(f"v_mov_b32 v30, s{sT}")
            a("v_mov_b32 v31, 0")
            a.vmall()
            a("s_mov_b64 exec, 1")
            a.vmem(f"buffer_store_dword v30, v31, {S4(WS_)}, s75 offen sc1", "flag")
            a("s_mov_b64 exec, -1")
    def build(nc):
        fr = {}; mf = []
        for i in range(16):
            for b4 in range(4):
                fr[('w', i, b4)] = dict(step=i, reg=None, reads=[lambda r, i=i, b4=b4: f"ds_read_b128 {V(r)}, v{10 + b4 + 4*((i%NWS)//4)} offset:{((i%NWS)%4)*16384}"])
                for c in range(nc):
                    fr[('z', i, b4, c)] = dict(step=i, reg=None, reads=[lambda r, i=i, b4=b4, c=c: f"ds_read_b128 {V(r)}, v{18 if ZOFF(i) < 49152 else 21} offset:{ZOF2(i) + (b4*3+c)*1024}"])
                    mf.append((ACC+16*c, ('z', i, b4, c), ('w', i, b4)))
        return mf, fr
    a.stamp()
    a("s_barrier")
    l7 = a.label("Lb7"); lj = a.label("Lbj")
    vm0 = list(a.vm); n0 = a.nst
    if opt('b7', 1):
        a(f"s_cmp_eq_u32 s{sCG}, 7")
        a(f"s_cbranch_scc1 {l7}")
    for nc in ((3, 1) if opt('b7', 1) else (3,)):
        if nc == 1:
            a.split(l7 + "x"); a.L = []; a(f"{l7}:")
            a.head.pop()
        a.vm = list(vm0); a.nst = n0
        mf, fr = build(nc)
        ex = list(extras)
        gemm_stream(a, mf, fr, ring, opt('LAB', 5) if nc == 3 else 3, opt('coverB', 2) if nc == 3 else 1, preB,
                    first_zero=V(232, 16), stamps=(0, 1, 8, 10, 12, 14), pergap=opt('pgB', 2), slack=2, op=mfma32, extras=ex)
        for e in ex: e[1]()
        if nc == 1:
            a(f"s_branch {lj}")
            a.unsplit()
            assert a.vm == vm3
        vm3 = list(a.vm)
    a(f"{lj}:")
    a.stamp()
    a("s_barrier")
    a.vmwait("z1")
    a("v_mov_b32 v23, 0xffff0000")
    for j in range(6):
        x = ACC + 8*j; z = Z1 + 4*j; t = 80 + 8*(j&1)
        for k in range(4):
            a(f"v_lshlrev_b32 v{t+2*k}, 16, v{z+k}")
            a(f"v_and_b32 v{t+2*k+1}, v23, v{z+k}")
        a(f"s_cmp_gt_u32 s58, {j}")
        a(f"s_cselect_b32 s61, s{54 if j < 4 else 59}, s60")
        for k in range(4): a(f"v_pk_mul_f32 {V(x+2*k,2)}, {V(x+2*k,2)}, {V(t+2*k,2)}")
        for k in range(4): a(f"v_cvt_pk_bf16_f32 v{x+k}, v{x+2*k}, v{x+2*k+1}")
        a.vmem(f"buffer_store_dwordx4 {V(x)}, v19, {S4(WS_)}, s61 offen offset:{(j%4)*1024} sc1", "h")
    a.stamp()

CR = 104
NCR = int(os.environ.get('NCR', 16))
def cw_load(a, lo, hi):
    if NCR == 0: return
    if lo == 0: cw_load_setup(a)
    for i in range(lo, min(hi, NCR)):
        R, k = (WO_, i) if i < 16 else (WOUT_, i - 16)
        a(f"s_add_u32 s46, s47, {k*32768}")
        a.vmem(f"buffer_load_dwordx4 {V(CR+4*i)}, v26, {S4(R)}, s46 offen", "CW")
def cw_load_setup(a):
    a("v_bfe_u32 v3, v1, 4, 1")
    a("v_lshlrev_b32 v3, 2, v3")
    a("v_and_b32 v30, 7, v1")
    a("v_xor_b32 v30, v30, v3")
    a("v_lshrrev_b32 v3, 3, v1")
    a("v_lshlrev_b32 v3, 10, v3")
    a("v_lshl_add_u32 v26, v30, 4, v3")
    a(f"s_lshl_b32 s47, s{sCG}, 7")
    a(f"s_lshl_b32 s61, s{sQ}, 13")
    a("s_add_u32 s47, s47, s61")
def cw_dma(a, lo, hi):
    for i in range(max(lo, NCR), hi):
        off = CSLOT[i // 4]*16384 + (4*i % 16)*1024
        R, k = (WO_, i) if i < 16 else (WOUT_, i - 16)
        a(f"s_add_u32 m0, s76, {off}")
        a(f"s_add_u32 s46, s47, {k*32768}")
        a.vmem(f"buffer_load_dwordx4 v26, {S4(R)}, s46 offen lds", "WO" if i < 16 else "CW2")
def cw_write(a, lo, hi):
    for i in range(lo, min(hi, NCR)):
        g4 = 4*i
        off = CSLOT[g4 // 16]*16384 + (g4 % 16)*1024
        a(f"ds_write_b128 v{27 + (off >> 16)}, {V(CR+4*i)} offset:{off & 0xffff}")

CSLOT = [2, 3, 4, 5, 6, 0, 1, 7, 8, 9]; assert True
def b_helper(a, fused):
    if not fused:
        late_srds(a)
        wsp_setup_h(a)
        a(f"s_lshl_b32 s60, s{sQ}, 12")
    a("v_lshlrev_b32 v10, 4, v1")
    a(f"s_lshl_b32 s61, s{sQ}, 10")
    a("v_add_u32 v27, s61, v10")
    a("v_add_u32 v28, 0x10000, v27")
    a("v_add_u32 v29, 0x20000, v27")
    a(f"s_lshl_b32 s53, s{sCG}, 1")
    a(f"s_add_u32 s53, s53, s{sKS}")
    a(f"s_mul_i32 s53, s53, {16*12288}")
    a(f"s_mul_i32 s54, s{sQ}, 3072")
    a("s_add_u32 s53, s53, s54")
    a(f"s_add_u32 s53, s53, {WS_Z2N}")
    a(f"s_add_u32 s54, s54, {L_Z2}")
    zcount(a, 61, 62, sCG)
    a("v_bfe_u32 v3, v1, 4, 1")
    for k in (1, 2):
        a(f"v_add_u32 v30, {2*k}, v3")
        a("v_cmp_le_u32 vcc, s62, v30")
        a("s_nop 1")
        a("v_cndmask_b32_e64 v30, 0, 1, vcc")
        a(f"v_lshl_add_u32 v{13+k}, v30, 28, v10")
    def z2_group(i):
        a(f"s_add_u32 s61, s{sK0B}, {i}")
        a("s_and_b32 s61, s61, 15")
        a("s_mul_i32 s61, s61, 12288")
        a(f"s_add_u32 m0, s54, {ZOFF(i)}")
        a("s_add_u32 s61, s61, s53")
        for k in range(3): a.vmem(f"buffer_load_dwordx4 v{(10, 14, 15)[k]}, {S4(WS_)}, s61 offen offset:{1024*k} sc1 lds", ("Z", i))
    a.stamp()
    if fused:
        a(f"s_lshl_b32 s71, s{sCG}, 1")
        a(f"s_add_u32 s71, s71, s{sKS}")
        a("s_lshl_b32 s71, s71, 12")
        a(f"s_add_u32 s71, s71, {F1_OFF}")
        a("v_and_b32 v31, 31, v1")
        a("v_lshlrev_b32 v31, 7, v31")
        a(f"v_mov_b32 v30, 0")
        def iss(): a(f"buffer_load_dword v30, v31, {S4(WS_)}, s71 offen sc1")
        def chk():
            a(f"v_cmp_ne_u32 vcc, s{sT}, v30")
            a("s_cmp_eq_u64 vcc, 0")
        wp = opt('wp', 4)
        lA = a.label("LfA")
        lB = a.label("LfB")
        iss(); a("s_waitcnt vmcnt(0)")
        a(f"s_cmp_ge_u32 s72, {NWS}")
        a(f"s_cbranch_scc1 {lB}")
        for v in range(wp, NWS):
            chk()
            a(f"s_cbranch_scc1 {lA}")
            wsp_group_h(a, v)
            a(f"s_mov_b32 s72, {v + 1}")
            iss(); a("s_waitcnt vmcnt(0)")
        a(f"{lB}:")
        spin(a, iss, chk)
        a("s_waitcnt vmcnt(0)")
        a(f"{lA}:")
        a.vm = []
        a.stamp()
        for i in range(NZS - 1): z2_group(i)
        a("v_mov_b32 v25, 256")
        def late_group(v):
            ld = a.label("Lld"); le = a.label("Lle")
            a(f"s_cmp_gt_u32 s72, {v}")
            a(f"s_cbranch_scc1 {ld}")
            wsp_group_h(a, v)
            a(f"s_branch {le}")
            a(f"{ld}:")
            a("s_mov_b64 exec, 1")
            for k in range(4): a(f"buffer_load_dword v24, v25, {S4(DBG_)}, 0 offen")
            a("s_mov_b64 exec, -1")
            a(f"{le}:")
    a("s_barrier")
    wpre = NWS
    a("v_add_u32 v18, 4096, v8")
    a("v_add_u32 v19, 4096, v9")
    def wsp_pieces(v):
        def f(k):
            if k == 0:
                a(f"s_add_u32 s58, s{sK0B}, {v}")
                a("s_and_b32 s58, s58, 15")
                a("s_lshl_b32 s58, s58, 7")
                a("s_add_u32 s58, s58, s59")
            a(f"s_add_u32 m0, s60, {(v % NWS) * 16384 + 2048*(k>>1)}")
            a("s_nop 0")
            a.vmem(f"buffer_load_dwordx4 v{(8, 9, 18, 19)[k]}, {S4(WSP_)}, s58 offen offset:{1024*(k&1)} {NT('s')}lds", ("S", v))
        return [(lambda k=k: f(k)) for k in range(4)]
    cws = opt('cws', 14)
    a(f"s_lshl_b32 s76, s{sQ}, 10")
    if NCR == 0: cw_load_setup(a)
    bg = []
    for v in range(wpre, 16): bg += [(max(0, v - NWS + 1), p, v) for p in wsp_pieces(v)]
    for i in range(16):
        assert all(x[2] > i for x in bg), i
        a.vmwait(("S", i)); a.vmwait(("Z", i))
        if fused and i == opt('z1step', 13): f2_check(a)
        a("s_barrier")
        if i in (0, 1, 8, 10, 12, 14): a.stamp()
        if fused and i == opt('f2step', 2): flag_store(a, "F2")
        if fused and i == opt('z1step', 13) - 3: f2_issue(a)
        lg = opt('lg', 2)
        for v in range(wp + lg*i, min(NWS, wp + lg*(i + 1))):
            assert v > i
            late_group(v)
        if i + NZS - 1 < 16: z2_group(i + NZS - 1)
        if i == opt('cwt', 99):
            a(f"s_and_b32 s61, s{sRB}, 3")
            a("s_lshl_b32 s61, s61, 2")
            a(f"s_add_u32 s61, s61, s{sQ}")
            a(f"s_mul_i32 s61, s61, {43*1024}")
            a(f"s_lshl_b32 s62, s{sCG}, 7")
            a("s_add_u32 s61, s61, s62")
            a("v_lshlrev_b32 v31, 10, v1")
            a("s_mov_b32 exec_hi, 0x7ff")
            a.vmem(f"buffer_load_dword v24, v31, {S4(WOUT_)}, s61 offen", "pf")
            a("s_mov_b32 exec_hi, -1")
        if i >= cws: cw_write(a, 4*(i - cws), 4*(i - cws) + 4); cw_dma(a, 4*(i - cws), 4*(i - cws) + 4)
        n = opt('pace', 3)
        while n > 0 and bg and bg[0][0] <= i:
            bg.pop(0)[1](); n -= 1
    a.stamp()
    a("s_barrier")
    assert not bg
    cw_write(a, 4*(16 - cws), max(16, 4*(16 - cws)))
    cw_dma(a, 4*(16 - cws), 16)

def f2_issue(a):
    a(f"s_lshl_b32 s62, s{sRB}, 11")
    a(f"s_add_u32 s62, s62, {F2_OFF + 8*128}")
    a(f"s_lshr_b32 s61, s{sRC}, 1")
    a("s_lshl_b32 s61, s61, 12")
    a(f"s_add_u32 s61, s61, {FO_OFF}")
    a("v_lshlrev_b32 v21, 7, v1")
    a("v_add_u32 v20, s61, v21")
    if opt('z1g', 0):
        a("v_and_b32 v21, 0x380, v21")
        a("v_add_u32 v21, s62, v21")
    else:
        a(f"s_lshl_b32 s63, s{sCG}, 7")
        a("s_add_u32 s62, s62, s63")
        a("v_mov_b32 v21, s62")
    a("v_cmp_lt_u32 vcc, 31, v1")
    a("s_nop 1")
    a("v_cndmask_b32 v20, v20, v21, vcc")
    a.vmem(f"buffer_load_dword v21, v20, {S4(WS_)}, 0 offen sc1", "f2")
def f2_check(a):
    a.vmwait("f2")
    def iss(): a(f"buffer_load_dword v21, v20, {S4(WS_)}, 0 offen sc1")
    def chk():
        a(f"v_cmp_ne_u32 vcc, s{sT}, v21")
        a("s_cmp_eq_u64 vcc, 0")
    spin(a, iss, chk)

L_RED = 0
def c_waddr(a, d):
    a("v_lshrrev_b32 v3, 5, v1")
    a("v_bfe_u32 v30, v1, 2, 2")
    a("v_lshl_add_u32 v3, v3, 2, v30")
    a("v_lshlrev_b32 v3, 7, v3")
    a("v_and_b32 v30, 2, v30")
    a("v_bfe_u32 v31, v1, 4, 1")
    a("v_or_b32 v30, v30, v31")
    a("v_lshl_add_u32 v3, v30, 5, v3")
    a("v_and_b32 v30, 3, v1")
    a(f"v_lshl_add_u32 v{d}, v30, 3, v3")
    a(f"v_xor_b32 v{d+1}, 64, v{d}")

def c_stream(a, nblk, fragreg, tagf, areg, blk0, ring, ACC, first_zero, loads=(), off0=0):
    fr = {}; mf = []
    for b in range(nblk):
        fr[('h', b)] = dict(step=0, reg=fragreg(b), reads=None)
        for nn in range(2):
            off = CSLOT[(blk0 + b) // 8] * 16384 + ((blk0 + b) % 8) * 2048 - off0
            fr[('w', b, nn)] = dict(step=0, reg=None, reads=[(lambda r, hh=hh, nn=nn, off=off: f"ds_read_b64_tr_b16 {V(r+2*hh,2)}, v{areg(off >> 16) + nn} offset:{(off & 0xffff) + hh*1024}") for hh in range(2)])
            mf.append((ACC+16*nn, ('w', b, nn), ('h', b)))
    cnt = [0]
    def op(d, x, y, c):
        b = cnt[0] // 2
        if cnt[0] % 2 == 1 and loads: loads.pop(0)()
        cnt[0] += 1
        a.vmwait(tagf(b))
        return mfma32(d, x, y, c)
    gemm_stream(a, mf, fr, ring, opt('LAC', 4), 0, lambda st: None, first_zero=first_zero, pergap=2, slack=2, op=op, skip_first_barrier=True)

def c_final(a):
    a.vmwait("x")
    for w in range(4):
        a(f"v_lshlrev_b32 v{64+2*w}, 16, v{8+w}")
        a(f"v_and_b32 v{65+2*w}, 0xffff0000, v{8+w}")
    a("s_waitcnt lgkmcnt(0)")
    a("s_barrier")
    for k in range(2):
        a(f"ds_read_b128 {V(16+8*k)}, v6 offset:{17408*k}")
        a(f"ds_read_b128 {V(20+8*k)}, v6 offset:{17408*k + 16}")
    a("s_waitcnt lgkmcnt(2)")
    for w in range(4): a(f"v_pk_add_f32 {V(64+2*w,2)}, {V(64+2*w,2)}, {V(16+2*w,2)}")
    a("s_waitcnt lgkmcnt(0)")
    for w in range(4): a(f"v_pk_add_f32 {V(64+2*w,2)}, {V(64+2*w,2)}, {V(24+2*w,2)}")
    for w in range(4): a(f"v_cvt_pk_bf16_f32 v{32+w}, v{64+2*w}, v{65+2*w}")
    a.vmem(f"buffer_store_dwordx4 {V(32)}, v7, {S4(OUT_)}, s47 offen {('', 'sc1', 'nt', 'sc0 sc1', 'sc1 nt')[opt('outf', 0)]}", "out")

def c_final_setup(a):
    a("v_lshrrev_b32 v3, 3, v1")
    a(f"s_lshl_b32 s61, s{sW}, 3")
    a("v_add_u32 v3, s61, v3")
    a("v_and_b32 v30, 7, v1")
    a("v_mul_u32_u24 v6, 272, v3")
    a("v_lshl_add_u32 v6, v30, 5, v6")
    a("v_add_u32 v6, 32768, v6")
    a("v_and_b32 v31, 15, v3")
    a("v_lshlrev_b32 v31, 1, v31")
    a("v_bfe_u32 v7, v3, 4, 1")
    a("v_add_u32 v31, v31, v7")
    a("v_and_b32 v7, 32, v3")
    a("v_add_u32 v31, v31, v7")
    a("v_lshlrev_b32 v31, 10, v31")
    a("v_lshl_add_u32 v7, v30, 4, v31")
    a(f"s_lshl_b32 s47, s{sRC}, 9")
    a(f"s_add_u32 s47, s47, s{sCG}")
    a("s_lshl_b32 s47, s47, 7")
    a.vmem(f"buffer_load_dwordx4 {V(8)}, v7, {S4(X_)}, s47 offen", "x")

def c_compute(a, fused):
    ACC, OF, HF = 32, 168, 80
    for b in range(16): a.o_piece(b)()
    a(f"s_and_b32 s53, s{sQ}, 1")
    a(f"s_lshr_b32 s54, s{sQ}, 1")
    c_waddr(a, 26)
    a("s_lshl_b32 s61, s54, 15")
    a("s_add_u32 s61, s61, 32768")
    a("v_add_u32 v4, s61, v26\nv_add_u32 v5, s61, v27")
    a("s_barrier")
    a("s_lshl_b32 s61, s57, 1")
    a(f"s_add_u32 s61, s61, s{sKS}")
    a("s_lshl_b32 s61, s61, 3")
    a(f"s_add_u32 s61, s61, s{sCG}")
    a("s_lshl_b32 s61, s61, 7")
    a(f"s_add_u32 s61, s61, {F3_OFF}")
    a(f"v_mov_b32 v30, s{sT}")
    a("v_mov_b32 v31, 0")
    a.vmwait("h")
    a("s_mov_b64 exec, 1")
    a.vmem(f"buffer_store_dword v30, v31, {S4(WS_)}, s61 offen sc1", "flag")
    a("s_mov_b64 exec, -1")
    a.stamp()
    c_stream(a, 16, lambda b: OF+4*b, lambda b: ("o", b), lambda k: 4, 0, list(range(80, 112, 4)), ACC, True, off0=32768)
    a.stamp()
    a("v_add_u32 v252, 0x10000, v26\nv_add_u32 v253, 0x10000, v27")
    a("v_add_u32 v254, 0x20000, v26\nv_add_u32 v255, 0x20000, v27")
    a(f"s_lshl_b32 s55, s{sRC}, 1")
    a("s_add_u32 s55, s55, s53")
    a("s_lshl_b32 s56, s54, 6")
    a("s_add_u32 s56, s56, s55")
    a("s_mul_i32 s56, s56, 49152")
    a(f"s_add_u32 s56, s56, {WS_H}")
    a("v_lshlrev_b32 v28, 4, v1")
    c_final_setup(a)
    a("v_and_b32 v3, 31, v1")
    a("v_mul_u32_u24 v3, 272, v3")
    a("v_lshrrev_b32 v30, 5, v1")
    a("v_lshl_add_u32 v3, v30, 4, v3")
    a("s_mul_i32 s61, s54, 17408")
    a(f"s_mul_i32 s62, s53, {32*272}")
    a("s_add_u32 s61, s61, s62")
    a("s_add_u32 s61, s61, 32768")
    a("v_add_u32 v4, s61, v3")
    a("s_lshl_b32 s62, s55, 1")
    a("s_add_u32 s62, s62, s54")
    a("s_lshl_b32 s62, s62, 10")
    a(f"s_add_u32 s62, s62, {F3_OFF}")
    a("v_and_b32 v31, 7, v1")
    a("v_lshlrev_b32 v31, 7, v31")
    a("v_mov_b32 v30, 0")
    a("s_barrier")
    def iss(): a(f"buffer_load_dword v30, v31, {S4(WS_)}, s62 offen sc1")
    def chk():
        a(f"v_cmp_ne_u32 vcc, s{sT}, v30")
        a("s_cmp_eq_u64 vcc, 0")
    spin(a, iss, chk)
    a.vm = []
    a.stamp()
    def hload(b):
        if b and b % 4 == 0: a("s_add_u32 s56, s56, 4096")
        a.vmem(f"buffer_load_dwordx4 {V(HF+4*b)}, v28, {S4(WS_)}, s56 offen offset:{(b%4)*1024} sc1", ("H", b))
    PH = opt('PH', 14)
    for b in range(PH): hload(b)
    ring = list(range(64, 80, 4)) + [12, 16, 20]
    c_stream(a, 43, lambda b: HF+4*b, lambda b: ("H", b), lambda k: (26, 252, 254)[k], 32, ring, ACC, False, [(lambda b=b: hload(b)) for b in range(PH, 43)])
    a.stamp()
    a("s_nop 10")
    for nn in range(2):
        for jj in range(4): a(f"ds_write_b128 v4, {V(ACC+16*nn+4*jj)} offset:{128*nn + 32*jj}")
    c_final(a)

def c_helper(a, fused):
    a.vmwait("WO")
    a("s_waitcnt lgkmcnt(0)")
    a("s_barrier")
    cw_dma(a, max(16, 4*(16 - opt('cws', 14))), 38)
    cw_write(a, max(16, 4*(16 - opt('cws', 14))), 38)
    c_final_setup(a)
    a.vmwait("CW2")
    a("s_waitcnt lgkmcnt(0)")
    a.stamp()
    a("s_barrier")
    c_final(a)

def diag_out(a, base):
    if opt('padto', 0):
        l = a.label("Lpad")
        if opt('leak', -1) >= 0:
            a("s_nop 0")
            a(f"v_readlane_b32 s61, v2, {opt('leak', 0)}")
            a("s_lshr_b32 s61, s61, 4")
            a(f"s_lshl_b32 s62, s{sW}, 10")
            a("s_add_u32 s62, s62, s2")
            a(f"s_cmp_eq_u32 s62, {opt('leakwg', 200)}")
            a("s_cselect_b32 s61, s61, 0")
            a("s_add_u32 s84, s84, s61")
        a(f"{l}:")
        a("s_sleep 1")
        a("s_memrealtime s[86:87]")
        a("s_waitcnt lgkmcnt(0)")
        a(f"s_sub_u32 s86, s86, s{sT if opt('padT', 0) else 84}")
        a(f"s_cmp_lt_i32 s86, {opt('padto', 0)}")
        a(f"s_cbranch_scc1 {l}")
    if opt('skew', 0):
        a(f"s_sub_u32 s61, s84, s{sT}")
        a("s_add_u32 s61, s61, 100000")
        a("v_mov_b32 v4, s61")
        a("v_mov_b32 v5, 8")
        a("s_mov_b64 exec, 1")
        a(f"buffer_atomic_umax v4, v5, {S4(DBG_)}, 0 offen")
        a("s_sub_u32 s61, 200000, s61")
        a("v_mov_b32 v4, s61")
        a(f"buffer_atomic_umax v4, v5, {S4(DBG_)}, 0 offen offset:4")
        a("s_mov_b64 exec, -1")
    if not a.diag: return
    a("v_writelane_b32 v2, s84, 62")
    a("s_memrealtime s[86:87]")
    a("s_waitcnt lgkmcnt(0)")
    a("v_writelane_b32 v2, s86, 63")
    a("s_lshl_b32 s61, s2, 3")
    a(f"s_add_u32 s61, s61, s{sW}")
    a("s_lshl_b32 s61, s61, 8")
    a(f"s_add_u32 s61, s61, {base}")
    a("v_lshlrev_b32 v3, 2, v1")
    a(f"buffer_store_dword v2, v3, {S4(WS_)}, s61 offen")
    if opt('hdbg', -1) >= 0:
        l = a.label("Lhd")
        a(f"s_cmp_lg_u32 s2, {opt('hdbg', 0)}")
        a(f"s_cbranch_scc1 {l}")
        a(f"s_cmp_lg_u32 s{sW}, 0")
        a(f"s_cbranch_scc1 {l}")
        a("s_sub_u32 s86, s86, s84")
        a("v_mov_b32 v4, 0")
        a("v_writelane_b32 v4, s86, 1")
        for k, src in enumerate((0, 1, 3, 4, 5, 6, 7, 10, 11, 17, 18, 19, 20, 22)):
            a(f"v_readlane_b32 s61, v2, {src}")
            a("s_nop 3")
            a(f"v_writelane_b32 v4, s61, {2+k}")
        a("s_mov_b64 exec, 0xfffe")
        a(f"buffer_store_dword v4, v3, {S4(DBG_)}, 0 offen")
        a(f"{l}:")

def simple_kernel(name, diag, idx, comp, helper):
    a = G(diag)
    prologue(a, f"L{name}_end")
    a(f"s_cmp_ge_u32 s{sW}, 4")
    a(f"s_cbranch_scc1 L{name}_h")
    for k, fn in enumerate((comp, helper)):
        if k: a(f"L{name}_h:")
        a.vm = []; a.nst = 0
        fn(a)
        a.vmall(); a.stamp()
        diag_out(a, WS_DBG + idx*0x80000)
        a("s_endpgm")
    a(f"L{name}_end:")
    a("s_endpgm")
    return a.text()

def by_type(fq, fz, lab):
    def f(a):
        a(f"s_cmp_lg_u32 s{sTYP}, 0")
        a(f"s_cbranch_scc1 {lab}_z")
        fq(a, False)
        a.vmall()
        a(f"s_branch {lab}_e")
        n = a.nst
        a(f"{lab}_z:")
        a.vm = []; a.nst = 0
        fz(a, False)
        a(f"{lab}_e:")
        a.nst = max(a.nst, n)
    return f

def multi(diag):
    ka = simple_kernel("A", diag, 0, by_type(aq_compute, az_compute, "LAc"), by_type(aq_helper, az_helper, "LAh"))
    def bc(a): late_srds(a); b_compute(a, False)
    kb = simple_kernel("B", diag, 1, bc, lambda a: b_helper(a, False))
    kc = simple_kernel("C", diag, 2, lambda a: c_compute(a, False), lambda a: c_helper(a, False))
    return [("a_kernel", ka), ("b_kernel", kb), ("c_kernel", kc)]

def fused_kernel(diag):
    a = G(diag)
    prologue(a, "LF_end")
    a(f"s_cmp_lt_u32 s{sW}, 4")
    a("s_cbranch_scc1 LF_c")
    a(f"s_cmp_lg_u32 s{sTYP}, 0")
    a("s_cbranch_scc1 LF_hz")
    aq_helper(a, True)
    a("s_branch LF_hb")
    a.unsplit()
    a("LF_hz:")
    a.vm = []; a.nst = 0
    az_helper(a, True)
    a("LF_hb:")
    a.vm = []; a.nst = 10
    b_helper(a, True)
    c_helper(a, True)
    if diag: a.vmall(); a.stamp()
    diag_out(a, WS_DBG)
    a("s_endpgm")
    a.unsplit()
    a("LF_c:")
    a.vm = []; a.nst = 0
    early_srds(a)
    late_srds(a)
    nonce_publish(a)
    if opt('wpf', 0):
        l = a.label("Lwp")
        a(f"s_cmp_lt_u32 s{sQ}, 2")
        a(f"s_cbranch_scc1 {l}")
        a(f"s_cmp_eq_u32 s{sQ}, 2")
        a("s_cselect_b32 s96, s66, s72")
        a("s_cselect_b32 s97, s67, s73")
        a("s_and_b32 s97, s97, 0xffff")
        a(f"s_mov_b32 s98, {D*F2*2}")
        a(f"s_cmp_eq_u32 s{sQ}, 2")
        a(f"s_cselect_b32 s98, {D*1536*2}, s98")
        a("s_mov_b32 s99, 0x20000")
        a("s_cselect_b32 s61, 48, 43")
        a("s_mul_i32 s61, s61, s2")
        a("s_lshl_b32 s61, s61, 7")
        a("v_lshlrev_b32 v3, 7, v1")
        a(f"s_mov_b32 m0, {L_MISC}")
        a("s_mov_b32 exec_hi, 0xffff")
        a("buffer_load_dword v3, s[96:99], s61 offen lds")
        a("s_mov_b32 exec_hi, -1")
        a(f"{l}:")
    ln1_issue(a)
    b_early(a)
    if opt('tlb', 0):
        l = a.label("Ltlb")
        a(f"s_cmp_lg_u32 s{sQ}, 1")
        a(f"s_cbranch_scc1 {l}")
        a("v_lshlrev_b32 v3, 20, v1")
        a("s_lshl_b32 s61, s2, 7")
        a(f"s_mov_b32 m0, {L_MISC}")
        a("s_mov_b64 exec, 0x3fffff")
        a(f"buffer_load_dword v3, {S4(WS_)}, s61 offen lds")
        a("s_mov_b64 exec, 0xff")
        a(f"buffer_load_dword v3, {S4(WSP_)}, s61 offen lds")
        a("s_mov_b64 exec, 3")
        a(f"buffer_load_dword v3, {S4(OUT_)}, s61 offen lds")
        a("s_mov_b64 exec, 1")
        a(f"buffer_load_dword v3, {S4(WO_)}, s61 offen lds")
        a(f"buffer_load_dword v3, {S4(WOUT_)}, s61 offen lds")
        a("s_mov_b64 exec, -1")
        a(f"{l}:")
    a(f"s_cmp_lg_u32 s{sTYP}, 0")
    a("s_cbranch_scc1 LF_cz")
    vmc = list(a.vm)
    aq_compute(a, True)
    a("s_branch LF_cb")
    a("LF_cz:")
    a.vm = list(vmc); a.nst = 0
    az_compute(a, True)
    a(f"s_mov_b32 s75, {OOB}")
    a("LF_cb:")
    a.vm = []; a.nst = 10
    b_compute(a, True)
    c_compute(a, True)
    if diag: a.vmall(); a.stamp()
    diag_out(a, WS_DBG)
    a("s_endpgm")
    for t in a.tails: a.L += t
    a("LF_end:")
    a("s_endpgm")
    return [(KNAME, a.text())]

if __name__ == "__main__":
    diag = "diag" in sys.argv
    for x in sys.argv[2:]:
        if "=" in x:
            k, v = x.split("="); OPT[k] = int(v)
    ks = multi(diag) if 'multi' in sys.argv else fused_kernel(diag)
    hdr = open("cdna_kernels/" + KNAME[:-7] + ".s.ref").read().split("; Override")[0]
    txt = file_text([(n, 256, 512, LDS_BYTES) for n, t in ks], [(n, t, 256, 102, 256) for n, t in ks])
    if len(ks) == 1: txt = txt.replace(f"; @launch kernel={KNAME} ", "; @launch ")
    txt = "\n".join(l.strip() if l.startswith("    ") else l for l in txt.split("\n"))
    if opt('align', 1):
        import align
        txt, n1, n2 = align.align(txt)
    open(sys.argv[1], "w").write(hdr + txt)
```

```python
import sys, math, struct, os
from asmgen import Asm, KA, KNAME, file_text
from layout import *

OOB = 0x10000000
LOG2E = 1.4426950408889634
def f2u(x): return struct.unpack("<I", struct.pack("<f", x))[0]
C1 = 2.0 * math.sqrt(2.0 / math.pi) * LOG2E
C2 = C1 * 0.044715
NEG = f2u(-1e30)
OPT = {}
F1_OFF, F2_OFF, F3_OFF, FO_OFF = WS_FLG, WS_FLG + 512*128, WS_FLG + 768*128, WS_FLG + 1792*128
def opt(k, d): return OPT.get(k, d)
def ZOFF(i): return (i % NZS)*12288
def ZOF2(i): return ZOFF(i) % 49152
def NT(k): return 'nt ' if opt('nt' + k, 0) else ''

sW, sQ, sRB, sGRP = 3, 4, 6, 7
X_, WA_, WS_, WSP_, WO_, WOUT_, OUT_, BSP_, DBG_ = 8, 12, 16, 20, 24, 28, 32, 36, 40
sK0A, sTYP = 44, 45
sKS, sCG, sK0B, sT = 48, 50, 51, 52
sRC = 49
def S4(b): return f"s[{b}:{b+3}]"
def V(b, n=4): return f"v[{b}:{b+n-1}]" if n > 1 else f"v{b}"

L_TAB = 156*1024
TP = 640
L_CW  = L_TAB + 2560
L_MISC = L_TAB + 3328
L_XCH = 148*1024
L_PARK = 112*1024
NWS = int(os.environ.get('NWS', 7))
NZS = {7: 4, 6: 5, 5: 6}[NWS]
L_Z2 = 160*1024 - NZS*12288
L_RC = L_TAB + 3584
L_FLG = L_MISC + 256
L_BF = 132*1024
LDS_BYTES = 160*1024

class G(Asm):
    UID = [0]
    def label(self, base="L"):
        G.UID[0] += 1
        return f"{base}_{G.UID[0]}"
    def __init__(self, diag=False):
        super().__init__()
        self.vm = []; self.diag = diag; self.nst = 0; self.tails = []
    def vmem(self, s, tag=None):
        self(s); self.vm.append(tag)
    def has(self, tag): return any(t == tag for t in self.vm)
    def vmwait(self, tag):
        if not self.has(tag): return
        idx = max(i for i, t in enumerate(self.vm) if t == tag)
        n = len(self.vm) - 1 - idx
        n = min(n, 63)
        self(f"s_waitcnt vmcnt({n})")
        self.vm = self.vm[idx+1:]
    def vmall(self):
        self("s_waitcnt vmcnt(0)"); self.vm = []
    def stamp(self):
        if not self.diag: return
        self("s_memtime s[82:83]")
        self("s_waitcnt lgkmcnt(0)")
        self("s_sub_u32 s82, s82, s80")
        self(f"v_writelane_b32 v2, s82, {self.nst}")
        self.nst += 1
    def split(self, label):
        self(f"s_branch {label}")
        self.head = self.L
        self.L = []
        self(f"{label}:")
    def unsplit(self):
        self.tails.append(self.L); self.L = self.head
    def run(self, fs):
        for f in fs: f() if callable(f) else self(f)

def mfma(d, a, b, c=None):
    c = V(d) if c is None else c
    return f"v_mfma_f32_16x16x32_bf16 {V(d)}, {V(a)}, {V(b)}, {c}"
def mfma16(d, a, b, c=None):
    c = V(d) if c is None else c
    return f"v_mfma_f32_16x16x16_bf16 {V(d)}, {V(a,2)}, {V(b,2)}, {c}"

def gemm_stream(a, mf, frags, ring, LA, cover, pre_barrier, hooks=None, first_zero=True, stamps=(), nobar=0, pergap=1, slack=4, op=None, skip_first_barrier=False, extras=None, skipbar=()):
    hooks = hooks or {}
    extra_max = opt('xmax', 1)
    first, last = {}, {}
    for i, (d, x, y) in enumerate(mf):
        for f in (x, y):
            first.setdefault(f, i); last[f] = i
    order = sorted([f for f in first if frags[f].get('reads')], key=lambda f: (frags[f]['step'], first[f]))
    rl = [(f, k) for f in order for k in range(len(frags[f]['reads']))]
    reg = {f: frags[f]['reg'] for f in first if frags[f].get('reg') is not None}
    owner = {r: None for r in ring}
    ptr = 0; cur = (0 if skip_first_barrier else -1); out = []; done = set(f for f in first if not frags[f].get('reads'))
    since = 10**9
    seen = set()
    def issue_one(i, force):
        nonlocal ptr, cur, since, out
        f, k = rl[ptr]
        st = frags[f]['step']
        if st > cur:
            if not force and since < cover: return False
            pre_barrier(st)
            if not (nobar and st > 0) and st not in skipbar:
                if out:
                    a("s_waitcnt lgkmcnt(0)")
                    for g_, _ in out: done.add(g_)
                    out = []
                a("s_barrier")
            cur = st
            if st in stamps: a.stamp()
            if st in hooks: hooks[st]()
        if k == 0 and f not in reg:
            free = [r for r in ring if owner[r] is None or last[owner[r]] < i]
            if not free:
                assert not force, "ring too small"
                return False
            r = min(free, key=lambda r: -1 if owner[r] is None else last[owner[r]])
            reg[f] = r; owner[r] = f
        if len(out) >= 14 and not force: return False
        a(frags[f]['reads'][k](reg[f]))
        out.append((f, k)); ptr += 1; since = 0
        return True
    for i, (d, x, y) in enumerate(mf):
        need = [f for f in (x, y) if f not in done]
        while ptr < len(rl) and any(rl[j][0] in need for j in range(ptr, len(rl)) if first[rl[j][0]] <= i):
            issue_one(i, True)
        n = 0
        while ptr < len(rl) and first[rl[ptr][0]] <= i + LA:
            lim = 12 if i == 0 else (pergap + 1 if first[rl[ptr][0]] <= i + LA - slack else pergap)
            if n >= lim: break
            if not issue_one(i, False): break
            n += 1
        if extras and (n <= extra_max or len(mf) < 100) and extras[0][0] <= cur and extras[0][2](done):
            extras.pop(0)[1]()
        need = [f for f in (x, y) if f not in done]
        if need:
            idx = max(j for j, (f, k) in enumerate(out) if f in need)
            a(f"s_waitcnt lgkmcnt({len(out) - 1 - idx})")
            for f, k in out[:idx+1]:
                if k == len(frags[f]['reads']) - 1: done.add(f)
            out = out[idx+1:]
        c = None
        if first_zero and d not in seen:
            c = "0" if first_zero is True else first_zero; seen.add(d)
        a((op or mfma)(d, reg[x], reg[y], c))
        since += 1
    assert ptr == len(rl)

def srd(a, d, p, nbytes):
    a(f"s_mov_b32 s{d}, s{p}")
    a(f"s_and_b32 s{d+1}, s{p+1}, 0xffff")
    a(f"s_mov_b32 s{d+2}, {nbytes:#x}")
    a(f"s_mov_b32 s{d+3}, 0x20000")

def prologue(a, endlabel):
    if a.diag:
        a("s_memtime s[80:81]")
    a("s_memrealtime s[84:85]")
    a("s_cmp_ge_u32 s2, 256")
    a(f"s_cbranch_scc1 {endlabel}")
    a("s_load_dwordx16 s[64:79], s[0:1], 0")
    a("s_load_dwordx4 s[88:91], s[0:1], 64")
    a("s_load_dwordx2 s[92:93], s[0:1], 80")
    if opt('cpf', 1):
        a("s_getpc_b64 s[62:63]")
        a("LF_pc:")
        a("s_lshr_b32 s61, s2, 3")
        a("s_mul_i32 s61, s61, ((LF_end - LF_pc) >> 12) + 1")
        a("v_add_u32 v3, s61, v0")
        a("v_lshlrev_b32 v3, 7, v3")
        a("v_min_u32 v3, LF_end - LF_pc, v3")
        a(f"s_mov_b32 m0, {L_MISC}")
        a("v_cmp_gt_u32 vcc, ((LF_end - LF_pc) >> 12) + 1, v0")
        a("s_and_saveexec_b64 s[60:61], vcc")
        a("s_cbranch_execz LF_npf")
        a("global_load_lds_dword v3, s[62:63]")
        a("LF_npf:")
        a("s_mov_b64 exec, -1")
    a("v_lshrrev_b32 v3, 6, v0")
    a("v_and_b32 v1, 63, v0")
    a("v_mov_b32 v2, 0")
    a(f"v_readfirstlane_b32 s{sW}, v3")
    a("s_and_b32 s53, s2, 7")
    a("s_lshr_b32 s54, s2, 3")
    a("s_lshr_b32 s55, s53, 1")
    a("s_and_b32 s56, s54, 3")
    a(f"s_lshr_b32 s{sCG}, s54, 2")
    a(f"s_lshl_b32 s{sRB}, s55, 2")
    a(f"s_add_u32 s{sRB}, s{sRB}, s56")
    a(f"s_and_b32 s{sKS}, s53, 1")
    a(f"s_lshl_b32 s{sRC}, s53, 2")
    a(f"s_add_u32 s{sRC}, s{sRC}, s56")
    a(f"s_lshl_b32 s{sGRP}, s{sKS}, 2")
    a(f"s_and_b32 s58, s{sCG}, 3")
    a(f"s_add_u32 s{sGRP}, s{sGRP}, s58")
    a(f"s_lshr_b32 s{sTYP}, s{sCG}, 2")
    if opt('zfirst', 1): a(f"s_xor_b32 s{sTYP}, s{sTYP}, 1")
    if opt('rotAm', 0) == 0:
        a(f"s_lshl_b32 s{sK0A}, s56, 1")
        a(f"s_add_u32 s{sK0A}, s{sK0A}, s{sCG}")
        a(f"s_add_u32 s{sK0A}, s{sK0A}, s55")
    elif opt('rotAm', 0) == 3:
        a(f"s_and_b32 s{sK0A}, s{sCG}, 6")
        a(f"s_add_u32 s{sK0A}, s{sK0A}, s{sKS}")
        a("s_lshl_b32 s58, s55, 1")
        a(f"s_add_u32 s{sK0A}, s{sK0A}, s58")
        a("s_lshr_b32 s58, s56, 1")
        a(f"s_add_u32 s{sK0A}, s{sK0A}, s58")
    elif opt('rotAm', 0) == 4:
        a(f"s_add_u32 s{sK0A}, s{sCG}, s56")
        a(f"s_and_b32 s{sK0A}, s{sK0A}, 1")
        a(f"s_lshl_b32 s{sK0A}, s{sK0A}, 2")
        a(f"s_add_u32 s{sK0A}, s{sK0A}, s55")
        a(f"s_lshl_b32 s58, s{sKS}, 1")
        a(f"s_add_u32 s{sK0A}, s{sK0A}, s58")
    else:
        a(f"s_lshl_b32 s{sK0A}, s{sKS}, 1")
        a(f"s_add_u32 s{sK0A}, s{sK0A}, s55")
        a(f"s_lshl_b32 s{sK0A}, s{sK0A}, 1")
        if opt('rotAm', 0) == 2:
            a("s_and_b32 s58, s56, 1")
            a(f"s_add_u32 s{sK0A}, s{sK0A}, s58")
    a(f"s_and_b32 s{sK0A}, s{sK0A}, {opt('rotA', 7)}")
    a(f"s_xor_b32 s58, s{sTYP}, 1")
    a("s_lshl_b32 s58, s58, 2")
    a(f"s_xor_b32 s{sCG}, s{sGRP}, s58")
    if opt('mixcg', 0):
        a("s_and_b32 s58, s56, 1")
        a("s_lshl_b32 s58, s58, 2")
        a(f"s_xor_b32 s{sCG}, s{sCG}, s58")
    if opt('rotBm', 1) == 0:
        a(f"s_lshl_b32 s{sK0B}, s{sCG}, 1")
    else:
        a(f"s_lshl_b32 s{sK0B}, s{sCG}, 1")
        if opt('k0typ', 1): a(f"s_add_u32 s{sK0B}, s{sK0B}, s{sTYP}")
        a(f"s_lshl_b32 s{sK0B}, s{sK0B}, 1")
    if opt('rotBm', 1) <= 1: a(f"s_add_u32 s{sK0B}, s{sK0B}, s{sRB}")
    if opt('rotBm', 1) == 3: a(f"s_add_u32 s{sK0B}, s{sK0B}, s55")
    if opt('rotBm', 1) == 4:
        a("s_lshl_b32 s58, s55, 2")
        a(f"s_add_u32 s{sK0B}, s{sK0B}, s58")
    a(f"s_and_b32 s{sK0B}, s{sK0B}, {opt('rotB', 15)}")
    a(f"s_and_b32 s{sQ}, s{sW}, 3")

def early_srds(a):
    if opt('sst', 0): a.stamp()
    a("s_waitcnt lgkmcnt(0)")
    srd(a, X_, 64, S*D*2)

def late_srds(a):
    srd(a, WS_, 92, 268435456)
    srd(a, DBG_, 90, 256)
    srd(a, WSP_, 74, S*S*2)
    srd(a, WO_, 68, D*D*2)
    srd(a, WOUT_, 78, FH*D*2)
    srd(a, OUT_, 88, S*D*2)
    srd(a, BSP_, 76, S*2)

def rowtile_voffs(a, d0, d1, sh, t0=3, t1=30, t2=31):
    a(f"v_lshrrev_b32 v{t0}, 3, v1")
    a(f"v_lshlrev_b32 v{t0}, {sh+1}, v{t0}")
    a(f"v_lshrrev_b32 v{t1}, 4, v1")
    a(f"v_and_b32 v{t2}, 7, v1")
    a(f"v_xor_b32 v{t1}, v{t1}, v{t2}")
    a(f"v_lshl_add_u32 v{d0}, v{t1}, 4, v{t0}")
    a(f"v_xor_b32 v{t1}, 4, v{t1}")
    a(f"v_lshl_add_u32 v{d1}, v{t1}, 4, v{t0}")
    a(f"v_add_u32 v{d1}, {(16 << sh) - 1024}, v{d1}")

def rowfrag_addr(a, d0, d1, srow, t0=3, t1=30, t2=31):
    a(f"v_and_b32 v{t0}, 15, v1")
    a(f"v_lshrrev_b32 v{t1}, 4, v1")
    a(f"v_lshrrev_b32 v{t2}, 1, v{t0}")
    a(f"v_xor_b32 v{t1}, v{t1}, v{t2}")
    a(f"v_lshlrev_b32 v{t0}, 7, v{t0}")
    a(f"v_add_u32 v{t0}, {srow}, v{t0}")
    a(f"v_lshl_add_u32 v{d0}, v{t1}, 4, v{t0}")
    a(f"v_xor_b32 v{t1}, 4, v{t1}")
    a(f"v_lshl_add_u32 v{d1}, v{t1}, 4, v{t0}")

def zw_addr(a, de, do, t0=3, t1=30, t2=31):
    a(f"v_lshrrev_b32 v{t0}, 4, v1")
    a(f"v_bfe_u32 v{t1}, v1, 2, 2")
    a(f"v_lshl_add_u32 v{t1}, v{t0}, 3, v{t1}")
    a(f"v_mul_u32_u24 v{t1}, 192, v{t1}")
    a(f"v_and_b32 v{t2}, 3, v1")
    a(f"v_lshl_add_u32 v{t1}, v{t2}, 3, v{t1}")
    a(f"v_and_b32 v{t0}, 1, v{t0}")
    a(f"v_lshlrev_b32 v{t0}, 5, v{t0}")
    a(f"v_add_u32 v{de}, v{t1}, v{t0}")
    a(f"v_sub_u32 v{do}, v{t1}, v{t0}")

def qw_addr(a, d, t0=3, t1=30, t2=31):
    a(f"v_lshrrev_b32 v{t0}, 4, v1")
    a(f"v_mul_u32_u24 v{t1}, 3072, v{t0}")
    a(f"v_bfe_u32 v{t2}, v1, 2, 2")
    a(f"v_lshl_add_u32 v{t1}, v{t2}, 7, v{t1}")
    a(f"v_and_b32 v{d}, 3, v1")
    a(f"v_lshl_add_u32 v{t1}, v{d}, 3, v{t1}")
    a(f"v_lshrrev_b32 v{t2}, 1, v{t2}")
    a(f"v_and_b32 v{t0}, 1, v{t0}")
    a(f"v_lshl_or_b32 v{t2}, v{t0}, 1, v{t2}")
    a(f"v_lshl_add_u32 v{d}, v{t2}, 5, v{t1}")

ZSLOT = [0, 28*1024, 56*1024]
W1SL = [86016 + 12288*u for u in range(6)] + [61440, 73728]
QSLOT = [86016, 43008, 0]

def gelu_core(a, xs, ts, A3, A1, RI):
    for k, (x, t) in enumerate(zip(xs, ts)): a(f"v_pk_mul_f32 {V(t,2)}, {V(x,2)}, {V(x,2)}")
    for k, (x, t) in enumerate(zip(xs, ts)): a(f"v_pk_fma_f32 {V(t,2)}, {V(t,2)}, {A3[k][0]}, {A1[k][0]} {A3[k][1]}")
    for k, (x, t) in enumerate(zip(xs, ts)): a(f"v_pk_mul_f32 {V(t,2)}, {V(t,2)}, {V(x,2)}")
    for k, (x, t) in enumerate(zip(xs, ts)):
        a(f"v_exp_f32 v{t}, v{t}"); a(f"v_exp_f32 v{t+1}, v{t+1}")
    for k, (x, t) in enumerate(zip(xs, ts)): a(f"v_pk_fma_f32 {V(t,2)}, {V(t,2)}, {RI[k][0]}, {RI[k][0]} {RI[k][1]}")
    for k, (x, t) in enumerate(zip(xs, ts)):
        a(f"v_rcp_f32 v{t}, v{t}"); a(f"v_rcp_f32 v{t+1}, v{t+1}")
    for k, (x, t) in enumerate(zip(xs, ts)): a(f"v_pk_mul_f32 {V(x,2)}, {V(x,2)}, {V(t,2)}")

def zcount(a, dG, dN, g=sGRP):
    a(f"s_mul_i32 s{dG}, s{g}, 6")
    a(f"s_add_u32 s{dN}, s{dG}, 5")
    a(f"s_min_u32 s{dN}, s{dN}, 43")
    a(f"s_sub_u32 s{dG}, s{dG}, 1")
    a(f"s_max_i32 s{dG}, s{dG}, 0")
    a(f"s_sub_u32 s{dN}, s{dN}, s{dG}")

def z1count(a, dG, dN):
    if not opt('z1g', 0): return zcount(a, dG, dN)
    a(f"s_mul_i32 s{dG}, s{sGRP}, 6")
    a(f"s_min_u32 s{dG}, s{dG}, 40")
    a(f"s_sub_u32 s{dN}, 40, s{dG}")
    a(f"s_min_u32 s{dN}, s{dN}, 6")
    a(f"s_cmp_eq_u32 s{sGRP}, 7")
    a(f"s_cselect_b32 s{dN}, 3, s{dN}")

def az_compute(a, fused):
    ACC, XR = 32, 128
    ONES, SUM, GRM, CWA = 28, 80, 88, 96
    ring = list(range(80, 96, 4)) + list(range(104, 128, 4))
    a(f"s_lshl_b32 s61, s{sQ}, 12")
    rowfrag_addr(a, 10, 11, "s61")
    zw_addr(a, 12, 13)
    a(f"s_bitcmp1_b32 s{sQ}, 0")
    a("s_cselect_b64 vcc, -1, 0")
    a("v_cndmask_b32 v18, v12, v13, vcc")
    a(f"s_lshl_b32 s61, s{sQ}, 5")
    a(f"s_and_b32 s62, s{sQ}, 1")
    a("s_lshl_b32 s62, s62, 5")
    a("s_add_u32 s62, s62, 128")
    a("v_add_u32 v19, s62, v18")
    a("v_add_u32 v18, s61, v18")
    for r in range(4): a(f"v_mov_b32 v{ONES+r}, 0x3f803f80")
    zcount(a, 55, 58)
    z1count(a, 55, 59)
    a(f"s_lshl_b32 s61, s{sQ}, 7")
    a(f"s_add_u32 s61, s61, {L_TAB}")
    a("v_and_b32 v3, 0x30, v1")
    a("v_add_u32 v4, s61, v3")
    a(f"v_add_u32 v7, {L_CW + 384}, v3")
    a("v_and_b32 v3, 15, v1")
    a("v_lshl_add_u32 v5, v3, 2, s61")
    a("v_lshlrev_b32 v3, 2, v3")
    a(f"v_add_u32 v6, {L_CW}, v3")
    a("v_lshlrev_b32 v8, 4, v1")
    a("v_lshlrev_b32 v9, 3, v1")
    a(f"s_lshl_b32 s61, s{sQ}, 6")
    a(f"s_and_b32 s62, s{sQ}, 1")
    a("s_lshl_b32 s62, s62, 6")
    a("s_add_u32 s62, s62, 256")
    a("v_add_u32 v22, s61, v6")
    a("v_add_u32 v23, s62, v6")
    a("v_add_u32 v24, s61, v7")
    a("v_add_u32 v25, s62, v7")
    a(f"s_lshl_b32 s57, s{sRB}, 2")
    a(f"s_add_u32 s57, s57, s{sQ}")
    a(f"s_lshl_b32 s53, s{sGRP}, 6")
    a("s_add_u32 s53, s53, s57")
    a("s_mul_i32 s53, s53, 6144")
    a(f"s_add_u32 s53, s53, {WS_Z2N}")
    a("s_mul_i32 s54, s57, 48")
    a("s_add_u32 s54, s54, s55")
    a("s_lshl_b32 s54, s54, 10")
    a(f"s_add_u32 s54, s54, {WS_Z1}")
    a(f"s_lshl_b32 s56, s{sRB}, 3")
    a(f"s_add_u32 s56, s56, s{sGRP}")
    a("s_lshl_b32 s56, s56, 2")
    a(f"s_add_u32 s56, s56, s{sQ}")
    a("s_lshl_b32 s56, s56, 9")
    a(f"s_add_u32 s56, s56, {WS_ST2}")
    def xreg(s, kk, T): return XR + ((s*2 + kk)*2 + T)*4
    def wfrag(step, kk, j):
        return dict(step=step, reg=None, reads=[(lambda r, hh=hh: f"ds_read_b64_tr_b16 {V(r+2*hh,2)}, v{16+(j&1)} offset:{j*32 + kk*6144 + hh*768}") for hh in range(2)])
    def cfrag(step, kk, t):
        return dict(step=step, reg=None, reads=[(lambda r, hh=hh: f"ds_read_b64_tr_b16 {V(r+2*hh,2)}, v{20+t} offset:{kk*6144 + hh*768}") for hh in range(2)])
    fr = {}; mf = []
    for s in range(8):
        for kk in range(2):
            for T in range(2):
                fr[('x', s, kk, T)] = dict(step=s, reg=xreg(s, kk, T), reads=[lambda r, kk=kk, T=T: f"ds_read_b128 {V(r)}, v{14+kk} offset:{T*2048}"])
            for j in range(6):
                fr[('w', s, kk, j)] = wfrag(s, kk, j)
                for T in range(2): mf.append((ACC + (j*2+T)*4, ('x', s, kk, T), ('w', s, kk, j)))
                if j in ((0, 1) if (s, kk) == (7, 1) else (2, 5)):
                    t = j if (s, kk) == (7, 1) else j // 3
                    fr[('c', s, kk, t)] = cfrag(s, kk, t)
                    mf.append((CWA+4*t, 'ones', ('c', s, kk, t)))
    fr['ones'] = dict(step=0, reg=ONES, reads=None)
    def pre1(s):
        for r in range(2): a(f"v_add_u32 v{14+r}, {ZSLOT[s % 3]}, v{10+r}")
        for r in range(2): a(f"v_add_u32 v{16+r}, {ZSLOT[s % 3] + 16384}, v{12+r}")
        for r in range(2): a(f"v_add_u32 v{20+r}, {ZSLOT[s % 3] + 16384}, v{18+r}")
    ln1_publish(a)
    for r in range(2, 4): a(f"v_mov_b32 v{ONES+r}, 0x3f803f80")
    a.stamp()
    a(f"s_lshl_b32 s61, s{sQ}, 2")
    a(f"s_add_u32 s61, s61, {L_FLG}")
    a("v_mov_b32 v26, s61")
    a("v_mov_b32 v27, 0")
    a("ds_write_b32 v26, v27")
    a("ds_write_b32 v26, v27 offset:16")
    a("v_mov_b32 v27, 1")
    a("s_waitcnt lgkmcnt(0)")
    gemm_stream(a, mf, fr, ring, opt('LA', 10), opt('cover', 3), pre1, stamps=(0, 1, 4))
    a.stamp()
    a(f"ds_write_b32 v22, v{CWA}")
    a(f"ds_write_b32 v23, v{CWA+4}")
    a("ds_write_b32 v26, v27")
    a(f"v_mov_b32 v3, {L_FLG}")
    for T in range(2):
        for k in range(4): a(f"ds_read_b128 {V(80+16*T+4*k)}, v4 offset:{64*T + TP*k}")
    lds_wait(a, 3, 4, 112)
    CWR = [10, 11, 14, 15, 16, 17]
    for j in range(6): a(f"ds_read_b32 v{CWR[j]}, v6 offset:{64*j}")
    a(f"s_lshl_b32 s61, s{sQ}, 12")
    a("v_add_u32 v30, s61, v8")
    a("s_waitcnt lgkmcnt(0)")
    if opt('e1st', 0): a.stamp()
    for j in range(6):
        skip = a.label("Lz2skip")
        a(f"s_cmp_gt_u32 s58, {j}")
        a(f"s_cbranch_scc0 {skip}")
        xs = [ACC + (j*2+T)*4 + 2*p for T in range(2) for p in range(2)]
        tb = [80 + 16*T + 2*p for T in range(2) for p in range(2)]
        sel = f"op_sel:[0,{j&1},0] op_sel_hi:[1,{j&1},1]"
        for x, t in zip(xs, tb): a(f"v_pk_fma_f32 {V(x,2)}, {V(t,2)}, {V(CWR[j&~1],2)}, {V(x,2)} {sel} neg_lo:[1,0,0] neg_hi:[1,0,0]")
        gelu_core(a, xs, [20, 22, 26, 28], [(V(t+4,2), "") for t in tb], [(V(t+8,2), "") for t in tb], [(V(t+12,2), "") for t in tb])
        if j == 0:
            for k, x in enumerate(xs): a(f"v_pk_add_f32 {V(112+2*k,2)}, {V(x,2)}, 0 op_sel_hi:[1,0]")
            for k, x in enumerate(xs): a(f"v_pk_mul_f32 {V(120+2*k,2)}, {V(x,2)}, {V(x,2)}")
        else:
            for k, x in enumerate(xs): a(f"v_pk_add_f32 {V(112+2*k,2)}, {V(112+2*k,2)}, {V(x,2)}")
            for k, x in enumerate(xs): a(f"v_pk_fma_f32 {V(120+2*k,2)}, {V(x,2)}, {V(x,2)}, {V(120+2*k,2)}")
        a(f"{skip}:")
    if opt('e1st', 0): a.stamp()
    def val(i, T, st): return 112 + 8*st + 4*T + i
    for st in range(2):
        for T in range(2):
            for i in range(2):
                A, B = val(i, T, st), val(i+2, T, st)
                a(f"v_add_f32_dpp v{A}, v{A}, v{A} row_ror:8 row_mask:0xf bank_mask:0x3")
                a(f"v_add_f32_dpp v{A}, v{B}, v{B} row_ror:8 row_mask:0xf bank_mask:0xc")
    a("s_mov_b32 s60, 0x22222222\ns_mov_b32 s61, 0x22222222")
    for st in range(2):
        for T in range(2):
            A, B = val(0, T, st), val(1, T, st)
            a(f"v_add_f32_dpp v{A}, v{A}, v{A} row_half_mirror row_mask:0xf bank_mask:0x5")
            a(f"v_add_f32_dpp v{A}, v{B}, v{B} row_half_mirror row_mask:0xf bank_mask:0xa")
    a("s_mov_b32 s62, 0x44444444\ns_mov_b32 s63, 0x44444444")
    for qp in ("[1,0,3,2]", "[2,3,0,1]"):
        for st in range(2):
            for T in range(2):
                A = val(0, T, st)
                a(f"v_add_f32_dpp v{A}, v{A}, v{A} quad_perm:{qp} row_mask:0xf bank_mask:0xf")
    a(f"v_cndmask_b32 v112, v{val(0,0,0)}, v{val(0,0,1)}, s[60:61]")
    a("s_mov_b32 s60, 0x88888888\ns_mov_b32 s61, 0x88888888")
    a(f"v_cndmask_b32 v112, v112, v{val(0,1,0)}, s[62:63]")
    a(f"v_cndmask_b32 v112, v112, v{val(0,1,1)}, s[60:61]")
    a(f"v_mov_b32 v113, s{sT}")
    a.vmem(f"buffer_store_dwordx2 {V(112,2)}, v9, {S4(WS_)}, s56 offen sc1", "st")
    for j in range(6):
        e, o = ACC + j*8, ACC + j*8 + 4
        for i in range(4): a(f"v_cvt_pk_bf16_f32 v{e+i}, v{e+i}, v{o+i}")
        a(f"ds_write_b128 v30, {V(e)} offset:{(j>>2)*16384 + (j&3)*1024}")
    a.stamp()
    fr = {}; mf = []
    for u in range(8):
        for kk in range(2):
            for T in range(2): fr[('x', u, kk, T)] = dict(step=u, reg=xreg(u, kk, T), reads=None)
            for j in range(6):
                fr[('w', u, kk, j)] = wfrag(u, kk, j)
                for T in range(2): mf.append((ACC + (j*2+T)*4, ('w', u, kk, j), ('x', u, kk, T)))
                if j in ((0, 1) if (u, kk) == (7, 1) else (2, 5)):
                    t = j if (u, kk) == (7, 1) else j // 3
                    fr[('c', u, kk, t)] = cfrag(u, kk, t)
                    mf.append((120+4*t, ('c', u, kk, t), 'ones'))
    fr['ones'] = dict(step=0, reg=ONES, reads=None)
    for r in range(4): a(f"v_mov_b32 v{ONES+r}, 0x3f803f80")
    a("s_waitcnt lgkmcnt(0)")
    def pre2(u):
        for r in range(2): a(f"v_add_u32 v{16+r}, {W1SL[u]}, v{12+r}")
        for r in range(2): a(f"v_add_u32 v{20+r}, {W1SL[u]}, v{18+r}")
    ring2 = list(range(80, 112, 4))
    gemm_stream(a, mf, fr, ring2, opt('LA2', 10), opt('cover', 3), pre2, nobar=1, slack=opt('sl2', 4), stamps=((0,) if opt('e1st', 0) else ()))
    a.stamp()
    a("s_mov_b32 exec_lo, 0x00010001\ns_mov_b32 exec_hi, 0x00010001")
    a(f"ds_write_b128 v24, {V(120)}")
    a(f"ds_write_b128 v25, {V(124)}")
    a("s_mov_b64 exec, -1")
    a(f"s_lshl_b32 s61, s{sQ}, 2")
    a(f"s_add_u32 s61, s61, {L_FLG + 16}")
    a("v_mov_b32 v26, s61")
    a("v_mov_b32 v27, 1")
    a(f"v_mov_b32 v3, {L_FLG + 16}")
    a("ds_write_b32 v26, v27")
    for T in range(2):
        for k in range(4): a(f"ds_read_b32 v{104+4*k+2*T}, v5 offset:{64*T + TP*k}")
    a.vmall()
    lds_wait(a, 3, 4, 20)
    for j in range(6): a(f"ds_read_b128 {V(80+4*j)}, v7 offset:{64*j}")
    a("s_waitcnt lgkmcnt(0)")
    for j in range(6):
        skip = a.label("Lz1skip")
        a(f"s_cmp_gt_u32 s59, {j}")
        a(f"s_cselect_b32 s{64+j}, s54, {OOB}")
        a(f"s_cbranch_scc0 {skip}")
        xs = [ACC + (j*2+T)*4 + 2*p for T in range(2) for p in range(2)]
        for k, x in enumerate(xs): a(f"v_pk_fma_f32 {V(x,2)}, {V(80+4*j+2*(k%2),2)}, {V(104+2*(k//2),2)}, {V(x,2)} op_sel_hi:[1,0,1] neg_lo:[1,0,0] neg_hi:[1,0,0]")
        b = "op_sel_hi:[1,0,0]"
        gelu_core(a, xs, [20, 22, 26, 28], [(V(108+2*(k//2),2), b) for k in range(4)], [(V(112+2*(k//2),2), b) for k in range(4)], [(V(116+2*(k//2),2), b) for k in range(4)])
        e = 144 + 4*j
        for k, x in enumerate(xs): a(f"v_cvt_pk_bf16_f32 v{e+k}, v{x}, v{x+1}")
        a("s_nop 0")
        for p in range(2): a(f"v_permlane16_swap_b32 v{e+p}, v{e+2+p}")
        a("s_nop 0")
        for p in range(2): a(f"v_permlane32_swap_b32 v{e+p}, v{e+2+p}")
        a(f"{skip}:")
        if j >= 4: a(f"s_add_u32 s{64+j}, s{64+j}, 4096")
        if not opt('defer', 0): a.vmem(f"buffer_store_dwordx4 {V(e)}, v8, {S4(WS_)}, s{64+j} offen offset:{(j%4)*1024} sc1", "z1")
    a.stamp()

def red_g(a, regs, op="v_add_f32", tmp=60):
    n = len(regs)
    for sw in ("v_permlane32_swap_b32", "v_permlane16_swap_b32"):
        for k, r in enumerate(regs): a(f"v_mov_b32 v{tmp+k}, v{r}")
        if n < 3: a("s_nop 1")
        for k, r in enumerate(regs): a(f"{sw} v{r}, v{tmp+k}")
        for k, r in enumerate(regs): a(f"{op} v{r}, v{r}, v{tmp+k}")

def wsp_setup_h(a):
    rowtile_voffs(a, 8, 9, 12)
    a(f"s_lshl_b32 s59, s{sRB}, 2")
    a(f"s_add_u32 s59, s59, s{sQ}")
    a("s_lshl_b32 s59, s59, 17")
    a(f"s_lshl_b32 s61, s{sKS}, 11")
    a("s_add_u32 s59, s59, s61")

def wsp_group_h(a, v):
    a(f"s_add_u32 s61, s{sK0B}, {v}")
    a("s_and_b32 s61, s61, 15")
    a("s_lshl_b32 s61, s61, 7")
    a("s_add_u32 s61, s61, s59")
    a(f"s_add_u32 m0, s60, {(v % NWS) * 16384}")
    a("s_add_u32 s62, s61, 4096")
    a.vmem(f"buffer_load_dwordx4 v8, {S4(WSP_)}, s61 offen {NT('s')}lds", ("S", v))
    a.vmem(f"buffer_load_dwordx4 v9, {S4(WSP_)}, s61 offen offset:1024 {NT('s')}lds", ("S", v))
    a(f"s_add_u32 m0, s60, {(v % NWS) * 16384 + 2048}")
    a("s_nop 0")
    a.vmem(f"buffer_load_dwordx4 v8, {S4(WSP_)}, s62 offen {NT('s')}lds", ("S", v))
    a.vmem(f"buffer_load_dwordx4 v9, {S4(WSP_)}, s62 offen offset:1024 {NT('s')}lds", ("S", v))

def l2_setup(a, d, ztype):
    a("v_lshrrev_b32 v31, 4, v1")
    a("v_lshlrev_b32 v31, 12, v31")
    a("v_and_b32 v30, 15, v1")
    a(f"v_lshl_add_u32 v{d}, v30, 7, v31")
    a(f"v_lshlrev_b32 v{d+1}, 7, v1")
    a(f"s_lshl_b32 s68, s{sRB}, 3")
    a(f"s_add_u32 s68, s68, s{sCG}")
    a("s_lshl_b32 s68, s68, 2")
    a(f"s_add_u32 s68, s68, s{sQ}")
    a("s_lshl_b32 s68, s68, 14")
    a(f"s_lshl_b32 s61, s{sKS}, 11")
    a("s_add_u32 s68, s68, s61")
    a("s_lshr_b32 s61, s2, 3")
    a("s_lshl_b32 s61, s61, 2")
    a(f"s_add_u32 s61, s61, s{sQ}")
    a("s_lshl_b32 s69, s61, 12")
    a(f"s_mul_i32 s70, s61, {43*128}")
    a(f"s_mov_b32 m0, {L_MISC}")
    if ztype and opt('l2w1', 0):
        srd(a, WA_, 72, D*F2*2)
        a("v_lshrrev_b32 v31, 1, v1")
        a("v_mul_u32_u24 v31, 2752, v31")
        a("v_and_b32 v30, 1, v1")
        a("v_mul_u32_u24 v30, 188, v30")
        a("v_add_u32 v3, v30, v31")
        a(f"s_and_b32 s71, s{sRB}, 3")
        a("s_lshl_b32 s71, s71, 2")
        a(f"s_add_u32 s71, s71, s{sQ}")
        a(f"s_mul_i32 s71, s71, {32*2752}")
        a("s_lshl_b32 s61, s55, 5")
        a("s_add_u32 s71, s71, s61")
        if opt('l2w1', 0) == 1:
            a.vmem(f"buffer_load_dword v3, {S4(WA_)}, s71 offen lds", "pf")
def l2_hooks(a, d, ztype):
    hk = {}
    def add(st, f):
        hk.setdefault(st, []).append(f)
    def lanes(k, n, tot):
        lo, hi = k*tot//n, (k+1)*tot//n
        m = ((1 << hi) - 1) ^ ((1 << lo) - 1)
        a(f"s_mov_b32 exec_lo, {m & 0xffffffff:#x}\ns_mov_b32 exec_hi, {m >> 32:#x}")
    if ztype and opt('l2w1', 0) == 2:
        add(0, lambda: a.vmem(f"buffer_load_dword v3, {S4(WA_)}, s71 offen lds", "pf"))
    if opt('l2pf', 0):
        nt = 'nt' if opt('l2nt', 0) else ''
        s0 = opt('l2s0', 1); n = opt('l2n', 2)
        for k in range(n):
            def h(k=k):
                lanes(k, n, 64)
                a.vmem(f"buffer_load_dword v{d}, {S4(WSP_)}, s68 offen {nt} lds", "pf")
                a("s_mov_b64 exec, -1")
            add(s0 + k, h)
    if opt('l2cw', -1) >= 0:
        def h2():
            a("s_mov_b32 exec_hi, 0")
            a.vmem(f"buffer_load_dword v{d+1}, {S4(WO_)}, s69 offen lds", "pf")
            a("s_mov_b32 exec_hi, 0x7ff")
            a.vmem(f"buffer_load_dword v{d+1}, {S4(WOUT_)}, s70 offen lds", "pf")
            a("s_mov_b32 exec_hi, -1")
        add(opt('l2cw', 0), h2)
    return {st: (lambda fs=fs: a.run(fs)) for st, fs in hk.items()}

def q_prefetch(a, k):
    if not opt('qpf', 1): return
    if k < 2:
        a("v_lshrrev_b32 v31, 4, v1")
        a("v_lshlrev_b32 v31, 12, v31")
        a("v_and_b32 v30, 15, v1")
        a("v_lshl_add_u32 v30, v30, 7, v31")
        a(f"s_lshl_b32 s61, s{sRB}, 2")
        a(f"s_add_u32 s61, s61, s{sCG}")
        a("s_lshl_b32 s61, s61, 2")
        a(f"s_add_u32 s61, s61, s{sQ}")
        a("s_lshl_b32 s61, s61, 15")
        a(f"s_lshl_b32 s62, s{sKS}, 11")
        a("s_add_u32 s61, s61, s62")
        a(f"s_mov_b32 m0, {L_MISC}")
        a(f"s_add_u32 s61, s61, {16384*k}")
        for o in range(0, 128, opt('sec', 128)):
            a.vmem(f"buffer_load_dword v30, {S4(WSP_)}, s61 offen offset:{o} {NT('p')}lds", "pf")
        return
    a("s_lshr_b32 s61, s2, 3")
    a("s_lshl_b32 s61, s61, 2")
    a(f"s_add_u32 s61, s61, s{sQ}")
    a("v_lshlrev_b32 v31, 7, v1")
    a(f"s_mov_b32 m0, {L_MISC}")
    if k == 2:
        a("s_lshl_b32 s62, s61, 13")
        for o in range(0, 128, opt('sec', 128)): a.vmem(f"buffer_load_dword v31, {S4(WO_)}, s62 offen offset:{o} lds", "pf")
    else:
        a(f"s_mul_i32 s63, s61, {86*128}")
        a(f"s_add_u32 s63, s63, {43*128*(k-3)}")
        a("s_mov_b32 exec_hi, 0x7ff")
        for o in range(0, 128, opt('sec', 128)): a.vmem(f"buffer_load_dword v31, {S4(WOUT_)}, s63 offen offset:{o} lds", "pf")
        a("s_mov_b32 exec_hi, -1")

def q_spread_setup(a):
    srd(a, 96, 72, D*F2*2)
    a("v_lshrrev_b32 v31, 4, v1")
    a("v_lshlrev_b32 v31, 12, v31")
    a("v_and_b32 v30, 15, v1")
    a("v_lshl_add_u32 v12, v30, 7, v31")
    a(f"s_lshl_b32 s64, s{sRB}, 2")
    a(f"s_add_u32 s62, s{sCG}, {opt('trot', 0)}")
    a("s_and_b32 s62, s62, 3")
    a("s_add_u32 s64, s64, s62")
    a("s_lshl_b32 s64, s64, 2")
    a(f"s_add_u32 s64, s64, s{sQ}")
    a("s_lshl_b32 s64, s64, 15")
    a(f"s_lshl_b32 s62, s{sKS}, 11")
    a("s_add_u32 s64, s64, s62")
    a("s_add_u32 s67, s64, 16384")
    a("s_lshr_b32 s61, s2, 3")
    a("s_lshl_b32 s61, s61, 2")
    a(f"s_add_u32 s61, s61, s{sQ}")
    a("v_lshlrev_b32 v13, 7, v1")
    a("s_lshl_b32 s65, s61, 13")
    a(f"s_mul_i32 s66, s61, {86*128}")
    a("s_add_u32 s68, s66, 8192")
    a("v_lshlrev_b32 v14, 10, v1")
    a("s_and_b32 s61, s61, 15")
    a("s_lshl_b32 s71, s61, 15")
    a(f"s_add_u32 s61, s{sCG}, 4")
    a("s_lshl_b32 s61, s61, 7")
    a("s_add_u32 s71, s71, s61")
    a(f"s_add_u32 s61, s2, {opt('mrot', 0)}")
    a("s_and_b32 s61, s61, 127")
    a("s_lshl_b32 s61, s61, 2")
    a(f"s_add_u32 s61, s61, s{sQ}")
    a("s_lshl_b32 s73, s61, 10")
    a(f"s_mul_i32 s74, s61, {11*128}")
    a("s_mul_i32 s66, s61, 2752")
    a("s_and_b32 s66, s66, 0xffffff80")
    a(f"s_mul_i32 s77, s61, {5*128}")
    a(f"s_add_u32 s77, s77, {WS_FLG}")
    a("s_lshl_b32 s78, s61, 9")
    a(f"s_add_u32 s78, s78, {WS_ST2}")
    a(f"s_mul_i32 s79, s61, {48*128}")
    a(f"s_add_u32 s79, s79, {WS_Z2N}")
    a(f"s_mul_i32 s94, s61, {96*128}")
    a(f"s_add_u32 s94, s94, {WS_H}")
    a("s_add_u32 s95, s94, 8192")
def q_spread(a, k, n, which, frac=None, nt=None):
    items = {'s': [(WSP_, 12, 64, 64), (WSP_, 12, 67, 64)], 'c': [(WO_, 13, 65, 64), (WOUT_, 13, 66, 64), (WOUT_, 13, 68, 22)],
             'o': [(WO_, 14, 71, 32)], 'u': [(WOUT_, 13, 66, 64), (WOUT_, 13, 68, 22)],
             'm': [(WO_, 13, 73, 8), (WOUT_, 13, 74, 11)],
             'w': [(96, 13, 66, 12)],
             'f': [(WS_, 13, 77, 5), (WS_, 13, 78, 4)], 'z': [(WS_, 13, 79, 48)], 'h': [(WS_, 13, 94, 64), (WS_, 13, 95, 32)]}[which]
    tot = sum(x[3] for x in items)
    lo, hi = k*tot//n, (k+1)*tot//n
    if frac: lo, hi = frac
    a(f"s_mov_b32 m0, {L_MISC}")
    base = 0
    for R, v, so, cnt in items:
        l, h = max(lo - base, 0), min(hi - base, cnt)
        if h > l:
            m = ((1 << h) - 1) ^ ((1 << l) - 1)
            a(f"s_mov_b32 exec_lo, {m & 0xffffffff:#x}\ns_mov_b32 exec_hi, {m >> 32:#x}")
            a.vmem(f"buffer_load_dword v{v}, {S4(R)}, s{so} offen {'nt ' if (opt('ntp' + which, 1 if which == 's' else 0) if nt is None else nt) else ''}lds", "pf")
        base += cnt
    a("s_mov_b64 exec, -1")

def z_slice_touch(a):
    a("s_lshr_b32 s61, s2, 3")
    a("s_and_b32 s61, s61, 3")
    a("s_lshl_b32 s61, s61, 2")
    a(f"s_add_u32 s61, s61, s{sQ}")
    a(f"s_add_u32 s63, s{sCG}, 4")
    a("s_lshl_b32 s63, s63, 7")
    a("s_lshl_b32 s62, s61, 15")
    a("s_add_u32 s62, s62, s63")
    a(f"s_mul_i32 s61, s61, {43*1024}")
    a("s_add_u32 s63, s63, s61")
    a("v_lshlrev_b32 v31, 10, v1")
    a(f"s_mov_b32 m0, {L_MISC}")
    a("s_mov_b32 exec_hi, 0")
    a.vmem(f"buffer_load_dword v31, {S4(WO_)}, s62 offen lds", "pf")
    a("s_mov_b32 exec_hi, 0x7ff")
    a.vmem(f"buffer_load_dword v31, {S4(WOUT_)}, s63 offen lds", "pf")
    a("s_mov_b32 exec_hi, -1")

def x_group_h(a, step, sl, tag):
    a(f"s_add_u32 s61, s{sK0A}, {step}")
    a("s_and_b32 s61, s61, 7")
    a("s_lshl_b32 s58, s61, 7")
    a("s_add_u32 s62, s58, s53")
    a(f"s_add_u32 m0, s60, {sl}")
    a("s_add_u32 s63, s62, 1024")
    a.vmem(f"buffer_load_dwordx4 v4, {S4(X_)}, s62 offen {NT('x')}lds", tag)
    a.vmem(f"buffer_load_dwordx4 v5, {S4(X_)}, s62 offen offset:1024 {NT('x')}lds", tag)
    a(f"s_add_u32 m0, s60, {sl + 2048}")
    a("s_nop 0")
    a.vmem(f"buffer_load_dwordx4 v4, {S4(X_)}, s63 offen {NT('x')}lds", tag)
    a.vmem(f"buffer_load_dwordx4 v5, {S4(X_)}, s63 offen offset:1024 {NT('x')}lds", tag)

def dots_x(a, fr, acc_s, acc_q, ones):
    for i in range(4):
        a(f"v_dot2_f32_bf16 v{acc_s}, v{fr+i}, v{ones}, v{acc_s}")
        a(f"v_dot2_f32_bf16 v{acc_q}, v{fr+i}, v{fr+i}, v{acc_q}")

def diag_sel(a, dst, gram):
    a("s_mov_b32 s62, 0x22222222\ns_mov_b32 s63, 0x22222222")
    a(f"v_cndmask_b32 v{dst}, v{gram}, v{gram+1}, s[62:63]")
    a("s_mov_b32 s62, 0x44444444\ns_mov_b32 s63, 0x44444444")
    a(f"v_cndmask_b32 v{dst}, v{dst}, v{gram+2}, s[62:63]")
    a("s_mov_b32 s62, 0x88888888\ns_mov_b32 s63, 0x88888888")
    a(f"v_cndmask_b32 v{dst}, v{dst}, v{gram+3}, s[62:63]")
DIAG_LO, DIAG_HI = 0x00f0000f, 0xf0000f00

def row_finalize(a, s_, q_, t):
    a(f"v_mul_f32 v{s_}, {f2u(1.0/512):#x}, v{s_}")
    a(f"v_mul_f32 v{q_}, {f2u(1.0/512):#x}, v{q_}")
    a(f"v_fma_f32 v{q_}, -v{s_}, v{s_}, v{q_}")
    a(f"v_max_f32 v{q_}, 0, v{q_}")
    a(f"v_add_f32 v{q_}, {f2u(1e-5):#x}, v{q_}")

def nonce_publish(a):
    l = a.label("Lnn")
    a(f"s_or_b32 s61, s2, s{sW}")
    a("s_cmp_lg_u32 s61, 0")
    a(f"s_cbranch_scc1 {l}")
    a("s_or_b32 s62, s84, 1")
    a("v_mov_b32 v30, s62")
    a("v_lshlrev_b32 v31, 6, v1")
    a("s_mov_b64 exec, 15")
    a(f"buffer_store_dword v30, v31, {S4(DBG_)}, 0 offen sc1")
    a("s_mov_b64 exec, -1")
    a(f"{l}:")

def nonce_check(a):
    a.vmwait("poll")
    def chk():
        a(f"v_readfirstlane_b32 s{sT}, v25")
        a(f"s_cmp_lg_u32 s{sT}, 0")
    def iss():
        a("v_mov_b32 v31, 0")
        a(f"buffer_load_dword v25, v31, {S4(DBG_)}, 0 offen sc1")
    spin(a, iss, chk)

def wave_flag(a):
    a(f"s_lshl_b32 s61, s{sGRP}, 4")
    a(f"s_add_u32 s61, s61, s{sRB}")
    a("s_lshl_b32 s61, s61, 2")
    a(f"s_add_u32 s61, s61, s{sQ}")
    a("s_lshl_b32 s61, s61, 7")
    a(f"s_add_u32 s61, s61, {F1_OFF}")
    a(f"v_mov_b32 v30, s{sT}")
    a("v_mov_b32 v31, 0")
    a("s_mov_b64 exec, 1")
    a.vmem(f"buffer_store_dword v30, v31, {S4(WS_)}, s61 offen sc1", "flag")
    a("s_mov_b64 exec, -1")

def spin_pipe(a, addr, soff, regs, gap, limit=0x8000):
    n = len(regs); lp = a.label("Lpp"); ok = a.label("Lpo")
    ld = lambda r: a(f"buffer_load_dword v{r}, v{addr}, {S4(WS_)}, s{soff} offen sc1")
    for k, r in enumerate(regs):
        ld(r)
        if k < n - 1: a(f"s_sleep {gap}")
    a("s_mov_b32 s63, 0")
    a(f"{lp}:")
    for r in regs:
        a(f"s_waitcnt vmcnt({n-1})")
        a(f"v_cmp_ne_u32 vcc, s{sT}, v{r}")
        a(f"s_cbranch_vccz {ok}")
        ld(r)
    a("s_add_u32 s63, s63, 1")
    a(f"s_cmp_lt_u32 s63, {limit}")
    a(f"s_cbranch_scc1 {lp}")
    a(f"{ok}:")

def spin(a, issue, check_ok, limit=0x8000):
    lp = a.label("Lspin"); ok = a.label("Lok")
    check_ok()
    a(f"s_cbranch_scc1 {ok}")
    a("s_mov_b32 s63, 0")
    a(f"{lp}:")
    issue()
    a("s_waitcnt vmcnt(0)")
    a("s_add_u32 s63, s63, 1")
    a(f"s_cmp_gt_u32 s63, {limit}")
    a(f"s_cbranch_scc1 {ok}")
    check_ok()
    a(f"s_cbranch_scc0 {lp}")
    a(f"{ok}:")

def az_helper(a, fused):
    rowtile_voffs(a, 4, 5, 10)
    zcount(a, 55, 57)
    a("s_lshl_b32 s57, s57, 1")
    for i in range(3):
        a(f"v_add_u32 v3, {64*i}, v1")
        a("v_mul_u32_u24 v30, 683, v3")
        a("v_lshrrev_b32 v30, 13, v30")
        a("v_mul_u32_u24 v31, 12, v30")
        a("v_sub_u32 v31, v3, v31")
        a("v_lshrrev_b32 v3, 2, v30")
        a("v_and_b32 v3, 2, v3")
        a("v_xor_b32 v31, v3, v31")
        a("v_cmp_le_u32 vcc, s57, v31")
        a("v_mul_u32_u24 v30, 2752, v30")
        a(f"v_lshl_add_u32 v{20+i}, v31, 4, v30")
        a("v_cndmask_b32_e64 v3, 0, 1, vcc")
        if i: a(f"v_subrev_u32 v{20+i}, {1024*i}, v{20+i}")
        a(f"v_lshl_add_u32 v{23+i}, v3, 28, v{20+i}")
    a(f"s_lshl_b32 s53, s{sRB}, 2")
    a(f"s_add_u32 s53, s53, s{sQ}")
    a("s_lshl_b32 s53, s53, 15")
    a(f"s_mul_i32 s54, s{sQ}, {16*2752}")
    a("s_lshl_b32 s61, s55, 5")
    a("s_add_u32 s54, s54, s61")
    a("s_add_u32 s54, s54, 1376")
    a(f"s_mul_i32 s56, s{sQ}, 3072")
    a(f"s_lshl_b32 s60, s{sQ}, 12")
    def wgroup(kreg_ready, step, dst, add, tag):
        if not kreg_ready:
            a(f"s_add_u32 s61, s{sK0A}, {step}")
            a("s_and_b32 s61, s61, 7")
        a(f"s_mul_i32 s63, s61, {64*2752}")
        a(f"s_add_u32 m0, s56, {dst}")
        a(f"s_add_u32 s63, s63, s{54 if add else 73}")
        for i in range(3):
            a.vmem(f"buffer_load_dwordx4 v{(23 if add or not opt('z1g', 0) else 20)+i}, {S4(WA_)}, s63 offen offset:{1024*i} {NT('w')}lds", tag)
    def ga(step):
        x_group_h(a, step, ZSLOT[step % 3], ("A", step))
        wgroup(True, step, ZSLOT[step % 3] + 16384, 1376, ("A", step))
    npro = opt('proZ', 2)
    early_srds(a)
    srd(a, WA_, 72, D*F2*2)
    ga(0)
    for st in range(1, npro): ga(st)
    if opt('sst', 0): a.stamp()
    a.split("LF_hz1")
    if opt('sst', 0): a.stamp()
    late_srds(a)
    wsp_setup_h(a)
    z1count(a, 73, 61)
    a("s_lshl_b32 s73, s73, 5")
    a(f"s_mul_i32 s61, s{sQ}, {16*2752}")
    a("s_add_u32 s73, s73, s61")
    a("v_lshlrev_b32 v10, 3, v1")
    a(f"s_lshl_b32 s64, s{sRB}, 5")
    a(f"s_add_u32 s64, s64, s{sQ}")
    a("s_lshl_b32 s64, s64, 9")
    a(f"s_add_u32 s64, s64, {WS_ST2}")
    a("s_add_u32 s65, s64, 4096\ns_add_u32 s66, s64, 8192\ns_add_u32 s67, s64, 12288")
    a("v_lshlrev_b32 v11, 4, v1")
    a("v_add_u32 v11, s60, v11")
    a(f"s_lshl_b32 s61, s{sQ}, 8")
    a(f"s_add_u32 s61, s61, {L_XCH}")
    a("v_lshrrev_b32 v12, 1, v1")
    a("v_lshl_add_u32 v12, v12, 2, s61")
    a("v_lshrrev_b32 v13, 4, v1")
    a("v_lshl_add_u32 v13, v13, 5, s61")
    a("v_lshrrev_b32 v3, 5, v1")
    a("v_mul_u32_u24 v3, 3072, v3")
    a("v_bfe_u32 v30, v1, 4, 1")
    a("v_lshl_add_u32 v3, v30, 9, v3")
    a("v_and_b32 v30, 15, v1")
    a("v_lshl_add_u32 v14, v30, 4, v3")
    a(f"s_lshl_b32 s57, s{sGRP}, 4")
    a(f"s_add_u32 s57, s57, s{sRB}")
    a("s_lshl_b32 s57, s57, 2")
    a(f"s_add_u32 s57, s57, s{sQ}")
    a("s_mul_i32 s57, s57, 6144")
    a(f"s_add_u32 s57, s57, {WS_Z2N}")
    a("v_mov_b32 v16, 0xffff0000")
    a.stamp()
    nw1 = 0
    for s in range(8):
        a.vmwait(("A", s))
        a("s_barrier")
        if s in (0, 1, 4): a.stamp()
        if s == 0: a(f"s_load_dword s{sT}, s[90:91], 128")
        if s + npro < 8: ga(s + npro)
        if s == 0: get_nonce(a, -1)
        if s == opt('st1z', 3): ln1_fetch_issue(a, False)
        if s == 6 and opt('lf', 0) == 0: ln1_fetch_finish(a, False)
        if s + npro >= 8:
            for u in (nw1, nw1 + 1): wgroup(False, u, W1SL[u], 0, ("W1", u))
            nw1 += 2
        if s == 5 and opt('lf', 0) == 1: ln1_fetch_finish(a, False)
    a.stamp()
    for u in range(nw1, 8): wgroup(False, u, W1SL[u], 0, ("W1", u))
    if opt('zcw', 1) == 1: cw_load(a, 0, 38)
    a.vmwait(("W1", 7))
    if opt('zcw', 1) == 2: a.after_a2 = True
    a("s_barrier")
    if opt('zcw', 1) == 2: cw_load(a, 0, 38)
    a(f"s_setprio {opt('nprio', 3)}")
    for j in range(6): a(f"ds_read_b128 {V(56+8*j+4)}, v11 offset:{(j>>2)*16384 + (j&3)*1024}")
    def iss():
        for c in range(8):
            a(f"buffer_load_dwordx2 {V(32+2*c,2)}, v10, {S4(WS_)}, s{64 + (c>>1)} offen offset:{2048*(c&1)} sc1")
    def chk():
        for c in range(8): a(f"v_xor_b32 v{48+c}, s{sT}, v{33+2*c}")
        a("v_or3_b32 v48, v48, v49, v50\nv_or3_b32 v51, v51, v52, v53\nv_or3_b32 v48, v48, v54, v55")
        a("v_or_b32 v48, v48, v51")
        a("v_cmp_ne_u32 vcc, 0, v48")
        a("s_cmp_eq_u64 vcc, 0")
    a("s_waitcnt lgkmcnt(0)")
    for j in range(6):
        for w in range(4):
            u = 56 + 8*j
            if w < 3:
                a(f"v_lshlrev_b32 v{u+2*w}, 16, v{u+4+w}")
                a(f"v_and_b32 v{u+2*w+1}, v16, v{u+4+w}")
            else:
                a(f"v_lshlrev_b32 v{u+6}, 16, v{u+7}")
                a(f"v_and_b32 v{u+7}, v16, v{u+7}")
    for v in range(opt('wearly', 0)): wsp_group_h(a, v)
    zcount(a, 62, 58)
    if opt('stdelay', 8): a(f"s_sleep {opt('stdelay', 8)}")
    iss(); a("s_waitcnt vmcnt(0)")
    spin(a, iss, chk)
    a.stamp()
    for k in (2, 4, 6): a(f"v_add_f32 v{32+2*k}, v{32+2*k}, v{34+2*k}")
    a("v_add_f32 v32, v32, v34")
    a("v_add_f32 v36, v36, v40")
    a("v_add_f32 v32, v32, v44")
    a("v_add_f32 v32, v32, v36")
    a(f"v_mul_f32 v32, {f2u(1.0/688):#x}, v32")
    a("s_nop 1")
    a("v_mov_b32_dpp v33, v32 quad_perm:[1,0,3,2] row_mask:0xf bank_mask:0xf")
    a("v_fma_f32 v33, -v32, v32, v33")
    a("v_max_f32 v33, 0, v33")
    a(f"v_add_f32 v33, {f2u(1e-5):#x}, v33")
    a("v_rsq_f32 v33, v33")
    a("s_nop 0")
    a("v_mul_f32_e64 v48, -v32, v33")
    a("v_mov_b32 v49, v33")
    a("s_nop 0")
    for w in range(8): a(f"v_mov_b32_dpp v{40+w}, v48 row_newbcast:{2*w} row_mask:0xf bank_mask:0xf")
    for w in range(8): a(f"v_mov_b32_dpp v{32+w}, v49 row_newbcast:{2*w} row_mask:0xf bank_mask:0xf")
    for j in range(6):
        u = 56 + 8*j; z = u
        for w in range(8): a(f"v_fma_f32 v{u+w}, v{u+w}, v{32+w}, v{40+w}")
        for w in range(4): a(f"v_cvt_pk_bf16_f32 v{z+w}, v{u+2*w}, v{u+2*w+1}")
        a(f"s_cmp_gt_u32 s58, {j}")
        a(f"s_cselect_b32 s61, s57, {OOB}")
        a.vmem(f"buffer_store_dwordx4 {V(z)}, v14, {S4(WS_)}, s61 offen offset:{(j>>1)*1024 + (j&1)*256} sc1", "z2n")
    a("s_setprio 0")
    a.stamp()
    a.vmwait("z2n")
    wave_flag(a)
    a.stamp()
    for v in range(opt('wearly', 0), 3): wsp_group_h(a, v)
    a(f"v_mov_b32 v30, {L_FLG + 16}")
    lds_wait(a, 30, 4, 32)
    for v in range(3, opt('wp', 4)): wsp_group_h(a, v)
    a(f"s_mov_b32 s72, {opt('wp', 4)}")
    if opt('zcw', 1) == 0: cw_load(a, 0, 38)

def aq_compute(a, fused):
    AQ, AK, AV, HK, HV = 32, 64, 96, 128, 136
    ONES, SUM, GRM, XA = 28, 224, 232, 240
    CWQ = [240, 128, 132, 136, 140, 244]
    ring = list(range(144, 200, 4))
    MC, MPN, MPA, MB = 200, 204, 208, 216
    a(f"s_lshr_b32 s5, s{sQ}, 1")
    a(f"s_and_b32 s46, s{sQ}, 1")
    a("s_lshl_b32 s61, s5, 13")
    rowfrag_addr(a, 10, 11, "s61")
    rowfrag_addr(a, 12, 13, 16384)
    qw_addr(a, 14)
    a("v_add_u32 v14, 18432, v14")
    a("s_lshl_b32 s61, s46, 6")
    a("v_xor_b32 v14, s61, v14")
    a("v_xor_b32 v15, 32, v14")
    a("v_and_b32 v3, 15, v1")
    a("v_lshrrev_b32 v30, 4, v1")
    a("v_lshlrev_b32 v30, 2, v30")
    a("v_sub_u32 v31, v3, v30")
    a(f"v_mov_b32 v224, {NEG:#x}")
    a("v_mov_b32 v225, 0xffff")
    a("v_mov_b32 v226, 0xffff0000")
    for i in range(4):
        a(f"v_subrev_u32 v227, {i}, v31")
        a("v_cmp_gt_u32 vcc, 8, v227")
        a("v_cmp_gt_i32 s[62:63], -8, v227")
        a("s_nop 0")
        a(f"v_cndmask_b32_e64 v{MC+i}, v224, 0, vcc")
        a(f"v_cndmask_b32_e64 v{228+i}, 0, v{225 + (i&1)}, vcc")
        a(f"v_cndmask_b32_e64 v{MPN+i}, v224, 0, s[62:63]")
    a(f"v_or_b32 v{MB}, v228, v229")
    a(f"v_or_b32 v{MB+1}, v230, v231")
    a("s_lshl_b32 s61, s5, 8")
    a(f"s_add_u32 s61, s61, {L_TAB}")
    a("v_and_b32 v27, 0x30, v1")
    a("v_add_u32 v218, s61, v27")
    a("v_lshl_add_u32 v219, v3, 2, s61")
    a("s_lshl_b32 s61, s46, 7")
    a(f"s_add_u32 s61, s61, {L_CW}")
    a("v_add_u32 v220, s61, v27")
    a("v_lshl_add_u32 v221, v3, 2, s61")
    a("v_lshlrev_b32 v222, 4, v1")
    a("s_lshl_b32 s61, s46, 12")
    a(f"s_add_u32 s61, s61, {L_XCH}")
    a("v_add_u32 v223, s61, v222")
    a(f"s_lshl_b32 s53, s{sRB}, 1")
    a("s_add_u32 s53, s53, s5")
    a("s_lshl_b32 s53, s53, 4")
    a(f"s_add_u32 s53, s53, s{sGRP}")
    a("s_lshl_b32 s53, s53, 1")
    a("s_add_u32 s53, s53, s46")
    a("s_lshl_b32 s53, s53, 11")
    a(f"s_add_u32 s53, s53, {WS_O}")
    a("s_add_u32 s54, s53, 32768")
    a("v_lshrrev_b32 v27, 4, v1")
    a("v_lshlrev_b32 v27, 9, v27")
    a("v_lshl_add_u32 v4, v3, 4, v27")
    a(f"s_lshl_b32 s61, s{sQ}, 2")
    a(f"s_add_u32 s61, s61, {L_FLG}")
    a("v_mov_b32 v7, s61")
    a("v_xor_b32 v8, 8, v7")
    a("s_lshl_b32 s61, s46, 2")
    a(f"s_add_u32 s61, s61, {L_FLG + 16}")
    a("v_mov_b32 v9, s61")
    a("v_mov_b32 v27, 0")
    a("ds_write_b32 v7, v27")
    a("ds_write_b32 v9, v27")
    AT = 16
    def build(halo, hp):
        fr = {'ones': dict(step=0, reg=ONES, reads=None)}; mf = []
        for s in range(8):
            for kk in range(2):
                for tl in range(4):
                    fr[('x', s, kk, tl)] = dict(step=s, reg=None, reads=[lambda r, kk=kk, tl=tl: f"ds_read_b128 {V(r)}, v{AT+kk} offset:{tl*2048}"])
                fr[('h', s, kk)] = dict(step=s, reg=None, reads=[lambda r, kk=kk: f"ds_read_b128 {V(r)}, v{AT+2+kk}"])
                for m in range(3):
                    for e in range(2):
                        w = ('w', s, kk, m, e)
                        fr[w] = dict(step=s, reg=None, reads=[(lambda r, hh=hh, kk=kk, m=m, e=e: f"ds_read_b64_tr_b16 {V(r+2*hh,2)}, v{AT+4+e} offset:{kk*12288 + m*1024 + hh*512}") for hh in range(2)])
                        for tl in range(4):
                            d = (AQ, AK, AV)[m] + (e*4+tl)*4
                            mf.append((d, w, ('x', s, kk, tl)) if m < 2 else (d, ('x', s, kk, tl), w))
                        if halo and m == 1: mf.append((HK+4*e, w, ('h', s, kk)))
                        if halo and m == 2: mf.append((HV+4*e, ('h', s, kk), w))
                        if halo == (m*2+e == 0): mf.append((CWQ[m*2+e], 'ones', w))
        return mf, fr
    def stats_out(halo):
        a("s_nop 6")
        for k in ([0] if halo else range(1, 6)): a(f"ds_write_b32 v221, v{CWQ[k]} offset:{256*(k>>1) + 64*(k&1)}")
    def pre(s):
        for r in range(6): a(f"v_add_u32 v{AT+r}, {QSLOT[s % 3]}, v{10+r}")
        if s == 0: a("s_waitcnt lgkmcnt(0)")
    a("v_mov_b32 v26, v30")
    a('v_mov_b32 v27, v3'); l2_setup(a, 5, False)
    a("v_mov_b32 v27, v3")
    ln1_publish(a)
    a("v_mov_b32 v3, v27")
    a("v_mov_b32 v30, v26")
    lr1 = a.label("Lrh1"); lj = a.label("Lqj")
    a("s_cmp_lg_u32 s5, 0")
    a(f"s_cbranch_scc1 {lr1}")
    a("v_lshlrev_b32 v3, 1, v3")
    a("v_sub_u32 v31, v30, v3")
    a(f"s_cmp_eq_u32 s{sRB}, 0")
    a("s_cselect_b32 s61, 1000, 0")
    a("v_subrev_u32 v31, s61, v31")
    for T in range(2):
        for i in range(4):
            if (i ^ T) & 1:
                a(f"v_mov_b32 v{MPA+4*T+i}, v224")
            else:
                a(f"v_cmp_le_i32 vcc, {T + 2 - i}, v31")
                a("s_nop 1")
                a(f"v_cndmask_b32_e64 v{MPA+4*T+i}, v224, 0, vcc")
    n0 = a.nst
    for halo in (True, False):
        if not halo:
            a(f"{lr1}:")
            for i in range(8): a(f"v_mov_b32 v{MPA+i}, v{MPN+(i&3)}")
        for r in range(4): a(f"v_mov_b32 v{ONES+r}, 0x3f803f80")
        a.nst = n0
        a.stamp()
        mf, fr = build(halo, 0)
        vm0 = list(a.vm)
        gemm_stream(a, mf, fr, ring, opt('LA', 10), opt('cover', 3), pre, stamps=(0, 1, 4), hooks=l2_hooks(a, 5, False))
        vm1 = list(a.vm); a.vm = vm0
        a.stamp()
        stats_out(halo)
        if halo: a(f"s_branch {lj}")
    a(f"{lj}:")
    a.vm = vm1
    a("v_mov_b32 v26, 1")
    a("s_waitcnt lgkmcnt(0)")
    a("ds_write_b32 v7, v26")
    lds_wait(a, 8, 1, 27)
    for k in range(2): a(f"ds_read_b128 {V(152+4*k)}, v220 offset:{256 + 64*k}")
    for tl in range(4):
        a(f"ds_read_b32 v{162+tl}, v219 offset:{64*tl}")
        a(f"ds_read_b32 v{166+tl}, v219 offset:{64*tl + TP}")
    for e in range(2): a(f"ds_read_b32 v{160+e}, v221 offset:{512 + 64*e}")
    a("s_waitcnt lgkmcnt(2)")
    for tl in range(4):
        a(f"ds_read_b128 {V(172+4*tl)}, v218 offset:{64*tl}")
        a(f"ds_read_b128 {V(10+4*tl)}, v218 offset:{64*tl + TP}")
    for k in range(2): a(f"ds_read_b128 {V(144+4*k)}, v220 offset:{64*k}")
    def corr_t(x, cw, mreg, rreg):
        for p in range(2): a(f"v_pk_fma_f32 {V(x+2*p,2)}, {V(cw+2*p,2)}, {V(mreg&~1,2)}, {V(x+2*p,2)} op_sel:[0,{mreg&1},0] op_sel_hi:[1,{mreg&1},1] neg_lo:[1,0,0] neg_hi:[1,0,0]")
        for p in range(2): a(f"v_pk_mul_f32 {V(x+2*p,2)}, {V(x+2*p,2)}, {V(rreg&~1,2)} op_sel:[0,{rreg&1}] op_sel_hi:[1,{rreg&1}]")
    def corr_c(x, mv, rv, cw):
        for p in range(2): a(f"v_pk_fma_f32 {V(x+2*p,2)}, {V(mv+2*p,2)}, {V(cw&~1,2)}, {V(x+2*p,2)} op_sel:[0,{cw&1},0] op_sel_hi:[1,{cw&1},1] neg_lo:[1,0,0] neg_hi:[1,0,0]")
        for p in range(2): a(f"v_pk_mul_f32 {V(x+2*p,2)}, {V(x+2*p,2)}, {V(rv+2*p,2)}")
    def pack(dst, x):
        for p in range(2): a(f"v_cvt_pk_bf16_f32 v{dst+p}, v{x+2*p}, v{x+2*p+1}")
    KV = 224
    def kp(e, tl): return KV + 8*tl + 2*e
    def vp(e, tl): return KV + 8*tl + 4 + 2*e
    for tl in (2, 3, 0, 1):
        for e in range(2): corr_t(AK + (e*4+tl)*4, 152+4*e, 162+tl, 166+tl)
        for e in range(2): pack(kp(e, tl), AK + (e*4+tl)*4)
    a("s_waitcnt lgkmcnt(0)")
    for tl in (2, 3, 0, 1):
        for e in range(2): corr_c(AV + (e*4+tl)*4, 172+4*tl, 10+4*tl, 160+e)
        for e in range(2): pack(vp(e, tl), AV + (e*4+tl)*4)
        if tl == 3:
            lx = a.label("Lx")
            a("s_cmp_lg_u32 s5, 0")
            a(f"s_cbranch_scc1 {lx}")
            for k in range(4): a(f"ds_write_b128 v223, {V(KV+16+4*k)} offset:{1024*k}")
            a("ds_write_b32 v9, v26")
            a("ds_read_b32 v26, v219 offset:512")
            a(f"ds_read_b32 v27, v219 offset:{512 + TP}")
            a(f"ds_read_b128 {V(188)}, v218 offset:512")
            a(f"ds_read_b128 {V(192)}, v218 offset:{512 + TP}")
            a(f"{lx}:")
    PV = 64
    lh = a.label("Lnh")
    a("s_cmp_lg_u32 s5, 0")
    a(f"s_cbranch_scc1 {lh}")
    a("s_waitcnt lgkmcnt(0)")
    for e in range(2):
        corr_t(HK+4*e, 152+4*e, 26, 27)
        corr_c(HV+4*e, 188, 192, 160+e)
    for e in range(2):
        for T in range(2):
            pack(PV + 8*T + 2*e, HK+4*e)
            pack(PV + 8*T + 4 + 2*e, HV+4*e)
    a(f"{lh}:")
    QP = 96
    for e in range(2):
        for tl in range(4):
            x = AQ + (e*4+tl)*4; m_ = 162 + tl
            for p in range(2): a(f"v_pk_fma_f32 {V(x+2*p,2)}, {V(144+4*e+2*p,2)}, {V(m_&~1,2)}, {V(x+2*p,2)} op_sel:[0,{m_&1},0] op_sel_hi:[1,{m_&1},1] neg_lo:[1,0,0] neg_hi:[1,0,0]")
    for k in range(8): pack(QP+2*k, AQ+4*k)
    for tl in range(4): a(f"v_mul_f32 v{10+tl}, {f2u(0.25*LOG2E):#x}, v{166+tl}")
    for r in range(2): a(f"v_mov_b32 v{14+r}, 0x3f803f80")
    lp = a.label("Lp")
    a("s_cmp_eq_u32 s5, 0")
    a(f"s_cbranch_scc1 {lp}")
    lds_wait(a, 9, 1, 27)
    for k in range(4): a(f"ds_read_b128 {V(PV+4*k)}, v223 offset:{1024*k}")
    a(f"{lp}:")
    SC, SP = 112, 144
    U = range(8)
    def kprev(u): e, tl = u//4, u%4; return kp(e, tl-2) if tl >= 2 else PV + 8*tl + 2*e
    def vprev(u): e, tl = u//4, u%4; return vp(e, tl-2) if tl >= 2 else PV + 8*tl + 4 + 2*e
    for u in U: a(mfma16(SC+4*u, kp(u//4, u%4), QP+2*u, V(MC)))
    for u in (2, 3, 6, 7): a(mfma16(SP+4*u, kprev(u), QP+2*u, V(MPN)))
    a("s_waitcnt lgkmcnt(0)")
    for u in (0, 1, 4, 5): a(mfma16(SP+4*u, kprev(u), QP+2*u, V(MPA+4*(u&1))))
    MX, TM = 32, 40
    for u in (2, 3, 6, 7, 0, 1, 4, 5):
        for i in range(4): a(f"v_max_f32 v{SC+4*u+i}, v{SC+4*u+i}, v{SP+4*u+i}")
    for u in U: a(f"v_max3_f32 v{MX+u}, v{SC+4*u}, v{SC+4*u+1}, v{SC+4*u+2}")
    for u in U: a(f"v_max_f32 v{MX+u}, v{MX+u}, v{SC+4*u+3}")
    a("s_nop 0")
    for b in (0, 4):
        a(f"v_permlane32_swap_b32 v{MX+b}, v{MX+b+1}")
        a(f"v_permlane32_swap_b32 v{MX+b+2}, v{MX+b+3}")
    for b in (0, 4):
        a(f"v_max_f32 v{MX+b}, v{MX+b}, v{MX+b+1}")
        a(f"v_max_f32 v{MX+b+2}, v{MX+b+2}, v{MX+b+3}")
    a("s_nop 0")
    for b in (0, 4): a(f"v_permlane16_swap_b32 v{MX+b}, v{MX+b+2}")
    for b in (0, 4): a(f"v_max_f32 v{MX+b}, v{MX+b}, v{MX+b+2}")
    for b in (0, 4): a(f"v_mov_b32 v{MX+b+2}, v{MX+b}")
    a("s_nop 1")
    for b in (0, 4): a(f"v_permlane16_swap_b32 v{MX+b}, v{MX+b+2}")
    for b in (0, 4):
        a(f"v_mov_b32 v{MX+b+1}, v{MX+b}")
        a(f"v_mov_b32 v{MX+b+3}, v{MX+b+2}")
    a("s_nop 0")
    for b in (0, 4):
        a(f"v_permlane32_swap_b32 v{MX+b}, v{MX+b+1}")
        a(f"v_permlane32_swap_b32 v{MX+b+2}, v{MX+b+3}")
    for u in range(0, 8, 2): a(f"v_pk_mul_f32 {V(MX+u,2)}, {V(MX+u,2)}, {V(10+(u&3),2)}")
    for u in U:
        c_ = 10 + (u & 3)
        for p in range(2): a(f"v_pk_fma_f32 {V(SC+4*u+2*p,2)}, {V(SC+4*u+2*p,2)}, {V(c_&~1,2)}, {V(MX+(u&~1),2)} op_sel:[0,{c_&1},{u&1}] op_sel_hi:[1,{c_&1},{u&1}] neg_lo:[0,0,1] neg_hi:[0,0,1]")
    for u in U:
        for i in range(4): a(f"v_exp_f32 v{SC+4*u+i}, v{SC+4*u+i}")
    PC, PP = 144, 160
    for u in U: pack(PP+2*u, SC+4*u)
    OA = 176
    for u in U:
        a(mfma16(SC+4*u, 14, PP+2*u, "0"))
        for p in range(2): a(f"v_and_b32 v{PC+2*u+p}, v{MB+p}, v{PP+2*u+p}")
    for u in U:
        for p in range(2): a(f"v_xor_b32 v{PP+2*u+p}, v{PC+2*u+p}, v{PP+2*u+p}")
        a(mfma16(OA+4*u, vp(u//4, u%4), PC+2*u, "0"))
    for u in U:
        a(mfma16(OA+4*u, vprev(u), PP+2*u))
        a(f"v_rcp_f32 v{MX+u}, v{SC+4*u}")
    a("s_nop 1")
    for u in U:
        for p in range(2): a(f"v_pk_mul_f32 {V(OA+4*u+2*p,2)}, {V(OA+4*u+2*p,2)}, {V(MX+(u&~1),2)} op_sel:[0,{u&1}] op_sel_hi:[1,{u&1}]")
    for tl in range(4):
        for e in range(2): pack(112 + 4*tl + 2*e, OA + 4*(e*4+tl))
    for tl in range(4):
        for p in range(2): a(f"v_permlane32_swap_b32 v{112+4*tl+p}, v{112+4*tl+2+p}")
    a.vmwait("b")
    a("s_mov_b32 s64, s53\ns_mov_b32 s65, s54")
    for tl in range(4):
        if not opt('defer', 0): a.vmem(f"buffer_store_dwordx4 {V(112+4*tl)}, v4, {S4(WS_)}, s{53+(tl>>1)} offen offset:{256*(tl&1)} sc1", "o")
    a(f"s_lshl_b32 s61, s{sRB}, 3")
    a(f"s_add_u32 s61, s61, s{sGRP}")
    a("s_lshl_b32 s61, s61, 2")
    a(f"s_add_u32 s61, s61, s{sQ}")
    a("s_lshl_b32 s61, s61, 7")
    a(f"s_add_u32 s75, s61, {FO_OFF}")
    a.stamp()

def aq_helper(a, fused):
    early = opt('qearly', 1); c6, c7, c8 = opt('c6', 8), opt('c7', 22), opt('c8', 30)
    PFS = [int(c, 16) for c in str(opt('pfs', 55234))]
    rowtile_voffs(a, 4, 5, 10)
    a("v_bfe_u32 v3, v1, 4, 1")
    a("v_lshlrev_b32 v3, 1, v3")
    a("v_and_b32 v30, 7, v1")
    a("v_xor_b32 v30, v30, v3")
    a("v_lshrrev_b32 v3, 3, v1")
    a("v_mul_u32_u24 v3, 3072, v3")
    a("v_lshl_add_u32 v6, v30, 4, v3")
    a("v_xor_b32 v30, 4, v30")
    a("v_lshl_add_u32 v7, v30, 4, v3")
    a(f"v_add_u32 v7, {8*3072}, v7")
    a("v_lshrrev_b32 v3, 4, v1")
    a(f"s_lshl_b32 s61, s{sQ}, 1")
    a("v_add_u32 v3, s61, v3")
    a("v_and_b32 v30, 7, v1")
    a("v_xor_b32 v30, v30, v3")
    a("v_and_b32 v30, 7, v30")
    a("v_lshrrev_b32 v3, 3, v1")
    a("v_lshlrev_b32 v3, 10, v3")
    a("v_lshl_add_u32 v20, v30, 4, v3")
    a(f"s_lshl_b32 s53, s{sRB}, 7")
    a("s_sub_u32 s55, s53, 16")
    a("s_max_i32 s55, s55, 0")
    a(f"s_lshl_b32 s61, s{sQ}, 2")
    a("s_add_u32 s55, s55, s61")
    a("s_lshl_b32 s55, s55, 10")
    a(f"s_lshl_b32 s61, s{sQ}, 5")
    a("s_add_u32 s53, s53, s61")
    a("s_lshl_b32 s53, s53, 10")
    a(f"s_mul_i32 s54, s{sQ}, {16*3072}")
    a(f"s_lshl_b32 s61, s{sGRP}, 7")
    a("s_add_u32 s54, s54, s61")
    a(f"s_mul_i32 s56, s{sQ}, 6144")
    a(f"s_lshl_b32 s57, s{sQ}, 9")
    a(f"s_lshl_b32 s60, s{sQ}, 12")
    def ga(step):
        sl = QSLOT[step % 3]; tag = ("A", step)
        x_group_h(a, step, sl, tag)
        a(f"s_mul_i32 s63, s61, {64*3072}")
        a("s_add_u32 s63, s63, s54")
        a(f"s_add_u32 m0, s56, {sl + 18432}")
        a("s_add_u32 s62, s58, s55")
        for m in range(3): a.vmem(f"buffer_load_dwordx4 v6, {S4(WA_)}, s63 offen offset:{1024*m} {NT('w')}lds", tag)
        a(f"s_add_u32 m0, s56, {sl + 18432 + 3072}")
        a("s_nop 0")
        for m in range(3): a.vmem(f"buffer_load_dwordx4 v7, {S4(WA_)}, s63 offen offset:{1024*m} {NT('w')}lds", tag)
        a(f"s_add_u32 m0, s57, {sl + 16384}")
        a("s_mov_b32 exec_hi, 0")
        a.vmem(f"buffer_load_dwordx4 v20, {S4(X_)}, s62 offen {NT('x')}lds", tag)
        a("s_mov_b32 exec_hi, -1")
    early_srds(a)
    srd(a, WA_, 66, D*1536*2)
    ga(0)
    ga(1)
    if opt('proQ', 2) == 3: ga(2)
    if opt('sst', 0): a.stamp()
    a.split("LF_hq1")
    if opt('sst', 0): a.stamp()
    late_srds(a)
    if fused: wsp_setup_h(a)
    q_spread_setup(a)
    a.stamp()
    for s in range(8):
        a.vmwait(("A", s))
        a("s_barrier")
        if s in (0, 1, 4): a.stamp()
        if s == 0: a(f"s_load_dword s{sT}, s[90:91], 128")
        if (0 if opt('proQ', 2) == 2 else 1) <= s <= 5: ga(s + 2)
        if s == 0: get_nonce(a, -1)
        if s == opt('st1q', 3): ln1_fetch_issue(a, True)
        if s == 6: ln1_fetch_finish(a, True)
        if s == opt('mt', 0): q_spread(a, 0, 1, 'm')
        if s == opt('wt1', 0): q_spread(a, 0, 1, 'w')
        if s == opt('ft', 0): q_spread(a, 0, 1, 'f')
        if s == opt('zt', 99): q_spread(a, 0, 1, 'z')
        if s == opt('ht', 99): q_spread(a, 0, 1, 'h')
        s0 = opt('sp0', 3)
        if s0 <= s < 6: q_spread(a, s - s0, 6 - s0, 's')
        if s == opt('retouch', 6): q_spread(a, 0, 1, 's', nt=0)
        if s == opt('qcw', 9): cw_load(a, 0, 16)
        q0 = opt('qc0', 0)
        if opt('qcw', 9) == 10 and q0 <= s < q0 + opt('qcn', 3): cw_load(a, (s - q0)*16//opt('qcn', 3), (s - q0 + 1)*16//opt('qcn', 3))
        if s == 7:
            for v in (0, 1, 6)[:opt('w7', 3)]: wsp_group_h(a, v)
    a.stamp()
    if opt('qcw', 9) == 8: cw_load(a, 0, 16)
    a(f"v_mov_b32 v30, {L_FLG}")
    lds_wait(a, 30, 4, 32)
    for v in [v for v in range(NWS) if v not in (0, 1, 6)[:opt('w7', 3)]]: wsp_group_h(a, v)
    if opt('qcw', 9) == 9: cw_load(a, 0, 16)
    a(f"s_mov_b32 s72, {NWS}")

def flag_store(a, which):
    if which == "F1":
        a(f"s_lshl_b32 s61, s{sRB}, 3")
        a(f"s_add_u32 s61, s61, s{sGRP}")
        off = F1_OFF
    else:
        a(f"s_lshl_b32 s61, s{sRB}, 1")
        a(f"s_add_u32 s61, s61, s{sTYP}")
        a("s_lshl_b32 s61, s61, 3")
        a(f"s_add_u32 s61, s61, s{sGRP}")
        off = F2_OFF
    a("s_lshl_b32 s61, s61, 7")
    a(f"s_add_u32 s61, s61, {off}")
    a(f"s_cmp_eq_u32 s{sQ}, 0")
    a(f"s_cselect_b32 s61, s61, {OOB}")
    a(f"v_mov_b32 v30, s{sT}")
    a("v_mov_b32 v31, 0")
    a("s_mov_b64 exec, 1")
    a.vmem(f"buffer_store_dword v30, v31, {S4(WS_)}, s61 offen sc1", "flag")
    a("s_mov_b64 exec, -1")

def mfma32(d, a, b, c=None):
    c = V(d, 16) if c is None else c
    return f"v_mfma_f32_32x32x16_bf16 {V(d,16)}, {V(a)}, {V(b)}, {c}"

def get_nonce(a, line):
    if line >= 0: a(f"s_load_dword s{sT}, s[90:91], {64*line}")
    a("s_waitcnt lgkmcnt(0)")
    first = [True]
    def chk():
        if not first[0]: a(f"v_readfirstlane_b32 s{sT}, v30")
        first[0] = False
        a(f"s_cmp_lg_u32 s{sT}, 0")
    def iss():
        a("s_sleep 2")
        a("v_mov_b32 v31, 0")
        a(f"buffer_load_dword v30, v31, {S4(DBG_)}, 0 offen sc1")
    spin(a, iss, chk)

def lds_wait(a, areg, n, t, nonce=False):
    lp = a.label("Llw"); ok = a.label("Llk")
    a("s_mov_b32 s63, 0")
    a(f"{lp}:")
    a(f"ds_read_b32 v{t}, v{areg}" if n == 1 else f"ds_read_b128 {V(t)}, v{areg}")
    a("s_add_u32 s63, s63, 1")
    a("s_waitcnt lgkmcnt(0)")
    if nonce:
        for k in range(4): a(f"v_xor_b32 v{t+k}, s{sT}, v{t+k}")
        a(f"v_or3_b32 v{t}, v{t}, v{t+1}, v{t+2}\nv_or_b32 v{t}, v{t}, v{t+3}")
    elif n > 1:
        a(f"v_and_b32 v{t}, v{t}, v{t+1}\nv_and_b32 v{t+2}, v{t+2}, v{t+3}\nv_and_b32 v{t}, v{t}, v{t+2}")
    a(f"v_cmp_{'eq' if nonce else 'ne'}_u32 vcc, 0, v{t}")
    a(f"s_cbranch_vccnz {ok}")
    a("s_cmp_lt_u32 s63, 0x100000")
    a(f"s_cbranch_scc1 {lp}")
    a(f"{ok}:")

def ln1_issue(a):
    a(f"s_lshl_b32 s61, s{sRB}, 1")
    a(f"s_add_u32 s61, s61, s{sTYP}")
    a("s_lshl_b32 s61, s61, 3")
    a(f"s_add_u32 s61, s61, s{sGRP}")
    a("s_lshl_b32 s61, s61, 2")
    a(f"s_add_u32 s47, s61, s{sQ}")
    a("s_lshl_b32 s61, s47, 11")
    a("v_lshrrev_b32 v3, 5, v1")
    a("v_lshlrev_b32 v3, 10, v3")
    a("v_and_b32 v30, 31, v1")
    a("v_lshl_add_u32 v3, v30, 4, v3")
    a.vmem(f"buffer_load_dwordx4 {V(40)}, v3, {S4(X_)}, s61 offen", "ln1")
    a.vmem(f"buffer_load_dwordx4 {V(44)}, v3, {S4(X_)}, s61 offen offset:512", "ln1")
def ln1_publish(a):
    a("v_mov_b32 v48, 0x3f803f80")
    a("v_mov_b32 v32, 0\nv_mov_b32 v33, 0\nv_mov_b32 v34, 0\nv_mov_b32 v35, 0")
    a("s_lshl_b32 s47, s47, 5")
    a(f"s_add_u32 s47, s47, {WS_ST1}")
    a("v_lshrrev_b32 v3, 1, v1")
    a.vmwait("ln1")
    for i in range(8):
        a(f"v_dot2_f32_bf16 v{32+(i&1)}, v{40+i}, v48, v{32+(i&1)}")
        a(f"v_dot2_f32_bf16 v{34+(i&1)}, v{40+i}, v{40+i}, v{34+(i&1)}")
    a("s_nop 2")
    a("v_add_f32 v32, v32, v33")
    a("v_add_f32 v34, v34, v35")
    for r in (8, 4, 2, 1):
        a("s_nop 0")
        a(f"v_add_f32_dpp v32, v32, v32 row_ror:{r} row_mask:0xf bank_mask:0xf")
        a(f"v_add_f32_dpp v34, v34, v34 row_ror:{r} row_mask:0xf bank_mask:0xf")
    a("v_mov_b32 v33, v32\nv_mov_b32 v35, v34")
    a("s_nop 1")
    a("v_permlane16_swap_b32 v32, v33\nv_permlane16_swap_b32 v34, v35")
    a("v_add_f32 v32, v32, v33\nv_add_f32 v34, v34, v35")
    row_finalize(a, 32, 34, 0)
    get_nonce(a, 1)
    a(f"v_mov_b32 v33, s{sT}\nv_mov_b32 v35, s{sT}")
    a("s_mov_b32 exec_lo, 1\ns_mov_b32 exec_hi, 1")
    a.vmem(f"buffer_store_dwordx4 {V(32)}, v3, {S4(WS_)}, s47 offen sc1", "ln1s")
    a("s_mov_b64 exec, -1")

def ln1_fetch_issue(a, halo):
    a(f"s_lshl_b32 s69, s{sRB}, 2")
    a(f"s_add_u32 s69, s69, s{sQ}")
    a("s_lshl_b32 s69, s69, 9")
    a(f"s_add_u32 s69, s69, {WS_ST1}")
    a(f"s_lshl_b32 s70, s{sRB}, 11")
    a("s_sub_u32 s70, s70, 256")
    a("s_max_i32 s70, s70, 0")
    a(f"s_add_u32 s70, s70, {WS_ST1}")
    a("v_lshlrev_b32 v36, 3, v1")
    a("v_and_b32 v37, 0xff, v36")
    a.vmem(f"buffer_load_dwordx2 {V(32,2)}, v36, {S4(WS_)}, s69 offen sc1", "st1")
    if halo: a.vmem(f"buffer_load_dwordx2 {V(34,2)}, v37, {S4(WS_)}, s70 offen sc1", "st1")
def ln1_fetch_finish(a, halo):
    a.vmwait("st1")
    def iss():
        a(f"buffer_load_dwordx2 {V(32,2)}, v36, {S4(WS_)}, s69 offen sc1")
        if halo: a(f"buffer_load_dwordx2 {V(34,2)}, v37, {S4(WS_)}, s70 offen sc1")
    def chk():
        a(f"v_cmp_ne_u32 vcc, s{sT}, v33")
        if halo:
            a(f"v_cmp_ne_u32 s[61:62], s{sT}, v35".replace("s[61:62]", "s[72:73]"))
            a("s_nop 0")
            a("s_or_b64 vcc, vcc, s[72:73]")
        a("s_cmp_eq_u64 vcc, 0")
    spin(a, iss, chk)
    a("v_bfe_u32 v38, v1, 1, 1")
    a("v_lshrrev_b32 v39, 2, v1")
    a("v_lshl_add_u32 v38, v38, 4, v39")
    a(f"s_lshl_b32 s61, s{sQ}, 7")
    a(f"s_add_u32 s61, s61, {L_TAB}")
    a("v_lshl_add_u32 v38, v38, 2, s61")
    a("v_mov_b32_dpp v33, v32 quad_perm:[1,0,3,2] row_mask:0xf bank_mask:0xf")
    if halo:
        a("v_mov_b32_dpp v35, v34 quad_perm:[1,0,3,2] row_mask:0xf bank_mask:0xf")
        a("v_lshlrev_b32 v39, 1, v1")
        a("v_and_b32 v39, 0x3c, v39")
        a(f"v_add_u32 v39, {L_TAB + 512}, v39")
        a("v_rsq_f32 v33, v33\nv_rsq_f32 v35, v35")
        a("s_mov_b32 exec_lo, 0x55555555\ns_mov_b32 exec_hi, 0x55555555")
        a(f"ds_write_b32 v38, v32\nds_write_b32 v38, v33 offset:{TP}")
        a(f"ds_write_b32 v39, v34\nds_write_b32 v39, v35 offset:{TP}")
    else:
        a("v_rsq_f32 v34, v33")
        a("v_sqrt_f32 v33, v33")
        a("v_mul_f32 v35, v34, v34")
        a("v_mul_f32 v35, v35, v34")
        a(f"v_mul_f32 v35, {f2u(-C2):#x}, v35")
        a(f"v_mul_f32 v34, {f2u(-C1):#x}, v34")
        a("s_mov_b32 exec_lo, 0x55555555\ns_mov_b32 exec_hi, 0x55555555")
        for k, r in enumerate((32, 35, 34, 33)): a(f"ds_write_b32 v38, v{r} offset:{TP*k}")
    a("s_mov_b64 exec, -1")
    a("s_waitcnt lgkmcnt(0)")

def b_early(a):
    a("v_and_b32 v3, 15, v1")
    a("v_bfe_u32 v31, v1, 4, 1")
    a("v_lshl_add_u32 v3, v3, 1, v31")
    a("v_lshlrev_b32 v3, 1, v3")
    a(f"s_lshl_b32 s61, s{sRB}, 2")
    a(f"s_add_u32 s61, s61, s{sQ}")
    a("s_lshl_b32 s61, s61, 6")
    a(f"s_cmp_eq_u32 s{sKS}, 0")
    a("s_cselect_b32 s61, s61, 4096")
    a.vmem(f"buffer_load_ushort v0, v3, {S4(BSP_)}, s61 offen", "b")

def b_compute(a, fused):
    ACC = 32
    ring = list(range(80, 144, 4))
    Z1 = 144
    OF = 168
    a("v_and_b32 v3, 31, v1")
    a("v_lshrrev_b32 v30, 5, v1")
    a("v_bfe_u32 v31, v1, 1, 3")
    a("v_xor_b32 v31, v30, v31")
    a("v_lshlrev_b32 v3, 7, v3")
    a("v_lshl_add_u32 v10, v31, 4, v3")
    a(f"s_lshl_b32 s61, s{sQ}, 12")
    a("v_add_u32 v10, s61, v10")
    for b4 in range(1, 4): a(f"v_xor_b32 v{10+b4}, {32*b4}, v10")
    for b4 in range(4): a(f"v_add_u32 v{14+b4}, 0x10000, v{10+b4}")
    a("v_lshlrev_b32 v19, 4, v1")
    a(f"v_add_u32 v18, {L_Z2}, v19")
    a(f"v_add_u32 v21, {L_Z2 + 49152}, v19")
    a(f"s_lshl_b32 s57, s{sRB}, 2")
    a(f"s_add_u32 s57, s57, s{sQ}")
    if not fused: b_early(a)
    zcount(a, 55, 58, sCG)
    a("s_mul_i32 s53, s57, 48")
    a("s_add_u32 s53, s53, s55")
    a("s_lshl_b32 s53, s53, 10")
    a(f"s_mul_i32 s61, s{sKS}, {64*48*1024}")
    a("s_add_u32 s54, s53, s61")
    a(f"s_add_u32 s53, s53, {WS_Z1}")
    a(f"s_add_u32 s54, s54, {WS_H}")
    a("s_add_u32 s59, s54, 4096")
    a(f"s_mov_b32 s60, {OOB}")
    if not fused: a.vmwait("b")
    a("v_lshlrev_b32 v22, 16, v0")
    for r in range(16): a(f"v_mov_b32 v{232+r}, v22")
    def z1_load():
        pass
    def z1_piece(j):
        def f():
            if j == 4: a("s_add_u32 s53, s53, 4096")
            if j >= 2:
                a(f"s_cmp_gt_u32 s58, {j}")
                a("s_cselect_b32 s53, s53, s60")
            l = a.label("Lnz")
            a(f"s_cmp_lg_u32 s{sTYP}, 0")
            a(f"s_cbranch_scc1 {l}")
            a.vmem(f"buffer_load_dwordx4 {V(Z1+4*j)}, v19, {S4(WS_)}, s53 offen offset:{(j%4)*1024} sc1", "z1")
            a(f"{l}:")
        return f
    extras = []
    zs = opt('z1step', 13)
    for j in range(6): extras.append((zs, z1_piece(j), lambda done: True, 99))
    a(f"s_lshl_b32 s56, s{sRC}, 1")
    a(f"s_and_b32 s61, s{sQ}, 1")
    a("s_add_u32 s56, s56, s61")
    a("s_lshl_b32 s56, s56, 1")
    a(f"s_lshr_b32 s61, s{sQ}, 1")
    a("s_add_u32 s56, s56, s61")
    a("s_lshl_b32 s56, s56, 14")
    a(f"s_add_u32 s56, s56, {WS_O}")
    def o_piece(b):
        def f():
            if b and b % 4 == 0: a("s_add_u32 s56, s56, 4096")
            a.vmem(f"buffer_load_dwordx4 {V(OF+4*b)}, v19, {S4(WS_)}, s56 offen offset:{(b%4)*1024} sc1", ("o", b))
        return f
    a.o_piece = o_piece
    def preB(st):
        if fused and st == opt('f2step', 2):
            a(f"v_mov_b32 v30, s{sT}")
            a("v_mov_b32 v31, 0")
            a.vmall()
            a("s_mov_b64 exec, 1")
            a.vmem(f"buffer_store_dword v30, v31, {S4(WS_)}, s75 offen sc1", "flag")
            a("s_mov_b64 exec, -1")
    def build(nc):
        fr = {}; mf = []
        for i in range(16):
            for b4 in range(4):
                fr[('w', i, b4)] = dict(step=i, reg=None, reads=[lambda r, i=i, b4=b4: f"ds_read_b128 {V(r)}, v{10 + b4 + 4*((i%NWS)//4)} offset:{((i%NWS)%4)*16384}"])
                for c in range(nc):
                    fr[('z', i, b4, c)] = dict(step=i, reg=None, reads=[lambda r, i=i, b4=b4, c=c: f"ds_read_b128 {V(r)}, v{18 if ZOFF(i) < 49152 else 21} offset:{ZOF2(i) + (b4*3+c)*1024}"])
                    mf.append((ACC+16*c, ('z', i, b4, c), ('w', i, b4)))
        return mf, fr
    a.stamp()
    a("s_barrier")
    l7 = a.label("Lb7"); lj = a.label("Lbj")
    vm0 = list(a.vm); n0 = a.nst
    if opt('b7', 1):
        a(f"s_cmp_eq_u32 s{sCG}, 7")
        a(f"s_cbranch_scc1 {l7}")
    for nc in ((3, 1) if opt('b7', 1) else (3,)):
        if nc == 1:
            a.split(l7 + "x"); a.L = []; a(f"{l7}:")
            a.head.pop()
        a.vm = list(vm0); a.nst = n0
        mf, fr = build(nc)
        ex = list(extras)
        gemm_stream(a, mf, fr, ring, opt('LAB', 5) if nc == 3 else 3, opt('coverB', 2) if nc == 3 else 1, preB,
                    first_zero=V(232, 16), stamps=(0, 1, 8, 10, 12, 14), pergap=opt('pgB', 2), slack=2, op=mfma32, extras=ex, skipbar=(15,))
        for e in ex: e[1]()
        if nc == 1:
            a(f"s_branch {lj}")
            a.unsplit()
            assert a.vm == vm3
        vm3 = list(a.vm)
    a(f"{lj}:")
    a.stamp()
    a(f"s_lshl_b32 s61, s{sQ}, 2")
    a(f"s_add_u32 s61, s61, {L_BF}")
    a("v_mov_b32 v22, s61")
    a(f"v_mov_b32 v23, s{sT}")
    a("ds_write_b32 v22, v23")
    a.vmwait("z1")
    a("v_mov_b32 v23, 0xffff0000")
    for j in range(6):
        x = ACC + 8*j; z = Z1 + 4*j; t = 80 + 8*(j&1)
        for k in range(4):
            a(f"v_lshlrev_b32 v{t+2*k}, 16, v{z+k}")
            a(f"v_and_b32 v{t+2*k+1}, v23, v{z+k}")
        a(f"s_cmp_gt_u32 s58, {j}")
        a(f"s_cselect_b32 s61, s{54 if j < 4 else 59}, s60")
        for k in range(4): a(f"v_pk_mul_f32 {V(x+2*k,2)}, {V(x+2*k,2)}, {V(t+2*k,2)}")
        for k in range(4): a(f"v_cvt_pk_bf16_f32 v{x+k}, v{x+2*k}, v{x+2*k+1}")
        a.vmem(f"buffer_store_dwordx4 {V(x)}, v19, {S4(WS_)}, s61 offen offset:{(j%4)*1024} sc1", "h")
    a.stamp()

CR = 104
NCR = int(os.environ.get('NCR', 16))
def cw_load(a, lo, hi):
    if NCR == 0: return
    if lo == 0: cw_load_setup(a)
    for i in range(lo, min(hi, NCR)):
        R, k = (WO_, i) if i < 16 else (WOUT_, i - 16)
        a(f"s_add_u32 s46, s47, {k*32768}")
        a.vmem(f"buffer_load_dwordx4 {V(CR+4*i)}, v26, {S4(R)}, s46 offen", "CW")
def cw_load_setup(a):
    a("v_bfe_u32 v3, v1, 4, 1")
    a("v_lshlrev_b32 v3, 2, v3")
    a("v_and_b32 v30, 7, v1")
    a("v_xor_b32 v30, v30, v3")
    a("v_lshrrev_b32 v3, 3, v1")
    a("v_lshlrev_b32 v3, 10, v3")
    a("v_lshl_add_u32 v26, v30, 4, v3")
    a(f"s_lshl_b32 s47, s{sCG}, 7")
    a(f"s_lshl_b32 s61, s{sQ}, 13")
    a("s_add_u32 s47, s47, s61")
def cw_dma(a, lo, hi):
    for i in range(max(lo, NCR), hi):
        off = CSLOT[i // 4]*16384 + (4*i % 16)*1024
        R, k = (WO_, i) if i < 16 else (WOUT_, i - 16)
        a(f"s_add_u32 m0, s76, {off}")
        a(f"s_add_u32 s46, s47, {k*32768}")
        a.vmem(f"buffer_load_dwordx4 v26, {S4(R)}, s46 offen lds", "WO" if i < 16 else "CW2")
def cw_write(a, lo, hi):
    for i in range(lo, min(hi, NCR)):
        g4 = 4*i
        off = CSLOT[g4 // 16]*16384 + (g4 % 16)*1024
        a(f"ds_write_b128 v{27 + (off >> 16)}, {V(CR+4*i)} offset:{off & 0xffff}")

CSLOT = [6, 0, 1, 7, 2, 3, 4, 5, 8, 9]
RED2 = 98304
def b_helper(a, fused):
    if not fused:
        late_srds(a)
        wsp_setup_h(a)
        a(f"s_lshl_b32 s60, s{sQ}, 12")
    a("v_lshlrev_b32 v10, 4, v1")
    a(f"s_lshl_b32 s61, s{sQ}, 10")
    a("v_add_u32 v27, s61, v10")
    a("v_add_u32 v28, 0x10000, v27")
    a("v_add_u32 v29, 0x20000, v27")
    a(f"s_lshl_b32 s53, s{sCG}, 1")
    a(f"s_add_u32 s53, s53, s{sKS}")
    a(f"s_mul_i32 s53, s53, {16*12288}")
    a(f"s_mul_i32 s54, s{sQ}, 3072")
    a("s_add_u32 s53, s53, s54")
    a(f"s_add_u32 s53, s53, {WS_Z2N}")
    a(f"s_add_u32 s54, s54, {L_Z2}")
    zcount(a, 61, 62, sCG)
    a("v_bfe_u32 v3, v1, 4, 1")
    for k in (1, 2):
        a(f"v_add_u32 v30, {2*k}, v3")
        a("v_cmp_le_u32 vcc, s62, v30")
        a("s_nop 1")
        a("v_cndmask_b32_e64 v30, 0, 1, vcc")
        a(f"v_lshl_add_u32 v{13+k}, v30, 28, v10")
    def z2_group(i):
        a(f"s_add_u32 s61, s{sK0B}, {i}")
        a("s_and_b32 s61, s61, 15")
        a("s_mul_i32 s61, s61, 12288")
        a(f"s_add_u32 m0, s54, {ZOFF(i)}")
        a("s_add_u32 s61, s61, s53")
        for k in range(3): a.vmem(f"buffer_load_dwordx4 v{(10, 14, 15)[k]}, {S4(WS_)}, s61 offen offset:{1024*k} sc1 lds", ("Z", i))
    a.stamp()
    if fused:
        a(f"s_lshl_b32 s71, s{sCG}, 1")
        a(f"s_add_u32 s71, s71, s{sKS}")
        a("s_lshl_b32 s71, s71, 12")
        a(f"s_add_u32 s71, s71, {F1_OFF}")
        a("v_and_b32 v31, 31, v1")
        a("v_lshlrev_b32 v31, 7, v31")
        a(f"v_mov_b32 v30, 0")
        def iss(): a(f"buffer_load_dword v30, v31, {S4(WS_)}, s71 offen sc1")
        def chk():
            a(f"v_cmp_ne_u32 vcc, s{sT}, v30")
            a("s_cmp_eq_u64 vcc, 0")
        wp = opt('wp', 4)
        lA = a.label("LfA")
        lB = a.label("LfB")
        iss(); a("s_waitcnt vmcnt(0)")
        a(f"s_cmp_ge_u32 s72, {NWS}")
        a(f"s_cbranch_scc1 {lB}")
        for v in range(wp, NWS):
            chk()
            a(f"s_cbranch_scc1 {lA}")
            wsp_group_h(a, v)
            a(f"s_mov_b32 s72, {v + 1}")
            iss(); a("s_waitcnt vmcnt(0)")
        a(f"{lB}:")
        spin(a, iss, chk)
        a("s_waitcnt vmcnt(0)")
        a(f"{lA}:")
        a.vm = []
        a.stamp()
        for i in range(NZS - 1): z2_group(i)
        a("v_mov_b32 v25, 256")
        def late_group(v):
            ld = a.label("Lld"); le = a.label("Lle")
            a(f"s_cmp_gt_u32 s72, {v}")
            a(f"s_cbranch_scc1 {ld}")
            wsp_group_h(a, v)
            a(f"s_branch {le}")
            a(f"{ld}:")
            a("s_mov_b64 exec, 1")
            for k in range(4): a(f"buffer_load_dword v24, v25, {S4(DBG_)}, 0 offen")
            a("s_mov_b64 exec, -1")
            a(f"{le}:")
    a("s_barrier")
    wpre = NWS
    a("v_add_u32 v18, 4096, v8")
    a("v_add_u32 v19, 4096, v9")
    def wsp_pieces(v):
        def f(k):
            if k == 0:
                a(f"s_add_u32 s58, s{sK0B}, {v}")
                a("s_and_b32 s58, s58, 15")
                a("s_lshl_b32 s58, s58, 7")
                a("s_add_u32 s58, s58, s59")
            a(f"s_add_u32 m0, s60, {(v % NWS) * 16384 + 2048*(k>>1)}")
            a("s_nop 0")
            a.vmem(f"buffer_load_dwordx4 v{(8, 9, 18, 19)[k]}, {S4(WSP_)}, s58 offen offset:{1024*(k&1)} {NT('s')}lds", ("S", v))
        return [(lambda k=k: f(k)) for k in range(4)]
    nud = 0
    a(f"s_lshl_b32 s76, s{sQ}, 10")
    if NCR == 0: cw_load_setup(a)
    bg = []
    for v in range(wpre, 16): bg += [(max(0, v - NWS + 1), p, v) for p in wsp_pieces(v)]
    for i in range(16):
        assert all(x[2] > i for x in bg), i
        if i == 15: break
        a.vmwait(("S", i)); a.vmwait(("Z", i))
        if i == 14:
            assert not bg
            a.vmwait(("S", 15)); a.vmwait(("Z", 15))
        if fused and i == opt('z1step', 13): f2_check_q(a)
        a("s_barrier")
        if i in (0, 1, 8, 10, 12, 14): a.stamp()
        if fused and i == opt('f2step', 2): flag_store(a, "F2")
        if fused and i == opt('z1step', 13) - 3: f2_issue(a)
        lg = opt('lg', 2)
        for v in range(wp + lg*i, min(NWS, wp + lg*(i + 1))):
            assert v > i
            late_group(v)
        if i + NZS - 1 < 16: z2_group(i + NZS - 1)
        if i == 13: f2_issue2(a)
        if i == opt('cwt', 99):
            a(f"s_and_b32 s61, s{sRB}, 3")
            a("s_lshl_b32 s61, s61, 2")
            a(f"s_add_u32 s61, s61, s{sQ}")
            a(f"s_mul_i32 s61, s61, {43*1024}")
            a(f"s_lshl_b32 s62, s{sCG}, 7")
            a("s_add_u32 s61, s61, s62")
            a("v_lshlrev_b32 v31, 10, v1")
            a("s_mov_b32 exec_hi, 0x7ff")
            a.vmem(f"buffer_load_dword v24, v31, {S4(WOUT_)}, s61 offen", "pf")
            a("s_mov_b32 exec_hi, -1")
        n = opt('pace', 3)
        while n > 0 and bg and bg[0][0] <= i:
            bg.pop(0)[1](); n -= 1
    nud = opt('nud', 2)
    cw_write(a, 0, 4)
    cw_dma(a, 16, 16 + 4*nud)
    a(f"v_mov_b32 v30, {L_BF}")
    lds_wait(a, 30, 4, 32, True)
    a.stamp()
    cw_write(a, 4, 16)
    f2_check_z(a)
    a.nud = nud

def f2_issue(a):
    a(f"s_lshl_b32 s62, s{sRB}, 11")
    a(f"s_add_u32 s62, s62, {F2_OFF + 8*128}")
    a(f"s_lshr_b32 s61, s{sRC}, 1")
    a("s_lshl_b32 s61, s61, 12")
    a(f"s_add_u32 s61, s61, {FO_OFF}")
    a("v_lshlrev_b32 v21, 7, v1")
    a("v_add_u32 v20, s61, v21")
    if opt('z1g', 0):
        a("v_and_b32 v21, 0x380, v21")
        a("v_add_u32 v21, s62, v21")
    else:
        a(f"s_lshl_b32 s63, s{sCG}, 7")
        a("s_add_u32 s62, s62, s63")
        a("v_mov_b32 v21, s62")
    a("v_cmp_lt_u32 vcc, 31, v1")
    a("s_nop 1")
    a("v_cndmask_b32 v20, v20, v21, vcc")
    a(f"s_cmp_eq_u32 s{sTYP}, 0")
    a(f"s_cselect_b32 s77, 0, {OOB}")
    a(f"s_cselect_b32 s62, {OOB}, 0")
    a("s_mov_b32 s78, s62")
    a.vmem(f"buffer_load_dword v21, v20, {S4(WS_)}, s77 offen sc1", "f2")
def f2_issue2(a):
    a.vmem(f"buffer_load_dword v22, v20, {S4(WS_)}, s78 offen sc1", "f2b")
def f2_check_q(a):
    l = a.label("Lf2z")
    a(f"s_cmp_lg_u32 s{sTYP}, 0")
    a(f"s_cbranch_scc1 {l}")
    vm = list(a.vm)
    f2_check(a)
    a(f"{l}:")
    a.vm = vm
def f2_check_z(a):
    a.vmwait("f2b")
    a("v_or_b32 v21, v21, v22")
    f2_check(a)
def f2_check(a):
    a.vmwait("f2")
    def iss(): a(f"buffer_load_dword v21, v20, {S4(WS_)}, 0 offen sc1")
    def chk():
        a(f"v_cmp_ne_u32 vcc, s{sT}, v21")
        a("s_cmp_eq_u64 vcc, 0")
    spin(a, iss, chk)

L_RED = 0
def c_waddr(a, d):
    a("v_lshrrev_b32 v3, 5, v1")
    a("v_bfe_u32 v30, v1, 2, 2")
    a("v_lshl_add_u32 v3, v3, 2, v30")
    a("v_lshlrev_b32 v3, 7, v3")
    a("v_and_b32 v30, 2, v30")
    a("v_bfe_u32 v31, v1, 4, 1")
    a("v_or_b32 v30, v30, v31")
    a("v_lshl_add_u32 v3, v30, 5, v3")
    a("v_and_b32 v30, 3, v1")
    a(f"v_lshl_add_u32 v{d}, v30, 3, v3")
    a(f"v_xor_b32 v{d+1}, 64, v{d}")

def c_stream(a, nblk, fragreg, tagf, areg, blk0, ring, ACC, first_zero, loads=(), off0=0):
    fr = {}; mf = []
    for b in range(nblk):
        fr[('h', b)] = dict(step=0, reg=fragreg(b), reads=None)
        for nn in range(2):
            off = CSLOT[(blk0 + b) // 8] * 16384 + ((blk0 + b) % 8) * 2048 if off0 is not None else (b // 8) * 65536 + (b % 8) * 2048
            fr[('w', b, nn)] = dict(step=0, reg=None, reads=[(lambda r, hh=hh, nn=nn, off=off: f"ds_read_b64_tr_b16 {V(r+2*hh,2)}, v{areg(off >> 16) + nn} offset:{(off & 0xffff) + hh*1024}") for hh in range(2)])
            mf.append((ACC+16*nn, ('w', b, nn), ('h', b)))
    cnt = [0]
    def op(d, x, y, c):
        b = cnt[0] // 2
        if cnt[0] % 2 == 1 and loads: loads.pop(0)()
        cnt[0] += 1
        a.vmwait(tagf(b))
        return mfma32(d, x, y, c)
    gemm_stream(a, mf, fr, ring, opt('LAC', 4), 0, lambda st: None, first_zero=first_zero, pergap=2, slack=2, op=op, skip_first_barrier=True)

def c_final(a):
    a.vmwait("x")
    for w in range(4):
        a(f"v_lshlrev_b32 v{64+2*w}, 16, v{8+w}")
        a(f"v_and_b32 v{65+2*w}, 0xffff0000, v{8+w}")
    a("s_waitcnt lgkmcnt(0)")
    a("s_barrier")
    for k in range(2):
        a(f"ds_read_b128 {V(16+8*k)}, v{6-k}")
        a(f"ds_read_b128 {V(20+8*k)}, v{6-k} offset:16")
    a("s_waitcnt lgkmcnt(2)")
    for w in range(4): a(f"v_pk_add_f32 {V(64+2*w,2)}, {V(64+2*w,2)}, {V(16+2*w,2)}")
    a("s_waitcnt lgkmcnt(0)")
    for w in range(4): a(f"v_pk_add_f32 {V(64+2*w,2)}, {V(64+2*w,2)}, {V(24+2*w,2)}")
    for w in range(4): a(f"v_cvt_pk_bf16_f32 v{32+w}, v{64+2*w}, v{65+2*w}")
    a.vmem(f"buffer_store_dwordx4 {V(32)}, v7, {S4(OUT_)}, s47 offen {('', 'sc1', 'nt', 'sc0 sc1', 'sc1 nt')[opt('outf', 0)]}", "out")

def c_final_setup(a):
    a("v_lshrrev_b32 v3, 3, v1")
    a(f"s_lshl_b32 s61, s{sW}, 3")
    a("v_add_u32 v3, s61, v3")
    a("v_and_b32 v30, 7, v1")
    a("v_mul_u32_u24 v6, 272, v3")
    a("v_lshl_add_u32 v6, v30, 5, v6")
    a(f"v_add_u32 v5, {RED2}, v6")
    a("v_and_b32 v31, 15, v3")
    a("v_lshlrev_b32 v31, 1, v31")
    a("v_bfe_u32 v7, v3, 4, 1")
    a("v_add_u32 v31, v31, v7")
    a("v_and_b32 v7, 32, v3")
    a("v_add_u32 v31, v31, v7")
    a("v_lshlrev_b32 v31, 10, v31")
    a("v_lshl_add_u32 v7, v30, 4, v31")
    a(f"s_lshl_b32 s47, s{sRC}, 9")
    a(f"s_add_u32 s47, s47, s{sCG}")
    a("s_lshl_b32 s47, s47, 7")
    a.vmem(f"buffer_load_dwordx4 {V(8)}, v7, {S4(X_)}, s47 offen", "x")

def c_compute(a, fused):
    ACC, OF, HF = 32, 168, 80
    a(f"s_and_b32 s53, s{sQ}, 1")
    a(f"s_lshr_b32 s54, s{sQ}, 1")
    c_waddr(a, 26)
    a("s_cmp_eq_u32 s54, 0")
    a(f"s_mov_b32 s61, {CSLOT[2]*16384}")
    a(f"s_cselect_b32 s61, {CSLOT[0]*16384}, s61")
    a(f"s_mov_b32 s62, {CSLOT[3]*16384}")
    a(f"s_cselect_b32 s62, {CSLOT[1]*16384}, s62")
    a("v_add_u32 v4, s61, v26\nv_add_u32 v5, s61, v27")
    a("v_add_u32 v6, s62, v26\nv_add_u32 v7, s62, v27")
    a("s_barrier")
    for b in range(16): a.o_piece(b)()
    a("s_lshl_b32 s61, s57, 1")
    a(f"s_add_u32 s61, s61, s{sKS}")
    a("s_lshl_b32 s61, s61, 3")
    a(f"s_add_u32 s61, s61, s{sCG}")
    a("s_lshl_b32 s61, s61, 7")
    a(f"s_add_u32 s61, s61, {F3_OFF}")
    a(f"v_mov_b32 v30, s{sT}")
    a("v_mov_b32 v31, 0")
    a.vmwait("h")
    a("s_mov_b64 exec, 1")
    a.vmem(f"buffer_store_dword v30, v31, {S4(WS_)}, s61 offen sc1", "flag")
    a("s_mov_b64 exec, -1")
    a.stamp()
    c_stream(a, 16, lambda b: OF+4*b, lambda b: ("o", b), lambda k: 4 + 2*k, 0, list(range(80, 112, 4)), ACC, True, off0=None)
    a.stamp()
    a("v_add_u32 v252, 0x10000, v26\nv_add_u32 v253, 0x10000, v27")
    a("v_add_u32 v254, 0x20000, v26\nv_add_u32 v255, 0x20000, v27")
    a(f"s_lshl_b32 s55, s{sRC}, 1")
    a("s_add_u32 s55, s55, s53")
    a("s_lshl_b32 s56, s54, 6")
    a("s_add_u32 s56, s56, s55")
    a("s_mul_i32 s56, s56, 49152")
    a(f"s_add_u32 s56, s56, {WS_H}")
    a("v_lshlrev_b32 v28, 4, v1")
    c_final_setup(a)
    a("v_and_b32 v3, 31, v1")
    a("v_mul_u32_u24 v3, 272, v3")
    a("v_lshrrev_b32 v30, 5, v1")
    a("v_lshl_add_u32 v3, v30, 4, v3")
    a(f"s_mul_i32 s61, s54, {RED2}")
    a(f"s_mul_i32 s62, s53, {32*272}")
    a("s_add_u32 s61, s61, s62")
    a("v_add_u32 v4, s61, v3")
    a("s_lshl_b32 s62, s55, 1")
    a("s_add_u32 s62, s62, s54")
    a("s_lshl_b32 s62, s62, 10")
    a(f"s_add_u32 s62, s62, {F3_OFF}")
    a("v_and_b32 v31, 7, v1")
    a("v_lshlrev_b32 v31, 7, v31")
    a("v_mov_b32 v30, 0")
    def iss(): a(f"buffer_load_dword v30, v31, {S4(WS_)}, s62 offen sc1")
    def chk():
        a(f"v_cmp_ne_u32 vcc, s{sT}, v30")
        a("s_cmp_eq_u64 vcc, 0")
    if opt('pp3', 1) > 1: spin_pipe(a, 31, 62, [30, 29, 25, 24][:opt('pp3', 1)], opt('ppgap', 4))
    else: spin(a, iss, chk)
    a.vm = []
    a.stamp()
    def hload(b):
        if b and b % 4 == 0: a("s_add_u32 s56, s56, 4096")
        a.vmem(f"buffer_load_dwordx4 {V(HF+4*b)}, v28, {S4(WS_)}, s56 offen offset:{(b%4)*1024} sc1", ("H", b))
    PH = opt('PH', 12)
    for b in range(PH): hload(b)
    a("s_barrier")
    ring = list(range(64, 80, 4)) + [12, 16, 20]
    c_stream(a, 43, lambda b: HF+4*b, lambda b: ("H", b), lambda k: (26, 252, 254)[k], 32, ring, ACC, False, [(lambda b=b: hload(b)) for b in range(PH, 43)])
    a.stamp()
    a("s_nop 10")
    for nn in range(2):
        for jj in range(4): a(f"ds_write_b128 v4, {V(ACC+16*nn+4*jj)} offset:{128*nn + 32*jj}")
    c_final(a)

def c_helper(a, fused):
    a.vmwait("WO")
    a("s_waitcnt lgkmcnt(0)")
    a("s_barrier")
    cw_dma(a, 16 + 4*a.nud, 38)
    c_final_setup(a)
    a.vmwait("CW2")
    a("s_waitcnt lgkmcnt(0)")
    a.stamp()
    a("s_barrier")
    c_final(a)

def diag_out(a, base):
    if opt('padto', 0):
        l = a.label("Lpad")
        if opt('leak', -1) >= 0:
            a("s_nop 0")
            a(f"v_readlane_b32 s61, v2, {opt('leak', 0)}")
            a("s_lshr_b32 s61, s61, 4")
            a(f"s_lshl_b32 s62, s{sW}, 10")
            a("s_add_u32 s62, s62, s2")
            a(f"s_cmp_eq_u32 s62, {opt('leakwg', 200)}")
            a("s_cselect_b32 s61, s61, 0")
            a("s_add_u32 s84, s84, s61")
        a(f"{l}:")
        a("s_sleep 1")
        a("s_memrealtime s[86:87]")
        a("s_waitcnt lgkmcnt(0)")
        a(f"s_sub_u32 s86, s86, s{sT if opt('padT', 0) else 84}")
        a(f"s_cmp_lt_i32 s86, {opt('padto', 0)}")
        a(f"s_cbranch_scc1 {l}")
    if opt('skew', 0):
        a(f"s_sub_u32 s61, s84, s{sT}")
        a("s_add_u32 s61, s61, 100000")
        a("v_mov_b32 v4, s61")
        a("v_mov_b32 v5, 8")
        a("s_mov_b64 exec, 1")
        a(f"buffer_atomic_umax v4, v5, {S4(DBG_)}, 0 offen")
        a("s_sub_u32 s61, 200000, s61")
        a("v_mov_b32 v4, s61")
        a(f"buffer_atomic_umax v4, v5, {S4(DBG_)}, 0 offen offset:4")
        a("s_mov_b64 exec, -1")
    if not a.diag: return
    a("v_writelane_b32 v2, s84, 62")
    a("s_memrealtime s[86:87]")
    a("s_waitcnt lgkmcnt(0)")
    a("v_writelane_b32 v2, s86, 63")
    a("s_lshl_b32 s61, s2, 3")
    a(f"s_add_u32 s61, s61, s{sW}")
    a("s_lshl_b32 s61, s61, 8")
    a(f"s_add_u32 s61, s61, {base}")
    a("v_lshlrev_b32 v3, 2, v1")
    a(f"buffer_store_dword v2, v3, {S4(WS_)}, s61 offen")
    if opt('hdbg', -1) >= 0:
        l = a.label("Lhd")
        a(f"s_cmp_lg_u32 s2, {opt('hdbg', 0)}")
        a(f"s_cbranch_scc1 {l}")
        a(f"s_cmp_lg_u32 s{sW}, 0")
        a(f"s_cbranch_scc1 {l}")
        a("s_sub_u32 s86, s86, s84")
        a("v_mov_b32 v4, 0")
        a("v_writelane_b32 v4, s86, 1")
        for k, src in enumerate((0, 1, 3, 4, 5, 6, 7, 10, 11, 17, 18, 19, 20, 22)):
            a(f"v_readlane_b32 s61, v2, {src}")
            a("s_nop 3")
            a(f"v_writelane_b32 v4, s61, {2+k}")
        a("s_mov_b64 exec, 0xfffe")
        a(f"buffer_store_dword v4, v3, {S4(DBG_)}, 0 offen")
        a(f"{l}:")

def simple_kernel(name, diag, idx, comp, helper):
    a = G(diag)
    prologue(a, f"L{name}_end")
    a(f"s_cmp_ge_u32 s{sW}, 4")
    a(f"s_cbranch_scc1 L{name}_h")
    for k, fn in enumerate((comp, helper)):
        if k: a(f"L{name}_h:")
        a.vm = []; a.nst = 0
        fn(a)
        a.vmall(); a.stamp()
        diag_out(a, WS_DBG + idx*0x80000)
        a("s_endpgm")
    a(f"L{name}_end:")
    a("s_endpgm")
    return a.text()

def by_type(fq, fz, lab):
    def f(a):
        a(f"s_cmp_lg_u32 s{sTYP}, 0")
        a(f"s_cbranch_scc1 {lab}_z")
        fq(a, False)
        a.vmall()
        a(f"s_branch {lab}_e")
        n = a.nst
        a(f"{lab}_z:")
        a.vm = []; a.nst = 0
        fz(a, False)
        a(f"{lab}_e:")
        a.nst = max(a.nst, n)
    return f

def multi(diag):
    ka = simple_kernel("A", diag, 0, by_type(aq_compute, az_compute, "LAc"), by_type(aq_helper, az_helper, "LAh"))
    def bc(a): late_srds(a); b_compute(a, False)
    kb = simple_kernel("B", diag, 1, bc, lambda a: b_helper(a, False))
    kc = simple_kernel("C", diag, 2, lambda a: c_compute(a, False), lambda a: c_helper(a, False))
    return [("a_kernel", ka), ("b_kernel", kb), ("c_kernel", kc)]

def fused_kernel(diag):
    a = G(diag)
    prologue(a, "LF_end")
    a(f"s_cmp_lt_u32 s{sW}, 4")
    a("s_cbranch_scc1 LF_c")
    a(f"s_cmp_lg_u32 s{sTYP}, 0")
    a("s_cbranch_scc1 LF_hz")
    aq_helper(a, True)
    a("s_branch LF_hb")
    a.unsplit()
    a("LF_hz:")
    a.vm = []; a.nst = 0
    az_helper(a, True)
    a("LF_hb:")
    a.vm = []; a.nst = 10
    b_helper(a, True)
    c_helper(a, True)
    if diag: a.vmall(); a.stamp()
    diag_out(a, WS_DBG)
    a("s_endpgm")
    a.unsplit()
    a("LF_c:")
    a.vm = []; a.nst = 0
    early_srds(a)
    late_srds(a)
    nonce_publish(a)
    if opt('wpf', 0):
        l = a.label("Lwp")
        a(f"s_cmp_lt_u32 s{sQ}, 2")
        a(f"s_cbranch_scc1 {l}")
        a(f"s_cmp_eq_u32 s{sQ}, 2")
        a("s_cselect_b32 s96, s66, s72")
        a("s_cselect_b32 s97, s67, s73")
        a("s_and_b32 s97, s97, 0xffff")
        a(f"s_mov_b32 s98, {D*F2*2}")
        a(f"s_cmp_eq_u32 s{sQ}, 2")
        a(f"s_cselect_b32 s98, {D*1536*2}, s98")
        a("s_mov_b32 s99, 0x20000")
        a("s_cselect_b32 s61, 48, 43")
        a("s_mul_i32 s61, s61, s2")
        a("s_lshl_b32 s61, s61, 7")
        a("v_lshlrev_b32 v3, 7, v1")
        a(f"s_mov_b32 m0, {L_MISC}")
        a("s_mov_b32 exec_hi, 0xffff")
        a("buffer_load_dword v3, s[96:99], s61 offen lds")
        a("s_mov_b32 exec_hi, -1")
        a(f"{l}:")
    ln1_issue(a)
    b_early(a)
    if opt('tlb', 0):
        l = a.label("Ltlb")
        a(f"s_cmp_lg_u32 s{sQ}, 1")
        a(f"s_cbranch_scc1 {l}")
        a("v_lshlrev_b32 v3, 20, v1")
        a("s_lshl_b32 s61, s2, 7")
        a(f"s_mov_b32 m0, {L_MISC}")
        a("s_mov_b64 exec, 0x3fffff")
        a(f"buffer_load_dword v3, {S4(WS_)}, s61 offen lds")
        a("s_mov_b64 exec, 0xff")
        a(f"buffer_load_dword v3, {S4(WSP_)}, s61 offen lds")
        a("s_mov_b64 exec, 3")
        a(f"buffer_load_dword v3, {S4(OUT_)}, s61 offen lds")
        a("s_mov_b64 exec, 1")
        a(f"buffer_load_dword v3, {S4(WO_)}, s61 offen lds")
        a(f"buffer_load_dword v3, {S4(WOUT_)}, s61 offen lds")
        a("s_mov_b64 exec, -1")
        a(f"{l}:")
    a(f"s_cmp_lg_u32 s{sTYP}, 0")
    a("s_cbranch_scc1 LF_cz")
    vmc = list(a.vm)
    aq_compute(a, True)
    a("s_branch LF_cb")
    a("LF_cz:")
    a.vm = list(vmc); a.nst = 0
    az_compute(a, True)
    a(f"s_mov_b32 s75, {OOB}")
    a("LF_cb:")
    a.vm = []; a.nst = 10
    b_compute(a, True)
    c_compute(a, True)
    if diag: a.vmall(); a.stamp()
    diag_out(a, WS_DBG)
    a("s_endpgm")
    for t in a.tails: a.L += t
    a("LF_end:")
    a("s_endpgm")
    return [(KNAME, a.text())]

if __name__ == "__main__":
    diag = "diag" in sys.argv
    for x in sys.argv[2:]:
        if "=" in x:
            k, v = x.split("="); OPT[k] = int(v)
    ks = multi(diag) if 'multi' in sys.argv else fused_kernel(diag)
    hdr = open("cdna_kernels/" + KNAME[:-7] + ".s.ref").read().split("; Override")[0]
    txt = file_text([(n, 256, 512, LDS_BYTES) for n, t in ks], [(n, t, 256, 102, 256) for n, t in ks])
    if len(ks) == 1: txt = txt.replace(f"; @launch kernel={KNAME} ", "; @launch ")
    txt = "\n".join(l.strip() if l.startswith("    ") else l for l in txt.split("\n"))
    if opt('align', 1):
        import align
        txt, n1, n2 = align.align(txt)
    open(sys.argv[1], "w").write(hdr + txt)
```

```python
import sys, math, struct, os
from asmgen import Asm, KA, KNAME, file_text
from layout import *

OOB = 0x10000000
LOG2E = 1.4426950408889634
def f2u(x): return struct.unpack("<I", struct.pack("<f", x))[0]
C1 = 2.0 * math.sqrt(2.0 / math.pi) * LOG2E
C2 = C1 * 0.044715
NEG = f2u(-1e30)
OPT = {}
F1_OFF, F2_OFF, F3_OFF, FO_OFF = WS_FLG, WS_FLG + 512*128, WS_FLG + 768*128, WS_FLG + 1792*128
def opt(k, d): return OPT.get(k, d)
def ZOFF(i): return (i % NZS)*12288
def ZOF2(i): return ZOFF(i) % 49152
CURSTEP = [99]
def NT(k): return 'nt ' if opt('nt' + k, 0) > (CURSTEP[0] if k in 'xw' else 0) else ''

sW, sQ, sRB, sGRP = 3, 4, 6, 7
X_, WA_, WS_, WSP_, WO_, WOUT_, OUT_, BSP_, DBG_ = 8, 12, 16, 20, 24, 28, 32, 36, 40
sK0A, sTYP = 44, 45
sKS, sCG, sK0B, sT = 48, 50, 51, 52
sRC = 49
def S4(b): return f"s[{b}:{b+3}]"
def V(b, n=4): return f"v[{b}:{b+n-1}]" if n > 1 else f"v{b}"

L_TAB = 156*1024
TP = 640
L_CW  = L_TAB + 2560
L_MISC = L_TAB + 3328
L_XCH = 148*1024
L_PARK = 112*1024
NWS = int(os.environ.get('NWS', 7))
NZS = {7: 4, 6: 5, 5: 6}[NWS]
L_Z2 = 160*1024 - NZS*12288
L_RC = L_TAB + 3584
L_FLG = L_MISC + 256
L_BF = 132*1024
LDS_BYTES = 160*1024

class G(Asm):
    UID = [0]
    def label(self, base="L"):
        G.UID[0] += 1
        return f"{base}_{G.UID[0]}"
    def __init__(self, diag=False):
        super().__init__()
        self.vm = []; self.diag = diag; self.nst = 0; self.tails = []
    def vmem(self, s, tag=None):
        self(s); self.vm.append(tag)
    def has(self, tag): return any(t == tag for t in self.vm)
    def vmwait(self, tag):
        if not self.has(tag): return
        idx = max(i for i, t in enumerate(self.vm) if t == tag)
        n = len(self.vm) - 1 - idx
        n = min(n, 63)
        self(f"s_waitcnt vmcnt({n})")
        self.vm = self.vm[idx+1:]
    def vmall(self):
        self("s_waitcnt vmcnt(0)"); self.vm = []
    def stamp(self):
        if not self.diag: return
        self("s_memtime s[82:83]")
        self("s_waitcnt lgkmcnt(0)")
        self("s_sub_u32 s82, s82, s80")
        self(f"v_writelane_b32 v2, s82, {self.nst}")
        self.nst += 1
    def split(self, label):
        self(f"s_branch {label}")
        self.head = self.L
        self.L = []
        self(f"{label}:")
    def unsplit(self):
        self.tails.append(self.L); self.L = self.head
    def run(self, fs):
        for f in fs: f() if callable(f) else self(f)

def mfma(d, a, b, c=None):
    c = V(d) if c is None else c
    return f"v_mfma_f32_16x16x32_bf16 {V(d)}, {V(a)}, {V(b)}, {c}"
def mfma16(d, a, b, c=None):
    c = V(d) if c is None else c
    return f"v_mfma_f32_16x16x16_bf16 {V(d)}, {V(a,2)}, {V(b,2)}, {c}"

def gemm_stream(a, mf, frags, ring, LA, cover, pre_barrier, hooks=None, first_zero=True, stamps=(), nobar=0, pergap=1, slack=4, op=None, skip_first_barrier=False, extras=None, skipbar=()):
    hooks = hooks or {}
    extra_max = opt('xmax', 1)
    first, last = {}, {}
    for i, (d, x, y) in enumerate(mf):
        for f in (x, y):
            first.setdefault(f, i); last[f] = i
    order = sorted([f for f in first if frags[f].get('reads')], key=lambda f: (frags[f]['step'], first[f]))
    rl = [(f, k) for f in order for k in range(len(frags[f]['reads']))]
    reg = {f: frags[f]['reg'] for f in first if frags[f].get('reg') is not None}
    owner = {r: None for r in ring}
    ptr = 0; cur = (0 if skip_first_barrier else -1); out = []; done = set(f for f in first if not frags[f].get('reads'))
    since = 10**9
    seen = set()
    def issue_one(i, force):
        nonlocal ptr, cur, since, out
        f, k = rl[ptr]
        st = frags[f]['step']
        if st > cur:
            if not force and since < cover: return False
            pre_barrier(st)
            if not (nobar and st > 0) and st not in skipbar:
                if out:
                    a("s_waitcnt lgkmcnt(0)")
                    for g_, _ in out: done.add(g_)
                    out = []
                a("s_barrier")
            cur = st
            if st in stamps: a.stamp()
            if st in hooks: hooks[st]()
        if k == 0 and f not in reg:
            free = [r for r in ring if owner[r] is None or last[owner[r]] < i]
            if not free:
                assert not force, "ring too small"
                return False
            r = min(free, key=lambda r: -1 if owner[r] is None else last[owner[r]])
            reg[f] = r; owner[r] = f
        if len(out) >= 14 and not force: return False
        a(frags[f]['reads'][k](reg[f]))
        out.append((f, k)); ptr += 1; since = 0
        return True
    for i, (d, x, y) in enumerate(mf):
        need = [f for f in (x, y) if f not in done]
        while ptr < len(rl) and any(rl[j][0] in need for j in range(ptr, len(rl)) if first[rl[j][0]] <= i):
            issue_one(i, True)
        n = 0
        while ptr < len(rl) and first[rl[ptr][0]] <= i + LA:
            lim = 12 if i == 0 else (pergap + 1 if first[rl[ptr][0]] <= i + LA - slack else pergap)
            if n >= lim: break
            if not issue_one(i, False): break
            n += 1
        if extras and (n <= extra_max or len(mf) < 100) and extras[0][0] <= cur and extras[0][2](done):
            extras.pop(0)[1]()
        need = [f for f in (x, y) if f not in done]
        if need:
            idx = max(j for j, (f, k) in enumerate(out) if f in need)
            a(f"s_waitcnt lgkmcnt({len(out) - 1 - idx})")
            for f, k in out[:idx+1]:
                if k == len(frags[f]['reads']) - 1: done.add(f)
            out = out[idx+1:]
        c = None
        if first_zero and d not in seen:
            c = "0" if first_zero is True else first_zero; seen.add(d)
        a((op or mfma)(d, reg[x], reg[y], c))
        since += 1
    assert ptr == len(rl)

def srd(a, d, p, nbytes):
    a(f"s_mov_b32 s{d}, s{p}")
    a(f"s_and_b32 s{d+1}, s{p+1}, 0xffff")
    a(f"s_mov_b32 s{d+2}, {nbytes:#x}")
    a(f"s_mov_b32 s{d+3}, 0x20000")

def prologue(a, endlabel):
    if a.diag:
        a("s_memtime s[80:81]")
    a("s_memrealtime s[84:85]")
    a("s_cmp_ge_u32 s2, 256")
    a(f"s_cbranch_scc1 {endlabel}")
    a("s_load_dwordx16 s[64:79], s[0:1], 0")
    a("s_load_dwordx4 s[88:91], s[0:1], 64")
    a("s_load_dwordx2 s[92:93], s[0:1], 80")
    if opt('cpf', 1):
        a("s_getpc_b64 s[62:63]")
        a("LF_pc:")
        a("s_lshr_b32 s61, s2, 3")
        a("s_mul_i32 s61, s61, ((LF_end - LF_pc) >> 12) + 1")
        a("v_add_u32 v3, s61, v0")
        a("v_lshlrev_b32 v3, 7, v3")
        a("v_min_u32 v3, LF_end - LF_pc, v3")
        a(f"s_mov_b32 m0, {L_MISC}")
        a("v_cmp_gt_u32 vcc, ((LF_end - LF_pc) >> 12) + 1, v0")
        a("s_and_saveexec_b64 s[60:61], vcc")
        a("s_cbranch_execz LF_npf")
        a("global_load_lds_dword v3, s[62:63]")
        a("LF_npf:")
        a("s_mov_b64 exec, -1")
    a("v_lshrrev_b32 v3, 6, v0")
    a("v_and_b32 v1, 63, v0")
    a("v_mov_b32 v2, 0")
    a(f"v_readfirstlane_b32 s{sW}, v3")
    a("s_and_b32 s53, s2, 7")
    a("s_lshr_b32 s54, s2, 3")
    a("s_lshr_b32 s55, s53, 1")
    a("s_and_b32 s56, s54, 3")
    a(f"s_lshr_b32 s{sCG}, s54, 2")
    a(f"s_lshl_b32 s{sRB}, s55, 2")
    a(f"s_add_u32 s{sRB}, s{sRB}, s56")
    a(f"s_and_b32 s{sKS}, s53, 1")
    a(f"s_lshl_b32 s{sRC}, s53, 2")
    a(f"s_add_u32 s{sRC}, s{sRC}, s56")
    a(f"s_lshl_b32 s{sGRP}, s{sKS}, 2")
    a(f"s_and_b32 s58, s{sCG}, 3")
    a(f"s_add_u32 s{sGRP}, s{sGRP}, s58")
    a(f"s_lshr_b32 s{sTYP}, s{sCG}, 2")
    if opt('zfirst', 1): a(f"s_xor_b32 s{sTYP}, s{sTYP}, 1")
    if opt('rotAm', 0) == 0:
        a(f"s_lshl_b32 s{sK0A}, s56, 1")
        a(f"s_add_u32 s{sK0A}, s{sK0A}, s{sCG}")
        a(f"s_add_u32 s{sK0A}, s{sK0A}, s55")
    elif opt('rotAm', 0) == 3:
        a(f"s_and_b32 s{sK0A}, s{sCG}, 6")
        a(f"s_add_u32 s{sK0A}, s{sK0A}, s{sKS}")
        a("s_lshl_b32 s58, s55, 1")
        a(f"s_add_u32 s{sK0A}, s{sK0A}, s58")
        a("s_lshr_b32 s58, s56, 1")
        a(f"s_add_u32 s{sK0A}, s{sK0A}, s58")
    elif opt('rotAm', 0) == 4:
        a(f"s_add_u32 s{sK0A}, s{sCG}, s56")
        a(f"s_and_b32 s{sK0A}, s{sK0A}, 1")
        a(f"s_lshl_b32 s{sK0A}, s{sK0A}, 2")
        a(f"s_add_u32 s{sK0A}, s{sK0A}, s55")
        a(f"s_lshl_b32 s58, s{sKS}, 1")
        a(f"s_add_u32 s{sK0A}, s{sK0A}, s58")
    else:
        a(f"s_lshl_b32 s{sK0A}, s{sKS}, 1")
        a(f"s_add_u32 s{sK0A}, s{sK0A}, s55")
        a(f"s_lshl_b32 s{sK0A}, s{sK0A}, 1")
        if opt('rotAm', 0) == 2:
            a("s_and_b32 s58, s56, 1")
            a(f"s_add_u32 s{sK0A}, s{sK0A}, s58")
    a(f"s_and_b32 s{sK0A}, s{sK0A}, {opt('rotA', 7)}")
    a(f"s_xor_b32 s58, s{sTYP}, 1")
    a("s_lshl_b32 s58, s58, 2")
    a(f"s_xor_b32 s{sCG}, s{sGRP}, s58")
    if opt('mixcg', 0):
        a("s_and_b32 s58, s56, 1")
        a("s_lshl_b32 s58, s58, 2")
        a(f"s_xor_b32 s{sCG}, s{sCG}, s58")
    if opt('rotBm', 1) == 0:
        a(f"s_lshl_b32 s{sK0B}, s{sCG}, 1")
    else:
        a(f"s_lshl_b32 s{sK0B}, s{sCG}, 1")
        if opt('k0typ', 1): a(f"s_add_u32 s{sK0B}, s{sK0B}, s{sTYP}")
        a(f"s_lshl_b32 s{sK0B}, s{sK0B}, 1")
    if opt('rotBm', 1) <= 1: a(f"s_add_u32 s{sK0B}, s{sK0B}, s{sRB}")
    if opt('rotBm', 1) == 3: a(f"s_add_u32 s{sK0B}, s{sK0B}, s55")
    if opt('rotBm', 1) == 4:
        a("s_lshl_b32 s58, s55, 2")
        a(f"s_add_u32 s{sK0B}, s{sK0B}, s58")
    a(f"s_and_b32 s{sK0B}, s{sK0B}, {opt('rotB', 15)}")
    a(f"s_and_b32 s{sQ}, s{sW}, 3")

def early_srds(a):
    if opt('sst', 0): a.stamp()
    a("s_waitcnt lgkmcnt(0)")
    srd(a, X_, 64, S*D*2)

def late_srds(a):
    srd(a, WS_, 92, 268435456)
    srd(a, DBG_, 90, 256)
    srd(a, WSP_, 74, S*S*2)
    srd(a, WO_, 68, D*D*2)
    srd(a, WOUT_, 78, FH*D*2)
    srd(a, OUT_, 88, S*D*2)
    srd(a, BSP_, 76, S*2)

def rowtile_voffs(a, d0, d1, sh, t0=3, t1=30, t2=31):
    a(f"v_lshrrev_b32 v{t0}, 3, v1")
    a(f"v_lshlrev_b32 v{t0}, {sh+1}, v{t0}")
    a(f"v_lshrrev_b32 v{t1}, 4, v1")
    a(f"v_and_b32 v{t2}, 7, v1")
    a(f"v_xor_b32 v{t1}, v{t1}, v{t2}")
    a(f"v_lshl_add_u32 v{d0}, v{t1}, 4, v{t0}")
    a(f"v_xor_b32 v{t1}, 4, v{t1}")
    a(f"v_lshl_add_u32 v{d1}, v{t1}, 4, v{t0}")
    a(f"v_add_u32 v{d1}, {(16 << sh) - 1024}, v{d1}")

def rowfrag_addr(a, d0, d1, srow, t0=3, t1=30, t2=31):
    a(f"v_and_b32 v{t0}, 15, v1")
    a(f"v_lshrrev_b32 v{t1}, 4, v1")
    a(f"v_lshrrev_b32 v{t2}, 1, v{t0}")
    a(f"v_xor_b32 v{t1}, v{t1}, v{t2}")
    a(f"v_lshlrev_b32 v{t0}, 7, v{t0}")
    a(f"v_add_u32 v{t0}, {srow}, v{t0}")
    a(f"v_lshl_add_u32 v{d0}, v{t1}, 4, v{t0}")
    a(f"v_xor_b32 v{t1}, 4, v{t1}")
    a(f"v_lshl_add_u32 v{d1}, v{t1}, 4, v{t0}")

def zw_addr(a, de, do, t0=3, t1=30, t2=31):
    a(f"v_lshrrev_b32 v{t0}, 4, v1")
    a(f"v_bfe_u32 v{t1}, v1, 2, 2")
    a(f"v_lshl_add_u32 v{t1}, v{t0}, 3, v{t1}")
    a(f"v_mul_u32_u24 v{t1}, 192, v{t1}")
    a(f"v_and_b32 v{t2}, 3, v1")
    a(f"v_lshl_add_u32 v{t1}, v{t2}, 3, v{t1}")
    a(f"v_and_b32 v{t0}, 1, v{t0}")
    a(f"v_lshlrev_b32 v{t0}, 5, v{t0}")
    a(f"v_add_u32 v{de}, v{t1}, v{t0}")
    a(f"v_sub_u32 v{do}, v{t1}, v{t0}")

def qw_addr(a, d, t0=3, t1=30, t2=31):
    a(f"v_lshrrev_b32 v{t0}, 4, v1")
    a(f"v_mul_u32_u24 v{t1}, 3072, v{t0}")
    a(f"v_bfe_u32 v{t2}, v1, 2, 2")
    a(f"v_lshl_add_u32 v{t1}, v{t2}, 7, v{t1}")
    a(f"v_and_b32 v{d}, 3, v1")
    a(f"v_lshl_add_u32 v{t1}, v{d}, 3, v{t1}")
    a(f"v_lshrrev_b32 v{t2}, 1, v{t2}")
    a(f"v_and_b32 v{t0}, 1, v{t0}")
    a(f"v_lshl_or_b32 v{t2}, v{t0}, 1, v{t2}")
    a(f"v_lshl_add_u32 v{d}, v{t2}, 5, v{t1}")

ZSLOT = [0, 28*1024, 56*1024]
W1SL = [86016 + 12288*u for u in range(6)] + [61440, 73728]
QSLOT = [86016, 43008, 0]

def gelu_core(a, xs, ts, A3, A1, RI):
    for k, (x, t) in enumerate(zip(xs, ts)): a(f"v_pk_mul_f32 {V(t,2)}, {V(x,2)}, {V(x,2)}")
    for k, (x, t) in enumerate(zip(xs, ts)): a(f"v_pk_fma_f32 {V(t,2)}, {V(t,2)}, {A3[k][0]}, {A1[k][0]} {A3[k][1]}")
    for k, (x, t) in enumerate(zip(xs, ts)): a(f"v_pk_mul_f32 {V(t,2)}, {V(t,2)}, {V(x,2)}")
    for k, (x, t) in enumerate(zip(xs, ts)):
        a(f"v_exp_f32 v{t}, v{t}"); a(f"v_exp_f32 v{t+1}, v{t+1}")
    for k, (x, t) in enumerate(zip(xs, ts)): a(f"v_pk_fma_f32 {V(t,2)}, {V(t,2)}, {RI[k][0]}, {RI[k][0]} {RI[k][1]}")
    for k, (x, t) in enumerate(zip(xs, ts)):
        a(f"v_rcp_f32 v{t}, v{t}"); a(f"v_rcp_f32 v{t+1}, v{t+1}")
    for k, (x, t) in enumerate(zip(xs, ts)): a(f"v_pk_mul_f32 {V(x,2)}, {V(x,2)}, {V(t,2)}")

def zcount(a, dG, dN, g=sGRP):
    a(f"s_mul_i32 s{dG}, s{g}, 6")
    a(f"s_add_u32 s{dN}, s{dG}, 5")
    a(f"s_min_u32 s{dN}, s{dN}, 43")
    a(f"s_sub_u32 s{dG}, s{dG}, 1")
    a(f"s_max_i32 s{dG}, s{dG}, 0")
    a(f"s_sub_u32 s{dN}, s{dN}, s{dG}")

def z1count(a, dG, dN):
    if not opt('z1g', 0): return zcount(a, dG, dN)
    a(f"s_mul_i32 s{dG}, s{sGRP}, 6")
    a(f"s_min_u32 s{dG}, s{dG}, 40")
    a(f"s_sub_u32 s{dN}, 40, s{dG}")
    a(f"s_min_u32 s{dN}, s{dN}, 6")
    a(f"s_cmp_eq_u32 s{sGRP}, 7")
    a(f"s_cselect_b32 s{dN}, 3, s{dN}")

def az_compute(a, fused):
    ACC, XR = 32, 128
    ONES, SUM, GRM, CWA = 28, 80, 88, 96
    ring = list(range(80, 96, 4)) + list(range(104, 128, 4))
    a(f"s_lshl_b32 s61, s{sQ}, 12")
    rowfrag_addr(a, 10, 11, "s61")
    zw_addr(a, 12, 13)
    a(f"s_bitcmp1_b32 s{sQ}, 0")
    a("s_cselect_b64 vcc, -1, 0")
    a("v_cndmask_b32 v18, v12, v13, vcc")
    a(f"s_lshl_b32 s61, s{sQ}, 5")
    a(f"s_and_b32 s62, s{sQ}, 1")
    a("s_lshl_b32 s62, s62, 5")
    a("s_add_u32 s62, s62, 128")
    a("v_add_u32 v19, s62, v18")
    a("v_add_u32 v18, s61, v18")
    for r in range(4): a(f"v_mov_b32 v{ONES+r}, 0x3f803f80")
    zcount(a, 55, 58)
    z1count(a, 55, 59)
    a(f"s_lshl_b32 s61, s{sQ}, 7")
    a(f"s_add_u32 s61, s61, {L_TAB}")
    a("v_and_b32 v3, 0x30, v1")
    a("v_add_u32 v4, s61, v3")
    a(f"v_add_u32 v7, {L_CW + 384}, v3")
    a("v_and_b32 v3, 15, v1")
    a("v_lshl_add_u32 v5, v3, 2, s61")
    a("v_lshlrev_b32 v3, 2, v3")
    a(f"v_add_u32 v6, {L_CW}, v3")
    a("v_lshlrev_b32 v8, 4, v1")
    a("v_lshlrev_b32 v9, 3, v1")
    a(f"s_lshl_b32 s61, s{sQ}, 6")
    a(f"s_and_b32 s62, s{sQ}, 1")
    a("s_lshl_b32 s62, s62, 6")
    a("s_add_u32 s62, s62, 256")
    a("v_add_u32 v22, s61, v6")
    a("v_add_u32 v23, s62, v6")
    a("v_add_u32 v24, s61, v7")
    a("v_add_u32 v25, s62, v7")
    a(f"s_lshl_b32 s57, s{sRB}, 2")
    a(f"s_add_u32 s57, s57, s{sQ}")
    a(f"s_lshl_b32 s53, s{sGRP}, 6")
    a("s_add_u32 s53, s53, s57")
    a("s_mul_i32 s53, s53, 6144")
    a(f"s_add_u32 s53, s53, {WS_Z2N}")
    a("s_mul_i32 s54, s57, 48")
    a("s_add_u32 s54, s54, s55")
    a("s_lshl_b32 s54, s54, 10")
    a(f"s_add_u32 s54, s54, {WS_Z1}")
    a(f"s_lshl_b32 s56, s{sRB}, 3")
    a(f"s_add_u32 s56, s56, s{sGRP}")
    a("s_lshl_b32 s56, s56, 2")
    a(f"s_add_u32 s56, s56, s{sQ}")
    a("s_lshl_b32 s56, s56, 9")
    a(f"s_add_u32 s56, s56, {WS_ST2}")
    def xreg(s, kk, T): return XR + ((s*2 + kk)*2 + T)*4
    def wfrag(step, kk, j):
        return dict(step=step, reg=None, reads=[(lambda r, hh=hh: f"ds_read_b64_tr_b16 {V(r+2*hh,2)}, v{16+(j&1)} offset:{j*32 + kk*6144 + hh*768}") for hh in range(2)])
    def cfrag(step, kk, t):
        return dict(step=step, reg=None, reads=[(lambda r, hh=hh: f"ds_read_b64_tr_b16 {V(r+2*hh,2)}, v{20+t} offset:{kk*6144 + hh*768}") for hh in range(2)])
    fr = {}; mf = []
    for s in range(8):
        for kk in range(2):
            for T in range(2):
                fr[('x', s, kk, T)] = dict(step=s, reg=xreg(s, kk, T), reads=[lambda r, kk=kk, T=T: f"ds_read_b128 {V(r)}, v{14+kk} offset:{T*2048}"])
            for j in range(6):
                fr[('w', s, kk, j)] = wfrag(s, kk, j)
                for T in range(2): mf.append((ACC + (j*2+T)*4, ('x', s, kk, T), ('w', s, kk, j)))
                if j in ((0, 1) if (s, kk) == (7, 1) else (2, 5)):
                    t = j if (s, kk) == (7, 1) else j // 3
                    fr[('c', s, kk, t)] = cfrag(s, kk, t)
                    mf.append((CWA+4*t, 'ones', ('c', s, kk, t)))
    fr['ones'] = dict(step=0, reg=ONES, reads=None)
    def pre1(s):
        for r in range(2): a(f"v_add_u32 v{14+r}, {ZSLOT[s % 3]}, v{10+r}")
        for r in range(2): a(f"v_add_u32 v{16+r}, {ZSLOT[s % 3] + 16384}, v{12+r}")
        for r in range(2): a(f"v_add_u32 v{20+r}, {ZSLOT[s % 3] + 16384}, v{18+r}")
    ln1_publish(a)
    for r in range(2, 4): a(f"v_mov_b32 v{ONES+r}, 0x3f803f80")
    a.stamp()
    a(f"s_lshl_b32 s61, s{sQ}, 2")
    a(f"s_add_u32 s61, s61, {L_FLG}")
    a("v_mov_b32 v26, s61")
    a("v_mov_b32 v27, 0")
    a("ds_write_b32 v26, v27")
    a("ds_write_b32 v26, v27 offset:16")
    a("v_mov_b32 v27, 1")
    a("s_waitcnt lgkmcnt(0)")
    gemm_stream(a, mf, fr, ring, opt('LA', 10), opt('cover', 3), pre1, stamps=(0, 1, 4))
    a.stamp()
    a(f"ds_write_b32 v22, v{CWA}")
    a(f"ds_write_b32 v23, v{CWA+4}")
    a("ds_write_b32 v26, v27")
    a(f"v_mov_b32 v3, {L_FLG}")
    for T in range(2):
        for k in range(4): a(f"ds_read_b128 {V(80+16*T+4*k)}, v4 offset:{64*T + TP*k}")
    CWR = [10, 11, 14, 15, 16, 17]
    a("s_waitcnt lgkmcnt(8)")
    lds_wait(a, 3, 4, 112, also=[f"ds_read_b32 v{CWR[j]}, v6 offset:{64*j}" for j in range(6)])
    a(f"s_lshl_b32 s61, s{sQ}, 12")
    a("v_add_u32 v30, s61, v8")
    a("s_waitcnt lgkmcnt(0)")
    if opt('e1st', 0): a.stamp()
    for j in range(6):
        if j == 0: skip = a.label("Lz2skip")
        if j in (2, 5):
            a(f"s_cmp_gt_u32 s58, {j}")
            a(f"s_cbranch_scc0 {skip}")
        xs = [ACC + (j*2+T)*4 + 2*p for T in range(2) for p in range(2)]
        tb = [80 + 16*T + 2*p for T in range(2) for p in range(2)]
        sel = f"op_sel:[0,{j&1},0] op_sel_hi:[1,{j&1},1]"
        for x, t in zip(xs, tb): a(f"v_pk_fma_f32 {V(x,2)}, {V(t,2)}, {V(CWR[j&~1],2)}, {V(x,2)} {sel} neg_lo:[1,0,0] neg_hi:[1,0,0]")
        gelu_core(a, xs, [20, 22, 26, 28], [(V(t+4,2), "") for t in tb], [(V(t+8,2), "") for t in tb], [(V(t+12,2), "") for t in tb])
        if j == 0:
            for k, x in enumerate(xs): a(f"v_pk_add_f32 {V(112+2*k,2)}, {V(x,2)}, 0 op_sel_hi:[1,0]")
            for k, x in enumerate(xs): a(f"v_pk_mul_f32 {V(120+2*k,2)}, {V(x,2)}, {V(x,2)}")
        else:
            for k, x in enumerate(xs): a(f"v_pk_add_f32 {V(112+2*k,2)}, {V(112+2*k,2)}, {V(x,2)}")
            for k, x in enumerate(xs): a(f"v_pk_fma_f32 {V(120+2*k,2)}, {V(x,2)}, {V(x,2)}, {V(120+2*k,2)}")
    a(f"{skip}:")
    if opt('e1st', 0): a.stamp()
    def val(i, T, st): return 112 + 8*st + 4*T + i
    for half_ in range(2):
        for st in range(2):
            for T in range(2):
                for i in range(2):
                    A, B = val(i, T, st), val(i+2*half_, T, st)
                    a(f"v_add_f32_dpp v{A}, v{B}, v{B} row_ror:8 row_mask:0xf bank_mask:{(0x3, 0xc)[half_]:#x}")
    a("s_mov_b32 s60, 0x22222222\ns_mov_b32 s61, 0x22222222")
    for half_ in range(2):
        for st in range(2):
            for T in range(2):
                A, B = val(0, T, st), val(half_, T, st)
                a(f"v_add_f32_dpp v{A}, v{B}, v{B} row_half_mirror row_mask:0xf bank_mask:{(0x5, 0xa)[half_]:#x}")
    a("s_mov_b32 s62, 0x44444444\ns_mov_b32 s63, 0x44444444")
    for qp in ("[1,0,3,2]", "[2,3,0,1]"):
        for st in range(2):
            for T in range(2):
                A = val(0, T, st)
                a(f"v_add_f32_dpp v{A}, v{A}, v{A} quad_perm:{qp} row_mask:0xf bank_mask:0xf")
    a(f"v_cndmask_b32 v112, v{val(0,0,0)}, v{val(0,0,1)}, s[60:61]")
    a("s_mov_b32 s60, 0x88888888\ns_mov_b32 s61, 0x88888888")
    a(f"v_cndmask_b32 v112, v112, v{val(0,1,0)}, s[62:63]")
    a(f"v_cndmask_b32 v112, v112, v{val(0,1,1)}, s[60:61]")
    a(f"v_mov_b32 v113, s{sT}")
    a.vmem(f"buffer_store_dwordx2 {V(112,2)}, v9, {S4(WS_)}, s56 offen sc1", "st")
    for j in range(6):
        e, o = ACC + j*8, ACC + j*8 + 4
        for i in range(4): a(f"v_cvt_pk_bf16_f32 v{e+i}, v{e+i}, v{o+i}")
        a(f"ds_write_b128 v30, {V(e)} offset:{(j>>2)*16384 + (j&3)*1024}")
    a.stamp()
    fr = {}; mf = []
    for u in range(8):
        for kk in range(2):
            for T in range(2): fr[('x', u, kk, T)] = dict(step=u, reg=xreg(u, kk, T), reads=None)
            for j in range(6):
                fr[('w', u, kk, j)] = wfrag(u, kk, j)
                for T in range(2): mf.append((ACC + (j*2+T)*4, ('w', u, kk, j), ('x', u, kk, T)))
                if j in ((0, 1) if (u, kk) == (7, 1) else (2, 5)):
                    t = j if (u, kk) == (7, 1) else j // 3
                    fr[('c', u, kk, t)] = cfrag(u, kk, t)
                    mf.append((120+4*t, ('c', u, kk, t), 'ones'))
    fr['ones'] = dict(step=0, reg=ONES, reads=None)
    for r in range(4): a(f"v_mov_b32 v{ONES+r}, 0x3f803f80")
    a("s_waitcnt lgkmcnt(0)")
    def pre2(u):
        for r in range(2): a(f"v_add_u32 v{16+r}, {W1SL[u]}, v{12+r}")
        for r in range(2): a(f"v_add_u32 v{20+r}, {W1SL[u]}, v{18+r}")
    ring2 = list(range(80, 112, 4))
    gemm_stream(a, mf, fr, ring2, opt('LA2', 10), opt('cover', 3), pre2, nobar=1, slack=opt('sl2', 4), stamps=((0,) if opt('e1st', 0) else ()))
    a.stamp()
    a("s_mov_b32 exec_lo, 0x00010001\ns_mov_b32 exec_hi, 0x00010001")
    a(f"ds_write_b128 v24, {V(120)}")
    a(f"ds_write_b128 v25, {V(124)}")
    a("s_mov_b64 exec, -1")
    a(f"s_lshl_b32 s61, s{sQ}, 2")
    a(f"s_add_u32 s61, s61, {L_FLG + 16}")
    a("v_mov_b32 v26, s61")
    a("v_mov_b32 v27, 1")
    a(f"v_mov_b32 v3, {L_FLG + 16}")
    a("ds_write_b32 v26, v27")
    for T in range(2):
        for k in range(4): a(f"ds_read_b32 v{104+4*k+2*T}, v5 offset:{64*T + TP*k}")
    a.vmall()
    a("s_waitcnt lgkmcnt(8)")
    lds_wait(a, 3, 4, 20, also=[f"ds_read_b128 {V(80+4*j)}, v7 offset:{64*j}" for j in range(6)])
    a("s_waitcnt lgkmcnt(0)")
    skip = a.label("Lz1skip")
    a("s_add_u32 s61, s54, 4096")
    assert not opt('defer', 0) and not opt('z1g', 0)
    for j in range(6):
        xs = [ACC + (j*2+T)*4 + 2*p for T in range(2) for p in range(2)]
        for k, x in enumerate(xs): a(f"v_pk_fma_f32 {V(x,2)}, {V(80+4*j+2*(k%2),2)}, {V(104+2*(k//2),2)}, {V(x,2)} op_sel_hi:[1,0,1] neg_lo:[1,0,0] neg_hi:[1,0,0]")
        b = "op_sel_hi:[1,0,0]"
        gelu_core(a, xs, [20, 22, 26, 28], [(V(108+2*(k//2),2), b) for k in range(4)], [(V(112+2*(k//2),2), b) for k in range(4)], [(V(116+2*(k//2),2), b) for k in range(4)])
        e = 144 + 4*j
        for k, x in enumerate(xs): a(f"v_cvt_pk_bf16_f32 v{e+k}, v{x}, v{x+1}")
        if j:
            for p in range(2): a(f"v_permlane32_swap_b32 v{e-4+p}, v{e-2+p}")
            a.vmem(f"buffer_store_dwordx4 {V(e-4)}, v8, {S4(WS_)}, s{54 if j-1 < 4 else 61} offen offset:{((j-1)%4)*1024} sc1", "z1")
        else: a("s_nop 0")
        for p in range(2): a(f"v_permlane16_swap_b32 v{e+p}, v{e+2+p}")
        if j in (1, 4, 5):
            l = a.label("Lz1n")
            if j < 5:
                a(f"s_cmp_gt_u32 s59, {j+1}")
                a(f"s_cbranch_scc1 {l}")
            a("s_nop 0")
            for p in range(2): a(f"v_permlane32_swap_b32 v{e+p}, v{e+2+p}")
            a(f"buffer_store_dwordx4 {V(e)}, v8, {S4(WS_)}, s{54 if j < 4 else 61} offen offset:{(j%4)*1024} sc1")
            if j < 5:
                a(f"s_branch {skip}")
                a(f"{l}:")
    a(f"{skip}:")
    a.stamp()

def red_g(a, regs, op="v_add_f32", tmp=60):
    n = len(regs)
    for sw in ("v_permlane32_swap_b32", "v_permlane16_swap_b32"):
        for k, r in enumerate(regs): a(f"v_mov_b32 v{tmp+k}, v{r}")
        if n < 3: a("s_nop 1")
        for k, r in enumerate(regs): a(f"{sw} v{r}, v{tmp+k}")
        for k, r in enumerate(regs): a(f"{op} v{r}, v{r}, v{tmp+k}")

def wsp_setup_h(a):
    rowtile_voffs(a, 8, 9, 12)
    a(f"s_lshl_b32 s59, s{sRB}, 2")
    a(f"s_add_u32 s59, s59, s{sQ}")
    a("s_lshl_b32 s59, s59, 17")
    a(f"s_lshl_b32 s61, s{sKS}, 11")
    a("s_add_u32 s59, s59, s61")

def wsp_group_h(a, v):
    a(f"s_add_u32 s61, s{sK0B}, {v}")
    a("s_and_b32 s61, s61, 15")
    a("s_lshl_b32 s61, s61, 7")
    a("s_add_u32 s61, s61, s59")
    a(f"s_add_u32 m0, s60, {(v % NWS) * 16384}")
    a("s_add_u32 s62, s61, 4096")
    a.vmem(f"buffer_load_dwordx4 v8, {S4(WSP_)}, s61 offen {NT('s')}lds", ("S", v))
    a.vmem(f"buffer_load_dwordx4 v9, {S4(WSP_)}, s61 offen offset:1024 {NT('s')}lds", ("S", v))
    a(f"s_add_u32 m0, s60, {(v % NWS) * 16384 + 2048}")
    a("s_nop 0")
    a.vmem(f"buffer_load_dwordx4 v8, {S4(WSP_)}, s62 offen {NT('s')}lds", ("S", v))
    a.vmem(f"buffer_load_dwordx4 v9, {S4(WSP_)}, s62 offen offset:1024 {NT('s')}lds", ("S", v))

def l2_setup(a, d, ztype):
    a("v_lshrrev_b32 v31, 4, v1")
    a("v_lshlrev_b32 v31, 12, v31")
    a("v_and_b32 v30, 15, v1")
    a(f"v_lshl_add_u32 v{d}, v30, 7, v31")
    a(f"v_lshlrev_b32 v{d+1}, 7, v1")
    a(f"s_lshl_b32 s68, s{sRB}, 3")
    a(f"s_add_u32 s68, s68, s{sCG}")
    a("s_lshl_b32 s68, s68, 2")
    a(f"s_add_u32 s68, s68, s{sQ}")
    a("s_lshl_b32 s68, s68, 14")
    a(f"s_lshl_b32 s61, s{sKS}, 11")
    a("s_add_u32 s68, s68, s61")
    a("s_lshr_b32 s61, s2, 3")
    a("s_lshl_b32 s61, s61, 2")
    a(f"s_add_u32 s61, s61, s{sQ}")
    a("s_lshl_b32 s69, s61, 12")
    a(f"s_mul_i32 s70, s61, {43*128}")
    a(f"s_mov_b32 m0, {L_MISC}")
    if ztype and opt('l2w1', 0):
        srd(a, WA_, 72, D*F2*2)
        a("v_lshrrev_b32 v31, 1, v1")
        a("v_mul_u32_u24 v31, 2752, v31")
        a("v_and_b32 v30, 1, v1")
        a("v_mul_u32_u24 v30, 188, v30")
        a("v_add_u32 v3, v30, v31")
        a(f"s_and_b32 s71, s{sRB}, 3")
        a("s_lshl_b32 s71, s71, 2")
        a(f"s_add_u32 s71, s71, s{sQ}")
        a(f"s_mul_i32 s71, s71, {32*2752}")
        a("s_lshl_b32 s61, s55, 5")
        a("s_add_u32 s71, s71, s61")
        if opt('l2w1', 0) == 1:
            a.vmem(f"buffer_load_dword v3, {S4(WA_)}, s71 offen lds", "pf")
def l2_hooks(a, d, ztype):
    hk = {}
    def add(st, f):
        hk.setdefault(st, []).append(f)
    def lanes(k, n, tot):
        lo, hi = k*tot//n, (k+1)*tot//n
        m = ((1 << hi) - 1) ^ ((1 << lo) - 1)
        a(f"s_mov_b32 exec_lo, {m & 0xffffffff:#x}\ns_mov_b32 exec_hi, {m >> 32:#x}")
    if ztype and opt('l2w1', 0) == 2:
        add(0, lambda: a.vmem(f"buffer_load_dword v3, {S4(WA_)}, s71 offen lds", "pf"))
    if opt('l2pf', 0):
        nt = 'nt' if opt('l2nt', 0) else ''
        s0 = opt('l2s0', 1); n = opt('l2n', 2)
        for k in range(n):
            def h(k=k):
                lanes(k, n, 64)
                a.vmem(f"buffer_load_dword v{d}, {S4(WSP_)}, s68 offen {nt} lds", "pf")
                a("s_mov_b64 exec, -1")
            add(s0 + k, h)
    if opt('l2cw', -1) >= 0:
        def h2():
            a("s_mov_b32 exec_hi, 0")
            a.vmem(f"buffer_load_dword v{d+1}, {S4(WO_)}, s69 offen lds", "pf")
            a("s_mov_b32 exec_hi, 0x7ff")
            a.vmem(f"buffer_load_dword v{d+1}, {S4(WOUT_)}, s70 offen lds", "pf")
            a("s_mov_b32 exec_hi, -1")
        add(opt('l2cw', 0), h2)
    return {st: (lambda fs=fs: a.run(fs)) for st, fs in hk.items()}

def q_prefetch(a, k):
    if not opt('qpf', 1): return
    if k < 2:
        a("v_lshrrev_b32 v31, 4, v1")
        a("v_lshlrev_b32 v31, 12, v31")
        a("v_and_b32 v30, 15, v1")
        a("v_lshl_add_u32 v30, v30, 7, v31")
        a(f"s_lshl_b32 s61, s{sRB}, 2")
        a(f"s_add_u32 s61, s61, s{sCG}")
        a("s_lshl_b32 s61, s61, 2")
        a(f"s_add_u32 s61, s61, s{sQ}")
        a("s_lshl_b32 s61, s61, 15")
        a(f"s_lshl_b32 s62, s{sKS}, 11")
        a("s_add_u32 s61, s61, s62")
        a(f"s_mov_b32 m0, {L_MISC}")
        a(f"s_add_u32 s61, s61, {16384*k}")
        for o in range(0, 128, opt('sec', 128)):
            a.vmem(f"buffer_load_dword v30, {S4(WSP_)}, s61 offen offset:{o} {NT('p')}lds", "pf")
        return
    a("s_lshr_b32 s61, s2, 3")
    a("s_lshl_b32 s61, s61, 2")
    a(f"s_add_u32 s61, s61, s{sQ}")
    a("v_lshlrev_b32 v31, 7, v1")
    a(f"s_mov_b32 m0, {L_MISC}")
    if k == 2:
        a("s_lshl_b32 s62, s61, 13")
        for o in range(0, 128, opt('sec', 128)): a.vmem(f"buffer_load_dword v31, {S4(WO_)}, s62 offen offset:{o} lds", "pf")
    else:
        a(f"s_mul_i32 s63, s61, {86*128}")
        a(f"s_add_u32 s63, s63, {43*128*(k-3)}")
        a("s_mov_b32 exec_hi, 0x7ff")
        for o in range(0, 128, opt('sec', 128)): a.vmem(f"buffer_load_dword v31, {S4(WOUT_)}, s63 offen offset:{o} lds", "pf")
        a("s_mov_b32 exec_hi, -1")

def q_spread_setup(a):
    srd(a, 96, 72, D*F2*2)
    a("v_lshrrev_b32 v31, 4, v1")
    a("v_lshlrev_b32 v31, 12, v31")
    a("v_and_b32 v30, 15, v1")
    a("v_lshl_add_u32 v12, v30, 7, v31")
    a(f"s_lshl_b32 s64, s{sRB}, 2")
    a(f"s_add_u32 s62, s{sCG}, {opt('trot', 0)}")
    a("s_and_b32 s62, s62, 3")
    a("s_add_u32 s64, s64, s62")
    a("s_lshl_b32 s64, s64, 2")
    a(f"s_add_u32 s64, s64, s{sQ}")
    a("s_lshl_b32 s64, s64, 15")
    a(f"s_lshl_b32 s62, s{sKS}, 11")
    a("s_add_u32 s64, s64, s62")
    a("s_add_u32 s67, s64, 16384")
    a("s_lshr_b32 s61, s2, 3")
    a("s_lshl_b32 s61, s61, 2")
    a(f"s_add_u32 s61, s61, s{sQ}")
    a("v_lshlrev_b32 v13, 7, v1")
    a("s_lshl_b32 s65, s61, 13")
    a(f"s_mul_i32 s66, s61, {86*128}")
    a("s_add_u32 s68, s66, 8192")
    a("v_lshlrev_b32 v14, 10, v1")
    a("s_and_b32 s61, s61, 15")
    a("s_lshl_b32 s71, s61, 15")
    a(f"s_add_u32 s61, s{sCG}, 4")
    a("s_lshl_b32 s61, s61, 7")
    a("s_add_u32 s71, s71, s61")
    a(f"s_add_u32 s61, s2, {opt('mrot', 0)}")
    a("s_and_b32 s61, s61, 127")
    a("s_lshl_b32 s61, s61, 2")
    a(f"s_add_u32 s61, s61, s{sQ}")
    a("s_lshl_b32 s73, s61, 10")
    a(f"s_mul_i32 s74, s61, {11*128}")
    a("s_mul_i32 s66, s61, 2752")
    a("s_and_b32 s66, s66, 0xffffff80")
    a(f"s_mul_i32 s77, s61, {5*128}")
    a(f"s_add_u32 s77, s77, {WS_FLG}")
    a("s_lshl_b32 s78, s61, 9")
    a(f"s_add_u32 s78, s78, {WS_ST2}")
    a(f"s_mul_i32 s79, s61, {48*128}")
    a(f"s_add_u32 s79, s79, {WS_Z2N}")
    a(f"s_mul_i32 s94, s61, {96*128}")
    a(f"s_add_u32 s94, s94, {WS_H}")
    a("s_add_u32 s95, s94, 8192")
def q_spread(a, k, n, which, frac=None, nt=None):
    items = {'s': [(WSP_, 12, 64, 64), (WSP_, 12, 67, 64)], 'c': [(WO_, 13, 65, 64), (WOUT_, 13, 66, 64), (WOUT_, 13, 68, 22)],
             'o': [(WO_, 14, 71, 32)], 'u': [(WOUT_, 13, 66, 64), (WOUT_, 13, 68, 22)],
             'm': [(WO_, 13, 73, 8), (WOUT_, 13, 74, 11)],
             'w': [(96, 13, 66, 12)],
             'f': [(WS_, 13, 77, 5), (WS_, 13, 78, 4)], 'z': [(WS_, 13, 79, 48)], 'h': [(WS_, 13, 94, 64), (WS_, 13, 95, 32)]}[which]
    tot = sum(x[3] for x in items)
    lo, hi = k*tot//n, (k+1)*tot//n
    if frac: lo, hi = frac
    a(f"s_mov_b32 m0, {L_MISC}")
    base = 0
    for R, v, so, cnt in items:
        l, h = max(lo - base, 0), min(hi - base, cnt)
        if h > l:
            m = ((1 << h) - 1) ^ ((1 << l) - 1)
            a(f"s_mov_b32 exec_lo, {m & 0xffffffff:#x}\ns_mov_b32 exec_hi, {m >> 32:#x}")
            a.vmem(f"buffer_load_dword v{v}, {S4(R)}, s{so} offen {'nt ' if (opt('ntp' + which, 1 if which == 's' else 0) if nt is None else nt) else ''}lds", "pf")
        base += cnt
    a("s_mov_b64 exec, -1")

def z_slice_touch(a):
    a("s_lshr_b32 s61, s2, 3")
    a("s_and_b32 s61, s61, 3")
    a("s_lshl_b32 s61, s61, 2")
    a(f"s_add_u32 s61, s61, s{sQ}")
    a(f"s_add_u32 s63, s{sCG}, 4")
    a("s_lshl_b32 s63, s63, 7")
    a("s_lshl_b32 s62, s61, 15")
    a("s_add_u32 s62, s62, s63")
    a(f"s_mul_i32 s61, s61, {43*1024}")
    a("s_add_u32 s63, s63, s61")
    a("v_lshlrev_b32 v31, 10, v1")
    a(f"s_mov_b32 m0, {L_MISC}")
    a("s_mov_b32 exec_hi, 0")
    a.vmem(f"buffer_load_dword v31, {S4(WO_)}, s62 offen lds", "pf")
    a("s_mov_b32 exec_hi, 0x7ff")
    a.vmem(f"buffer_load_dword v31, {S4(WOUT_)}, s63 offen lds", "pf")
    a("s_mov_b32 exec_hi, -1")

RW = 32
def wsp_regs(a, v0, v1):
    for v in range(v0, v1):
        a(f"s_add_u32 s61, s{sK0B}, {v}")
        a("s_and_b32 s61, s61, 15")
        a("s_lshl_b32 s61, s61, 7")
        a("s_add_u32 s61, s61, s59")
        a("s_add_u32 s62, s61, 4096")
        for k in range(4):
            a.vmem(f"buffer_load_dwordx4 {V(RW + 16*(v-v0) + 4*k)}, v{8 + (k&1)}, {S4(WSP_)}, s{61 + (k>>1)} offen offset:{1024*(k&1)}", "RW")

def x_group_h(a, step, sl, tag):
    CURSTEP[0] = step
    a(f"s_add_u32 s61, s{sK0A}, {step}")
    a("s_and_b32 s61, s61, 7")
    a("s_lshl_b32 s58, s61, 7")
    a("s_add_u32 s62, s58, s53")
    a(f"s_add_u32 m0, s60, {sl}")
    a("s_add_u32 s63, s62, 1024")
    a.vmem(f"buffer_load_dwordx4 v4, {S4(X_)}, s62 offen {NT('x')}lds", tag)
    a.vmem(f"buffer_load_dwordx4 v5, {S4(X_)}, s62 offen offset:1024 {NT('x')}lds", tag)
    a(f"s_add_u32 m0, s60, {sl + 2048}")
    a("s_nop 0")
    a.vmem(f"buffer_load_dwordx4 v4, {S4(X_)}, s63 offen {NT('x')}lds", tag)
    a.vmem(f"buffer_load_dwordx4 v5, {S4(X_)}, s63 offen offset:1024 {NT('x')}lds", tag)

def dots_x(a, fr, acc_s, acc_q, ones):
    for i in range(4):
        a(f"v_dot2_f32_bf16 v{acc_s}, v{fr+i}, v{ones}, v{acc_s}")
        a(f"v_dot2_f32_bf16 v{acc_q}, v{fr+i}, v{fr+i}, v{acc_q}")

def diag_sel(a, dst, gram):
    a("s_mov_b32 s62, 0x22222222\ns_mov_b32 s63, 0x22222222")
    a(f"v_cndmask_b32 v{dst}, v{gram}, v{gram+1}, s[62:63]")
    a("s_mov_b32 s62, 0x44444444\ns_mov_b32 s63, 0x44444444")
    a(f"v_cndmask_b32 v{dst}, v{dst}, v{gram+2}, s[62:63]")
    a("s_mov_b32 s62, 0x88888888\ns_mov_b32 s63, 0x88888888")
    a(f"v_cndmask_b32 v{dst}, v{dst}, v{gram+3}, s[62:63]")
DIAG_LO, DIAG_HI = 0x00f0000f, 0xf0000f00

def row_finalize(a, s_, q_, t):
    a(f"v_mul_f32 v{s_}, {f2u(1.0/512):#x}, v{s_}")
    a(f"v_mul_f32 v{q_}, {f2u(1.0/512):#x}, v{q_}")
    a(f"v_fma_f32 v{q_}, -v{s_}, v{s_}, v{q_}")
    a(f"v_max_f32 v{q_}, 0, v{q_}")
    a(f"v_add_f32 v{q_}, {f2u(1e-5):#x}, v{q_}")

def nonce_publish(a):
    l = a.label("Lnn")
    a(f"s_or_b32 s61, s2, s{sW}")
    a("s_cmp_lg_u32 s61, 0")
    a(f"s_cbranch_scc1 {l}")
    a("s_or_b32 s62, s84, 1")
    a("v_mov_b32 v30, s62")
    a("v_lshlrev_b32 v31, 6, v1")
    a("s_mov_b64 exec, 15")
    a(f"buffer_store_dword v30, v31, {S4(DBG_)}, 0 offen sc1")
    a("s_mov_b64 exec, -1")
    a(f"{l}:")

def nonce_check(a):
    a.vmwait("poll")
    def chk():
        a(f"v_readfirstlane_b32 s{sT}, v25")
        a(f"s_cmp_lg_u32 s{sT}, 0")
    def iss():
        a("v_mov_b32 v31, 0")
        a(f"buffer_load_dword v25, v31, {S4(DBG_)}, 0 offen sc1")
    spin(a, iss, chk)

def wave_flag(a):
    a(f"s_lshl_b32 s61, s{sGRP}, 4")
    a(f"s_add_u32 s61, s61, s{sRB}")
    a("s_lshl_b32 s61, s61, 2")
    a(f"s_add_u32 s61, s61, s{sQ}")
    a("s_lshl_b32 s61, s61, 7")
    a(f"s_add_u32 s61, s61, {F1_OFF}")
    a(f"v_mov_b32 v30, s{sT}")
    a("v_mov_b32 v31, 0")
    a("s_mov_b64 exec, 1")
    a.vmem(f"buffer_store_dword v30, v31, {S4(WS_)}, s61 offen sc1", "flag")
    a("s_mov_b64 exec, -1")

def spin_pipe(a, addr, soff, regs, gap, limit=0x8000):
    n = len(regs); lp = a.label("Lpp"); ok = a.label("Lpo")
    ld = lambda r: a(f"buffer_load_dword v{r}, v{addr}, {S4(WS_)}, s{soff} offen sc1")
    for k, r in enumerate(regs):
        ld(r)
        if k < n - 1: a(f"s_sleep {gap}")
    a("s_mov_b32 s63, 0")
    a(f"{lp}:")
    for r in regs:
        a(f"s_waitcnt vmcnt({n-1})")
        a(f"v_cmp_ne_u32 vcc, s{sT}, v{r}")
        a(f"s_cbranch_vccz {ok}")
        ld(r)
    a("s_add_u32 s63, s63, 1")
    a(f"s_cmp_lt_u32 s63, {limit}")
    a(f"s_cbranch_scc1 {lp}")
    a(f"{ok}:")

def spin(a, issue, check_ok, limit=0x8000):
    lp = a.label("Lspin"); ok = a.label("Lok")
    check_ok()
    a(f"s_cbranch_scc1 {ok}")
    a("s_mov_b32 s63, 0")
    a(f"{lp}:")
    issue()
    a("s_waitcnt vmcnt(0)")
    a("s_add_u32 s63, s63, 1")
    a(f"s_cmp_gt_u32 s63, {limit}")
    a(f"s_cbranch_scc1 {ok}")
    check_ok()
    a(f"s_cbranch_scc0 {lp}")
    a(f"{ok}:")

def az_helper(a, fused):
    rowtile_voffs(a, 4, 5, 10)
    zcount(a, 55, 57)
    a("s_lshl_b32 s57, s57, 1")
    for i in range(3):
        a(f"v_add_u32 v3, {64*i}, v1")
        a("v_mul_u32_u24 v30, 683, v3")
        a("v_lshrrev_b32 v30, 13, v30")
        a("v_mul_u32_u24 v31, 12, v30")
        a("v_sub_u32 v31, v3, v31")
        a("v_lshrrev_b32 v3, 2, v30")
        a("v_and_b32 v3, 2, v3")
        a("v_xor_b32 v31, v3, v31")
        a("v_cmp_le_u32 vcc, s57, v31")
        a("v_mul_u32_u24 v30, 2752, v30")
        a(f"v_lshl_add_u32 v{20+i}, v31, 4, v30")
        a("v_cndmask_b32_e64 v3, 0, 1, vcc")
        if i: a(f"v_subrev_u32 v{20+i}, {1024*i}, v{20+i}")
        a(f"v_lshl_add_u32 v{23+i}, v3, 28, v{20+i}")
    a(f"s_lshl_b32 s53, s{sRB}, 2")
    a(f"s_add_u32 s53, s53, s{sQ}")
    a("s_lshl_b32 s53, s53, 15")
    a(f"s_mul_i32 s54, s{sQ}, {16*2752}")
    a("s_lshl_b32 s61, s55, 5")
    a("s_add_u32 s54, s54, s61")
    a("s_add_u32 s54, s54, 1376")
    a(f"s_mul_i32 s56, s{sQ}, 3072")
    a(f"s_lshl_b32 s60, s{sQ}, 12")
    def wgroup(kreg_ready, step, dst, add, tag):
        if not kreg_ready:
            CURSTEP[0] = 99
            a(f"s_add_u32 s61, s{sK0A}, {step}")
            a("s_and_b32 s61, s61, 7")
        a(f"s_mul_i32 s63, s61, {64*2752}")
        a(f"s_add_u32 m0, s56, {dst}")
        a(f"s_add_u32 s63, s63, s{54 if add else 73}")
        for i in range(3):
            a.vmem(f"buffer_load_dwordx4 v{(23 if add or not opt('z1g', 0) else 20)+i}, {S4(WA_)}, s63 offen offset:{1024*i} {NT('w')}lds", tag)
    def ga(step):
        x_group_h(a, step, ZSLOT[step % 3], ("A", step))
        wgroup(True, step, ZSLOT[step % 3] + 16384, 1376, ("A", step))
    npro = opt('proZ', 2)
    early_srds(a)
    srd(a, WA_, 72, D*F2*2)
    ga(0)
    for st in range(1, npro): ga(st)
    if opt('sst', 0): a.stamp()
    a.split("LF_hz1")
    if opt('sst', 0): a.stamp()
    late_srds(a)
    wsp_setup_h(a)
    z1count(a, 73, 61)
    a("s_lshl_b32 s73, s73, 5")
    a(f"s_mul_i32 s61, s{sQ}, {16*2752}")
    a("s_add_u32 s73, s73, s61")
    a("v_lshlrev_b32 v10, 3, v1")
    a(f"s_lshl_b32 s64, s{sRB}, 5")
    a(f"s_add_u32 s64, s64, s{sQ}")
    a("s_lshl_b32 s64, s64, 9")
    a(f"s_add_u32 s64, s64, {WS_ST2}")
    a("s_add_u32 s65, s64, 4096\ns_add_u32 s66, s64, 8192\ns_add_u32 s67, s64, 12288")
    a("v_lshlrev_b32 v11, 4, v1")
    a("v_add_u32 v11, s60, v11")
    a(f"s_lshl_b32 s61, s{sQ}, 8")
    a(f"s_add_u32 s61, s61, {L_XCH}")
    a("v_lshrrev_b32 v12, 1, v1")
    a("v_lshl_add_u32 v12, v12, 2, s61")
    a("v_lshrrev_b32 v13, 4, v1")
    a("v_lshl_add_u32 v13, v13, 5, s61")
    a("v_lshrrev_b32 v3, 5, v1")
    a("v_mul_u32_u24 v3, 3072, v3")
    a("v_bfe_u32 v30, v1, 4, 1")
    a("v_lshl_add_u32 v3, v30, 9, v3")
    a("v_and_b32 v30, 15, v1")
    a("v_lshl_add_u32 v14, v30, 4, v3")
    a(f"s_lshl_b32 s57, s{sGRP}, 4")
    a(f"s_add_u32 s57, s57, s{sRB}")
    a("s_lshl_b32 s57, s57, 2")
    a(f"s_add_u32 s57, s57, s{sQ}")
    a("s_mul_i32 s57, s57, 6144")
    a(f"s_add_u32 s57, s57, {WS_Z2N}")
    a("v_mov_b32 v16, 0xffff0000")
    a.stamp()
    nw1 = 0
    for s in range(8):
        a.vmwait(("A", s))
        a("s_barrier")
        if s in (0, 1, 4): a.stamp()
        if s == 0: a(f"s_load_dword s{sT}, s[90:91], 128")
        if s + npro < 8: ga(s + npro)
        if s == 0: get_nonce(a, -1)
        if s == opt('st1z', 3): ln1_fetch_issue(a, False)
        if s == 6 and opt('lf', 0) == 0: ln1_fetch_finish(a, False)
        if s + npro >= 8:
            for u in (nw1, nw1 + 1): wgroup(False, u, W1SL[u], 0, ("W1", u))
            nw1 += 2
        if s == 5 and opt('lf', 0) == 1: ln1_fetch_finish(a, False)
    a.stamp()
    for u in range(nw1, 8): wgroup(False, u, W1SL[u], 0, ("W1", u))
    if opt('zcw', 1) == 1: cw_load(a, 0, 38)
    a.vmwait(("W1", 7))
    if opt('zcw', 1) == 2: a.after_a2 = True
    a("s_barrier")
    if opt('zcw', 1) == 2: cw_load(a, 0, 38)
    a(f"s_setprio {opt('nprio', 3)}")
    for j in range(6): a(f"ds_read_b128 {V(56+8*j+4)}, v11 offset:{(j>>2)*16384 + (j&3)*1024}")
    def iss():
        for c in range(8):
            a(f"buffer_load_dwordx2 {V(32+2*c,2)}, v10, {S4(WS_)}, s{64 + (c>>1)} offen offset:{2048*(c&1)} sc1")
    def chk():
        for c in range(8): a(f"v_xor_b32 v{48+c}, s{sT}, v{33+2*c}")
        a("v_or3_b32 v48, v48, v49, v50\nv_or3_b32 v51, v51, v52, v53\nv_or3_b32 v48, v48, v54, v55")
        a("v_or_b32 v48, v48, v51")
        a("v_cmp_ne_u32 vcc, 0, v48")
        a("s_cmp_eq_u64 vcc, 0")
    a("s_waitcnt lgkmcnt(0)")
    for j in range(6):
        for w in range(4):
            u = 56 + 8*j
            if w < 3:
                a(f"v_lshlrev_b32 v{u+2*w}, 16, v{u+4+w}")
                a(f"v_and_b32 v{u+2*w+1}, v16, v{u+4+w}")
            else:
                a(f"v_lshlrev_b32 v{u+6}, 16, v{u+7}")
                a(f"v_and_b32 v{u+7}, v16, v{u+7}")
    for v in range(opt('wearly', 0)): wsp_group_h(a, v)
    zcount(a, 62, 58)
    if opt('stdelay', 8): a(f"s_sleep {opt('stdelay', 8)}")
    iss(); a("s_waitcnt vmcnt(0)")
    spin(a, iss, chk)
    a.stamp()
    for k in (2, 4, 6): a(f"v_add_f32 v{32+2*k}, v{32+2*k}, v{34+2*k}")
    a("v_add_f32 v32, v32, v34")
    a("v_add_f32 v36, v36, v40")
    a("v_add_f32 v32, v32, v44")
    a("v_add_f32 v32, v32, v36")
    a(f"v_mul_f32 v32, {f2u(1.0/688):#x}, v32")
    a("s_nop 1")
    a("v_mov_b32_dpp v33, v32 quad_perm:[1,0,3,2] row_mask:0xf bank_mask:0xf")
    a("v_fma_f32 v33, -v32, v32, v33")
    a("v_max_f32 v33, 0, v33")
    a(f"v_add_f32 v33, {f2u(1e-5):#x}, v33")
    a("v_rsq_f32 v33, v33")
    a("s_nop 0")
    a("v_mul_f32_e64 v48, -v32, v33")
    a("v_mov_b32 v49, v33")
    a("s_nop 0")
    for w in range(8): a(f"v_mov_b32_dpp v{40+w}, v48 row_newbcast:{2*w} row_mask:0xf bank_mask:0xf")
    for w in range(8): a(f"v_mov_b32_dpp v{32+w}, v49 row_newbcast:{2*w} row_mask:0xf bank_mask:0xf")
    for j in range(6):
        u = 56 + 8*j; z = u
        for w in range(8): a(f"v_fma_f32 v{u+w}, v{u+w}, v{32+w}, v{40+w}")
        for w in range(4): a(f"v_cvt_pk_bf16_f32 v{z+w}, v{u+2*w}, v{u+2*w+1}")
        a(f"s_cmp_gt_u32 s58, {j}")
        a(f"s_cselect_b32 s61, s57, {OOB}")
        a.vmem(f"buffer_store_dwordx4 {V(z)}, v14, {S4(WS_)}, s61 offen offset:{(j>>1)*1024 + (j&1)*256} sc1{' nt' if opt('zst', 0) else ''}", "z2n")
    a("s_setprio 0")
    a.stamp()
    a.vmwait("z2n")
    wave_flag(a)
    a.stamp()
    for v in range(opt('wearly', 0), 3): wsp_group_h(a, v)
    if opt('wreg', 0):
        wsp_regs(a, 3, NWS)
        a(f"s_mov_b32 s72, {NWS + 1}")
    else:
        a(f"v_mov_b32 v30, {L_FLG + 16}")
        lds_wait(a, 30, 4, 32)
        for v in range(3, opt('wp', 4)): wsp_group_h(a, v)
        a(f"s_mov_b32 s72, {opt('wp', 4)}")
    if opt('zcw', 1) == 0: cw_load(a, 0, 38)

def aq_compute(a, fused):
    AQ, AK, AV, HK, HV = 32, 64, 96, 128, 136
    ONES, SUM, GRM, XA = 28, 224, 232, 240
    CWQ = [240, 128, 132, 136, 140, 244]
    ring = list(range(144, 200, 4))
    MC, MPN, MPA, MB = 200, 204, 208, 216
    a(f"s_lshr_b32 s5, s{sQ}, 1")
    a(f"s_and_b32 s46, s{sQ}, 1")
    a("s_lshl_b32 s61, s5, 13")
    rowfrag_addr(a, 10, 11, "s61")
    rowfrag_addr(a, 12, 13, 16384)
    qw_addr(a, 14)
    a("v_add_u32 v14, 18432, v14")
    a("s_lshl_b32 s61, s46, 6")
    a("v_xor_b32 v14, s61, v14")
    a("v_xor_b32 v15, 32, v14")
    a("v_and_b32 v3, 15, v1")
    a("v_lshrrev_b32 v30, 4, v1")
    a("v_lshlrev_b32 v30, 2, v30")
    a("v_sub_u32 v31, v3, v30")
    a(f"v_mov_b32 v224, {NEG:#x}")
    a("v_mov_b32 v225, 0xffff")
    a("v_mov_b32 v226, 0xffff0000")
    for i in range(4):
        a(f"v_subrev_u32 v227, {i}, v31")
        a("v_cmp_gt_u32 vcc, 8, v227")
        a("v_cmp_gt_i32 s[62:63], -8, v227")
        a("s_nop 0")
        a(f"v_cndmask_b32_e64 v{MC+i}, v224, 0, vcc")
        a(f"v_cndmask_b32_e64 v{228+i}, 0, v{225 + (i&1)}, vcc")
        a(f"v_cndmask_b32_e64 v{MPN+i}, v224, 0, s[62:63]")
    a(f"v_or_b32 v{MB}, v228, v229")
    a(f"v_or_b32 v{MB+1}, v230, v231")
    a("s_lshl_b32 s61, s5, 8")
    a(f"s_add_u32 s61, s61, {L_TAB}")
    a("v_and_b32 v27, 0x30, v1")
    a("v_add_u32 v218, s61, v27")
    a("v_lshl_add_u32 v219, v3, 2, s61")
    a("s_lshl_b32 s61, s46, 7")
    a(f"s_add_u32 s61, s61, {L_CW}")
    a("v_add_u32 v220, s61, v27")
    a("v_lshl_add_u32 v221, v3, 2, s61")
    a("v_lshlrev_b32 v222, 4, v1")
    a("s_lshl_b32 s61, s46, 12")
    a(f"s_add_u32 s61, s61, {L_XCH}")
    a("v_add_u32 v223, s61, v222")
    a(f"s_lshl_b32 s53, s{sRB}, 1")
    a("s_add_u32 s53, s53, s5")
    a("s_lshl_b32 s53, s53, 4")
    a(f"s_add_u32 s53, s53, s{sGRP}")
    a("s_lshl_b32 s53, s53, 1")
    a("s_add_u32 s53, s53, s46")
    a("s_lshl_b32 s53, s53, 11")
    a(f"s_add_u32 s53, s53, {WS_O}")
    a("s_add_u32 s54, s53, 32768")
    a("v_lshrrev_b32 v27, 4, v1")
    a("v_lshlrev_b32 v27, 9, v27")
    a("v_lshl_add_u32 v4, v3, 4, v27")
    a(f"s_lshl_b32 s61, s{sQ}, 2")
    a(f"s_add_u32 s61, s61, {L_FLG}")
    a("v_mov_b32 v7, s61")
    a("v_xor_b32 v8, 8, v7")
    a("s_lshl_b32 s61, s46, 2")
    a(f"s_add_u32 s61, s61, {L_FLG + 16}")
    a("v_mov_b32 v9, s61")
    a("v_mov_b32 v27, 0")
    a("ds_write_b32 v7, v27")
    a("ds_write_b32 v9, v27")
    AT = 16
    def build(halo, hp):
        fr = {'ones': dict(step=0, reg=ONES, reads=None)}; mf = []
        for s in range(8):
            for kk in range(2):
                for tl in range(4):
                    fr[('x', s, kk, tl)] = dict(step=s, reg=None, reads=[lambda r, kk=kk, tl=tl: f"ds_read_b128 {V(r)}, v{AT+kk} offset:{tl*2048}"])
                fr[('h', s, kk)] = dict(step=s, reg=None, reads=[lambda r, kk=kk: f"ds_read_b128 {V(r)}, v{AT+2+kk}"])
                for m in range(3):
                    for e in range(2):
                        w = ('w', s, kk, m, e)
                        fr[w] = dict(step=s, reg=None, reads=[(lambda r, hh=hh, kk=kk, m=m, e=e: f"ds_read_b64_tr_b16 {V(r+2*hh,2)}, v{AT+4+e} offset:{kk*12288 + m*1024 + hh*512}") for hh in range(2)])
                        for tl in range(4):
                            d = (AQ, AK, AV)[m] + (e*4+tl)*4
                            mf.append((d, w, ('x', s, kk, tl)) if m < 2 else (d, ('x', s, kk, tl), w))
                        if halo and m == 1: mf.append((HK+4*e, w, ('h', s, kk)))
                        if halo and m == 2: mf.append((HV+4*e, ('h', s, kk), w))
                        if halo == (m*2+e == 0): mf.append((CWQ[m*2+e], 'ones', w))
        return mf, fr
    def stats_out(halo):
        a("s_nop 6")
        for k in ([0] if halo else range(1, 6)): a(f"ds_write_b32 v221, v{CWQ[k]} offset:{256*(k>>1) + 64*(k&1)}")
    def pre(s):
        for r in range(6): a(f"v_add_u32 v{AT+r}, {QSLOT[s % 3]}, v{10+r}")
        if s == 0: a("s_waitcnt lgkmcnt(0)")
    a("v_mov_b32 v26, v30")
    a('v_mov_b32 v27, v3'); l2_setup(a, 5, False)
    a("v_mov_b32 v27, v3")
    ln1_publish(a)
    a("v_mov_b32 v3, v27")
    a("v_mov_b32 v30, v26")
    lr1 = a.label("Lrh1"); lj = a.label("Lqj")
    a("s_cmp_lg_u32 s5, 0")
    a(f"s_cbranch_scc1 {lr1}")
    a("v_lshlrev_b32 v3, 1, v3")
    a("v_sub_u32 v31, v30, v3")
    a(f"s_cmp_eq_u32 s{sRB}, 0")
    a("s_cselect_b32 s61, 1000, 0")
    a("v_subrev_u32 v31, s61, v31")
    for T in range(2):
        for i in range(4):
            if (i ^ T) & 1:
                a(f"v_mov_b32 v{MPA+4*T+i}, v224")
            else:
                a(f"v_cmp_le_i32 vcc, {T + 2 - i}, v31")
                a("s_nop 1")
                a(f"v_cndmask_b32_e64 v{MPA+4*T+i}, v224, 0, vcc")
    n0 = a.nst
    for halo in (True, False):
        if not halo:
            a(f"{lr1}:")
            for i in range(8): a(f"v_mov_b32 v{MPA+i}, v{MPN+(i&3)}")
        for r in range(4): a(f"v_mov_b32 v{ONES+r}, 0x3f803f80")
        a.nst = n0
        a.stamp()
        mf, fr = build(halo, 0)
        vm0 = list(a.vm)
        gemm_stream(a, mf, fr, ring, opt('LA', 10), opt('cover', 3), pre, stamps=(0, 1, 4), hooks=l2_hooks(a, 5, False))
        vm1 = list(a.vm); a.vm = vm0
        a.stamp()
        stats_out(halo)
        if halo: a(f"s_branch {lj}")
    a(f"{lj}:")
    a.vm = vm1
    a("v_mov_b32 v26, 1")
    a("ds_write_b32 v7, v26")
    for tl in range(4):
        a(f"ds_read_b32 v{162+tl}, v219 offset:{64*tl}")
        a(f"ds_read_b32 v{166+tl}, v219 offset:{64*tl + TP}")
    a("s_waitcnt lgkmcnt(6)")
    lds_wait(a, 8, 1, 27, also=[f"ds_read_b128 {V(152+4*k)}, v220 offset:{256 + 64*k}" for k in range(2)] + [f"ds_read_b32 v{160+e}, v221 offset:{512 + 64*e}" for e in range(2)]
             + [f"ds_read_b128 {V(144+4*k)}, v220 offset:{64*k}" for k in range(2)])
    for tl in range(4):
        a(f"ds_read_b128 {V(172+4*tl)}, v218 offset:{64*tl}")
        a(f"ds_read_b128 {V(10+4*tl)}, v218 offset:{64*tl + TP}")
    def corr_t(x, cw, mreg, rreg):
        for p in range(2): a(f"v_pk_fma_f32 {V(x+2*p,2)}, {V(cw+2*p,2)}, {V(mreg&~1,2)}, {V(x+2*p,2)} op_sel:[0,{mreg&1},0] op_sel_hi:[1,{mreg&1},1] neg_lo:[1,0,0] neg_hi:[1,0,0]")
        for p in range(2): a(f"v_pk_mul_f32 {V(x+2*p,2)}, {V(x+2*p,2)}, {V(rreg&~1,2)} op_sel:[0,{rreg&1}] op_sel_hi:[1,{rreg&1}]")
    def corr_c(x, mv, rv, cw):
        for p in range(2): a(f"v_pk_fma_f32 {V(x+2*p,2)}, {V(mv+2*p,2)}, {V(cw&~1,2)}, {V(x+2*p,2)} op_sel:[0,{cw&1},0] op_sel_hi:[1,{cw&1},1] neg_lo:[1,0,0] neg_hi:[1,0,0]")
        for p in range(2): a(f"v_pk_mul_f32 {V(x+2*p,2)}, {V(x+2*p,2)}, {V(rv+2*p,2)}")
    def pack(dst, x):
        for p in range(2): a(f"v_cvt_pk_bf16_f32 v{dst+p}, v{x+2*p}, v{x+2*p+1}")
    KV = 224
    def kp(e, tl): return KV + 8*tl + 2*e
    def vp(e, tl): return KV + 8*tl + 4 + 2*e
    for tl in (2, 3, 0, 1):
        for e in range(2): corr_t(AK + (e*4+tl)*4, 152+4*e, 162+tl, 166+tl)
        for e in range(2): pack(kp(e, tl), AK + (e*4+tl)*4)
    a("s_waitcnt lgkmcnt(0)")
    for tl in (2, 3, 0, 1):
        for e in range(2): corr_c(AV + (e*4+tl)*4, 172+4*tl, 10+4*tl, 160+e)
        for e in range(2): pack(vp(e, tl), AV + (e*4+tl)*4)
        if tl == 3:
            lx = a.label("Lx")
            a("s_cmp_lg_u32 s5, 0")
            a(f"s_cbranch_scc1 {lx}")
            for k in range(4): a(f"ds_write_b128 v223, {V(KV+16+4*k)} offset:{1024*k}")
            a("ds_write_b32 v9, v26")
            a("ds_read_b32 v26, v219 offset:512")
            a(f"ds_read_b32 v27, v219 offset:{512 + TP}")
            a(f"ds_read_b128 {V(188)}, v218 offset:512")
            a(f"ds_read_b128 {V(192)}, v218 offset:{512 + TP}")
            a(f"{lx}:")
    PV = 64
    lh = a.label("Lnh")
    a("s_cmp_lg_u32 s5, 0")
    a(f"s_cbranch_scc1 {lh}")
    a("s_waitcnt lgkmcnt(0)")
    for e in range(2):
        corr_t(HK+4*e, 152+4*e, 26, 27)
        corr_c(HV+4*e, 188, 192, 160+e)
    for e in range(2):
        for T in range(2):
            pack(PV + 8*T + 2*e, HK+4*e)
            pack(PV + 8*T + 4 + 2*e, HV+4*e)
    a(f"{lh}:")
    QP = 96
    for e in range(2):
        for tl in range(4):
            x = AQ + (e*4+tl)*4; m_ = 162 + tl
            for p in range(2): a(f"v_pk_fma_f32 {V(x+2*p,2)}, {V(144+4*e+2*p,2)}, {V(m_&~1,2)}, {V(x+2*p,2)} op_sel:[0,{m_&1},0] op_sel_hi:[1,{m_&1},1] neg_lo:[1,0,0] neg_hi:[1,0,0]")
    for k in range(8): pack(QP+2*k, AQ+4*k)
    for tl in range(4): a(f"v_mul_f32 v{10+tl}, {f2u(0.25*LOG2E):#x}, v{166+tl}")
    for r in range(2): a(f"v_mov_b32 v{14+r}, 0x3f803f80")
    lp = a.label("Lp")
    a("s_cmp_eq_u32 s5, 0")
    a(f"s_cbranch_scc1 {lp}")
    lds_wait(a, 9, 1, 27, also=[f"ds_read_b128 {V(PV+4*k)}, v223 offset:{1024*k}" for k in range(4)])
    a(f"{lp}:")
    SC, SP = 112, 144
    U = range(8)
    def kprev(u): e, tl = u//4, u%4; return kp(e, tl-2) if tl >= 2 else PV + 8*tl + 2*e
    def vprev(u): e, tl = u//4, u%4; return vp(e, tl-2) if tl >= 2 else PV + 8*tl + 4 + 2*e
    for u in U: a(mfma16(SC+4*u, kp(u//4, u%4), QP+2*u, V(MC)))
    for u in (2, 3, 6, 7): a(mfma16(SP+4*u, kprev(u), QP+2*u, V(MPN)))
    a("s_waitcnt lgkmcnt(0)")
    for u in (0, 1, 4, 5): a(mfma16(SP+4*u, kprev(u), QP+2*u, V(MPA+4*(u&1))))
    MX, TM = 32, 40
    for u in (2, 3, 6, 7, 0, 1, 4, 5):
        for i in range(4): a(f"v_max_f32 v{SC+4*u+i}, v{SC+4*u+i}, v{SP+4*u+i}")
    for u in U: a(f"v_max3_f32 v{MX+u}, v{SC+4*u}, v{SC+4*u+1}, v{SC+4*u+2}")
    for u in U: a(f"v_max_f32 v{MX+u}, v{MX+u}, v{SC+4*u+3}")
    a("s_nop 0")
    for b in (0, 4):
        a(f"v_permlane32_swap_b32 v{MX+b}, v{MX+b+1}")
        a(f"v_permlane32_swap_b32 v{MX+b+2}, v{MX+b+3}")
    for b in (0, 4):
        a(f"v_max_f32 v{MX+b}, v{MX+b}, v{MX+b+1}")
        a(f"v_max_f32 v{MX+b+2}, v{MX+b+2}, v{MX+b+3}")
    a("s_nop 0")
    for b in (0, 4): a(f"v_permlane16_swap_b32 v{MX+b}, v{MX+b+2}")
    for b in (0, 4): a(f"v_max_f32 v{MX+b}, v{MX+b}, v{MX+b+2}")
    for b in (0, 4): a(f"v_mov_b32 v{MX+b+2}, v{MX+b}")
    a("s_nop 1")
    for b in (0, 4): a(f"v_permlane16_swap_b32 v{MX+b}, v{MX+b+2}")
    for b in (0, 4):
        a(f"v_mov_b32 v{MX+b+1}, v{MX+b}")
        a(f"v_mov_b32 v{MX+b+3}, v{MX+b+2}")
    a("s_nop 0")
    for b in (0, 4):
        a(f"v_permlane32_swap_b32 v{MX+b}, v{MX+b+1}")
        a(f"v_permlane32_swap_b32 v{MX+b+2}, v{MX+b+3}")
    for u in range(0, 8, 2): a(f"v_pk_mul_f32 {V(MX+u,2)}, {V(MX+u,2)}, {V(10+(u&3),2)}")
    for u in U:
        c_ = 10 + (u & 3)
        for p in range(2): a(f"v_pk_fma_f32 {V(SC+4*u+2*p,2)}, {V(SC+4*u+2*p,2)}, {V(c_&~1,2)}, {V(MX+(u&~1),2)} op_sel:[0,{c_&1},{u&1}] op_sel_hi:[1,{c_&1},{u&1}] neg_lo:[0,0,1] neg_hi:[0,0,1]")
    for u in U:
        for i in range(4): a(f"v_exp_f32 v{SC+4*u+i}, v{SC+4*u+i}")
    PC, PP = 144, 160
    for u in U: pack(PP+2*u, SC+4*u)
    OA = 176
    for u in U:
        a(mfma16(SC+4*u, 14, PP+2*u, "0"))
        for p in range(2): a(f"v_and_b32 v{PC+2*u+p}, v{MB+p}, v{PP+2*u+p}")
    for u in U:
        for p in range(2): a(f"v_xor_b32 v{PP+2*u+p}, v{PC+2*u+p}, v{PP+2*u+p}")
        a(mfma16(OA+4*u, vp(u//4, u%4), PC+2*u, "0"))
    for u in U:
        a(mfma16(OA+4*u, vprev(u), PP+2*u))
        a(f"v_rcp_f32 v{MX+u}, v{SC+4*u}")
    a("s_nop 1")
    for u in U:
        for p in range(2): a(f"v_pk_mul_f32 {V(OA+4*u+2*p,2)}, {V(OA+4*u+2*p,2)}, {V(MX+(u&~1),2)} op_sel:[0,{u&1}] op_sel_hi:[1,{u&1}]")
    for tl in range(4):
        for e in range(2): pack(112 + 4*tl + 2*e, OA + 4*(e*4+tl))
    for tl in range(4):
        for p in range(2): a(f"v_permlane32_swap_b32 v{112+4*tl+p}, v{112+4*tl+2+p}")
    a.vmwait("b")
    a("s_mov_b32 s64, s53\ns_mov_b32 s65, s54")
    for tl in range(4):
        if opt('defer', 0) != 1: a.vmem(f"buffer_store_dwordx4 {V(112+4*tl)}, v4, {S4(WS_)}, s{53+(tl>>1)} offen offset:{256*(tl&1)} sc1{' nt' if opt('ost', 0) else ''}", "o")
    a(f"s_lshl_b32 s61, s{sRB}, 3")
    a(f"s_add_u32 s61, s61, s{sGRP}")
    a("s_lshl_b32 s61, s61, 2")
    a(f"s_add_u32 s61, s61, s{sQ}")
    a("s_lshl_b32 s61, s61, 7")
    a(f"s_add_u32 s75, s61, {FO_OFF}")
    a.stamp()

def aq_helper(a, fused):
    early = opt('qearly', 1); c6, c7, c8 = opt('c6', 8), opt('c7', 22), opt('c8', 30)
    PFS = [int(c, 16) for c in str(opt('pfs', 55234))]
    rowtile_voffs(a, 4, 5, 10)
    a("v_bfe_u32 v3, v1, 4, 1")
    a("v_lshlrev_b32 v3, 1, v3")
    a("v_and_b32 v30, 7, v1")
    a("v_xor_b32 v30, v30, v3")
    a("v_lshrrev_b32 v3, 3, v1")
    a("v_mul_u32_u24 v3, 3072, v3")
    a("v_lshl_add_u32 v6, v30, 4, v3")
    a("v_xor_b32 v30, 4, v30")
    a("v_lshl_add_u32 v7, v30, 4, v3")
    a(f"v_add_u32 v7, {8*3072}, v7")
    a("v_lshrrev_b32 v3, 4, v1")
    a(f"s_lshl_b32 s61, s{sQ}, 1")
    a("v_add_u32 v3, s61, v3")
    a("v_and_b32 v30, 7, v1")
    a("v_xor_b32 v30, v30, v3")
    a("v_and_b32 v30, 7, v30")
    a("v_lshrrev_b32 v3, 3, v1")
    a("v_lshlrev_b32 v3, 10, v3")
    a("v_lshl_add_u32 v20, v30, 4, v3")
    a(f"s_lshl_b32 s53, s{sRB}, 7")
    a("s_sub_u32 s55, s53, 16")
    a("s_max_i32 s55, s55, 0")
    a(f"s_lshl_b32 s61, s{sQ}, 2")
    a("s_add_u32 s55, s55, s61")
    a("s_lshl_b32 s55, s55, 10")
    a(f"s_lshl_b32 s61, s{sQ}, 5")
    a("s_add_u32 s53, s53, s61")
    a("s_lshl_b32 s53, s53, 10")
    a(f"s_mul_i32 s54, s{sQ}, {16*3072}")
    a(f"s_lshl_b32 s61, s{sGRP}, 7")
    a("s_add_u32 s54, s54, s61")
    a(f"s_mul_i32 s56, s{sQ}, 6144")
    a(f"s_lshl_b32 s57, s{sQ}, 9")
    a(f"s_lshl_b32 s60, s{sQ}, 12")
    def ga(step):
        sl = QSLOT[step % 3]; tag = ("A", step)
        x_group_h(a, step, sl, tag)
        a(f"s_mul_i32 s63, s61, {64*3072}")
        a("s_add_u32 s63, s63, s54")
        a(f"s_add_u32 m0, s56, {sl + 18432}")
        a("s_add_u32 s62, s58, s55")
        for m in range(3): a.vmem(f"buffer_load_dwordx4 v6, {S4(WA_)}, s63 offen offset:{1024*m} {NT('w')}lds", tag)
        a(f"s_add_u32 m0, s56, {sl + 18432 + 3072}")
        a("s_nop 0")
        for m in range(3): a.vmem(f"buffer_load_dwordx4 v7, {S4(WA_)}, s63 offen offset:{1024*m} {NT('w')}lds", tag)
        a(f"s_add_u32 m0, s57, {sl + 16384}")
        a("s_mov_b32 exec_hi, 0")
        a.vmem(f"buffer_load_dwordx4 v20, {S4(X_)}, s62 offen {NT('x')}lds", tag)
        a("s_mov_b32 exec_hi, -1")
    early_srds(a)
    srd(a, WA_, 66, D*1536*2)
    ga(0)
    ga(1)
    if opt('proQ', 2) == 3: ga(2)
    if opt('sst', 0): a.stamp()
    a.split("LF_hq1")
    if opt('sst', 0): a.stamp()
    late_srds(a)
    if fused: wsp_setup_h(a)
    q_spread_setup(a)
    a.stamp()
    for s in range(8):
        a.vmwait(("A", s))
        a("s_barrier")
        if s in (0, 1, 4): a.stamp()
        if s == 0: a(f"s_load_dword s{sT}, s[90:91], 128")
        if (0 if opt('proQ', 2) == 2 else 1) <= s <= 5: ga(s + 2)
        if s == 0: get_nonce(a, -1)
        if s == opt('st1q', 3): ln1_fetch_issue(a, True)
        if s == 6: ln1_fetch_finish(a, True)
        if s == opt('mt', 0): q_spread(a, 0, 1, 'm')
        if s == opt('wt1', 0): q_spread(a, 0, 1, 'w')
        if s == opt('ft', 0): q_spread(a, 0, 1, 'f')
        if s == opt('zt', 99): q_spread(a, 0, 1, 'z')
        if s == opt('ht', 99): q_spread(a, 0, 1, 'h')
        s0 = opt('sp0', 3)
        if s0 <= s < 6: q_spread(a, s - s0, 6 - s0, 's')
        if s in (opt('retouch', 6), opt('retouch2', 99)): q_spread(a, 0, 1, 's', nt=0)
        if s == opt('qcw', 9): cw_load(a, 0, 16)
        q0 = opt('qc0', 0)
        if opt('qcw', 9) == 10 and q0 <= s < q0 + opt('qcn', 3): cw_load(a, (s - q0)*16//opt('qcn', 3), (s - q0 + 1)*16//opt('qcn', 3))
        if s == 7:
            for v in (0, 1, 6)[:opt('w7', 3)]: wsp_group_h(a, v)
    a.stamp()
    if opt('qcw', 9) == 8: cw_load(a, 0, 16)
    a(f"v_mov_b32 v30, {L_FLG}")
    lds_wait(a, 30, 4, 32)
    for v in [v for v in range(NWS) if v not in (0, 1, 6)[:opt('w7', 3)]]: wsp_group_h(a, v)
    if opt('qcw', 9) == 9: cw_load(a, 0, 16)
    a(f"s_mov_b32 s72, {NWS}")

def flag_store(a, which):
    if which == "F1":
        a(f"s_lshl_b32 s61, s{sRB}, 3")
        a(f"s_add_u32 s61, s61, s{sGRP}")
        off = F1_OFF
    else:
        a(f"s_lshl_b32 s61, s{sRB}, 1")
        a(f"s_add_u32 s61, s61, s{sTYP}")
        a("s_lshl_b32 s61, s61, 3")
        a(f"s_add_u32 s61, s61, s{sGRP}")
        off = F2_OFF
    a("s_lshl_b32 s61, s61, 7")
    a(f"s_add_u32 s61, s61, {off}")
    a(f"s_cmp_eq_u32 s{sQ}, 0")
    a(f"s_cselect_b32 s61, s61, {OOB}")
    a(f"v_mov_b32 v30, s{sT}")
    a("v_mov_b32 v31, 0")
    a("s_mov_b64 exec, 1")
    a.vmem(f"buffer_store_dword v30, v31, {S4(WS_)}, s61 offen sc1", "flag")
    a("s_mov_b64 exec, -1")

def mfma32(d, a, b, c=None):
    c = V(d, 16) if c is None else c
    return f"v_mfma_f32_32x32x16_bf16 {V(d,16)}, {V(a)}, {V(b)}, {c}"

def get_nonce(a, line):
    if line >= 0: a(f"s_load_dword s{sT}, s[90:91], {64*line}")
    a("s_waitcnt lgkmcnt(0)")
    first = [True]
    def chk():
        if not first[0]: a(f"v_readfirstlane_b32 s{sT}, v30")
        first[0] = False
        a(f"s_cmp_lg_u32 s{sT}, 0")
    def iss():
        a("s_sleep 2")
        a("v_mov_b32 v31, 0")
        a(f"buffer_load_dword v30, v31, {S4(DBG_)}, 0 offen sc1")
    spin(a, iss, chk)

def lds_wait(a, areg, n, t, nonce=False, also=()):
    lp = a.label("Llw"); ok = a.label("Llk")
    a("s_mov_b32 s63, 0")
    a(f"{lp}:")
    a(f"ds_read_b32 v{t}, v{areg}" if n == 1 else f"ds_read_b128 {V(t)}, v{areg}")
    a.run(also)
    a("s_add_u32 s63, s63, 1")
    a("s_waitcnt lgkmcnt(0)")
    if nonce:
        for k in range(4): a(f"v_xor_b32 v{t+k}, s{sT}, v{t+k}")
        a(f"v_or3_b32 v{t}, v{t}, v{t+1}, v{t+2}\nv_or_b32 v{t}, v{t}, v{t+3}")
    elif n > 1:
        a(f"v_and_b32 v{t}, v{t}, v{t+1}\nv_and_b32 v{t+2}, v{t+2}, v{t+3}\nv_and_b32 v{t}, v{t}, v{t+2}")
    a(f"v_cmp_{'eq' if nonce else 'ne'}_u32 vcc, 0, v{t}")
    a(f"s_cbranch_vccnz {ok}")
    a("s_cmp_lt_u32 s63, 0x100000")
    a(f"s_cbranch_scc1 {lp}")
    a(f"{ok}:")

def ln1_issue(a):
    a(f"s_lshl_b32 s61, s{sRB}, 1")
    a(f"s_add_u32 s61, s61, s{sTYP}")
    a("s_lshl_b32 s61, s61, 3")
    a(f"s_add_u32 s61, s61, s{sGRP}")
    a("s_lshl_b32 s61, s61, 2")
    a(f"s_add_u32 s47, s61, s{sQ}")
    a("s_lshl_b32 s61, s47, 11")
    a("v_lshrrev_b32 v3, 5, v1")
    a("v_lshlrev_b32 v3, 10, v3")
    a("v_and_b32 v30, 31, v1")
    a("v_lshl_add_u32 v3, v30, 4, v3")
    a.vmem(f"buffer_load_dwordx4 {V(40)}, v3, {S4(X_)}, s61 offen", "ln1")
    a.vmem(f"buffer_load_dwordx4 {V(44)}, v3, {S4(X_)}, s61 offen offset:512", "ln1")
def ln1_publish(a):
    a("v_mov_b32 v48, 0x3f803f80")
    a("v_mov_b32 v32, 0\nv_mov_b32 v33, 0\nv_mov_b32 v34, 0\nv_mov_b32 v35, 0")
    a("s_lshl_b32 s47, s47, 5")
    a(f"s_add_u32 s47, s47, {WS_ST1}")
    a("v_lshrrev_b32 v3, 1, v1")
    a.vmwait("ln1")
    for i in range(8):
        a(f"v_dot2_f32_bf16 v{32+(i&1)}, v{40+i}, v48, v{32+(i&1)}")
        a(f"v_dot2_f32_bf16 v{34+(i&1)}, v{40+i}, v{40+i}, v{34+(i&1)}")
    a("s_nop 2")
    a("v_add_f32 v32, v32, v33")
    a("v_add_f32 v34, v34, v35")
    for r in (8, 4, 2, 1):
        a("s_nop 0")
        a(f"v_add_f32_dpp v32, v32, v32 row_ror:{r} row_mask:0xf bank_mask:0xf")
        a(f"v_add_f32_dpp v34, v34, v34 row_ror:{r} row_mask:0xf bank_mask:0xf")
    a("v_mov_b32 v33, v32\nv_mov_b32 v35, v34")
    a("s_nop 1")
    a("v_permlane16_swap_b32 v32, v33\nv_permlane16_swap_b32 v34, v35")
    a("v_add_f32 v32, v32, v33\nv_add_f32 v34, v34, v35")
    row_finalize(a, 32, 34, 0)
    get_nonce(a, 1)
    a(f"v_mov_b32 v33, s{sT}\nv_mov_b32 v35, s{sT}")
    a("s_mov_b32 exec_lo, 1\ns_mov_b32 exec_hi, 1")
    a.vmem(f"buffer_store_dwordx4 {V(32)}, v3, {S4(WS_)}, s47 offen sc1", "ln1s")
    a("s_mov_b64 exec, -1")

def ln1_fetch_issue(a, halo):
    a(f"s_lshl_b32 s69, s{sRB}, 2")
    a(f"s_add_u32 s69, s69, s{sQ}")
    a("s_lshl_b32 s69, s69, 9")
    a(f"s_add_u32 s69, s69, {WS_ST1}")
    a(f"s_lshl_b32 s70, s{sRB}, 11")
    a("s_sub_u32 s70, s70, 256")
    a("s_max_i32 s70, s70, 0")
    a(f"s_add_u32 s70, s70, {WS_ST1}")
    a("v_lshlrev_b32 v36, 3, v1")
    a("v_and_b32 v37, 0xff, v36")
    a.vmem(f"buffer_load_dwordx2 {V(32,2)}, v36, {S4(WS_)}, s69 offen sc1", "st1")
    if halo: a.vmem(f"buffer_load_dwordx2 {V(34,2)}, v37, {S4(WS_)}, s70 offen sc1", "st1")
def ln1_fetch_finish(a, halo):
    a.vmwait("st1")
    def iss():
        a(f"buffer_load_dwordx2 {V(32,2)}, v36, {S4(WS_)}, s69 offen sc1")
        if halo: a(f"buffer_load_dwordx2 {V(34,2)}, v37, {S4(WS_)}, s70 offen sc1")
    def chk():
        a(f"v_cmp_ne_u32 vcc, s{sT}, v33")
        if halo:
            a(f"v_cmp_ne_u32 s[61:62], s{sT}, v35".replace("s[61:62]", "s[72:73]"))
            a("s_nop 0")
            a("s_or_b64 vcc, vcc, s[72:73]")
        a("s_cmp_eq_u64 vcc, 0")
    spin(a, iss, chk)
    a("v_bfe_u32 v38, v1, 1, 1")
    a("v_lshrrev_b32 v39, 2, v1")
    a("v_lshl_add_u32 v38, v38, 4, v39")
    a(f"s_lshl_b32 s61, s{sQ}, 7")
    a(f"s_add_u32 s61, s61, {L_TAB}")
    a("v_lshl_add_u32 v38, v38, 2, s61")
    a("v_mov_b32_dpp v33, v32 quad_perm:[1,0,3,2] row_mask:0xf bank_mask:0xf")
    if halo:
        a("v_mov_b32_dpp v35, v34 quad_perm:[1,0,3,2] row_mask:0xf bank_mask:0xf")
        a("v_lshlrev_b32 v39, 1, v1")
        a("v_and_b32 v39, 0x3c, v39")
        a(f"v_add_u32 v39, {L_TAB + 512}, v39")
        a("v_rsq_f32 v33, v33\nv_rsq_f32 v35, v35")
        a("s_mov_b32 exec_lo, 0x55555555\ns_mov_b32 exec_hi, 0x55555555")
        a(f"ds_write_b32 v38, v32\nds_write_b32 v38, v33 offset:{TP}")
        a(f"ds_write_b32 v39, v34\nds_write_b32 v39, v35 offset:{TP}")
    else:
        a("v_rsq_f32 v34, v33")
        a("v_sqrt_f32 v33, v33")
        a("v_mul_f32 v35, v34, v34")
        a("v_mul_f32 v35, v35, v34")
        a(f"v_mul_f32 v35, {f2u(-C2):#x}, v35")
        a(f"v_mul_f32 v34, {f2u(-C1):#x}, v34")
        a("s_mov_b32 exec_lo, 0x55555555\ns_mov_b32 exec_hi, 0x55555555")
        for k, r in enumerate((32, 35, 34, 33)): a(f"ds_write_b32 v38, v{r} offset:{TP*k}")
    a("s_mov_b64 exec, -1")
    a("s_waitcnt lgkmcnt(0)")

def b_early(a):
    a("v_and_b32 v3, 15, v1")
    a("v_bfe_u32 v31, v1, 4, 1")
    a("v_lshl_add_u32 v3, v3, 1, v31")
    a("v_lshlrev_b32 v3, 1, v3")
    a(f"s_lshl_b32 s61, s{sRB}, 2")
    a(f"s_add_u32 s61, s61, s{sQ}")
    a("s_lshl_b32 s61, s61, 6")
    a(f"s_cmp_eq_u32 s{sKS}, 0")
    a("s_cselect_b32 s61, s61, 4096")
    a.vmem(f"buffer_load_ushort v0, v3, {S4(BSP_)}, s61 offen", "b")

def b_compute(a, fused):
    ACC = 32
    ring = list(range(80, 144, 4))
    Z1 = 144
    OF = 168
    a("v_and_b32 v3, 31, v1")
    a("v_lshrrev_b32 v30, 5, v1")
    a("v_bfe_u32 v31, v1, 1, 3")
    a("v_xor_b32 v31, v30, v31")
    a("v_lshlrev_b32 v3, 7, v3")
    a("v_lshl_add_u32 v10, v31, 4, v3")
    a(f"s_lshl_b32 s61, s{sQ}, 12")
    a("v_add_u32 v10, s61, v10")
    for b4 in range(1, 4): a(f"v_xor_b32 v{10+b4}, {32*b4}, v10")
    for b4 in range(4): a(f"v_add_u32 v{14+b4}, 0x10000, v{10+b4}")
    a("v_lshlrev_b32 v19, 4, v1")
    a(f"v_add_u32 v18, {L_Z2}, v19")
    a(f"v_add_u32 v21, {L_Z2 + 49152}, v19")
    a(f"s_lshl_b32 s57, s{sRB}, 2")
    a(f"s_add_u32 s57, s57, s{sQ}")
    if not fused: b_early(a)
    zcount(a, 55, 58, sCG)
    a("s_mul_i32 s53, s57, 48")
    a("s_add_u32 s53, s53, s55")
    a("s_lshl_b32 s53, s53, 10")
    a(f"s_mul_i32 s61, s{sKS}, {64*48*1024}")
    a("s_add_u32 s54, s53, s61")
    a(f"s_add_u32 s53, s53, {WS_Z1}")
    a(f"s_add_u32 s54, s54, {WS_H}")
    a("s_add_u32 s59, s54, 4096")
    a(f"s_mov_b32 s60, {OOB}")
    if not fused: a.vmwait("b")
    a("v_lshlrev_b32 v22, 16, v0")
    for r in range(16): a(f"v_mov_b32 v{232+r}, v22")
    def z1_load():
        pass
    def z1_piece(j):
        def f():
            if j == 4: a("s_add_u32 s53, s53, 4096")
            if j >= 2:
                a(f"s_cmp_gt_u32 s58, {j}")
                a("s_cselect_b32 s53, s53, s60")
            l = a.label("Lnz")
            a(f"s_cmp_lg_u32 s{sTYP}, 0")
            a(f"s_cbranch_scc1 {l}")
            a.vmem(f"buffer_load_dwordx4 {V(Z1+4*j)}, v19, {S4(WS_)}, s53 offen offset:{(j%4)*1024} sc1{' nt' if opt('ost', 0) else ''}", "z1")
            a(f"{l}:")
        return f
    extras = []
    zs = opt('z1step', 13)
    for j in range(6): extras.append((zs, z1_piece(j), lambda done: True, 99))
    a(f"s_lshl_b32 s56, s{sRC}, 1")
    a(f"s_and_b32 s61, s{sQ}, 1")
    a("s_add_u32 s56, s56, s61")
    a("s_lshl_b32 s56, s56, 1")
    a(f"s_lshr_b32 s61, s{sQ}, 1")
    a("s_add_u32 s56, s56, s61")
    a("s_lshl_b32 s56, s56, 14")
    a(f"s_add_u32 s56, s56, {WS_O}")
    def o_piece(b):
        def f():
            if b and b % 4 == 0: a("s_add_u32 s56, s56, 4096")
            a.vmem(f"buffer_load_dwordx4 {V(OF+4*b)}, v19, {S4(WS_)}, s56 offen offset:{(b%4)*1024} sc1{' nt' if opt('ost', 0) else ''}", ("o", b))
        return f
    a.o_piece = o_piece
    def preB(st):
        if fused and st == opt('f2step', 2):
            a(f"v_mov_b32 v30, s{sT}")
            a("v_mov_b32 v31, 0")
            a.vmall()
            a("s_mov_b64 exec, 1")
            a.vmem(f"buffer_store_dword v30, v31, {S4(WS_)}, s75 offen sc1", "flag")
            a("s_mov_b64 exec, -1")
    def build(nc):
        fr = {}; mf = []
        for i in range(16):
            for b4 in range(4):
                fr[('w', i, b4)] = dict(step=i, reg=None, reads=[lambda r, i=i, b4=b4: f"ds_read_b128 {V(r)}, v{10 + b4 + 4*((i%NWS)//4)} offset:{((i%NWS)%4)*16384}"])
                for c in range(nc):
                    fr[('z', i, b4, c)] = dict(step=i, reg=None, reads=[lambda r, i=i, b4=b4, c=c: f"ds_read_b128 {V(r)}, v{18 if ZOFF(i) < 49152 else 21} offset:{ZOF2(i) + (b4*3+c)*1024}"])
                    mf.append((ACC+16*c, ('z', i, b4, c), ('w', i, b4)))
        return mf, fr
    a.stamp()
    a("s_barrier")
    def deferred():
        lz = a.label("Ldz"); le = a.label("Lde")
        a(f"s_cmp_lg_u32 s{sTYP}, 0")
        a(f"s_cbranch_scc1 {lz}")
        if opt('defer', 0) == 1:
            for tl in range(4): a(f"buffer_store_dwordx4 {V(112+4*tl)}, v4, {S4(WS_)}, s{64+(tl>>1)} offen offset:{256*(tl&1)} sc1")
        a(f"s_branch {le}")
        a(f"{lz}:")
        for j in range(6): a(f"buffer_store_dwordx4 {V(144+4*j)}, v19, {S4(WS_)}, s{64+j} offen offset:{(j%4)*1024} sc1")
        a(f"{le}:")
    if opt('defer', 0) and opt('dstep', -1) < 0: deferred()
    elif opt('defer', 0): extras.insert(0, (opt('dstep', 0), deferred, lambda done: True, 99))
    l7 = a.label("Lb7"); lj = a.label("Lbj")
    vm0 = list(a.vm); n0 = a.nst
    if opt('b7', 1):
        a(f"s_cmp_eq_u32 s{sCG}, 7")
        a(f"s_cbranch_scc1 {l7}")
    for nc in ((3, 1) if opt('b7', 1) else (3,)):
        if nc == 1:
            a.split(l7 + "x"); a.L = []; a(f"{l7}:")
            a.head.pop()
        a.vm = list(vm0); a.nst = n0
        mf, fr = build(nc)
        ex = list(extras)
        gemm_stream(a, mf, fr, ring, opt('LAB', 5) if nc == 3 else 3, opt('coverB', 2) if nc == 3 else 1, preB,
                    first_zero=V(232, 16), stamps=(0, 1, 8, 10, 12, 14), pergap=opt('pgB', 2), slack=2, op=mfma32, extras=ex, skipbar=(15,))
        for e in ex: e[1]()
        if nc == 1:
            a(f"s_branch {lj}")
            a.unsplit()
            assert a.vm == vm3
        vm3 = list(a.vm)
    a(f"{lj}:")
    a.stamp()
    a(f"s_lshl_b32 s61, s{sQ}, 2")
    a(f"s_add_u32 s61, s61, {L_BF}")
    a("v_mov_b32 v22, s61")
    a(f"v_mov_b32 v23, s{sT}")
    a("ds_write_b32 v22, v23")
    a.vmwait("z1")
    a("v_mov_b32 v23, 0xffff0000")
    for j in range(6):
        x = ACC + 8*j; z = Z1 + 4*j; t = 80 + 8*(j&1)
        for k in range(4):
            a(f"v_lshlrev_b32 v{t+2*k}, 16, v{z+k}")
            a(f"v_and_b32 v{t+2*k+1}, v23, v{z+k}")
        a(f"s_cmp_gt_u32 s58, {j}")
        a(f"s_cselect_b32 s61, s{54 if j < 4 else 59}, s60")
        for k in range(4): a(f"v_pk_mul_f32 {V(x+2*k,2)}, {V(x+2*k,2)}, {V(t+2*k,2)}")
        for k in range(4): a(f"v_cvt_pk_bf16_f32 v{x+k}, v{x+2*k}, v{x+2*k+1}")
        a.vmem(f"buffer_store_dwordx4 {V(x)}, v19, {S4(WS_)}, s61 offen offset:{(j%4)*1024} sc1{' nt' if opt('hst', 0) else ''}", "h")
    a.stamp()

CR = 104
NCR = int(os.environ.get('NCR', 16))
def cw_load(a, lo, hi):
    if NCR == 0: return
    if lo == 0: cw_load_setup(a)
    for i in range(lo, min(hi, NCR)):
        R, k = (WO_, i) if i < 16 else (WOUT_, i - 16)
        a(f"s_add_u32 s46, s47, {k*32768}")
        a.vmem(f"buffer_load_dwordx4 {V(CR+4*i)}, v26, {S4(R)}, s46 offen", "CW")
def cw_load_setup(a):
    a("v_bfe_u32 v3, v1, 4, 1")
    a("v_lshlrev_b32 v3, 2, v3")
    a("v_and_b32 v30, 7, v1")
    a("v_xor_b32 v30, v30, v3")
    a("v_lshrrev_b32 v3, 3, v1")
    a("v_lshlrev_b32 v3, 10, v3")
    a("v_lshl_add_u32 v26, v30, 4, v3")
    a(f"s_lshl_b32 s47, s{sCG}, 7")
    a(f"s_lshl_b32 s61, s{sQ}, 13")
    a("s_add_u32 s47, s47, s61")
def cw_dma(a, lo, hi):
    for i in range(max(lo, NCR), hi):
        off = CSLOT[i // 4]*16384 + (4*i % 16)*1024
        R, k = (WO_, i) if i < 16 else (WOUT_, i - 16)
        a(f"s_add_u32 m0, s76, {off}")
        a(f"s_add_u32 s46, s47, {k*32768}")
        a.vmem(f"buffer_load_dwordx4 v26, {S4(R)}, s46 offen lds", "WO" if i < 16 else "CW2")
def cw_write(a, lo, hi):
    for i in range(lo, min(hi, NCR)):
        g4 = 4*i
        off = CSLOT[g4 // 16]*16384 + (g4 % 16)*1024
        a(f"ds_write_b128 v{27 + (off >> 16)}, {V(CR+4*i)} offset:{off & 0xffff}")

CSLOT = [6, 0, 1, 7, 2, 3, 4, 5, 8, 9]
RED2 = 98304
def b_helper(a, fused):
    if not fused:
        late_srds(a)
        wsp_setup_h(a)
        a(f"s_lshl_b32 s60, s{sQ}, 12")
    a("v_lshlrev_b32 v10, 4, v1")
    a(f"s_lshl_b32 s61, s{sQ}, 10")
    a("v_add_u32 v27, s61, v10")
    a("v_add_u32 v28, 0x10000, v27")
    a("v_add_u32 v29, 0x20000, v27")
    a(f"s_lshl_b32 s53, s{sCG}, 1")
    a(f"s_add_u32 s53, s53, s{sKS}")
    a(f"s_mul_i32 s53, s53, {16*12288}")
    a(f"s_mul_i32 s54, s{sQ}, 3072")
    a("s_add_u32 s53, s53, s54")
    a(f"s_add_u32 s53, s53, {WS_Z2N}")
    a(f"s_add_u32 s54, s54, {L_Z2}")
    zcount(a, 61, 62, sCG)
    a("v_bfe_u32 v3, v1, 4, 1")
    for k in (1, 2):
        a(f"v_add_u32 v30, {2*k}, v3")
        a("v_cmp_le_u32 vcc, s62, v30")
        a("s_nop 1")
        a("v_cndmask_b32_e64 v30, 0, 1, vcc")
        a(f"v_lshl_add_u32 v{13+k}, v30, 28, v10")
    def z2_group(i):
        a(f"s_add_u32 s61, s{sK0B}, {i}")
        a("s_and_b32 s61, s61, 15")
        a("s_mul_i32 s61, s61, 12288")
        a(f"s_add_u32 m0, s54, {ZOFF(i)}")
        a("s_add_u32 s61, s61, s53")
        for k in range(3): a.vmem(f"buffer_load_dwordx4 v{(10, 14, 15)[k]}, {S4(WS_)}, s61 offen offset:{1024*k} sc1 lds", ("Z", i))
    a.stamp()
    if fused:
        a(f"s_lshl_b32 s71, s{sCG}, 1")
        a(f"s_add_u32 s71, s71, s{sKS}")
        a("s_lshl_b32 s71, s71, 12")
        a(f"s_add_u32 s71, s71, {F1_OFF}")
        a("v_and_b32 v31, 31, v1")
        a("v_lshlrev_b32 v31, 7, v31")
        a(f"v_mov_b32 v30, 0")
        def iss(): a(f"buffer_load_dword v30, v31, {S4(WS_)}, s71 offen sc1")
        def chk():
            a(f"v_cmp_ne_u32 vcc, s{sT}, v30")
            a("s_cmp_eq_u64 vcc, 0")
        wp = opt('wp', 4)
        lA = a.label("LfA")
        lB = a.label("LfB")
        iss(); a("s_waitcnt vmcnt(0)")
        a(f"s_cmp_ge_u32 s72, {NWS}")
        a(f"s_cbranch_scc1 {lB}")
        for v in ([] if opt('wreg', 0) else range(wp, NWS)):
            chk()
            a(f"s_cbranch_scc1 {lA}")
            wsp_group_h(a, v)
            a(f"s_mov_b32 s72, {v + 1}")
            iss(); a("s_waitcnt vmcnt(0)")
        a(f"{lB}:")
        spin(a, iss, chk)
        a("s_waitcnt vmcnt(0)")
        a(f"{lA}:")
        a.vm = []
        a.stamp()
        if opt('wreg', 0):
            l = a.label("Lwr")
            a(f"s_cmp_lg_u32 s72, {NWS + 1}")
            a(f"s_cbranch_scc1 {l}")
            a(f"v_mov_b32 v30, {L_FLG + 16}")
            lds_wait(a, 30, 4, 96)
            a(f"{l}:")
        for i in range(NZS - 1): z2_group(i)
        if opt('wreg', 0):
            l = a.label("Lwr")
            a(f"s_cmp_lg_u32 s72, {NWS + 1}")
            a(f"s_cbranch_scc1 {l}")
            a("v_add_u32 v12, s60, v10")
            a("v_add_u32 v13, 0x10000, v12")
            for v in range(3, NWS):
                for k in range(4): a(f"ds_write_b128 v{12 + ((v*16384) >> 16)}, {V(RW + 16*(v-3) + 4*k)} offset:{((v*16384) & 0xffff) + 1024*k}")
            a("s_waitcnt lgkmcnt(0)")
            a(f"{l}:")
        a("v_mov_b32 v25, 256")
        def late_group(v):
            ld = a.label("Lld"); le = a.label("Lle")
            a(f"s_cmp_gt_u32 s72, {v}")
            a(f"s_cbranch_scc1 {ld}")
            wsp_group_h(a, v)
            a(f"s_branch {le}")
            a(f"{ld}:")
            a("s_mov_b64 exec, 1")
            for k in range(4): a(f"buffer_load_dword v24, v25, {S4(DBG_)}, 0 offen")
            a("s_mov_b64 exec, -1")
            a(f"{le}:")
    a("s_barrier")
    wpre = NWS
    a("v_add_u32 v18, 4096, v8")
    a("v_add_u32 v19, 4096, v9")
    def wsp_pieces(v):
        def f(k):
            if k == 0:
                a(f"s_add_u32 s58, s{sK0B}, {v}")
                a("s_and_b32 s58, s58, 15")
                a("s_lshl_b32 s58, s58, 7")
                a("s_add_u32 s58, s58, s59")
            a(f"s_add_u32 m0, s60, {(v % NWS) * 16384 + 2048*(k>>1)}")
            a("s_nop 0")
            a.vmem(f"buffer_load_dwordx4 v{(8, 9, 18, 19)[k]}, {S4(WSP_)}, s58 offen offset:{1024*(k&1)} {NT('s')}lds", ("S", v))
        return [(lambda k=k: f(k)) for k in range(4)]
    nud = 0
    a(f"s_lshl_b32 s76, s{sQ}, 10")
    if NCR == 0: cw_load_setup(a)
    bg = []
    for v in range(wpre, 16): bg += [(max(0, v - NWS + 1), p, v) for p in wsp_pieces(v)]
    for i in range(16):
        assert all(x[2] > i for x in bg), i
        if i == 15: break
        a.vmwait(("S", i)); a.vmwait(("Z", i))
        if i == 14:
            assert not bg
            a.vmwait(("S", 15)); a.vmwait(("Z", 15))
        if fused and i == opt('z1step', 13): f2_check_q(a)
        a("s_barrier")
        if i in (0, 1, 8, 10, 12, 14): a.stamp()
        if fused and i == opt('f2step', 2): flag_store(a, "F2")
        if fused and i == opt('z1step', 13) - 3: f2_issue(a)
        lg = opt('lg', 2)
        for v in ([] if opt('wreg', 0) else range(wp + lg*i, min(NWS, wp + lg*(i + 1)))):
            assert v > i
            late_group(v)
        if i + NZS - 1 < 16: z2_group(i + NZS - 1)
        if i == 13: f2_issue2(a)
        if i == opt('cwt', 99):
            a(f"s_and_b32 s61, s{sRB}, 3")
            a("s_lshl_b32 s61, s61, 2")
            a(f"s_add_u32 s61, s61, s{sQ}")
            a(f"s_mul_i32 s61, s61, {43*1024}")
            a(f"s_lshl_b32 s62, s{sCG}, 7")
            a("s_add_u32 s61, s61, s62")
            a("v_lshlrev_b32 v31, 10, v1")
            a("s_mov_b32 exec_hi, 0x7ff")
            a.vmem(f"buffer_load_dword v24, v31, {S4(WOUT_)}, s61 offen", "pf")
            a("s_mov_b32 exec_hi, -1")
        n = opt('pace', 3)
        while n > 0 and bg and bg[0][0] <= i:
            bg.pop(0)[1](); n -= 1
    nud = opt('nud', 2)
    cw_write(a, 0, 4)
    cw_dma(a, 16, 16 + 4*nud)
    a(f"v_mov_b32 v30, {L_BF}")
    lds_wait(a, 30, 4, 32, True)
    a.stamp()
    cw_write(a, 4, 16)
    f2_check_z(a)
    a.nud = nud

def f2_issue(a):
    a(f"s_lshl_b32 s62, s{sRB}, 11")
    a(f"s_add_u32 s62, s62, {F2_OFF + 8*128}")
    a(f"s_lshr_b32 s61, s{sRC}, 1")
    a("s_lshl_b32 s61, s61, 12")
    a(f"s_add_u32 s61, s61, {FO_OFF}")
    a("v_lshlrev_b32 v21, 7, v1")
    a("v_add_u32 v20, s61, v21")
    if opt('z1g', 0):
        a("v_and_b32 v21, 0x380, v21")
        a("v_add_u32 v21, s62, v21")
    else:
        a(f"s_lshl_b32 s63, s{sCG}, 7")
        a("s_add_u32 s62, s62, s63")
        a("v_mov_b32 v21, s62")
    a("v_cmp_lt_u32 vcc, 31, v1")
    a("s_nop 1")
    a("v_cndmask_b32 v20, v20, v21, vcc")
    a(f"s_cmp_eq_u32 s{sTYP}, 0")
    a(f"s_cselect_b32 s77, 0, {OOB}")
    a(f"s_cselect_b32 s62, {OOB}, 0")
    a("s_mov_b32 s78, s62")
    a.vmem(f"buffer_load_dword v21, v20, {S4(WS_)}, s77 offen sc1", "f2")
def f2_issue2(a):
    a.vmem(f"buffer_load_dword v22, v20, {S4(WS_)}, s78 offen sc1", "f2b")
def f2_check_q(a):
    l = a.label("Lf2z")
    a(f"s_cmp_lg_u32 s{sTYP}, 0")
    a(f"s_cbranch_scc1 {l}")
    vm = list(a.vm)
    f2_check(a)
    a(f"{l}:")
    a.vm = vm
def f2_check_z(a):
    a.vmwait("f2b")
    a("v_or_b32 v21, v21, v22")
    f2_check(a)
def f2_check(a):
    a.vmwait("f2")
    def iss(): a(f"buffer_load_dword v21, v20, {S4(WS_)}, 0 offen sc1")
    def chk():
        a(f"v_cmp_ne_u32 vcc, s{sT}, v21")
        a("s_cmp_eq_u64 vcc, 0")
    spin(a, iss, chk)

L_RED = 0
def c_waddr(a, d):
    a("v_lshrrev_b32 v3, 5, v1")
    a("v_bfe_u32 v30, v1, 2, 2")
    a("v_lshl_add_u32 v3, v3, 2, v30")
    a("v_lshlrev_b32 v3, 7, v3")
    a("v_and_b32 v30, 2, v30")
    a("v_bfe_u32 v31, v1, 4, 1")
    a("v_or_b32 v30, v30, v31")
    a("v_lshl_add_u32 v3, v30, 5, v3")
    a("v_and_b32 v30, 3, v1")
    a(f"v_lshl_add_u32 v{d}, v30, 3, v3")
    a(f"v_xor_b32 v{d+1}, 64, v{d}")

def c_stream(a, nblk, fragreg, tagf, areg, blk0, ring, ACC, first_zero, loads=(), off0=0, order=None, xor=None):
    fr = {}; mf = []
    order = order or list(range(nblk))
    for b in order:
        fr[('h', b)] = dict(step=0, reg=fragreg(b), reads=None)
        for nn in range(2):
            off = CSLOT[(blk0 + b) // 8] * 16384 + ((blk0 + b) % 8) * 2048 if off0 is not None else (b // 8) * 65536 + (b % 8) * 2048
            fr[('w', b, nn)] = dict(step=0, reg=None, reads=[(lambda r, hh=hh, nn=nn, off=off: f"ds_read_b64_tr_b16 {V(r+2*hh,2)}, v{areg(off >> 16) + nn} offset:{(off & 0xffff) + hh*1024}") for hh in range(2)])
            if xor and b < xor[0]:
                base, tmp, imm = xor[1], xor[2], xor[3]
                fr[('w', b, nn)]['reads'] = [lambda r, nn=nn, b=b: f"v_xor_b32 v{tmp}, {b*2048 + 64*nn}, v{base}\nds_read_b64_tr_b16 {V(r,2)}, v{tmp} offset:{imm}",
                                             lambda r: f"ds_read_b64_tr_b16 {V(r+2,2)}, v{tmp} offset:{imm + 1024}"]
            mf.append((ACC+16*nn, ('w', b, nn), ('h', b)))
    cnt = [0]
    def op(d, x, y, c):
        b = order[cnt[0] // 2]
        if cnt[0] % 2 == 1 and loads: loads.pop(0)()
        cnt[0] += 1
        a.vmwait(tagf(b))
        return mfma32(d, x, y, c)
    gemm_stream(a, mf, fr, ring, opt('LAC', 4), 0, lambda st: None, first_zero=first_zero, pergap=2, slack=2, op=op, skip_first_barrier=True)

def c_final(a):
    a.vmwait("x")
    for w in range(4):
        a(f"v_lshlrev_b32 v{64+2*w}, 16, v{8+w}")
        a(f"v_and_b32 v{65+2*w}, 0xffff0000, v{8+w}")
    a("s_waitcnt lgkmcnt(0)")
    a("s_barrier")
    for k in range(2):
        a(f"ds_read_b128 {V(16+8*k)}, v{6-k}")
        a(f"ds_read_b128 {V(20+8*k)}, v{6-k} offset:16")
    a("s_waitcnt lgkmcnt(2)")
    for w in range(4): a(f"v_pk_add_f32 {V(64+2*w,2)}, {V(64+2*w,2)}, {V(16+2*w,2)}")
    a("s_waitcnt lgkmcnt(0)")
    for w in range(4): a(f"v_pk_add_f32 {V(64+2*w,2)}, {V(64+2*w,2)}, {V(24+2*w,2)}")
    for w in range(4): a(f"v_cvt_pk_bf16_f32 v{32+w}, v{64+2*w}, v{65+2*w}")
    a.vmem(f"buffer_store_dwordx4 {V(32)}, v7, {S4(OUT_)}, s47 offen {('', 'sc1', 'nt', 'sc0 sc1', 'sc1 nt')[opt('outf', 0)]}", "out")

def c_final_setup(a):
    a("v_lshrrev_b32 v3, 3, v1")
    a(f"s_lshl_b32 s61, s{sW}, 3")
    a("v_add_u32 v3, s61, v3")
    a("v_and_b32 v30, 7, v1")
    a("v_mul_u32_u24 v6, 272, v3")
    a("v_lshl_add_u32 v6, v30, 5, v6")
    a(f"v_add_u32 v5, {RED2}, v6")
    a("v_and_b32 v31, 15, v3")
    a("v_lshlrev_b32 v31, 1, v31")
    a("v_bfe_u32 v7, v3, 4, 1")
    a("v_add_u32 v31, v31, v7")
    a("v_and_b32 v7, 32, v3")
    a("v_add_u32 v31, v31, v7")
    a("v_lshlrev_b32 v31, 10, v31")
    a("v_lshl_add_u32 v7, v30, 4, v31")
    a(f"s_lshl_b32 s47, s{sRC}, 9")
    a(f"s_add_u32 s47, s47, s{sCG}")
    a("s_lshl_b32 s47, s47, 7")
    a.vmem(f"buffer_load_dwordx4 {V(8)}, v7, {S4(X_)}, s47 offen", "x")

def c_compute(a, fused):
    ACC, OF, HF = 32, 168, 80
    a(f"s_and_b32 s53, s{sQ}, 1")
    a(f"s_lshr_b32 s54, s{sQ}, 1")
    c_waddr(a, 26)
    a("s_cmp_eq_u32 s54, 0")
    a(f"s_mov_b32 s61, {CSLOT[2]*16384}")
    a(f"s_cselect_b32 s61, {CSLOT[0]*16384}, s61")
    a(f"s_mov_b32 s62, {CSLOT[3]*16384}")
    a(f"s_cselect_b32 s62, {CSLOT[1]*16384}, s62")
    a("v_add_u32 v4, s61, v26\nv_add_u32 v5, s61, v27")
    a("v_add_u32 v6, s62, v26\nv_add_u32 v7, s62, v27")
    def flag():
        a("s_lshl_b32 s61, s57, 1")
        a(f"s_add_u32 s61, s61, s{sKS}")
        a("s_lshl_b32 s61, s61, 3")
        a(f"s_add_u32 s61, s61, s{sCG}")
        a("s_lshl_b32 s61, s61, 7")
        a(f"s_add_u32 s61, s61, {F3_OFF}")
        a(f"v_mov_b32 v30, s{sT}")
        a("v_mov_b32 v31, 0")
        a.vmwait("h")
        a("s_mov_b64 exec, 1")
        a.vmem(f"buffer_store_dword v30, v31, {S4(WS_)}, s61 offen sc1", "flag")
        a("s_mov_b64 exec, -1")
        a.stamp()
    no = opt('no', 8)
    if no < 0: flag()
    a("s_barrier")
    for b in range(max(no, 0)): a.o_piece(b)()
    if no >= 0: flag()
    if opt('bc2', 1): a("s_barrier")
    for b in range(max(no, 0), 16): a.o_piece(b)()
    c_stream(a, 16, lambda b: OF+4*b, lambda b: ("o", b), lambda k: 4 + 2*k, 0, list(range(80, 112, 4)), ACC, True, off0=None)
    a.stamp()
    a("v_add_u32 v252, 0x10000, v26\nv_add_u32 v253, 0x10000, v27")
    a("v_add_u32 v254, 0x20000, v26\nv_add_u32 v255, 0x20000, v27")
    a(f"s_lshl_b32 s55, s{sRC}, 1")
    a("s_add_u32 s55, s55, s53")
    a("s_lshl_b32 s56, s54, 6")
    a("s_add_u32 s56, s56, s55")
    a("s_mul_i32 s56, s56, 49152")
    a(f"s_add_u32 s56, s56, {WS_H}")
    a("v_lshlrev_b32 v28, 4, v1")
    c_final_setup(a)
    a("v_and_b32 v3, 31, v1")
    a("v_mul_u32_u24 v3, 272, v3")
    a("v_lshrrev_b32 v30, 5, v1")
    a("v_lshl_add_u32 v3, v30, 4, v3")
    a(f"s_mul_i32 s61, s54, {RED2}")
    a(f"s_mul_i32 s62, s53, {32*272}")
    a("s_add_u32 s61, s61, s62")
    a("v_add_u32 v4, s61, v3")
    a("s_lshl_b32 s62, s55, 1")
    a("s_add_u32 s62, s62, s54")
    a("s_lshl_b32 s62, s62, 10")
    a(f"s_add_u32 s62, s62, {F3_OFF}")
    a("v_and_b32 v31, 7, v1")
    a("v_lshlrev_b32 v31, 7, v31")
    a("v_mov_b32 v30, 0")
    def iss(): a(f"buffer_load_dword v30, v31, {S4(WS_)}, s62 offen sc1")
    def chk():
        a(f"v_cmp_ne_u32 vcc, s{sT}, v30")
        a("s_cmp_eq_u64 vcc, 0")
    if opt('pp3', 1) > 1: spin_pipe(a, 31, 62, [30, 29, 25, 24][:opt('pp3', 1)], opt('ppgap', 4))
    else: spin(a, iss, chk)
    a.vm = []
    a.stamp()
    a("v_add_u32 v29, 4096, v28")
    def hload(b):
        if HX and b < 32:
            if b % 4 == 0: a(f"s_xor_b32 s61, s77, {b*1024}\ns_add_u32 s61, s61, s56"); cur[0] = -1
            a.vmem(f"buffer_load_dwordx4 {V(HF+4*b)}, v28, {S4(WS_)}, s61 offen offset:{(b%4)*1024} sc1{' nt' if opt('hld', 0) else ''}", ("H", b))
            return
        w = b // 8
        if w != cur[0]:
            a(f"s_add_u32 s61, s56, {w*8192}"); cur[0] = w
        a.vmem(f"buffer_load_dwordx4 {V(HF+4*b)}, v{28 + (b%8)//4}, {S4(WS_)}, s61 offen offset:{(b%4)*1024} sc1{' nt' if opt('hld', 0) else ''}", ("H", b))
    PH = opt('PH', 12)
    HX = opt('hx', 0)
    assert CSLOT[4:8] == [2, 3, 4, 5]
    a(f"s_and_b32 s77, s{sCG}, {opt('hxm', 7)}")
    a("s_lshl_b32 s77, s77, 12")
    a("s_lshl_b32 s62, s77, 1")
    if HX: a("v_xor_b32 v26, s62, v26")
    ring = list(range(64, 80, 4)) + [12, 16, 20]
    nv = opt('hv', 1)
    lj = a.label("Lhj"); labs = [a.label("Lhv") for _ in range(nv)]
    if nv > 1:
        a(f"s_and_b32 s62, s{sCG}, {nv-1}")
        for k in range(1, nv):
            a(f"s_cmp_eq_u32 s62, {k}")
            a(f"s_cbranch_scc1 {labs[k]}")
    for k in range(nv):
        if k:
            a.split("X"); a.L = []; a.head.pop(); a(f"{labs[k]}:")
        order = [(b + k*43//nv) % 43 for b in range(43)]
        a.vm = []; cur = [-1]
        for b in order[:PH]: hload(b)
        a("s_barrier")
        c_stream(a, 43, lambda b: HF+4*b, lambda b: ("H", b), lambda k: (26, 252, 254)[k], 32, ring, ACC, False,
                 [(lambda b=b: hload(b)) for b in order[PH:]], order=order, xor=((32, 26, 27, 32768) if HX else None))
        if k:
            a(f"s_branch {lj}"); a.unsplit()
    a(f"{lj}:")
    a.stamp()
    a("s_nop 10")
    for nn in range(2):
        for jj in range(4): a(f"ds_write_b128 v4, {V(ACC+16*nn+4*jj)} offset:{128*nn + 32*jj}")
    c_final(a)

def c_helper(a, fused):
    a.vmwait("WO")
    a("s_waitcnt lgkmcnt(0)")
    a("s_barrier")
    if opt('bc2', 1): a("s_barrier")
    cw_dma(a, 16 + 4*a.nud, 38)
    c_final_setup(a)
    a.vmwait("CW2")
    a("s_waitcnt lgkmcnt(0)")
    a.stamp()
    a("s_barrier")
    c_final(a)

def diag_out(a, base):
    if opt('padto', 0):
        l = a.label("Lpad")
        if opt('leak', -1) >= 0:
            a("s_nop 0")
            a(f"v_readlane_b32 s61, v2, {opt('leak', 0)}")
            a("s_lshr_b32 s61, s61, 4")
            a(f"s_lshl_b32 s62, s{sW}, 10")
            a("s_add_u32 s62, s62, s2")
            a(f"s_cmp_eq_u32 s62, {opt('leakwg', 200)}")
            a("s_cselect_b32 s61, s61, 0")
            a("s_add_u32 s84, s84, s61")
        a(f"{l}:")
        a("s_sleep 1")
        a("s_memrealtime s[86:87]")
        a("s_waitcnt lgkmcnt(0)")
        a(f"s_sub_u32 s86, s86, s{sT if opt('padT', 0) else 84}")
        a(f"s_cmp_lt_i32 s86, {opt('padto', 0)}")
        a(f"s_cbranch_scc1 {l}")
    if opt('skew', 0):
        a(f"s_sub_u32 s61, s84, s{sT}")
        a("s_add_u32 s61, s61, 100000")
        a("v_mov_b32 v4, s61")
        a("v_mov_b32 v5, 8")
        a("s_mov_b64 exec, 1")
        a(f"buffer_atomic_umax v4, v5, {S4(DBG_)}, 0 offen")
        a("s_sub_u32 s61, 200000, s61")
        a("v_mov_b32 v4, s61")
        a(f"buffer_atomic_umax v4, v5, {S4(DBG_)}, 0 offen offset:4")
        a("s_mov_b64 exec, -1")
    if not a.diag: return
    a("v_writelane_b32 v2, s84, 62")
    a("s_memrealtime s[86:87]")
    a("s_waitcnt lgkmcnt(0)")
    a("v_writelane_b32 v2, s86, 63")
    a("s_lshl_b32 s61, s2, 3")
    a(f"s_add_u32 s61, s61, s{sW}")
    a("s_lshl_b32 s61, s61, 8")
    a(f"s_add_u32 s61, s61, {base}")
    a("v_lshlrev_b32 v3, 2, v1")
    a(f"buffer_store_dword v2, v3, {S4(WS_)}, s61 offen")
    if opt('hdbg', -1) >= 0:
        l = a.label("Lhd")
        a(f"s_cmp_lg_u32 s2, {opt('hdbg', 0)}")
        a(f"s_cbranch_scc1 {l}")
        a(f"s_cmp_lg_u32 s{sW}, 0")
        a(f"s_cbranch_scc1 {l}")
        a("s_sub_u32 s86, s86, s84")
        a("v_mov_b32 v4, 0")
        a("v_writelane_b32 v4, s86, 1")
        for k, src in enumerate((0, 1, 3, 4, 5, 6, 7, 10, 11, 17, 18, 19, 20, 22)):
            a(f"v_readlane_b32 s61, v2, {src}")
            a("s_nop 3")
            a(f"v_writelane_b32 v4, s61, {2+k}")
        a("s_mov_b64 exec, 0xfffe")
        a(f"buffer_store_dword v4, v3, {S4(DBG_)}, 0 offen")
        a(f"{l}:")

def simple_kernel(name, diag, idx, comp, helper):
    a = G(diag)
    prologue(a, f"L{name}_end")
    a(f"s_cmp_ge_u32 s{sW}, 4")
    a(f"s_cbranch_scc1 L{name}_h")
    for k, fn in enumerate((comp, helper)):
        if k: a(f"L{name}_h:")
        a.vm = []; a.nst = 0
        fn(a)
        a.vmall(); a.stamp()
        diag_out(a, WS_DBG + idx*0x80000)
        a("s_endpgm")
    a(f"L{name}_end:")
    a("s_endpgm")
    return a.text()

def by_type(fq, fz, lab):
    def f(a):
        a(f"s_cmp_lg_u32 s{sTYP}, 0")
        a(f"s_cbranch_scc1 {lab}_z")
        fq(a, False)
        a.vmall()
        a(f"s_branch {lab}_e")
        n = a.nst
        a(f"{lab}_z:")
        a.vm = []; a.nst = 0
        fz(a, False)
        a(f"{lab}_e:")
        a.nst = max(a.nst, n)
    return f

def multi(diag):
    ka = simple_kernel("A", diag, 0, by_type(aq_compute, az_compute, "LAc"), by_type(aq_helper, az_helper, "LAh"))
    def bc(a): late_srds(a); b_compute(a, False)
    kb = simple_kernel("B", diag, 1, bc, lambda a: b_helper(a, False))
    kc = simple_kernel("C", diag, 2, lambda a: c_compute(a, False), lambda a: c_helper(a, False))
    return [("a_kernel", ka), ("b_kernel", kb), ("c_kernel", kc)]

def fused_kernel(diag):
    a = G(diag)
    prologue(a, "LF_end")
    a(f"s_cmp_lt_u32 s{sW}, 4")
    a("s_cbranch_scc1 LF_c")
    a(f"s_cmp_lg_u32 s{sTYP}, 0")
    a("s_cbranch_scc1 LF_hz")
    aq_helper(a, True)
    a("s_branch LF_hb")
    a.unsplit()
    a("LF_hz:")
    a.vm = []; a.nst = 0
    az_helper(a, True)
    a("LF_hb:")
    a.vm = []; a.nst = 10
    b_helper(a, True)
    c_helper(a, True)
    if diag: a.vmall(); a.stamp()
    diag_out(a, WS_DBG)
    a("s_endpgm")
    a.unsplit()
    a("LF_c:")
    a.vm = []; a.nst = 0
    early_srds(a)
    late_srds(a)
    nonce_publish(a)
    if opt('wpf', 0):
        l = a.label("Lwp")
        a(f"s_cmp_lt_u32 s{sQ}, 2")
        a(f"s_cbranch_scc1 {l}")
        a(f"s_cmp_eq_u32 s{sQ}, 2")
        a("s_cselect_b32 s96, s66, s72")
        a("s_cselect_b32 s97, s67, s73")
        a("s_and_b32 s97, s97, 0xffff")
        a(f"s_mov_b32 s98, {D*F2*2}")
        a(f"s_cmp_eq_u32 s{sQ}, 2")
        a(f"s_cselect_b32 s98, {D*1536*2}, s98")
        a("s_mov_b32 s99, 0x20000")
        a("s_cselect_b32 s61, 48, 43")
        a("s_mul_i32 s61, s61, s2")
        a("s_lshl_b32 s61, s61, 7")
        a("v_lshlrev_b32 v3, 7, v1")
        a(f"s_mov_b32 m0, {L_MISC}")
        a("s_mov_b32 exec_hi, 0xffff")
        a("buffer_load_dword v3, s[96:99], s61 offen lds")
        a("s_mov_b32 exec_hi, -1")
        a(f"{l}:")
    ln1_issue(a)
    b_early(a)
    if opt('tlb', 0):
        l = a.label("Ltlb")
        a(f"s_cmp_lg_u32 s{sQ}, 1")
        a(f"s_cbranch_scc1 {l}")
        a("v_lshlrev_b32 v3, 20, v1")
        a("s_lshl_b32 s61, s2, 7")
        a(f"s_mov_b32 m0, {L_MISC}")
        a("s_mov_b64 exec, 0x3fffff")
        a(f"buffer_load_dword v3, {S4(WS_)}, s61 offen lds")
        a("s_mov_b64 exec, 0xff")
        a(f"buffer_load_dword v3, {S4(WSP_)}, s61 offen lds")
        a("s_mov_b64 exec, 3")
        a(f"buffer_load_dword v3, {S4(OUT_)}, s61 offen lds")
        a("s_mov_b64 exec, 1")
        a(f"buffer_load_dword v3, {S4(WO_)}, s61 offen lds")
        a(f"buffer_load_dword v3, {S4(WOUT_)}, s61 offen lds")
        a("s_mov_b64 exec, -1")
        a(f"{l}:")
    a(f"s_cmp_lg_u32 s{sTYP}, 0")
    a("s_cbranch_scc1 LF_cz")
    vmc = list(a.vm)
    aq_compute(a, True)
    a("s_branch LF_cb")
    a("LF_cz:")
    a.vm = list(vmc); a.nst = 0
    az_compute(a, True)
    a(f"s_mov_b32 s75, {OOB}")
    a("LF_cb:")
    a.vm = []; a.nst = 10
    b_compute(a, True)
    c_compute(a, True)
    if diag: a.vmall(); a.stamp()
    diag_out(a, WS_DBG)
    a("s_endpgm")
    for t in a.tails: a.L += t
    a("LF_end:")
    a("s_endpgm")
    return [(KNAME, a.text())]

if __name__ == "__main__":
    diag = "diag" in sys.argv
    for x in sys.argv[2:]:
        if "=" in x:
            k, v = x.split("="); OPT[k] = int(v)
    ks = multi(diag) if 'multi' in sys.argv else fused_kernel(diag)
    hdr = open("cdna_kernels/" + KNAME[:-7] + ".s.ref").read().split("; Override")[0]
    txt = file_text([(n, 256, 512, LDS_BYTES) for n, t in ks], [(n, t, 256, 102, 256) for n, t in ks])
    if len(ks) == 1: txt = txt.replace(f"; @launch kernel={KNAME} ", "; @launch ")
    txt = "\n".join(l.strip() if l.startswith("    ") else l for l in txt.split("\n"))
    if opt('align', 1):
        import align
        txt, n1, n2 = align.align(txt)
    open(sys.argv[1], "w").write(hdr + txt)
```
